```python
import torch

def _softmax(x, axis=-1):
    return torch.softmax(x, dim=axis)

def _gelu(x):
    return torch.nn.functional.gelu(x, approximate='tanh')

def _silu(x):
    return torch.nn.functional.silu(x)

def _sigmoid(x):
    return torch.sigmoid(x)

def _layernorm(x, axis=-1, eps=1e-05):
    m = x.mean(dim=axis, keepdim=True)
    v = x.var(dim=axis, keepdim=True, unbiased=False)
    return (x - m) / torch.sqrt(v + eps)

def _scatter_add(tgt, idx, src, axis=0):
    return tgt.clone().index_add_(axis, idx, src)

def _segment_sum(src, seg, n):
    out = torch.zeros((n,) + src.shape[1:], dtype=src.dtype)
    return out.index_add_(0, seg, src)

def _pad(x, pw):
    flat = tuple((v for pair in reversed(pw) for v in pair))
    return torch.nn.functional.pad(x, flat)
kernel_name = 'adaLN_cond__sliding_block__geglu_ffn__prompt'

def setup_inputs():

    _w = lambda a: (lambda t: t.to(torch.bfloat16) if t.is_floating_point() else t)(torch.as_tensor(a))

    def _A_setup():
        B, S, D = (1, 2048, 512)
        return {'x': _w((lambda *s: torch.randn(*s, dtype=torch.bfloat16) * 0.05)(B, S, D)), 'wqkv': _w((lambda *s: torch.randn(*s, dtype=torch.bfloat16) * 0.05)(D, 3 * D)), 'wo': _w((lambda *s: torch.randn(*s, dtype=torch.bfloat16) * 0.05)(D, D))}
    _A_in = _A_setup()

    def _B_setup():
        B, S, D, F = (1, 2048, 512, 1792)
        return {'x': _w((lambda *s: torch.randn(*s, dtype=torch.bfloat16) * 0.05)(B, S, D)), 'w_gate': _w((lambda *s: torch.randn(*s, dtype=torch.bfloat16) * 0.05)(D, F)), 'w_up': _w((lambda *s: torch.randn(*s, dtype=torch.bfloat16) * 0.05)(D, F)), 'w_down': _w((lambda *s: torch.randn(*s, dtype=torch.bfloat16) * 0.05)(F, D))}
    _B_in = _B_setup()
    return {'A_x': _A_in['x'], 'A_wqkv': _A_in['wqkv'], 'A_wo': _A_in['wo'], 'B_x': _B_in['x'], 'B_w_gate': _B_in['w_gate'], 'B_w_up': _B_in['w_up'], 'B_w_down': _B_in['w_down'], 'c': _w((lambda *s: torch.randn(*s, dtype=torch.bfloat16) * 0.1)(1, 512) * 8.0), 'w_mod': _w((lambda *s: torch.randn(*s, dtype=torch.bfloat16) * 0.1)(512, 6 * 512) * 512 ** (-0.5) * 8.0)}

def reference(A_x, A_wqkv, A_wo, B_x, B_w_gate, B_w_up, B_w_down, c, w_mod):

    def _A_ref(x, wqkv, wo):
        B, S, D = x.shape
        H = 32
        Dh = D // H
        W = 256
        qkv = (lambda x, *d: x.permute(*d))((x @ wqkv).reshape(B, S, 3, H, Dh), 2, 0, 3, 1, 4)
        q, k, v = (qkv[0], qkv[1], qkv[2])
        scores = torch.einsum('bhqd,bhkd->bhqk', q, k) * Dh ** (-0.5)
        idx = torch.arange(S)
        mask = (idx[:, None] - idx[None, :] >= 0) & (idx[:, None] - idx[None, :] < W)
        scores = torch.where(mask[None, None], scores, -1000000000.0)
        p = _softmax(scores, axis=-1)
        o = torch.einsum('bhqk,bhkd->bhqd', p, v)
        return (lambda x, *d: x.permute(*d))(o, 0, 2, 1, 3).reshape(B, S, D) @ wo

    def _B_ref(x, w_gate, w_up, w_down):
        return _gelu(x @ w_gate) * (x @ w_up) @ w_down
    x = A_x
    mod = (_silu(c) @ w_mod).reshape(c.shape[0], 6, 1, -1)
    sa, ca, ga, sb, cb, gb = (mod[:, 0].clone(), mod[:, 1].clone(), mod[:, 2].clone(), mod[:, 3].clone(), mod[:, 4].clone(), mod[:, 5].clone())
    h = _layernorm(x, axis=-1) * (1 + ca) + sa
    x = x + ga * _A_ref(h, A_wqkv, A_wo)
    h = _layernorm(x, axis=-1) * (1 + cb) + sb
    x = x + gb * _B_ref(h, B_w_gate, B_w_up, B_w_down)
    return x
```

```python
import re

_REG = re.compile(r"^(-|\|)?(abs\()?([vas])(\d+|\[(\d+):(\d+)\])\)?\|?$")


def regs_of(op):
    op = op.strip()
    if op in ("vcc",):
        return [("s", 106), ("s", 107)]
    if op == "vcc_lo":
        return [("s", 106)]
    if op == "vcc_hi":
        return [("s", 107)]
    if op == "exec":
        return [("s", 126), ("s", 127)]
    if op == "exec_lo":
        return [("s", 126)]
    if op == "exec_hi":
        return [("s", 127)]
    if op == "m0":
        return [("s", 124)]
    m = _REG.match(op)
    if not m:
        return []
    f = m.group(3)
    if m.group(5) is not None:
        return [(f, i) for i in range(int(m.group(5)), int(m.group(6)) + 1)]
    return [(f, int(m.group(4)))]


TRANS = ("v_exp_f32", "v_log_f32", "v_rcp_f32", "v_rsq_f32", "v_sqrt_f32", "v_sin_f32", "v_cos_f32")


def split_ops(rest):
    ops = []
    cur = ""
    depth = 0
    for ch in rest:
        if ch in "[(":
            depth += 1
        if ch in "])":
            depth -= 1
        if ch == "," and depth == 0:
            ops.append(cur.strip())
            cur = ""
        else:
            cur += ch
    if cur.strip():
        ops.append(cur.strip())
    if ops:
        parts = ops[-1].split()
        mods = parts[1:]
        ops[-1] = parts[0]
    else:
        mods = []
    return ops, mods


class Ins:
    __slots__ = ("text", "mn", "ops", "mods", "kind", "wr", "rd", "passes", "srcc", "is_dpp", "is_perm", "states")

    def __init__(self, text):
        self.text = text
        t = text.split(";")[0].strip()
        sp = t.split(None, 1)
        self.mn = sp[0]
        self.ops, self.mods = split_ops(sp[1]) if len(sp) > 1 else ([], [])
        mn = self.mn
        self.wr = []
        self.rd = []
        self.passes = 0
        self.srcc = []
        self.is_dpp = "_dpp" in mn
        self.is_perm = mn.startswith("v_permlane")
        self.states = 1
        ops = self.ops
        if mn.startswith("v_mfma"):
            self.kind = "mfma"
            self.passes = 8 if "32x32x16" in mn else 4
            self.wr = regs_of(ops[0])
            self.rd = regs_of(ops[1]) + regs_of(ops[2]) + regs_of(ops[3])
            self.srcc = regs_of(ops[3])
        elif mn.startswith("v_"):
            self.kind = "trans" if any(mn.startswith(x) for x in TRANS) else "valu"
            if mn.startswith("v_permlane") and "swap" in mn:
                self.wr = regs_of(ops[0]) + regs_of(ops[1])
                self.rd = list(self.wr)
            elif mn.startswith("v_add_co") or mn.startswith("v_addc_co") or mn.startswith("v_sub_co"):
                self.wr = regs_of(ops[0]) + regs_of(ops[1])
                for o in ops[2:]:
                    self.rd += regs_of(o)
            else:
                self.wr = regs_of(ops[0])
                for o in ops[1:]:
                    self.rd += regs_of(o)
                if mn.startswith("v_fmac") or mn.startswith("v_dot2c") or self.is_dpp:
                    self.rd += regs_of(ops[0])
        elif mn.startswith("ds_read") or mn.startswith("ds_bpermute") or mn.startswith("ds_swizzle"):
            self.kind = "ds"
            self.wr = regs_of(ops[0])
            for o in ops[1:]:
                self.rd += regs_of(o)
        elif mn.startswith("ds_write"):
            self.kind = "ds"
            for o in ops:
                self.rd += regs_of(o)
        elif mn.startswith("buffer_load") or mn.startswith("global_load"):
            self.kind = "vmem"
            if "lds" in self.mods:
                for o in ops:
                    self.rd += regs_of(o)
                self.rd += [("s", 124)]
            else:
                self.wr = regs_of(ops[0])
                for o in ops[1:]:
                    self.rd += regs_of(o)
        elif mn.startswith("buffer_store") or mn.startswith("global_store") or mn.startswith("buffer_atomic"):
            self.kind = "vmem"
            for o in ops:
                self.rd += regs_of(o)
        elif mn == "s_nop":
            self.kind = "nop"
            self.states = int(ops[0], 0) + 1
        elif mn.startswith("s_"):
            self.kind = "salu"
            if mn.startswith("s_cmp") or mn.startswith("s_cbranch") or mn in ("s_branch", "s_waitcnt", "s_barrier", "s_endpgm", "s_sleep", "s_setprio") or mn.startswith("s_bitcmp"):
                for o in ops:
                    self.rd += regs_of(o)
            else:
                if ops:
                    self.wr = regs_of(ops[0])
                for o in ops[1:]:
                    self.rd += regs_of(o)
                if "saveexec" in mn:
                    self.wr += [("s", 126), ("s", 127)]
        else:
            raise ValueError("unknown instruction: " + text)


class Asm:
    def __init__(self):
        self.items = []
        self.vm_issued = 0
        self.lg_issued = 0
        self.uid = 0

    def e(self, text):
        for line in text.strip().split("\n"):
            line = line.strip()
            if not line:
                continue
            if line.startswith(";") or line.startswith(".") or line.endswith(":"):
                self.items.append(("t", line))
                continue
            ins = Ins(line)
            self.items.append(("i", ins))
            if ins.kind == "vmem":
                self.vm_issued += 1
            elif ins.kind == "ds":
                self.lg_issued += 1

    def label(self, base="L"):
        self.uid += 1
        return f"{base}_{self.uid}"

    def c(self, text):
        self.items.append(("t", "; " + text))

    def vm_tok(self):
        return self.vm_issued

    def lg_tok(self):
        return self.lg_issued

    def wait_vm(self, tok):
        n = self.vm_issued - tok
        assert n >= 0
        if n > 63:
            return
        self.e(f"s_waitcnt vmcnt({n})")

    def wait_lg(self, tok):
        n = self.lg_issued - tok
        assert n >= 0
        if n > 15:
            return
        self.e(f"s_waitcnt lgkmcnt({n})")

    def finalize(self):
        out = []
        pos = 0
        last_valu_w = {}
        last_trans_w = {}
        last_mfma_w = {}
        last_mfma_c = {}
        last_valu_sw = {}
        last_m0_w = -100
        last_store_rd = {}
        last_exec_valu = -100
        nops = 0
        for kind, it in self.items:
            if kind == "t":
                out.append(it)
                continue
            ins = it
            need = 0

            def req(p, n):
                nonlocal need
                need = max(need, p + n + 1)

            k = ins.kind
            if k == "mfma":
                dset = tuple(ins.wr)
                for r in ins.rd:
                    if r in last_valu_w:
                        req(last_valu_w[r], 2)
                ab = [r for r in regs_of(ins.ops[1]) + regs_of(ins.ops[2])]
                for r in ab:
                    if r in last_mfma_w:
                        p, ps, _ = last_mfma_w[r]
                        req(p, 8 if ps == 4 else 12)
                for r in ins.srcc:
                    if r in last_mfma_w:
                        p, ps, d = last_mfma_w[r]
                        if d == tuple(ins.srcc) and ps == ins.passes:
                            pass
                        else:
                            req(p, 6 if ps == 4 else 10)
                for r in ins.wr:
                    if r in last_mfma_w and r not in ins.srcc:
                        p, ps, d = last_mfma_w[r]
                        req(p, 8 if ps == 4 else 12)
            if k in ("valu", "trans"):
                for r in ins.rd + ins.wr:
                    if r in last_mfma_w:
                        p, ps, _ = last_mfma_w[r]
                        req(p, 8 if ps == 4 else 12)
                for r in ins.wr:
                    if r in last_mfma_c:
                        p, ps = last_mfma_c[r]
                        req(p, 3 if ps == 4 else 7)
                    if r in last_store_rd:
                        req(last_store_rd[r], 2)
                if k == "valu" or True:
                    for r in ins.rd:
                        if r in last_trans_w and k == "valu":
                            req(last_trans_w[r], 1)
                for r in ins.rd:
                    if r[0] == "s" and r in last_valu_sw:
                        req(last_valu_sw[r], 4 if ins.mn.startswith(("v_readlane", "v_writelane")) else 2)
                if ins.mn.startswith("v_cndmask_b32") and len(ins.ops) == 3:
                    for r in (("s", 106), ("s", 107)):
                        if r in last_valu_sw:
                            req(last_valu_sw[r], 2)
                if ins.is_dpp or ins.is_perm:
                    for r in ins.rd:
                        if r in last_valu_w:
                            req(last_valu_w[r], 2)
                if ins.mn.startswith(("v_readfirstlane", "v_readlane")):
                    for r in ins.rd:
                        if r in last_valu_w:
                            req(last_valu_w[r], 1)
            if k in ("vmem", "ds"):
                for r in ins.rd + ins.wr:
                    if r in last_mfma_w:
                        p, ps, _ = last_mfma_w[r]
                        req(p, 8 if ps == 4 else 12)
                for r in ins.wr:
                    if r in last_mfma_c:
                        p, ps = last_mfma_c[r]
                        req(p, 3 if ps == 4 else 7)
                    if r in last_store_rd:
                        req(last_store_rd[r], 1)
                if k == "vmem":
                    for r in ins.rd:
                        if r[0] == "s" and r in last_valu_sw:
                            req(last_valu_sw[r], 5)
                    if "lds" in ins.mods:
                        req(last_m0_w, 1)
            if k == "salu":
                for r in ins.rd:
                    if r in last_valu_sw:
                        req(last_valu_sw[r], 1)
                if ins.mn.startswith("s_cbranch_vcc"):
                    for r in (("s", 106), ("s", 107)):
                        if r in last_valu_sw:
                            req(last_valu_sw[r], 1)
            gap = need - pos
            while gap > 0:
                n = min(gap, 16)
                out.append(f"s_nop {n-1}")
                nops += 1
                pos += n
                gap -= n
            out.append(ins.text)
            if k == "mfma":
                for r in ins.wr:
                    last_mfma_w[r] = (pos, ins.passes, tuple(ins.wr))
                    last_valu_w.pop(r, None)
                for r in ins.srcc:
                    last_mfma_c[r] = (pos, ins.passes)
            elif k in ("valu", "trans"):
                for r in ins.wr:
                    if r[0] == "s":
                        last_valu_sw[r] = pos
                    else:
                        last_valu_w[r] = pos
                        last_mfma_w.pop(r, None)
                        if k == "trans":
                            last_trans_w[r] = pos
                        else:
                            last_trans_w.pop(r, None)
            elif k in ("vmem", "ds"):
                for r in ins.wr:
                    last_mfma_w.pop(r, None)
                if k == "vmem" and ("store" in ins.mn) and ("x4" in ins.mn or "x3" in ins.mn):
                    data = ins.ops[0] if ins.mn.startswith("buffer") else ins.ops[1]
                    for r in regs_of(data):
                        last_store_rd[r] = pos
            elif k == "salu":
                for r in ins.wr:
                    last_valu_sw.pop(r, None)
                    if r == ("s", 124):
                        last_m0_w = pos
            pos += ins.states
        self.nops = nops
        return "\n".join(out) + "\n"


def vr(b, n=1):
    return f"v{b}" if n == 1 else f"v[{b}:{b+n-1}]"


def ar(b, n=1):
    return f"a{b}" if n == 1 else f"a[{b}:{b+n-1}]"


def sr(b, n=1):
    return f"s{b}" if n == 1 else f"s[{b}:{b+n-1}]"


def interleave(main, fill, ratio=None):
    out = []
    nm, nf = len(main), len(fill)
    if nm == 0:
        return list(fill)
    fi = 0
    for i, m in enumerate(main):
        out.append(m)
        tgt = (i + 1) * nf // nm
        while fi < tgt:
            out.append(fill[fi])
            fi += 1
    out += fill[fi:]
    return out


HEADER = """.amdgcn_target "amdgcn-amd-amdhsa--gfx950"
.text
.globl {name}
.p2align 8
.type {name},@function
{name}:
"""

FOOTER = """.section .rodata,"a"
.p2align 6
.amdhsa_kernel {name}
  .amdhsa_next_free_vgpr {nvgpr}
  .amdhsa_next_free_sgpr {nsgpr}
  .amdhsa_accum_offset {accum}
  .amdhsa_group_segment_fixed_size 0
  .amdhsa_kernarg_size 96
  .amdhsa_user_sgpr_count 2
  .amdhsa_user_sgpr_kernarg_segment_ptr 1
  .amdhsa_system_sgpr_workgroup_id_x 1
.end_amdhsa_kernel
"""
```

```python
import sys, os, struct
sys.path.insert(0, "dev")
from asmlib import *

NAME = "adaLN_cond__sliding_block__geglu_ffn__prompt_kernel"
EXP = os.environ.get("EXP", "").split(",")

EPOCH = 0x0
XID = 0x1000
MODA = 0x2000
MODB = 0xA000
MODG = 0x12000
FL_KV = 0x20000
FL_O = 0x24000
FL_H2 = 0x26000
FL_H1 = 0x27000
FL_ACT = 0x28000
STAMP = 0x40000
KIMG = 0x100000
VIMG = 0x300000
OBUF = 0x500000
H2BUF = 0x700000
SGRAN = 0x900000
ACT = 0xA00000
H1BUF = 0x1200000
DBG0 = 0x2000000
X1DBG = 0x2400000

S_X, S_WQKV, S_WO, S_WG, S_WU, S_WD, S_C, S_WM, S_OUT, S_WS = 8, 12, 16, 20, 24, 28, 32, 36, 40, 44
sX, sT, sRB, sJ, sW, sTAG, sXCC, sPURE, sP = 48, 49, 50, 51, 52, 53, 54, 55, 56
sW3, sWH, sIMIN = 57, 58, 59
sTMP = 60
S_SEL = 72
sMASK = 60

L_WQKV = 0
L_WO = 96 * 1024
L_K = 0
L_V = 24 * 1024
L_QX = 48 * 1024
L_SCR = 52 * 1024
L_RED = 60 * 1024
L_TAB = 84 * 1024
GU_SLOT = [0, 57600]
GU_UP = 28800
D_SLOT = [120 * 1024, 0, 32 * 1024, 64 * 1024]
L_RED2 = 96 * 1024
LDS_BYTES = 160 * 1024

LOG2E = 1.4426950408889634
QSCALE = 0.25 * LOG2E
NEG_BIG = 0xf149f2ca


def f2u(x):
    return struct.unpack("<I", struct.pack("<f", x))[0]


WS = f"s[{S_WS}:{S_WS+3}]"


class Gen:
    def __init__(self, stop_after=99, stamps=False, dump=False):
        self.a = Asm()
        self.stop_after = stop_after
        self.stamps = stamps
        self.dump = dump

    def nocount(self, text):
        a = self.a
        v, l = a.vm_issued, a.lg_issued
        a.e(text)
        a.vm_issued, a.lg_issued = v, l

    def stamp(self, idx):
        if not self.stamps:
            return
        a = self.a
        idx += 1
        v_, l_ = a.vm_issued, a.lg_issued
        a.e(f"s_memrealtime s[96:97]\ns_memtime s[94:95]\ns_waitcnt lgkmcnt(0)")
        a.e(f"v_mov_b32 v159, 0\ns_lshl_b32 s98, s2, 10\ns_lshl_b32 s99, s{sW}, 7\ns_add_u32 s98, s98, s99\ns_add_u32 s98, s98, {STAMP}")
        if idx == 2:
            a.e(f"v_mov_b32 v158, s100\nbuffer_store_dword v158, v159, {WS}, s98 offen")
        a.e(f"v_mov_b32 v158, s96\nbuffer_store_dword v158, v159, {WS}, s98 offen offset:{idx*4}")
        a.e(f"v_mov_b32 v158, s94\nbuffer_store_dword v158, v159, {WS}, s98 offen offset:{64+idx*4}")
        a.vm_issued, a.lg_issued = v_, l_

    def poll(self, vaddr, soff, vdst, cnt=sTMP + 11):
        a = self.a
        L = a.label("P")
        Lo = a.label("Po")
        a.e(f"s_mov_b32 s{cnt}, 0\n{L}:")
        self.nocount(f"buffer_load_dword v{vdst}, v{vaddr}, {WS}, {soff} offen sc1")
        a.e(f"""
s_add_u32 s{cnt}, s{cnt}, 1
s_cmp_gt_u32 s{cnt}, 400000
s_cbranch_scc1 {Lo}
s_waitcnt vmcnt(0)
v_cmp_ne_u32 vcc, s{sTAG}, v{vdst}
s_cbranch_vccnz {L}
{Lo}:
s_waitcnt vmcnt(0)
""")

    def store_sel(self, text):
        a = self.a
        Ls = a.label("Ssl")
        Le = a.label("Sen")
        lines = [l for l in text.strip().split("\n") if l.strip()]
        a.e(f"s_cmp_eq_u32 s{sPURE}, 0\ns_cbranch_scc1 {Ls}")
        a.e("\n".join(lines))
        a.e(f"s_branch {Le}\n{Ls}:")
        self.nocount("\n".join((l + " sc1") if l.strip().startswith("buffer_store") else l for l in lines))
        a.e(f"{Le}:")

    def flag_seq(self, soff, vt=14):
        return f"s_waitcnt vmcnt(0)\ns_mov_b64 exec, 1\nbuffer_store_dword v{vt}, v{vt+1}, {WS}, {soff} offen\ns_mov_b64 exec, -1"

    def purity(self, vt=30):
        a = self.a
        a.e(f"""
v_and_b32 v{vt}, 15, v1
v_lshlrev_b32 v{vt}, 3, v{vt}
s_lshl_b32 s{sTMP+10}, s{sRB}, 7
s_add_u32 s{sTMP+10}, s{sTMP+10}, {XID}
buffer_load_dwordx2 v[{vt+2}:{vt+3}], v{vt}, {WS}, s{sTMP+10} offen sc1
s_waitcnt vmcnt(0)
v_xor_b32 v{vt}, s{sTAG}, v{vt+3}
v_xor_b32 v{vt+1}, s{sXCC}, v{vt+2}
v_or_b32 v{vt}, v{vt}, v{vt+1}
v_cmp_ne_u32 vcc, 0, v{vt}
s_cmp_eq_u64 vcc, 0
s_cselect_b32 s{sPURE}, 1, 0
""")

    def touch(self, srd, soff_base, nlines_per_wg, widx, nw, vdst, vaddr):
        a = self.a
        n = nlines_per_wg // 64
        per = (n + nw - 1) // nw
        a.e(f"s_lshl_b32 s{sTMP+9}, s{widx}, 13\ns_add_u32 s{sTMP+9}, s{sTMP+9}, s{soff_base}")
        for i in range(per):
            a.e(f"buffer_load_dword v{vdst}, v{vaddr}, s[{srd}:{srd+3}], s{sTMP+9} offen")
            if i < per - 1:
                a.e(f"s_add_u32 s{sTMP+9}, s{sTMP+9}, {nw*8192}")

    def silu_bf16(self, src_pk, n_pk, dst, tmp):
        a = self.a
        n = 2 * n_pk
        for d in range(n_pk):
            a.e(f"v_lshlrev_b32 v{dst+2*d}, 16, v{src_pk+d}\nv_and_b32 v{dst+2*d+1}, 0xffff0000, v{src_pk+d}")
        for i in range(n):
            a.e(f"v_mul_f32 v{tmp+i}, {f2u(-LOG2E):#x}, v{dst+i}")
        for i in range(n):
            a.e(f"v_exp_f32 v{tmp+i}, v{tmp+i}")
        for i in range(n):
            a.e(f"v_add_f32 v{tmp+i}, 1.0, v{tmp+i}")
        for i in range(n):
            a.e(f"v_rcp_f32 v{tmp+i}, v{tmp+i}")
        for i in range(n):
            a.e(f"v_mul_f32 v{dst+i}, v{dst+i}, v{tmp+i}")
        for d in range(n_pk):
            a.e(f"v_cvt_pk_bf16_f32 v{tmp+d}, v{dst+2*d}, v{dst+2*d+1}")
        for d in range(n_pk):
            a.e(f"v_lshlrev_b32 v{dst+2*d}, 16, v{tmp+d}\nv_and_b32 v{dst+2*d+1}, 0xffff0000, v{tmp+d}")

    def wave_allsum(self, regs, tmp):
        a = self.a
        for r in (1, 2, 4, 8):
            for x in regs:
                a.e(f"v_add_f32_dpp v{x}, v{x}, v{x} row_ror:{r} row_mask:0xf bank_mask:0xf")
        self.group_allsum(regs, tmp)

    def group_allsum(self, regs, tmp, op="v_add_f32", stages=("16", "32")):
        a = self.a
        for sw in stages:
            for x, t in zip(regs, tmp):
                a.e(f"v_mov_b32 v{t}, v{x}")
            for x, t in zip(regs, tmp):
                a.e(f"v_permlane{sw}_swap_b32 v{x}, v{t}")
            for x, t in zip(regs, tmp):
                a.e(f"{op} v{x}, v{x}, v{t}")

    def granule(self, lo, hi, s_one, dst):
        self.a.e(f"""
v_cvt_pk_bf16_f32 v{dst}, v{lo}, v{hi}
v_lshlrev_b32 v{lo}, 16, v{dst}
v_and_b32 v{hi}, 0xffff0000, v{dst}
v_add_f32 v{lo}, s{s_one}, v{lo}
v_add_f32 v{hi}, s{s_one}, v{hi}
v_cvt_pk_bf16_f32 v{dst}, v{lo}, v{hi}
v_mov_b32 v{dst+1}, s{sTAG}
""")

    def phase0(self):
        a = self.a
        a.e(f"""
s_cmp_ge_u32 s2, 256
s_cbranch_scc1 L_END
{"s_memrealtime s[100:101]" if self.stamps else ""}
s_load_dwordx2 s[{S_WS}:{S_WS+1}], s[0:1], 88
s_load_dwordx2 s[{S_WM}:{S_WM+1}], s[0:1], 64
s_load_dwordx2 s[{S_C}:{S_C+1}], s[0:1], 56
s_load_dwordx2 s[{S_X}:{S_X+1}], s[0:1], 0
s_load_dwordx2 s[{S_WQKV}:{S_WQKV+1}], s[0:1], 8
s_load_dwordx2 s[{S_WO}:{S_WO+1}], s[0:1], 16
s_load_dwordx2 s[{S_WG}:{S_WG+1}], s[0:1], 32
s_load_dwordx2 s[{S_WU}:{S_WU+1}], s[0:1], 40
s_load_dwordx2 s[{S_WD}:{S_WD+1}], s[0:1], 48
s_load_dwordx2 s[{S_OUT}:{S_OUT+1}], s[0:1], 72
s_getpc_b64 s[{sTMP}:{sTMP+1}]
L_PC:
s_and_b32 s{sX}, s2, 7
s_lshr_b32 s{sT}, s2, 3
s_lshl_b32 s{sTMP+2}, s{sT}, 11
v_lshlrev_b32 v2, 2, v0
v_add_u32 v2, s{sTMP+2}, v2
v_min_u32 v2, L_CODE_END-L_PC-4, v2
global_load_dword v4, v2, s[{sTMP}:{sTMP+1}]
s_getreg_b32 s{sXCC}, hwreg(HW_REG_XCC_ID)
s_and_b32 s{sXCC}, s{sXCC}, 15
s_lshr_b32 s{sTMP}, s{sT}, 4
s_lshl_b32 s{sRB}, s{sX}, 1
s_add_u32 s{sRB}, s{sRB}, s{sTMP}
s_and_b32 s{sJ}, s{sT}, 15
s_lshl_b32 s{sP}, s{sX}, 5
s_add_u32 s{sP}, s{sP}, s{sT}
v_and_b32 v1, 63, v0
v_lshrrev_b32 v2, 6, v0
v_lshrrev_b32 v3, 4, v1
v_readfirstlane_b32 s{sW}, v2
v_lshlrev_b32 v11, 4, v1
v_lshlrev_b32 v10, 7, v1
s_and_b32 s{sW3}, s{sW}, 3
s_lshr_b32 s{sWH}, s{sW}, 2
s_mov_b32 s{sPURE}, 0
""")
        sizes = {S_X: 2097152, S_WQKV: 1572864, S_WO: 524288, S_WG: 1835008, S_WU: 1835008, S_WD: 1835008, S_C: 1024,
                 S_WM: 3145728, S_OUT: 2097152, S_WS: 0x10000000}
        for s, sz in sizes.items():
            a.e(f"s_mov_b32 s{s+2}, {sz}\ns_mov_b32 s{s+3}, 0x20000")
        a.e("s_waitcnt lgkmcnt(0)")
        a.e(f"s_load_dword s{sTAG}, s[{S_WS}:{S_WS+1}], {EPOCH}")
        L_45 = a.label("Lw45")
        L_67 = a.label("Lw67")
        L_j = a.label("Lj0")
        tagfix = f"s_waitcnt lgkmcnt(0)\ns_mul_i32 s{sTAG}, s{sTAG}, 1664525\ns_add_u32 s{sTAG}, s{sTAG}, 1013904223"
        a.e(f"s_cmp_ge_u32 s{sW}, 6\ns_cbranch_scc1 {L_67}\ns_cmp_ge_u32 s{sW}, 4\ns_cbranch_scc1 {L_45}")
        v0_, l0_ = a.vm_issued, a.lg_issued
        a.e(f"""
v_mul_u32_u24 v5, 6144, v3
v_and_b32 v6, 15, v1
v_lshl_add_u32 v5, v6, 7, v5
s_lshl_b32 s{sTMP}, s{sT}, 2
s_add_u32 s{sTMP}, s{sTMP}, s{sW}
s_mul_i32 s{sTMP}, s{sTMP}, {4*6144}
buffer_load_dword v6, v5, s[{S_WM}:{S_WM+3}], s{sTMP} offen
s_mul_i32 s{sTMP}, s{sT}, 49152
""")
        self.touch(S_WQKV, sTMP, 384, sW, 4, 6, 10)
        a.e(tagfix)
        a.e(f"s_branch {L_j}")
        a.vm_issued, a.lg_issued = v0_, l0_
        a.e(f"{L_45}:")
        W0, XP, XF, SV = 94, 78, 46, 14
        a.e(f"""
v_lshrrev_b32 v6, 1, v1
v_lshlrev_b32 v8, 5, v6
v_mul_u32_u24 v7, {16*6144}, v6
v_and_b32 v6, 1, v1
v_lshl_add_u32 v7, v6, 4, v7
buffer_load_dwordx4 v[30:33], v8, s[{S_C}:{S_C+3}], 0 offen
buffer_load_dwordx4 v[34:37], v8, s[{S_C}:{S_C+3}], 0 offen offset:16
""")
        tok_c = a.vm_tok()
        a.e(f"""
s_lshl_b32 s{sTMP}, s{sRB}, 17
s_lshl_b32 s{sTMP+1}, s{sJ}, 13
s_add_u32 s{sTMP}, s{sTMP}, s{sTMP+1}
s_lshl_b32 s{sTMP+1}, s{sW3}, 12
s_add_u32 s{sTMP}, s{sTMP}, s{sTMP+1}
""")
        for i in range(4):
            a.e(f"buffer_load_dwordx4 v[{XP+4*i}:{XP+3+4*i}], v11, s[{S_X}:{S_X+3}], s{sTMP} offen offset:{i*1024}")
        tok_x = a.vm_tok()
        a.e(f"s_lshl_b32 s{sTMP}, s{sT}, 6\ns_lshl_b32 s{sTMP+1}, s{sW3}, 5\ns_add_u32 s{sTMP}, s{sTMP}, s{sTMP+1}")
        tok_w = []
        for i in range(16):
            a.e(f"buffer_load_dwordx4 v[{W0+4*i}:{W0+3+4*i}], v7, s[{S_WM}:{S_WM+3}], s{sTMP} offen")
            tok_w.append(a.vm_tok())
            if i < 15:
                a.e(f"s_add_u32 s{sTMP}, s{sTMP}, 6144")
        a.e(tagfix)
        a.wait_vm(tok_c)
        self.silu_bf16(30, 8, SV, XF)
        a.wait_vm(tok_x)
        ST = [38, 39, 40, 41]
        STT = [42, 43, 44, 45]
        for i in range(4):
            for d in range(4):
                a.e(f"v_lshlrev_b32 v{XF+8*i+2*d}, 16, v{XP+4*i+d}\nv_and_b32 v{XF+1+8*i+2*d}, 0xffff0000, v{XP+4*i+d}")
        for i in range(4):
            b = XF + 8 * i
            a.e(f"v_add_f32 v{ST[i]}, v{b}, v{b+1}")
            for e in range(2, 8):
                a.e(f"v_add_f32 v{ST[i]}, v{ST[i]}, v{b+e}")
        self.wave_allsum(ST, STT)
        for i in range(4):
            a.e(f"v_mul_f32 v{ST[i]}, {f2u(-1/512):#x}, v{ST[i]}")
        for i in range(4):
            for e in range(8):
                a.e(f"v_add_f32 v{XF+8*i+e}, v{ST[i]}, v{XF+8*i+e}")
        for i in range(4):
            b = XF + 8 * i
            a.e(f"v_mul_f32 v{ST[i]}, v{b}, v{b}")
            for e in range(1, 8):
                a.e(f"v_fmac_f32 v{ST[i]}, v{b+e}, v{b+e}")
        self.wave_allsum(ST, STT)
        for i in range(4):
            a.e(f"v_mul_f32 v{ST[i]}, {f2u(1/512):#x}, v{ST[i]}")
        for i in range(4):
            a.e(f"v_add_f32 v{ST[i]}, {f2u(1e-5):#x}, v{ST[i]}")
        for i in range(4):
            a.e(f"v_rsq_f32 v{ST[i]}, v{ST[i]}")
        for i in range(4):
            for e in range(8):
                a.e(f"v_mul_f32 v{XF+8*i+e}, v{ST[i]}, v{XF+8*i+e}")
        for i in range(4):
            for d in range(4):
                a.e(f"v_cvt_pk_bf16_f32 v{XP+4*i+d}, v{XF+8*i+2*d}, v{XF+1+8*i+2*d}")
        for i in range(4):
            for d in range(4):
                a.e(f"v_lshlrev_b32 v{XF+8*i+2*d}, 16, v{XP+4*i+d}\nv_and_b32 v{XF+1+8*i+2*d}, 0xffff0000, v{XP+4*i+d}")
        a.e(f"""
v_lshlrev_b32 v9, 5, v6
v_lshl_add_u32 v9, v3, 3, v9
s_cmp_ge_u32 s{sT}, 16
s_cselect_b32 s{sTMP+7}, 1.0, 0
s_lshl_b32 s{sTMP+5}, s{sX}, 12
s_lshl_b32 s{sTMP+6}, s{sT}, 7
s_add_u32 s{sTMP+5}, s{sTMP+5}, s{sTMP+6}
s_lshl_b32 s{sTMP+6}, s{sW3}, 6
s_add_u32 s{sTMP+5}, s{sTMP+5}, s{sTMP+6}
s_add_u32 s{sTMP+6}, s{sTMP+5}, {MODB}
s_add_u32 s{sTMP+5}, s{sTMP+5}, {MODA}
v_lshrrev_b32 v12, 1, v1
v_lshlrev_b32 v12, 10, v12
v_lshl_add_u32 v12, v6, 9, v12
s_lshl_b32 s{sTMP+4}, s{sRB}, 2
s_lshr_b32 s{sTMP+3}, s{sJ}, 2
s_add_u32 s{sTMP+4}, s{sTMP+4}, s{sTMP+3}
s_lshl_b32 s{sTMP+4}, s{sTMP+4}, 15
s_and_b32 s{sTMP+3}, s{sJ}, 3
s_lshl_b32 s{sTMP+3}, s{sTMP+3}, 7
s_add_u32 s{sTMP+4}, s{sTMP+4}, s{sTMP+3}
s_lshl_b32 s{sTMP+3}, s{sW3}, 6
s_add_u32 s{sTMP+4}, s{sTMP+4}, s{sTMP+3}
s_add_u32 s{sTMP+4}, s{sTMP+4}, {H1BUF}
v_lshlrev_b32 v13, 5, v1
v_and_b32 v8, 15, v1
v_lshlrev_b32 v8, 3, v8
s_lshl_b32 s{sTMP}, s{sX}, 12
s_add_u32 s{sTMP+1}, s{sTMP}, {MODB}
s_add_u32 s{sTMP}, s{sTMP}, {MODA}
s_lshl_b32 s{sTMP+2}, s{sRB}, 7
s_add_u32 s{sTMP+2}, s{sTMP+2}, {XID}
s_mov_b32 s{sTMP+11}, 0
""")
        AC = 30
        for i in range(16):
            a.wait_vm(tok_w[i])
            w = W0 + 4 * i
            t = XP + 8 * (i % 2)
            for d in range(4):
                a.e(f"v_lshlrev_b32 v{t+2*d}, 16, v{w+d}\nv_and_b32 v{t+1+2*d}, 0xffff0000, v{w+d}")
            sp = SV + (i & ~1)
            sel = i & 1
            for d in range(4):
                if i == 0:
                    a.e(f"v_pk_mul_f32 v[{AC+2*d}:{AC+1+2*d}], v[{t+2*d}:{t+1+2*d}], v[{sp}:{sp+1}] op_sel_hi:[1,0]")
                else:
                    a.e(f"v_pk_fma_f32 v[{AC+2*d}:{AC+1+2*d}], v[{t+2*d}:{t+1+2*d}], v[{sp}:{sp+1}], v[{AC+2*d}:{AC+1+2*d}] op_sel:[0,{sel},0] op_sel_hi:[1,{sel},1]")
        for r in (2, 4, 8):
            for e in range(8):
                a.e(f"v_add_f32_dpp v{AC+e}, v{AC+e}, v{AC+e} row_ror:{r} row_mask:0xf bank_mask:0xf")
        a.e(f"""
v_permlane16_swap_b32 v{AC}, v{AC+2}
v_permlane16_swap_b32 v{AC+1}, v{AC+3}
v_permlane16_swap_b32 v{AC+4}, v{AC+6}
v_permlane16_swap_b32 v{AC+5}, v{AC+7}
v_add_f32 v{AC}, v{AC}, v{AC+2}
v_add_f32 v{AC+1}, v{AC+1}, v{AC+3}
v_add_f32 v{AC+4}, v{AC+4}, v{AC+6}
v_add_f32 v{AC+5}, v{AC+5}, v{AC+7}
v_permlane32_swap_b32 v{AC}, v{AC+4}
v_permlane32_swap_b32 v{AC+1}, v{AC+5}
v_add_f32 v{AC}, v{AC}, v{AC+4}
v_add_f32 v{AC+1}, v{AC+1}, v{AC+5}
""")
        self.granule(AC, AC + 1, sTMP + 7, AC + 2)
        a.e(f"s_mov_b32 exec_lo, 0x00030003\ns_mov_b32 exec_hi, 0x00030003")
        a.e(f"buffer_store_dwordx2 v[{AC+2}:{AC+3}], v9, {WS}, s{sTMP+5} offen")
        a.e(f"buffer_store_dwordx2 v[{AC+2}:{AC+3}], v9, {WS}, s{sTMP+6} offen sc1")
        a.e(f"s_mov_b64 exec, -1")
        self.stamp(0)
        L = a.label("G")
        Lo = a.label("Go")
        G0 = 96
        a.e(f"{L}:")
        self.nocount(f"""
buffer_load_dwordx4 v[{G0}:{G0+3}], v13, {WS}, s{sTMP} offen sc1
buffer_load_dwordx4 v[{G0+4}:{G0+7}], v13, {WS}, s{sTMP} offen offset:16 sc1
buffer_load_dwordx4 v[{G0+8}:{G0+11}], v13, {WS}, s{sTMP} offen offset:2048 sc1
buffer_load_dwordx4 v[{G0+12}:{G0+15}], v13, {WS}, s{sTMP} offen offset:2064 sc1
buffer_load_dwordx2 v[{G0+16}:{G0+17}], v8, {WS}, s{sTMP+2} offen sc1
""")
        a.e(f"""
s_add_u32 s{sTMP+11}, s{sTMP+11}, 1
s_add_u32 s{sTMP+10}, s{sTMP+11}, 1
s_and_b32 s{sTMP+10}, s{sTMP+10}, 7
s_cmp_lt_u32 s{sTMP+10}, 2
s_cselect_b32 s{sTMP+10}, s{sTMP+1}, s{sTMP}
s_cselect_b32 s{sTMP+1}, s{sTMP}, s{sTMP+1}
s_mov_b32 s{sTMP}, s{sTMP+10}
s_cmp_gt_u32 s{sTMP+11}, 400000
s_cbranch_scc1 {Lo}
s_waitcnt vmcnt(0)
v_xor_b32 v30, s{sTAG}, v{G0+1}
""")
        for q in range(3, 16, 2):
            a.e(f"v_xor_b32 v31, s{sTAG}, v{G0+q}\nv_or_b32 v30, v30, v31")
        a.e(f"v_cmp_ne_u32 vcc, 0, v30\ns_cbranch_vccnz {L}\n{Lo}:\ns_waitcnt vmcnt(0)")
        a.e(f"""
v_xor_b32 v30, s{sTAG}, v{G0+17}
v_xor_b32 v31, s{sXCC}, v{G0+16}
v_or_b32 v30, v30, v31
v_cmp_ne_u32 vcc, 0, v30
s_cmp_eq_u64 vcc, 0
s_cselect_b32 s{sPURE}, 1, 0
""")
        SA, GG = 14, 22
        for q in range(4):
            a.e(f"v_lshlrev_b32 v{SA+2*q}, 16, v{G0+2*q}\nv_and_b32 v{SA+1+2*q}, 0xffff0000, v{G0+2*q}")
            a.e(f"v_lshlrev_b32 v{GG+2*q}, 16, v{G0+8+2*q}\nv_and_b32 v{GG+1+2*q}, 0xffff0000, v{G0+8+2*q}")
        for i in range(4):
            for d in range(4):
                b = XF + 8 * i + 2 * d
                a.e(f"v_pk_fma_f32 v[{b}:{b+1}], v[{b}:{b+1}], v[{GG+2*d}:{GG+1+2*d}], v[{SA+2*d}:{SA+1+2*d}]")
            for d in range(4):
                a.e(f"v_cvt_pk_bf16_f32 v{XP+4*i+d}, v{XF+8*i+2*d}, v{XF+1+8*i+2*d}")
        a.e(f"""
s_lshl_b32 s{sTMP+5}, s{sP}, 3
s_lshl_b32 s{sTMP+6}, s{sW3}, 2
s_add_u32 s{sTMP+5}, s{sTMP+5}, s{sTMP+6}
s_add_u32 s{sTMP+5}, s{sTMP+5}, {FL_H1}
v_mov_b32 v14, s{sTAG}
v_mov_b32 v15, 0
""")
        st = "\n".join(f"buffer_store_dwordx4 v[{XP+4*i}:{XP+3+4*i}], v12, {WS}, s{sTMP+4} offen offset:{16*i}" for i in range(4))
        self.store_sel(st + "\n" + self.flag_seq(f"s{sTMP+5}"))
        a.e(f"s_branch {L_j}")
        a.vm_issued, a.lg_issued = v0_, l0_
        a.e(f"{L_67}:")
        a.e(f"""
v_lshrrev_b32 v12, 2, v1
v_mul_u32_u24 v12, 3072, v12
v_and_b32 v13, 3, v1
v_lshl_add_u32 v12, v13, 4, v12
{tagfix}
v_mov_b32 v14, s{sXCC}
v_mov_b32 v15, s{sTAG}
s_lshl_b32 s{sTMP}, s{sP}, 3
s_add_u32 s{sTMP}, s{sTMP}, {XID}
v_mov_b32 v13, 0
s_mov_b64 exec, 1
buffer_store_dwordx2 v[14:15], v13, {WS}, s{sTMP} offen sc1
s_mov_b64 exec, -1
s_waitcnt vmcnt(0)
s_and_b32 s{sTMP+4}, s{sW}, 1
s_mul_i32 s{sTMP}, s{sTMP+4}, {16*3072}
s_lshl_b32 s{sTMP+1}, s{sJ}, 6
s_add_u32 s{sTMP}, s{sTMP}, s{sTMP+1}
s_lshl_b32 s{sTMP+2}, s{sTMP+4}, 10
""")
        for c in range(16):
            for seg in range(3):
                a.e(f"s_add_u32 m0, s{sTMP+2}, {L_WQKV + seg*32768 + c*2048}")
                a.e(f"s_add_u32 s{sTMP+3}, s{sTMP}, {c*32*3072 + seg*1024}")
                a.e(f"buffer_load_dwordx4 v12, s[{S_WQKV}:{S_WQKV+3}], s{sTMP+3} offen lds")
        a.e("s_waitcnt vmcnt(0)")
        self.stamp(0)
        a.vm_issued, a.lg_issued = v0_, l0_
        a.e(f"{L_j}:")
        a.e("s_nop 4\ns_barrier")
        self.stamp(1)

    def phase1(self):
        a = self.a
        L_h = a.label("Lp1h")
        L_j = a.label("Lp1j")
        a.e(f"s_cmp_ge_u32 s{sW}, 4\ns_cbranch_scc1 {L_h}")
        v0_, l0_ = a.vm_issued, a.lg_issued
        a.e(f"""
s_lshl_b32 s{sTMP}, s{sRB}, 7
s_lshl_b32 s{sTMP+1}, s{sW}, 5
s_add_u32 s{sTMP}, s{sTMP}, s{sTMP+1}
s_add_u32 s{sTMP}, s{sTMP}, {FL_H1}
v_and_b32 v12, 7, v1
v_lshlrev_b32 v12, 2, v12
s_lshl_b32 s{sTMP+2}, s{sRB}, 2
s_add_u32 s{sTMP+2}, s{sTMP+2}, s{sW}
s_lshl_b32 s{sTMP+2}, s{sTMP+2}, 15
s_add_u32 s{sTMP+2}, s{sTMP+2}, {H1BUF}
v_lshrrev_b32 v8, 5, v1
v_bfe_u32 v9, v1, 2, 2
v_lshl_add_u32 v9, v8, 3, v9
v_lshlrev_b32 v4, 6, v9
v_bfe_u32 v9, v1, 4, 1
v_lshl_add_u32 v4, v9, 5, v4
v_and_b32 v9, 1, v1
v_lshl_add_u32 v4, v9, 4, v4
v_bfe_u32 v9, v1, 1, 1
v_lshl_add_u32 v4, v9, 3, v4
v_add_u32 v4, {L_WQKV}, v4
v_add_u32 v5, 32768, v4
v_add_u32 v6, 65536, v4
""")
        ACC = [16, 32, 48]
        BFv = [64, 76, 88]

        def AF(s):
            return ar(4 * s, 4) if s < 24 else vr(100 + 4 * (s - 24), 4)

        def R(s):
            out = []
            for seg in range(3):
                for i in range(2):
                    out.append(f"ds_read_b64_tr_b16 {vr(BFv[s%3]+4*seg+2*i,2)}, v{4+seg} offset:{(16*s+4*i)*64}")
            return out

        def M(s):
            out = []
            h = AF(s)
            for seg in range(3):
                c = "0" if s == 0 else vr(ACC[seg], 16)
                b = vr(BFv[s % 3] + 4 * seg, 4)
                if seg < 2:
                    out.append(f"v_mfma_f32_32x32x16_bf16 {vr(ACC[seg],16)}, {b}, {h}, {c}")
                else:
                    out.append(f"v_mfma_f32_32x32x16_bf16 {vr(ACC[seg],16)}, {h}, {b}, {c}")
            return out

        NS = 32
        a.e("\n".join(R(0)))
        toks = {0: a.lg_tok()}
        a.e("\n".join(R(1)))
        toks[1] = a.lg_tok()
        self.poll(12, f"s{sTMP}", 13)
        self.stamp(2)
        vt = {}
        for s in range(NS):
            if s % 4 == 0 and s > 0:
                a.e(f"s_add_u32 s{sTMP+2}, s{sTMP+2}, 4096")
            a.e(f"buffer_load_dwordx4 {AF(s)}, v11, {WS}, s{sTMP+2} offen offset:{(s%4)*1024} sc1")
            vt[s] = a.vm_tok()
        for i in range(NS):
            r = R(i + 2) if i + 2 < NS else []
            a.wait_lg(toks[i])
            a.wait_vm(vt[i])
            a.e("\n".join(interleave(M(i), r)))
            if r:
                toks[i + 2] = a.lg_tok()
        self.stamp(3)
        a.e(f"s_branch {L_j}")
        a.vm_issued, a.lg_issued = v0_, l0_
        a.e(f"{L_h}:")
        a.e(f"""
v_lshrrev_b32 v5, 2, v1
v_mul_u32_u24 v5, 6144, v5
v_and_b32 v6, 3, v1
v_lshl_add_u32 v5, v6, 7, v5
s_mul_i32 s{sTMP}, s{sT}, {16*6144}
s_lshl_b32 s{sTMP+1}, s{sX}, 9
s_add_u32 s{sTMP}, s{sTMP}, s{sTMP+1}
s_add_u32 s{sTMP}, s{sTMP}, 2048
buffer_load_dword v6, v5, s[{S_WM}:{S_WM+3}], s{sTMP} offen
s_lshl_b32 s{sTMP}, s{sT}, 14
""")
        self.touch(S_WO, sTMP, 128, sW3, 4, 6, 10)
        a.e(f"""
v_and_b32 v7, 255, v0
v_mul_u32_u24 v9, 12288, v7
v_lshlrev_b32 v8, 2, v7
s_lshl_b32 s{sTMP}, s{sP}, 4
s_add_u32 s{sTMP}, s{sTMP}, 2048
s_add_u32 s{sTMP+1}, s{sTMP}, 6144
buffer_load_dword v48, v8, s[{S_C}:{S_C+3}], 0 offen
buffer_load_dwordx4 v[16:19], v9, s[{S_WM}:{S_WM+3}], s{sTMP} offen
buffer_load_dwordx4 v[20:23], v9, s[{S_WM}:{S_WM+3}], s{sTMP+1} offen
""")
        tok_nu = a.vm_tok()
        a.e(f"""
v_lshrrev_b32 v12, 3, v1
v_bfe_u32 v13, v1, 4, 1
s_and_b32 s{sTMP+4}, s{sW3}, 1
s_lshl_b32 s{sTMP+4}, s{sTMP+4}, 1
v_or_b32 v13, s{sTMP+4}, v13
v_bfe_u32 v14, v1, 1, 2
v_xor_b32 v13, v13, v14
v_lshlrev_b32 v12, 10, v12
v_lshl_add_u32 v12, v13, 5, v12
v_and_b32 v13, 1, v1
v_lshl_add_u32 v12, v13, 4, v12
s_and_b32 s{sTMP}, s{sJ}, 7
s_lshl_b32 s{sTMP}, s{sTMP}, 7
s_lshl_b32 s{sTMP+1}, s{sW3}, 13
s_add_u32 s{sTMP}, s{sTMP}, s{sTMP+1}
s_lshl_b32 s{sTMP+2}, s{sW3}, 10
""")
        for i in range(16):
            a.e(f"s_add_u32 m0, s{sTMP+2}, {L_WO + i*4096}")
            a.e(f"s_add_u32 s{sTMP+3}, s{sTMP}, {i*32768}")
            a.e(f"buffer_load_dwordx4 v12, s[{S_WO}:{S_WO+3}], s{sTMP+3} offen lds")
        self.tok_wo_helper = a.vm_tok()
        a.wait_vm(tok_nu)
        self.silu_bf16(48, 1, 64, 96)
        for i in range(2):
            for d in range(4):
                w = 16 + 4 * i + d
                a.e(f"v_lshlrev_b32 v{96+2*d}, 16, v{w}\nv_and_b32 v{97+2*d}, 0xffff0000, v{w}")
            for e in range(8):
                a.e(f"v_mul_f32 v{72+e}, v64, v{96+e}" if i == 0 else f"v_fmac_f32 v{72+e}, v65, v{96+e}")
        for r in (1, 2, 4, 8):
            for e in range(8):
                a.e(f"v_add_f32_dpp v{72+e}, v{72+e}, v{72+e} row_ror:{r} row_mask:0xf bank_mask:0xf")
        AC = 72
        a.e(f"""
v_permlane16_swap_b32 v{AC}, v{AC+2}
v_permlane16_swap_b32 v{AC+1}, v{AC+3}
v_permlane16_swap_b32 v{AC+4}, v{AC+6}
v_permlane16_swap_b32 v{AC+5}, v{AC+7}
v_add_f32 v{AC}, v{AC}, v{AC+2}
v_add_f32 v{AC+1}, v{AC+1}, v{AC+3}
v_add_f32 v{AC+4}, v{AC+4}, v{AC+6}
v_add_f32 v{AC+5}, v{AC+5}, v{AC+7}
v_permlane32_swap_b32 v{AC}, v{AC+4}
v_permlane32_swap_b32 v{AC+1}, v{AC+5}
v_add_f32 v{AC}, v{AC}, v{AC+4}
v_add_f32 v{AC+1}, v{AC+1}, v{AC+5}
""")
        a.e(f"s_mul_i32 s{sTMP}, s{sT}, 57344")
        self.touch(S_WG, sTMP, 448, sW3, 4, 6, 10)
        self.touch(S_WU, sTMP, 448, sW3, 4, 6, 10)
        a.vm_issued, a.lg_issued = v0_, l0_
        a.e(f"{L_j}:")
        a.e("s_nop 15\ns_barrier")

    def phase2(self):
        a = self.a
        L_h = a.label("Lp2h")
        L_j = a.label("Lp2j")
        QF = 140
        a.e(f"s_cmp_ge_u32 s{sW}, 4\ns_cbranch_scc1 {L_h}")
        v0_, l0_ = a.vm_issued, a.lg_issued
        ACC = [16, 32, 48]
        for r in range(8):
            a.e(f"v_cvt_pk_bf16_f32 v{64+r}, v{32+2*r}, v{33+2*r}")
        for r in range(8):
            a.e(f"v_cvt_pk_bf16_f32 v{72+r}, v{48+2*r}, v{49+2*r}")
        a.e(f"""
v_and_b32 v8, 31, v1
v_lshrrev_b32 v9, 5, v1
v_bfe_u32 v5, v1, 2, 2
v_xor_b32 v9, v9, v5
v_lshlrev_b32 v7, 6, v8
v_lshl_add_u32 v12, v9, 4, v7
v_xor_b32 v9, 2, v9
v_lshl_add_u32 v13, v9, 4, v7
s_lshl_b32 s{sTMP+3}, s{sW}, 11
s_add_u32 s{sTMP+1}, s{sTMP+3}, {L_K + 8*2048}
s_add_u32 s{sTMP+2}, s{sTMP+3}, {L_V + 8*2048}
v_add_u32 v8, s{sTMP+1}, v12
v_add_u32 v9, s{sTMP+1}, v13
v_add_u32 v5, s{sTMP+2}, v12
v_add_u32 v7, s{sTMP+2}, v13
s_lshl_b32 s{sTMP+1}, s{sJ}, 17
s_lshl_b32 s{sTMP+2}, s{sRB}, 13
s_add_u32 s{sTMP+1}, s{sTMP+1}, s{sTMP+2}
s_add_u32 s{sTMP+1}, s{sTMP+1}, s{sTMP+3}
s_add_u32 s{sTMP+2}, s{sTMP+1}, {VIMG}
s_add_u32 s{sTMP+1}, s{sTMP+1}, {KIMG}
buffer_store_dwordx4 v[64:67], v12, {WS}, s{sTMP+1} offen sc1
buffer_store_dwordx4 v[68:71], v13, {WS}, s{sTMP+1} offen sc1
buffer_store_dwordx4 v[72:75], v12, {WS}, s{sTMP+2} offen sc1
buffer_store_dwordx4 v[76:79], v13, {WS}, s{sTMP+2} offen sc1
ds_write_b128 v8, v[64:67]
ds_write_b128 v9, v[68:71]
ds_write_b128 v5, v[72:75]
ds_write_b128 v7, v[76:79]
s_mov_b32 s{sTMP}, {f2u(QSCALE):#x}
""")
        for r in range(16):
            a.e(f"v_mul_f32 v{16+r}, s{sTMP}, v{16+r}")
        for r in range(4):
            a.e(f"v_cvt_pk_bf16_f32 v{QF+r}, v{16+2*r}, v{17+2*r}")
        for r in range(4):
            a.e(f"v_cvt_pk_bf16_f32 v{80+r}, v{24+2*r}, v{25+2*r}")
        a.e(f"""
s_lshl_b32 s{sTMP+4}, s{sW}, 10
s_add_u32 s{sTMP+4}, s{sTMP+4}, {L_QX}
v_add_u32 v5, s{sTMP+4}, v11
ds_write_b128 v5, v[80:83]
""")
        if self.dump:
            a.e(f"""
s_lshl_b32 s{sTMP+4}, s{sP}, 13
s_add_u32 s{sTMP+4}, s{sTMP+4}, s{sTMP+3}
s_add_u32 s{sTMP+4}, s{sTMP+4}, {DBG0}
buffer_store_dwordx4 v[{QF}:{QF+3}], v11, {WS}, s{sTMP+4} offen
buffer_store_dwordx4 v[80:83], v11, {WS}, s{sTMP+4} offen offset:1024
""")
        a.e(f"""
s_lshl_b32 s{sTMP+4}, s{sP}, 6
s_lshl_b32 s{sTMP+5}, s{sW}, 2
s_add_u32 s{sTMP+4}, s{sTMP+4}, s{sTMP+5}
s_add_u32 s{sTMP+4}, s{sTMP+4}, {FL_KV}
v_mov_b32 v14, s{sTAG}
v_mov_b32 v15, 0
s_waitcnt vmcnt(0)
s_mov_b64 exec, 1
buffer_store_dword v14, v15, {WS}, s{sTMP+4} offen sc1
s_mov_b64 exec, -1
""")
        self.stamp(4)
        for back in (1, 2):
            Ls = a.label("Lhs")
            a.e(f"s_cmp_lt_u32 s{sRB}, {back}\ns_cbranch_scc1 {Ls}")
            a.e(f"s_sub_u32 s{sTMP+5}, s{sTMP+4}, {back*1024}")
            self.poll(15, f"s{sTMP+5}", 16)
            a.e(f"s_sub_u32 s{sTMP+6}, s{sTMP+1}, {back*8192}\ns_sub_u32 s{sTMP+7}, s{sTMP+2}, {back*8192}")
            for half in range(2):
                a.e(f"s_add_u32 m0, s{sTMP+3}, {L_K + (8-4*back)*2048}")
                self.nocount(f"buffer_load_dwordx4 v11, {WS}, s{sTMP+6} offen offset:{half*1024} sc1 lds")
                a.e(f"s_add_u32 m0, s{sTMP+3}, {L_V + (8-4*back)*2048}")
                self.nocount(f"buffer_load_dwordx4 v11, {WS}, s{sTMP+7} offen offset:{half*1024} sc1 lds")
            a.e(f"{Ls}:")
        self.purity()
        a.e(f"s_waitcnt vmcnt(0) lgkmcnt(0)\ns_branch {L_j}")
        a.vm_issued, a.lg_issued = v0_, l0_
        a.e(f"{L_h}:")
        a.e(f"""
s_lshl_b32 s{sTMP}, s{sW3}, 5
s_add_u32 s{sTMP}, s{sTMP}, {L_SCR}
v_lshl_add_u32 v12, v3, 3, s{sTMP}
ds_write_b64 v12, v[72:73]
s_waitcnt lgkmcnt(0)
""")
        a.vm_issued, a.lg_issued = v0_, l0_
        a.e(f"{L_j}:")
        a.e("s_barrier")
        self.stamp(5)
        Lq = a.label("Lq")
        Lp = a.label("Lpub2")
        a.e(f"s_cmp_lt_u32 s{sW}, 4\ns_cbranch_scc1 {Lq}")
        a.e(f"s_lshl_b32 s{sTMP+4}, s{sW3}, 10\ns_add_u32 s{sTMP+4}, s{sTMP+4}, {L_QX}\nv_add_u32 v5, s{sTMP+4}, v11")
        self.nocount(f"ds_read_b128 v[{QF}:{QF+3}], v5")
        a.e(f"s_cmp_lg_u32 s{sW}, 4\ns_cbranch_scc1 {Lp}")
        a.e(f"v_and_b32 v13, 3, v1\nv_lshlrev_b32 v13, 3, v13\nv_add_u32 v14, {L_SCR}, v13")
        self.nocount("\n".join(f"ds_read_b64 v[{80+2*w}:{81+2*w}], v14 offset:{w*32}" for w in range(4)))
        a.e(f"""
s_lshr_b32 s{sTMP+5}, s{sP}, 6
s_cmp_eq_u32 s{sTMP+5}, 2
s_cselect_b32 s{sTMP+4}, 1.0, 0
s_lshl_b32 s{sTMP+5}, s{sP}, 5
s_add_u32 s{sTMP+5}, s{sTMP+5}, {MODG}
s_waitcnt lgkmcnt(0)
v_add_f32 v80, v80, v82
v_add_f32 v81, v81, v83
v_add_f32 v84, v84, v86
v_add_f32 v85, v85, v87
v_add_f32 v80, v80, v84
v_add_f32 v81, v81, v85
""")
        self.granule(80, 81, sTMP + 4, 82)
        a.e("s_mov_b64 exec, 0xf")
        self.nocount(f"buffer_store_dwordx2 v[82:83], v13, {WS}, s{sTMP+5} offen sc1")
        a.e(f"s_mov_b64 exec, -1\n{Lp}:\n{Lq}:\ns_waitcnt lgkmcnt(0)")
        SB = [16, 32]
        CN = 48
        OA = 64
        PK = 80
        MK = 96
        MX = 104
        VF = [108, 116]
        KA = 0
        a.e(f"""
v_and_b32 v8, 31, v1
v_lshrrev_b32 v9, 5, v1
v_bfe_u32 v7, v1, 2, 2
s_lshl_b32 s{sTMP}, s{sWH}, 1
v_or_b32 v12, s{sTMP}, v9
v_xor_b32 v12, v12, v7
v_lshlrev_b32 v4, 6, v8
v_lshl_add_u32 v4, v12, 4, v4
s_lshl_b32 s{sTMP+1}, s{sW3}, 11
s_add_u32 s{sTMP+2}, s{sTMP+1}, {L_K}
v_add_u32 v4, s{sTMP+2}, v4
v_and_b32 v13, 15, v1
v_lshlrev_b32 v5, 6, v13
v_xor_b32 v12, v9, v7
v_lshl_add_u32 v5, v12, 4, v5
v_xor_b32 v12, 2, v12
v_lshlrev_b32 v6, 6, v13
v_lshl_add_u32 v6, v12, 4, v6
s_lshl_b32 s{sTMP+2}, s{sWH}, 10
s_add_u32 s{sTMP+2}, s{sTMP+2}, s{sTMP+1}
s_add_u32 s{sTMP+2}, s{sTMP+2}, {L_V}
v_add_u32 v5, s{sTMP+2}, v5
v_add_u32 v6, s{sTMP+2}, v6
s_lshl_b32 s{sTMP}, s{sRB}, 2
s_add_u32 s{sTMP}, s{sTMP}, s{sW3}
s_sub_u32 s{sIMIN}, 8, s{sTMP}
s_cmp_ge_u32 s{sTMP}, 8
s_cselect_b32 s{sIMIN}, 0, s{sIMIN}
""")
        order = [8, 0, 7, 6, 5, 4, 3, 2, 1]
        ktok = {}
        for i in order:
            a.e(f"ds_read_b128 {ar(KA+4*i,4)}, v4 offset:{i*2048}")
            ktok[i] = a.lg_tok()
        a.e(f"v_lshlrev_b32 v12, 2, v9\nv_sub_u32 v12, v8, v12")
        for r in range(16):
            kl = 8 * (r >> 2) + (r & 3)
            a.e(f"v_cmp_le_i32 s[{sMASK+2*r}:{sMASK+2*r+1}], {kl}, v12")
        a.e(f"v_mov_b32 v13, 0xffff\nv_mov_b32 v7, 0xffff0000")
        for j in range(8):
            a.e(f"v_cndmask_b32 v{MK+j}, 0, v13, s[{sMASK+4*j}:{sMASK+4*j+1}]")
            a.e(f"v_cndmask_b32 v12, 0, v7, s[{sMASK+4*j+2}:{sMASK+4*j+3}]")
            a.e(f"v_or_b32 v{MK+j}, v{MK+j}, v12")
        a.e(f"v_and_b32 v12, 27, v1\nv_cmp_eq_u32 vcc, 16, v12\nv_mov_b32 v13, 0x3f803f80")
        for r in range(16):
            a.e(f"v_cndmask_b32 v{VF[0]+r}, 0, v13, vcc")
        Q = vr(QF, 4)

        def smfma(buf, i, c):
            return f"v_mfma_f32_32x32x16_bf16 {vr(SB[buf],16)}, {ar(KA+4*i,4)}, {Q}, {c}"

        def fix_trail():
            Ln = a.label("Lnt")
            a.e(f"s_cmp_eq_u32 s{sIMIN}, 0\ns_cbranch_scc1 {Ln}")
            a.e("s_nop 12")
            for r in range(16):
                a.e(f"v_mov_b32 v{SB[1]+r}, {NEG_BIG:#x}")
            a.e(f"{Ln}:\ns_nop 12")

        def merge():
            for r in range(16):
                a.e(f"v_cndmask_b32 v{SB[0]+r}, v{SB[1]+r}, v{SB[0]+r}, s[{sMASK+2*r}:{sMASK+2*r+1}]")

        a.wait_lg(ktok[0])
        a.e(smfma(0, 8, "0"))
        a.e(smfma(1, 0, "0"))
        fix_trail()
        merge()
        a.wait_lg(ktok[7])
        a.e(smfma(1, 7, "0"))
        a.e(f"v_max3_f32 v{MX}, v{SB[0]}, v{SB[0]+1}, v{SB[0]+2}")
        for r in range(3, 15, 2):
            a.e(f"v_max3_f32 v{MX}, v{MX}, v{SB[0]+r}, v{SB[0]+r+1}")
        a.e(f"v_max_f32 v{MX}, v{MX}, v{SB[0]+15}")
        Le1 = a.label("Lp1e")
        buf = 1
        for i in range(7, 0, -1):
            a.e(f"s_cmp_gt_u32 s{sIMIN}, {i}\ns_cbranch_scc1 {Le1}")
            if i > 1:
                a.wait_lg(ktok[i - 1])
                a.e(smfma(1 - buf, i - 1, "0"))
            for r in range(0, 16, 2):
                a.e(f"v_max3_f32 v{MX}, v{MX}, v{SB[buf]+r}, v{SB[buf]+r+1}")
            buf = 1 - buf
        a.e(f"{Le1}:\ns_waitcnt lgkmcnt(0)\ns_nop 12")
        self.group_allsum([MX], [MX + 1], op="v_max_f32", stages=("32",))
        for r in range(16):
            a.e(f"v_sub_f32 v{CN+r}, 0, v{MX}")
        C = vr(CN, 16)

        def vread(b, i):
            return [f"s_mov_b32 exec_lo, 0xffff", f"s_mov_b32 exec_hi, 0xffff",
                    f"ds_read_b128 {vr(VF[b],4)}, v5 offset:{i*2048}", f"ds_read_b128 {vr(VF[b]+4,4)}, v6 offset:{i*2048}",
                    "s_mov_b64 exec, -1"]

        def expack(buf, dst):
            for r in range(16):
                a.e(f"v_exp_f32 v{SB[buf]+r}, v{SB[buf]+r}")
            for j in range(8):
                a.e(f"v_cvt_pk_bf16_f32 v{dst+j}, v{SB[buf]+2*j}, v{SB[buf]+2*j+1}")

        def pv(vb, p, first=False):
            a.e(f"v_mfma_f32_32x32x16_bf16 {vr(OA,16)}, {vr(VF[vb],4)}, {vr(p,4)}, {'0' if first else vr(OA,16)}")
            a.e(f"v_mfma_f32_32x32x16_bf16 {vr(OA,16)}, {vr(VF[vb]+4,4)}, {vr(p+4,4)}, {vr(OA,16)}")

        a.e("\n".join(vread(0, 8) + vread(1, 0)))
        tv = a.lg_tok()
        a.e(smfma(0, 8, C))
        a.e(smfma(1, 0, C))
        fix_trail()
        merge()
        a.e(smfma(1, 7, C))
        expack(0, PK)
        for j in range(8):
            a.e(f"v_and_b32 v{PK+8+j}, v{PK+j}, v{MK+j}")
        for j in range(8):
            a.e(f"v_xor_b32 v{PK+j}, v{PK+j}, v{PK+8+j}")
        a.wait_lg(tv)
        pv(0, PK + 8, first=True)
        Lnt = a.label("Lnpv")
        a.e(f"s_cmp_lg_u32 s{sIMIN}, 0\ns_cbranch_scc1 {Lnt}")
        pv(1, PK)
        a.e(f"{Lnt}:")
        Le2 = a.label("Lp2e")
        buf = 1
        vb = 0
        a.e("\n".join(vread(0, 7)))
        for i in range(7, 0, -1):
            a.e(f"s_cmp_gt_u32 s{sIMIN}, {i}\ns_cbranch_scc1 {Le2}")
            tv = a.lg_tok()
            if i > 1:
                a.e(smfma(1 - buf, i - 1, C))
                a.e("\n".join(vread(1 - vb, i - 1)))
            p = PK + 8 * (i & 1)
            expack(buf, p)
            a.wait_lg(tv)
            pv(vb, p)
            buf = 1 - buf
            vb = 1 - vb
        a.e(f"{Le2}:\ns_waitcnt lgkmcnt(0)\ns_nop 15")
        a.e(f"v_rcp_f32 v{MX}, v{OA+8}")
        for r in range(8):
            a.e(f"v_mul_f32 v{OA+r}, v{MX}, v{OA+r}")
        for j in range(4):
            a.e(f"v_cvt_pk_bf16_f32 v{PK+j}, v{OA+2*j}, v{OA+2*j+1}")
        a.e(f"""
v_bfe_u32 v12, v1, 4, 1
v_lshlrev_b32 v12, 14, v12
v_lshrrev_b32 v13, 5, v1
v_lshl_add_u32 v12, v13, 8, v12
v_and_b32 v13, 15, v1
v_lshl_add_u32 v12, v13, 4, v12
s_lshl_b32 s{sTMP}, s{sRB}, 2
s_add_u32 s{sTMP}, s{sTMP}, s{sW3}
s_lshl_b32 s{sTMP}, s{sTMP}, 15
s_lshl_b32 s{sTMP+1}, s{sJ}, 10
s_add_u32 s{sTMP}, s{sTMP}, s{sTMP+1}
s_lshl_b32 s{sTMP+1}, s{sWH}, 9
s_add_u32 s{sTMP}, s{sTMP}, s{sTMP+1}
s_add_u32 s{sTMP}, s{sTMP}, {OBUF}
s_lshl_b32 s{sTMP+1}, s{sP}, 5
s_lshl_b32 s{sTMP+2}, s{sW}, 2
s_add_u32 s{sTMP+1}, s{sTMP+1}, s{sTMP+2}
s_add_u32 s{sTMP+1}, s{sTMP+1}, {FL_O}
""")
        Lpu = a.label("Lpu")
        a.e(f"s_cmp_lt_u32 s{sW}, 4\ns_cbranch_scc1 {Lpu}")
        v_, l_ = a.vm_issued, a.lg_issued
        self.purity()
        a.vm_issued, a.lg_issued = v_, l_
        a.e(f"{Lpu}:\nv_mov_b32 v14, s{sTAG}\nv_mov_b32 v15, 0")
        self.store_sel(f"buffer_store_dwordx4 v[{PK}:{PK+3}], v12, {WS}, s{sTMP} offen\n" + self.flag_seq(f"s{sTMP+1}"))
        self.stamp(6)
        a.e("s_barrier")

    def gu_dma_setup(self):
        a = self.a
        a.e(f"""
s_cmp_ge_u32 s{sW}, 4
s_cselect_b32 s{S_SEL}, s{S_WU}, s{S_WG}
s_cselect_b32 s{S_SEL+1}, s{S_WU+1}, s{S_WG+1}
s_mov_b32 s{S_SEL+2}, 1835008
s_mov_b32 s{S_SEL+3}, 0x20000
s_mul_i32 s76, s{sW3}, {32*3584}
s_mul_i32 s77, s{sJ}, 224
s_add_u32 s76, s76, s77
s_mul_i32 s77, s{sW3}, 7168
s_mul_i32 s78, s{sWH}, {GU_UP}
s_add_u32 s77, s77, s78
s_mov_b32 s78, 4682
""")
        for i in range(7):
            a.e(f"""
v_add_u32 v12, {64*i}, v1
v_mul_u32_u24 v13, s78, v12
v_lshrrev_b32 v13, 16, v13
v_mul_u32_u24 v{144+i}, 14, v13
v_sub_u32 v12, v12, v{144+i}
v_mul_u32_u24 v{144+i}, 3584, v13
v_lshl_add_u32 v{144+i}, v12, 4, v{144+i}
""")

    def gu_dma(self, chunk):
        out = []
        out.append(f"s_add_u32 s79, s76, {chunk*128*3584}")
        for i in range(7):
            out.append(f"s_add_u32 m0, s77, {GU_SLOT[chunk%2] + i*1024}")
            out.append(f"buffer_load_dwordx4 v{144+i}, s[{S_SEL}:{S_SEL+3}], s79 offen lds")
        return out

    def tr_bases(self, lbase_code):
        a = self.a
        a.e(f"""
v_bfe_u32 v8, v1, 2, 2
v_lshl_add_u32 v9, v3, 3, v8
v_lshlrev_b32 v9, 7, v9
v_and_b32 v12, 3, v1
v_lshl_add_u32 v9, v12, 3, v9
v_lshrrev_b32 v8, 1, v8
v_and_b32 v12, 1, v3
v_lshl_or_b32 v8, v12, 1, v8
""")
        for t in range(4):
            a.e(f"v_xor_b32 v12, {t}, v8\nv_lshl_add_u32 v{4+t}, v12, 5, v9")
        lbase_code()

    def phase3(self):
        a = self.a
        self.gu_dma_setup()
        a.e("\n".join(self.gu_dma(0)))
        a.e(f"""
s_lshr_b32 s{sTMP+3}, s{sJ}, 3
s_lshl_b32 s{sTMP}, s{sRB}, 9
s_lshl_b32 s{sTMP+1}, s{sWH}, 8
s_add_u32 s{sTMP}, s{sTMP}, s{sTMP+1}
s_lshl_b32 s{sTMP+1}, s{sTMP+3}, 3
s_add_u32 s{sTMP}, s{sTMP}, s{sTMP+1}
s_lshr_b32 s{sTMP+1}, s{sW3}, 1
s_lshl_b32 s{sTMP+1}, s{sTMP+1}, 2
s_add_u32 s{sTMP}, s{sTMP}, s{sTMP+1}
s_add_u32 s{sTMP}, s{sTMP}, {FL_O}
v_and_b32 v14, 7, v1
v_lshlrev_b32 v14, 5, v14
v_bfe_u32 v15, v1, 3, 1
v_lshl_add_u32 v14, v15, 4, v14
s_lshl_b32 s{sTMP+2}, s{sRB}, 3
s_lshl_b32 s{sTMP+1}, s{sTMP+3}, 2
s_add_u32 s{sTMP+2}, s{sTMP+2}, s{sTMP+1}
s_add_u32 s{sTMP+2}, s{sTMP+2}, s{sW3}
s_mov_b32 s{sTMP+4}, s{sTMP+2}
s_lshl_b32 s{sTMP+2}, s{sTMP+2}, 14
s_lshl_b32 s{sTMP+1}, s{sWH}, 13
s_add_u32 s{sTMP+2}, s{sTMP+2}, s{sTMP+1}
s_add_u32 s{sTMP+2}, s{sTMP+2}, {OBUF}
""")

        def lb():
            a.e(f"s_lshl_b32 s{sTMP+1}, s{sWH}, 15\ns_add_u32 s{sTMP+1}, s{sTMP+1}, {L_WO}")
            for t in range(4):
                a.e(f"v_add_u32 v{4+t}, s{sTMP+1}, v{4+t}")
        self.tr_bases(lb)
        XR = 124
        a.e(f"""
v_and_b32 v12, 15, v1
v_lshlrev_b32 v12, 10, v12
v_lshl_add_u32 v12, v3, 3, v12
s_lshl_b32 s{sTMP+5}, s{sTMP+4}, 14
s_and_b32 s{sTMP+6}, s{sJ}, 7
s_lshl_b32 s{sTMP+6}, s{sTMP+6}, 7
s_add_u32 s{sTMP+5}, s{sTMP+5}, s{sTMP+6}
v_mov_b32 v151, v12
s_mov_b32 s80, s{sTMP+5}
""")
        for t in range(4):
            a.e(f"buffer_load_dwordx2 v[{XR+2*t}:{XR+1+2*t}], v12, s[{S_X}:{S_X+3}], s{sTMP+5} offen offset:{32*t}")
        Lt = a.label("Ltab")
        a.e(f"s_cmp_lg_u32 s{sW}, 4\ns_cbranch_scc1 {Lt}")
        L = a.label("T")
        Lo = a.label("To")
        a.e(f"""
v_lshlrev_b32 v12, 11, v3
v_and_b32 v13, 15, v1
v_lshl_add_u32 v12, v13, 4, v12
s_lshl_b32 s{sTMP+6}, s{sTMP+6}, 1
s_add_u32 s{sTMP+6}, s{sTMP+6}, {MODG}
s_mov_b32 s{sTMP+11}, 0
{L}:
""")
        self.nocount(f"buffer_load_dwordx4 v[16:19], v12, {WS}, s{sTMP+6} offen sc1")
        a.e(f"""
s_add_u32 s{sTMP+11}, s{sTMP+11}, 1
s_cmp_gt_u32 s{sTMP+11}, 400000
s_cbranch_scc1 {Lo}
s_waitcnt vmcnt(0)
v_xor_b32 v20, s{sTAG}, v17
v_xor_b32 v21, s{sTAG}, v19
v_or_b32 v20, v20, v21
v_cmp_ne_u32 vcc, 0, v20
s_cbranch_vccnz {L}
{Lo}:
s_waitcnt vmcnt(0)
v_and_b32 v17, 0xffff0000, v16
v_lshlrev_b32 v16, 16, v16
v_and_b32 v19, 0xffff0000, v18
v_lshlrev_b32 v18, 16, v18
v_add_u32 v12, {L_TAB}, v11
""")
        self.nocount("ds_write_b128 v12, v[16:19]")
        a.e(f"{Lt}:")
        ACC = 16
        BF = [32, 48]
        AFr = 64

        def R(s):
            out = []
            for t in range(4):
                for i in range(2):
                    out.append(f"ds_read_b64_tr_b16 {vr(BF[s%2]+4*t+2*i,2)}, v{4+t} offset:{(32*s+4*i)*128}")
            return out

        def M(s):
            return [f"v_mfma_f32_16x16x32_bf16 {vr(ACC+4*t,4)}, {vr(BF[s%2]+4*t,4)}, {vr(AFr+4*s,4)}, {'0' if s == 0 else vr(ACC+4*t,4)}" for t in range(4)]

        a.e("s_waitcnt lgkmcnt(0)")
        a.e("\n".join(R(0)))
        toks = {0: a.lg_tok()}
        self.poll(14, f"s{sTMP}", 15)
        self.stamp(7)
        vt = {}
        for s in range(8):
            if s == 4:
                a.e(f"s_add_u32 s{sTMP+2}, s{sTMP+2}, 4096")
            a.e(f"buffer_load_dwordx4 {vr(AFr+4*s,4)}, v11, {WS}, s{sTMP+2} offen offset:{(s%4)*1024} sc1")
            vt[s] = a.vm_tok()
        for s in range(8):
            a.wait_lg(toks[s])
            r = R(s + 1) if s < 7 else []
            a.e("\n".join(r))
            if r:
                toks[s + 1] = a.lg_tok()
            a.wait_vm(vt[s])
            a.e("\n".join(M(s)))
        a.e(f"s_lshl_b32 s{sTMP+1}, s{sW3}, 12\ns_add_u32 s{sTMP+1}, s{sTMP+1}, {L_RED}\nv_add_u32 v12, s{sTMP+1}, v11")
        Lw = a.label("Lrw")
        a.e(f"s_cmp_lt_u32 s{sW}, 4\ns_cbranch_scc1 {Lw}")
        self.nocount("\n".join(f"ds_write_b128 v12, {vr(ACC+4*t,4)} offset:{t*1024}" for t in range(4)))
        a.e(f"{Lw}:\ns_waitcnt lgkmcnt(0)\ns_barrier")
        L_h = a.label("Lp3h")
        L_j = a.label("Lp3j")
        a.e(f"s_cmp_ge_u32 s{sW}, 4\ns_cbranch_scc1 {L_h}")
        v0_, l0_ = a.vm_issued, a.lg_issued
        RD = 32
        for t in range(4):
            a.e(f"ds_read_b128 {vr(RD+4*t,4)}, v12 offset:{t*1024}")
        GA, SBv, G2 = 48, 64, 80
        a.e(f"v_lshlrev_b32 v13, 4, v3\nv_add_u32 v13, {L_TAB}, v13")
        for t in range(4):
            a.e(f"ds_read_b128 {vr(GA+4*t,4)}, v13 offset:{t*64}")
        for t in range(4):
            a.e(f"ds_read_b128 {vr(SBv+4*t,4)}, v13 offset:{256+t*64}")
        for t in range(4):
            a.e(f"ds_read_b128 {vr(G2+4*t,4)}, v13 offset:{512+t*64}")
        a.e("s_waitcnt lgkmcnt(8)")
        for t in range(4):
            a.e(f"ds_read_b128 {ar(80+4*t,4)}, v13 offset:{768+t*64}")
        X1 = 96
        for r in range(16):
            a.e(f"v_add_f32 v{ACC+r}, v{ACC+r}, v{RD+r}")
        for q in range(8):
            a.e(f"v_lshlrev_b32 v{X1+2*q}, 16, v{XR+q}\nv_and_b32 v{X1+1+2*q}, 0xffff0000, v{XR+q}")
        for r in range(16):
            a.e(f"v_fmac_f32 v{X1+r}, v{GA+r}, v{ACC+r}")
        X1P = 132
        for q in range(8):
            a.e(f"v_cvt_pk_bf16_f32 v{X1P+q}, v{X1+2*q}, v{X1+1+2*q}")
        for q in range(8):
            a.e(f"v_lshlrev_b32 v{X1+2*q}, 16, v{X1P+q}\nv_and_b32 v{X1+1+2*q}, 0xffff0000, v{X1P+q}")
        a.e(f"v_add_f32 v16, v{X1}, v{X1+1}\nv_mul_f32 v17, v{X1}, v{X1}")
        for r in range(2, 16):
            a.e(f"v_add_f32 v16, v16, v{X1+r}")
        for r in range(1, 16):
            a.e(f"v_fmac_f32 v17, v{X1+r}, v{X1+r}")
        self.group_allsum([16, 17], [20, 21])
        a.e(f"""
v_mov_b32 v18, s{sTAG}
v_mov_b32 v19, s{sTAG}
v_and_b32 v12, 15, v1
v_lshlrev_b32 v12, 7, v12
s_lshl_b32 s{sTMP+5}, s{sTMP+4}, 11
s_add_u32 s{sTMP+5}, s{sTMP+5}, {SGRAN}
s_and_b32 s{sTMP+6}, s{sJ}, 7
s_lshl_b32 s{sTMP+6}, s{sTMP+6}, 4
s_add_u32 s{sTMP+6}, s{sTMP+6}, s{sTMP+5}
v_lshl_add_u32 v13, v3, 5, v12
""")
        self.store_sel(f"s_mov_b64 exec, 0xffff\nbuffer_store_dwordx4 v[16:19], v12, {WS}, s{sTMP+6} offen\ns_mov_b64 exec, -1")
        if self.dump:
            for t in range(4):
                a.e(f"s_add_u32 s{sTMP+7}, s80, {X1DBG}\nbuffer_store_dwordx2 v[{X1P+2*t}:{X1P+1+2*t}], v151, {WS}, s{sTMP+7} offen offset:{32*t}")
        L = a.label("SG")
        Lo = a.label("SGo")
        a.e(f"s_mov_b32 s{sTMP+11}, 0\n{L}:")
        self.nocount(f"buffer_load_dwordx4 v[20:23], v13, {WS}, s{sTMP+5} offen sc1\nbuffer_load_dwordx4 v[24:27], v13, {WS}, s{sTMP+5} offen offset:16 sc1")
        a.e(f"""
s_add_u32 s{sTMP+11}, s{sTMP+11}, 1
s_cmp_gt_u32 s{sTMP+11}, 400000
s_cbranch_scc1 {Lo}
s_waitcnt vmcnt(0)
v_xor_b32 v28, s{sTAG}, v22
v_xor_b32 v29, s{sTAG}, v26
v_or_b32 v28, v28, v29
v_cmp_ne_u32 vcc, 0, v28
s_cbranch_vccnz {L}
{Lo}:
s_waitcnt vmcnt(0)
v_add_f32 v16, v20, v24
v_add_f32 v17, v21, v25
""")
        self.group_allsum([16, 17], [20, 21])
        a.e(f"""
v_mul_f32 v16, {f2u(1/512):#x}, v16
v_mul_f32 v17, {f2u(1/512):#x}, v17
v_fma_f32 v17, -v16, v16, v17
v_max_f32 v17, 0, v17
v_add_f32 v17, {f2u(1e-5):#x}, v17
v_rsq_f32 v18, v17
v_mul_f32 v19, v16, v18
v_sub_f32 v19, 0, v19
""")
        for r in range(16):
            a.e(f"v_fma_f32 v{X1+r}, v{X1+r}, v18, v19")
        for q in range(8):
            a.e(f"v_cvt_pk_bf16_f32 v{32+q}, v{X1+2*q}, v{X1+1+2*q}")
        for q in range(8):
            a.e(f"v_lshlrev_b32 v{X1+2*q}, 16, v{32+q}\nv_and_b32 v{X1+1+2*q}, 0xffff0000, v{32+q}")
        a.e("s_waitcnt lgkmcnt(0)")
        for r in range(16):
            a.e(f"v_fma_f32 v{X1+r}, v{X1+r}, v{G2+r}, v{SBv+r}")
        for q in range(8):
            a.e(f"v_cvt_pk_bf16_f32 v{32+q}, v{X1+2*q}, v{X1+1+2*q}")
        a.e(f"""
v_lshrrev_b32 v12, 1, v3
v_lshlrev_b32 v12, 9, v12
v_and_b32 v13, 15, v1
v_lshl_add_u32 v12, v13, 4, v12
v_and_b32 v13, 1, v3
v_lshl_add_u32 v12, v13, 3, v12
s_lshr_b32 s{sTMP+5}, s{sTMP+4}, 1
s_lshl_b32 s{sTMP+5}, s{sTMP+5}, 15
s_and_b32 s{sTMP+6}, s{sTMP+4}, 1
s_lshl_b32 s{sTMP+6}, s{sTMP+6}, 8
s_add_u32 s{sTMP+5}, s{sTMP+5}, s{sTMP+6}
s_and_b32 s{sTMP+6}, s{sJ}, 7
s_lshl_b32 s{sTMP+6}, s{sTMP+6}, 12
s_add_u32 s{sTMP+5}, s{sTMP+5}, s{sTMP+6}
s_add_u32 s{sTMP+5}, s{sTMP+5}, {H2BUF}
s_lshl_b32 s{sTMP+6}, s{sP}, 4
s_lshl_b32 s{sTMP+7}, s{sW}, 2
s_add_u32 s{sTMP+6}, s{sTMP+6}, s{sTMP+7}
s_add_u32 s{sTMP+6}, s{sTMP+6}, {FL_H2}
v_mov_b32 v14, s{sTAG}
v_mov_b32 v15, 0
""")
        st = "\n".join(f"buffer_store_dwordx2 v[{32+2*t}:{33+2*t}], v12, {WS}, s{sTMP+5} offen offset:{1024*t}" for t in range(4))
        self.store_sel(st + "\n" + self.flag_seq(f"s{sTMP+6}"))
        a.vm_issued, a.lg_issued = v0_, l0_
        a.e(f"{L_h}:")
        self.stamp(8)
        a.e("s_barrier")

    def d_dma_setup(self):
        a = self.a
        a.e(f"""
v_lshrrev_b32 v12, 3, v1
v_bfe_u32 v13, v1, 4, 1
s_and_b32 s83, s{sW}, 1
s_lshl_b32 s83, s83, 1
v_or_b32 v13, s83, v13
v_bfe_u32 v14, v1, 1, 2
v_xor_b32 v13, v13, v14
v_lshlrev_b32 v12, 10, v12
v_lshl_add_u32 v12, v13, 5, v12
v_and_b32 v13, 1, v1
v_lshl_add_u32 v152, v13, 4, v12
s_and_b32 s81, s{sJ}, 7
s_lshl_b32 s81, s81, 7
s_lshl_b32 s83, s{sW}, 13
s_add_u32 s81, s81, s83
s_lshl_b32 s82, s{sW}, 10
""")

    def d_dma(self, c):
        out = []
        for kh in range(2):
            for i in range(2):
                out.append(f"s_add_u32 m0, s82, {D_SLOT[c%4] + kh*16384 + i*8192}")
                out.append(f"s_add_u32 s83, s81, {(896*kh + 128*c + 64*i)*1024}")
                out.append(f"buffer_load_dwordx4 v152, s[{S_WD}:{S_WD+3}], s83 offen lds")
        return out

    def phase4(self):
        a = self.a
        a.e("\n".join(self.gu_dma(1)))
        a.e(f"s_mul_i32 s{sTMP}, s{sT}, 57344")
        self.touch(S_WD, sTMP, 448, sW, 8, 13, 10)
        self.d_dma_setup()
        a.e(f"""
s_lshl_b32 s{sTMP}, s{sRB}, 8
s_lshr_b32 s{sTMP+1}, s{sW3}, 1
s_lshl_b32 s{sTMP+1}, s{sTMP+1}, 7
s_add_u32 s{sTMP}, s{sTMP}, s{sTMP+1}
s_and_b32 s{sTMP+1}, s{sW3}, 1
s_lshl_b32 s{sTMP+1}, s{sTMP+1}, 3
s_add_u32 s{sTMP}, s{sTMP}, s{sTMP+1}
s_add_u32 s{sTMP}, s{sTMP}, {FL_H2}
v_and_b32 v14, 7, v1
v_lshlrev_b32 v14, 4, v14
v_bfe_u32 v15, v1, 3, 1
v_lshl_add_u32 v14, v15, 2, v14
s_lshl_b32 s{sTMP+2}, s{sRB}, 2
s_add_u32 s{sTMP+2}, s{sTMP+2}, s{sW3}
s_lshl_b32 s{sTMP+2}, s{sTMP+2}, 15
s_add_u32 s{sTMP+2}, s{sTMP+2}, {H2BUF}
v_lshrrev_b32 v8, 5, v1
v_bfe_u32 v9, v1, 2, 2
v_lshl_add_u32 v9, v8, 3, v9
v_mul_u32_u24 v4, 224, v9
v_bfe_u32 v9, v1, 4, 1
v_mul_u32_u24 v9, {GU_UP}, v9
v_add_u32 v4, v4, v9
v_and_b32 v9, 1, v1
v_lshl_add_u32 v4, v9, 4, v4
v_bfe_u32 v9, v1, 1, 1
v_lshl_add_u32 v4, v9, 3, v4
s_lshl_b32 s{sTMP+1}, s{sWH}, 7
v_add_u32 v4, s{sTMP+1}, v4
v_add_u32 v5, {GU_SLOT[1]}, v4
""")
        ACC = [16, 32, 48, 64]
        BF = [80, 96]

        def AF(s):
            if s < 20:
                return ar(4 * s, 4)
            if s < 25:
                return vr(112 + 4 * (s - 20), 4)
            return None

        self.poll(14, f"s{sTMP}", 15)
        self.stamp(9)
        NA = 25
        slot = lambda s: AF(s % NA)
        vt = {}

        def aload(s):
            base = f"s{sTMP+2}" if s < 4 else f"s{sTMP+3}"
            out = []
            if s % 4 == 0 and s > 0:
                out.append(f"s_add_u32 s{sTMP+3}, s{sTMP+2}, {4096*(s//4)}")
            out.append(f"buffer_load_dwordx4 {slot(s)}, v11, {WS}, {base} offen offset:{(s%4)*1024}")
            return out

        for s in range(NA):
            a.e("\n".join(aload(s)))
            vt[s] = a.vm_tok()

        def body(nt):
            def R(s):
                c, sl = s // 8, s % 8
                out = []
                for T in range(nt):
                    for i in range(2):
                        out.append(f"ds_read_b64_tr_b16 {vr(BF[s%2]+4*T+2*i,2)}, v{4+(c%2)} offset:{(16*sl+4*i)*224 + T*32}")
                return out

            def M(s):
                return [f"v_mfma_f32_32x32x16_bf16 {vr(ACC[T],16)}, {vr(BF[s%2]+4*T,4)}, {slot(s)}, {'0' if s == 0 else vr(ACC[T],16)}" for T in range(nt)]
            toks = {}
            for c in range(4):
                if c < 2:
                    pass
                else:
                    a.wait_vm(self.gtok[c])
                a.e("s_waitcnt lgkmcnt(0)\ns_barrier")
                if c >= 1 and c + 1 < 4:
                    a.e("\n".join(self.gu_dma(c + 1)))
                    self.gtok[c + 1] = a.vm_tok()
                if c == 1:
                    a.e("\n".join(self.d_dma(0)))
                    self.dtok[0] = a.vm_tok()
                a.e("\n".join(R(8 * c)))
                toks[8 * c] = a.lg_tok()
                for sl in range(8):
                    s = 8 * c + sl
                    a.wait_lg(toks[s])
                    r = R(s + 1) if sl < 7 else []
                    a.wait_vm(vt[s])
                    a.e("\n".join(interleave(M(s), r)))
                    if r:
                        toks[s + 1] = a.lg_tok()
                    if s + NA < 32 and s >= 1:
                        pass
                    if s >= 1 and (s - 1) + NA < 32:
                        a.e("\n".join(aload(s - 1 + NA)))
                        vt[s - 1 + NA] = a.vm_tok()
            K0 = -2.0 * 0.7978845608028654 * LOG2E
            K1 = K0 * 0.044715
            a.e(f"s_mov_b32 s{sTMP+4}, {f2u(K1):#x}\nv_mov_b32 v6, {f2u(K0):#x}")
            a.e(f"""
v_bfe_u32 v12, v1, 4, 1
v_mul_u32_u24 v12, 57344, v12
v_lshrrev_b32 v13, 5, v1
v_lshl_add_u32 v12, v13, 8, v12
v_and_b32 v13, 15, v1
v_lshl_add_u32 v12, v13, 4, v12
s_lshl_b32 s{sTMP+5}, s{sRB}, 2
s_add_u32 s{sTMP+5}, s{sTMP+5}, s{sW3}
s_mul_i32 s{sTMP+5}, s{sTMP+5}, {2*57344}
s_mul_i32 s{sTMP+6}, s{sJ}, {14*256}
s_add_u32 s{sTMP+5}, s{sTMP+5}, s{sTMP+6}
s_lshl_b32 s{sTMP+6}, s{sWH}, 11
s_add_u32 s{sTMP+5}, s{sTMP+5}, s{sTMP+6}
s_add_u32 s{sTMP+5}, s{sTMP+5}, {ACT}
s_lshl_b32 s{sTMP+6}, s{sP}, 5
s_lshl_b32 s{sTMP+7}, s{sW}, 2
s_add_u32 s{sTMP+6}, s{sTMP+6}, s{sTMP+7}
s_add_u32 s{sTMP+6}, s{sTMP+6}, {FL_ACT}
v_mov_b32 v14, s{sTAG}
v_mov_b32 v15, 0
""")
            for T in range(nt):
                g = ACC[T]
                t = 80 + 8 * (T % 2)
                for r in range(8):
                    a.e(f"v_mul_f32 v{t+r}, v{g+r}, v{g+r}")
                for r in range(8):
                    a.e(f"v_fma_f32 v{t+r}, v{t+r}, s{sTMP+4}, v6")
                for r in range(8):
                    a.e(f"v_mul_f32 v{t+r}, v{t+r}, v{g+r}")
                for r in range(8):
                    a.e(f"v_exp_f32 v{t+r}, v{t+r}")
                for r in range(8):
                    a.e(f"v_mul_f32 v{g+r}, v{g+r}, v{g+8+r}")
                for r in range(8):
                    a.e(f"v_add_f32 v{t+r}, 1.0, v{t+r}")
                for r in range(8):
                    a.e(f"v_rcp_f32 v{t+r}, v{t+r}")
                for r in range(8):
                    a.e(f"v_mul_f32 v{g+r}, v{g+r}, v{t+r}")
                for q in range(4):
                    a.e(f"v_cvt_pk_bf16_f32 v{96+4*T+q}, v{g+2*q}, v{g+2*q+1}")
            st = "\n".join(f"buffer_store_dwordx4 v[{96+4*T}:{99+4*T}], v12, {WS}, s{sTMP+5} offen offset:{512*T}" for T in range(nt))
            self.store_sel(st + "\n" + self.flag_seq(f"s{sTMP+6}"))

        L3 = a.label("Lgu3")
        Lj = a.label("Lguj")
        a.e(f"s_cmp_ge_u32 s{sW}, 4\ns_cbranch_scc1 {L3}")
        v0_, l0_ = a.vm_issued, a.lg_issued
        vt0 = dict(vt)
        self.gtok, self.dtok = {}, {}
        body(4)
        a.e(f"s_branch {Lj}\n{L3}:")
        a.vm_issued, a.lg_issued = v0_, l0_
        vt.clear(); vt.update(vt0)
        self.gtok, self.dtok = {}, {}
        body(3)
        a.e(f"{Lj}:")
        self.stamp(10)
        a.e("s_barrier")

    def phase5(self):
        a = self.a
        for c in (1, 2, 3):
            a.e("\n".join(self.d_dma(c)))
        a.e(f"""
s_lshr_b32 s{sTMP+3}, s{sJ}, 3
s_lshl_b32 s{sTMP}, s{sRB}, 9
s_lshl_b32 s{sTMP+1}, s{sWH}, 8
s_add_u32 s{sTMP}, s{sTMP}, s{sTMP+1}
s_lshl_b32 s{sTMP+1}, s{sTMP+3}, 3
s_add_u32 s{sTMP}, s{sTMP}, s{sTMP+1}
s_lshr_b32 s{sTMP+1}, s{sW3}, 1
s_lshl_b32 s{sTMP+1}, s{sTMP+1}, 2
s_add_u32 s{sTMP}, s{sTMP}, s{sTMP+1}
s_add_u32 s{sTMP}, s{sTMP}, {FL_ACT}
v_and_b32 v14, 7, v1
v_lshlrev_b32 v14, 5, v14
v_bfe_u32 v15, v1, 3, 1
v_lshl_add_u32 v14, v15, 4, v14
s_lshl_b32 s{sTMP+2}, s{sRB}, 3
s_lshl_b32 s{sTMP+1}, s{sTMP+3}, 2
s_add_u32 s{sTMP+2}, s{sTMP+2}, s{sTMP+1}
s_add_u32 s{sTMP+2}, s{sTMP+2}, s{sW3}
s_mul_i32 s{sTMP+2}, s{sTMP+2}, 57344
s_mul_i32 s{sTMP+1}, s{sWH}, 28672
s_add_u32 s{sTMP+2}, s{sTMP+2}, s{sTMP+1}
s_add_u32 s{sTMP+2}, s{sTMP+2}, {ACT}
""")

        def lb():
            a.e(f"s_lshl_b32 s{sTMP+1}, s{sWH}, 14")
            for t in range(4):
                a.e(f"v_add_u32 v{4+t}, s{sTMP+1}, v{4+t}")
            for t in range(4):
                a.e(f"v_add_u32 v{140+t}, {D_SLOT[0]}, v{4+t}")
            for t in range(4):
                a.e(f"v_add_u32 v{144+t}, {D_SLOT[3]}, v{4+t}")
        self.tr_bases(lb)
        ACC = 16
        BF = [32, 48]

        def AF(s):
            return ar(4 * s, 4) if s < 20 else vr(64 + 4 * (s - 20), 4)

        def R(s):
            c, sl = s // 4, s % 4
            sidx = c % 4
            out = []
            for t in range(4):
                for i in range(2):
                    if sidx == 0:
                        base, off = 140 + t, 0
                    elif sidx == 3:
                        base, off = 144 + t, 0
                    else:
                        base, off = 4 + t, D_SLOT[sidx]
                    out.append(f"ds_read_b64_tr_b16 {vr(BF[s%2]+4*t+2*i,2)}, v{base} offset:{off + (32*sl+4*i)*128}")
            return out

        def M(s):
            return [f"v_mfma_f32_16x16x32_bf16 {vr(ACC+4*t,4)}, {vr(BF[s%2]+4*t,4)}, {AF(s)}, {'0' if s == 0 else vr(ACC+4*t,4)}" for t in range(4)]

        self.poll(14, f"s{sTMP}", 15)
        self.stamp(11)
        vt = {}
        for s in range(28):
            if s % 4 == 0 and s > 0:
                a.e(f"s_add_u32 s{sTMP+2}, s{sTMP+2}, 4096")
            a.e(f"buffer_load_dwordx4 {AF(s)}, v11, {WS}, s{sTMP+2} offen offset:{(s%4)*1024} sc1")
            vt[s] = a.vm_tok()
        dtok = {}
        toks = {}
        for c in range(7):
            if c >= 4:
                a.wait_vm(dtok[c])
            if c == 0 or c >= 1:
                a.e("s_waitcnt lgkmcnt(0)\ns_barrier")
            if c >= 1 and c + 3 < 7:
                a.e("\n".join(self.d_dma(c + 3)))
                dtok[c + 3] = a.vm_tok()
            a.e("\n".join(R(4 * c)))
            toks[4 * c] = a.lg_tok()
            for sl in range(4):
                s = 4 * c + sl
                a.wait_lg(toks[s])
                r = R(s + 1) if sl < 3 else []
                a.e("\n".join(r))
                if r:
                    toks[s + 1] = a.lg_tok()
                a.wait_vm(vt[s])
                a.e("\n".join(M(s)))
        a.e(f"s_lshl_b32 s{sTMP+1}, s{sW3}, 12\ns_add_u32 s{sTMP+1}, s{sTMP+1}, {L_RED2}\nv_add_u32 v12, s{sTMP+1}, v11")
        Lw = a.label("Lrw")
        a.e(f"s_cmp_lt_u32 s{sW}, 4\ns_cbranch_scc1 {Lw}")
        self.nocount("\n".join(f"ds_write_b128 v12, {vr(ACC+4*t,4)} offset:{t*1024}" for t in range(4)))
        a.e(f"{Lw}:\ns_waitcnt lgkmcnt(0)\ns_barrier")
        L_h = a.label("Lp5h")
        a.e(f"s_cmp_ge_u32 s{sW}, 4\ns_cbranch_scc1 {L_h}")
        for t in range(4):
            a.e(f"ds_read_b128 {vr(32+4*t,4)}, v12 offset:{t*1024}")
        X1P = 132
        for q in range(8):
            a.e(f"v_lshlrev_b32 v{64+2*q}, 16, v{X1P+q}\nv_and_b32 v{65+2*q}, 0xffff0000, v{X1P+q}")
        for r in range(16):
            a.e(f"v_accvgpr_read_b32 v{48+r}, a{80+r}")
        a.e("s_waitcnt lgkmcnt(0)")
        for r in range(16):
            a.e(f"v_add_f32 v{ACC+r}, v{ACC+r}, v{32+r}")
        for r in range(16):
            a.e(f"v_fmac_f32 v{64+r}, v{48+r}, v{ACC+r}")
        for q in range(8):
            a.e(f"v_cvt_pk_bf16_f32 v{32+q}, v{64+2*q}, v{65+2*q}")
        for t in range(4):
            a.e(f"buffer_store_dwordx2 v[{32+2*t}:{33+2*t}], v151, s[{S_OUT}:{S_OUT+3}], s80 offen offset:{32*t}")
        a.e(f"{L_h}:")
        self.stamp(12)

    def finish(self):
        a = self.a
        Lx = a.label("Lfin")
        a.e(f"s_cmp_lg_u32 s2, 0\ns_cbranch_scc1 {Lx}\ns_cmp_lg_u32 s{sW}, 4\ns_cbranch_scc1 {Lx}")
        for q in range(4):
            a.e(f"v_lshlrev_b32 v12, 3, v1\nv_add_u32 v12, {4 + 512*q}, v12\ns_mov_b32 s{sTMP}, {XID}")
            self.poll(12, f"s{sTMP}", 13)
        a.e(f"v_mov_b32 v14, s{sTAG}\nv_mov_b32 v15, 0\ns_mov_b64 exec, 1")
        self.nocount(f"buffer_store_dword v14, v15, {WS}, 0 offen offset:{EPOCH} sc1")
        a.e(f"{Lx}:")
        a.e("L_END:\ns_endpgm\nL_CODE_END:")

    def build(self):
        ph = [self.phase0, self.phase1, self.phase2, self.phase3, self.phase4, self.phase5]
        for i, p in enumerate(ph):
            if i <= self.stop_after:
                p()
        self.finish()
        body = self.a.finalize()
        hdr = open("adaLN_cond__sliding_block__geglu_ffn__prompt.s.ref").read().split("; Override launch")[0]
        src = hdr + f"; @launch grid=(256,1,1) block=(512,1,1) lds={LDS_BYTES}\n" + HEADER.format(name=NAME) + body + \
            FOOTER.format(name=NAME, nvgpr=256, nsgpr=102, accum=160)
        return src


if __name__ == "__main__":
    import argparse
    ap = argparse.ArgumentParser()
    ap.add_argument("-o", default="k.s")
    ap.add_argument("--stamps", action="store_true")
    ap.add_argument("--dump", action="store_true")
    ap.add_argument("--stop", type=int, default=99)
    args = ap.parse_args()
    g = Gen(stop_after=args.stop, stamps=args.stamps, dump=args.dump)
    src = g.build()
    open(args.o, "w").write(src)
    print("wrote", args.o, len(src), "bytes; nops", g.a.nops)
```

```python
import sys, os, struct
sys.path.insert(0, "dev")
from asmlib import *

NAME = "adaLN_cond__sliding_block__geglu_ffn__prompt_kernel"
EXP = os.environ.get("EXP", "").split(",")

EPOCH = 0x0
XID = 0x1000
MODA = 0x2000
MODB = 0xA000
MODG = 0x12000
FL_KV = 0x20000
FL_O = 0x24000
FL_H2 = 0x26000
FL_H1 = 0x22000
FL_ACT = 0x28000
STAMP = 0x2800000
KVX = 0x100000
OBUF = 0x500000
H2BUF = 0x700000
SGRAN = 0x900000
ACT = 0xA00000
H1BUF = 0x1200000
DBG0 = 0x2000000
X1DBG = 0x2400000

S_X, S_WQKV, S_WO, S_WG, S_WU, S_WD, S_C, S_WM, S_OUT, S_WS = 8, 12, 16, 20, 24, 28, 32, 36, 40, 44
sX, sT, sRB, sJ, sW, sTAG, sXCC, sPURE, sP = 48, 49, 50, 51, 52, 53, 54, 55, 56
sW3, sWH, sIMIN = 57, 58, 59
sTMP = 60
S_SEL = 72
sMASK = 60

L_WQKV = 0
L_WO = 96 * 1024
L_K = 0
L_V = 24 * 1024
L_QX = 48 * 1024
L_SCR = 52 * 1024
L_RED = 0
L_TAB = 32 * 1024
L_ST = 33 * 1024
GU_SLOT = [57344, 98304, 127104, 0]
GU_UP = 14464
D_SLOT = [127104, 0, 32768, 65536]
L_RED2 = 0
L_GATE = 32760
L_XA = 0
L_XB = 65536
LDS_BYTES = 160 * 1024

LOG2E = 1.4426950408889634
QSCALE = 0.25 * LOG2E
NEG_BIG = 0xf149f2ca


def f2u(x):
    return struct.unpack("<I", struct.pack("<f", x))[0]


WS = f"s[{S_WS}:{S_WS+3}]"


class Gen:
    def __init__(self, stop_after=99, stamps=False, dump=False):
        self.a = Asm()
        self.stop_after = stop_after
        self.stamps = stamps
        self.dump = dump

    def nocount(self, text):
        a = self.a
        v, l = a.vm_issued, a.lg_issued
        a.e(text)
        a.vm_issued, a.lg_issued = v, l

    def stamp(self, idx):
        if not self.stamps:
            return
        a = self.a
        idx += 1
        v_, l_ = a.vm_issued, a.lg_issued
        a.e(f"s_memrealtime s[96:97]\ns_memtime s[94:95]\ns_waitcnt lgkmcnt(0)")
        a.e(f"v_mov_b32 v159, 0\ns_lshl_b32 s98, s2, 11\ns_lshl_b32 s99, s{sW}, 8\ns_add_u32 s98, s98, s99\ns_add_u32 s98, s98, {STAMP}")
        if idx == 2:
            a.e(f"v_mov_b32 v158, s100\nbuffer_store_dword v158, v159, {WS}, s98 offen")
        a.e(f"v_mov_b32 v158, s96\nbuffer_store_dword v158, v159, {WS}, s98 offen offset:{idx*4}")
        a.e(f"v_mov_b32 v158, s94\nbuffer_store_dword v158, v159, {WS}, s98 offen offset:{128+idx*4}")
        a.vm_issued, a.lg_issued = v_, l_

    def poll(self, vaddr, soff, vdst, cnt=sTMP + 11):
        a = self.a
        L = a.label("P")
        Lo = a.label("Po")
        a.e(f"s_mov_b32 s{cnt}, 0\n{L}:")
        self.nocount(f"buffer_load_dword v{vdst}, v{vaddr}, {WS}, {soff} offen sc1")
        a.e(f"""
s_add_u32 s{cnt}, s{cnt}, 1
s_cmp_gt_u32 s{cnt}, 400000
s_cbranch_scc1 {Lo}
s_waitcnt vmcnt(0)
v_cmp_ne_u32 vcc, s{sTAG}, v{vdst}
s_cbranch_vccnz {L}
{Lo}:
s_waitcnt vmcnt(0)
""")

    def store_sel(self, text):
        a = self.a
        Ls = a.label("Ssl")
        Le = a.label("Sen")
        lines = [l for l in text.strip().split("\n") if l.strip()]
        a.e(f"s_cmp_eq_u32 s{sPURE}, 0\ns_cbranch_scc1 {Ls}")
        a.e("\n".join(lines))
        a.e(f"s_branch {Le}\n{Ls}:")
        self.nocount("\n".join((l + " sc1") if l.strip().startswith("buffer_store") else l for l in lines))
        a.e(f"{Le}:")

    def flag_seq(self, soff, vt=14):
        return f"s_waitcnt vmcnt(0)\ns_mov_b64 exec, 1\nbuffer_store_dword v{vt}, v{vt+1}, {WS}, {soff} offen\ns_mov_b64 exec, -1"

    def purity(self, vt=30):
        a = self.a
        a.e(f"""
v_and_b32 v{vt}, 31, v1
v_lshlrev_b32 v{vt}, 3, v{vt}
s_lshl_b32 s{sTMP+10}, s{sX}, 8
s_add_u32 s{sTMP+10}, s{sTMP+10}, {XID}
buffer_load_dwordx2 v[{vt+2}:{vt+3}], v{vt}, {WS}, s{sTMP+10} offen sc1
s_waitcnt vmcnt(0)
v_xor_b32 v{vt}, s{sTAG}, v{vt+3}
v_xor_b32 v{vt+1}, s{sXCC}, v{vt+2}
v_or_b32 v{vt}, v{vt}, v{vt+1}
v_cmp_ne_u32 vcc, 0, v{vt}
s_cmp_eq_u64 vcc, 0
s_cselect_b32 s{sPURE}, 1, 0
""")

    def touch(self, srd, soff_base, nlines_per_wg, widx, nw, vdst, vaddr):
        a = self.a
        if "notouch" in EXP:
            return
        n = nlines_per_wg // 64
        per = (n + nw - 1) // nw
        a.e(f"s_lshl_b32 s{sTMP+9}, s{widx}, 13\ns_add_u32 s{sTMP+9}, s{sTMP+9}, s{soff_base}")
        for i in range(per):
            a.e(f"buffer_load_dword v{vdst}, v{vaddr}, s[{srd}:{srd+3}], s{sTMP+9} offen")
            if i < per - 1:
                a.e(f"s_add_u32 s{sTMP+9}, s{sTMP+9}, {nw*8192}")

    def silu_bf16(self, src_pk, n_pk, dst, tmp):
        a = self.a
        n = 2 * n_pk
        for d in range(n_pk):
            a.e(f"v_lshlrev_b32 v{dst+2*d}, 16, v{src_pk+d}\nv_and_b32 v{dst+2*d+1}, 0xffff0000, v{src_pk+d}")
        for i in range(n):
            a.e(f"v_mul_f32 v{tmp+i}, {f2u(-LOG2E):#x}, v{dst+i}")
        for i in range(n):
            a.e(f"v_exp_f32 v{tmp+i}, v{tmp+i}")
        for i in range(n):
            a.e(f"v_add_f32 v{tmp+i}, 1.0, v{tmp+i}")
        for i in range(n):
            a.e(f"v_rcp_f32 v{tmp+i}, v{tmp+i}")
        for i in range(n):
            a.e(f"v_mul_f32 v{dst+i}, v{dst+i}, v{tmp+i}")
        for d in range(n_pk):
            a.e(f"v_cvt_pk_bf16_f32 v{tmp+d}, v{dst+2*d}, v{dst+2*d+1}")
        for d in range(n_pk):
            a.e(f"v_lshlrev_b32 v{dst+2*d}, 16, v{tmp+d}\nv_and_b32 v{dst+2*d+1}, 0xffff0000, v{tmp+d}")

    def wave_allsum(self, regs, tmp):
        a = self.a
        for r in (1, 2, 4, 8):
            for x in regs:
                a.e(f"v_add_f32_dpp v{x}, v{x}, v{x} row_ror:{r} row_mask:0xf bank_mask:0xf")
        self.group_allsum(regs, tmp)

    def group_allsum(self, regs, tmp, op="v_add_f32", stages=("16", "32")):
        a = self.a
        for sw in stages:
            for x, t in zip(regs, tmp):
                a.e(f"v_mov_b32 v{t}, v{x}")
            for x, t in zip(regs, tmp):
                a.e(f"v_permlane{sw}_swap_b32 v{x}, v{t}")
            for x, t in zip(regs, tmp):
                a.e(f"{op} v{x}, v{x}, v{t}")

    def granule(self, lo, hi, s_one, dst):
        self.a.e(f"""
v_cvt_pk_bf16_f32 v{dst}, v{lo}, v{hi}
v_lshlrev_b32 v{lo}, 16, v{dst}
v_and_b32 v{hi}, 0xffff0000, v{dst}
v_add_f32 v{lo}, s{s_one}, v{lo}
v_add_f32 v{hi}, s{s_one}, v{hi}
v_cvt_pk_bf16_f32 v{dst}, v{lo}, v{hi}
v_mov_b32 v{dst+1}, s{sTAG}
""")

    def reduce8_pairs(self, AC):
        self.a.e(f"""
v_permlane16_swap_b32 v{AC}, v{AC+2}
v_permlane16_swap_b32 v{AC+1}, v{AC+3}
v_permlane16_swap_b32 v{AC+4}, v{AC+6}
v_permlane16_swap_b32 v{AC+5}, v{AC+7}
v_add_f32 v{AC}, v{AC}, v{AC+2}
v_add_f32 v{AC+1}, v{AC+1}, v{AC+3}
v_add_f32 v{AC+4}, v{AC+4}, v{AC+6}
v_add_f32 v{AC+5}, v{AC+5}, v{AC+7}
v_permlane32_swap_b32 v{AC}, v{AC+4}
v_permlane32_swap_b32 v{AC+1}, v{AC+5}
v_add_f32 v{AC}, v{AC}, v{AC+4}
v_add_f32 v{AC+1}, v{AC+1}, v{AC+5}
""")

    def phase0(self):
        a = self.a
        a.e(f"""
s_cmp_ge_u32 s2, 256
s_cbranch_scc1 L_END
{"s_memrealtime s[100:101]" if self.stamps else ""}
s_load_dwordx2 s[{S_WS}:{S_WS+1}], s[0:1], 88
s_load_dwordx2 s[{S_WM}:{S_WM+1}], s[0:1], 64
s_load_dwordx2 s[{S_C}:{S_C+1}], s[0:1], 56
s_load_dwordx2 s[{S_X}:{S_X+1}], s[0:1], 0
s_load_dwordx2 s[{S_WQKV}:{S_WQKV+1}], s[0:1], 8
s_load_dwordx2 s[{S_WO}:{S_WO+1}], s[0:1], 16
s_load_dwordx2 s[{S_WG}:{S_WG+1}], s[0:1], 32
s_load_dwordx2 s[{S_WU}:{S_WU+1}], s[0:1], 40
s_load_dwordx2 s[{S_WD}:{S_WD+1}], s[0:1], 48
s_load_dwordx2 s[{S_OUT}:{S_OUT+1}], s[0:1], 72
s_getpc_b64 s[{sTMP}:{sTMP+1}]
L_PC:
s_and_b32 s{sX}, s2, 7
s_lshr_b32 s{sT}, s2, 3
s_lshl_b32 s{sTMP+2}, s{sT}, 11
v_lshlrev_b32 v2, 2, v0
v_add_u32 v2, s{sTMP+2}, v2
v_min_u32 v2, L_CODE_END-L_PC-4, v2
global_load_dword v4, v2, s[{sTMP}:{sTMP+1}]
s_getreg_b32 s{sXCC}, hwreg(HW_REG_XCC_ID)
s_and_b32 s{sXCC}, s{sXCC}, 15
s_lshr_b32 s{sTMP}, s{sT}, 4
s_lshl_b32 s{sRB}, s{sX}, 1
s_add_u32 s{sRB}, s{sRB}, s{sTMP}
s_and_b32 s{sJ}, s{sT}, 15
s_lshl_b32 s{sP}, s{sX}, 5
s_add_u32 s{sP}, s{sP}, s{sT}
v_and_b32 v1, 63, v0
v_lshrrev_b32 v2, 6, v0
v_lshrrev_b32 v3, 4, v1
v_readfirstlane_b32 s{sW}, v2
v_lshlrev_b32 v11, 4, v1
v_lshlrev_b32 v10, 7, v1
s_and_b32 s{sW3}, s{sW}, 3
s_lshr_b32 s{sWH}, s{sW}, 2
s_mov_b32 s{sPURE}, 0
""")
        sizes = {S_X: 2097152, S_WQKV: 1572864, S_WO: 524288, S_WG: 1835008, S_WU: 1835008, S_WD: 1835008, S_C: 1024,
                 S_WM: 3145728, S_OUT: 2097152, S_WS: 0x10000000}
        for s, sz in sizes.items():
            a.e(f"s_mov_b32 s{s+2}, {sz}\ns_mov_b32 s{s+3}, 0x20000")
        a.e("s_waitcnt lgkmcnt(0)")
        a.e(f"s_load_dword s{sTAG}, s[{S_WS}:{S_WS+1}], {EPOCH}")
        L_45 = a.label("Lw45")
        L_67 = a.label("Lw67")
        L_j = a.label("Lj0")
        tagfix = f"s_waitcnt lgkmcnt(0)\ns_mul_i32 s{sTAG}, s{sTAG}, 1664525\ns_add_u32 s{sTAG}, s{sTAG}, 1013904223"
        a.e(f"s_cmp_ge_u32 s{sW}, 6\ns_cbranch_scc1 {L_67}\ns_cmp_ge_u32 s{sW}, 4\ns_cbranch_scc1 {L_45}")
        v0_, l0_ = a.vm_issued, a.lg_issued
        XP, XF = 16, 32
        ST = [64, 65, 66, 67]
        STT = [68, 69, 70, 71]
        a.e(f"""
s_lshl_b32 s{sTMP}, s{sRB}, 17
s_lshl_b32 s{sTMP+1}, s{sJ}, 13
s_add_u32 s{sTMP}, s{sTMP}, s{sTMP+1}
s_lshl_b32 s{sTMP+1}, s{sW}, 11
s_add_u32 s{sTMP}, s{sTMP}, s{sTMP+1}
s_sub_u32 s{sTMP+1}, s{sTMP}, {256*1024}
s_cmp_lt_u32 s{sRB}, 2
s_cselect_b32 s{sTMP+1}, s{sTMP}, s{sTMP+1}
""")
        for i in range(4):
            a.e(f"buffer_load_dwordx4 {vr(XP+4*i,4)}, v11, s[{S_X}:{S_X+3}], s{sTMP + (i>>1)} offen offset:{(i&1)*1024}")
        if "wmtouch" in EXP:
            a.e(f"""
v_mul_u32_u24 v5, 6144, v3
v_and_b32 v6, 15, v1
v_lshl_add_u32 v5, v6, 7, v5
s_lshl_b32 s{sTMP}, s{sT}, 2
s_add_u32 s{sTMP}, s{sTMP}, s{sW}
s_mul_i32 s{sTMP}, s{sTMP}, {4*6144}
buffer_load_dword v6, v5, s[{S_WM}:{S_WM+3}], s{sTMP} offen
s_waitcnt vmcnt(1)
""")
        else:
            a.e("s_waitcnt vmcnt(0)")
        a.e(tagfix)
        for i in range(4):
            for d in range(4):
                a.e(f"v_lshlrev_b32 v{XF+8*i+2*d}, 16, v{XP+4*i+d}\nv_and_b32 v{XF+1+8*i+2*d}, 0xffff0000, v{XP+4*i+d}")
        for i in range(4):
            b = XF + 8 * i
            a.e(f"v_add_f32 v{ST[i]}, v{b}, v{b+1}")
            for e in range(2, 8):
                a.e(f"v_add_f32 v{ST[i]}, v{ST[i]}, v{b+e}")
        self.wave_allsum(ST, STT)
        for i in range(4):
            a.e(f"v_mul_f32 v{ST[i]}, {f2u(-1/512):#x}, v{ST[i]}")
        for i in range(4):
            for e in range(8):
                a.e(f"v_add_f32 v{XF+8*i+e}, v{ST[i]}, v{XF+8*i+e}")
        for i in range(4):
            b = XF + 8 * i
            a.e(f"v_mul_f32 v{ST[i]}, v{b}, v{b}")
            for e in range(1, 8):
                a.e(f"v_fmac_f32 v{ST[i]}, v{b+e}, v{b+e}")
        self.wave_allsum(ST, STT)
        for i in range(4):
            a.e(f"v_mul_f32 v{ST[i]}, {f2u(1/512):#x}, v{ST[i]}")
        for i in range(4):
            a.e(f"v_add_f32 v{ST[i]}, {f2u(1e-5):#x}, v{ST[i]}")
        for i in range(4):
            a.e(f"v_rsq_f32 v{ST[i]}, v{ST[i]}")
        for i in range(4):
            for e in range(8):
                a.e(f"v_mul_f32 v{XF+8*i+e}, v{ST[i]}, v{XF+8*i+e}")
        for i in range(4):
            for d in range(4):
                a.e(f"v_cvt_pk_bf16_f32 v{XP+4*i+d}, v{XF+8*i+2*d}, v{XF+1+8*i+2*d}")
        for i in range(4):
            for d in range(4):
                a.e(f"v_lshlrev_b32 v{XF+8*i+2*d}, 16, v{XP+4*i+d}\nv_and_b32 v{XF+1+8*i+2*d}, 0xffff0000, v{XP+4*i+d}")
        a.e(f"""
v_lshrrev_b32 v12, 1, v1
v_lshlrev_b32 v12, 10, v12
v_and_b32 v6, 1, v1
v_lshl_add_u32 v12, v6, 9, v12
s_lshl_b32 s{sTMP+4}, s{sX}, 19
s_and_b32 s{sTMP+3}, s{sRB}, 1
s_lshl_b32 s{sTMP+3}, s{sTMP+3}, 17
s_add_u32 s{sTMP+4}, s{sTMP+4}, s{sTMP+3}
s_lshr_b32 s{sTMP+3}, s{sJ}, 2
s_lshl_b32 s{sTMP+3}, s{sTMP+3}, 15
s_add_u32 s{sTMP+4}, s{sTMP+4}, s{sTMP+3}
s_and_b32 s{sTMP+3}, s{sJ}, 3
s_lshl_b32 s{sTMP+3}, s{sTMP+3}, 7
s_add_u32 s{sTMP+4}, s{sTMP+4}, s{sTMP+3}
s_lshl_b32 s{sTMP+3}, s{sW}, 5
s_add_u32 s{sTMP+4}, s{sTMP+4}, s{sTMP+3}
s_add_u32 s{sTMP+4}, s{sTMP+4}, {H1BUF}
s_add_u32 s{sTMP+8}, s{sTMP+4}, {2*131072}
v_lshlrev_b32 v13, 5, v1
v_lshlrev_b32 v7, 6, v1
v_add_u32 v7, 60, v7
v_and_b32 v8, 31, v1
v_lshlrev_b32 v8, 3, v8
s_lshl_b32 s{sTMP}, s{sX}, 12
s_add_u32 s{sTMP+1}, s{sTMP}, {MODB}
s_add_u32 s{sTMP}, s{sTMP}, {MODA}
s_lshl_b32 s{sTMP+2}, s{sX}, 8
s_add_u32 s{sTMP+2}, s{sTMP+2}, {XID}
s_lshl_b32 s{sTMP+5}, s{sP}, 4
s_lshl_b32 s{sTMP+6}, s{sW}, 2
s_add_u32 s{sTMP+5}, s{sTMP+5}, s{sTMP+6}
s_add_u32 s{sTMP+5}, s{sTMP+5}, {FL_H1}
s_mov_b32 s{sTMP+11}, 0
""")
        self.stamp(0)
        L = a.label("G")
        L2 = a.label("G2")
        Lo = a.label("Go")
        G0 = 96
        a.e(f"{L}:")
        self.nocount(f"buffer_load_dword v{G0}, v7, {WS}, s{sTMP} offen sc1")
        a.e(f"""
s_add_u32 s{sTMP+11}, s{sTMP+11}, 1
s_cmp_gt_u32 s{sTMP+11}, 400000
s_cbranch_scc1 {L2}
s_waitcnt vmcnt(0)
v_cmp_ne_u32 vcc, s{sTAG}, v{G0}
s_cbranch_vccz {L2}
s_add_u32 s{sTMP+10}, s{sTMP+11}, 1
s_and_b32 s{sTMP+10}, s{sTMP+10}, 15
s_cmp_lt_u32 s{sTMP+10}, 2
s_cselect_b32 s{sTMP+10}, s{sTMP+1}, s{sTMP}
s_cselect_b32 s{sTMP+1}, s{sTMP}, s{sTMP+1}
s_mov_b32 s{sTMP}, s{sTMP+10}
s_branch {L}
{L2}:
""")
        self.nocount(f"""
buffer_load_dwordx4 v[{G0}:{G0+3}], v13, {WS}, s{sTMP} offen sc1
buffer_load_dwordx4 v[{G0+4}:{G0+7}], v13, {WS}, s{sTMP} offen offset:16 sc1
buffer_load_dwordx4 v[{G0+8}:{G0+11}], v13, {WS}, s{sTMP} offen offset:2048 sc1
buffer_load_dwordx4 v[{G0+12}:{G0+15}], v13, {WS}, s{sTMP} offen offset:2064 sc1
buffer_load_dwordx2 v[{G0+16}:{G0+17}], v8, {WS}, s{sTMP+2} offen sc1
""")
        a.e(f"""
s_cmp_gt_u32 s{sTMP+11}, 400000
s_cbranch_scc1 {Lo}
s_waitcnt vmcnt(0)
v_xor_b32 v116, s{sTAG}, v{G0+1}
""")
        for q in range(3, 16, 2):
            a.e(f"v_xor_b32 v117, s{sTAG}, v{G0+q}\nv_or_b32 v116, v116, v117")
        a.e(f"v_cmp_ne_u32 vcc, 0, v116\ns_cbranch_vccnz {L}\n{Lo}:\ns_waitcnt vmcnt(0)")
        a.e(f"""
v_xor_b32 v116, s{sTAG}, v{G0+17}
v_xor_b32 v117, s{sXCC}, v{G0+16}
v_or_b32 v116, v116, v117
v_cmp_ne_u32 vcc, 0, v116
s_cmp_eq_u64 vcc, 0
s_cselect_b32 s{sPURE}, 1, 0
""")
        SA, GG = 72, 80
        for q in range(4):
            a.e(f"v_lshlrev_b32 v{SA+2*q}, 16, v{G0+2*q}\nv_and_b32 v{SA+1+2*q}, 0xffff0000, v{G0+2*q}")
            a.e(f"v_lshlrev_b32 v{GG+2*q}, 16, v{G0+8+2*q}\nv_and_b32 v{GG+1+2*q}, 0xffff0000, v{G0+8+2*q}")
        for i in range(4):
            for d in range(4):
                b = XF + 8 * i + 2 * d
                a.e(f"v_pk_fma_f32 v[{b}:{b+1}], v[{b}:{b+1}], v[{GG+2*d}:{GG+1+2*d}], v[{SA+2*d}:{SA+1+2*d}]")
            for d in range(4):
                a.e(f"v_cvt_pk_bf16_f32 v{XP+4*i+d}, v{XF+8*i+2*d}, v{XF+1+8*i+2*d}")
        a.e(f"v_mov_b32 v14, s{sTAG}\nv_mov_b32 v15, 0")
        st = "\n".join(f"buffer_store_dwordx4 v[{XP+4*i}:{XP+3+4*i}], v12, {WS}, s{sTMP+8 if i < 2 else sTMP+4} offen offset:{16*(i&1)}" for i in range(4))
        self.store_sel(st + "\n" + self.flag_seq(f"s{sTMP+5}"))
        a.e(f"s_branch {L_j}")
        a.vm_issued, a.lg_issued = v0_, l0_
        a.e(f"{L_45}:")
        a.e(f"s_cmp_ge_u32 s{sT}, 20\ns_cbranch_scc1 L_NOGEMV")
        L_SLAB = 96 * 1024
        self.w64_lane(12, stride=6144)
        a.e(f"""
s_lshl_b32 s{sTMP}, s{sT}, 7
s_lshl_b32 s{sTMP+1}, s{sX}, 9
s_add_u32 s{sTMP+1}, s{sTMP+1}, s{sTMP}
s_cmp_ge_u32 s{sT}, 16
s_cselect_b32 s{sTMP}, s{sTMP+1}, s{sTMP}
s_mul_i32 s{sTMP+1}, s{sW3}, {256*6144}
s_add_u32 s{sTMP}, s{sTMP}, s{sTMP+1}
s_lshl_b32 s{sTMP+2}, s{sW3}, 15
s_lshl_b32 s{sTMP+4}, s{sW3}, 9
v_lshlrev_b32 v8, 3, v1
buffer_load_dwordx2 v[70:71], v8, s[{S_C}:{S_C+3}], s{sTMP+4} offen
""")
        tok_c = a.vm_tok()
        for i in range(32):
            a.e(f"s_add_u32 m0, s{sTMP+2}, {L_SLAB + i*1024}\ns_add_u32 s{sTMP+3}, s{sTMP}, {i*8*6144}")
            a.e(f"buffer_load_dwordx4 v12, s[{S_WM}:{S_WM+3}], s{sTMP+3} offen lds")
        a.e(tagfix)
        a.e(f"s_lshl_b32 s{sTMP+4}, s{sW3}, 2\nv_mov_b32 v13, s{sTMP+4}\nv_mov_b32 v14, s{sTAG}\nds_write_b32 v13, v14 offset:{L_GATE}")
        a.wait_vm(tok_c)
        self.silu_bf16(70, 2, 14, 30)
        SF = 94
        a.e(f"v_lshrrev_b32 v9, 5, v1\nv_lshlrev_b32 v9, 3, v9")
        for st in range(16):
            for d in range(4):
                a.e(f"ds_bpermute_b32 v{SF+4*st+d}, v9, v{30 + (d&1)} offset:{(4*st + (d>>1))*4}")
            if st % 3 == 2:
                a.e("s_waitcnt lgkmcnt(3)")
        self.tr64_bases(4)
        a.e(f"""
s_add_u32 s{sTMP+2}, s{sTMP+2}, {L_SLAB}
v_add_u32 v4, s{sTMP+2}, v4
v_add_u32 v5, s{sTMP+2}, v5
s_waitcnt lgkmcnt(0)
""")
        self.stamp(22)
        a.e("s_waitcnt vmcnt(0)")
        self.stamp(23)
        GA_ = 32
        GB = [64, 72, 80]
        toks = {}

        def GR(st):
            return [f"ds_read_b64_tr_b16 {vr(GB[st%3]+4*t+2*i,2)}, v{4+t} offset:{(16*st+4*i)*128}" for t in range(2) for i in range(2)]
        for st in range(2):
            a.e("\n".join(GR(st)))
            toks[st] = a.lg_tok()
        for st in range(16):
            a.wait_lg(toks[st])
            for t in range(2):
                a.e(f"v_mfma_f32_32x32x16_bf16 {vr(GA_+16*t,16)}, {vr(GB[st%3]+4*t,4)}, {vr(SF+4*st,4)}, {'0' if st == 0 else vr(GA_+16*t,16)}")
            if st + 2 < 16:
                a.e("\n".join(GR(st + 2)))
                toks[st + 2] = a.lg_tok()
        self.stamp(24)
        L5 = a.label("Lg5")
        a.e(f"v_add_u32 v12, {L_SLAB + 32768}, v11\nv_mov_b32 v13, {L_SLAB + 32768 + 8192}\nv_mov_b32 v14, s{sTAG}")
        a.e(f"s_cmp_eq_u32 s{sW}, 4\ns_cbranch_scc1 {L5}")
        self.nocount("\n".join(f"ds_write_b128 v12, {vr(GA_+4*q,4)} offset:{q*1024}" for q in range(8)))
        a.e("s_waitcnt lgkmcnt(0)")
        self.nocount("ds_write_b32 v13, v14")
        a.e(f"s_waitcnt lgkmcnt(0)\ns_branch L_NOGEMV\n{L5}:")
        Ls = a.label("Lgs")
        Lso = a.label("Lgso")
        a.e(f"""
s_mov_b32 s{sTMP+11}, 0
{Ls}:
""")
        self.nocount("ds_read_b32 v15, v13")
        a.e(f"""
s_add_u32 s{sTMP+11}, s{sTMP+11}, 1
s_cmp_gt_u32 s{sTMP+11}, 4000000
s_cbranch_scc1 {Lso}
s_waitcnt lgkmcnt(0)
v_cmp_ne_u32 vcc, s{sTAG}, v15
s_cbranch_vccnz {Ls}
{Lso}:
""")
        self.nocount("\n".join(f"ds_read_b128 {vr(64+4*q,4)}, v12 offset:{q*1024}" for q in range(8)))
        a.e(f"""
s_lshl_b32 s{sTMP+5}, s{sX}, 12
s_lshl_b32 s{sTMP+6}, s{sT}, 8
s_add_u32 s{sTMP+5}, s{sTMP+5}, s{sTMP+6}
s_add_u32 s{sTMP+8}, s{sTMP+5}, {MODB}
s_add_u32 s{sTMP+5}, s{sTMP+5}, {MODA}
s_lshl_b32 s{sTMP+9}, s{sX}, 10
s_add_u32 s{sTMP+9}, s{sTMP+9}, s{sTMP+6}
s_add_u32 s{sTMP+9}, s{sTMP+9}, {MODG - 4096}
s_lshr_b32 s{sTMP+6}, s{sT}, 3
s_cmp_eq_u32 s{sTMP+6}, 1
s_cselect_b32 s{sTMP+7}, 1.0, 0
s_lshr_b32 s{sTMP+6}, s{sX}, 1
s_cmp_eq_u32 s{sTMP+6}, 2
s_cselect_b32 s{sTMP+10}, 1.0, 0
s_cmp_ge_u32 s{sT}, 16
s_cselect_b32 s{sTMP+7}, s{sTMP+10}, s{sTMP+7}
s_cselect_b32 s{sTMP+5}, s{sTMP+9}, s{sTMP+5}
s_cselect_b32 s{sTMP+8}, s{sTMP+9}, s{sTMP+8}
v_lshrrev_b32 v9, 5, v1
v_lshlrev_b32 v9, 5, v9
s_waitcnt lgkmcnt(0)
""")
        for r in range(32):
            a.e(f"v_add_f32 v{GA_+r}, v{GA_+r}, v{64+r}")
        for q in range(16):
            a.e(f"v_cvt_pk_bf16_f32 v{64+2*q}, v{GA_+2*q}, v{GA_+2*q+1}")
        for q in range(16):
            a.e(f"v_lshlrev_b32 v{GA_+2*q}, 16, v{64+2*q}\nv_and_b32 v{GA_+2*q+1}, 0xffff0000, v{64+2*q}")
        for r in range(32):
            a.e(f"v_add_f32 v{GA_+r}, s{sTMP+7}, v{GA_+r}")
        for q in range(16):
            a.e(f"v_cvt_pk_bf16_f32 v{64+2*q}, v{GA_+2*q}, v{GA_+2*q+1}\nv_mov_b32 v{65+2*q}, s{sTAG}")
        a.e("s_mov_b32 exec_lo, 1\ns_mov_b32 exec_hi, 1")
        Lnu = a.label("Lnu")
        a.e(f"s_cmp_ge_u32 s{sT}, 16\ns_cbranch_scc1 {Lnu}")
        for u in range(8):
            self.nocount(f"buffer_store_dwordx4 {vr(64+4*u,4)}, v9, {WS}, s{sTMP+5} offen offset:{(u>>1)*64 + (u&1)*16}")
        a.e(f"{Lnu}:")
        for u in range(8):
            self.nocount(f"buffer_store_dwordx4 {vr(64+4*u,4)}, v9, {WS}, s{sTMP+8} offen offset:{(u>>1)*64 + (u&1)*16} sc1")
        a.e("s_mov_b64 exec, -1")
        self.stamp(0)
        a.e("L_NOGEMV:")
        a.e(tagfix.replace("s_mul_i32", "s_cmp_ge_u32 s%d, 20\ns_cbranch_scc0 %s\ns_mul_i32" % (sT, L_j)))
        if "nomall" not in EXP:
            a.e(f"""
s_mul_i32 s{sTMP}, s{sX}, 12
s_add_u32 s{sTMP}, s{sTMP}, s{sT}
s_sub_u32 s{sTMP}, s{sTMP}, 20
s_lshl_b32 s{sTMP}, s{sTMP}, 1
s_add_u32 s{sTMP}, s{sTMP}, s{sW3}
s_lshl_b32 s{sTMP}, s{sTMP}, 13
s_add_u32 s{sTMP+1}, s{sTMP}, {192*8192}
""")
            if "notlb" not in EXP:
                a.e("v_lshlrev_b32 v5, 19, v1\nv_lshlrev_b32 v6, 15, v1")
                self.nocount(f"buffer_load_dword v2, v5, {WS}, 0 offen offset:2048\nbuffer_load_dword v2, v6, s[{S_OUT}:{S_OUT+3}], 0 offen")
            a.e(f"s_cmp_lt_u32 s{sTMP}, {84*8192}\ns_cselect_b32 s{sTMP+1}, s{sTMP}, 0x7fff0000\n"
                f"s_sub_u32 s{sTMP+2}, s{sTMP}, {84*8192}\ns_cmp_lt_u32 s{sTMP+2}, {84*8192}\ns_cselect_b32 s{sTMP+2}, s{sTMP+2}, 0x7fff0000\n"
                f"s_sub_u32 s{sTMP+3}, s{sTMP}, {128*8192}\ns_min_u32 s{sTMP+3}, s{sTMP+3}, 0x7fff0000")
            self.nocount(f"buffer_load_dword v2, v10, s[{S_WG}:{S_WG+3}], s{sTMP+1} offen")
            self.nocount(f"buffer_load_dword v2, v10, s[{S_WU}:{S_WU+3}], s{sTMP+2} offen")
            self.nocount(f"buffer_load_dword v2, v10, s[{S_WO}:{S_WO+3}], s{sTMP+3} offen")
        a.e(f"s_branch {L_j}")
        a.vm_issued, a.lg_issued = v0_, l0_
        a.e(f"{L_67}:")
        a.e(f"""
v_lshrrev_b32 v12, 2, v1
v_mul_u32_u24 v12, 3072, v12
v_and_b32 v13, 3, v1
v_lshl_add_u32 v12, v13, 4, v12
{tagfix}
v_mov_b32 v14, s{sXCC}
v_mov_b32 v15, s{sTAG}
s_lshl_b32 s{sTMP}, s{sP}, 3
s_add_u32 s{sTMP}, s{sTMP}, {XID}
v_mov_b32 v13, 0
s_mov_b64 exec, 1
buffer_store_dwordx2 v[14:15], v13, {WS}, s{sTMP} offen sc1
s_mov_b64 exec, -1
s_waitcnt vmcnt(0)
s_and_b32 s{sTMP+4}, s{sW}, 1
s_mul_i32 s{sTMP}, s{sTMP+4}, {16*3072}
s_lshl_b32 s{sTMP+1}, s{sJ}, 6
s_add_u32 s{sTMP}, s{sTMP}, s{sTMP+1}
s_lshl_b32 s{sTMP+2}, s{sTMP+4}, 10
""")
        Lgt = a.label("Lgate")
        Lgo = a.label("Lgateo")
        a.e(f"""
s_cmp_ge_u32 s{sT}, 20
s_cbranch_scc1 {Lgo}
v_and_b32 v13, 1, v1
v_lshlrev_b32 v13, 2, v13
s_mov_b32 s{sTMP+11}, 0
{Lgt}:
ds_read_b32 v14, v13 offset:{L_GATE}
s_add_u32 s{sTMP+11}, s{sTMP+11}, 1
s_cmp_gt_u32 s{sTMP+11}, 4000000
s_cbranch_scc1 {Lgo}
s_waitcnt lgkmcnt(0)
v_cmp_ne_u32 vcc, s{sTAG}, v14
s_cbranch_vccnz {Lgt}
{Lgo}:
s_waitcnt lgkmcnt(0)
""")
        if "qtouch" in EXP:
            a.e(f"s_mul_i32 s{sTMP+5}, s{sT}, 49152")
            self.touch(S_WQKV, sTMP + 5, 384, sTMP + 4, 2, 14, 10)
        if "dmadelay" in EXP:
            a.e(f"buffer_load_dword v14, v13, {WS}, s{sTMP} offen sc1\ns_waitcnt vmcnt(0)")
        for c in range(16):
            for seg in range(3):
                a.e(f"s_add_u32 m0, s{sTMP+2}, {L_WQKV + seg*32768 + c*2048}")
                a.e(f"s_add_u32 s{sTMP+3}, s{sTMP}, {c*32*3072 + seg*1024}")
                a.e(f"buffer_load_dwordx4 v12, s[{S_WQKV}:{S_WQKV+3}], s{sTMP+3} offen lds")
        a.e("s_waitcnt vmcnt(0)")
        self.stamp(0)
        a.vm_issued, a.lg_issued = v0_, l0_
        a.e(f"{L_j}:")
        if "prio" in EXP:
            Lpr = a.label("Lprio")
            a.e(f"s_cmp_lt_u32 s{sW}, 4\ns_cbranch_scc1 {Lpr}\ns_setprio 1\n{Lpr}:")
        a.e("s_nop 4\ns_barrier")
        self.stamp(1)

    def phase1(self):
        a = self.a
        a.e(f"""
s_lshl_b32 s{sTMP}, s{sRB}, 8
s_lshl_b32 s{sTMP+1}, s{sW3}, 6
s_add_u32 s{sTMP}, s{sTMP}, s{sTMP+1}
s_add_u32 s{sTMP}, s{sTMP}, {FL_H1}
v_and_b32 v12, 15, v1
v_lshlrev_b32 v12, 2, v12
s_lshl_b32 s{sTMP+2}, s{sX}, 19
s_and_b32 s{sTMP+1}, s{sRB}, 1
s_lshl_b32 s{sTMP+1}, s{sTMP+1}, 17
s_add_u32 s{sTMP+2}, s{sTMP+2}, s{sTMP+1}
s_xor_b32 s{sTMP+1}, s{sWH}, 1
s_lshl_b32 s{sTMP+1}, s{sTMP+1}, 18
s_add_u32 s{sTMP+2}, s{sTMP+2}, s{sTMP+1}
s_lshl_b32 s{sTMP+1}, s{sW3}, 15
s_add_u32 s{sTMP+2}, s{sTMP+2}, s{sTMP+1}
s_add_u32 s{sTMP+2}, s{sTMP+2}, {H1BUF}
v_lshrrev_b32 v8, 5, v1
v_bfe_u32 v9, v1, 2, 2
v_lshl_add_u32 v9, v8, 3, v9
v_lshlrev_b32 v4, 6, v9
v_bfe_u32 v9, v1, 4, 1
v_lshl_add_u32 v4, v9, 5, v4
v_and_b32 v9, 1, v1
v_lshl_add_u32 v4, v9, 4, v4
v_bfe_u32 v9, v1, 1, 1
v_lshl_add_u32 v4, v9, 3, v4
v_add_u32 v4, {L_WQKV}, v4
v_add_u32 v5, 32768, v4
v_add_u32 v6, 65536, v4
v_and_b32 v14, 31, v1
v_lshlrev_b32 v14, 3, v14
s_lshl_b32 s{sTMP+3}, s{sX}, 8
s_add_u32 s{sTMP+3}, s{sTMP+3}, {XID}
""")
        L = a.label("P1")
        Lo = a.label("P1o")
        a.e(f"s_mov_b32 s{sTMP+11}, 0\n{L}:")
        self.nocount(f"buffer_load_dword v13, v12, {WS}, s{sTMP} offen sc1\nbuffer_load_dwordx2 v[16:17], v14, {WS}, s{sTMP+3} offen sc1")
        a.e(f"""
s_add_u32 s{sTMP+11}, s{sTMP+11}, 1
s_cmp_gt_u32 s{sTMP+11}, 400000
s_cbranch_scc1 {Lo}
s_waitcnt vmcnt(0)
v_cmp_ne_u32 vcc, s{sTAG}, v13
s_cbranch_vccnz {L}
{Lo}:
s_waitcnt vmcnt(0)
v_xor_b32 v17, s{sTAG}, v17
v_xor_b32 v16, s{sXCC}, v16
v_or_b32 v16, v16, v17
v_cmp_ne_u32 vcc, 0, v16
s_cmp_eq_u64 vcc, 0
s_cselect_b32 s{sPURE}, 1, 0
""")
        self.stamp(2)
        ACC = [16, 32, 48]
        BFv = [64, 76, 88]
        NA = 12
        AF = lambda s: ar(4 * (s % NA), 4)
        NS = 32
        PD = 10

        def body(segs, wo=False):
            if wo:
                self.w64_lane(126)
                a.e(f"""
s_and_b32 s{sTMP+5}, s{sJ}, 7
s_lshl_b32 s{sTMP+5}, s{sTMP+5}, 7
s_lshl_b32 s{sTMP+6}, s{sW3}, 13
s_add_u32 s{sTMP+5}, s{sTMP+5}, s{sTMP+6}
s_lshl_b32 s{sTMP+6}, s{sW3}, 10
""")

            def R(s):
                return [f"ds_read_b64_tr_b16 {vr(BFv[s%3]+4*seg+2*i,2)}, v{4+seg} offset:{(16*s+4*i)*64}" for seg in segs for i in range(2)]

            def M(s):
                out = []
                for seg in segs:
                    c = "0" if s == 0 else vr(ACC[seg], 16)
                    b = vr(BFv[s % 3] + 4 * seg, 4)
                    if seg < 2:
                        out.append(f"v_mfma_f32_32x32x16_bf16 {vr(ACC[seg],16)}, {b}, {AF(s)}, {c}")
                    else:
                        out.append(f"v_mfma_f32_32x32x16_bf16 {vr(ACC[seg],16)}, {AF(s)}, {b}, {c}")
                return out

            def aload(s):
                out = []
                if s % 4 == 0 and s > 0:
                    out.append(f"s_add_u32 s{sTMP+2}, s{sTMP+2}, 4096")
                out.append(f"buffer_load_dwordx4 {AF(s)}, v11, {WS}, s{sTMP+2} offen offset:{(s%4)*1024} sc1")
                return out
            vt = {}
            for s in range(PD):
                a.e("\n".join(aload(s)))
                vt[s] = a.vm_tok()
            a.e("\n".join(R(0)))
            toks = {0: a.lg_tok()}
            a.e("\n".join(R(1)))
            toks[1] = a.lg_tok()
            for i in range(NS):
                r = R(i + 2) if i + 2 < NS else []
                a.wait_lg(toks[i])
                a.wait_vm(vt[i])
                a.e("\n".join(interleave(M(i), r)))
                if r:
                    toks[i + 2] = a.lg_tok()
                if i + PD < NS:
                    a.e("\n".join(aload(i + PD)))
                    vt[i + PD] = a.vm_tok()
                if wo and i < 16:
                    a.e(f"s_add_u32 m0, s{sTMP+6}, {L_WO + i*4096}\ns_add_u32 s{sTMP+7}, s{sTMP+5}, {i*32768}")
                    a.e(f"buffer_load_dwordx4 v126, s[{S_WO}:{S_WO+3}], s{sTMP+7} offen lds")
        L_h = a.label("Lp1h")
        L_j = a.label("Lp1j")
        a.e(f"s_cmp_ge_u32 s{sW}, 4\ns_cbranch_scc1 {L_h}")
        v0_, l0_ = a.vm_issued, a.lg_issued
        body([1, 2, 0])
        a.e(f"s_branch {L_j}\n{L_h}:")
        a.vm_issued, a.lg_issued = v0_, l0_
        body([1, 2], wo=True)
        a.e(f"{L_j}:")
        self.stamp(3)
        a.e("s_nop 15")

    def phase2(self):
        a = self.a
        QF = 140
        for r in range(8):
            a.e(f"v_cvt_pk_bf16_f32 v{64+r}, v{32+2*r}, v{33+2*r}")
        for r in range(8):
            a.e(f"v_cvt_pk_bf16_f32 v{72+r}, v{48+2*r}, v{49+2*r}")
        a.e(f"""
v_and_b32 v8, 31, v1
v_lshrrev_b32 v9, 5, v1
v_bfe_u32 v5, v1, 2, 2
v_xor_b32 v9, v9, v5
v_lshlrev_b32 v7, 6, v8
v_lshl_add_u32 v12, v9, 4, v7
v_xor_b32 v9, 2, v9
v_lshl_add_u32 v13, v9, 4, v7
s_xor_b32 s{sTMP+3}, s{sWH}, 1
s_lshl_b32 s{sTMP+3}, s{sTMP+3}, 14
s_lshl_b32 s{sTMP+4}, s{sW3}, 11
s_add_u32 s{sTMP+3}, s{sTMP+3}, s{sTMP+4}
s_add_u32 s{sTMP+1}, s{sTMP+3}, {L_K}
s_add_u32 s{sTMP+2}, s{sTMP+3}, {L_V}
v_add_u32 v8, s{sTMP+1}, v12
v_add_u32 v9, s{sTMP+1}, v13
v_add_u32 v5, s{sTMP+2}, v12
v_add_u32 v7, s{sTMP+2}, v13
s_lshl_b32 s{sTMP+1}, s{sP}, 14
s_lshl_b32 s{sTMP+2}, s{sW3}, 12
s_add_u32 s{sTMP+1}, s{sTMP+1}, s{sTMP+2}
s_add_u32 s{sTMP+1}, s{sTMP+1}, {KVX}
s_lshl_b32 s{sTMP+5}, s{sP}, 4
s_lshl_b32 s{sTMP+2}, s{sW3}, 2
s_add_u32 s{sTMP+5}, s{sTMP+5}, s{sTMP+2}
s_add_u32 s{sTMP+5}, s{sTMP+5}, {FL_KV}
v_mov_b32 v14, s{sTAG}
v_mov_b32 v15, 0
s_and_b32 s{sTMP+6}, s{sRB}, 1
""")
        L_f = a.label("Lfetch")
        L_j = a.label("Lp2j")
        a.e(f"s_cmp_lg_u32 s{sTMP+6}, s{sWH}\ns_cbranch_scc1 {L_f}")
        v0_, l0_ = a.vm_issued, a.lg_issued
        st = f"""buffer_store_dwordx4 v[64:67], v12, {WS}, s{sTMP+1} offen
buffer_store_dwordx4 v[68:71], v13, {WS}, s{sTMP+1} offen
buffer_store_dwordx4 v[72:75], v12, {WS}, s{sTMP+1} offen offset:2048
buffer_store_dwordx4 v[76:79], v13, {WS}, s{sTMP+1} offen offset:2048
"""
        self.store_sel(st + self.flag_seq(f"s{sTMP+5}"))
        a.e(f"s_barrier\ns_branch {L_j}\n{L_f}:")
        a.vm_issued, a.lg_issued = v0_, l0_
        a.e(f"s_xor_b32 s{sTMP+5}, s{sTMP+5}, 256\ns_xor_b32 s{sTMP+1}, s{sTMP+1}, {16*16384}")
        self.poll(15, f"s{sTMP+5}", 80)
        a.e("s_barrier")
        for half in range(2):
            a.e(f"s_add_u32 m0, s{sTMP+4}, {L_K + 4*2048}")
            self.nocount(f"buffer_load_dwordx4 v11, {WS}, s{sTMP+1} offen offset:{half*1024} sc1 lds")
            a.e(f"s_add_u32 m0, s{sTMP+4}, {L_V + 4*2048 - 2048}")
            self.nocount(f"buffer_load_dwordx4 v11, {WS}, s{sTMP+1} offen offset:{2048 + half*1024} sc1 lds")
        a.e(f"{L_j}:")
        a.e(f"""
ds_write_b128 v8, v[64:67]
ds_write_b128 v9, v[68:71]
ds_write_b128 v5, v[72:75]
ds_write_b128 v7, v[76:79]
""")
        Lq = a.label("Lq0")
        a.e(f"s_cmp_ge_u32 s{sW}, 4\ns_cbranch_scc1 {Lq}")
        a.e(f"s_mov_b32 s{sTMP}, {f2u(QSCALE):#x}")
        for r in range(16):
            a.e(f"v_mul_f32 v{16+r}, s{sTMP}, v{16+r}")
        for r in range(4):
            a.e(f"v_cvt_pk_bf16_f32 v{QF+r}, v{16+2*r}, v{17+2*r}")
        for r in range(4):
            a.e(f"v_cvt_pk_bf16_f32 v{80+r}, v{24+2*r}, v{25+2*r}")
        a.e(f"""
s_lshl_b32 s{sTMP+4}, s{sW}, 10
s_add_u32 s{sTMP+4}, s{sTMP+4}, {L_QX}
v_add_u32 v5, s{sTMP+4}, v11
""")
        self.nocount("ds_write_b128 v5, v[80:83]")
        a.e(f"{Lq}:")
        a.e("s_waitcnt vmcnt(0) lgkmcnt(0)\ns_barrier")
        self.stamp(5)
        Lq = a.label("Lq")
        Lw = a.label("Lwo")
        a.e(f"s_cmp_lt_u32 s{sW}, 4\ns_cbranch_scc1 {Lw}")
        a.e(f"s_lshl_b32 s{sTMP+4}, s{sW3}, 10\ns_add_u32 s{sTMP+4}, s{sTMP+4}, {L_QX}\nv_add_u32 v5, s{sTMP+4}, v11")
        self.nocount(f"ds_read_b128 v[{QF}:{QF+3}], v5")
        a.e(f"{Lw}:")
        a.e(f"{Lq}:\ns_waitcnt lgkmcnt(0)")
        self.gu_dma_setup()
        self.gu_dma_hi([0])
        if "nomall2" not in EXP:
            Lm = a.label("Lmall")
            a.e(f"""
s_lshr_b32 s{sTMP}, s{sW}, 1
s_cmp_lg_u32 s{sTMP}, 1
s_cbranch_scc1 {Lm}
s_lshl_b32 s{sTMP}, s{sP}, 1
s_and_b32 s{sTMP+1}, s{sW}, 1
s_add_u32 s{sTMP}, s{sTMP}, s{sTMP+1}
s_lshl_b32 s{sTMP}, s{sTMP}, 13
s_add_u32 s{sTMP+1}, s{sTMP}, {84*8192}
s_sub_u32 s{sTMP+2}, s{sTMP}, {140*8192}
s_cmp_lt_u32 s{sTMP+2}, {140*8192}
s_cselect_b32 s{sTMP+2}, s{sTMP+2}, 0x7fff0000
s_add_u32 s{sTMP+2}, s{sTMP+2}, {84*8192}
s_sub_u32 s{sTMP+3}, s{sTMP}, {280*8192}
s_min_u32 s{sTMP+3}, s{sTMP+3}, 0x7fff0000
""")
            self.nocount(f"buffer_load_dword v2, v10, s[{S_WG}:{S_WG+3}], s{sTMP+1} offen")
            self.nocount(f"buffer_load_dword v2, v10, s[{S_WU}:{S_WU+3}], s{sTMP+2} offen")
            self.nocount(f"buffer_load_dword v2, v10, s[{S_WD}:{S_WD+3}], s{sTMP+3} offen")
            a.e(f"{Lm}:")
        SB = [16, 32]
        CN, OA, PK, MK, MX = 48, 64, 80, 96, 104
        VF = [108, 116]
        KA = 0
        a.e(f"""
v_and_b32 v8, 31, v1
v_lshrrev_b32 v9, 5, v1
v_bfe_u32 v7, v1, 2, 2
s_lshl_b32 s{sTMP}, s{sWH}, 1
v_or_b32 v12, s{sTMP}, v9
v_xor_b32 v12, v12, v7
v_lshlrev_b32 v4, 6, v8
v_lshl_add_u32 v4, v12, 4, v4
s_lshl_b32 s{sTMP+1}, s{sW3}, 11
s_add_u32 s{sTMP+2}, s{sTMP+1}, {L_K}
v_add_u32 v4, s{sTMP+2}, v4
v_and_b32 v13, 15, v1
v_lshlrev_b32 v5, 6, v13
v_xor_b32 v12, v9, v7
v_lshl_add_u32 v5, v12, 4, v5
v_xor_b32 v12, 2, v12
v_lshlrev_b32 v6, 6, v13
v_lshl_add_u32 v6, v12, 4, v6
s_lshl_b32 s{sTMP+2}, s{sWH}, 10
s_add_u32 s{sTMP+2}, s{sTMP+2}, s{sTMP+1}
s_add_u32 s{sTMP+2}, s{sTMP+2}, {L_V}
v_add_u32 v5, s{sTMP+2}, v5
v_add_u32 v6, s{sTMP+2}, v6
s_lshl_b32 s{sTMP}, s{sRB}, 2
s_add_u32 s{sTMP}, s{sTMP}, s{sW3}
s_sub_u32 s{sIMIN}, 8, s{sTMP}
s_cmp_ge_u32 s{sTMP}, 8
s_cselect_b32 s{sIMIN}, 0, s{sIMIN}
s_mul_i32 s92, s{sT}, 35840
s_min_u32 s93, s{sW}, 4
s_lshl_b32 s93, s93, 13
s_add_u32 s92, s92, s93
s_add_u32 s92, s92, {192*3584}
""")
        order = [8, 0, 7, 6, 5, 4, 3, 2, 1]
        ktok = {}
        for i in order:
            a.e(f"ds_read_b128 {ar(KA+4*i,4)}, v4 offset:{i*2048}")
            ktok[i] = a.lg_tok()
        a.e(f"v_lshlrev_b32 v12, 2, v9\nv_sub_u32 v12, v8, v12")
        for r in range(16):
            kl = 8 * (r >> 2) + (r & 3)
            a.e(f"v_cmp_le_i32 s[{sMASK+2*r}:{sMASK+2*r+1}], {kl}, v12")
        a.e(f"v_mov_b32 v13, 0xffff\nv_mov_b32 v7, 0xffff0000")
        for j in range(8):
            a.e(f"v_cndmask_b32 v{MK+j}, 0, v13, s[{sMASK+4*j}:{sMASK+4*j+1}]")
            a.e(f"v_cndmask_b32 v12, 0, v7, s[{sMASK+4*j+2}:{sMASK+4*j+3}]")
            a.e(f"v_or_b32 v{MK+j}, v{MK+j}, v12")
        a.e(f"v_and_b32 v12, 27, v1\nv_cmp_eq_u32 vcc, 16, v12\nv_mov_b32 v13, 0x3f803f80")
        for r in range(16):
            a.e(f"v_cndmask_b32 v{VF[0]+r}, 0, v13, vcc")
        Q = vr(QF, 4)

        touches = [None, (S_WG, 0), None, (S_WU, 0)]

        def touch_one():
            if "atouch" not in EXP or not touches:
                return
            t_ = touches.pop(0)
            if t_ is None:
                return
            srd, off = t_
            Ln = a.label("Lnt")
            a.e(f"s_cmp_gt_u32 s{sW}, 4\ns_cbranch_scc1 {Ln}\ns_add_u32 s93, s92, {off}")
            self.nocount(f"buffer_load_dword v2, v10, s[{srd}:{srd+3}], s93 offen")
            a.e(f"{Ln}:")

        def smfma(buf, i, c):
            return f"v_mfma_f32_32x32x16_bf16 {vr(SB[buf],16)}, {ar(KA+4*i,4)}, {Q}, {c}"

        def fix_trail():
            Ln = a.label("Lnt")
            a.e(f"s_cmp_eq_u32 s{sIMIN}, 0\ns_cbranch_scc1 {Ln}")
            a.e("s_nop 12")
            for r in range(16):
                a.e(f"v_mov_b32 v{SB[1]+r}, {NEG_BIG:#x}")
            a.e(f"{Ln}:\ns_nop 12")

        def merge():
            for r in range(16):
                a.e(f"v_cndmask_b32 v{SB[0]+r}, v{SB[1]+r}, v{SB[0]+r}, s[{sMASK+2*r}:{sMASK+2*r+1}]")

        touch_one()
        a.wait_lg(ktok[0])
        a.e(smfma(0, 8, "0"))
        a.e(smfma(1, 0, "0"))
        fix_trail()
        merge()
        a.wait_lg(ktok[7])
        a.e(smfma(1, 7, "0"))
        a.e(f"v_max3_f32 v{MX}, v{SB[0]}, v{SB[0]+1}, v{SB[0]+2}")
        for r in range(3, 15, 2):
            a.e(f"v_max3_f32 v{MX}, v{MX}, v{SB[0]+r}, v{SB[0]+r+1}")
        a.e(f"v_max_f32 v{MX}, v{MX}, v{SB[0]+15}")
        Le1 = a.label("Lp1e")
        buf = 1
        for i in range(7, 0, -1):
            a.e(f"s_cmp_gt_u32 s{sIMIN}, {i}\ns_cbranch_scc1 {Le1}")
            if i > 1:
                a.wait_lg(ktok[i - 1])
                a.e(smfma(1 - buf, i - 1, "0"))
            for r in range(0, 16, 2):
                a.e(f"v_max3_f32 v{MX}, v{MX}, v{SB[buf]+r}, v{SB[buf]+r+1}")
            buf = 1 - buf
        a.e(f"{Le1}:\ns_waitcnt lgkmcnt(0)\ns_nop 12")
        self.group_allsum([MX], [MX + 1], op="v_max_f32", stages=("32",))
        for r in range(16):
            a.e(f"v_sub_f32 v{CN+r}, 0, v{MX}")
        C = vr(CN, 16)

        def vread(b, i):
            return [f"s_mov_b32 exec_lo, 0xffff", f"s_mov_b32 exec_hi, 0xffff",
                    f"ds_read_b128 {vr(VF[b],4)}, v5 offset:{i*2048}", f"ds_read_b128 {vr(VF[b]+4,4)}, v6 offset:{i*2048}",
                    "s_mov_b64 exec, -1"]

        def expack(buf, dst):
            for r in range(16):
                a.e(f"v_exp_f32 v{SB[buf]+r}, v{SB[buf]+r}")
            for j in range(8):
                a.e(f"v_cvt_pk_bf16_f32 v{dst+j}, v{SB[buf]+2*j}, v{SB[buf]+2*j+1}")

        def pv(vb, p, first=False):
            a.e(f"v_mfma_f32_32x32x16_bf16 {vr(OA,16)}, {vr(VF[vb],4)}, {vr(p,4)}, {'0' if first else vr(OA,16)}")
            a.e(f"v_mfma_f32_32x32x16_bf16 {vr(OA,16)}, {vr(VF[vb]+4,4)}, {vr(p+4,4)}, {vr(OA,16)}")

        touch_one()
        a.e("\n".join(vread(0, 8) + vread(1, 0)))
        tv = a.lg_tok()
        a.e(smfma(0, 8, C))
        a.e(smfma(1, 0, C))
        fix_trail()
        merge()
        a.e(smfma(1, 7, C))
        expack(0, PK)
        for j in range(8):
            a.e(f"v_and_b32 v{PK+8+j}, v{PK+j}, v{MK+j}")
        for j in range(8):
            a.e(f"v_xor_b32 v{PK+j}, v{PK+j}, v{PK+8+j}")
        a.wait_lg(tv)
        pv(0, PK + 8, first=True)
        Lnt = a.label("Lnpv")
        a.e(f"s_cmp_lg_u32 s{sIMIN}, 0\ns_cbranch_scc1 {Lnt}")
        pv(1, PK)
        a.e(f"{Lnt}:")
        Le2 = a.label("Lp2e")
        buf = 1
        vb = 0
        a.e("\n".join(vread(0, 7)))
        for i in range(7, 0, -1):
            a.e(f"s_cmp_gt_u32 s{sIMIN}, {i}\ns_cbranch_scc1 {Le2}")
            tv = a.lg_tok()
            if i > 1:
                a.e(smfma(1 - buf, i - 1, C))
                a.e("\n".join(vread(1 - vb, i - 1)))
            if i in (6, 4):
                touch_one()
            p = PK + 8 * (i & 1)
            expack(buf, p)
            a.wait_lg(tv)
            pv(vb, p)
            buf = 1 - buf
            vb = 1 - vb
        a.e(f"{Le2}:\ns_waitcnt lgkmcnt(0)\ns_nop 15")
        a.e(f"v_rcp_f32 v{MX}, v{OA+8}")
        for r in range(8):
            a.e(f"v_mul_f32 v{OA+r}, v{MX}, v{OA+r}")
        for j in range(4):
            a.e(f"v_cvt_pk_bf16_f32 v{PK+j}, v{OA+2*j}, v{OA+2*j+1}")
        a.e(f"""
s_lshl_b32 s{sTMP}, s{sRB}, 2
s_add_u32 s{sTMP}, s{sTMP}, s{sW3}
s_lshl_b32 s{sTMP}, s{sTMP}, 15
s_lshl_b32 s{sTMP+1}, s{sJ}, 11
s_add_u32 s{sTMP}, s{sTMP}, s{sTMP+1}
s_lshl_b32 s{sTMP+1}, s{sWH}, 10
s_add_u32 s{sTMP}, s{sTMP}, s{sTMP+1}
s_add_u32 s{sTMP}, s{sTMP}, {OBUF}
s_lshl_b32 s{sTMP+1}, s{sP}, 5
s_lshl_b32 s{sTMP+2}, s{sW}, 2
s_add_u32 s{sTMP+1}, s{sTMP+1}, s{sTMP+2}
s_add_u32 s{sTMP+1}, s{sTMP+1}, {FL_O}
v_mov_b32 v14, s{sTAG}
v_mov_b32 v15, 0
""")
        self.store_sel(f"buffer_store_dwordx4 v[{PK}:{PK+3}], v11, {WS}, s{sTMP} offen\n" + self.flag_seq(f"s{sTMP+1}"))
        self.stamp(6)
        self.gu_dma_setup(lanes=False)
        a.e("s_barrier")

    def w64_lane(self, vd, stride=1024):
        self.a.e(f"""
v_lshrrev_b32 v{vd}, 3, v1
v_mul_u32_u24 v{vd}, {stride}, v{vd}
v_and_b32 v2, 7, v1
v_bfe_u32 v{vd+1}, v1, 4, 1
v_lshlrev_b32 v{vd+1}, 2, v{vd+1}
v_xor_b32 v2, v2, v{vd+1}
v_lshl_add_u32 v{vd}, v2, 4, v{vd}
""")

    def tr64_bases(self, vd):
        self.a.e(f"""
v_lshrrev_b32 v8, 5, v1
v_bfe_u32 v9, v1, 2, 2
v_lshl_add_u32 v8, v8, 3, v9
v_lshlrev_b32 v8, 7, v8
v_bfe_u32 v12, v1, 4, 1
v_lshl_add_u32 v8, v12, 5, v8
v_and_b32 v12, 1, v1
v_lshl_add_u32 v8, v12, 4, v8
v_bfe_u32 v12, v1, 1, 1
v_lshl_add_u32 v8, v12, 3, v8
v_lshrrev_b32 v9, 1, v9
v_lshl_add_u32 v{vd}, v9, 6, v8
v_xor_b32 v9, 1, v9
v_lshl_add_u32 v{vd+1}, v9, 6, v8
""")

    def gu_dma_setup(self, lanes=True):
        a = self.a
        a.e(f"""
s_cmp_ge_u32 s{sW3}, 2
s_cselect_b32 s{S_SEL}, s{S_WU}, s{S_WG}
s_cselect_b32 s{S_SEL+1}, s{S_WU+1}, s{S_WG+1}
s_cselect_b32 s76, {GU_UP}, 0
s_mov_b32 s{S_SEL+2}, 1835008
s_mov_b32 s{S_SEL+3}, 0x20000
s_mov_b32 s84, 4682
s_and_b32 s86, s{sW}, 1
s_mul_i32 s85, s86, {32*3584}
s_mul_i32 s87, s{sJ}, 224
s_add_u32 s85, s85, s87
s_mul_i32 s86, s86, 7168
s_add_u32 s76, s76, s86
""")
        for i in range(7 if lanes else 0):
            a.e(f"""
v_add_u32 v12, {64*i}, v1
v_mul_u32_u24 v13, s84, v12
v_lshrrev_b32 v13, 16, v13
v_mul_u32_u24 v{144+i}, 14, v13
v_sub_u32 v12, v12, v{144+i}
v_mul_u32_u24 v{144+i}, 3584, v13
v_lshl_add_u32 v{144+i}, v12, 4, v{144+i}
""")

    def gu_dma(self, chunk):
        out = []
        for i in range(7):
            out.append(f"s_add_u32 s86, s85, {chunk*64*3584}\ns_add_u32 m0, s76, {GU_SLOT[chunk%4] + i*1024}\n"
                       f"buffer_load_dwordx4 v{144+i}, s[{S_SEL}:{S_SEL+3}], s86 offen lds")
        return out

    def gu_dma_hi(self, chunks):
        a = self.a
        Ln = a.label("Lgh")
        a.e(f"s_cmp_lt_u32 s{sW}, 4\ns_cbranch_scc1 {Ln}")
        for c in chunks:
            self.nocount("\n".join(self.gu_dma(c)))
        a.e(f"{Ln}:")

    def reduce_scatter4(self, ACC, base, dst):
        a = self.a
        a.e(f"""
s_and_b32 s{sTMP+1}, s{sW}, 1
s_lshl_b32 s{sTMP+1}, s{sTMP+1}, 15
s_lshr_b32 s{sTMP+5}, s{sW}, 1
s_lshl_b32 s{sTMP+6}, s{sTMP+5}, 11
s_add_u32 s{sTMP+6}, s{sTMP+6}, s{sTMP+1}
s_add_u32 s{sTMP+6}, s{sTMP+6}, {base}
v_add_u32 v12, s{sTMP+6}, v11
s_lshl_b32 s{sTMP+6}, s{sTMP+5}, 13
s_add_u32 s{sTMP+6}, s{sTMP+6}, s{sTMP+1}
s_add_u32 s{sTMP+6}, s{sTMP+6}, {base}
v_add_u32 v13, s{sTMP+6}, v11
""")
        for q in range(4):
            for hf in range(2):
                a.e(f"ds_write_b128 v12, {vr(ACC+8*q+4*hf,4)} offset:{q*8192 + hf*1024}")
        a.e("s_waitcnt lgkmcnt(0)\ns_barrier")
        for src in range(4):
            for hf in range(2):
                a.e(f"ds_read_b128 {vr(ACC+8*src+4*hf,4)}, v13 offset:{src*2048 + hf*1024}")
        a.e("s_waitcnt lgkmcnt(0)")
        for r in range(8):
            a.e(f"v_add_f32 v{ACC+r}, v{ACC+r}, v{ACC+8+r}\nv_add_f32 v{ACC+16+r}, v{ACC+16+r}, v{ACC+24+r}")
        for r in range(8):
            a.e(f"v_add_f32 v{dst+r}, v{ACC+r}, v{ACC+16+r}")

    def phase3(self):
        a = self.a
        a.e(f"""
s_lshr_b32 s{sTMP+3}, s{sJ}, 3
s_lshl_b32 s{sTMP+3}, s{sTMP+3}, 1
s_and_b32 s{sTMP+1}, s{sW}, 1
s_add_u32 s{sTMP+3}, s{sTMP+3}, s{sTMP+1}
s_lshr_b32 s{sTMP+5}, s{sW}, 1
s_and_b32 s{sTMP+7}, s{sTMP+5}, 1
s_lshl_b32 s{sTMP}, s{sRB}, 9
s_lshl_b32 s{sTMP+1}, s{sTMP+3}, 2
s_add_u32 s{sTMP}, s{sTMP}, s{sTMP+1}
s_lshl_b32 s{sTMP+1}, s{sTMP+5}, 7
s_add_u32 s89, s{sTMP}, s{sTMP+1}
s_lshl_b32 s{sTMP+1}, s{sTMP+7}, 8
s_add_u32 s{sTMP}, s{sTMP}, s{sTMP+1}
s_add_u32 s{sTMP}, s{sTMP}, {FL_O}
v_and_b32 v14, 3, v1
v_lshlrev_b32 v14, 5, v14
v_bfe_u32 v15, v1, 2, 1
v_lshl_add_u32 v153, v15, 4, v14
v_and_b32 v14, 7, v1
v_lshlrev_b32 v14, 5, v14
v_bfe_u32 v15, v1, 3, 1
v_lshl_add_u32 v14, v15, 4, v14
s_lshl_b32 s88, s{sRB}, 2
s_add_u32 s88, s88, s{sTMP+3}
s_lshl_b32 s{sTMP+2}, s88, 15
s_lshl_b32 s{sTMP+1}, s{sTMP+7}, 14
s_add_u32 s{sTMP+2}, s{sTMP+2}, s{sTMP+1}
s_add_u32 s{sTMP+2}, s{sTMP+2}, {OBUF}
""")
        self.tr64_bases(154)
        a.e(f"""
s_cmp_ge_u32 s{sW}, 4
s_cselect_b64 vcc, -1, 0
v_cndmask_b32 v4, v154, v155, vcc
s_lshl_b32 s{sTMP+1}, s{sTMP+7}, 15
s_add_u32 s{sTMP+1}, s{sTMP+1}, {L_WO}
v_add_u32 v4, s{sTMP+1}, v4
v_and_b32 v12, 31, v1
v_lshlrev_b32 v12, 10, v12
v_lshrrev_b32 v13, 5, v1
v_lshl_add_u32 v151, v13, 4, v12
s_lshl_b32 s80, s88, 15
s_and_b32 s{sTMP+6}, s{sJ}, 7
s_lshl_b32 s{sTMP+6}, s{sTMP+6}, 7
s_add_u32 s80, s80, s{sTMP+6}
s_lshl_b32 s{sTMP+1}, s{sTMP+5}, 5
s_add_u32 s80, s80, s{sTMP+1}
v_lshlrev_b32 v12, 11, v3
v_and_b32 v13, 15, v1
v_lshl_add_u32 v12, v13, 4, v12
s_lshl_b32 s{sTMP+6}, s{sTMP+6}, 1
s_add_u32 s{sTMP+6}, s{sTMP+6}, {MODG}
""")
        XR = 124
        a.e(f"buffer_load_dwordx4 v[{XR}:{XR+3}], v151, s[{S_X}:{S_X+3}], s80 offen")
        Lt = a.label("Ltab")
        L = a.label("T")
        Lo = a.label("To")
        a.e(f"s_cmp_lg_u32 s{sW}, 2\ns_cbranch_scc1 {Lt}\ns_mov_b32 s{sTMP+11}, 0\n{L}:")
        self.nocount(f"buffer_load_dwordx4 v[96:99], v12, {WS}, s{sTMP+6} offen sc1")
        a.e(f"""
s_add_u32 s{sTMP+11}, s{sTMP+11}, 1
s_cmp_gt_u32 s{sTMP+11}, 400000
s_cbranch_scc1 {Lo}
s_waitcnt vmcnt(0)
v_xor_b32 v100, s{sTAG}, v97
v_xor_b32 v101, s{sTAG}, v99
v_or_b32 v100, v100, v101
v_cmp_ne_u32 vcc, 0, v100
s_cbranch_vccnz {L}
{Lo}:
s_waitcnt vmcnt(0)
v_and_b32 v97, 0xffff0000, v96
v_lshlrev_b32 v96, 16, v96
v_and_b32 v99, 0xffff0000, v98
v_lshlrev_b32 v98, 16, v98
v_add_u32 v12, {L_TAB}, v11
""")
        self.nocount("ds_write_b128 v12, v[96:99]")
        a.e(f"{Lt}:")
        ACC = 16
        BF = [32, 36, 40]
        AF = lambda s: ar(4 * s, 4)

        def R(s):
            return [f"ds_read_b64_tr_b16 {vr(BF[s%3]+2*i,2)}, v4 offset:{(16*s+4*i)*128}" for i in range(2)]

        a.e("s_waitcnt lgkmcnt(0)")
        toks = {}
        for s in range(2):
            a.e("\n".join(R(s)))
            toks[s] = a.lg_tok()
        self.poll(14, f"s{sTMP}", 15)
        self.stamp(7)
        vt = {}
        for s in range(16):
            if s % 4 == 0 and s:
                a.e(f"s_add_u32 s{sTMP+2}, s{sTMP+2}, 4096")
            a.e(f"buffer_load_dwordx4 {AF(s)}, v11, {WS}, s{sTMP+2} offen offset:{(s%4)*1024}")
            vt[s] = a.vm_tok()
        for s in range(16):
            a.wait_lg(toks[s])
            a.wait_vm(vt[s])
            a.e(f"v_mfma_f32_32x32x16_bf16 {vr(ACC,16)}, {vr(BF[s%3],4)}, {AF(s)}, {'0' if s == 0 else vr(ACC,16)}")
            if s + 2 < 16:
                a.e("\n".join(R(s + 2)))
                toks[s + 2] = a.lg_tok()
        self.stamp(18)
        a.e(f"""
s_and_b32 s{sTMP+1}, s{sW}, 1
s_lshl_b32 s{sTMP+1}, s{sTMP+1}, 14
s_lshl_b32 s{sTMP+6}, s{sWH}, 13
s_add_u32 s{sTMP+1}, s{sTMP+1}, s{sTMP+6}
s_add_u32 s{sTMP+1}, s{sTMP+1}, {L_RED}
s_lshl_b32 s{sTMP+6}, s{sTMP+7}, 11
s_add_u32 s{sTMP+6}, s{sTMP+6}, s{sTMP+1}
v_add_u32 v12, s{sTMP+6}, v11
s_lshl_b32 s{sTMP+6}, s{sTMP+7}, 12
s_add_u32 s{sTMP+6}, s{sTMP+6}, s{sTMP+1}
v_add_u32 v13, s{sTMP+6}, v11
""")
        for q in range(2):
            for hf in range(2):
                a.e(f"ds_write_b128 v12, {vr(ACC+8*q+4*hf,4)} offset:{q*4096 + hf*1024}")
        a.e("s_waitcnt lgkmcnt(0)\ns_barrier")
        self.stamp(19)
        for src in range(2):
            for hf in range(2):
                a.e(f"ds_read_b128 {vr(ACC+8*src+4*hf,4)}, v13 offset:{src*2048 + hf*1024}")
        GA, SBv, G2 = 56, 64, 72
        a.e(f"""
v_lshrrev_b32 v13, 5, v1
v_lshlrev_b32 v13, 5, v13
s_lshl_b32 s{sTMP+5}, s{sTMP+5}, 6
s_add_u32 s{sTMP+5}, s{sTMP+5}, {L_TAB}
v_add_u32 v13, s{sTMP+5}, v13
ds_read_b128 {vr(GA,4)}, v13
ds_read_b128 {vr(GA+4,4)}, v13 offset:16
ds_read_b128 {vr(SBv,4)}, v13 offset:256
ds_read_b128 {vr(SBv+4,4)}, v13 offset:272
ds_read_b128 {vr(G2,4)}, v13 offset:512
ds_read_b128 {vr(G2+4,4)}, v13 offset:528
ds_read_b128 a[88:91], v13 offset:768
ds_read_b128 a[92:95], v13 offset:784
""")
        X1 = 96
        X1P = 132
        for q in range(4):
            a.e(f"v_lshlrev_b32 v{X1+2*q}, 16, v{XR+q}\nv_and_b32 v{X1+1+2*q}, 0xffff0000, v{XR+q}")
        a.e("s_waitcnt lgkmcnt(6)")
        for r in range(8):
            a.e(f"v_add_f32 v{ACC+r}, v{ACC+r}, v{ACC+8+r}")
        for r in range(8):
            a.e(f"v_fmac_f32 v{X1+r}, v{GA+r}, v{ACC+r}")
        for q in range(4):
            a.e(f"v_cvt_pk_bf16_f32 v{X1P+q}, v{X1+2*q}, v{X1+1+2*q}")
        for q in range(4):
            a.e(f"v_lshlrev_b32 v{X1+2*q}, 16, v{X1P+q}\nv_and_b32 v{X1+1+2*q}, 0xffff0000, v{X1P+q}")
        a.e(f"v_add_f32 v16, v{X1}, v{X1+1}\nv_mul_f32 v17, v{X1}, v{X1}")
        for r in range(2, 8):
            a.e(f"v_add_f32 v16, v16, v{X1+r}")
        for r in range(1, 8):
            a.e(f"v_fmac_f32 v17, v{X1+r}, v{X1+r}")
        self.group_allsum([16, 17], [20, 21], stages=("32",))
        a.e(f"""
v_and_b32 v12, 31, v1
v_lshlrev_b32 v12, 5, v12
s_and_b32 s{sTMP+1}, s{sW}, 1
s_lshl_b32 s{sTMP+1}, s{sTMP+1}, 10
s_add_u32 s{sTMP+1}, s{sTMP+1}, {L_ST}
v_add_u32 v12, s{sTMP+1}, v12
s_lshr_b32 s{sTMP+5}, s{sW}, 1
s_lshl_b32 s{sTMP+5}, s{sTMP+5}, 3
v_add_u32 v13, s{sTMP+5}, v12
ds_write_b64 v13, v[16:17]
s_waitcnt lgkmcnt(0)
s_barrier
""")
        if self.dump:
            a.e(f"s_add_u32 s{sTMP+7}, s80, {X1DBG}")
            self.nocount(f"buffer_store_dwordx4 v[{X1P}:{X1P+3}], v151, {WS}, s{sTMP+7} offen")
        self.stamp(20)
        L_j = a.label("Lp3j")
        a.e(f"s_cmp_ge_u32 s{sW}, 2\ns_cbranch_scc1 {L_j}")
        v0_, l0_ = a.vm_issued, a.lg_issued
        a.e(f"""
ds_read_b128 v[20:23], v12
ds_read_b128 v[24:27], v12 offset:16
v_mov_b32 v18, s{sTAG}
v_mov_b32 v19, s{sTAG}
v_and_b32 v13, 31, v1
v_lshlrev_b32 v13, 7, v13
s_lshl_b32 s{sTMP+5}, s88, 12
s_add_u32 s{sTMP+5}, s{sTMP+5}, {SGRAN}
s_and_b32 s{sTMP+6}, s{sJ}, 7
s_lshl_b32 s{sTMP+6}, s{sTMP+6}, 4
s_add_u32 s{sTMP+6}, s{sTMP+6}, s{sTMP+5}
v_lshrrev_b32 v2, 5, v1
v_lshl_add_u32 v2, v2, 6, v13
s_waitcnt lgkmcnt(0)
v_add_f32 v16, v20, v22
v_add_f32 v17, v21, v23
v_add_f32 v24, v24, v26
v_add_f32 v25, v25, v27
v_add_f32 v16, v16, v24
v_add_f32 v17, v17, v25
""")
        self.store_sel(f"s_mov_b32 exec_hi, 0\nbuffer_store_dwordx4 v[16:19], v13, {WS}, s{sTMP+6} offen\ns_mov_b64 exec, -1")
        L = a.label("SG")
        Lo = a.label("SGo")
        a.e(f"s_mov_b32 s{sTMP+11}, 0\n{L}:")
        self.nocount("\n".join(f"buffer_load_dwordx4 v[{20+4*q}:{23+4*q}], v2, {WS}, s{sTMP+5} offen offset:{16*q} sc1" for q in range(4)))
        a.e(f"""
s_add_u32 s{sTMP+11}, s{sTMP+11}, 1
s_cmp_gt_u32 s{sTMP+11}, 400000
s_cbranch_scc1 {Lo}
s_waitcnt vmcnt(0)
v_xor_b32 v36, s{sTAG}, v22
v_xor_b32 v37, s{sTAG}, v26
v_or_b32 v36, v36, v37
v_xor_b32 v37, s{sTAG}, v30
v_or_b32 v36, v36, v37
v_xor_b32 v37, s{sTAG}, v34
v_or_b32 v36, v36, v37
v_cmp_ne_u32 vcc, 0, v36
s_cbranch_vccnz {L}
{Lo}:
s_waitcnt vmcnt(0)
v_add_f32 v16, v20, v24
v_add_f32 v17, v21, v25
v_add_f32 v28, v28, v32
v_add_f32 v29, v29, v33
v_add_f32 v16, v16, v28
v_add_f32 v17, v17, v29
""")
        self.group_allsum([16, 17], [20, 21], stages=("32",))
        a.e(f"""
v_mul_f32 v16, {f2u(1/512):#x}, v16
v_mul_f32 v17, {f2u(1/512):#x}, v17
v_fma_f32 v17, -v16, v16, v17
v_max_f32 v17, 0, v17
v_add_f32 v17, {f2u(1e-5):#x}, v17
v_rsq_f32 v18, v17
v_mul_f32 v19, v16, v18
v_sub_f32 v19, 0, v19
ds_write_b64 v12, v[18:19] offset:2048
s_waitcnt lgkmcnt(0)
""")
        self.stamp(21)
        a.vm_issued, a.lg_issued = v0_, l0_
        a.e(f"{L_j}:")
        a.e(f"""
s_lshl_b32 s{sTMP+5}, s88, 15
s_and_b32 s{sTMP+6}, s{sJ}, 7
s_lshl_b32 s{sTMP+6}, s{sTMP+6}, 12
s_add_u32 s{sTMP+5}, s{sTMP+5}, s{sTMP+6}
s_lshr_b32 s{sTMP+6}, s{sW}, 1
s_lshl_b32 s{sTMP+6}, s{sTMP+6}, 10
s_add_u32 s{sTMP+5}, s{sTMP+5}, s{sTMP+6}
s_add_u32 s{sTMP+5}, s{sTMP+5}, {H2BUF}
s_lshl_b32 s{sTMP+6}, s{sP}, 5
s_lshl_b32 s{sTMP+7}, s{sW}, 2
s_add_u32 s{sTMP+6}, s{sTMP+6}, s{sTMP+7}
s_add_u32 s{sTMP+6}, s{sTMP+6}, {FL_H2}
v_mov_b32 v14, s{sTAG}
v_mov_b32 v15, 0
s_barrier
ds_read_b64 v[18:19], v12 offset:2048
s_waitcnt lgkmcnt(0)
""")
        for r in range(8):
            a.e(f"v_fma_f32 v{X1+r}, v{X1+r}, v18, v19")
        for q in range(4):
            a.e(f"v_cvt_pk_bf16_f32 v{32+q}, v{X1+2*q}, v{X1+1+2*q}")
        for q in range(4):
            a.e(f"v_lshlrev_b32 v{X1+2*q}, 16, v{32+q}\nv_and_b32 v{X1+1+2*q}, 0xffff0000, v{32+q}")
        for r in range(8):
            a.e(f"v_fma_f32 v{X1+r}, v{X1+r}, v{G2+r}, v{SBv+r}")
        for q in range(4):
            a.e(f"v_cvt_pk_bf16_f32 v{32+q}, v{X1+2*q}, v{X1+1+2*q}")
        self.store_sel(f"buffer_store_dwordx4 v[32:35], v11, {WS}, s{sTMP+5} offen\n" + self.flag_seq(f"s{sTMP+6}"))
        self.stamp(8)

    def d_dma_setup(self):
        a = self.a
        self.w64_lane(12)
        a.e(f"""
v_mov_b32 v152, v12
s_and_b32 s81, s{sJ}, 7
s_lshl_b32 s81, s81, 7
s_lshl_b32 s83, s{sW}, 13
s_add_u32 s81, s81, s83
s_lshl_b32 s82, s{sW}, 10
""")

    def d_dma(self, c):
        return [f"s_add_u32 m0, s82, {D_SLOT[c%4] + q*8192}\ns_add_u32 s83, s81, {(448*q + 64*c)*1024}\n"
                f"buffer_load_dwordx4 v152, s[{S_WD}:{S_WD+3}], s83 offen lds" for q in range(4)]

    def phase4(self):
        a = self.a
        self.d_dma_setup()
        a.e(f"""
s_lshl_b32 s{sTMP}, s{sRB}, 9
s_lshr_b32 s{sTMP+1}, s{sW3}, 1
s_lshl_b32 s{sTMP+1}, s{sTMP+1}, 8
s_add_u32 s{sTMP}, s{sTMP}, s{sTMP+1}
s_and_b32 s{sTMP+1}, s{sW3}, 1
s_lshl_b32 s{sTMP+1}, s{sTMP+1}, 2
s_add_u32 s{sTMP}, s{sTMP}, s{sTMP+1}
s_add_u32 s{sTMP}, s{sTMP}, {FL_H2}
v_and_b32 v14, 7, v1
v_lshlrev_b32 v14, 5, v14
v_bfe_u32 v15, v1, 3, 2
v_lshl_add_u32 v14, v15, 3, v14
s_lshl_b32 s{sTMP+2}, s{sRB}, 2
s_add_u32 s{sTMP+2}, s{sTMP+2}, s{sW3}
s_lshl_b32 s{sTMP+2}, s{sTMP+2}, 15
s_add_u32 s{sTMP+2}, s{sTMP+2}, {H2BUF}
v_lshrrev_b32 v8, 5, v1
v_bfe_u32 v9, v1, 2, 2
v_lshl_add_u32 v9, v8, 3, v9
v_mul_u32_u24 v7, 224, v9
v_bfe_u32 v9, v1, 4, 1
v_mul_u32_u24 v9, {GU_UP}, v9
v_add_u32 v7, v7, v9
v_and_b32 v9, 1, v1
v_lshl_add_u32 v7, v9, 4, v7
v_bfe_u32 v9, v1, 1, 1
v_lshl_add_u32 v7, v9, 3, v7
v_add_u32 v4, {GU_SLOT[0]}, v7
v_add_u32 v5, {GU_SLOT[1]}, v7
v_add_u32 v6, {GU_SLOT[2]}, v7
s_barrier
""")
        ACC = [16 + 16 * T for T in range(7)]
        BF = [0, 28]
        NA = 8
        PD = 6
        slot = lambda i: ar(56 + 4 * (i % NA), 4)

        def body(kp):
            def aload(i):
                s_ = 2 * i + kp
                out = []
                if i % 2 == 0 and i > 0:
                    out.append(f"s_add_u32 s{sTMP+2}, s{sTMP+2}, 4096")
                out.append(f"buffer_load_dwordx4 {slot(i)}, v11, {WS}, s{sTMP+2} offen offset:{(s_%4)*1024} sc1")
                return out

            def R(i):
                s_ = 2 * i + kp
                c, sl = s_ // 4, s_ % 4
                return [f"ds_read_b64_tr_b16 {ar(BF[i%2]+4*T+2*ii,2)}, v{4 + c%4} offset:{(16*sl+4*ii)*224 + T*32}" for T in range(7) for ii in range(2)]

            def M(i):
                return [f"v_mfma_f32_32x32x16_bf16 {vr(ACC[T],16)}, {ar(BF[i%2]+4*T,4)}, {slot(i)}, {'0' if i == 0 else vr(ACC[T],16)}" for T in range(7)]
            toks = {}
            a.e("\n".join(R(0)))
            toks[0] = a.lg_tok()
            self.poll(14, f"s{sTMP}", 15)
            self.stamp(9)
            vt = {}
            for i in range(PD):
                a.e("\n".join(aload(i)))
                vt[i] = a.vm_tok()
            gtok = {}
            mine = lambda c: (c & 1) != kp
            pend = []
            for g in self.gu_dma(1 if mine(1) else 2):
                a.e(g)
            gtok[1 if mine(1) else 2] = a.vm_tok()
            if mine(3):
                pend += [(3, g) for g in self.gu_dma(3)]
            for i in range(16):
                c = i // 2
                a.wait_lg(toks[i])
                if i % 2 == 1 and c + 1 < 8:
                    if mine(c + 1):
                        assert (c + 1) in gtok and not any(p[0] == c + 1 for p in pend)
                        a.wait_vm(gtok[c + 1])
                    a.e("s_barrier")
                    if c + 4 < 8 and mine(c + 4):
                        pend += [(c + 4, g) for g in self.gu_dma(c + 4)]
                    if c == 6:
                        pend += [(100, g) for g in self.d_dma(0)]
                r = R(i + 1) if i < 15 else []
                a.wait_vm(vt[i])
                extra = []
                if i + PD < 16:
                    extra.append(("a", i + PD))
                for _ in range(3):
                    if pend:
                        extra.append(("d", pend.pop(0)))
                m = M(i)
                seq = interleave(m, r)
                pos = [k for k, x in enumerate(seq) if x.startswith("v_mfma")]
                ins_at = {pos[min(2 * n + 1, len(pos) - 1)]: e for n, e in enumerate(extra)}
                for k, x in enumerate(seq):
                    a.e(x)
                    if k in ins_at:
                        kind, val = ins_at[k]
                        if kind == "a":
                            a.e("\n".join(aload(val)))
                            vt[val] = a.vm_tok()
                        else:
                            a.e(val[1])
                            gtok[val[0]] = a.vm_tok()
                if r:
                    toks[i + 1] = a.lg_tok()
            assert not pend
            self.stamp(17)
            keep = [0, 1, 2, 3] if kp == 0 else [4, 5, 6]
            give = [4, 5, 6] if kp == 0 else [0, 1, 2, 3]
            wbase, wstr = (L_XB, 12288) if kp == 0 else (L_XA, 16384)
            rbase, rstr = (L_XA, 16384) if kp == 0 else (L_XB, 12288)
            a.e(f"""
s_mul_i32 s{sTMP+5}, s{sW3}, {wstr}
s_add_u32 s{sTMP+5}, s{sTMP+5}, {wbase}
v_add_u32 v12, s{sTMP+5}, v11
s_mul_i32 s{sTMP+5}, s{sW3}, {rstr}
s_add_u32 s{sTMP+5}, s{sTMP+5}, {rbase}
v_add_u32 v13, s{sTMP+5}, v11
s_barrier
""")
            for n, T in enumerate(give):
                for q in range(4):
                    a.e(f"ds_write_b128 v12, {vr(ACC[T]+4*q,4)} offset:{n*4096 + q*1024}")
            K0 = -2.0 * 0.7978845608028654 * LOG2E
            K1 = K0 * 0.044715
            a.e(f"s_mov_b32 s{sTMP+4}, {f2u(K1):#x}\nv_mov_b32 v6, {f2u(K0):#x}")
            a.e(f"""
s_lshl_b32 s{sTMP+5}, s{sRB}, 2
s_add_u32 s{sTMP+5}, s{sTMP+5}, s{sW3}
s_mul_i32 s{sTMP+5}, s{sTMP+5}, {112*1024}
s_mul_i32 s{sTMP+6}, s{sJ}, {7*1024}
s_add_u32 s{sTMP+5}, s{sTMP+5}, s{sTMP+6}
s_lshl_b32 s{sTMP+6}, s{sWH}, 12
s_add_u32 s{sTMP+5}, s{sTMP+5}, s{sTMP+6}
s_add_u32 s{sTMP+5}, s{sTMP+5}, {ACT}
s_lshl_b32 s{sTMP+6}, s{sP}, 5
s_lshl_b32 s{sTMP+7}, s{sW}, 2
s_add_u32 s{sTMP+6}, s{sTMP+6}, s{sTMP+7}
s_add_u32 s{sTMP+6}, s{sTMP+6}, {FL_ACT}
v_mov_b32 v14, s{sTAG}
v_mov_b32 v15, 0
s_waitcnt lgkmcnt(0)
s_barrier
""")
            land = give + ([give[0]] if len(keep) > len(give) else [])
            rt = {}
            for n, T in enumerate(keep[:len(give)]):
                for q in range(4):
                    a.e(f"ds_read_b128 {vr(ACC[land[n]]+4*q,4)}, v13 offset:{n*4096 + q*1024}")
                rt[n] = a.lg_tok()
            PKo = 128
            outs = []
            for n, T in enumerate(keep):
                g = ACC[T]
                if n >= len(give):
                    for q in range(4):
                        a.e(f"ds_read_b128 {vr(ACC[land[n]]+4*q,4)}, v13 offset:{n*4096 + q*1024}")
                    rt[n] = a.lg_tok()
                a.wait_lg(rt[n])
                p = ACC[land[n]]
                for r in range(16):
                    a.e(f"v_add_f32 v{g+r}, v{g+r}, v{p+r}")
                t = p
                for r in range(8):
                    a.e(f"v_mul_f32 v{t+r}, v{g+r}, v{g+r}")
                for r in range(8):
                    a.e(f"v_fma_f32 v{t+r}, v{t+r}, s{sTMP+4}, v6")
                for r in range(8):
                    a.e(f"v_mul_f32 v{t+r}, v{t+r}, v{g+r}")
                for r in range(8):
                    a.e(f"v_exp_f32 v{t+r}, v{t+r}")
                for r in range(8):
                    a.e(f"v_mul_f32 v{g+r}, v{g+r}, v{g+8+r}")
                for r in range(8):
                    a.e(f"v_add_f32 v{t+r}, 1.0, v{t+r}")
                for r in range(8):
                    a.e(f"v_rcp_f32 v{t+r}, v{t+r}")
                for r in range(8):
                    a.e(f"v_mul_f32 v{g+r}, v{g+r}, v{t+r}")
                for q in range(4):
                    a.e(f"v_cvt_pk_bf16_f32 v{g+8+q}, v{g+2*q}, v{g+2*q+1}")
                outs.append(g + 8)
            st = "\n".join(f"buffer_store_dwordx4 v[{o}:{o+3}], v11, {WS}, s{sTMP+5} offen offset:{1024*n}" for n, o in enumerate(outs))
            self.store_sel(st + "\n" + self.flag_seq(f"s{sTMP+6}"))

        L3 = a.label("Lgu3")
        Lj = a.label("Lguj")
        a.e(f"s_cmp_ge_u32 s{sW}, 4\ns_cbranch_scc1 {L3}")
        v0_, l0_ = a.vm_issued, a.lg_issued
        body(0)
        a.e(f"s_branch {Lj}\n{L3}:")
        a.vm_issued, a.lg_issued = v0_, l0_
        body(1)
        a.e(f"{Lj}:")
        self.stamp(10)

    def phase5(self):
        a = self.a
        a.e(f"""
s_add_u32 s{sTMP}, s89, {FL_ACT}
s_lshr_b32 s{sTMP+5}, s{sW}, 1
s_mul_i32 s{sTMP+2}, s88, {112*1024}
s_mul_i32 s{sTMP+1}, s{sTMP+5}, {28*1024}
s_add_u32 s{sTMP+2}, s{sTMP+2}, s{sTMP+1}
s_add_u32 s{sTMP+2}, s{sTMP+2}, {ACT}
s_lshl_b32 s{sTMP+1}, s{sTMP+5}, 13
v_add_u32 v154, s{sTMP+1}, v154
v_add_u32 v155, s{sTMP+1}, v155
""")
        for si in range(4):
            a.e(f"v_add_u32 v{140+2*si}, {D_SLOT[si]}, v154\nv_add_u32 v{141+2*si}, {D_SLOT[si]}, v155")
        ACC = 16
        BF = [48, 56]
        NA = 20
        PD = 16
        AF = lambda s: ar(4 * (s % NA), 4)

        def R(s):
            c, sl = s // 4, s % 4
            return [f"ds_read_b64_tr_b16 {vr(BF[s%2]+4*t+2*i,2)}, v{140+2*(c%4)+t} offset:{(16*sl+4*i)*128}" for t in range(2) for i in range(2)]

        def M(s):
            return [f"v_mfma_f32_32x32x16_bf16 {vr(ACC+16*t,16)}, {vr(BF[s%2]+4*t,4)}, {AF(s)}, {'0' if s == 0 else vr(ACC+16*t,16)}" for t in range(2)]

        def aload(s):
            out = []
            if s % 4 == 0 and s > 0:
                out.append(f"s_add_u32 s{sTMP+2}, s{sTMP+2}, 4096")
            out.append(f"buffer_load_dwordx4 {AF(s)}, v11, {WS}, s{sTMP+2} offen offset:{(s%4)*1024} sc1")
            return out

        a.e("s_barrier")
        a.e("\n".join(R(0)))
        toks = {0: a.lg_tok()}
        self.poll(153, f"s{sTMP}", 15)
        self.stamp(11)
        vt = {}
        dtok = {}
        for s in range(PD):
            a.e("\n".join(aload(s)))
            vt[s] = a.vm_tok()
            if s in (3, 7, 11):
                a.e("\n".join(self.d_dma(1 + s // 4)))
                dtok[1 + s // 4] = a.vm_tok()
        pend = []
        for s in range(28):
            c, sl = s // 4, s % 4
            a.wait_lg(toks[s])
            if sl == 3 and c + 1 < 7:
                if c + 1 >= 1:
                    a.wait_vm(dtok[c + 1])
                a.e("s_barrier")
                if c + 4 < 7:
                    pend += [(c + 4, g) for g in self.d_dma(c + 4)]
            r = R(s + 1) if s < 27 else []
            a.wait_vm(vt[s])
            a.e("\n".join(interleave(M(s), r)))
            if r:
                toks[s + 1] = a.lg_tok()
            if s + PD < 28:
                a.e("\n".join(aload(s + PD)))
                vt[s + PD] = a.vm_tok()
            if pend:
                cc, g = pend.pop(0)
                a.e(g)
                dtok[cc] = a.vm_tok()
        self.stamp(25)
        a.e("s_barrier")
        AO = 48
        self.reduce_scatter4(ACC, L_RED2, AO)
        X1P = 132
        for q in range(4):
            a.e(f"v_lshlrev_b32 v{64+2*q}, 16, v{X1P+q}\nv_and_b32 v{65+2*q}, 0xffff0000, v{X1P+q}")
        for r in range(8):
            a.e(f"v_accvgpr_read_b32 v{56+r}, a{88+r}")
        for r in range(8):
            a.e(f"v_fmac_f32 v{64+r}, v{56+r}, v{AO+r}")
        for q in range(4):
            a.e(f"v_cvt_pk_bf16_f32 v{32+q}, v{64+2*q}, v{65+2*q}")
        a.e(f"buffer_store_dwordx4 v[32:35], v151, s[{S_OUT}:{S_OUT+3}], s80 offen")
        self.stamp(12)

    def finish(self):
        a = self.a
        Lx = a.label("Lfin")
        a.e(f"s_cmp_lg_u32 s2, 0\ns_cbranch_scc1 {Lx}\ns_cmp_lg_u32 s{sW}, 4\ns_cbranch_scc1 {Lx}")
        for q in range(4):
            a.e(f"v_lshlrev_b32 v12, 3, v1\nv_add_u32 v12, {4 + 512*q}, v12\ns_mov_b32 s{sTMP}, {XID}")
            self.poll(12, f"s{sTMP}", 13)
        a.e(f"v_mov_b32 v14, s{sTAG}\nv_mov_b32 v15, 0\ns_mov_b64 exec, 1")
        self.nocount(f"buffer_store_dword v14, v15, {WS}, 0 offen offset:{EPOCH} sc1")
        a.e(f"{Lx}:")
        a.e("L_END:\ns_endpgm\nL_CODE_END:")

    def build(self):
        ph = [self.phase0, self.phase1, self.phase2, self.phase3, self.phase4, self.phase5]
        for i, p in enumerate(ph):
            if i <= self.stop_after:
                p()
        self.finish()
        body = self.a.finalize()
        hdr = open("adaLN_cond__sliding_block__geglu_ffn__prompt.s.ref").read().split("; Override launch")[0]
        src = hdr + f"; @launch grid=(256,1,1) block=(512,1,1) lds={LDS_BYTES}\n" + HEADER.format(name=NAME) + body + \
            FOOTER.format(name=NAME, nvgpr=256, nsgpr=102, accum=160)
        return src


if __name__ == "__main__":
    import argparse
    ap = argparse.ArgumentParser()
    ap.add_argument("-o", default="k.s")
    ap.add_argument("--stamps", action="store_true")
    ap.add_argument("--dump", action="store_true")
    ap.add_argument("--stop", type=int, default=99)
    args = ap.parse_args()
    g = Gen(stop_after=args.stop, stamps=args.stamps, dump=args.dump)
    src = g.build()
    open(args.o, "w").write(src)
    print("wrote", args.o, len(src), "bytes; nops", g.a.nops)
```

```python
import sys, os, struct
sys.path.insert(0, "dev")
from asmlib import *

NAME = "adaLN_cond__sliding_block__geglu_ffn__prompt_kernel"
EXP = os.environ.get("EXP", "").split(",")

EPOCH = 0x0
XID = 0x1000
MODA = 0x2000
MODB = 0xA000
MODG = 0x12000
FL_KV = 0x20000
FL_O = 0x24000
FL_H2 = 0x26000
FL_H1 = 0x22000
FL_ACT = 0x28000
STAMP = 0x2800000
KVX = 0x100000
OBUF = 0x500000
H2BUF = 0x700000
SGRAN = 0x900000
ACT = 0xA00000
H1BUF = 0x1200000
DBG0 = 0x2000000
X1DBG = 0x2400000

S_X, S_WQKV, S_WO, S_WG, S_WU, S_WD, S_C, S_WM, S_OUT, S_WS = 8, 12, 16, 20, 24, 28, 32, 36, 40, 44
sX, sT, sRB, sJ, sW, sTAG, sXCC, sPURE, sP = 48, 49, 50, 51, 52, 53, 54, 55, 56
sW3, sWH, sIMIN = 57, 58, 59
sTMP = 60
S_SEL = 72
sMASK = 60

L_WQKV = 0
L_WO = 96 * 1024
L_K = 0
L_V = 24 * 1024
L_QX = 48 * 1024
L_SCR = 52 * 1024
L_RED = 0
L_TAB = 32 * 1024
L_ST = 33 * 1024
GU_SLOT = [57344, 98304, 127104, 0]
GU_UP = 14464
D_SLOT = [127104, 0, 32768, 65536]
L_RED2 = 0
L_GATE = 32760
L_XA = 0
L_XB = 65536
LDS_BYTES = 160 * 1024

PSLEEP = int(os.environ.get("PSLEEP", "2"))
MSLEEP = int(os.environ.get("MSLEEP", "6"))
NTG = " nt" if "ntg" in EXP else ""
NTD = " nt" if "ntd" in EXP else ""
LOG2E = 1.4426950408889634
QSCALE = 0.25 * LOG2E
NEG_BIG = 0xf149f2ca


def f2u(x):
    return struct.unpack("<I", struct.pack("<f", x))[0]


WS = f"s[{S_WS}:{S_WS+3}]"


class Gen:
    def __init__(self, stop_after=99, stamps=False, dump=False):
        self.a = Asm()
        self.stop_after = stop_after
        self.stamps = stamps
        self.dump = dump

    def nocount(self, text):
        a = self.a
        v, l = a.vm_issued, a.lg_issued
        a.e(text)
        a.vm_issued, a.lg_issued = v, l

    def stamp(self, idx):
        if not self.stamps:
            return
        a = self.a
        idx += 1
        v_, l_ = a.vm_issued, a.lg_issued
        a.e(f"s_memrealtime s[96:97]\ns_memtime s[94:95]\ns_waitcnt lgkmcnt(0)")
        a.e(f"v_mov_b32 v159, 0\ns_lshl_b32 s98, s2, 11\ns_lshl_b32 s99, s{sW}, 8\ns_add_u32 s98, s98, s99\ns_add_u32 s98, s98, {STAMP}")
        if idx == 2:
            a.e(f"v_mov_b32 v158, s100\nbuffer_store_dword v158, v159, {WS}, s98 offen")
        a.e(f"v_mov_b32 v158, s96\nbuffer_store_dword v158, v159, {WS}, s98 offen offset:{idx*4}")
        a.e(f"v_mov_b32 v158, s94\nbuffer_store_dword v158, v159, {WS}, s98 offen offset:{128+idx*4}")
        a.vm_issued, a.lg_issued = v_, l_

    def poll(self, vaddr, soff, vdst, cnt=sTMP + 11):
        a = self.a
        L = a.label("P")
        Lo = a.label("Po")
        a.e(f"s_mov_b32 s{cnt}, 0\n{L}:")
        self.nocount(f"buffer_load_dword v{vdst}, v{vaddr}, {WS}, {soff} offen sc1")
        a.e(f"""
s_add_u32 s{cnt}, s{cnt}, 1
s_cmp_gt_u32 s{cnt}, 400000
s_cbranch_scc1 {Lo}
s_waitcnt vmcnt(0)
v_cmp_ne_u32 vcc, s{sTAG}, v{vdst}
s_cbranch_vccz {Lo}
s_sleep {PSLEEP}
s_branch {L}
{Lo}:
s_waitcnt vmcnt(0)
""")

    def store_sel(self, text):
        a = self.a
        Ls = a.label("Ssl")
        Le = a.label("Sen")
        lines = [l for l in text.strip().split("\n") if l.strip()]
        a.e(f"s_cmp_eq_u32 s{sPURE}, 0\ns_cbranch_scc1 {Ls}")
        a.e("\n".join(lines))
        a.e(f"s_branch {Le}\n{Ls}:")
        self.nocount("\n".join((l + " sc1") if l.strip().startswith("buffer_store") else l for l in lines))
        a.e(f"{Le}:")

    def flag_seq(self, soff, vt=14):
        return f"s_waitcnt vmcnt(0)\ns_mov_b64 exec, 1\nbuffer_store_dword v{vt}, v{vt+1}, {WS}, {soff} offen\ns_mov_b64 exec, -1"

    def purity(self, vt=30):
        a = self.a
        a.e(f"""
v_and_b32 v{vt}, 31, v1
v_lshlrev_b32 v{vt}, 3, v{vt}
s_lshl_b32 s{sTMP+10}, s{sX}, 8
s_add_u32 s{sTMP+10}, s{sTMP+10}, {XID}
buffer_load_dwordx2 v[{vt+2}:{vt+3}], v{vt}, {WS}, s{sTMP+10} offen sc1
s_waitcnt vmcnt(0)
v_xor_b32 v{vt}, s{sTAG}, v{vt+3}
v_xor_b32 v{vt+1}, s{sXCC}, v{vt+2}
v_or_b32 v{vt}, v{vt}, v{vt+1}
v_cmp_ne_u32 vcc, 0, v{vt}
s_cmp_eq_u64 vcc, 0
s_cselect_b32 s{sPURE}, 1, 0
""")

    def touch(self, srd, soff_base, nlines_per_wg, widx, nw, vdst, vaddr):
        a = self.a
        if "notouch" in EXP:
            return
        n = nlines_per_wg // 64
        per = (n + nw - 1) // nw
        a.e(f"s_lshl_b32 s{sTMP+9}, s{widx}, 13\ns_add_u32 s{sTMP+9}, s{sTMP+9}, s{soff_base}")
        for i in range(per):
            a.e(f"buffer_load_dword v{vdst}, v{vaddr}, s[{srd}:{srd+3}], s{sTMP+9} offen")
            if i < per - 1:
                a.e(f"s_add_u32 s{sTMP+9}, s{sTMP+9}, {nw*8192}")

    def silu_bf16(self, src_pk, n_pk, dst, tmp):
        a = self.a
        n = 2 * n_pk
        for d in range(n_pk):
            a.e(f"v_lshlrev_b32 v{dst+2*d}, 16, v{src_pk+d}\nv_and_b32 v{dst+2*d+1}, 0xffff0000, v{src_pk+d}")
        for i in range(n):
            a.e(f"v_mul_f32 v{tmp+i}, {f2u(-LOG2E):#x}, v{dst+i}")
        for i in range(n):
            a.e(f"v_exp_f32 v{tmp+i}, v{tmp+i}")
        for i in range(n):
            a.e(f"v_add_f32 v{tmp+i}, 1.0, v{tmp+i}")
        for i in range(n):
            a.e(f"v_rcp_f32 v{tmp+i}, v{tmp+i}")
        for i in range(n):
            a.e(f"v_mul_f32 v{dst+i}, v{dst+i}, v{tmp+i}")
        for d in range(n_pk):
            a.e(f"v_cvt_pk_bf16_f32 v{tmp+d}, v{dst+2*d}, v{dst+2*d+1}")
        for d in range(n_pk):
            a.e(f"v_lshlrev_b32 v{dst+2*d}, 16, v{tmp+d}\nv_and_b32 v{dst+2*d+1}, 0xffff0000, v{tmp+d}")

    def wave_allsum(self, regs, tmp):
        a = self.a
        for r in (1, 2, 4, 8):
            for x in regs:
                a.e(f"v_add_f32_dpp v{x}, v{x}, v{x} row_ror:{r} row_mask:0xf bank_mask:0xf")
        self.group_allsum(regs, tmp)

    def group_allsum(self, regs, tmp, op="v_add_f32", stages=("16", "32")):
        a = self.a
        for sw in stages:
            for x, t in zip(regs, tmp):
                a.e(f"v_mov_b32 v{t}, v{x}")
            for x, t in zip(regs, tmp):
                a.e(f"v_permlane{sw}_swap_b32 v{x}, v{t}")
            for x, t in zip(regs, tmp):
                a.e(f"{op} v{x}, v{x}, v{t}")

    def granule(self, lo, hi, s_one, dst):
        self.a.e(f"""
v_cvt_pk_bf16_f32 v{dst}, v{lo}, v{hi}
v_lshlrev_b32 v{lo}, 16, v{dst}
v_and_b32 v{hi}, 0xffff0000, v{dst}
v_add_f32 v{lo}, s{s_one}, v{lo}
v_add_f32 v{hi}, s{s_one}, v{hi}
v_cvt_pk_bf16_f32 v{dst}, v{lo}, v{hi}
v_mov_b32 v{dst+1}, s{sTAG}
""")

    def reduce8_pairs(self, AC):
        self.a.e(f"""
v_permlane16_swap_b32 v{AC}, v{AC+2}
v_permlane16_swap_b32 v{AC+1}, v{AC+3}
v_permlane16_swap_b32 v{AC+4}, v{AC+6}
v_permlane16_swap_b32 v{AC+5}, v{AC+7}
v_add_f32 v{AC}, v{AC}, v{AC+2}
v_add_f32 v{AC+1}, v{AC+1}, v{AC+3}
v_add_f32 v{AC+4}, v{AC+4}, v{AC+6}
v_add_f32 v{AC+5}, v{AC+5}, v{AC+7}
v_permlane32_swap_b32 v{AC}, v{AC+4}
v_permlane32_swap_b32 v{AC+1}, v{AC+5}
v_add_f32 v{AC}, v{AC}, v{AC+4}
v_add_f32 v{AC+1}, v{AC+1}, v{AC+5}
""")

    def phase0(self):
        a = self.a
        a.e(f"""
s_cmp_ge_u32 s2, 256
s_cbranch_scc1 L_END
{"s_memrealtime s[100:101]" if self.stamps else ""}
s_load_dwordx2 s[{S_WS}:{S_WS+1}], s[0:1], 88
s_load_dwordx2 s[{S_WM}:{S_WM+1}], s[0:1], 64
s_load_dwordx2 s[{S_C}:{S_C+1}], s[0:1], 56
s_load_dwordx2 s[{S_X}:{S_X+1}], s[0:1], 0
s_load_dwordx2 s[{S_WQKV}:{S_WQKV+1}], s[0:1], 8
s_load_dwordx2 s[{S_WO}:{S_WO+1}], s[0:1], 16
s_load_dwordx2 s[{S_WG}:{S_WG+1}], s[0:1], 32
s_load_dwordx2 s[{S_WU}:{S_WU+1}], s[0:1], 40
s_load_dwordx2 s[{S_WD}:{S_WD+1}], s[0:1], 48
s_load_dwordx2 s[{S_OUT}:{S_OUT+1}], s[0:1], 72
s_getpc_b64 s[{sTMP}:{sTMP+1}]
L_PC:
s_and_b32 s{sX}, s2, 7
s_lshr_b32 s{sT}, s2, 3
s_lshl_b32 s{sTMP+2}, s{sT}, 11
v_lshlrev_b32 v2, 2, v0
v_add_u32 v2, s{sTMP+2}, v2
v_min_u32 v2, L_CODE_END-L_PC-4, v2
global_load_dword v4, v2, s[{sTMP}:{sTMP+1}]
s_getreg_b32 s{sXCC}, hwreg(HW_REG_XCC_ID)
s_and_b32 s{sXCC}, s{sXCC}, 15
s_lshr_b32 s{sTMP}, s{sT}, 4
s_lshl_b32 s{sRB}, s{sX}, 1
s_add_u32 s{sRB}, s{sRB}, s{sTMP}
s_and_b32 s{sJ}, s{sT}, 15
s_lshl_b32 s{sP}, s{sX}, 5
s_add_u32 s{sP}, s{sP}, s{sT}
v_and_b32 v1, 63, v0
v_lshrrev_b32 v2, 6, v0
v_lshrrev_b32 v3, 4, v1
v_readfirstlane_b32 s{sW}, v2
v_lshlrev_b32 v11, 4, v1
v_lshlrev_b32 v10, 7, v1
s_and_b32 s{sW3}, s{sW}, 3
s_lshr_b32 s{sWH}, s{sW}, 2
s_mov_b32 s{sPURE}, 0
""")
        sizes = {S_X: 2097152, S_WQKV: 1572864, S_WO: 524288, S_WG: 1835008, S_WU: 1835008, S_WD: 1835008, S_C: 1024,
                 S_WM: 3145728, S_OUT: 2097152, S_WS: 0x10000000}
        for s, sz in sizes.items():
            a.e(f"s_mov_b32 s{s+2}, {sz}\ns_mov_b32 s{s+3}, 0x20000")
        a.e("s_waitcnt lgkmcnt(0)")
        a.e(f"s_load_dword s{sTAG}, s[{S_WS}:{S_WS+1}], {EPOCH}")
        L_45 = a.label("Lw45")
        L_67 = a.label("Lw67")
        L_j = a.label("Lj0")
        tagfix = f"s_waitcnt lgkmcnt(0)\ns_mul_i32 s{sTAG}, s{sTAG}, 1664525\ns_add_u32 s{sTAG}, s{sTAG}, 1013904223"
        a.e(f"s_cmp_ge_u32 s{sW}, 6\ns_cbranch_scc1 {L_67}\ns_cmp_ge_u32 s{sW}, 4\ns_cbranch_scc1 {L_45}")
        v0_, l0_ = a.vm_issued, a.lg_issued
        XP, XF = 16, 32
        ST = [64, 65, 66, 67]
        STT = [68, 69, 70, 71]
        a.e(f"""
s_lshl_b32 s{sTMP}, s{sRB}, 17
s_lshl_b32 s{sTMP+1}, s{sJ}, 13
s_add_u32 s{sTMP}, s{sTMP}, s{sTMP+1}
s_lshl_b32 s{sTMP+1}, s{sW}, 11
s_add_u32 s{sTMP}, s{sTMP}, s{sTMP+1}
s_sub_u32 s{sTMP+1}, s{sTMP}, {256*1024}
s_cmp_lt_u32 s{sRB}, 2
s_cselect_b32 s{sTMP+1}, s{sTMP}, s{sTMP+1}
""")
        for i in range(4):
            a.e(f"buffer_load_dwordx4 {vr(XP+4*i,4)}, v11, s[{S_X}:{S_X+3}], s{sTMP + (i>>1)} offen offset:{(i&1)*1024}")
        if "noc3" not in EXP:
            Lc0, Lc1, Lce, Lc3 = a.label("Lc30"), a.label("Lc31"), a.label("Lc3e"), a.label("Lc33")
            a.e(f"""
v_lshrrev_b32 v5, 2, v1
v_and_b32 v6, 3, v1
s_cmp_eq_u32 s{sW}, 0
s_cbranch_scc1 {Lc0}
s_cmp_eq_u32 s{sW}, 1
s_cbranch_scc1 {Lc1}
s_cmp_lg_u32 s{sW}, 2
s_cbranch_scc1 {Lc3}
v_and_b32 v5, 15, v1
v_lshlrev_b32 v5, 10, v5
s_lshl_b32 s{sTMP+2}, s{sT}, 14
""")
            self.nocount(f"buffer_load_dword v6, v5, s[{S_WO}:{S_WO+3}], s{sTMP+2} offen offset:384")
            a.e(f"""
s_branch {Lce}
{Lc0}:
v_mul_u32_u24 v5, 6144, v5
v_and_b32 v6, 1, v6
v_lshl_add_u32 v5, v6, 10, v5
s_mul_i32 s{sTMP+2}, s{sT}, {16*6144}
""")
            self.nocount(f"buffer_load_dword v6, v5, s[{S_WM}:{S_WM+3}], s{sTMP+2} offen offset:384")
            a.e(f"""
s_branch {Lce}
{Lc1}:
v_mul_u32_u24 v5, 3072, v5
v_lshl_add_u32 v5, v6, 10, v5
s_mul_i32 s{sTMP+2}, s{sT}, {16*3072}
""")
            self.nocount(f"buffer_load_dword v6, v5, s[{S_WQKV}:{S_WQKV+3}], s{sTMP+2} offen offset:384")
            a.e(f"s_branch {Lce}\n{Lc3}:")
            if "valugemv" in EXP and "nomall" not in EXP:
                a.e(f"s_lshl_b32 s{sTMP+2}, s{sP}, 13\n"
                    f"s_cmp_lt_u32 s{sTMP+2}, {84*8192}\ns_cselect_b32 s{sTMP+3}, s{sTMP+2}, 0x7fff0000\n"
                    f"s_sub_u32 s{sTMP+4}, s{sTMP+2}, {84*8192}\ns_cmp_lt_u32 s{sTMP+4}, {84*8192}\ns_cselect_b32 s{sTMP+4}, s{sTMP+4}, 0x7fff0000\n"
                    f"s_sub_u32 s{sTMP+5}, s{sTMP+2}, {168*8192}\ns_min_u32 s{sTMP+5}, s{sTMP+5}, 0x7fff0000")
                self.nocount(f"buffer_load_dword v6, v10, s[{S_WG}:{S_WG+3}], s{sTMP+3} offen")
                self.nocount(f"buffer_load_dword v6, v10, s[{S_WU}:{S_WU+3}], s{sTMP+4} offen")
                self.nocount(f"buffer_load_dword v6, v10, s[{S_WO}:{S_WO+3}], s{sTMP+5} offen")
            a.e(f"{Lce}:")
        if "wmtouch" in EXP:
            a.e(f"""
v_mul_u32_u24 v5, 6144, v3
v_and_b32 v6, 15, v1
v_lshl_add_u32 v5, v6, 7, v5
s_lshl_b32 s{sTMP}, s{sT}, 2
s_add_u32 s{sTMP}, s{sTMP}, s{sW}
s_mul_i32 s{sTMP}, s{sTMP}, {4*6144}
buffer_load_dword v6, v5, s[{S_WM}:{S_WM+3}], s{sTMP} offen
s_waitcnt vmcnt(1)
""")
        else:
            a.e("s_waitcnt vmcnt(0)")
        a.e(tagfix)
        for i in range(4):
            for d in range(4):
                a.e(f"v_lshlrev_b32 v{XF+8*i+2*d}, 16, v{XP+4*i+d}\nv_and_b32 v{XF+1+8*i+2*d}, 0xffff0000, v{XP+4*i+d}")
        for i in range(4):
            b = XF + 8 * i
            a.e(f"v_add_f32 v{ST[i]}, v{b}, v{b+1}")
            for e in range(2, 8):
                a.e(f"v_add_f32 v{ST[i]}, v{ST[i]}, v{b+e}")
        self.wave_allsum(ST, STT)
        for i in range(4):
            a.e(f"v_mul_f32 v{ST[i]}, {f2u(-1/512):#x}, v{ST[i]}")
        for i in range(4):
            for e in range(8):
                a.e(f"v_add_f32 v{XF+8*i+e}, v{ST[i]}, v{XF+8*i+e}")
        for i in range(4):
            b = XF + 8 * i
            a.e(f"v_mul_f32 v{ST[i]}, v{b}, v{b}")
            for e in range(1, 8):
                a.e(f"v_fmac_f32 v{ST[i]}, v{b+e}, v{b+e}")
        self.wave_allsum(ST, STT)
        for i in range(4):
            a.e(f"v_mul_f32 v{ST[i]}, {f2u(1/512):#x}, v{ST[i]}")
        for i in range(4):
            a.e(f"v_add_f32 v{ST[i]}, {f2u(1e-5):#x}, v{ST[i]}")
        for i in range(4):
            a.e(f"v_rsq_f32 v{ST[i]}, v{ST[i]}")
        for i in range(4):
            for e in range(8):
                a.e(f"v_mul_f32 v{XF+8*i+e}, v{ST[i]}, v{XF+8*i+e}")
        for i in range(4):
            for d in range(4):
                a.e(f"v_cvt_pk_bf16_f32 v{XP+4*i+d}, v{XF+8*i+2*d}, v{XF+1+8*i+2*d}")
        for i in range(4):
            for d in range(4):
                a.e(f"v_lshlrev_b32 v{XF+8*i+2*d}, 16, v{XP+4*i+d}\nv_and_b32 v{XF+1+8*i+2*d}, 0xffff0000, v{XP+4*i+d}")
        a.e(f"""
v_lshrrev_b32 v12, 1, v1
v_lshlrev_b32 v12, 10, v12
v_and_b32 v6, 1, v1
v_lshl_add_u32 v12, v6, 9, v12
s_lshl_b32 s{sTMP+4}, s{sX}, 19
s_and_b32 s{sTMP+3}, s{sRB}, 1
s_lshl_b32 s{sTMP+3}, s{sTMP+3}, 17
s_add_u32 s{sTMP+4}, s{sTMP+4}, s{sTMP+3}
s_lshr_b32 s{sTMP+3}, s{sJ}, 2
s_lshl_b32 s{sTMP+3}, s{sTMP+3}, 15
s_add_u32 s{sTMP+4}, s{sTMP+4}, s{sTMP+3}
s_and_b32 s{sTMP+3}, s{sJ}, 3
s_lshl_b32 s{sTMP+3}, s{sTMP+3}, 7
s_add_u32 s{sTMP+4}, s{sTMP+4}, s{sTMP+3}
s_lshl_b32 s{sTMP+3}, s{sW}, 5
s_add_u32 s{sTMP+4}, s{sTMP+4}, s{sTMP+3}
s_add_u32 s{sTMP+4}, s{sTMP+4}, {H1BUF}
s_add_u32 s{sTMP+8}, s{sTMP+4}, {2*131072}
v_lshlrev_b32 v13, 5, v1
v_lshlrev_b32 v7, 6, v1
v_add_u32 v7, 60, v7
v_and_b32 v8, 31, v1
v_lshlrev_b32 v8, 3, v8
s_lshl_b32 s{sTMP}, s{sX}, 12
s_add_u32 s{sTMP+1}, s{sTMP}, {MODB}
s_add_u32 s{sTMP}, s{sTMP}, {MODA}
s_lshl_b32 s{sTMP+2}, s{sX}, 8
s_add_u32 s{sTMP+2}, s{sTMP+2}, {XID}
s_lshl_b32 s{sTMP+5}, s{sP}, 4
s_lshl_b32 s{sTMP+6}, s{sW}, 2
s_add_u32 s{sTMP+5}, s{sTMP+5}, s{sTMP+6}
s_add_u32 s{sTMP+5}, s{sTMP+5}, {FL_H1}
s_mov_b32 s{sTMP+11}, 0
""")
        self.stamp(0)
        L = a.label("G")
        L2 = a.label("G2")
        Lo = a.label("Go")
        G0 = 96
        a.e(f"{L}:")
        self.nocount(f"buffer_load_dword v{G0}, v7, {WS}, s{sTMP} offen sc1")
        a.e(f"""
s_add_u32 s{sTMP+11}, s{sTMP+11}, 1
s_cmp_gt_u32 s{sTMP+11}, 400000
s_cbranch_scc1 {L2}
s_waitcnt vmcnt(0)
v_cmp_ne_u32 vcc, s{sTAG}, v{G0}
s_cbranch_vccz {L2}
s_add_u32 s{sTMP+10}, s{sTMP+11}, 1
s_and_b32 s{sTMP+10}, s{sTMP+10}, 15
s_cmp_lt_u32 s{sTMP+10}, 2
s_cselect_b32 s{sTMP+10}, s{sTMP+1}, s{sTMP}
s_cselect_b32 s{sTMP+1}, s{sTMP}, s{sTMP+1}
s_mov_b32 s{sTMP}, s{sTMP+10}
s_sleep {MSLEEP}
s_branch {L}
{L2}:
""")
        self.nocount(f"""
buffer_load_dwordx4 v[{G0}:{G0+3}], v13, {WS}, s{sTMP} offen sc1
buffer_load_dwordx4 v[{G0+4}:{G0+7}], v13, {WS}, s{sTMP} offen offset:16 sc1
buffer_load_dwordx4 v[{G0+8}:{G0+11}], v13, {WS}, s{sTMP} offen offset:2048 sc1
buffer_load_dwordx4 v[{G0+12}:{G0+15}], v13, {WS}, s{sTMP} offen offset:2064 sc1
buffer_load_dwordx2 v[{G0+16}:{G0+17}], v8, {WS}, s{sTMP+2} offen sc1
""")
        a.e(f"""
s_cmp_gt_u32 s{sTMP+11}, 400000
s_cbranch_scc1 {Lo}
s_waitcnt vmcnt(0)
v_xor_b32 v116, s{sTAG}, v{G0+1}
""")
        for q in range(3, 16, 2):
            a.e(f"v_xor_b32 v117, s{sTAG}, v{G0+q}\nv_or_b32 v116, v116, v117")
        a.e(f"v_cmp_ne_u32 vcc, 0, v116\ns_cbranch_vccnz {L}\n{Lo}:\ns_waitcnt vmcnt(0)")
        a.e(f"""
v_xor_b32 v116, s{sTAG}, v{G0+17}
v_xor_b32 v117, s{sXCC}, v{G0+16}
v_or_b32 v116, v116, v117
v_cmp_ne_u32 vcc, 0, v116
s_cmp_eq_u64 vcc, 0
s_cselect_b32 s{sPURE}, 1, 0
""")
        SA, GG = 72, 80
        for q in range(4):
            a.e(f"v_lshlrev_b32 v{SA+2*q}, 16, v{G0+2*q}\nv_and_b32 v{SA+1+2*q}, 0xffff0000, v{G0+2*q}")
            a.e(f"v_lshlrev_b32 v{GG+2*q}, 16, v{G0+8+2*q}\nv_and_b32 v{GG+1+2*q}, 0xffff0000, v{G0+8+2*q}")
        for i in range(4):
            for d in range(4):
                b = XF + 8 * i + 2 * d
                a.e(f"v_pk_fma_f32 v[{b}:{b+1}], v[{b}:{b+1}], v[{GG+2*d}:{GG+1+2*d}], v[{SA+2*d}:{SA+1+2*d}]")
            for d in range(4):
                a.e(f"v_cvt_pk_bf16_f32 v{XP+4*i+d}, v{XF+8*i+2*d}, v{XF+1+8*i+2*d}")
        a.e(f"v_mov_b32 v14, s{sTAG}\nv_mov_b32 v15, 0")
        st = "\n".join(f"buffer_store_dwordx4 v[{XP+4*i}:{XP+3+4*i}], v12, {WS}, s{sTMP+8 if i < 2 else sTMP+4} offen offset:{16*(i&1)}" for i in range(4))
        self.store_sel(st + "\n" + self.flag_seq(f"s{sTMP+5}"))
        a.e(f"s_branch {L_j}")
        a.vm_issued, a.lg_issued = v0_, l0_
        if "valugemv" in EXP:
            self.gemv_valu(a, L_45, L_j, tagfix, v0_, l0_)
        else:
            self.gemv_mfma(a, L_45, L_j, tagfix, v0_, l0_)
        a.e(f"{L_67}:")
        a.e(f"""
v_lshrrev_b32 v12, 2, v1
v_mul_u32_u24 v12, 3072, v12
v_and_b32 v13, 3, v1
v_lshl_add_u32 v12, v13, 4, v12
{tagfix}
v_mov_b32 v14, s{sXCC}
v_mov_b32 v15, s{sTAG}
s_lshl_b32 s{sTMP}, s{sP}, 3
s_add_u32 s{sTMP}, s{sTMP}, {XID}
v_mov_b32 v13, 0
s_mov_b64 exec, 1
buffer_store_dwordx2 v[14:15], v13, {WS}, s{sTMP} offen sc1
s_mov_b64 exec, -1
s_waitcnt vmcnt(0)
s_and_b32 s{sTMP+4}, s{sW}, 1
s_mul_i32 s{sTMP}, s{sTMP+4}, {16*3072}
s_lshl_b32 s{sTMP+1}, s{sJ}, 6
s_add_u32 s{sTMP}, s{sTMP}, s{sTMP+1}
s_lshl_b32 s{sTMP+2}, s{sTMP+4}, 10
""")
        Lgt = a.label("Lgate")
        Lgo = a.label("Lgateo")
        a.e(f"""
s_cmp_ge_u32 s{sT}, {0 if "nogate" in EXP else (99 if "valugemv" in EXP else 20)}
s_cbranch_scc1 {Lgo}
v_and_b32 v13, 1, v1
v_lshlrev_b32 v13, 2, v13
s_mov_b32 s{sTMP+11}, 0
{Lgt}:
ds_read_b32 v14, v13 offset:{L_GATE}
s_add_u32 s{sTMP+11}, s{sTMP+11}, 1
s_cmp_gt_u32 s{sTMP+11}, 4000000
s_cbranch_scc1 {Lgo}
s_waitcnt lgkmcnt(0)
v_cmp_ne_u32 vcc, s{sTAG}, v14
s_cbranch_vccnz {Lgt}
{Lgo}:
s_waitcnt lgkmcnt(0)
""")
        if "qtouch" in EXP:
            a.e(f"s_mul_i32 s{sTMP+5}, s{sT}, 49152")
            self.touch(S_WQKV, sTMP + 5, 384, sTMP + 4, 2, 14, 10)
        if "dmadelay" in EXP:
            a.e(f"buffer_load_dword v14, v13, {WS}, s{sTMP} offen sc1\ns_waitcnt vmcnt(0)")
        for c in range(16):
            for seg in range(3):
                a.e(f"s_add_u32 m0, s{sTMP+2}, {L_WQKV + seg*32768 + c*2048}")
                a.e(f"s_add_u32 s{sTMP+3}, s{sTMP}, {c*32*3072 + seg*1024}")
                a.e(f"buffer_load_dwordx4 v12, s[{S_WQKV}:{S_WQKV+3}], s{sTMP+3} offen lds")
        a.e("s_waitcnt vmcnt(0)")
        self.stamp(0)
        a.vm_issued, a.lg_issued = v0_, l0_
        a.e(f"{L_j}:")
        if "prio" in EXP:
            Lpr = a.label("Lprio")
            a.e(f"s_cmp_lt_u32 s{sW}, 4\ns_cbranch_scc1 {Lpr}\ns_setprio 1\n{Lpr}:")
        a.e("s_nop 4\ns_barrier")
        self.stamp(1)

    def gemv_valu(self, a, L_45, L_j, tagfix, v0_, l0_):
        a.e(f"{L_45}:")
        W0, SV = 94, 14
        a.e(f"""
v_lshrrev_b32 v6, 1, v1
v_lshlrev_b32 v8, 5, v6
v_mul_u32_u24 v7, {16*6144}, v6
v_and_b32 v6, 1, v1
v_lshl_add_u32 v7, v6, 4, v7
buffer_load_dwordx4 v[70:73], v8, s[{S_C}:{S_C+3}], 0 offen
buffer_load_dwordx4 v[74:77], v8, s[{S_C}:{S_C+3}], 0 offen offset:16
""")
        tok_c = a.vm_tok()
        a.e(f"s_lshl_b32 s{sTMP}, s{sT}, 6\ns_lshl_b32 s{sTMP+1}, s{sW3}, 5\ns_add_u32 s{sTMP}, s{sTMP}, s{sTMP+1}")
        tok_w = []
        for i in range(16):
            a.e(f"buffer_load_dwordx4 v[{W0+4*i}:{W0+3+4*i}], v7, s[{S_WM}:{S_WM+3}], s{sTMP} offen")
            tok_w.append(a.vm_tok())
            if i < 15:
                a.e(f"s_add_u32 s{sTMP}, s{sTMP}, 6144")
        a.e(f"""
v_and_b32 v5, 127, v0
v_mul_u32_u24 v12, 24576, v5
v_lshlrev_b32 v5, 3, v5
s_lshl_b32 s{sTMP}, s{sP}, 4
s_add_u32 s{sTMP}, s{sTMP}, 2048
buffer_load_dwordx2 v[78:79], v5, s[{S_C}:{S_C+3}], 0 offen
""")
        for i in range(4):
            a.e(f"buffer_load_dwordx4 v[{54+4*i}:{57+4*i}], v12, s[{S_WM}:{S_WM+3}], s{sTMP} offen")
            if i < 3:
                a.e(f"s_add_u32 s{sTMP}, s{sTMP}, 6144")
        tok_nu = a.vm_tok()
        a.e(tagfix)
        a.e(f"s_lshl_b32 s{sTMP+4}, s{sW3}, 2\nv_mov_b32 v13, s{sTMP+4}\nv_mov_b32 v5, s{sTAG}\nds_write_b32 v13, v5 offset:{L_GATE}")
        a.e(f"""
v_lshlrev_b32 v9, 5, v6
v_lshl_add_u32 v9, v3, 3, v9
s_cmp_ge_u32 s{sT}, 16
s_cselect_b32 s{sTMP+7}, 1.0, 0
s_lshl_b32 s{sTMP+5}, s{sX}, 12
s_lshl_b32 s{sTMP+6}, s{sT}, 7
s_add_u32 s{sTMP+5}, s{sTMP+5}, s{sTMP+6}
s_lshl_b32 s{sTMP+6}, s{sW3}, 6
s_add_u32 s{sTMP+5}, s{sTMP+5}, s{sTMP+6}
s_add_u32 s{sTMP+6}, s{sTMP+5}, {MODB}
s_add_u32 s{sTMP+5}, s{sTMP+5}, {MODA}
""")
        a.wait_vm(tok_c)
        self.silu_bf16(70, 8, SV, 30)
        AC = 30
        for i in range(16):
            a.wait_vm(tok_w[i])
            w = W0 + 4 * i
            t = 38 + 8 * (i % 2)
            for d in range(4):
                a.e(f"v_lshlrev_b32 v{t+2*d}, 16, v{w+d}\nv_and_b32 v{t+1+2*d}, 0xffff0000, v{w+d}")
            sp = SV + (i & ~1)
            sel = i & 1
            for d in range(4):
                if i == 0:
                    a.e(f"v_pk_mul_f32 v[{AC+2*d}:{AC+1+2*d}], v[{t+2*d}:{t+1+2*d}], v[{sp}:{sp+1}] op_sel_hi:[1,0]")
                else:
                    a.e(f"v_pk_fma_f32 v[{AC+2*d}:{AC+1+2*d}], v[{t+2*d}:{t+1+2*d}], v[{sp}:{sp+1}], v[{AC+2*d}:{AC+1+2*d}] op_sel:[0,{sel},0] op_sel_hi:[1,{sel},1]")
        for r in (2, 4, 8):
            for e in range(8):
                a.e(f"v_add_f32_dpp v{AC+e}, v{AC+e}, v{AC+e} row_ror:{r} row_mask:0xf bank_mask:0xf")
        self.reduce8_pairs(AC)
        self.granule(AC, AC + 1, sTMP + 7, AC + 2)
        a.e(f"s_mov_b32 exec_lo, 0x00030003\ns_mov_b32 exec_hi, 0x00030003")
        a.e(f"buffer_store_dwordx2 v[{AC+2}:{AC+3}], v9, {WS}, s{sTMP+5} offen")
        a.e(f"buffer_store_dwordx2 v[{AC+2}:{AC+3}], v9, {WS}, s{sTMP+6} offen sc1")
        a.e(f"s_mov_b64 exec, -1")
        self.stamp(0)
        a.wait_vm(tok_nu)
        self.silu_bf16(78, 2, 80, 96)
        for i in range(4):
            for d in range(4):
                w = 54 + 4 * i + d
                a.e(f"v_lshlrev_b32 v{96+2*d}, 16, v{w}\nv_and_b32 v{97+2*d}, 0xffff0000, v{w}")
            for e in range(8):
                a.e(f"v_mul_f32 v{72+e}, v80, v{96+e}" if i == 0 else f"v_fmac_f32 v{72+e}, v{80+i}, v{96+e}")
        for r in (1, 2, 4, 8):
            for e in range(8):
                a.e(f"v_add_f32_dpp v{72+e}, v{72+e}, v{72+e} row_ror:{r} row_mask:0xf bank_mask:0xf")
        self.reduce8_pairs(72)
        a.e("v_mov_b32 v132, v72\nv_mov_b32 v133, v73")
        a.e(f"s_branch {L_j}")
        a.vm_issued, a.lg_issued = v0_, l0_

    def gemv_mfma(self, a, L_45, L_j, tagfix, v0_, l0_):
        a.e(f"{L_45}:")
        a.e(f"s_cmp_ge_u32 s{sT}, 20\ns_cbranch_scc1 L_NOGEMV")
        L_SLAB = 96 * 1024
        self.w64_lane(12, stride=6144)
        a.e(f"""
s_lshl_b32 s{sTMP}, s{sT}, 7
s_lshl_b32 s{sTMP+1}, s{sX}, 9
s_add_u32 s{sTMP+1}, s{sTMP+1}, s{sTMP}
s_cmp_ge_u32 s{sT}, 16
s_cselect_b32 s{sTMP}, s{sTMP+1}, s{sTMP}
s_mul_i32 s{sTMP+1}, s{sW3}, {256*6144}
s_add_u32 s{sTMP}, s{sTMP}, s{sTMP+1}
s_lshl_b32 s{sTMP+2}, s{sW3}, 15
s_lshl_b32 s{sTMP+4}, s{sW3}, 9
v_lshlrev_b32 v8, 3, v1
buffer_load_dwordx2 v[70:71], v8, s[{S_C}:{S_C+3}], s{sTMP+4} offen
""")
        tok_c = a.vm_tok()
        for i in range(32):
            a.e(f"s_add_u32 m0, s{sTMP+2}, {L_SLAB + i*1024}\ns_add_u32 s{sTMP+3}, s{sTMP}, {i*8*6144}")
            a.e(f"buffer_load_dwordx4 v12, s[{S_WM}:{S_WM+3}], s{sTMP+3} offen lds")
        a.e(tagfix)
        a.e(f"s_lshl_b32 s{sTMP+4}, s{sW3}, 2\nv_mov_b32 v13, s{sTMP+4}\nv_mov_b32 v14, s{sTAG}\nds_write_b32 v13, v14 offset:{L_GATE}")
        a.wait_vm(tok_c)
        self.silu_bf16(70, 2, 14, 30)
        SF = 94
        a.e(f"v_lshrrev_b32 v9, 5, v1\nv_lshlrev_b32 v9, 3, v9")
        for st in range(16):
            for d in range(4):
                a.e(f"ds_bpermute_b32 v{SF+4*st+d}, v9, v{30 + (d&1)} offset:{(4*st + (d>>1))*4}")
            if st % 3 == 2:
                a.e("s_waitcnt lgkmcnt(3)")
        self.tr64_bases(4)
        a.e(f"""
s_add_u32 s{sTMP+2}, s{sTMP+2}, {L_SLAB}
v_add_u32 v4, s{sTMP+2}, v4
v_add_u32 v5, s{sTMP+2}, v5
s_waitcnt lgkmcnt(0)
""")
        self.stamp(22)
        a.e("s_waitcnt vmcnt(0)")
        self.stamp(23)
        GA_ = 32
        GB = [64, 72, 80]
        toks = {}

        def GR(st):
            return [f"ds_read_b64_tr_b16 {vr(GB[st%3]+4*t+2*i,2)}, v{4+t} offset:{(16*st+4*i)*128}" for t in range(2) for i in range(2)]
        for st in range(2):
            a.e("\n".join(GR(st)))
            toks[st] = a.lg_tok()
        for st in range(16):
            a.wait_lg(toks[st])
            for t in range(2):
                a.e(f"v_mfma_f32_32x32x16_bf16 {vr(GA_+16*t,16)}, {vr(GB[st%3]+4*t,4)}, {vr(SF+4*st,4)}, {'0' if st == 0 else vr(GA_+16*t,16)}")
            if st + 2 < 16:
                a.e("\n".join(GR(st + 2)))
                toks[st + 2] = a.lg_tok()
        self.stamp(24)
        L5 = a.label("Lg5")
        a.e(f"v_add_u32 v12, {L_SLAB + 32768}, v11\nv_mov_b32 v13, {L_SLAB + 32768 + 8192}\nv_mov_b32 v14, s{sTAG}")
        a.e(f"s_cmp_eq_u32 s{sW}, 4\ns_cbranch_scc1 {L5}")
        self.nocount("\n".join(f"ds_write_b128 v12, {vr(GA_+4*q,4)} offset:{q*1024}" for q in range(8)))
        a.e("s_waitcnt lgkmcnt(0)")
        self.nocount("ds_write_b32 v13, v14")
        a.e(f"s_waitcnt lgkmcnt(0)\ns_branch L_NOGEMV\n{L5}:")
        Ls = a.label("Lgs")
        Lso = a.label("Lgso")
        a.e(f"""
s_mov_b32 s{sTMP+11}, 0
{Ls}:
""")
        self.nocount("ds_read_b32 v15, v13")
        a.e(f"""
s_add_u32 s{sTMP+11}, s{sTMP+11}, 1
s_cmp_gt_u32 s{sTMP+11}, 4000000
s_cbranch_scc1 {Lso}
s_waitcnt lgkmcnt(0)
v_cmp_ne_u32 vcc, s{sTAG}, v15
s_cbranch_vccnz {Ls}
{Lso}:
""")
        self.nocount("\n".join(f"ds_read_b128 {vr(64+4*q,4)}, v12 offset:{q*1024}" for q in range(8)))
        a.e(f"""
s_lshl_b32 s{sTMP+5}, s{sX}, 12
s_lshl_b32 s{sTMP+6}, s{sT}, 8
s_add_u32 s{sTMP+5}, s{sTMP+5}, s{sTMP+6}
s_add_u32 s{sTMP+8}, s{sTMP+5}, {MODB}
s_add_u32 s{sTMP+5}, s{sTMP+5}, {MODA}
s_lshl_b32 s{sTMP+9}, s{sX}, 10
s_add_u32 s{sTMP+9}, s{sTMP+9}, s{sTMP+6}
s_add_u32 s{sTMP+9}, s{sTMP+9}, {MODG - 4096}
s_lshr_b32 s{sTMP+6}, s{sT}, 3
s_cmp_eq_u32 s{sTMP+6}, 1
s_cselect_b32 s{sTMP+7}, 1.0, 0
s_lshr_b32 s{sTMP+6}, s{sX}, 1
s_cmp_eq_u32 s{sTMP+6}, 2
s_cselect_b32 s{sTMP+10}, 1.0, 0
s_cmp_ge_u32 s{sT}, 16
s_cselect_b32 s{sTMP+7}, s{sTMP+10}, s{sTMP+7}
s_cselect_b32 s{sTMP+5}, s{sTMP+9}, s{sTMP+5}
s_cselect_b32 s{sTMP+8}, s{sTMP+9}, s{sTMP+8}
v_lshrrev_b32 v9, 5, v1
v_lshlrev_b32 v9, 5, v9
s_waitcnt lgkmcnt(0)
""")
        for r in range(32):
            a.e(f"v_add_f32 v{GA_+r}, v{GA_+r}, v{64+r}")
        for q in range(16):
            a.e(f"v_cvt_pk_bf16_f32 v{64+2*q}, v{GA_+2*q}, v{GA_+2*q+1}")
        for q in range(16):
            a.e(f"v_lshlrev_b32 v{GA_+2*q}, 16, v{64+2*q}\nv_and_b32 v{GA_+2*q+1}, 0xffff0000, v{64+2*q}")
        for r in range(32):
            a.e(f"v_add_f32 v{GA_+r}, s{sTMP+7}, v{GA_+r}")
        for q in range(16):
            a.e(f"v_cvt_pk_bf16_f32 v{64+2*q}, v{GA_+2*q}, v{GA_+2*q+1}\nv_mov_b32 v{65+2*q}, s{sTAG}")
        a.e("s_mov_b32 exec_lo, 1\ns_mov_b32 exec_hi, 1")
        Lnu = a.label("Lnu")
        a.e(f"s_cmp_ge_u32 s{sT}, 16\ns_cbranch_scc1 {Lnu}")
        for u in range(8):
            self.nocount(f"buffer_store_dwordx4 {vr(64+4*u,4)}, v9, {WS}, s{sTMP+5} offen offset:{(u>>1)*64 + (u&1)*16}")
        a.e(f"{Lnu}:")
        for u in range(8):
            self.nocount(f"buffer_store_dwordx4 {vr(64+4*u,4)}, v9, {WS}, s{sTMP+8} offen offset:{(u>>1)*64 + (u&1)*16} sc1")
        a.e("s_mov_b64 exec, -1")
        self.stamp(0)
        a.e("L_NOGEMV:")
        a.e(tagfix.replace("s_mul_i32", "s_cmp_ge_u32 s%d, 20\ns_cbranch_scc0 %s\ns_mul_i32" % (sT, L_j)))
        if "nomall" not in EXP:
            a.e(f"""
s_mul_i32 s{sTMP}, s{sX}, 12
s_add_u32 s{sTMP}, s{sTMP}, s{sT}
s_sub_u32 s{sTMP}, s{sTMP}, 20
s_lshl_b32 s{sTMP}, s{sTMP}, 1
s_add_u32 s{sTMP}, s{sTMP}, s{sW3}
s_lshl_b32 s{sTMP}, s{sTMP}, 13
s_add_u32 s{sTMP+1}, s{sTMP}, {192*8192}
""")
            if "tlb" in EXP:
                jobs = []
                for i in range(2):
                    jobs.append((S_WS, H1BUF + i * 262144, 524288))
                jobs.append((S_WS, OBUF, 262144))
                jobs.append((S_WS, H2BUF, 262144))
                for i in range(4):
                    jobs.append((S_WS, ACT + i * 262144, 917504))
                for i in range(2):
                    jobs.append((S_WS, KVX + i * 262144, 524288))
                jobs.append((S_OUT, 0, 262144))
                jobs.append((S_WS, SGRAN, 0))
                for i in range(2):
                    jobs.append((S_WO, i * 262144, 0))
                for srd in (S_WG, S_WU, S_WD):
                    for i in range(7):
                        jobs.append((srd, i * 262144, 0))
                a.e(f"v_lshlrev_b32 v5, 12, v1\ns_sub_u32 s{sTMP+4}, s{sT}, 20\ns_lshl_b32 s{sTMP+4}, s{sTMP+4}, 1\ns_add_u32 s{sTMP+4}, s{sTMP+4}, s{sW3}")
                for k, (srd, off, xs) in enumerate(jobs):
                    Ln = a.label("Ltl")
                    a.e(f"s_cmp_lg_u32 s{sTMP+4}, {k % 24}\ns_cbranch_scc1 {Ln}\ns_mul_i32 s{sTMP+5}, s{sX}, {xs}\ns_add_u32 s{sTMP+5}, s{sTMP+5}, {off}")
                    self.nocount(f"buffer_load_dword v2, v5, s[{srd}:{srd+3}], s{sTMP+5} offen sc1")
                    a.e(f"{Ln}:")
            a.e(f"s_cmp_lt_u32 s{sTMP}, {84*8192}\ns_cselect_b32 s{sTMP+1}, s{sTMP}, 0x7fff0000\n"
                f"s_sub_u32 s{sTMP+2}, s{sTMP}, {84*8192}\ns_cmp_lt_u32 s{sTMP+2}, {84*8192}\ns_cselect_b32 s{sTMP+2}, s{sTMP+2}, 0x7fff0000\n"
                f"s_sub_u32 s{sTMP+3}, s{sTMP}, {128*8192}\ns_min_u32 s{sTMP+3}, s{sTMP+3}, 0x7fff0000")
            self.nocount(f"buffer_load_dword v2, v10, s[{S_WG}:{S_WG+3}], s{sTMP+1} offen")
            self.nocount(f"buffer_load_dword v2, v10, s[{S_WU}:{S_WU+3}], s{sTMP+2} offen")
            self.nocount(f"buffer_load_dword v2, v10, s[{S_WO}:{S_WO+3}], s{sTMP+3} offen")
        a.e(f"s_branch {L_j}")
        a.vm_issued, a.lg_issued = v0_, l0_

    def phase1(self):
        a = self.a
        a.e(f"""
s_lshl_b32 s{sTMP}, s{sRB}, 8
s_lshl_b32 s{sTMP+1}, s{sW3}, 6
s_add_u32 s{sTMP}, s{sTMP}, s{sTMP+1}
s_add_u32 s{sTMP}, s{sTMP}, {FL_H1}
v_and_b32 v12, 15, v1
v_lshlrev_b32 v12, 2, v12
s_lshl_b32 s{sTMP+2}, s{sX}, 19
s_and_b32 s{sTMP+1}, s{sRB}, 1
s_lshl_b32 s{sTMP+1}, s{sTMP+1}, 17
s_add_u32 s{sTMP+2}, s{sTMP+2}, s{sTMP+1}
s_xor_b32 s{sTMP+1}, s{sWH}, 1
s_lshl_b32 s{sTMP+1}, s{sTMP+1}, 18
s_add_u32 s{sTMP+2}, s{sTMP+2}, s{sTMP+1}
s_lshl_b32 s{sTMP+1}, s{sW3}, 15
s_add_u32 s{sTMP+2}, s{sTMP+2}, s{sTMP+1}
s_add_u32 s{sTMP+2}, s{sTMP+2}, {H1BUF}
v_lshrrev_b32 v8, 5, v1
v_bfe_u32 v9, v1, 2, 2
v_lshl_add_u32 v9, v8, 3, v9
v_lshlrev_b32 v4, 6, v9
v_bfe_u32 v9, v1, 4, 1
v_lshl_add_u32 v4, v9, 5, v4
v_and_b32 v9, 1, v1
v_lshl_add_u32 v4, v9, 4, v4
v_bfe_u32 v9, v1, 1, 1
v_lshl_add_u32 v4, v9, 3, v4
v_add_u32 v4, {L_WQKV}, v4
v_add_u32 v5, 32768, v4
v_add_u32 v6, 65536, v4
v_and_b32 v14, 31, v1
v_lshlrev_b32 v14, 3, v14
s_lshl_b32 s{sTMP+3}, s{sX}, 8
s_add_u32 s{sTMP+3}, s{sTMP+3}, {XID}
""")
        L = a.label("P1")
        Lo = a.label("P1o")
        a.e(f"s_mov_b32 s{sTMP+11}, 0\n{L}:")
        self.nocount(f"buffer_load_dword v13, v12, {WS}, s{sTMP} offen sc1\nbuffer_load_dwordx2 v[16:17], v14, {WS}, s{sTMP+3} offen sc1")
        a.e(f"""
s_add_u32 s{sTMP+11}, s{sTMP+11}, 1
s_cmp_gt_u32 s{sTMP+11}, 400000
s_cbranch_scc1 {Lo}
s_waitcnt vmcnt(0)
v_cmp_ne_u32 vcc, s{sTAG}, v13
s_cbranch_vccz {Lo}
s_sleep {PSLEEP}
s_branch {L}
{Lo}:
s_waitcnt vmcnt(0)
v_xor_b32 v17, s{sTAG}, v17
v_xor_b32 v16, s{sXCC}, v16
v_or_b32 v16, v16, v17
v_cmp_ne_u32 vcc, 0, v16
s_cmp_eq_u64 vcc, 0
s_cselect_b32 s{sPURE}, 1, 0
""")
        self.stamp(2)
        ACC = [16, 32, 48]
        BFv = [64, 76, 88]
        NA = 12
        AF = lambda s: ar(4 * (s % NA), 4)
        NS = 32
        PD = 10

        def body(segs, wo=False):
            if wo:
                self.w64_lane(126)
                a.e(f"""
s_and_b32 s{sTMP+5}, s{sJ}, 7
s_lshl_b32 s{sTMP+5}, s{sTMP+5}, 7
s_lshl_b32 s{sTMP+6}, s{sW3}, 13
s_add_u32 s{sTMP+5}, s{sTMP+5}, s{sTMP+6}
s_lshl_b32 s{sTMP+6}, s{sW3}, 10
""")

            def R(s):
                return [f"ds_read_b64_tr_b16 {vr(BFv[s%3]+4*seg+2*i,2)}, v{4+seg} offset:{(16*s+4*i)*64}" for seg in segs for i in range(2)]

            def M(s):
                out = []
                for seg in segs:
                    c = "0" if s == 0 else vr(ACC[seg], 16)
                    b = vr(BFv[s % 3] + 4 * seg, 4)
                    if seg < 2:
                        out.append(f"v_mfma_f32_32x32x16_bf16 {vr(ACC[seg],16)}, {b}, {AF(s)}, {c}")
                    else:
                        out.append(f"v_mfma_f32_32x32x16_bf16 {vr(ACC[seg],16)}, {AF(s)}, {b}, {c}")
                return out

            def aload(s):
                out = []
                if s % 4 == 0 and s > 0:
                    out.append(f"s_add_u32 s{sTMP+2}, s{sTMP+2}, 4096")
                out.append(f"buffer_load_dwordx4 {AF(s)}, v11, {WS}, s{sTMP+2} offen offset:{(s%4)*1024} sc1")
                return out
            vt = {}
            for s in range(PD):
                a.e("\n".join(aload(s)))
                vt[s] = a.vm_tok()
            a.e("\n".join(R(0)))
            toks = {0: a.lg_tok()}
            a.e("\n".join(R(1)))
            toks[1] = a.lg_tok()
            for i in range(NS):
                r = R(i + 2) if i + 2 < NS else []
                a.wait_lg(toks[i])
                a.wait_vm(vt[i])
                a.e("\n".join(interleave(M(i), r)))
                if r:
                    toks[i + 2] = a.lg_tok()
                if i + PD < NS:
                    a.e("\n".join(aload(i + PD)))
                    vt[i + PD] = a.vm_tok()
                if wo and i < 16:
                    a.e(f"s_add_u32 m0, s{sTMP+6}, {L_WO + i*4096}\ns_add_u32 s{sTMP+7}, s{sTMP+5}, {i*32768}")
                    a.e(f"buffer_load_dwordx4 v126, s[{S_WO}:{S_WO+3}], s{sTMP+7} offen lds")
        L_h = a.label("Lp1h")
        L_j = a.label("Lp1j")
        a.e(f"s_cmp_ge_u32 s{sW}, 4\ns_cbranch_scc1 {L_h}")
        v0_, l0_ = a.vm_issued, a.lg_issued
        body([1, 2, 0])
        a.e(f"s_branch {L_j}\n{L_h}:")
        a.vm_issued, a.lg_issued = v0_, l0_
        body([1, 2], wo=True)
        a.e(f"{L_j}:")
        self.stamp(3)
        a.e("s_nop 15")

    def phase2(self):
        a = self.a
        QF = 140
        for r in range(8):
            a.e(f"v_cvt_pk_bf16_f32 v{64+r}, v{32+2*r}, v{33+2*r}")
        for r in range(8):
            a.e(f"v_cvt_pk_bf16_f32 v{72+r}, v{48+2*r}, v{49+2*r}")
        a.e(f"""
v_and_b32 v8, 31, v1
v_lshrrev_b32 v9, 5, v1
v_bfe_u32 v5, v1, 2, 2
v_xor_b32 v9, v9, v5
v_lshlrev_b32 v7, 6, v8
v_lshl_add_u32 v12, v9, 4, v7
v_xor_b32 v9, 2, v9
v_lshl_add_u32 v13, v9, 4, v7
s_xor_b32 s{sTMP+3}, s{sWH}, 1
s_lshl_b32 s{sTMP+3}, s{sTMP+3}, 14
s_lshl_b32 s{sTMP+4}, s{sW3}, 11
s_add_u32 s{sTMP+3}, s{sTMP+3}, s{sTMP+4}
s_add_u32 s{sTMP+1}, s{sTMP+3}, {L_K}
s_add_u32 s{sTMP+2}, s{sTMP+3}, {L_V}
v_add_u32 v8, s{sTMP+1}, v12
v_add_u32 v9, s{sTMP+1}, v13
v_add_u32 v5, s{sTMP+2}, v12
v_add_u32 v7, s{sTMP+2}, v13
s_lshl_b32 s{sTMP+1}, s{sP}, 14
s_lshl_b32 s{sTMP+2}, s{sW3}, 12
s_add_u32 s{sTMP+1}, s{sTMP+1}, s{sTMP+2}
s_add_u32 s{sTMP+1}, s{sTMP+1}, {KVX}
s_lshl_b32 s{sTMP+5}, s{sP}, 4
s_lshl_b32 s{sTMP+2}, s{sW3}, 2
s_add_u32 s{sTMP+5}, s{sTMP+5}, s{sTMP+2}
s_add_u32 s{sTMP+5}, s{sTMP+5}, {FL_KV}
v_mov_b32 v14, s{sTAG}
v_mov_b32 v15, 0
s_and_b32 s{sTMP+6}, s{sRB}, 1
""")
        L_f = a.label("Lfetch")
        L_j = a.label("Lp2j")
        a.e(f"s_cmp_lg_u32 s{sTMP+6}, s{sWH}\ns_cbranch_scc1 {L_f}")
        v0_, l0_ = a.vm_issued, a.lg_issued
        st = f"""buffer_store_dwordx4 v[64:67], v12, {WS}, s{sTMP+1} offen
buffer_store_dwordx4 v[68:71], v13, {WS}, s{sTMP+1} offen
buffer_store_dwordx4 v[72:75], v12, {WS}, s{sTMP+1} offen offset:2048
buffer_store_dwordx4 v[76:79], v13, {WS}, s{sTMP+1} offen offset:2048
"""
        self.store_sel(st + self.flag_seq(f"s{sTMP+5}"))
        a.e(f"s_barrier\ns_branch {L_j}\n{L_f}:")
        a.vm_issued, a.lg_issued = v0_, l0_
        a.e(f"s_xor_b32 s{sTMP+5}, s{sTMP+5}, 256\ns_xor_b32 s{sTMP+1}, s{sTMP+1}, {16*16384}")
        self.poll(15, f"s{sTMP+5}", 80)
        a.e("s_barrier")
        for half in range(2):
            a.e(f"s_add_u32 m0, s{sTMP+4}, {L_K + 4*2048}")
            self.nocount(f"buffer_load_dwordx4 v11, {WS}, s{sTMP+1} offen offset:{half*1024} sc1 lds")
            a.e(f"s_add_u32 m0, s{sTMP+4}, {L_V + 4*2048 - 2048}")
            self.nocount(f"buffer_load_dwordx4 v11, {WS}, s{sTMP+1} offen offset:{2048 + half*1024} sc1 lds")
        a.e(f"{L_j}:")
        a.e(f"""
ds_write_b128 v8, v[64:67]
ds_write_b128 v9, v[68:71]
ds_write_b128 v5, v[72:75]
ds_write_b128 v7, v[76:79]
""")
        Lq = a.label("Lq0")
        a.e(f"s_cmp_ge_u32 s{sW}, 4\ns_cbranch_scc1 {Lq}")
        a.e(f"s_mov_b32 s{sTMP}, {f2u(QSCALE):#x}")
        for r in range(16):
            a.e(f"v_mul_f32 v{16+r}, s{sTMP}, v{16+r}")
        for r in range(4):
            a.e(f"v_cvt_pk_bf16_f32 v{QF+r}, v{16+2*r}, v{17+2*r}")
        for r in range(4):
            a.e(f"v_cvt_pk_bf16_f32 v{80+r}, v{24+2*r}, v{25+2*r}")
        a.e(f"""
s_lshl_b32 s{sTMP+4}, s{sW}, 10
s_add_u32 s{sTMP+4}, s{sTMP+4}, {L_QX}
v_add_u32 v5, s{sTMP+4}, v11
""")
        self.nocount("ds_write_b128 v5, v[80:83]")
        a.e(f"{Lq}:")
        if "valugemv" in EXP:
            a.e(f"""
s_lshl_b32 s{sTMP}, s{sW}, 5
s_add_u32 s{sTMP}, s{sTMP}, {L_SCR}
v_lshl_add_u32 v12, v3, 3, s{sTMP}
ds_write_b64 v12, v[132:133]
""")
        a.e("s_waitcnt vmcnt(0) lgkmcnt(0)\ns_barrier")
        self.stamp(5)
        Lq = a.label("Lq")
        Lw = a.label("Lwo")
        a.e(f"s_cmp_lt_u32 s{sW}, 4\ns_cbranch_scc1 {Lw}")
        a.e(f"s_lshl_b32 s{sTMP+4}, s{sW3}, 10\ns_add_u32 s{sTMP+4}, s{sTMP+4}, {L_QX}\nv_add_u32 v5, s{sTMP+4}, v11")
        self.nocount(f"ds_read_b128 v[{QF}:{QF+3}], v5")
        if "valugemv" in EXP:
            a.e(f"s_cmp_lg_u32 s{sW}, 4\ns_cbranch_scc1 {Lw}")
            a.e(f"v_and_b32 v13, 3, v1\nv_lshlrev_b32 v13, 3, v13\nv_add_u32 v14, {L_SCR}, v13")
            self.nocount("\n".join(f"ds_read_b64 v[{80+2*w}:{81+2*w}], v14 offset:{(4+w)*32}" for w in range(2)))
            a.e(f"""
s_lshr_b32 s{sTMP+5}, s{sP}, 6
s_cmp_eq_u32 s{sTMP+5}, 2
s_cselect_b32 s{sTMP+4}, 1.0, 0
s_lshl_b32 s{sTMP+5}, s{sP}, 5
s_add_u32 s{sTMP+5}, s{sTMP+5}, {MODG}
s_waitcnt lgkmcnt(0)
v_add_f32 v80, v80, v82
v_add_f32 v81, v81, v83
""")
            self.granule(80, 81, sTMP + 4, 82)
            a.e("s_mov_b64 exec, 0xf")
            self.nocount(f"buffer_store_dwordx2 v[82:83], v13, {WS}, s{sTMP+5} offen sc1")
            a.e("s_mov_b64 exec, -1")
        a.e(f"{Lw}:")
        a.e(f"{Lq}:\ns_waitcnt lgkmcnt(0)")
        self.gu_dma_setup()
        self.gu_dma_hi([0])
        if "nomall2" not in EXP:
            Lm = a.label("Lmall")
            a.e(f"""
s_lshr_b32 s{sTMP}, s{sW}, 1
s_cmp_lg_u32 s{sTMP}, 1
s_cbranch_scc1 {Lm}
s_lshl_b32 s{sTMP}, s{sP}, 1
s_and_b32 s{sTMP+1}, s{sW}, 1
s_add_u32 s{sTMP}, s{sTMP}, s{sTMP+1}
s_lshl_b32 s{sTMP}, s{sTMP}, 13
s_add_u32 s{sTMP+1}, s{sTMP}, {84*8192}
s_sub_u32 s{sTMP+2}, s{sTMP}, {140*8192}
s_cmp_lt_u32 s{sTMP+2}, {140*8192}
s_cselect_b32 s{sTMP+2}, s{sTMP+2}, 0x7fff0000
s_add_u32 s{sTMP+2}, s{sTMP+2}, {84*8192}
s_sub_u32 s{sTMP+3}, s{sTMP}, {280*8192}
s_min_u32 s{sTMP+3}, s{sTMP+3}, 0x7fff0000
""")
            self.nocount(f"buffer_load_dword v2, v10, s[{S_WG}:{S_WG+3}], s{sTMP+1} offen")
            self.nocount(f"buffer_load_dword v2, v10, s[{S_WU}:{S_WU+3}], s{sTMP+2} offen")
            self.nocount(f"buffer_load_dword v2, v10, s[{S_WD}:{S_WD+3}], s{sTMP+3} offen")
            a.e(f"{Lm}:")
        SB = [16, 32]
        CN, OA, PK, MK, MX = 48, 64, 80, 96, 104
        VF = [108, 116]
        KA = 0
        a.e(f"""
v_and_b32 v8, 31, v1
v_lshrrev_b32 v9, 5, v1
v_bfe_u32 v7, v1, 2, 2
s_lshl_b32 s{sTMP}, s{sWH}, 1
v_or_b32 v12, s{sTMP}, v9
v_xor_b32 v12, v12, v7
v_lshlrev_b32 v4, 6, v8
v_lshl_add_u32 v4, v12, 4, v4
s_lshl_b32 s{sTMP+1}, s{sW3}, 11
s_add_u32 s{sTMP+2}, s{sTMP+1}, {L_K}
v_add_u32 v4, s{sTMP+2}, v4
v_and_b32 v13, 15, v1
v_lshlrev_b32 v5, 6, v13
v_xor_b32 v12, v9, v7
v_lshl_add_u32 v5, v12, 4, v5
v_xor_b32 v12, 2, v12
v_lshlrev_b32 v6, 6, v13
v_lshl_add_u32 v6, v12, 4, v6
s_lshl_b32 s{sTMP+2}, s{sWH}, 10
s_add_u32 s{sTMP+2}, s{sTMP+2}, s{sTMP+1}
s_add_u32 s{sTMP+2}, s{sTMP+2}, {L_V}
v_add_u32 v5, s{sTMP+2}, v5
v_add_u32 v6, s{sTMP+2}, v6
s_lshl_b32 s{sTMP}, s{sRB}, 2
s_add_u32 s{sTMP}, s{sTMP}, s{sW3}
s_sub_u32 s{sIMIN}, 8, s{sTMP}
s_cmp_ge_u32 s{sTMP}, 8
s_cselect_b32 s{sIMIN}, 0, s{sIMIN}
s_mul_i32 s92, s{sT}, 35840
s_min_u32 s93, s{sW}, 4
s_lshl_b32 s93, s93, 13
s_add_u32 s92, s92, s93
s_add_u32 s92, s92, {192*3584}
""")
        order = [8, 0, 7, 6, 5, 4, 3, 2, 1]
        ktok = {}
        for i in order:
            a.e(f"ds_read_b128 {ar(KA+4*i,4)}, v4 offset:{i*2048}")
            ktok[i] = a.lg_tok()
        a.e(f"v_lshlrev_b32 v12, 2, v9\nv_sub_u32 v12, v8, v12")
        for r in range(16):
            kl = 8 * (r >> 2) + (r & 3)
            a.e(f"v_cmp_le_i32 s[{sMASK+2*r}:{sMASK+2*r+1}], {kl}, v12")
        a.e(f"v_mov_b32 v13, 0xffff\nv_mov_b32 v7, 0xffff0000")
        for j in range(8):
            a.e(f"v_cndmask_b32 v{MK+j}, 0, v13, s[{sMASK+4*j}:{sMASK+4*j+1}]")
            a.e(f"v_cndmask_b32 v12, 0, v7, s[{sMASK+4*j+2}:{sMASK+4*j+3}]")
            a.e(f"v_or_b32 v{MK+j}, v{MK+j}, v12")
        a.e(f"v_and_b32 v12, 27, v1\nv_cmp_eq_u32 vcc, 16, v12\nv_mov_b32 v13, 0x3f803f80")
        for r in range(16):
            a.e(f"v_cndmask_b32 v{VF[0]+r}, 0, v13, vcc")
        Q = vr(QF, 4)

        touches = [None, (S_WG, 0), None, (S_WU, 0)]

        def touch_one():
            if "atouch" not in EXP or not touches:
                return
            t_ = touches.pop(0)
            if t_ is None:
                return
            srd, off = t_
            Ln = a.label("Lnt")
            a.e(f"s_cmp_gt_u32 s{sW}, 4\ns_cbranch_scc1 {Ln}\ns_add_u32 s93, s92, {off}")
            self.nocount(f"buffer_load_dword v2, v10, s[{srd}:{srd+3}], s93 offen")
            a.e(f"{Ln}:")

        def smfma(buf, i, c):
            return f"v_mfma_f32_32x32x16_bf16 {vr(SB[buf],16)}, {ar(KA+4*i,4)}, {Q}, {c}"

        def fix_trail():
            Ln = a.label("Lnt")
            a.e(f"s_cmp_eq_u32 s{sIMIN}, 0\ns_cbranch_scc1 {Ln}")
            a.e("s_nop 12")
            for r in range(16):
                a.e(f"v_mov_b32 v{SB[1]+r}, {NEG_BIG:#x}")
            a.e(f"{Ln}:\ns_nop 12")

        def merge():
            for r in range(16):
                a.e(f"v_cndmask_b32 v{SB[0]+r}, v{SB[1]+r}, v{SB[0]+r}, s[{sMASK+2*r}:{sMASK+2*r+1}]")

        touch_one()
        a.wait_lg(ktok[0])
        a.e(smfma(0, 8, "0"))
        a.e(smfma(1, 0, "0"))
        fix_trail()
        merge()
        a.wait_lg(ktok[7])
        a.e(smfma(1, 7, "0"))
        a.e(f"v_max3_f32 v{MX}, v{SB[0]}, v{SB[0]+1}, v{SB[0]+2}")
        for r in range(3, 15, 2):
            a.e(f"v_max3_f32 v{MX}, v{MX}, v{SB[0]+r}, v{SB[0]+r+1}")
        a.e(f"v_max_f32 v{MX}, v{MX}, v{SB[0]+15}")
        Le1 = a.label("Lp1e")
        buf = 1
        for i in range(7, 0, -1):
            a.e(f"s_cmp_gt_u32 s{sIMIN}, {i}\ns_cbranch_scc1 {Le1}")
            if i > 1:
                a.wait_lg(ktok[i - 1])
                a.e(smfma(1 - buf, i - 1, "0"))
            for r in range(0, 16, 2):
                a.e(f"v_max3_f32 v{MX}, v{MX}, v{SB[buf]+r}, v{SB[buf]+r+1}")
            buf = 1 - buf
        a.e(f"{Le1}:\ns_waitcnt lgkmcnt(0)\ns_nop 12")
        self.group_allsum([MX], [MX + 1], op="v_max_f32", stages=("32",))
        for r in range(16):
            a.e(f"v_sub_f32 v{CN+r}, 0, v{MX}")
        C = vr(CN, 16)

        def vread(b, i):
            return [f"s_mov_b32 exec_lo, 0xffff", f"s_mov_b32 exec_hi, 0xffff",
                    f"ds_read_b128 {vr(VF[b],4)}, v5 offset:{i*2048}", f"ds_read_b128 {vr(VF[b]+4,4)}, v6 offset:{i*2048}",
                    "s_mov_b64 exec, -1"]

        def expack(buf, dst):
            for r in range(16):
                a.e(f"v_exp_f32 v{SB[buf]+r}, v{SB[buf]+r}")
            for j in range(8):
                a.e(f"v_cvt_pk_bf16_f32 v{dst+j}, v{SB[buf]+2*j}, v{SB[buf]+2*j+1}")

        def pv(vb, p, first=False):
            a.e(f"v_mfma_f32_32x32x16_bf16 {vr(OA,16)}, {vr(VF[vb],4)}, {vr(p,4)}, {'0' if first else vr(OA,16)}")
            a.e(f"v_mfma_f32_32x32x16_bf16 {vr(OA,16)}, {vr(VF[vb]+4,4)}, {vr(p+4,4)}, {vr(OA,16)}")

        touch_one()
        a.e("\n".join(vread(0, 8) + vread(1, 0)))
        tv = a.lg_tok()
        a.e(smfma(0, 8, C))
        a.e(smfma(1, 0, C))
        fix_trail()
        merge()
        a.e(smfma(1, 7, C))
        expack(0, PK)
        for j in range(8):
            a.e(f"v_and_b32 v{PK+8+j}, v{PK+j}, v{MK+j}")
        for j in range(8):
            a.e(f"v_xor_b32 v{PK+j}, v{PK+j}, v{PK+8+j}")
        a.wait_lg(tv)
        pv(0, PK + 8, first=True)
        Lnt = a.label("Lnpv")
        a.e(f"s_cmp_lg_u32 s{sIMIN}, 0\ns_cbranch_scc1 {Lnt}")
        pv(1, PK)
        a.e(f"{Lnt}:")
        Le2 = a.label("Lp2e")
        buf = 1
        vb = 0
        a.e("\n".join(vread(0, 7)))
        for i in range(7, 0, -1):
            a.e(f"s_cmp_gt_u32 s{sIMIN}, {i}\ns_cbranch_scc1 {Le2}")
            tv = a.lg_tok()
            if i > 1:
                a.e(smfma(1 - buf, i - 1, C))
                a.e("\n".join(vread(1 - vb, i - 1)))
            if i in (6, 4):
                touch_one()
            p = PK + 8 * (i & 1)
            expack(buf, p)
            a.wait_lg(tv)
            pv(vb, p)
            buf = 1 - buf
            vb = 1 - vb
        a.e(f"{Le2}:\ns_waitcnt lgkmcnt(0)\ns_nop 15")
        a.e(f"v_rcp_f32 v{MX}, v{OA+8}")
        for r in range(8):
            a.e(f"v_mul_f32 v{OA+r}, v{MX}, v{OA+r}")
        for j in range(4):
            a.e(f"v_cvt_pk_bf16_f32 v{PK+j}, v{OA+2*j}, v{OA+2*j+1}")
        a.e(f"""
s_lshl_b32 s{sTMP}, s{sRB}, 2
s_add_u32 s{sTMP}, s{sTMP}, s{sW3}
s_lshl_b32 s{sTMP}, s{sTMP}, 15
s_lshl_b32 s{sTMP+1}, s{sJ}, 11
s_add_u32 s{sTMP}, s{sTMP}, s{sTMP+1}
s_lshl_b32 s{sTMP+1}, s{sWH}, 10
s_add_u32 s{sTMP}, s{sTMP}, s{sTMP+1}
s_add_u32 s{sTMP}, s{sTMP}, {OBUF}
s_lshl_b32 s{sTMP+1}, s{sP}, 5
s_lshl_b32 s{sTMP+2}, s{sW}, 2
s_add_u32 s{sTMP+1}, s{sTMP+1}, s{sTMP+2}
s_add_u32 s{sTMP+1}, s{sTMP+1}, {FL_O}
v_mov_b32 v14, s{sTAG}
v_mov_b32 v15, 0
""")
        self.store_sel(f"buffer_store_dwordx4 v[{PK}:{PK+3}], v11, {WS}, s{sTMP} offen\n" + self.flag_seq(f"s{sTMP+1}"))
        self.stamp(6)
        self.gu_dma_setup(lanes=False)
        a.e("s_barrier")

    def w64_lane(self, vd, stride=1024):
        self.a.e(f"""
v_lshrrev_b32 v{vd}, 3, v1
v_mul_u32_u24 v{vd}, {stride}, v{vd}
v_and_b32 v2, 7, v1
v_bfe_u32 v{vd+1}, v1, 4, 1
v_lshlrev_b32 v{vd+1}, 2, v{vd+1}
v_xor_b32 v2, v2, v{vd+1}
v_lshl_add_u32 v{vd}, v2, 4, v{vd}
""")

    def tr64_bases(self, vd):
        self.a.e(f"""
v_lshrrev_b32 v8, 5, v1
v_bfe_u32 v9, v1, 2, 2
v_lshl_add_u32 v8, v8, 3, v9
v_lshlrev_b32 v8, 7, v8
v_bfe_u32 v12, v1, 4, 1
v_lshl_add_u32 v8, v12, 5, v8
v_and_b32 v12, 1, v1
v_lshl_add_u32 v8, v12, 4, v8
v_bfe_u32 v12, v1, 1, 1
v_lshl_add_u32 v8, v12, 3, v8
v_lshrrev_b32 v9, 1, v9
v_lshl_add_u32 v{vd}, v9, 6, v8
v_xor_b32 v9, 1, v9
v_lshl_add_u32 v{vd+1}, v9, 6, v8
""")

    def gu_dma_setup(self, lanes=True):
        a = self.a
        a.e(f"""
s_cmp_ge_u32 s{sW3}, 2
s_cselect_b32 s{S_SEL}, s{S_WU}, s{S_WG}
s_cselect_b32 s{S_SEL+1}, s{S_WU+1}, s{S_WG+1}
s_cselect_b32 s76, {GU_UP}, 0
s_mov_b32 s{S_SEL+2}, 1835008
s_mov_b32 s{S_SEL+3}, 0x20000
s_mov_b32 s84, 4682
s_and_b32 s86, s{sW}, 1
s_mul_i32 s85, s86, {32*3584}
s_mul_i32 s87, s{sJ}, 224
s_add_u32 s85, s85, s87
s_mul_i32 s86, s86, 7168
s_add_u32 s76, s76, s86
""")
        for i in range(7 if lanes else 0):
            a.e(f"""
v_add_u32 v12, {64*i}, v1
v_mul_u32_u24 v13, s84, v12
v_lshrrev_b32 v13, 16, v13
v_mul_u32_u24 v{144+i}, 14, v13
v_sub_u32 v12, v12, v{144+i}
v_mul_u32_u24 v{144+i}, 3584, v13
v_lshl_add_u32 v{144+i}, v12, 4, v{144+i}
""")

    def gu_dma(self, chunk):
        out = []
        for i in range(7):
            out.append(f"s_add_u32 s86, s85, {chunk*64*3584}\ns_add_u32 m0, s76, {GU_SLOT[chunk%4] + i*1024}\n"
                       f"buffer_load_dwordx4 v{144+i}, s[{S_SEL}:{S_SEL+3}], s86 offen{NTG} lds")
        return out

    def gu_dma_hi(self, chunks):
        a = self.a
        Ln = a.label("Lgh")
        a.e(f"s_cmp_lt_u32 s{sW}, 4\ns_cbranch_scc1 {Ln}")
        for c in chunks:
            self.nocount("\n".join(self.gu_dma(c)))
        a.e(f"{Ln}:")

    def reduce_scatter4(self, ACC, base, dst):
        a = self.a
        a.e(f"""
s_and_b32 s{sTMP+1}, s{sW}, 1
s_lshl_b32 s{sTMP+1}, s{sTMP+1}, 15
s_lshr_b32 s{sTMP+5}, s{sW}, 1
s_lshl_b32 s{sTMP+6}, s{sTMP+5}, 11
s_add_u32 s{sTMP+6}, s{sTMP+6}, s{sTMP+1}
s_add_u32 s{sTMP+6}, s{sTMP+6}, {base}
v_add_u32 v12, s{sTMP+6}, v11
s_lshl_b32 s{sTMP+6}, s{sTMP+5}, 13
s_add_u32 s{sTMP+6}, s{sTMP+6}, s{sTMP+1}
s_add_u32 s{sTMP+6}, s{sTMP+6}, {base}
v_add_u32 v13, s{sTMP+6}, v11
""")
        for q in range(4):
            for hf in range(2):
                a.e(f"ds_write_b128 v12, {vr(ACC+8*q+4*hf,4)} offset:{q*8192 + hf*1024}")
        a.e("s_waitcnt lgkmcnt(0)\ns_barrier")
        for src in range(4):
            for hf in range(2):
                a.e(f"ds_read_b128 {vr(ACC+8*src+4*hf,4)}, v13 offset:{src*2048 + hf*1024}")
        a.e("s_waitcnt lgkmcnt(0)")
        for r in range(8):
            a.e(f"v_add_f32 v{ACC+r}, v{ACC+r}, v{ACC+8+r}\nv_add_f32 v{ACC+16+r}, v{ACC+16+r}, v{ACC+24+r}")
        for r in range(8):
            a.e(f"v_add_f32 v{dst+r}, v{ACC+r}, v{ACC+16+r}")

    def phase3(self):
        a = self.a
        a.e(f"""
s_lshr_b32 s{sTMP+3}, s{sJ}, 3
s_lshl_b32 s{sTMP+3}, s{sTMP+3}, 1
s_and_b32 s{sTMP+1}, s{sW}, 1
s_add_u32 s{sTMP+3}, s{sTMP+3}, s{sTMP+1}
s_lshr_b32 s{sTMP+5}, s{sW}, 1
s_and_b32 s{sTMP+7}, s{sTMP+5}, 1
s_lshl_b32 s{sTMP}, s{sRB}, 9
s_lshl_b32 s{sTMP+1}, s{sTMP+3}, 2
s_add_u32 s{sTMP}, s{sTMP}, s{sTMP+1}
s_lshl_b32 s{sTMP+1}, s{sTMP+5}, 7
s_add_u32 s89, s{sTMP}, s{sTMP+1}
s_lshl_b32 s{sTMP+1}, s{sTMP+7}, 8
s_add_u32 s{sTMP}, s{sTMP}, s{sTMP+1}
s_add_u32 s{sTMP}, s{sTMP}, {FL_O}
v_and_b32 v14, 3, v1
v_lshlrev_b32 v14, 5, v14
v_bfe_u32 v15, v1, 2, 1
v_lshl_add_u32 v153, v15, 4, v14
v_and_b32 v14, 7, v1
v_lshlrev_b32 v14, 5, v14
v_bfe_u32 v15, v1, 3, 1
v_lshl_add_u32 v14, v15, 4, v14
s_lshl_b32 s88, s{sRB}, 2
s_add_u32 s88, s88, s{sTMP+3}
s_lshl_b32 s{sTMP+2}, s88, 15
s_lshl_b32 s{sTMP+1}, s{sTMP+7}, 14
s_add_u32 s{sTMP+2}, s{sTMP+2}, s{sTMP+1}
s_add_u32 s{sTMP+2}, s{sTMP+2}, {OBUF}
""")
        self.tr64_bases(154)
        a.e(f"""
s_cmp_ge_u32 s{sW}, 4
s_cselect_b64 vcc, -1, 0
v_cndmask_b32 v4, v154, v155, vcc
s_lshl_b32 s{sTMP+1}, s{sTMP+7}, 15
s_add_u32 s{sTMP+1}, s{sTMP+1}, {L_WO}
v_add_u32 v4, s{sTMP+1}, v4
v_and_b32 v12, 31, v1
v_lshlrev_b32 v12, 10, v12
v_lshrrev_b32 v13, 5, v1
v_lshl_add_u32 v151, v13, 4, v12
s_lshl_b32 s80, s88, 15
s_and_b32 s{sTMP+6}, s{sJ}, 7
s_lshl_b32 s{sTMP+6}, s{sTMP+6}, 7
s_add_u32 s80, s80, s{sTMP+6}
s_lshl_b32 s{sTMP+1}, s{sTMP+5}, 5
s_add_u32 s80, s80, s{sTMP+1}
v_lshlrev_b32 v12, 11, v3
v_and_b32 v13, 15, v1
v_lshl_add_u32 v12, v13, 4, v12
s_lshl_b32 s{sTMP+6}, s{sTMP+6}, 1
s_add_u32 s{sTMP+6}, s{sTMP+6}, {MODG}
""")
        XR = 124
        a.e(f"buffer_load_dwordx4 v[{XR}:{XR+3}], v151, s[{S_X}:{S_X+3}], s80 offen")
        Lt = a.label("Ltab")
        L = a.label("T")
        Lo = a.label("To")
        a.e(f"s_cmp_lg_u32 s{sW}, 2\ns_cbranch_scc1 {Lt}\ns_mov_b32 s{sTMP+11}, 0\n{L}:")
        self.nocount(f"buffer_load_dwordx4 v[96:99], v12, {WS}, s{sTMP+6} offen sc1")
        a.e(f"""
s_add_u32 s{sTMP+11}, s{sTMP+11}, 1
s_cmp_gt_u32 s{sTMP+11}, 400000
s_cbranch_scc1 {Lo}
s_waitcnt vmcnt(0)
v_xor_b32 v100, s{sTAG}, v97
v_xor_b32 v101, s{sTAG}, v99
v_or_b32 v100, v100, v101
v_cmp_ne_u32 vcc, 0, v100
s_cbranch_vccnz {L}
{Lo}:
s_waitcnt vmcnt(0)
v_and_b32 v97, 0xffff0000, v96
v_lshlrev_b32 v96, 16, v96
v_and_b32 v99, 0xffff0000, v98
v_lshlrev_b32 v98, 16, v98
v_add_u32 v12, {L_TAB}, v11
""")
        self.nocount("ds_write_b128 v12, v[96:99]")
        a.e(f"{Lt}:")
        ACC = 16
        BF = [32, 36, 40]
        AF = lambda s: ar(4 * s, 4)

        def R(s):
            return [f"ds_read_b64_tr_b16 {vr(BF[s%3]+2*i,2)}, v4 offset:{(16*s+4*i)*128}" for i in range(2)]

        a.e("s_waitcnt lgkmcnt(0)")
        toks = {}
        for s in range(2):
            a.e("\n".join(R(s)))
            toks[s] = a.lg_tok()
        self.poll(14, f"s{sTMP}", 15)
        self.stamp(7)
        vt = {}
        for s in range(16):
            if s % 4 == 0 and s:
                a.e(f"s_add_u32 s{sTMP+2}, s{sTMP+2}, 4096")
            a.e(f"buffer_load_dwordx4 {AF(s)}, v11, {WS}, s{sTMP+2} offen offset:{(s%4)*1024}")
            vt[s] = a.vm_tok()
        for s in range(16):
            a.wait_lg(toks[s])
            a.wait_vm(vt[s])
            a.e(f"v_mfma_f32_32x32x16_bf16 {vr(ACC,16)}, {vr(BF[s%3],4)}, {AF(s)}, {'0' if s == 0 else vr(ACC,16)}")
            if s + 2 < 16:
                a.e("\n".join(R(s + 2)))
                toks[s + 2] = a.lg_tok()
        self.stamp(18)
        a.e(f"""
s_and_b32 s{sTMP+1}, s{sW}, 1
s_lshl_b32 s{sTMP+1}, s{sTMP+1}, 14
s_lshl_b32 s{sTMP+6}, s{sWH}, 13
s_add_u32 s{sTMP+1}, s{sTMP+1}, s{sTMP+6}
s_add_u32 s{sTMP+1}, s{sTMP+1}, {L_RED}
s_lshl_b32 s{sTMP+6}, s{sTMP+7}, 11
s_add_u32 s{sTMP+6}, s{sTMP+6}, s{sTMP+1}
v_add_u32 v12, s{sTMP+6}, v11
s_lshl_b32 s{sTMP+6}, s{sTMP+7}, 12
s_add_u32 s{sTMP+6}, s{sTMP+6}, s{sTMP+1}
v_add_u32 v13, s{sTMP+6}, v11
""")
        for q in range(2):
            for hf in range(2):
                a.e(f"ds_write_b128 v12, {vr(ACC+8*q+4*hf,4)} offset:{q*4096 + hf*1024}")
        a.e("s_waitcnt lgkmcnt(0)\ns_barrier")
        self.stamp(19)
        for src in range(2):
            for hf in range(2):
                a.e(f"ds_read_b128 {vr(ACC+8*src+4*hf,4)}, v13 offset:{src*2048 + hf*1024}")
        GA, SBv, G2 = 56, 64, 72
        a.e(f"""
v_lshrrev_b32 v13, 5, v1
v_lshlrev_b32 v13, 5, v13
s_lshl_b32 s{sTMP+5}, s{sTMP+5}, 6
s_add_u32 s{sTMP+5}, s{sTMP+5}, {L_TAB}
v_add_u32 v13, s{sTMP+5}, v13
ds_read_b128 {vr(GA,4)}, v13
ds_read_b128 {vr(GA+4,4)}, v13 offset:16
ds_read_b128 {vr(SBv,4)}, v13 offset:256
ds_read_b128 {vr(SBv+4,4)}, v13 offset:272
ds_read_b128 {vr(G2,4)}, v13 offset:512
ds_read_b128 {vr(G2+4,4)}, v13 offset:528
ds_read_b128 a[88:91], v13 offset:768
ds_read_b128 a[92:95], v13 offset:784
""")
        X1 = 96
        X1P = 132
        for q in range(4):
            a.e(f"v_lshlrev_b32 v{X1+2*q}, 16, v{XR+q}\nv_and_b32 v{X1+1+2*q}, 0xffff0000, v{XR+q}")
        a.e("s_waitcnt lgkmcnt(6)")
        for r in range(8):
            a.e(f"v_add_f32 v{ACC+r}, v{ACC+r}, v{ACC+8+r}")
        for r in range(8):
            a.e(f"v_fmac_f32 v{X1+r}, v{GA+r}, v{ACC+r}")
        for q in range(4):
            a.e(f"v_cvt_pk_bf16_f32 v{X1P+q}, v{X1+2*q}, v{X1+1+2*q}")
        for q in range(4):
            a.e(f"v_lshlrev_b32 v{X1+2*q}, 16, v{X1P+q}\nv_and_b32 v{X1+1+2*q}, 0xffff0000, v{X1P+q}")
        a.e(f"v_add_f32 v16, v{X1}, v{X1+1}\nv_mul_f32 v17, v{X1}, v{X1}")
        for r in range(2, 8):
            a.e(f"v_add_f32 v16, v16, v{X1+r}")
        for r in range(1, 8):
            a.e(f"v_fmac_f32 v17, v{X1+r}, v{X1+r}")
        self.group_allsum([16, 17], [20, 21], stages=("32",))
        a.e(f"""
v_and_b32 v12, 31, v1
v_lshlrev_b32 v12, 5, v12
s_and_b32 s{sTMP+1}, s{sW}, 1
s_lshl_b32 s{sTMP+1}, s{sTMP+1}, 10
s_add_u32 s{sTMP+1}, s{sTMP+1}, {L_ST}
v_add_u32 v12, s{sTMP+1}, v12
s_lshr_b32 s{sTMP+5}, s{sW}, 1
s_lshl_b32 s{sTMP+5}, s{sTMP+5}, 3
v_add_u32 v13, s{sTMP+5}, v12
ds_write_b64 v13, v[16:17]
s_waitcnt lgkmcnt(0)
s_barrier
""")
        if self.dump:
            a.e(f"s_add_u32 s{sTMP+7}, s80, {X1DBG}")
            self.nocount(f"buffer_store_dwordx4 v[{X1P}:{X1P+3}], v151, {WS}, s{sTMP+7} offen")
        self.stamp(20)
        L_j = a.label("Lp3j")
        a.e(f"s_cmp_ge_u32 s{sW}, 2\ns_cbranch_scc1 {L_j}")
        v0_, l0_ = a.vm_issued, a.lg_issued
        a.e(f"""
ds_read_b128 v[20:23], v12
ds_read_b128 v[24:27], v12 offset:16
v_mov_b32 v18, s{sTAG}
v_mov_b32 v19, s{sTAG}
v_and_b32 v13, 31, v1
v_lshlrev_b32 v13, 7, v13
s_lshl_b32 s{sTMP+5}, s88, 12
s_add_u32 s{sTMP+5}, s{sTMP+5}, {SGRAN}
s_and_b32 s{sTMP+6}, s{sJ}, 7
s_lshl_b32 s{sTMP+6}, s{sTMP+6}, 4
s_add_u32 s{sTMP+6}, s{sTMP+6}, s{sTMP+5}
v_lshrrev_b32 v2, 5, v1
v_lshl_add_u32 v2, v2, 6, v13
s_waitcnt lgkmcnt(0)
v_add_f32 v16, v20, v22
v_add_f32 v17, v21, v23
v_add_f32 v24, v24, v26
v_add_f32 v25, v25, v27
v_add_f32 v16, v16, v24
v_add_f32 v17, v17, v25
""")
        self.store_sel(f"s_mov_b32 exec_hi, 0\nbuffer_store_dwordx4 v[16:19], v13, {WS}, s{sTMP+6} offen\ns_mov_b64 exec, -1")
        L = a.label("SG")
        Lo = a.label("SGo")
        a.e(f"s_mov_b32 s{sTMP+11}, 0\n{L}:")
        self.nocount("\n".join(f"buffer_load_dwordx4 v[{20+4*q}:{23+4*q}], v2, {WS}, s{sTMP+5} offen offset:{16*q} sc1" for q in range(4)))
        a.e(f"""
s_add_u32 s{sTMP+11}, s{sTMP+11}, 1
s_cmp_gt_u32 s{sTMP+11}, 400000
s_cbranch_scc1 {Lo}
s_waitcnt vmcnt(0)
v_xor_b32 v36, s{sTAG}, v22
v_xor_b32 v37, s{sTAG}, v26
v_or_b32 v36, v36, v37
v_xor_b32 v37, s{sTAG}, v30
v_or_b32 v36, v36, v37
v_xor_b32 v37, s{sTAG}, v34
v_or_b32 v36, v36, v37
v_cmp_ne_u32 vcc, 0, v36
s_cbranch_vccnz {L}
{Lo}:
s_waitcnt vmcnt(0)
v_add_f32 v16, v20, v24
v_add_f32 v17, v21, v25
v_add_f32 v28, v28, v32
v_add_f32 v29, v29, v33
v_add_f32 v16, v16, v28
v_add_f32 v17, v17, v29
""")
        self.group_allsum([16, 17], [20, 21], stages=("32",))
        a.e(f"""
v_mul_f32 v16, {f2u(1/512):#x}, v16
v_mul_f32 v17, {f2u(1/512):#x}, v17
v_fma_f32 v17, -v16, v16, v17
v_max_f32 v17, 0, v17
v_add_f32 v17, {f2u(1e-5):#x}, v17
v_rsq_f32 v18, v17
v_mul_f32 v19, v16, v18
v_sub_f32 v19, 0, v19
ds_write_b64 v12, v[18:19] offset:2048
s_waitcnt lgkmcnt(0)
""")
        self.stamp(21)
        a.vm_issued, a.lg_issued = v0_, l0_
        a.e(f"{L_j}:")
        a.e(f"""
s_lshl_b32 s{sTMP+5}, s88, 15
s_and_b32 s{sTMP+6}, s{sJ}, 7
s_lshl_b32 s{sTMP+6}, s{sTMP+6}, 12
s_add_u32 s{sTMP+5}, s{sTMP+5}, s{sTMP+6}
s_lshr_b32 s{sTMP+6}, s{sW}, 1
s_lshl_b32 s{sTMP+6}, s{sTMP+6}, 10
s_add_u32 s{sTMP+5}, s{sTMP+5}, s{sTMP+6}
s_add_u32 s{sTMP+5}, s{sTMP+5}, {H2BUF}
s_lshl_b32 s{sTMP+6}, s{sP}, 5
s_lshl_b32 s{sTMP+7}, s{sW}, 2
s_add_u32 s{sTMP+6}, s{sTMP+6}, s{sTMP+7}
s_add_u32 s{sTMP+6}, s{sTMP+6}, {FL_H2}
v_mov_b32 v14, s{sTAG}
v_mov_b32 v15, 0
s_barrier
ds_read_b64 v[18:19], v12 offset:2048
s_waitcnt lgkmcnt(0)
""")
        for r in range(8):
            a.e(f"v_fma_f32 v{X1+r}, v{X1+r}, v18, v19")
        for q in range(4):
            a.e(f"v_cvt_pk_bf16_f32 v{32+q}, v{X1+2*q}, v{X1+1+2*q}")
        for q in range(4):
            a.e(f"v_lshlrev_b32 v{X1+2*q}, 16, v{32+q}\nv_and_b32 v{X1+1+2*q}, 0xffff0000, v{32+q}")
        for r in range(8):
            a.e(f"v_fma_f32 v{X1+r}, v{X1+r}, v{G2+r}, v{SBv+r}")
        for q in range(4):
            a.e(f"v_cvt_pk_bf16_f32 v{32+q}, v{X1+2*q}, v{X1+1+2*q}")
        self.store_sel(f"buffer_store_dwordx4 v[32:35], v11, {WS}, s{sTMP+5} offen\n" + self.flag_seq(f"s{sTMP+6}"))
        self.stamp(8)

    def d_dma_setup(self):
        a = self.a
        self.w64_lane(12)
        a.e(f"""
v_mov_b32 v152, v12
s_and_b32 s81, s{sJ}, 7
s_lshl_b32 s81, s81, 7
s_lshl_b32 s83, s{sW}, 13
s_add_u32 s81, s81, s83
s_lshl_b32 s82, s{sW}, 10
""")

    def d_dma(self, c):
        return [f"s_add_u32 m0, s82, {D_SLOT[c%4] + q*8192}\ns_add_u32 s83, s81, {(448*q + 64*c)*1024}\n"
                f"buffer_load_dwordx4 v152, s[{S_WD}:{S_WD+3}], s83 offen{NTD} lds" for q in range(4)]

    def phase4(self):
        a = self.a
        self.d_dma_setup()
        a.e(f"""
s_lshl_b32 s{sTMP}, s{sRB}, 9
s_lshr_b32 s{sTMP+1}, s{sW3}, 1
s_lshl_b32 s{sTMP+1}, s{sTMP+1}, 8
s_add_u32 s{sTMP}, s{sTMP}, s{sTMP+1}
s_and_b32 s{sTMP+1}, s{sW3}, 1
s_lshl_b32 s{sTMP+1}, s{sTMP+1}, 2
s_add_u32 s{sTMP}, s{sTMP}, s{sTMP+1}
s_add_u32 s{sTMP}, s{sTMP}, {FL_H2}
v_and_b32 v14, 7, v1
v_lshlrev_b32 v14, 5, v14
v_bfe_u32 v15, v1, 3, 2
v_lshl_add_u32 v14, v15, 3, v14
s_lshl_b32 s{sTMP+2}, s{sRB}, 2
s_add_u32 s{sTMP+2}, s{sTMP+2}, s{sW3}
s_lshl_b32 s{sTMP+2}, s{sTMP+2}, 15
s_add_u32 s{sTMP+2}, s{sTMP+2}, {H2BUF}
v_lshrrev_b32 v8, 5, v1
v_bfe_u32 v9, v1, 2, 2
v_lshl_add_u32 v9, v8, 3, v9
v_mul_u32_u24 v7, 224, v9
v_bfe_u32 v9, v1, 4, 1
v_mul_u32_u24 v9, {GU_UP}, v9
v_add_u32 v7, v7, v9
v_and_b32 v9, 1, v1
v_lshl_add_u32 v7, v9, 4, v7
v_bfe_u32 v9, v1, 1, 1
v_lshl_add_u32 v7, v9, 3, v7
v_add_u32 v4, {GU_SLOT[0]}, v7
v_add_u32 v5, {GU_SLOT[1]}, v7
v_add_u32 v6, {GU_SLOT[2]}, v7
s_barrier
""")
        ACC = [16 + 16 * T for T in range(7)]
        BF = [0, 28]
        NA = 8
        PD = 6
        slot = lambda i: ar(56 + 4 * (i % NA), 4)

        def body(kp):
            def aload(i):
                s_ = 2 * i + kp
                out = []
                if i % 2 == 0 and i > 0:
                    out.append(f"s_add_u32 s{sTMP+2}, s{sTMP+2}, 4096")
                out.append(f"buffer_load_dwordx4 {slot(i)}, v11, {WS}, s{sTMP+2} offen offset:{(s_%4)*1024} sc1")
                return out

            def R(i):
                s_ = 2 * i + kp
                c, sl = s_ // 4, s_ % 4
                return [f"ds_read_b64_tr_b16 {ar(BF[i%2]+4*T+2*ii,2)}, v{4 + c%4} offset:{(16*sl+4*ii)*224 + T*32}" for T in range(7) for ii in range(2)]

            def M(i):
                return [f"v_mfma_f32_32x32x16_bf16 {vr(ACC[T],16)}, {ar(BF[i%2]+4*T,4)}, {slot(i)}, {'0' if i == 0 else vr(ACC[T],16)}" for T in range(7)]
            toks = {}
            a.e("\n".join(R(0)))
            toks[0] = a.lg_tok()
            self.poll(14, f"s{sTMP}", 15)
            self.stamp(9)
            vt = {}
            for i in range(PD):
                a.e("\n".join(aload(i)))
                vt[i] = a.vm_tok()
            gtok = {}
            mine = lambda c: (c & 1) != kp
            pend = []
            for g in self.gu_dma(1 if mine(1) else 2):
                a.e(g)
            gtok[1 if mine(1) else 2] = a.vm_tok()
            if mine(3):
                pend += [(3, g) for g in self.gu_dma(3)]
            for i in range(16):
                c = i // 2
                a.wait_lg(toks[i])
                if i % 2 == 1 and c + 1 < 8:
                    if mine(c + 1):
                        assert (c + 1) in gtok and not any(p[0] == c + 1 for p in pend)
                        a.wait_vm(gtok[c + 1])
                    a.e("s_barrier")
                    if c + 4 < 8 and mine(c + 4):
                        pend += [(c + 4, g) for g in self.gu_dma(c + 4)]
                    if c == 6:
                        pend += [(100, g) for g in self.d_dma(0)]
                    if c == 4 and "nodt" not in EXP:
                        pend += [(101, f"s_mul_i32 s92, s{sT}, 57344\ns_lshl_b32 s93, s{sW}, 13\ns_add_u32 s92, s92, s93\n"
                                       f"buffer_load_dword v2, v10, s[{S_WD}:{S_WD+3}], s92 offen")]
                r = R(i + 1) if i < 15 else []
                a.wait_vm(vt[i])
                extra = []
                if i + PD < 16:
                    extra.append(("a", i + PD))
                for _ in range(3):
                    if pend:
                        extra.append(("d", pend.pop(0)))
                m = M(i)
                seq = interleave(m, r)
                pos = [k for k, x in enumerate(seq) if x.startswith("v_mfma")]
                ins_at = {pos[min(2 * n + 1, len(pos) - 1)]: e for n, e in enumerate(extra)}
                for k, x in enumerate(seq):
                    a.e(x)
                    if k in ins_at:
                        kind, val = ins_at[k]
                        if kind == "a":
                            a.e("\n".join(aload(val)))
                            vt[val] = a.vm_tok()
                        else:
                            a.e(val[1])
                            gtok[val[0]] = a.vm_tok()
                if r:
                    toks[i + 1] = a.lg_tok()
            assert not pend
            self.stamp(17)
            keep = [0, 1, 2, 3] if kp == 0 else [4, 5, 6]
            give = [4, 5, 6] if kp == 0 else [0, 1, 2, 3]
            wbase, wstr = (L_XB, 12288) if kp == 0 else (L_XA, 16384)
            rbase, rstr = (L_XA, 16384) if kp == 0 else (L_XB, 12288)
            a.e(f"""
s_mul_i32 s{sTMP+5}, s{sW3}, {wstr}
s_add_u32 s{sTMP+5}, s{sTMP+5}, {wbase}
v_add_u32 v12, s{sTMP+5}, v11
s_mul_i32 s{sTMP+5}, s{sW3}, {rstr}
s_add_u32 s{sTMP+5}, s{sTMP+5}, {rbase}
v_add_u32 v13, s{sTMP+5}, v11
s_barrier
""")
            for n, T in enumerate(give):
                for q in range(4):
                    a.e(f"ds_write_b128 v12, {vr(ACC[T]+4*q,4)} offset:{n*4096 + q*1024}")
            K0 = -2.0 * 0.7978845608028654 * LOG2E
            K1 = K0 * 0.044715
            a.e(f"s_mov_b32 s{sTMP+4}, {f2u(K1):#x}\nv_mov_b32 v6, {f2u(K0):#x}")
            a.e(f"""
s_lshl_b32 s{sTMP+5}, s{sRB}, 2
s_add_u32 s{sTMP+5}, s{sTMP+5}, s{sW3}
s_mul_i32 s{sTMP+5}, s{sTMP+5}, {112*1024}
s_mul_i32 s{sTMP+6}, s{sJ}, {7*1024}
s_add_u32 s{sTMP+5}, s{sTMP+5}, s{sTMP+6}
s_lshl_b32 s{sTMP+6}, s{sWH}, 12
s_add_u32 s{sTMP+5}, s{sTMP+5}, s{sTMP+6}
s_add_u32 s{sTMP+5}, s{sTMP+5}, {ACT}
s_lshl_b32 s{sTMP+6}, s{sP}, 5
s_lshl_b32 s{sTMP+7}, s{sW}, 2
s_add_u32 s{sTMP+6}, s{sTMP+6}, s{sTMP+7}
s_add_u32 s{sTMP+6}, s{sTMP+6}, {FL_ACT}
v_mov_b32 v14, s{sTAG}
v_mov_b32 v15, 0
s_waitcnt lgkmcnt(0)
s_barrier
""")
            land = give + ([give[0]] if len(keep) > len(give) else [])
            rt = {}
            for n, T in enumerate(keep[:len(give)]):
                for q in range(4):
                    a.e(f"ds_read_b128 {vr(ACC[land[n]]+4*q,4)}, v13 offset:{n*4096 + q*1024}")
                rt[n] = a.lg_tok()
            PKo = 128
            outs = []
            for n, T in enumerate(keep):
                g = ACC[T]
                if n >= len(give):
                    for q in range(4):
                        a.e(f"ds_read_b128 {vr(ACC[land[n]]+4*q,4)}, v13 offset:{n*4096 + q*1024}")
                    rt[n] = a.lg_tok()
                a.wait_lg(rt[n])
                p = ACC[land[n]]
                for r in range(16):
                    a.e(f"v_add_f32 v{g+r}, v{g+r}, v{p+r}")
                t = p
                for r in range(8):
                    a.e(f"v_mul_f32 v{t+r}, v{g+r}, v{g+r}")
                for r in range(8):
                    a.e(f"v_fma_f32 v{t+r}, v{t+r}, s{sTMP+4}, v6")
                for r in range(8):
                    a.e(f"v_mul_f32 v{t+r}, v{t+r}, v{g+r}")
                for r in range(8):
                    a.e(f"v_exp_f32 v{t+r}, v{t+r}")
                for r in range(8):
                    a.e(f"v_mul_f32 v{g+r}, v{g+r}, v{g+8+r}")
                for r in range(8):
                    a.e(f"v_add_f32 v{t+r}, 1.0, v{t+r}")
                for r in range(8):
                    a.e(f"v_rcp_f32 v{t+r}, v{t+r}")
                for r in range(8):
                    a.e(f"v_mul_f32 v{g+r}, v{g+r}, v{t+r}")
                for q in range(4):
                    a.e(f"v_cvt_pk_bf16_f32 v{g+8+q}, v{g+2*q}, v{g+2*q+1}")
                outs.append(g + 8)
            st = "\n".join(f"buffer_store_dwordx4 v[{o}:{o+3}], v11, {WS}, s{sTMP+5} offen offset:{1024*n}" for n, o in enumerate(outs))
            self.store_sel(st + "\n" + self.flag_seq(f"s{sTMP+6}"))

        L3 = a.label("Lgu3")
        Lj = a.label("Lguj")
        a.e(f"s_cmp_ge_u32 s{sW}, 4\ns_cbranch_scc1 {L3}")
        v0_, l0_ = a.vm_issued, a.lg_issued
        body(0)
        a.e(f"s_branch {Lj}\n{L3}:")
        a.vm_issued, a.lg_issued = v0_, l0_
        body(1)
        a.e(f"{Lj}:")
        self.stamp(10)

    def phase5(self):
        a = self.a
        a.e(f"""
s_add_u32 s{sTMP}, s89, {FL_ACT}
s_lshr_b32 s{sTMP+5}, s{sW}, 1
s_mul_i32 s{sTMP+2}, s88, {112*1024}
s_mul_i32 s{sTMP+1}, s{sTMP+5}, {28*1024}
s_add_u32 s{sTMP+2}, s{sTMP+2}, s{sTMP+1}
s_add_u32 s{sTMP+2}, s{sTMP+2}, {ACT}
s_lshl_b32 s{sTMP+1}, s{sTMP+5}, 13
v_add_u32 v154, s{sTMP+1}, v154
v_add_u32 v155, s{sTMP+1}, v155
""")
        for si in range(4):
            a.e(f"v_add_u32 v{140+2*si}, {D_SLOT[si]}, v154\nv_add_u32 v{141+2*si}, {D_SLOT[si]}, v155")
        ACC = 16
        BF = [48, 56]
        NA = 20
        PD = int(os.environ.get("DPD", "16"))
        DV = os.environ.get("DV", "c")
        AF = lambda s: ar(4 * (s % NA), 4)

        def R(s):
            c, sl = s // 4, s % 4
            return [f"ds_read_b64_tr_b16 {vr(BF[s%2]+4*t+2*i,2)}, v{140+2*(c%4)+t} offset:{(16*sl+4*i)*128}" for t in range(2) for i in range(2)]

        def M(s):
            return [f"v_mfma_f32_32x32x16_bf16 {vr(ACC+16*t,16)}, {vr(BF[s%2]+4*t,4)}, {AF(s)}, {'0' if s == 0 else vr(ACC+16*t,16)}" for t in range(2)]

        def aload(s):
            out = []
            if s % 4 == 0 and s > 0:
                out.append(f"s_add_u32 s{sTMP+2}, s{sTMP+2}, 4096")
            out.append(f"buffer_load_dwordx4 {AF(s)}, v11, {WS}, s{sTMP+2} offen offset:{(s%4)*1024} " + ("" if "dplain" in EXP else "sc1"))
            return out

        a.e("s_barrier")
        if DV == "c":
            for c_ in (1, 2, 3):
                a.e("\n".join(self.d_dma(c_)))
        a.e("\n".join(R(0)))
        toks = {0: a.lg_tok()}
        self.poll(153, f"s{sTMP}", 15)
        self.stamp(11)
        vt = {}
        dtok = {}
        pend = []
        if DV == "a":
            for s in range(PD):
                a.e("\n".join(aload(s)))
                vt[s] = a.vm_tok()
                if s in (3, 7, 11):
                    a.e("\n".join(self.d_dma(1 + s // 4)))
                    dtok[1 + s // 4] = a.vm_tok()
        elif DV == "c":
            for s in range(PD):
                a.e("\n".join(aload(s)))
                vt[s] = a.vm_tok()
            for c_ in (1, 2, 3):
                dtok[c_] = a.vm_tok() - PD
        else:
            for s in range(PD):
                a.e("\n".join(aload(s)))
                vt[s] = a.vm_tok()
                if s == 3:
                    a.e("\n".join(self.d_dma(1)))
                    dtok[1] = a.vm_tok()
            pend += [(2, g) for g in self.d_dma(2)] + [(3, g) for g in self.d_dma(3)]
        for s in range(28):
            c, sl = s // 4, s % 4
            a.wait_lg(toks[s])
            if sl == 3 and c + 1 < 7:
                if c + 1 >= 1:
                    a.wait_vm(dtok[c + 1])
                a.e("s_barrier")
                if "fined" in EXP:
                    self.stamp(13 + c)
                if c + 4 < 7:
                    pend += [(c + 4, g) for g in self.d_dma(c + 4)]
            r = R(s + 1) if s < 27 else []
            a.wait_vm(vt[s])
            a.e("\n".join(interleave(M(s), r)))
            if r:
                toks[s + 1] = a.lg_tok()
            if s + PD < 28:
                a.e("\n".join(aload(s + PD)))
                vt[s + PD] = a.vm_tok()
            for _ in range(2 if DV != "a" else 1):
                if pend:
                    cc, g = pend.pop(0)
                    a.e(g)
                    dtok[cc] = a.vm_tok()
        self.stamp(25)
        a.e("s_barrier")
        AO = 48
        self.reduce_scatter4(ACC, L_RED2, AO)
        X1P = 132
        for q in range(4):
            a.e(f"v_lshlrev_b32 v{64+2*q}, 16, v{X1P+q}\nv_and_b32 v{65+2*q}, 0xffff0000, v{X1P+q}")
        for r in range(8):
            a.e(f"v_accvgpr_read_b32 v{56+r}, a{88+r}")
        for r in range(8):
            a.e(f"v_fmac_f32 v{64+r}, v{56+r}, v{AO+r}")
        for q in range(4):
            a.e(f"v_cvt_pk_bf16_f32 v{32+q}, v{64+2*q}, v{65+2*q}")
        a.e(f"buffer_store_dwordx4 v[32:35], v151, s[{S_OUT}:{S_OUT+3}], s80 offen")
        self.stamp(12)

    def finish(self):
        a = self.a
        Lx = a.label("Lfin")
        a.e(f"s_cmp_lg_u32 s2, 0\ns_cbranch_scc1 {Lx}\ns_cmp_lg_u32 s{sW}, 4\ns_cbranch_scc1 {Lx}")
        for q in range(4):
            a.e(f"v_lshlrev_b32 v12, 3, v1\nv_add_u32 v12, {4 + 512*q}, v12\ns_mov_b32 s{sTMP}, {XID}")
            self.poll(12, f"s{sTMP}", 13)
        a.e(f"v_mov_b32 v14, s{sTAG}\nv_mov_b32 v15, 0\ns_mov_b64 exec, 1")
        self.nocount(f"buffer_store_dword v14, v15, {WS}, 0 offen offset:{EPOCH} sc1")
        a.e(f"{Lx}:")
        a.e("L_END:\ns_endpgm\nL_CODE_END:")

    def build(self):
        ph = [self.phase0, self.phase1, self.phase2, self.phase3, self.phase4, self.phase5]
        for i, p in enumerate(ph):
            if i <= self.stop_after:
                p()
        self.finish()
        body = self.a.finalize()
        hdr = open("adaLN_cond__sliding_block__geglu_ffn__prompt.s.ref").read().split("; Override launch")[0]
        src = hdr + f"; @launch grid=(256,1,1) block=(512,1,1) lds={LDS_BYTES}\n" + HEADER.format(name=NAME) + body + \
            FOOTER.format(name=NAME, nvgpr=256, nsgpr=102, accum=160)
        return src


if __name__ == "__main__":
    import argparse
    ap = argparse.ArgumentParser()
    ap.add_argument("-o", default="k.s")
    ap.add_argument("--stamps", action="store_true")
    ap.add_argument("--dump", action="store_true")
    ap.add_argument("--stop", type=int, default=99)
    args = ap.parse_args()
    g = Gen(stop_after=args.stop, stamps=args.stamps, dump=args.dump)
    src = g.build()
    open(args.o, "w").write(src)
    print("wrote", args.o, len(src), "bytes; nops", g.a.nops)
```

```python
import sys, os, struct
sys.path.insert(0, "dev")
from asmlib import *

NAME = "adaLN_cond__sliding_block__geglu_ffn__prompt_kernel"
EXP = os.environ.get("EXP", "").split(",")

EPOCH = 0x0
XID = 0x1000
MODA = 0x2000
MODB = 0xA000
MODG = 0x12000
FL_KV = 0x20000
FL_O = 0x24000
FL_H2 = 0x26000
FL_H1 = 0x22000
FL_ACT = 0x28000
STAMP = 0x2800000
KVX = 0x100000
OBUF = 0x500000
H2BUF = 0x700000
SGRAN = 0x900000
ACT = 0xA00000
H1BUF = 0x1200000
DBG0 = 0x2000000
X1DBG = 0x2400000

S_X, S_WQKV, S_WO, S_WG, S_WU, S_WD, S_C, S_WM, S_OUT, S_WS = 8, 12, 16, 20, 24, 28, 32, 36, 40, 44
sX, sT, sRB, sJ, sW, sTAG, sXCC, sPURE, sP = 48, 49, 50, 51, 52, 53, 54, 55, 56
sW3, sWH, sIMIN = 57, 58, 59
sTMP = 60
S_SEL = 72
sMASK = 60

L_WQKV = 0
L_WO = 96 * 1024
L_K = 0
L_V = 24 * 1024
L_QX = 48 * 1024
L_SCR = 52 * 1024
L_RED = 0
L_TAB = 32 * 1024
L_ST = 33 * 1024
GU_SLOT = [57344, 98304, 127104, 0]
GU_UP = 14464
D_SLOT = [127104, 0, 32768, 65536]
L_RED2 = 0
L_GATE = 32760
L_XA = 0
L_XB = 65536
LDS_BYTES = 160 * 1024

PSLEEP = int(os.environ.get("PSLEEP", "2"))
MSLEEP = int(os.environ.get("MSLEEP", "6"))
NTG = " nt" if "ntg" in EXP else ""
NTD = " nt" if "ntd" in EXP else ""
LOG2E = 1.4426950408889634
QSCALE = 0.25 * LOG2E
NEG_BIG = 0xf149f2ca


def f2u(x):
    return struct.unpack("<I", struct.pack("<f", x))[0]


WS = f"s[{S_WS}:{S_WS+3}]"


class Gen:
    def __init__(self, stop_after=99, stamps=False, dump=False):
        self.a = Asm()
        self.stop_after = stop_after
        self.stamps = stamps
        self.dump = dump

    def nocount(self, text):
        a = self.a
        v, l = a.vm_issued, a.lg_issued
        a.e(text)
        a.vm_issued, a.lg_issued = v, l

    def stamp(self, idx):
        if not self.stamps:
            return
        a = self.a
        idx += 1
        v_, l_ = a.vm_issued, a.lg_issued
        a.e(f"s_memrealtime s[96:97]\ns_memtime s[94:95]\ns_waitcnt lgkmcnt(0)")
        a.e(f"v_mov_b32 v159, 0\ns_lshl_b32 s98, s2, 11\ns_lshl_b32 s99, s{sW}, 8\ns_add_u32 s98, s98, s99\ns_add_u32 s98, s98, {STAMP}")
        if idx == 2:
            a.e(f"v_mov_b32 v158, s100\nbuffer_store_dword v158, v159, {WS}, s98 offen")
        a.e(f"v_mov_b32 v158, s96\nbuffer_store_dword v158, v159, {WS}, s98 offen offset:{idx*4}")
        a.e(f"v_mov_b32 v158, s94\nbuffer_store_dword v158, v159, {WS}, s98 offen offset:{128+idx*4}")
        a.vm_issued, a.lg_issued = v_, l_

    def poll(self, vaddr, soff, vdst, cnt=sTMP + 11):
        a = self.a
        L = a.label("P")
        Lo = a.label("Po")
        a.e(f"s_mov_b32 s{cnt}, 0\n{L}:")
        self.nocount(f"buffer_load_dword v{vdst}, v{vaddr}, {WS}, {soff} offen sc1")
        a.e(f"""
s_add_u32 s{cnt}, s{cnt}, 1
s_cmp_gt_u32 s{cnt}, 400000
s_cbranch_scc1 {Lo}
s_waitcnt vmcnt(0)
v_cmp_ne_u32 vcc, s{sTAG}, v{vdst}
s_cbranch_vccz {Lo}
s_sleep {PSLEEP}
s_branch {L}
{Lo}:
s_waitcnt vmcnt(0)
""")

    def store_sel(self, text):
        a = self.a
        Ls = a.label("Ssl")
        Le = a.label("Sen")
        lines = [l for l in text.strip().split("\n") if l.strip()]
        a.e(f"s_cmp_eq_u32 s{sPURE}, 0\ns_cbranch_scc1 {Ls}")
        a.e("\n".join(lines))
        a.e(f"s_branch {Le}\n{Ls}:")
        self.nocount("\n".join((l + " sc1") if l.strip().startswith("buffer_store") else l for l in lines))
        a.e(f"{Le}:")

    def flag_seq(self, soff, vt=14):
        return f"s_waitcnt vmcnt(0)\ns_mov_b64 exec, 1\nbuffer_store_dword v{vt}, v{vt+1}, {WS}, {soff} offen\ns_mov_b64 exec, -1"

    def purity(self, vt=30):
        a = self.a
        a.e(f"""
v_and_b32 v{vt}, 31, v1
v_lshlrev_b32 v{vt}, 3, v{vt}
s_lshl_b32 s{sTMP+10}, s{sX}, 8
s_add_u32 s{sTMP+10}, s{sTMP+10}, {XID}
buffer_load_dwordx2 v[{vt+2}:{vt+3}], v{vt}, {WS}, s{sTMP+10} offen sc1
s_waitcnt vmcnt(0)
v_xor_b32 v{vt}, s{sTAG}, v{vt+3}
v_xor_b32 v{vt+1}, s{sXCC}, v{vt+2}
v_or_b32 v{vt}, v{vt}, v{vt+1}
v_cmp_ne_u32 vcc, 0, v{vt}
s_cmp_eq_u64 vcc, 0
s_cselect_b32 s{sPURE}, 1, 0
""")

    def touch(self, srd, soff_base, nlines_per_wg, widx, nw, vdst, vaddr):
        a = self.a
        if "notouch" in EXP:
            return
        n = nlines_per_wg // 64
        per = (n + nw - 1) // nw
        a.e(f"s_lshl_b32 s{sTMP+9}, s{widx}, 13\ns_add_u32 s{sTMP+9}, s{sTMP+9}, s{soff_base}")
        for i in range(per):
            a.e(f"buffer_load_dword v{vdst}, v{vaddr}, s[{srd}:{srd+3}], s{sTMP+9} offen")
            if i < per - 1:
                a.e(f"s_add_u32 s{sTMP+9}, s{sTMP+9}, {nw*8192}")

    def silu_bf16(self, src_pk, n_pk, dst, tmp):
        a = self.a
        n = 2 * n_pk
        for d in range(n_pk):
            a.e(f"v_lshlrev_b32 v{dst+2*d}, 16, v{src_pk+d}\nv_and_b32 v{dst+2*d+1}, 0xffff0000, v{src_pk+d}")
        for i in range(n):
            a.e(f"v_mul_f32 v{tmp+i}, {f2u(-LOG2E):#x}, v{dst+i}")
        for i in range(n):
            a.e(f"v_exp_f32 v{tmp+i}, v{tmp+i}")
        for i in range(n):
            a.e(f"v_add_f32 v{tmp+i}, 1.0, v{tmp+i}")
        for i in range(n):
            a.e(f"v_rcp_f32 v{tmp+i}, v{tmp+i}")
        for i in range(n):
            a.e(f"v_mul_f32 v{dst+i}, v{dst+i}, v{tmp+i}")
        for d in range(n_pk):
            a.e(f"v_cvt_pk_bf16_f32 v{tmp+d}, v{dst+2*d}, v{dst+2*d+1}")
        for d in range(n_pk):
            a.e(f"v_lshlrev_b32 v{dst+2*d}, 16, v{tmp+d}\nv_and_b32 v{dst+2*d+1}, 0xffff0000, v{tmp+d}")

    def wave_allsum(self, regs, tmp):
        a = self.a
        for r in (1, 2, 4, 8):
            for x in regs:
                a.e(f"v_add_f32_dpp v{x}, v{x}, v{x} row_ror:{r} row_mask:0xf bank_mask:0xf")
        self.group_allsum(regs, tmp)

    def group_allsum(self, regs, tmp, op="v_add_f32", stages=("16", "32")):
        a = self.a
        for sw in stages:
            for x, t in zip(regs, tmp):
                a.e(f"v_mov_b32 v{t}, v{x}")
            for x, t in zip(regs, tmp):
                a.e(f"v_permlane{sw}_swap_b32 v{x}, v{t}")
            for x, t in zip(regs, tmp):
                a.e(f"{op} v{x}, v{x}, v{t}")

    def granule(self, lo, hi, s_one, dst):
        self.a.e(f"""
v_cvt_pk_bf16_f32 v{dst}, v{lo}, v{hi}
v_lshlrev_b32 v{lo}, 16, v{dst}
v_and_b32 v{hi}, 0xffff0000, v{dst}
v_add_f32 v{lo}, s{s_one}, v{lo}
v_add_f32 v{hi}, s{s_one}, v{hi}
v_cvt_pk_bf16_f32 v{dst}, v{lo}, v{hi}
v_mov_b32 v{dst+1}, s{sTAG}
""")

    def reduce8_pairs(self, AC):
        self.a.e(f"""
v_permlane16_swap_b32 v{AC}, v{AC+2}
v_permlane16_swap_b32 v{AC+1}, v{AC+3}
v_permlane16_swap_b32 v{AC+4}, v{AC+6}
v_permlane16_swap_b32 v{AC+5}, v{AC+7}
v_add_f32 v{AC}, v{AC}, v{AC+2}
v_add_f32 v{AC+1}, v{AC+1}, v{AC+3}
v_add_f32 v{AC+4}, v{AC+4}, v{AC+6}
v_add_f32 v{AC+5}, v{AC+5}, v{AC+7}
v_permlane32_swap_b32 v{AC}, v{AC+4}
v_permlane32_swap_b32 v{AC+1}, v{AC+5}
v_add_f32 v{AC}, v{AC}, v{AC+4}
v_add_f32 v{AC+1}, v{AC+1}, v{AC+5}
""")

    def phase0(self):
        a = self.a
        a.e(f"""
s_cmp_ge_u32 s2, 256
s_cbranch_scc1 L_END
{"s_memrealtime s[100:101]" if self.stamps else ""}
s_load_dwordx2 s[{S_WS}:{S_WS+1}], s[0:1], 88
s_load_dwordx2 s[{S_WM}:{S_WM+1}], s[0:1], 64
s_load_dwordx2 s[{S_C}:{S_C+1}], s[0:1], 56
s_load_dwordx2 s[{S_X}:{S_X+1}], s[0:1], 0
s_load_dwordx2 s[{S_WQKV}:{S_WQKV+1}], s[0:1], 8
s_load_dwordx2 s[{S_WO}:{S_WO+1}], s[0:1], 16
s_load_dwordx2 s[{S_WG}:{S_WG+1}], s[0:1], 32
s_load_dwordx2 s[{S_WU}:{S_WU+1}], s[0:1], 40
s_load_dwordx2 s[{S_WD}:{S_WD+1}], s[0:1], 48
s_load_dwordx2 s[{S_OUT}:{S_OUT+1}], s[0:1], 72
s_getpc_b64 s[{sTMP}:{sTMP+1}]
L_PC:
s_and_b32 s{sX}, s2, 7
s_lshr_b32 s{sT}, s2, 3
s_lshl_b32 s{sTMP+2}, s{sT}, 11
v_lshlrev_b32 v2, 2, v0
v_add_u32 v2, s{sTMP+2}, v2
v_min_u32 v2, L_CODE_END-L_PC-4, v2
global_load_dword v4, v2, s[{sTMP}:{sTMP+1}]
s_getreg_b32 s{sXCC}, hwreg(HW_REG_XCC_ID)
s_and_b32 s{sXCC}, s{sXCC}, 15
s_lshr_b32 s{sTMP}, s{sT}, 4
s_lshl_b32 s{sRB}, s{sX}, 1
s_add_u32 s{sRB}, s{sRB}, s{sTMP}
s_and_b32 s{sJ}, s{sT}, 15
s_lshl_b32 s{sP}, s{sX}, 5
s_add_u32 s{sP}, s{sP}, s{sT}
v_and_b32 v1, 63, v0
v_lshrrev_b32 v2, 6, v0
v_lshrrev_b32 v3, 4, v1
v_readfirstlane_b32 s{sW}, v2
v_lshlrev_b32 v11, 4, v1
v_lshlrev_b32 v10, 7, v1
s_and_b32 s{sW3}, s{sW}, 3
s_lshr_b32 s{sWH}, s{sW}, 2
s_mov_b32 s{sPURE}, 0
""")
        sizes = {S_X: 2097152, S_WQKV: 1572864, S_WO: 524288, S_WG: 1835008, S_WU: 1835008, S_WD: 1835008, S_C: 1024,
                 S_WM: 3145728, S_OUT: 2097152, S_WS: 0x10000000}
        for s, sz in sizes.items():
            a.e(f"s_mov_b32 s{s+2}, {sz}\ns_mov_b32 s{s+3}, 0x20000")
        a.e("s_waitcnt lgkmcnt(0)")
        a.e(f"s_load_dword s{sTAG}, s[{S_WS}:{S_WS+1}], {EPOCH}")
        L_45 = a.label("Lw45")
        L_67 = a.label("Lw67")
        L_j = a.label("Lj0")
        tagfix = f"s_waitcnt lgkmcnt(0)\ns_mul_i32 s{sTAG}, s{sTAG}, 1664525\ns_add_u32 s{sTAG}, s{sTAG}, 1013904223"
        a.e(f"s_cmp_ge_u32 s{sW}, 6\ns_cbranch_scc1 {L_67}\ns_cmp_ge_u32 s{sW}, 4\ns_cbranch_scc1 {L_45}")
        v0_, l0_ = a.vm_issued, a.lg_issued
        XP, XF = 16, 32
        ST = [64, 65, 66, 67]
        STT = [68, 69, 70, 71]
        a.e(f"""
s_lshl_b32 s{sTMP}, s{sRB}, 17
s_lshl_b32 s{sTMP+1}, s{sJ}, 13
s_add_u32 s{sTMP}, s{sTMP}, s{sTMP+1}
s_lshl_b32 s{sTMP+1}, s{sW}, 11
s_add_u32 s{sTMP}, s{sTMP}, s{sTMP+1}
s_sub_u32 s{sTMP+1}, s{sTMP}, {256*1024}
s_cmp_lt_u32 s{sRB}, 2
s_cselect_b32 s{sTMP+1}, s{sTMP}, s{sTMP+1}
""")
        for i in range(4):
            a.e(f"buffer_load_dwordx4 {vr(XP+4*i,4)}, v11, s[{S_X}:{S_X+3}], s{sTMP + (i>>1)} offen offset:{(i&1)*1024}")
        if "noc3" not in EXP:
            Lc0, Lc1, Lce, Lc3 = a.label("Lc30"), a.label("Lc31"), a.label("Lc3e"), a.label("Lc33")
            a.e(f"""
v_lshrrev_b32 v5, 2, v1
v_and_b32 v6, 3, v1
s_cmp_eq_u32 s{sW}, 0
s_cbranch_scc1 {Lc0}
s_cmp_eq_u32 s{sW}, 1
s_cbranch_scc1 {Lc1}
s_cmp_lg_u32 s{sW}, 2
s_cbranch_scc1 {Lc3}
v_and_b32 v5, 15, v1
v_lshlrev_b32 v5, 10, v5
s_lshl_b32 s{sTMP+2}, s{sT}, 14
""")
            self.nocount(f"buffer_load_dword v6, v5, s[{S_WO}:{S_WO+3}], s{sTMP+2} offen offset:384")
            a.e(f"""
s_branch {Lce}
{Lc0}:
v_mul_u32_u24 v5, 6144, v5
v_and_b32 v6, 1, v6
v_lshl_add_u32 v5, v6, 10, v5
s_mul_i32 s{sTMP+2}, s{sT}, {16*6144}
""")
            self.nocount(f"buffer_load_dword v6, v5, s[{S_WM}:{S_WM+3}], s{sTMP+2} offen offset:384")
            a.e(f"""
s_branch {Lce}
{Lc1}:
v_mul_u32_u24 v5, 3072, v5
v_lshl_add_u32 v5, v6, 10, v5
s_mul_i32 s{sTMP+2}, s{sT}, {16*3072}
""")
            self.nocount(f"buffer_load_dword v6, v5, s[{S_WQKV}:{S_WQKV+3}], s{sTMP+2} offen offset:384")
            a.e(f"s_branch {Lce}\n{Lc3}:")
            if "valugemv" in EXP and "nomall" not in EXP:
                a.e(f"s_lshl_b32 s{sTMP+2}, s{sP}, 13\n"
                    f"s_cmp_lt_u32 s{sTMP+2}, {84*8192}\ns_cselect_b32 s{sTMP+3}, s{sTMP+2}, 0x7fff0000\n"
                    f"s_sub_u32 s{sTMP+4}, s{sTMP+2}, {84*8192}\ns_cmp_lt_u32 s{sTMP+4}, {84*8192}\ns_cselect_b32 s{sTMP+4}, s{sTMP+4}, 0x7fff0000\n"
                    f"s_sub_u32 s{sTMP+5}, s{sTMP+2}, {168*8192}\ns_min_u32 s{sTMP+5}, s{sTMP+5}, 0x7fff0000")
                self.nocount(f"buffer_load_dword v6, v10, s[{S_WG}:{S_WG+3}], s{sTMP+3} offen")
                self.nocount(f"buffer_load_dword v6, v10, s[{S_WU}:{S_WU+3}], s{sTMP+4} offen")
                self.nocount(f"buffer_load_dword v6, v10, s[{S_WO}:{S_WO+3}], s{sTMP+5} offen")
            a.e(f"{Lce}:")
        if "wmtouch" in EXP:
            a.e(f"""
v_mul_u32_u24 v5, 6144, v3
v_and_b32 v6, 15, v1
v_lshl_add_u32 v5, v6, 7, v5
s_lshl_b32 s{sTMP}, s{sT}, 2
s_add_u32 s{sTMP}, s{sTMP}, s{sW}
s_mul_i32 s{sTMP}, s{sTMP}, {4*6144}
buffer_load_dword v6, v5, s[{S_WM}:{S_WM+3}], s{sTMP} offen
s_waitcnt vmcnt(1)
""")
        else:
            a.e("s_waitcnt vmcnt(0)")
        a.e(tagfix)
        for i in range(4):
            for d in range(4):
                a.e(f"v_lshlrev_b32 v{XF+8*i+2*d}, 16, v{XP+4*i+d}\nv_and_b32 v{XF+1+8*i+2*d}, 0xffff0000, v{XP+4*i+d}")
        for i in range(4):
            b = XF + 8 * i
            a.e(f"v_add_f32 v{ST[i]}, v{b}, v{b+1}")
            for e in range(2, 8):
                a.e(f"v_add_f32 v{ST[i]}, v{ST[i]}, v{b+e}")
        self.wave_allsum(ST, STT)
        for i in range(4):
            a.e(f"v_mul_f32 v{ST[i]}, {f2u(-1/512):#x}, v{ST[i]}")
        for i in range(4):
            for e in range(8):
                a.e(f"v_add_f32 v{XF+8*i+e}, v{ST[i]}, v{XF+8*i+e}")
        for i in range(4):
            b = XF + 8 * i
            a.e(f"v_mul_f32 v{ST[i]}, v{b}, v{b}")
            for e in range(1, 8):
                a.e(f"v_fmac_f32 v{ST[i]}, v{b+e}, v{b+e}")
        self.wave_allsum(ST, STT)
        for i in range(4):
            a.e(f"v_mul_f32 v{ST[i]}, {f2u(1/512):#x}, v{ST[i]}")
        for i in range(4):
            a.e(f"v_add_f32 v{ST[i]}, {f2u(1e-5):#x}, v{ST[i]}")
        for i in range(4):
            a.e(f"v_rsq_f32 v{ST[i]}, v{ST[i]}")
        for i in range(4):
            for e in range(8):
                a.e(f"v_mul_f32 v{XF+8*i+e}, v{ST[i]}, v{XF+8*i+e}")
        for i in range(4):
            for d in range(4):
                a.e(f"v_cvt_pk_bf16_f32 v{XP+4*i+d}, v{XF+8*i+2*d}, v{XF+1+8*i+2*d}")
        for i in range(4):
            for d in range(4):
                a.e(f"v_lshlrev_b32 v{XF+8*i+2*d}, 16, v{XP+4*i+d}\nv_and_b32 v{XF+1+8*i+2*d}, 0xffff0000, v{XP+4*i+d}")
        a.e(f"""
v_lshrrev_b32 v12, 1, v1
v_lshlrev_b32 v12, 10, v12
v_and_b32 v6, 1, v1
v_lshl_add_u32 v12, v6, 9, v12
s_lshl_b32 s{sTMP+4}, s{sX}, 19
s_and_b32 s{sTMP+3}, s{sRB}, 1
s_lshl_b32 s{sTMP+3}, s{sTMP+3}, 17
s_add_u32 s{sTMP+4}, s{sTMP+4}, s{sTMP+3}
s_lshr_b32 s{sTMP+3}, s{sJ}, 2
s_lshl_b32 s{sTMP+3}, s{sTMP+3}, 15
s_add_u32 s{sTMP+4}, s{sTMP+4}, s{sTMP+3}
s_and_b32 s{sTMP+3}, s{sJ}, 3
s_lshl_b32 s{sTMP+3}, s{sTMP+3}, 7
s_add_u32 s{sTMP+4}, s{sTMP+4}, s{sTMP+3}
s_lshl_b32 s{sTMP+3}, s{sW}, 5
s_add_u32 s{sTMP+4}, s{sTMP+4}, s{sTMP+3}
s_add_u32 s{sTMP+4}, s{sTMP+4}, {H1BUF}
s_add_u32 s{sTMP+8}, s{sTMP+4}, {2*131072}
v_lshlrev_b32 v13, 5, v1
v_lshlrev_b32 v7, 6, v1
v_add_u32 v7, 60, v7
v_and_b32 v8, 31, v1
v_lshlrev_b32 v8, 3, v8
s_lshl_b32 s{sTMP}, s{sX}, 12
s_add_u32 s{sTMP+1}, s{sTMP}, {MODB}
s_add_u32 s{sTMP}, s{sTMP}, {MODA}
s_lshl_b32 s{sTMP+2}, s{sX}, 8
s_add_u32 s{sTMP+2}, s{sTMP+2}, {XID}
s_lshl_b32 s{sTMP+5}, s{sP}, 4
s_lshl_b32 s{sTMP+6}, s{sW}, 2
s_add_u32 s{sTMP+5}, s{sTMP+5}, s{sTMP+6}
s_add_u32 s{sTMP+5}, s{sTMP+5}, {FL_H1}
s_mov_b32 s{sTMP+11}, 0
""")
        self.stamp(0)
        L = a.label("G")
        L2 = a.label("G2")
        Lo = a.label("Go")
        G0 = 96
        a.e(f"{L}:")
        self.nocount(f"buffer_load_dword v{G0}, v7, {WS}, s{sTMP} offen sc1")
        a.e(f"""
s_add_u32 s{sTMP+11}, s{sTMP+11}, 1
s_cmp_gt_u32 s{sTMP+11}, 400000
s_cbranch_scc1 {L2}
s_waitcnt vmcnt(0)
v_cmp_ne_u32 vcc, s{sTAG}, v{G0}
s_cbranch_vccz {L2}
s_add_u32 s{sTMP+10}, s{sTMP+11}, 1
s_and_b32 s{sTMP+10}, s{sTMP+10}, 15
s_cmp_lt_u32 s{sTMP+10}, 2
s_cselect_b32 s{sTMP+10}, s{sTMP+1}, s{sTMP}
s_cselect_b32 s{sTMP+1}, s{sTMP}, s{sTMP+1}
s_mov_b32 s{sTMP}, s{sTMP+10}
s_sleep {MSLEEP}
s_branch {L}
{L2}:
""")
        self.nocount(f"""
buffer_load_dwordx4 v[{G0}:{G0+3}], v13, {WS}, s{sTMP} offen sc1
buffer_load_dwordx4 v[{G0+4}:{G0+7}], v13, {WS}, s{sTMP} offen offset:16 sc1
buffer_load_dwordx4 v[{G0+8}:{G0+11}], v13, {WS}, s{sTMP} offen offset:2048 sc1
buffer_load_dwordx4 v[{G0+12}:{G0+15}], v13, {WS}, s{sTMP} offen offset:2064 sc1
buffer_load_dwordx2 v[{G0+16}:{G0+17}], v8, {WS}, s{sTMP+2} offen sc1
""")
        a.e(f"""
s_cmp_gt_u32 s{sTMP+11}, 400000
s_cbranch_scc1 {Lo}
s_waitcnt vmcnt(0)
v_xor_b32 v116, s{sTAG}, v{G0+1}
""")
        for q in range(3, 16, 2):
            a.e(f"v_xor_b32 v117, s{sTAG}, v{G0+q}\nv_or_b32 v116, v116, v117")
        a.e(f"v_cmp_ne_u32 vcc, 0, v116\ns_cbranch_vccnz {L}\n{Lo}:\ns_waitcnt vmcnt(0)")
        a.e(f"""
v_xor_b32 v116, s{sTAG}, v{G0+17}
v_xor_b32 v117, s{sXCC}, v{G0+16}
v_or_b32 v116, v116, v117
v_cmp_ne_u32 vcc, 0, v116
s_cmp_eq_u64 vcc, 0
s_cselect_b32 s{sPURE}, 1, 0
""")
        SA, GG = 72, 80
        for q in range(4):
            a.e(f"v_lshlrev_b32 v{SA+2*q}, 16, v{G0+2*q}\nv_and_b32 v{SA+1+2*q}, 0xffff0000, v{G0+2*q}")
            a.e(f"v_lshlrev_b32 v{GG+2*q}, 16, v{G0+8+2*q}\nv_and_b32 v{GG+1+2*q}, 0xffff0000, v{G0+8+2*q}")
        for i in range(4):
            for d in range(4):
                b = XF + 8 * i + 2 * d
                a.e(f"v_pk_fma_f32 v[{b}:{b+1}], v[{b}:{b+1}], v[{GG+2*d}:{GG+1+2*d}], v[{SA+2*d}:{SA+1+2*d}]")
            for d in range(4):
                a.e(f"v_cvt_pk_bf16_f32 v{XP+4*i+d}, v{XF+8*i+2*d}, v{XF+1+8*i+2*d}")
        a.e(f"v_mov_b32 v14, s{sTAG}\nv_mov_b32 v15, 0")
        st = "\n".join(f"buffer_store_dwordx4 v[{XP+4*i}:{XP+3+4*i}], v12, {WS}, s{sTMP+8 if i < 2 else sTMP+4} offen offset:{16*(i&1)}" for i in range(4))
        self.store_sel(st + "\n" + self.flag_seq(f"s{sTMP+5}"))
        a.e(f"s_branch {L_j}")
        a.vm_issued, a.lg_issued = v0_, l0_
        if "valugemv" in EXP:
            self.gemv_valu(a, L_45, L_j, tagfix, v0_, l0_)
        else:
            self.gemv_mfma(a, L_45, L_j, tagfix, v0_, l0_)
        a.e(f"{L_67}:")
        a.e(f"""
v_lshrrev_b32 v12, 2, v1
v_mul_u32_u24 v12, 3072, v12
v_and_b32 v13, 3, v1
v_lshl_add_u32 v12, v13, 4, v12
{tagfix}
v_mov_b32 v14, s{sXCC}
v_mov_b32 v15, s{sTAG}
s_lshl_b32 s{sTMP}, s{sP}, 3
s_add_u32 s{sTMP}, s{sTMP}, {XID}
v_mov_b32 v13, 0
s_mov_b64 exec, 1
buffer_store_dwordx2 v[14:15], v13, {WS}, s{sTMP} offen sc1
s_mov_b64 exec, -1
s_waitcnt vmcnt(0)
s_and_b32 s{sTMP+4}, s{sW}, 1
s_mul_i32 s{sTMP}, s{sTMP+4}, {16*3072}
s_lshl_b32 s{sTMP+1}, s{sJ}, 6
s_add_u32 s{sTMP}, s{sTMP}, s{sTMP+1}
s_lshl_b32 s{sTMP+2}, s{sTMP+4}, 10
""")
        Lgt = a.label("Lgate")
        Lgo = a.label("Lgateo")
        a.e(f"""
s_cmp_ge_u32 s{sT}, {0 if "nogate" in EXP else (99 if "valugemv" in EXP else 20)}
s_cbranch_scc1 {Lgo}
v_and_b32 v13, 1, v1
v_lshlrev_b32 v13, 2, v13
s_mov_b32 s{sTMP+11}, 0
{Lgt}:
ds_read_b32 v14, v13 offset:{L_GATE}
s_add_u32 s{sTMP+11}, s{sTMP+11}, 1
s_cmp_gt_u32 s{sTMP+11}, 4000000
s_cbranch_scc1 {Lgo}
s_waitcnt lgkmcnt(0)
v_cmp_ne_u32 vcc, s{sTAG}, v14
s_cbranch_vccnz {Lgt}
{Lgo}:
s_waitcnt lgkmcnt(0)
""")
        if "qtouch" in EXP:
            a.e(f"s_mul_i32 s{sTMP+5}, s{sT}, 49152")
            self.touch(S_WQKV, sTMP + 5, 384, sTMP + 4, 2, 14, 10)
        if "dmadelay" in EXP:
            a.e(f"buffer_load_dword v14, v13, {WS}, s{sTMP} offen sc1\ns_waitcnt vmcnt(0)")
        for c in range(16):
            for seg in range(3):
                a.e(f"s_add_u32 m0, s{sTMP+2}, {L_WQKV + seg*32768 + c*2048}")
                a.e(f"s_add_u32 s{sTMP+3}, s{sTMP}, {c*32*3072 + seg*1024}")
                a.e(f"buffer_load_dwordx4 v12, s[{S_WQKV}:{S_WQKV+3}], s{sTMP+3} offen lds")
        a.e("s_waitcnt vmcnt(0)")
        self.stamp(0)
        a.vm_issued, a.lg_issued = v0_, l0_
        a.e(f"{L_j}:")
        if "prio" in EXP:
            Lpr = a.label("Lprio")
            a.e(f"s_cmp_lt_u32 s{sW}, 4\ns_cbranch_scc1 {Lpr}\ns_setprio 1\n{Lpr}:")
        a.e("s_nop 4\ns_barrier")
        self.stamp(1)

    def gemv_valu(self, a, L_45, L_j, tagfix, v0_, l0_):
        a.e(f"{L_45}:")
        W0, SV = 94, 14
        a.e(f"""
v_lshrrev_b32 v6, 1, v1
v_lshlrev_b32 v8, 5, v6
v_mul_u32_u24 v7, {16*6144}, v6
v_and_b32 v6, 1, v1
v_lshl_add_u32 v7, v6, 4, v7
buffer_load_dwordx4 v[70:73], v8, s[{S_C}:{S_C+3}], 0 offen
buffer_load_dwordx4 v[74:77], v8, s[{S_C}:{S_C+3}], 0 offen offset:16
""")
        tok_c = a.vm_tok()
        a.e(f"s_lshl_b32 s{sTMP}, s{sT}, 6\ns_lshl_b32 s{sTMP+1}, s{sW3}, 5\ns_add_u32 s{sTMP}, s{sTMP}, s{sTMP+1}")
        tok_w = []
        for i in range(16):
            a.e(f"buffer_load_dwordx4 v[{W0+4*i}:{W0+3+4*i}], v7, s[{S_WM}:{S_WM+3}], s{sTMP} offen")
            tok_w.append(a.vm_tok())
            if i < 15:
                a.e(f"s_add_u32 s{sTMP}, s{sTMP}, 6144")
        a.e(f"""
v_and_b32 v5, 127, v0
v_mul_u32_u24 v12, 24576, v5
v_lshlrev_b32 v5, 3, v5
s_lshl_b32 s{sTMP}, s{sP}, 4
s_add_u32 s{sTMP}, s{sTMP}, 2048
buffer_load_dwordx2 v[78:79], v5, s[{S_C}:{S_C+3}], 0 offen
""")
        for i in range(4):
            a.e(f"buffer_load_dwordx4 v[{54+4*i}:{57+4*i}], v12, s[{S_WM}:{S_WM+3}], s{sTMP} offen")
            if i < 3:
                a.e(f"s_add_u32 s{sTMP}, s{sTMP}, 6144")
        tok_nu = a.vm_tok()
        a.e(tagfix)
        a.e(f"s_lshl_b32 s{sTMP+4}, s{sW3}, 2\nv_mov_b32 v13, s{sTMP+4}\nv_mov_b32 v5, s{sTAG}\nds_write_b32 v13, v5 offset:{L_GATE}")
        a.e(f"""
v_lshlrev_b32 v9, 5, v6
v_lshl_add_u32 v9, v3, 3, v9
s_cmp_ge_u32 s{sT}, 16
s_cselect_b32 s{sTMP+7}, 1.0, 0
s_lshl_b32 s{sTMP+5}, s{sX}, 12
s_lshl_b32 s{sTMP+6}, s{sT}, 7
s_add_u32 s{sTMP+5}, s{sTMP+5}, s{sTMP+6}
s_lshl_b32 s{sTMP+6}, s{sW3}, 6
s_add_u32 s{sTMP+5}, s{sTMP+5}, s{sTMP+6}
s_add_u32 s{sTMP+6}, s{sTMP+5}, {MODB}
s_add_u32 s{sTMP+5}, s{sTMP+5}, {MODA}
""")
        a.wait_vm(tok_c)
        self.silu_bf16(70, 8, SV, 30)
        AC = 30
        for i in range(16):
            a.wait_vm(tok_w[i])
            w = W0 + 4 * i
            t = 38 + 8 * (i % 2)
            for d in range(4):
                a.e(f"v_lshlrev_b32 v{t+2*d}, 16, v{w+d}\nv_and_b32 v{t+1+2*d}, 0xffff0000, v{w+d}")
            sp = SV + (i & ~1)
            sel = i & 1
            for d in range(4):
                if i == 0:
                    a.e(f"v_pk_mul_f32 v[{AC+2*d}:{AC+1+2*d}], v[{t+2*d}:{t+1+2*d}], v[{sp}:{sp+1}] op_sel_hi:[1,0]")
                else:
                    a.e(f"v_pk_fma_f32 v[{AC+2*d}:{AC+1+2*d}], v[{t+2*d}:{t+1+2*d}], v[{sp}:{sp+1}], v[{AC+2*d}:{AC+1+2*d}] op_sel:[0,{sel},0] op_sel_hi:[1,{sel},1]")
        for r in (2, 4, 8):
            for e in range(8):
                a.e(f"v_add_f32_dpp v{AC+e}, v{AC+e}, v{AC+e} row_ror:{r} row_mask:0xf bank_mask:0xf")
        self.reduce8_pairs(AC)
        self.granule(AC, AC + 1, sTMP + 7, AC + 2)
        a.e(f"s_mov_b32 exec_lo, 0x00030003\ns_mov_b32 exec_hi, 0x00030003")
        a.e(f"buffer_store_dwordx2 v[{AC+2}:{AC+3}], v9, {WS}, s{sTMP+5} offen")
        a.e(f"buffer_store_dwordx2 v[{AC+2}:{AC+3}], v9, {WS}, s{sTMP+6} offen sc1")
        a.e(f"s_mov_b64 exec, -1")
        self.stamp(0)
        a.wait_vm(tok_nu)
        self.silu_bf16(78, 2, 80, 96)
        for i in range(4):
            for d in range(4):
                w = 54 + 4 * i + d
                a.e(f"v_lshlrev_b32 v{96+2*d}, 16, v{w}\nv_and_b32 v{97+2*d}, 0xffff0000, v{w}")
            for e in range(8):
                a.e(f"v_mul_f32 v{72+e}, v80, v{96+e}" if i == 0 else f"v_fmac_f32 v{72+e}, v{80+i}, v{96+e}")
        for r in (1, 2, 4, 8):
            for e in range(8):
                a.e(f"v_add_f32_dpp v{72+e}, v{72+e}, v{72+e} row_ror:{r} row_mask:0xf bank_mask:0xf")
        self.reduce8_pairs(72)
        a.e("v_mov_b32 v132, v72\nv_mov_b32 v133, v73")
        a.e(f"s_branch {L_j}")
        a.vm_issued, a.lg_issued = v0_, l0_

    def gemv_mfma(self, a, L_45, L_j, tagfix, v0_, l0_):
        a.e(f"{L_45}:")
        a.e(f"s_cmp_ge_u32 s{sT}, 20\ns_cbranch_scc1 L_NOGEMV")
        L_SLAB = 96 * 1024
        self.w64_lane(12, stride=6144)
        a.e(f"""
s_lshl_b32 s{sTMP}, s{sT}, 7
s_lshl_b32 s{sTMP+1}, s{sX}, 9
s_add_u32 s{sTMP+1}, s{sTMP+1}, s{sTMP}
s_cmp_ge_u32 s{sT}, 16
s_cselect_b32 s{sTMP}, s{sTMP+1}, s{sTMP}
s_mul_i32 s{sTMP+1}, s{sW3}, {256*6144}
s_add_u32 s{sTMP}, s{sTMP}, s{sTMP+1}
s_lshl_b32 s{sTMP+2}, s{sW3}, 15
s_lshl_b32 s{sTMP+4}, s{sW3}, 9
v_lshlrev_b32 v8, 3, v1
buffer_load_dwordx2 v[70:71], v8, s[{S_C}:{S_C+3}], s{sTMP+4} offen
""")
        tok_c = a.vm_tok()
        for i in range(32):
            a.e(f"s_add_u32 m0, s{sTMP+2}, {L_SLAB + i*1024}\ns_add_u32 s{sTMP+3}, s{sTMP}, {i*8*6144}")
            a.e(f"buffer_load_dwordx4 v12, s[{S_WM}:{S_WM+3}], s{sTMP+3} offen lds")
        a.e(tagfix)
        a.e(f"s_lshl_b32 s{sTMP+4}, s{sW3}, 2\nv_mov_b32 v13, s{sTMP+4}\nv_mov_b32 v14, s{sTAG}\nds_write_b32 v13, v14 offset:{L_GATE}")
        a.wait_vm(tok_c)
        self.silu_bf16(70, 2, 14, 30)
        SF = 94
        a.e(f"v_lshrrev_b32 v9, 5, v1\nv_lshlrev_b32 v9, 3, v9")
        for st in range(16):
            for d in range(4):
                a.e(f"ds_bpermute_b32 v{SF+4*st+d}, v9, v{30 + (d&1)} offset:{(4*st + (d>>1))*4}")
            if st % 3 == 2:
                a.e("s_waitcnt lgkmcnt(3)")
        self.tr64_bases(4)
        a.e(f"""
s_add_u32 s{sTMP+2}, s{sTMP+2}, {L_SLAB}
v_add_u32 v4, s{sTMP+2}, v4
v_add_u32 v5, s{sTMP+2}, v5
s_waitcnt lgkmcnt(0)
""")
        self.stamp(22)
        a.e("s_waitcnt vmcnt(0)")
        self.stamp(23)
        GA_ = 32
        GB = [64, 72, 80]
        toks = {}

        def GR(st):
            return [f"ds_read_b64_tr_b16 {vr(GB[st%3]+4*t+2*i,2)}, v{4+t} offset:{(16*st+4*i)*128}" for t in range(2) for i in range(2)]
        for st in range(2):
            a.e("\n".join(GR(st)))
            toks[st] = a.lg_tok()
        for st in range(16):
            a.wait_lg(toks[st])
            for t in range(2):
                a.e(f"v_mfma_f32_32x32x16_bf16 {vr(GA_+16*t,16)}, {vr(GB[st%3]+4*t,4)}, {vr(SF+4*st,4)}, {'0' if st == 0 else vr(GA_+16*t,16)}")
            if st + 2 < 16:
                a.e("\n".join(GR(st + 2)))
                toks[st + 2] = a.lg_tok()
        self.stamp(24)
        L5 = a.label("Lg5")
        a.e(f"v_add_u32 v12, {L_SLAB + 32768}, v11\nv_mov_b32 v13, {L_SLAB + 32768 + 8192}\nv_mov_b32 v14, s{sTAG}")
        a.e(f"s_cmp_eq_u32 s{sW}, 4\ns_cbranch_scc1 {L5}")
        self.nocount("\n".join(f"ds_write_b128 v12, {vr(GA_+4*q,4)} offset:{q*1024}" for q in range(8)))
        a.e("s_waitcnt lgkmcnt(0)")
        self.nocount("ds_write_b32 v13, v14")
        a.e(f"s_waitcnt lgkmcnt(0)\ns_branch L_NOGEMV\n{L5}:")
        Ls = a.label("Lgs")
        Lso = a.label("Lgso")
        a.e(f"""
s_mov_b32 s{sTMP+11}, 0
{Ls}:
""")
        self.nocount("ds_read_b32 v15, v13")
        a.e(f"""
s_add_u32 s{sTMP+11}, s{sTMP+11}, 1
s_cmp_gt_u32 s{sTMP+11}, 4000000
s_cbranch_scc1 {Lso}
s_waitcnt lgkmcnt(0)
v_cmp_ne_u32 vcc, s{sTAG}, v15
s_cbranch_vccnz {Ls}
{Lso}:
""")
        self.nocount("\n".join(f"ds_read_b128 {vr(64+4*q,4)}, v12 offset:{q*1024}" for q in range(8)))
        a.e(f"""
s_lshl_b32 s{sTMP+5}, s{sX}, 12
s_lshl_b32 s{sTMP+6}, s{sT}, 8
s_add_u32 s{sTMP+5}, s{sTMP+5}, s{sTMP+6}
s_add_u32 s{sTMP+8}, s{sTMP+5}, {MODB}
s_add_u32 s{sTMP+5}, s{sTMP+5}, {MODA}
s_lshl_b32 s{sTMP+9}, s{sX}, 10
s_add_u32 s{sTMP+9}, s{sTMP+9}, s{sTMP+6}
s_add_u32 s{sTMP+9}, s{sTMP+9}, {MODG - 4096}
s_lshr_b32 s{sTMP+6}, s{sT}, 3
s_cmp_eq_u32 s{sTMP+6}, 1
s_cselect_b32 s{sTMP+7}, 1.0, 0
s_lshr_b32 s{sTMP+6}, s{sX}, 1
s_cmp_eq_u32 s{sTMP+6}, 2
s_cselect_b32 s{sTMP+10}, 1.0, 0
s_cmp_ge_u32 s{sT}, 16
s_cselect_b32 s{sTMP+7}, s{sTMP+10}, s{sTMP+7}
s_cselect_b32 s{sTMP+5}, s{sTMP+9}, s{sTMP+5}
s_cselect_b32 s{sTMP+8}, s{sTMP+9}, s{sTMP+8}
v_lshrrev_b32 v9, 5, v1
v_lshlrev_b32 v9, 5, v9
s_waitcnt lgkmcnt(0)
""")
        for r in range(32):
            a.e(f"v_add_f32 v{GA_+r}, v{GA_+r}, v{64+r}")
        for q in range(16):
            a.e(f"v_cvt_pk_bf16_f32 v{64+2*q}, v{GA_+2*q}, v{GA_+2*q+1}")
        for q in range(16):
            a.e(f"v_lshlrev_b32 v{GA_+2*q}, 16, v{64+2*q}\nv_and_b32 v{GA_+2*q+1}, 0xffff0000, v{64+2*q}")
        for r in range(32):
            a.e(f"v_add_f32 v{GA_+r}, s{sTMP+7}, v{GA_+r}")
        for q in range(16):
            a.e(f"v_cvt_pk_bf16_f32 v{64+2*q}, v{GA_+2*q}, v{GA_+2*q+1}\nv_mov_b32 v{65+2*q}, s{sTAG}")
        a.e("s_mov_b32 exec_lo, 1\ns_mov_b32 exec_hi, 1")
        Lnu = a.label("Lnu")
        a.e(f"s_cmp_ge_u32 s{sT}, 16\ns_cbranch_scc1 {Lnu}")
        for u in range(8):
            self.nocount(f"buffer_store_dwordx4 {vr(64+4*u,4)}, v9, {WS}, s{sTMP+5} offen offset:{(u>>1)*64 + (u&1)*16}")
        a.e(f"{Lnu}:")
        for u in range(8):
            self.nocount(f"buffer_store_dwordx4 {vr(64+4*u,4)}, v9, {WS}, s{sTMP+8} offen offset:{(u>>1)*64 + (u&1)*16} sc1")
        a.e("s_mov_b64 exec, -1")
        self.stamp(0)
        a.e("L_NOGEMV:")
        a.e(tagfix.replace("s_mul_i32", "s_cmp_ge_u32 s%d, 20\ns_cbranch_scc0 %s\ns_mul_i32" % (sT, L_j)))
        if "nomall" not in EXP:
            a.e(f"""
s_mul_i32 s{sTMP}, s{sX}, 12
s_add_u32 s{sTMP}, s{sTMP}, s{sT}
s_sub_u32 s{sTMP}, s{sTMP}, 20
s_lshl_b32 s{sTMP}, s{sTMP}, 1
s_add_u32 s{sTMP}, s{sTMP}, s{sW3}
s_lshl_b32 s{sTMP}, s{sTMP}, 13
s_add_u32 s{sTMP+1}, s{sTMP}, {192*8192}
""")
            if "tlb" in EXP:
                jobs = []
                for i in range(2):
                    jobs.append((S_WS, H1BUF + i * 262144, 524288))
                jobs.append((S_WS, OBUF, 262144))
                jobs.append((S_WS, H2BUF, 262144))
                for i in range(4):
                    jobs.append((S_WS, ACT + i * 262144, 917504))
                for i in range(2):
                    jobs.append((S_WS, KVX + i * 262144, 524288))
                jobs.append((S_OUT, 0, 262144))
                jobs.append((S_WS, SGRAN, 0))
                for i in range(2):
                    jobs.append((S_WO, i * 262144, 0))
                for srd in (S_WG, S_WU, S_WD):
                    for i in range(7):
                        jobs.append((srd, i * 262144, 0))
                a.e(f"v_lshlrev_b32 v5, 12, v1\ns_sub_u32 s{sTMP+4}, s{sT}, 20\ns_lshl_b32 s{sTMP+4}, s{sTMP+4}, 1\ns_add_u32 s{sTMP+4}, s{sTMP+4}, s{sW3}")
                for k, (srd, off, xs) in enumerate(jobs):
                    Ln = a.label("Ltl")
                    a.e(f"s_cmp_lg_u32 s{sTMP+4}, {k % 24}\ns_cbranch_scc1 {Ln}\ns_mul_i32 s{sTMP+5}, s{sX}, {xs}\ns_add_u32 s{sTMP+5}, s{sTMP+5}, {off}")
                    self.nocount(f"buffer_load_dword v2, v5, s[{srd}:{srd+3}], s{sTMP+5} offen sc1")
                    a.e(f"{Ln}:")
            a.e(f"s_cmp_lt_u32 s{sTMP}, {84*8192}\ns_cselect_b32 s{sTMP+1}, s{sTMP}, 0x7fff0000\n"
                f"s_sub_u32 s{sTMP+2}, s{sTMP}, {84*8192}\ns_cmp_lt_u32 s{sTMP+2}, {84*8192}\ns_cselect_b32 s{sTMP+2}, s{sTMP+2}, 0x7fff0000\n"
                f"s_sub_u32 s{sTMP+3}, s{sTMP}, {128*8192}\ns_min_u32 s{sTMP+3}, s{sTMP+3}, 0x7fff0000")
            self.nocount(f"buffer_load_dword v2, v10, s[{S_WG}:{S_WG+3}], s{sTMP+1} offen")
            self.nocount(f"buffer_load_dword v2, v10, s[{S_WU}:{S_WU+3}], s{sTMP+2} offen")
            self.nocount(f"buffer_load_dword v2, v10, s[{S_WO}:{S_WO+3}], s{sTMP+3} offen")
        a.e(f"s_branch {L_j}")
        a.vm_issued, a.lg_issued = v0_, l0_

    def phase1(self):
        a = self.a
        a.e(f"""
s_lshl_b32 s{sTMP}, s{sRB}, 8
s_lshl_b32 s{sTMP+1}, s{sW3}, 6
s_add_u32 s{sTMP}, s{sTMP}, s{sTMP+1}
s_add_u32 s{sTMP}, s{sTMP}, {FL_H1}
v_and_b32 v12, 15, v1
v_lshlrev_b32 v12, 2, v12
s_lshl_b32 s{sTMP+2}, s{sX}, 19
s_and_b32 s{sTMP+1}, s{sRB}, 1
s_lshl_b32 s{sTMP+1}, s{sTMP+1}, 17
s_add_u32 s{sTMP+2}, s{sTMP+2}, s{sTMP+1}
s_xor_b32 s{sTMP+1}, s{sWH}, 1
s_lshl_b32 s{sTMP+1}, s{sTMP+1}, 18
s_add_u32 s{sTMP+2}, s{sTMP+2}, s{sTMP+1}
s_lshl_b32 s{sTMP+1}, s{sW3}, 15
s_add_u32 s{sTMP+2}, s{sTMP+2}, s{sTMP+1}
s_add_u32 s{sTMP+2}, s{sTMP+2}, {H1BUF}
v_lshrrev_b32 v8, 5, v1
v_bfe_u32 v9, v1, 2, 2
v_lshl_add_u32 v9, v8, 3, v9
v_lshlrev_b32 v4, 6, v9
v_bfe_u32 v9, v1, 4, 1
v_lshl_add_u32 v4, v9, 5, v4
v_and_b32 v9, 1, v1
v_lshl_add_u32 v4, v9, 4, v4
v_bfe_u32 v9, v1, 1, 1
v_lshl_add_u32 v4, v9, 3, v4
v_add_u32 v4, {L_WQKV}, v4
v_add_u32 v5, 32768, v4
v_add_u32 v6, 65536, v4
v_and_b32 v14, 31, v1
v_lshlrev_b32 v14, 3, v14
s_lshl_b32 s{sTMP+3}, s{sX}, 8
s_add_u32 s{sTMP+3}, s{sTMP+3}, {XID}
""")
        L = a.label("P1")
        Lo = a.label("P1o")
        a.e(f"s_mov_b32 s{sTMP+11}, 0\n{L}:")
        self.nocount(f"buffer_load_dword v13, v12, {WS}, s{sTMP} offen sc1\nbuffer_load_dwordx2 v[16:17], v14, {WS}, s{sTMP+3} offen sc1")
        a.e(f"""
s_add_u32 s{sTMP+11}, s{sTMP+11}, 1
s_cmp_gt_u32 s{sTMP+11}, 400000
s_cbranch_scc1 {Lo}
s_waitcnt vmcnt(0)
v_cmp_ne_u32 vcc, s{sTAG}, v13
s_cbranch_vccz {Lo}
s_sleep {PSLEEP}
s_branch {L}
{Lo}:
s_waitcnt vmcnt(0)
v_xor_b32 v17, s{sTAG}, v17
v_xor_b32 v16, s{sXCC}, v16
v_or_b32 v16, v16, v17
v_cmp_ne_u32 vcc, 0, v16
s_cmp_eq_u64 vcc, 0
s_cselect_b32 s{sPURE}, 1, 0
""")
        self.stamp(2)
        ACC = [16, 32, 48]
        BFv = [64, 76, 88]
        NA = 12
        AF = lambda s: ar(4 * (s % NA), 4)
        NS = 32
        PD = 10

        def body(segs, wo=False):
            if wo:
                self.w64_lane(126)
                a.e(f"""
s_and_b32 s{sTMP+5}, s{sJ}, 7
s_lshl_b32 s{sTMP+5}, s{sTMP+5}, 7
s_lshl_b32 s{sTMP+6}, s{sW3}, 13
s_add_u32 s{sTMP+5}, s{sTMP+5}, s{sTMP+6}
s_lshl_b32 s{sTMP+6}, s{sW3}, 10
""")

            def R(s):
                return [f"ds_read_b64_tr_b16 {vr(BFv[s%3]+4*seg+2*i,2)}, v{4+seg} offset:{(16*s+4*i)*64}" for seg in segs for i in range(2)]

            def M(s):
                out = []
                for seg in segs:
                    c = "0" if s == 0 else vr(ACC[seg], 16)
                    b = vr(BFv[s % 3] + 4 * seg, 4)
                    if seg < 2:
                        out.append(f"v_mfma_f32_32x32x16_bf16 {vr(ACC[seg],16)}, {b}, {AF(s)}, {c}")
                    else:
                        out.append(f"v_mfma_f32_32x32x16_bf16 {vr(ACC[seg],16)}, {AF(s)}, {b}, {c}")
                return out

            def aload(s):
                out = []
                if s % 4 == 0 and s > 0:
                    out.append(f"s_add_u32 s{sTMP+2}, s{sTMP+2}, 4096")
                out.append(f"buffer_load_dwordx4 {AF(s)}, v11, {WS}, s{sTMP+2} offen offset:{(s%4)*1024} sc1")
                return out
            vt = {}
            for s in range(PD):
                a.e("\n".join(aload(s)))
                vt[s] = a.vm_tok()
            a.e("\n".join(R(0)))
            toks = {0: a.lg_tok()}
            a.e("\n".join(R(1)))
            toks[1] = a.lg_tok()
            for i in range(NS):
                r = R(i + 2) if i + 2 < NS else []
                a.wait_lg(toks[i])
                a.wait_vm(vt[i])
                a.e("\n".join(interleave(M(i), r)))
                if r:
                    toks[i + 2] = a.lg_tok()
                if i + PD < NS:
                    a.e("\n".join(aload(i + PD)))
                    vt[i + PD] = a.vm_tok()
                if i == int(os.environ.get("PRE", "4")) and "nopre" not in EXP:
                    self.pretouch()
                if wo and i < 16:
                    a.e(f"s_add_u32 m0, s{sTMP+6}, {L_WO + i*4096}\ns_add_u32 s{sTMP+7}, s{sTMP+5}, {i*32768}")
                    a.e(f"buffer_load_dwordx4 v126, s[{S_WO}:{S_WO+3}], s{sTMP+7} offen lds")
        L_h = a.label("Lp1h")
        L_j = a.label("Lp1j")
        a.e(f"s_cmp_ge_u32 s{sW}, 4\ns_cbranch_scc1 {L_h}")
        v0_, l0_ = a.vm_issued, a.lg_issued
        body([1, 2, 0])
        a.e(f"s_branch {L_j}\n{L_h}:")
        a.vm_issued, a.lg_issued = v0_, l0_
        body([1, 2], wo=True)
        a.e(f"{L_j}:")
        self.stamp(3)
        a.e("s_nop 15")

    def pretouch(self):
        a = self.a
        T = 84
        a.e(f"""
s_lshl_b32 s{T}, s{sRB}, 2
s_add_u32 s{T+1}, s{T}, s{sW3}
s_lshl_b32 s{T+2}, s{T+1}, 15
s_lshl_b32 s{T+3}, s{sJ}, 11
s_add_u32 s{T+2}, s{T+2}, s{T+3}
s_lshl_b32 s{T+3}, s{sWH}, 10
s_add_u32 s{T+2}, s{T+2}, s{T+3}
s_add_u32 s{T+2}, s{T+2}, {OBUF}
s_mul_i32 s{T+4}, s{T+1}, {112*1024}
s_mul_i32 s{T+3}, s{sJ}, {7*1024}
s_add_u32 s{T+4}, s{T+4}, s{T+3}
s_lshl_b32 s{T+3}, s{sWH}, 12
s_add_u32 s{T+4}, s{T+4}, s{T+3}
s_add_u32 s{T+4}, s{T+4}, {ACT}
s_lshr_b32 s{T+3}, s{sJ}, 3
s_lshl_b32 s{T+3}, s{T+3}, 1
s_add_u32 s{T}, s{T}, s{T+3}
s_and_b32 s{T+3}, s{sW}, 1
s_add_u32 s{T}, s{T}, s{T+3}
s_lshl_b32 s{T}, s{T}, 15
s_and_b32 s{T+3}, s{sJ}, 7
s_lshl_b32 s{T+5}, s{T+3}, 12
s_add_u32 s{T+5}, s{T+5}, s{T}
s_lshr_b32 s{T+6}, s{sW}, 1
s_lshl_b32 s{T+6}, s{T+6}, 10
s_add_u32 s{T+5}, s{T+5}, s{T+6}
s_add_u32 s{T+5}, s{T+5}, {H2BUF}
s_add_u32 s{T+6}, s{T+4}, 3072
s_cmp_lt_u32 s{sW}, 4
s_cselect_b32 s{T+6}, s{T+6}, 0x7fff0000
s_cmp_eq_u32 s{sPURE}, 0
s_cselect_b32 s{T+2}, 0x7fff0000, s{T+2}
s_cselect_b32 s{T+4}, 0x7fff0000, s{T+4}
s_cselect_b32 s{T+5}, 0x7fff0000, s{T+5}
s_cselect_b32 s{T+6}, 0x7fff0000, s{T+6}
buffer_store_dwordx4 v[8:11], v11, {WS}, s{T+2} offen
buffer_store_dwordx4 v[8:11], v11, {WS}, s{T+5} offen
buffer_store_dwordx4 v[8:11], v11, {WS}, s{T+4} offen
buffer_store_dwordx4 v[8:11], v11, {WS}, s{T+4} offen offset:1024
buffer_store_dwordx4 v[8:11], v11, {WS}, s{T+4} offen offset:2048
buffer_store_dwordx4 v[8:11], v11, {WS}, s{T+6} offen
""")
        if "nopre2" not in EXP:
            a.e(f"""
s_lshl_b32 s{T+2}, s{sP}, 14
s_lshl_b32 s{T+3}, s{sW3}, 12
s_add_u32 s{T+2}, s{T+2}, s{T+3}
s_add_u32 s{T+2}, s{T+2}, {KVX}
s_and_b32 s{T+3}, s{sRB}, 1
s_cmp_lg_u32 s{T+3}, s{sWH}
s_cselect_b32 s{T+2}, 0x7fff0000, s{T+2}
s_cmp_eq_u32 s{sPURE}, 0
s_cselect_b32 s{T+2}, 0x7fff0000, s{T+2}
s_lshl_b32 s{T+4}, s{sRB}, 17
s_lshr_b32 s{T+3}, s{sJ}, 3
s_lshl_b32 s{T+3}, s{T+3}, 16
s_add_u32 s{T+4}, s{T+4}, s{T+3}
s_lshl_b32 s{T+3}, s{sW}, 13
s_add_u32 s{T+4}, s{T+4}, s{T+3}
s_and_b32 s{T+3}, s{sJ}, 7
s_lshl_b32 s{T+3}, s{T+3}, 7
s_add_u32 s{T+4}, s{T+4}, s{T+3}
v_lshrrev_b32 v124, 3, v1
v_lshlrev_b32 v124, 10, v124
v_and_b32 v125, 7, v1
v_lshl_add_u32 v124, v125, 4, v124
buffer_store_dwordx4 v[8:11], v11, {WS}, s{T+2} offen
buffer_store_dwordx4 v[8:11], v11, {WS}, s{T+2} offen offset:1024
buffer_store_dwordx4 v[8:11], v11, {WS}, s{T+2} offen offset:2048
buffer_store_dwordx4 v[8:11], v11, {WS}, s{T+2} offen offset:3072
buffer_store_dwordx4 v[8:11], v124, s[{S_OUT}:{S_OUT+3}], s{T+4} offen
""")

    def phase2(self):
        a = self.a
        QF = 140
        for r in range(8):
            a.e(f"v_cvt_pk_bf16_f32 v{64+r}, v{32+2*r}, v{33+2*r}")
        for r in range(8):
            a.e(f"v_cvt_pk_bf16_f32 v{72+r}, v{48+2*r}, v{49+2*r}")
        a.e(f"""
v_and_b32 v8, 31, v1
v_lshrrev_b32 v9, 5, v1
v_bfe_u32 v5, v1, 2, 2
v_xor_b32 v9, v9, v5
v_lshlrev_b32 v7, 6, v8
v_lshl_add_u32 v12, v9, 4, v7
v_xor_b32 v9, 2, v9
v_lshl_add_u32 v13, v9, 4, v7
s_xor_b32 s{sTMP+3}, s{sWH}, 1
s_lshl_b32 s{sTMP+3}, s{sTMP+3}, 14
s_lshl_b32 s{sTMP+4}, s{sW3}, 11
s_add_u32 s{sTMP+3}, s{sTMP+3}, s{sTMP+4}
s_add_u32 s{sTMP+1}, s{sTMP+3}, {L_K}
s_add_u32 s{sTMP+2}, s{sTMP+3}, {L_V}
v_add_u32 v8, s{sTMP+1}, v12
v_add_u32 v9, s{sTMP+1}, v13
v_add_u32 v5, s{sTMP+2}, v12
v_add_u32 v7, s{sTMP+2}, v13
s_lshl_b32 s{sTMP+1}, s{sP}, 14
s_lshl_b32 s{sTMP+2}, s{sW3}, 12
s_add_u32 s{sTMP+1}, s{sTMP+1}, s{sTMP+2}
s_add_u32 s{sTMP+1}, s{sTMP+1}, {KVX}
s_lshl_b32 s{sTMP+5}, s{sP}, 4
s_lshl_b32 s{sTMP+2}, s{sW3}, 2
s_add_u32 s{sTMP+5}, s{sTMP+5}, s{sTMP+2}
s_add_u32 s{sTMP+5}, s{sTMP+5}, {FL_KV}
v_mov_b32 v14, s{sTAG}
v_mov_b32 v15, 0
s_and_b32 s{sTMP+6}, s{sRB}, 1
""")
        L_f = a.label("Lfetch")
        L_j = a.label("Lp2j")
        a.e(f"s_cmp_lg_u32 s{sTMP+6}, s{sWH}\ns_cbranch_scc1 {L_f}")
        v0_, l0_ = a.vm_issued, a.lg_issued
        st = f"""buffer_store_dwordx4 v[64:67], v12, {WS}, s{sTMP+1} offen
buffer_store_dwordx4 v[68:71], v13, {WS}, s{sTMP+1} offen
buffer_store_dwordx4 v[72:75], v12, {WS}, s{sTMP+1} offen offset:2048
buffer_store_dwordx4 v[76:79], v13, {WS}, s{sTMP+1} offen offset:2048
"""
        self.store_sel(st + self.flag_seq(f"s{sTMP+5}"))
        a.e(f"s_barrier\ns_branch {L_j}\n{L_f}:")
        a.vm_issued, a.lg_issued = v0_, l0_
        a.e(f"s_xor_b32 s{sTMP+5}, s{sTMP+5}, 256\ns_xor_b32 s{sTMP+1}, s{sTMP+1}, {16*16384}")
        self.poll(15, f"s{sTMP+5}", 80)
        a.e("s_barrier")
        for half in range(2):
            a.e(f"s_add_u32 m0, s{sTMP+4}, {L_K + 4*2048}")
            self.nocount(f"buffer_load_dwordx4 v11, {WS}, s{sTMP+1} offen offset:{half*1024} sc1 lds")
            a.e(f"s_add_u32 m0, s{sTMP+4}, {L_V + 4*2048 - 2048}")
            self.nocount(f"buffer_load_dwordx4 v11, {WS}, s{sTMP+1} offen offset:{2048 + half*1024} sc1 lds")
        a.e(f"{L_j}:")
        a.e(f"""
ds_write_b128 v8, v[64:67]
ds_write_b128 v9, v[68:71]
ds_write_b128 v5, v[72:75]
ds_write_b128 v7, v[76:79]
""")
        Lq = a.label("Lq0")
        a.e(f"s_cmp_ge_u32 s{sW}, 4\ns_cbranch_scc1 {Lq}")
        a.e(f"s_mov_b32 s{sTMP}, {f2u(QSCALE):#x}")
        for r in range(16):
            a.e(f"v_mul_f32 v{16+r}, s{sTMP}, v{16+r}")
        for r in range(4):
            a.e(f"v_cvt_pk_bf16_f32 v{QF+r}, v{16+2*r}, v{17+2*r}")
        for r in range(4):
            a.e(f"v_cvt_pk_bf16_f32 v{80+r}, v{24+2*r}, v{25+2*r}")
        a.e(f"""
s_lshl_b32 s{sTMP+4}, s{sW}, 10
s_add_u32 s{sTMP+4}, s{sTMP+4}, {L_QX}
v_add_u32 v5, s{sTMP+4}, v11
""")
        self.nocount("ds_write_b128 v5, v[80:83]")
        a.e(f"{Lq}:")
        if "valugemv" in EXP:
            a.e(f"""
s_lshl_b32 s{sTMP}, s{sW}, 5
s_add_u32 s{sTMP}, s{sTMP}, {L_SCR}
v_lshl_add_u32 v12, v3, 3, s{sTMP}
ds_write_b64 v12, v[132:133]
""")
        a.e("s_waitcnt vmcnt(0) lgkmcnt(0)\ns_barrier")
        self.stamp(5)
        Lq = a.label("Lq")
        Lw = a.label("Lwo")
        a.e(f"s_cmp_lt_u32 s{sW}, 4\ns_cbranch_scc1 {Lw}")
        a.e(f"s_lshl_b32 s{sTMP+4}, s{sW3}, 10\ns_add_u32 s{sTMP+4}, s{sTMP+4}, {L_QX}\nv_add_u32 v5, s{sTMP+4}, v11")
        self.nocount(f"ds_read_b128 v[{QF}:{QF+3}], v5")
        if "valugemv" in EXP:
            a.e(f"s_cmp_lg_u32 s{sW}, 4\ns_cbranch_scc1 {Lw}")
            a.e(f"v_and_b32 v13, 3, v1\nv_lshlrev_b32 v13, 3, v13\nv_add_u32 v14, {L_SCR}, v13")
            self.nocount("\n".join(f"ds_read_b64 v[{80+2*w}:{81+2*w}], v14 offset:{(4+w)*32}" for w in range(2)))
            a.e(f"""
s_lshr_b32 s{sTMP+5}, s{sP}, 6
s_cmp_eq_u32 s{sTMP+5}, 2
s_cselect_b32 s{sTMP+4}, 1.0, 0
s_lshl_b32 s{sTMP+5}, s{sP}, 5
s_add_u32 s{sTMP+5}, s{sTMP+5}, {MODG}
s_waitcnt lgkmcnt(0)
v_add_f32 v80, v80, v82
v_add_f32 v81, v81, v83
""")
            self.granule(80, 81, sTMP + 4, 82)
            a.e("s_mov_b64 exec, 0xf")
            self.nocount(f"buffer_store_dwordx2 v[82:83], v13, {WS}, s{sTMP+5} offen sc1")
            a.e("s_mov_b64 exec, -1")
        a.e(f"{Lw}:")
        a.e(f"{Lq}:\ns_waitcnt lgkmcnt(0)")
        self.gu_dma_setup()
        self.gu_dma_hi([0])
        if "nomall2" not in EXP:
            Lm = a.label("Lmall")
            a.e(f"""
s_lshr_b32 s{sTMP}, s{sW}, 1
s_cmp_lg_u32 s{sTMP}, 1
s_cbranch_scc1 {Lm}
s_lshl_b32 s{sTMP}, s{sP}, 1
s_and_b32 s{sTMP+1}, s{sW}, 1
s_add_u32 s{sTMP}, s{sTMP}, s{sTMP+1}
s_lshl_b32 s{sTMP}, s{sTMP}, 13
s_add_u32 s{sTMP+1}, s{sTMP}, {84*8192}
s_sub_u32 s{sTMP+2}, s{sTMP}, {140*8192}
s_cmp_lt_u32 s{sTMP+2}, {140*8192}
s_cselect_b32 s{sTMP+2}, s{sTMP+2}, 0x7fff0000
s_add_u32 s{sTMP+2}, s{sTMP+2}, {84*8192}
s_sub_u32 s{sTMP+3}, s{sTMP}, {280*8192}
s_min_u32 s{sTMP+3}, s{sTMP+3}, 0x7fff0000
""")
            self.nocount(f"buffer_load_dword v2, v10, s[{S_WG}:{S_WG+3}], s{sTMP+1} offen")
            self.nocount(f"buffer_load_dword v2, v10, s[{S_WU}:{S_WU+3}], s{sTMP+2} offen")
            self.nocount(f"buffer_load_dword v2, v10, s[{S_WD}:{S_WD+3}], s{sTMP+3} offen")
            a.e(f"{Lm}:")
        Lep = a.label("Lep")
        a.e(f"s_mov_b32 s101, 0\ns_cmp_lg_u32 s2, 0\ns_cbranch_scc1 {Lep}\ns_cmp_lg_u32 s{sW}, 7\ns_cbranch_scc1 {Lep}\nv_lshlrev_b32 v124, 3, v1\ns_mov_b32 s{sTMP}, {XID}")
        for q in range(4):
            self.nocount(f"buffer_load_dword v{125+q}, v124, {WS}, s{sTMP} offen offset:{4 + 512*q} sc1")
        a.e(f"{Lep}:")
        SB = [16, 32]
        CN, OA, PK, MK, MX = 48, 64, 80, 96, 104
        VF = [108, 116]
        KA = 0
        a.e(f"""
v_and_b32 v8, 31, v1
v_lshrrev_b32 v9, 5, v1
v_bfe_u32 v7, v1, 2, 2
s_lshl_b32 s{sTMP}, s{sWH}, 1
v_or_b32 v12, s{sTMP}, v9
v_xor_b32 v12, v12, v7
v_lshlrev_b32 v4, 6, v8
v_lshl_add_u32 v4, v12, 4, v4
s_lshl_b32 s{sTMP+1}, s{sW3}, 11
s_add_u32 s{sTMP+2}, s{sTMP+1}, {L_K}
v_add_u32 v4, s{sTMP+2}, v4
v_and_b32 v13, 15, v1
v_lshlrev_b32 v5, 6, v13
v_xor_b32 v12, v9, v7
v_lshl_add_u32 v5, v12, 4, v5
v_xor_b32 v12, 2, v12
v_lshlrev_b32 v6, 6, v13
v_lshl_add_u32 v6, v12, 4, v6
s_lshl_b32 s{sTMP+2}, s{sWH}, 10
s_add_u32 s{sTMP+2}, s{sTMP+2}, s{sTMP+1}
s_add_u32 s{sTMP+2}, s{sTMP+2}, {L_V}
v_add_u32 v5, s{sTMP+2}, v5
v_add_u32 v6, s{sTMP+2}, v6
s_lshl_b32 s{sTMP}, s{sRB}, 2
s_add_u32 s{sTMP}, s{sTMP}, s{sW3}
s_sub_u32 s{sIMIN}, 8, s{sTMP}
s_cmp_ge_u32 s{sTMP}, 8
s_cselect_b32 s{sIMIN}, 0, s{sIMIN}
s_mul_i32 s92, s{sT}, 35840
s_min_u32 s93, s{sW}, 4
s_lshl_b32 s93, s93, 13
s_add_u32 s92, s92, s93
s_add_u32 s92, s92, {192*3584}
""")
        order = [8, 0, 7, 6, 5, 4, 3, 2, 1]
        ktok = {}
        for i in order:
            a.e(f"ds_read_b128 {ar(KA+4*i,4)}, v4 offset:{i*2048}")
            ktok[i] = a.lg_tok()
        a.e(f"v_lshlrev_b32 v12, 2, v9\nv_sub_u32 v12, v8, v12")
        for r in range(16):
            kl = 8 * (r >> 2) + (r & 3)
            a.e(f"v_cmp_le_i32 s[{sMASK+2*r}:{sMASK+2*r+1}], {kl}, v12")
        a.e(f"v_mov_b32 v13, 0xffff\nv_mov_b32 v7, 0xffff0000")
        for j in range(8):
            a.e(f"v_cndmask_b32 v{MK+j}, 0, v13, s[{sMASK+4*j}:{sMASK+4*j+1}]")
            a.e(f"v_cndmask_b32 v12, 0, v7, s[{sMASK+4*j+2}:{sMASK+4*j+3}]")
            a.e(f"v_or_b32 v{MK+j}, v{MK+j}, v12")
        a.e(f"v_and_b32 v12, 27, v1\nv_cmp_eq_u32 vcc, 16, v12\nv_mov_b32 v13, 0x3f803f80")
        for r in range(16):
            a.e(f"v_cndmask_b32 v{VF[0]+r}, 0, v13, vcc")
        Q = vr(QF, 4)

        touches = [None, (S_WG, 0), None, (S_WU, 0)]

        def touch_one():
            if "atouch" not in EXP or not touches:
                return
            t_ = touches.pop(0)
            if t_ is None:
                return
            srd, off = t_
            Ln = a.label("Lnt")
            a.e(f"s_cmp_gt_u32 s{sW}, 4\ns_cbranch_scc1 {Ln}\ns_add_u32 s93, s92, {off}")
            self.nocount(f"buffer_load_dword v2, v10, s[{srd}:{srd+3}], s93 offen")
            a.e(f"{Ln}:")

        def smfma(buf, i, c):
            return f"v_mfma_f32_32x32x16_bf16 {vr(SB[buf],16)}, {ar(KA+4*i,4)}, {Q}, {c}"

        def fix_trail():
            Ln = a.label("Lnt")
            a.e(f"s_cmp_eq_u32 s{sIMIN}, 0\ns_cbranch_scc1 {Ln}")
            a.e("s_nop 12")
            for r in range(16):
                a.e(f"v_mov_b32 v{SB[1]+r}, {NEG_BIG:#x}")
            a.e(f"{Ln}:\ns_nop 12")

        def merge():
            for r in range(16):
                a.e(f"v_cndmask_b32 v{SB[0]+r}, v{SB[1]+r}, v{SB[0]+r}, s[{sMASK+2*r}:{sMASK+2*r+1}]")

        touch_one()
        a.wait_lg(ktok[0])
        a.e(smfma(0, 8, "0"))
        a.e(smfma(1, 0, "0"))
        fix_trail()
        merge()
        a.wait_lg(ktok[7])
        a.e(smfma(1, 7, "0"))
        a.e(f"v_max3_f32 v{MX}, v{SB[0]}, v{SB[0]+1}, v{SB[0]+2}")
        for r in range(3, 15, 2):
            a.e(f"v_max3_f32 v{MX}, v{MX}, v{SB[0]+r}, v{SB[0]+r+1}")
        a.e(f"v_max_f32 v{MX}, v{MX}, v{SB[0]+15}")
        Le1 = a.label("Lp1e")
        buf = 1
        for i in range(7, 0, -1):
            a.e(f"s_cmp_gt_u32 s{sIMIN}, {i}\ns_cbranch_scc1 {Le1}")
            if i > 1:
                a.wait_lg(ktok[i - 1])
                a.e(smfma(1 - buf, i - 1, "0"))
            for r in range(0, 16, 2):
                a.e(f"v_max3_f32 v{MX}, v{MX}, v{SB[buf]+r}, v{SB[buf]+r+1}")
            buf = 1 - buf
        a.e(f"{Le1}:\ns_waitcnt lgkmcnt(0)\ns_nop 12")
        self.group_allsum([MX], [MX + 1], op="v_max_f32", stages=("32",))
        for r in range(16):
            a.e(f"v_sub_f32 v{CN+r}, 0, v{MX}")
        C = vr(CN, 16)

        def vread(b, i):
            return [f"s_mov_b32 exec_lo, 0xffff", f"s_mov_b32 exec_hi, 0xffff",
                    f"ds_read_b128 {vr(VF[b],4)}, v5 offset:{i*2048}", f"ds_read_b128 {vr(VF[b]+4,4)}, v6 offset:{i*2048}",
                    "s_mov_b64 exec, -1"]

        def expack(buf, dst):
            for r in range(16):
                a.e(f"v_exp_f32 v{SB[buf]+r}, v{SB[buf]+r}")
            for j in range(8):
                a.e(f"v_cvt_pk_bf16_f32 v{dst+j}, v{SB[buf]+2*j}, v{SB[buf]+2*j+1}")

        def pv(vb, p, first=False):
            a.e(f"v_mfma_f32_32x32x16_bf16 {vr(OA,16)}, {vr(VF[vb],4)}, {vr(p,4)}, {'0' if first else vr(OA,16)}")
            a.e(f"v_mfma_f32_32x32x16_bf16 {vr(OA,16)}, {vr(VF[vb]+4,4)}, {vr(p+4,4)}, {vr(OA,16)}")

        touch_one()
        a.e("\n".join(vread(0, 8) + vread(1, 0)))
        tv = a.lg_tok()
        a.e(smfma(0, 8, C))
        a.e(smfma(1, 0, C))
        fix_trail()
        merge()
        a.e(smfma(1, 7, C))
        expack(0, PK)
        for j in range(8):
            a.e(f"v_and_b32 v{PK+8+j}, v{PK+j}, v{MK+j}")
        for j in range(8):
            a.e(f"v_xor_b32 v{PK+j}, v{PK+j}, v{PK+8+j}")
        a.wait_lg(tv)
        pv(0, PK + 8, first=True)
        Lnt = a.label("Lnpv")
        a.e(f"s_cmp_lg_u32 s{sIMIN}, 0\ns_cbranch_scc1 {Lnt}")
        pv(1, PK)
        a.e(f"{Lnt}:")
        Le2 = a.label("Lp2e")
        buf = 1
        vb = 0
        a.e("\n".join(vread(0, 7)))
        for i in range(7, 0, -1):
            a.e(f"s_cmp_gt_u32 s{sIMIN}, {i}\ns_cbranch_scc1 {Le2}")
            tv = a.lg_tok()
            if i > 1:
                a.e(smfma(1 - buf, i - 1, C))
                a.e("\n".join(vread(1 - vb, i - 1)))
            if i in (6, 4):
                touch_one()
            p = PK + 8 * (i & 1)
            expack(buf, p)
            a.wait_lg(tv)
            pv(vb, p)
            buf = 1 - buf
            vb = 1 - vb
        a.e(f"{Le2}:\ns_waitcnt lgkmcnt(0)\ns_nop 15")
        a.e(f"v_rcp_f32 v{MX}, v{OA+8}")
        for r in range(8):
            a.e(f"v_mul_f32 v{OA+r}, v{MX}, v{OA+r}")
        for j in range(4):
            a.e(f"v_cvt_pk_bf16_f32 v{PK+j}, v{OA+2*j}, v{OA+2*j+1}")
        a.e(f"""
s_lshl_b32 s{sTMP}, s{sRB}, 2
s_add_u32 s{sTMP}, s{sTMP}, s{sW3}
s_lshl_b32 s{sTMP}, s{sTMP}, 15
s_lshl_b32 s{sTMP+1}, s{sJ}, 11
s_add_u32 s{sTMP}, s{sTMP}, s{sTMP+1}
s_lshl_b32 s{sTMP+1}, s{sWH}, 10
s_add_u32 s{sTMP}, s{sTMP}, s{sTMP+1}
s_add_u32 s{sTMP}, s{sTMP}, {OBUF}
s_lshl_b32 s{sTMP+1}, s{sP}, 5
s_lshl_b32 s{sTMP+2}, s{sW}, 2
s_add_u32 s{sTMP+1}, s{sTMP+1}, s{sTMP+2}
s_add_u32 s{sTMP+1}, s{sTMP+1}, {FL_O}
v_mov_b32 v14, s{sTAG}
v_mov_b32 v15, 0
""")
        self.store_sel(f"buffer_store_dwordx4 v[{PK}:{PK+3}], v11, {WS}, s{sTMP} offen\n" + self.flag_seq(f"s{sTMP+1}"))
        Lep = a.label("Lep2")
        a.e(f"""
s_cmp_lg_u32 s2, 0
s_cbranch_scc1 {Lep}
s_cmp_lg_u32 s{sW}, 7
s_cbranch_scc1 {Lep}
v_xor_b32 v125, s{sTAG}, v125
v_xor_b32 v126, s{sTAG}, v126
v_xor_b32 v127, s{sTAG}, v127
v_xor_b32 v128, s{sTAG}, v128
v_or3_b32 v125, v125, v126, v127
v_or_b32 v125, v125, v128
v_cmp_ne_u32 vcc, 0, v125
s_cbranch_vccnz {Lep}
s_mov_b32 s101, 1
s_mov_b64 exec, 1
""")
        self.nocount(f"buffer_store_dword v14, v15, {WS}, 0 offen offset:{EPOCH} sc1")
        a.e(f"s_mov_b64 exec, -1\n{Lep}:")
        self.stamp(6)
        self.gu_dma_setup(lanes=False)
        a.e("s_barrier")

    def w64_lane(self, vd, stride=1024):
        self.a.e(f"""
v_lshrrev_b32 v{vd}, 3, v1
v_mul_u32_u24 v{vd}, {stride}, v{vd}
v_and_b32 v2, 7, v1
v_bfe_u32 v{vd+1}, v1, 4, 1
v_lshlrev_b32 v{vd+1}, 2, v{vd+1}
v_xor_b32 v2, v2, v{vd+1}
v_lshl_add_u32 v{vd}, v2, 4, v{vd}
""")

    def tr64_bases(self, vd):
        self.a.e(f"""
v_lshrrev_b32 v8, 5, v1
v_bfe_u32 v9, v1, 2, 2
v_lshl_add_u32 v8, v8, 3, v9
v_lshlrev_b32 v8, 7, v8
v_bfe_u32 v12, v1, 4, 1
v_lshl_add_u32 v8, v12, 5, v8
v_and_b32 v12, 1, v1
v_lshl_add_u32 v8, v12, 4, v8
v_bfe_u32 v12, v1, 1, 1
v_lshl_add_u32 v8, v12, 3, v8
v_lshrrev_b32 v9, 1, v9
v_lshl_add_u32 v{vd}, v9, 6, v8
v_xor_b32 v9, 1, v9
v_lshl_add_u32 v{vd+1}, v9, 6, v8
""")

    def gu_dma_setup(self, lanes=True):
        a = self.a
        a.e(f"""
s_cmp_ge_u32 s{sW3}, 2
s_cselect_b32 s{S_SEL}, s{S_WU}, s{S_WG}
s_cselect_b32 s{S_SEL+1}, s{S_WU+1}, s{S_WG+1}
s_cselect_b32 s76, {GU_UP}, 0
s_mov_b32 s{S_SEL+2}, 1835008
s_mov_b32 s{S_SEL+3}, 0x20000
s_mov_b32 s84, 4682
s_and_b32 s86, s{sW}, 1
s_mul_i32 s85, s86, {32*3584}
s_mul_i32 s87, s{sJ}, 224
s_add_u32 s85, s85, s87
s_mul_i32 s86, s86, 7168
s_add_u32 s76, s76, s86
""")
        for i in range(7 if lanes else 0):
            a.e(f"""
v_add_u32 v12, {64*i}, v1
v_mul_u32_u24 v13, s84, v12
v_lshrrev_b32 v13, 16, v13
v_mul_u32_u24 v{144+i}, 14, v13
v_sub_u32 v12, v12, v{144+i}
v_mul_u32_u24 v{144+i}, 3584, v13
v_lshl_add_u32 v{144+i}, v12, 4, v{144+i}
""")

    def gu_dma(self, chunk):
        out = []
        for i in range(7):
            out.append(f"s_add_u32 s86, s85, {chunk*64*3584}\ns_add_u32 m0, s76, {GU_SLOT[chunk%4] + i*1024}\n"
                       f"buffer_load_dwordx4 v{144+i}, s[{S_SEL}:{S_SEL+3}], s86 offen{NTG} lds")
        return out

    def gu_dma_hi(self, chunks):
        a = self.a
        Ln = a.label("Lgh")
        a.e(f"s_cmp_lt_u32 s{sW}, 4\ns_cbranch_scc1 {Ln}")
        for c in chunks:
            self.nocount("\n".join(self.gu_dma(c)))
        a.e(f"{Ln}:")

    def reduce_scatter4(self, ACC, base, dst):
        a = self.a
        a.e(f"""
s_and_b32 s{sTMP+1}, s{sW}, 1
s_lshl_b32 s{sTMP+1}, s{sTMP+1}, 15
s_lshr_b32 s{sTMP+5}, s{sW}, 1
s_lshl_b32 s{sTMP+6}, s{sTMP+5}, 11
s_add_u32 s{sTMP+6}, s{sTMP+6}, s{sTMP+1}
s_add_u32 s{sTMP+6}, s{sTMP+6}, {base}
v_add_u32 v12, s{sTMP+6}, v11
s_lshl_b32 s{sTMP+6}, s{sTMP+5}, 13
s_add_u32 s{sTMP+6}, s{sTMP+6}, s{sTMP+1}
s_add_u32 s{sTMP+6}, s{sTMP+6}, {base}
v_add_u32 v13, s{sTMP+6}, v11
""")
        for q in range(4):
            for hf in range(2):
                a.e(f"ds_write_b128 v12, {vr(ACC+8*q+4*hf,4)} offset:{q*8192 + hf*1024}")
        a.e("s_waitcnt lgkmcnt(0)\ns_barrier")
        for src in range(4):
            for hf in range(2):
                a.e(f"ds_read_b128 {vr(ACC+8*src+4*hf,4)}, v13 offset:{src*2048 + hf*1024}")
        a.e("s_waitcnt lgkmcnt(0)")
        for r in range(8):
            a.e(f"v_add_f32 v{ACC+r}, v{ACC+r}, v{ACC+8+r}\nv_add_f32 v{ACC+16+r}, v{ACC+16+r}, v{ACC+24+r}")
        for r in range(8):
            a.e(f"v_add_f32 v{dst+r}, v{ACC+r}, v{ACC+16+r}")

    def phase3(self):
        a = self.a
        a.e(f"""
s_lshr_b32 s{sTMP+3}, s{sJ}, 3
s_lshl_b32 s{sTMP+3}, s{sTMP+3}, 1
s_and_b32 s{sTMP+1}, s{sW}, 1
s_add_u32 s{sTMP+3}, s{sTMP+3}, s{sTMP+1}
s_lshr_b32 s{sTMP+5}, s{sW}, 1
s_and_b32 s{sTMP+7}, s{sTMP+5}, 1
s_lshl_b32 s{sTMP}, s{sRB}, 9
s_lshl_b32 s{sTMP+1}, s{sTMP+3}, 2
s_add_u32 s{sTMP}, s{sTMP}, s{sTMP+1}
s_lshl_b32 s{sTMP+1}, s{sTMP+5}, 7
s_add_u32 s89, s{sTMP}, s{sTMP+1}
s_lshl_b32 s{sTMP+1}, s{sTMP+7}, 8
s_add_u32 s{sTMP}, s{sTMP}, s{sTMP+1}
s_add_u32 s{sTMP}, s{sTMP}, {FL_O}
v_and_b32 v14, 3, v1
v_lshlrev_b32 v14, 5, v14
v_bfe_u32 v15, v1, 2, 1
v_lshl_add_u32 v153, v15, 4, v14
v_and_b32 v14, 7, v1
v_lshlrev_b32 v14, 5, v14
v_bfe_u32 v15, v1, 3, 1
v_lshl_add_u32 v14, v15, 4, v14
s_lshl_b32 s88, s{sRB}, 2
s_add_u32 s88, s88, s{sTMP+3}
s_lshl_b32 s{sTMP+2}, s88, 15
s_lshl_b32 s{sTMP+1}, s{sTMP+7}, 14
s_add_u32 s{sTMP+2}, s{sTMP+2}, s{sTMP+1}
s_add_u32 s{sTMP+2}, s{sTMP+2}, {OBUF}
""")
        self.tr64_bases(154)
        a.e(f"""
s_cmp_ge_u32 s{sW}, 4
s_cselect_b64 vcc, -1, 0
v_cndmask_b32 v4, v154, v155, vcc
s_lshl_b32 s{sTMP+1}, s{sTMP+7}, 15
s_add_u32 s{sTMP+1}, s{sTMP+1}, {L_WO}
v_add_u32 v4, s{sTMP+1}, v4
v_and_b32 v12, 31, v1
v_lshlrev_b32 v12, 10, v12
v_lshrrev_b32 v13, 5, v1
v_lshl_add_u32 v151, v13, 4, v12
s_lshl_b32 s80, s88, 15
s_and_b32 s{sTMP+6}, s{sJ}, 7
s_lshl_b32 s{sTMP+6}, s{sTMP+6}, 7
s_add_u32 s80, s80, s{sTMP+6}
s_lshl_b32 s{sTMP+1}, s{sTMP+5}, 5
s_add_u32 s80, s80, s{sTMP+1}
v_lshlrev_b32 v12, 11, v3
v_and_b32 v13, 15, v1
v_lshl_add_u32 v12, v13, 4, v12
s_lshl_b32 s{sTMP+6}, s{sTMP+6}, 1
s_add_u32 s{sTMP+6}, s{sTMP+6}, {MODG}
""")
        XR = 124
        a.e(f"buffer_load_dwordx4 v[{XR}:{XR+3}], v151, s[{S_X}:{S_X+3}], s80 offen")
        Lt = a.label("Ltab")
        L = a.label("T")
        Lo = a.label("To")
        a.e(f"s_cmp_lg_u32 s{sW}, 2\ns_cbranch_scc1 {Lt}\ns_mov_b32 s{sTMP+11}, 0\n{L}:")
        self.nocount(f"buffer_load_dwordx4 v[96:99], v12, {WS}, s{sTMP+6} offen sc1")
        a.e(f"""
s_add_u32 s{sTMP+11}, s{sTMP+11}, 1
s_cmp_gt_u32 s{sTMP+11}, 400000
s_cbranch_scc1 {Lo}
s_waitcnt vmcnt(0)
v_xor_b32 v100, s{sTAG}, v97
v_xor_b32 v101, s{sTAG}, v99
v_or_b32 v100, v100, v101
v_cmp_ne_u32 vcc, 0, v100
s_cbranch_vccnz {L}
{Lo}:
s_waitcnt vmcnt(0)
v_and_b32 v97, 0xffff0000, v96
v_lshlrev_b32 v96, 16, v96
v_and_b32 v99, 0xffff0000, v98
v_lshlrev_b32 v98, 16, v98
v_add_u32 v12, {L_TAB}, v11
""")
        self.nocount("ds_write_b128 v12, v[96:99]")
        a.e(f"{Lt}:")
        ACC = 16
        BF = [32, 36, 40]
        AF = lambda s: ar(4 * s, 4)

        def R(s):
            return [f"ds_read_b64_tr_b16 {vr(BF[s%3]+2*i,2)}, v4 offset:{(16*s+4*i)*128}" for i in range(2)]

        a.e("s_waitcnt lgkmcnt(0)")
        toks = {}
        for s in range(2):
            a.e("\n".join(R(s)))
            toks[s] = a.lg_tok()
        self.poll(14, f"s{sTMP}", 15)
        self.stamp(7)
        vt = {}
        for s in range(16):
            if s % 4 == 0 and s:
                a.e(f"s_add_u32 s{sTMP+2}, s{sTMP+2}, 4096")
            a.e(f"buffer_load_dwordx4 {AF(s)}, v11, {WS}, s{sTMP+2} offen offset:{(s%4)*1024}")
            vt[s] = a.vm_tok()
        for s in range(16):
            a.wait_lg(toks[s])
            a.wait_vm(vt[s])
            a.e(f"v_mfma_f32_32x32x16_bf16 {vr(ACC,16)}, {vr(BF[s%3],4)}, {AF(s)}, {'0' if s == 0 else vr(ACC,16)}")
            if s + 2 < 16:
                a.e("\n".join(R(s + 2)))
                toks[s + 2] = a.lg_tok()
        self.stamp(18)
        a.e(f"""
s_and_b32 s{sTMP+1}, s{sW}, 1
s_lshl_b32 s{sTMP+1}, s{sTMP+1}, 14
s_lshl_b32 s{sTMP+6}, s{sWH}, 13
s_add_u32 s{sTMP+1}, s{sTMP+1}, s{sTMP+6}
s_add_u32 s{sTMP+1}, s{sTMP+1}, {L_RED}
s_lshl_b32 s{sTMP+6}, s{sTMP+7}, 11
s_add_u32 s{sTMP+6}, s{sTMP+6}, s{sTMP+1}
v_add_u32 v12, s{sTMP+6}, v11
s_lshl_b32 s{sTMP+6}, s{sTMP+7}, 12
s_add_u32 s{sTMP+6}, s{sTMP+6}, s{sTMP+1}
v_add_u32 v13, s{sTMP+6}, v11
""")
        for q in range(2):
            for hf in range(2):
                a.e(f"ds_write_b128 v12, {vr(ACC+8*q+4*hf,4)} offset:{q*4096 + hf*1024}")
        a.e("s_waitcnt lgkmcnt(0)\ns_barrier")
        self.stamp(19)
        for src in range(2):
            for hf in range(2):
                a.e(f"ds_read_b128 {vr(ACC+8*src+4*hf,4)}, v13 offset:{src*2048 + hf*1024}")
        GA, SBv, G2 = 56, 64, 72
        a.e(f"""
v_lshrrev_b32 v13, 5, v1
v_lshlrev_b32 v13, 5, v13
s_lshl_b32 s{sTMP+5}, s{sTMP+5}, 6
s_add_u32 s{sTMP+5}, s{sTMP+5}, {L_TAB}
v_add_u32 v13, s{sTMP+5}, v13
ds_read_b128 {vr(GA,4)}, v13
ds_read_b128 {vr(GA+4,4)}, v13 offset:16
ds_read_b128 {vr(SBv,4)}, v13 offset:256
ds_read_b128 {vr(SBv+4,4)}, v13 offset:272
ds_read_b128 {vr(G2,4)}, v13 offset:512
ds_read_b128 {vr(G2+4,4)}, v13 offset:528
ds_read_b128 a[88:91], v13 offset:768
ds_read_b128 a[92:95], v13 offset:784
""")
        X1 = 96
        X1P = 132
        for q in range(4):
            a.e(f"v_lshlrev_b32 v{X1+2*q}, 16, v{XR+q}\nv_and_b32 v{X1+1+2*q}, 0xffff0000, v{XR+q}")
        a.e("s_waitcnt lgkmcnt(6)")
        for r in range(8):
            a.e(f"v_add_f32 v{ACC+r}, v{ACC+r}, v{ACC+8+r}")
        for r in range(8):
            a.e(f"v_fmac_f32 v{X1+r}, v{GA+r}, v{ACC+r}")
        for q in range(4):
            a.e(f"v_cvt_pk_bf16_f32 v{X1P+q}, v{X1+2*q}, v{X1+1+2*q}")
        for q in range(4):
            a.e(f"v_lshlrev_b32 v{X1+2*q}, 16, v{X1P+q}\nv_and_b32 v{X1+1+2*q}, 0xffff0000, v{X1P+q}")
        a.e(f"v_add_f32 v16, v{X1}, v{X1+1}\nv_mul_f32 v17, v{X1}, v{X1}")
        for r in range(2, 8):
            a.e(f"v_add_f32 v16, v16, v{X1+r}")
        for r in range(1, 8):
            a.e(f"v_fmac_f32 v17, v{X1+r}, v{X1+r}")
        self.group_allsum([16, 17], [20, 21], stages=("32",))
        a.e(f"""
v_and_b32 v12, 31, v1
v_lshlrev_b32 v12, 5, v12
s_and_b32 s{sTMP+1}, s{sW}, 1
s_lshl_b32 s{sTMP+1}, s{sTMP+1}, 10
s_add_u32 s{sTMP+1}, s{sTMP+1}, {L_ST}
v_add_u32 v12, s{sTMP+1}, v12
s_lshr_b32 s{sTMP+5}, s{sW}, 1
s_lshl_b32 s{sTMP+5}, s{sTMP+5}, 3
v_add_u32 v13, s{sTMP+5}, v12
ds_write_b64 v13, v[16:17]
s_waitcnt lgkmcnt(0)
s_barrier
""")
        if self.dump:
            a.e(f"s_add_u32 s{sTMP+7}, s80, {X1DBG}")
            self.nocount(f"buffer_store_dwordx4 v[{X1P}:{X1P+3}], v151, {WS}, s{sTMP+7} offen")
        self.stamp(20)
        L_j = a.label("Lp3j")
        a.e(f"s_cmp_ge_u32 s{sW}, 2\ns_cbranch_scc1 {L_j}")
        v0_, l0_ = a.vm_issued, a.lg_issued
        a.e(f"""
ds_read_b128 v[20:23], v12
ds_read_b128 v[24:27], v12 offset:16
v_mov_b32 v18, s{sTAG}
v_mov_b32 v19, s{sTAG}
v_and_b32 v13, 31, v1
v_lshlrev_b32 v13, 7, v13
s_lshl_b32 s{sTMP+5}, s88, 12
s_add_u32 s{sTMP+5}, s{sTMP+5}, {SGRAN}
s_and_b32 s{sTMP+6}, s{sJ}, 7
s_lshl_b32 s{sTMP+6}, s{sTMP+6}, 4
s_add_u32 s{sTMP+6}, s{sTMP+6}, s{sTMP+5}
v_lshrrev_b32 v2, 5, v1
v_lshl_add_u32 v2, v2, 6, v13
s_waitcnt lgkmcnt(0)
v_add_f32 v16, v20, v22
v_add_f32 v17, v21, v23
v_add_f32 v24, v24, v26
v_add_f32 v25, v25, v27
v_add_f32 v16, v16, v24
v_add_f32 v17, v17, v25
""")
        self.store_sel(f"s_mov_b32 exec_hi, 0\nbuffer_store_dwordx4 v[16:19], v13, {WS}, s{sTMP+6} offen\ns_mov_b64 exec, -1")
        L = a.label("SG")
        Lo = a.label("SGo")
        a.e(f"s_mov_b32 s{sTMP+11}, 0\n{L}:")
        self.nocount("\n".join(f"buffer_load_dwordx4 v[{20+4*q}:{23+4*q}], v2, {WS}, s{sTMP+5} offen offset:{16*q} sc1" for q in range(4)))
        a.e(f"""
s_add_u32 s{sTMP+11}, s{sTMP+11}, 1
s_cmp_gt_u32 s{sTMP+11}, 400000
s_cbranch_scc1 {Lo}
s_waitcnt vmcnt(0)
v_xor_b32 v36, s{sTAG}, v22
v_xor_b32 v37, s{sTAG}, v26
v_or_b32 v36, v36, v37
v_xor_b32 v37, s{sTAG}, v30
v_or_b32 v36, v36, v37
v_xor_b32 v37, s{sTAG}, v34
v_or_b32 v36, v36, v37
v_cmp_ne_u32 vcc, 0, v36
s_cbranch_vccnz {L}
{Lo}:
s_waitcnt vmcnt(0)
v_add_f32 v16, v20, v24
v_add_f32 v17, v21, v25
v_add_f32 v28, v28, v32
v_add_f32 v29, v29, v33
v_add_f32 v16, v16, v28
v_add_f32 v17, v17, v29
""")
        self.group_allsum([16, 17], [20, 21], stages=("32",))
        a.e(f"""
v_mul_f32 v16, {f2u(1/512):#x}, v16
v_mul_f32 v17, {f2u(1/512):#x}, v17
v_fma_f32 v17, -v16, v16, v17
v_max_f32 v17, 0, v17
v_add_f32 v17, {f2u(1e-5):#x}, v17
v_rsq_f32 v18, v17
v_mul_f32 v19, v16, v18
v_sub_f32 v19, 0, v19
ds_write_b64 v12, v[18:19] offset:2048
s_waitcnt lgkmcnt(0)
""")
        self.stamp(21)
        a.vm_issued, a.lg_issued = v0_, l0_
        a.e(f"{L_j}:")
        a.e(f"""
s_lshl_b32 s{sTMP+5}, s88, 15
s_and_b32 s{sTMP+6}, s{sJ}, 7
s_lshl_b32 s{sTMP+6}, s{sTMP+6}, 12
s_add_u32 s{sTMP+5}, s{sTMP+5}, s{sTMP+6}
s_lshr_b32 s{sTMP+6}, s{sW}, 1
s_lshl_b32 s{sTMP+6}, s{sTMP+6}, 10
s_add_u32 s{sTMP+5}, s{sTMP+5}, s{sTMP+6}
s_add_u32 s{sTMP+5}, s{sTMP+5}, {H2BUF}
s_lshl_b32 s{sTMP+6}, s{sP}, 5
s_lshl_b32 s{sTMP+7}, s{sW}, 2
s_add_u32 s{sTMP+6}, s{sTMP+6}, s{sTMP+7}
s_add_u32 s{sTMP+6}, s{sTMP+6}, {FL_H2}
v_mov_b32 v14, s{sTAG}
v_mov_b32 v15, 0
s_barrier
ds_read_b64 v[18:19], v12 offset:2048
s_waitcnt lgkmcnt(0)
""")
        for r in range(8):
            a.e(f"v_fma_f32 v{X1+r}, v{X1+r}, v18, v19")
        for q in range(4):
            a.e(f"v_cvt_pk_bf16_f32 v{32+q}, v{X1+2*q}, v{X1+1+2*q}")
        for q in range(4):
            a.e(f"v_lshlrev_b32 v{X1+2*q}, 16, v{32+q}\nv_and_b32 v{X1+1+2*q}, 0xffff0000, v{32+q}")
        for r in range(8):
            a.e(f"v_fma_f32 v{X1+r}, v{X1+r}, v{G2+r}, v{SBv+r}")
        for q in range(4):
            a.e(f"v_cvt_pk_bf16_f32 v{32+q}, v{X1+2*q}, v{X1+1+2*q}")
        self.store_sel(f"buffer_store_dwordx4 v[32:35], v11, {WS}, s{sTMP+5} offen\n" + self.flag_seq(f"s{sTMP+6}"))
        self.stamp(8)

    def d_dma_setup(self):
        a = self.a
        self.w64_lane(12)
        a.e(f"""
v_mov_b32 v152, v12
s_and_b32 s81, s{sJ}, 7
s_lshl_b32 s81, s81, 7
s_lshl_b32 s83, s{sW}, 13
s_add_u32 s81, s81, s83
s_lshl_b32 s82, s{sW}, 10
""")

    def d_dma(self, c):
        return [f"s_add_u32 m0, s82, {D_SLOT[c%4] + q*8192}\ns_add_u32 s83, s81, {(448*q + 64*c)*1024}\n"
                f"buffer_load_dwordx4 v152, s[{S_WD}:{S_WD+3}], s83 offen{NTD} lds" for q in range(4)]

    def phase4(self):
        a = self.a
        self.d_dma_setup()
        a.e(f"""
s_lshl_b32 s{sTMP}, s{sRB}, 9
s_lshr_b32 s{sTMP+1}, s{sW3}, 1
s_lshl_b32 s{sTMP+1}, s{sTMP+1}, 8
s_add_u32 s{sTMP}, s{sTMP}, s{sTMP+1}
s_and_b32 s{sTMP+1}, s{sW3}, 1
s_lshl_b32 s{sTMP+1}, s{sTMP+1}, 2
s_add_u32 s{sTMP}, s{sTMP}, s{sTMP+1}
s_add_u32 s{sTMP}, s{sTMP}, {FL_H2}
v_and_b32 v14, 7, v1
v_lshlrev_b32 v14, 5, v14
v_bfe_u32 v15, v1, 3, 2
v_lshl_add_u32 v14, v15, 3, v14
s_lshl_b32 s{sTMP+2}, s{sRB}, 2
s_add_u32 s{sTMP+2}, s{sTMP+2}, s{sW3}
s_lshl_b32 s{sTMP+2}, s{sTMP+2}, 15
s_add_u32 s{sTMP+2}, s{sTMP+2}, {H2BUF}
v_lshrrev_b32 v8, 5, v1
v_bfe_u32 v9, v1, 2, 2
v_lshl_add_u32 v9, v8, 3, v9
v_mul_u32_u24 v7, 224, v9
v_bfe_u32 v9, v1, 4, 1
v_mul_u32_u24 v9, {GU_UP}, v9
v_add_u32 v7, v7, v9
v_and_b32 v9, 1, v1
v_lshl_add_u32 v7, v9, 4, v7
v_bfe_u32 v9, v1, 1, 1
v_lshl_add_u32 v7, v9, 3, v7
v_add_u32 v4, {GU_SLOT[0]}, v7
v_add_u32 v5, {GU_SLOT[1]}, v7
v_add_u32 v6, {GU_SLOT[2]}, v7
s_barrier
""")
        ACC = [16 + 16 * T for T in range(7)]
        BF = [0, 28]
        NA = 8
        PD = 6
        slot = lambda i: ar(56 + 4 * (i % NA), 4)

        def body(kp):
            def aload(i):
                s_ = 2 * i + kp
                out = []
                if i % 2 == 0 and i > 0:
                    out.append(f"s_add_u32 s{sTMP+2}, s{sTMP+2}, 4096")
                out.append(f"buffer_load_dwordx4 {slot(i)}, v11, {WS}, s{sTMP+2} offen offset:{(s_%4)*1024} sc1")
                return out

            def R(i):
                s_ = 2 * i + kp
                c, sl = s_ // 4, s_ % 4
                return [f"ds_read_b64_tr_b16 {ar(BF[i%2]+4*T+2*ii,2)}, v{4 + c%4} offset:{(16*sl+4*ii)*224 + T*32}" for T in range(7) for ii in range(2)]

            def M(i):
                return [f"v_mfma_f32_32x32x16_bf16 {vr(ACC[T],16)}, {ar(BF[i%2]+4*T,4)}, {slot(i)}, {'0' if i == 0 else vr(ACC[T],16)}" for T in range(7)]
            toks = {}
            a.e("\n".join(R(0)))
            toks[0] = a.lg_tok()
            self.poll(14, f"s{sTMP}", 15)
            self.stamp(9)
            vt = {}
            for i in range(PD):
                a.e("\n".join(aload(i)))
                vt[i] = a.vm_tok()
            gtok = {}
            mine = lambda c: (c & 1) != kp
            pend = []
            for g in self.gu_dma(1 if mine(1) else 2):
                a.e(g)
            gtok[1 if mine(1) else 2] = a.vm_tok()
            if mine(3):
                pend += [(3, g) for g in self.gu_dma(3)]
            for i in range(16):
                c = i // 2
                a.wait_lg(toks[i])
                if i % 2 == 1 and c + 1 < 8:
                    if mine(c + 1):
                        assert (c + 1) in gtok and not any(p[0] == c + 1 for p in pend)
                        a.wait_vm(gtok[c + 1])
                    a.e("s_barrier")
                    if c + 4 < 8 and mine(c + 4):
                        pend += [(c + 4, g) for g in self.gu_dma(c + 4)]
                    if c == 6:
                        pend += [(100, g) for g in self.d_dma(0)]
                    if c == 4 and "nodt" not in EXP:
                        pend += [(101, f"s_mul_i32 s92, s{sT}, 57344\ns_lshl_b32 s93, s{sW}, 13\ns_add_u32 s92, s92, s93\n"
                                       f"buffer_load_dword v2, v10, s[{S_WD}:{S_WD+3}], s92 offen")]
                r = R(i + 1) if i < 15 else []
                a.wait_vm(vt[i])
                extra = []
                if i + PD < 16:
                    extra.append(("a", i + PD))
                for _ in range(3):
                    if pend:
                        extra.append(("d", pend.pop(0)))
                m = M(i)
                seq = interleave(m, r)
                pos = [k for k, x in enumerate(seq) if x.startswith("v_mfma")]
                ins_at = {pos[min(2 * n + 1, len(pos) - 1)]: e for n, e in enumerate(extra)}
                for k, x in enumerate(seq):
                    a.e(x)
                    if k in ins_at:
                        kind, val = ins_at[k]
                        if kind == "a":
                            a.e("\n".join(aload(val)))
                            vt[val] = a.vm_tok()
                        else:
                            a.e(val[1])
                            gtok[val[0]] = a.vm_tok()
                if r:
                    toks[i + 1] = a.lg_tok()
            assert not pend
            self.stamp(17)
            keep = [0, 1, 2, 3] if kp == 0 else [4, 5, 6]
            give = [4, 5, 6] if kp == 0 else [0, 1, 2, 3]
            wbase, wstr = (L_XB, 12288) if kp == 0 else (L_XA, 16384)
            rbase, rstr = (L_XA, 16384) if kp == 0 else (L_XB, 12288)
            a.e(f"""
s_mul_i32 s{sTMP+5}, s{sW3}, {wstr}
s_add_u32 s{sTMP+5}, s{sTMP+5}, {wbase}
v_add_u32 v12, s{sTMP+5}, v11
s_mul_i32 s{sTMP+5}, s{sW3}, {rstr}
s_add_u32 s{sTMP+5}, s{sTMP+5}, {rbase}
v_add_u32 v13, s{sTMP+5}, v11
s_barrier
""")
            for n, T in enumerate(give):
                for q in range(4):
                    a.e(f"ds_write_b128 v12, {vr(ACC[T]+4*q,4)} offset:{n*4096 + q*1024}")
            K0 = -2.0 * 0.7978845608028654 * LOG2E
            K1 = K0 * 0.044715
            a.e(f"s_mov_b32 s{sTMP+4}, {f2u(K1):#x}\nv_mov_b32 v6, {f2u(K0):#x}")
            a.e(f"""
s_lshl_b32 s{sTMP+5}, s{sRB}, 2
s_add_u32 s{sTMP+5}, s{sTMP+5}, s{sW3}
s_mul_i32 s{sTMP+5}, s{sTMP+5}, {112*1024}
s_mul_i32 s{sTMP+6}, s{sJ}, {7*1024}
s_add_u32 s{sTMP+5}, s{sTMP+5}, s{sTMP+6}
s_lshl_b32 s{sTMP+6}, s{sWH}, 12
s_add_u32 s{sTMP+5}, s{sTMP+5}, s{sTMP+6}
s_add_u32 s{sTMP+5}, s{sTMP+5}, {ACT}
s_lshl_b32 s{sTMP+6}, s{sP}, 5
s_lshl_b32 s{sTMP+7}, s{sW}, 2
s_add_u32 s{sTMP+6}, s{sTMP+6}, s{sTMP+7}
s_add_u32 s{sTMP+6}, s{sTMP+6}, {FL_ACT}
v_mov_b32 v14, s{sTAG}
v_mov_b32 v15, 0
s_waitcnt lgkmcnt(0)
s_barrier
""")
            land = give + ([give[0]] if len(keep) > len(give) else [])
            rt = {}
            for n, T in enumerate(keep[:len(give)]):
                for q in range(4):
                    a.e(f"ds_read_b128 {vr(ACC[land[n]]+4*q,4)}, v13 offset:{n*4096 + q*1024}")
                rt[n] = a.lg_tok()
            PKo = 128
            outs = []
            for n, T in enumerate(keep):
                g = ACC[T]
                if n >= len(give):
                    for q in range(4):
                        a.e(f"ds_read_b128 {vr(ACC[land[n]]+4*q,4)}, v13 offset:{n*4096 + q*1024}")
                    rt[n] = a.lg_tok()
                a.wait_lg(rt[n])
                p = ACC[land[n]]
                for r in range(16):
                    a.e(f"v_add_f32 v{g+r}, v{g+r}, v{p+r}")
                t = p
                for r in range(8):
                    a.e(f"v_mul_f32 v{t+r}, v{g+r}, v{g+r}")
                for r in range(8):
                    a.e(f"v_fma_f32 v{t+r}, v{t+r}, s{sTMP+4}, v6")
                for r in range(8):
                    a.e(f"v_mul_f32 v{t+r}, v{t+r}, v{g+r}")
                for r in range(8):
                    a.e(f"v_exp_f32 v{t+r}, v{t+r}")
                for r in range(8):
                    a.e(f"v_mul_f32 v{g+r}, v{g+r}, v{g+8+r}")
                for r in range(8):
                    a.e(f"v_add_f32 v{t+r}, 1.0, v{t+r}")
                for r in range(8):
                    a.e(f"v_rcp_f32 v{t+r}, v{t+r}")
                for r in range(8):
                    a.e(f"v_mul_f32 v{g+r}, v{g+r}, v{t+r}")
                for q in range(4):
                    a.e(f"v_cvt_pk_bf16_f32 v{g+8+q}, v{g+2*q}, v{g+2*q+1}")
                outs.append(g + 8)
            st = "\n".join(f"buffer_store_dwordx4 v[{o}:{o+3}], v11, {WS}, s{sTMP+5} offen offset:{1024*n}" for n, o in enumerate(outs))
            self.store_sel(st + "\n" + self.flag_seq(f"s{sTMP+6}"))

        L3 = a.label("Lgu3")
        Lj = a.label("Lguj")
        a.e(f"s_cmp_ge_u32 s{sW}, 4\ns_cbranch_scc1 {L3}")
        v0_, l0_ = a.vm_issued, a.lg_issued
        body(0)
        a.e(f"s_branch {Lj}\n{L3}:")
        a.vm_issued, a.lg_issued = v0_, l0_
        body(1)
        a.e(f"{Lj}:")
        self.stamp(10)

    def phase5(self):
        a = self.a
        a.e(f"""
s_add_u32 s{sTMP}, s89, {FL_ACT}
s_lshr_b32 s{sTMP+5}, s{sW}, 1
s_mul_i32 s{sTMP+2}, s88, {112*1024}
s_mul_i32 s{sTMP+1}, s{sTMP+5}, {28*1024}
s_add_u32 s{sTMP+2}, s{sTMP+2}, s{sTMP+1}
s_add_u32 s{sTMP+2}, s{sTMP+2}, {ACT}
s_lshl_b32 s{sTMP+1}, s{sTMP+5}, 13
v_add_u32 v154, s{sTMP+1}, v154
v_add_u32 v155, s{sTMP+1}, v155
""")
        for si in range(4):
            a.e(f"v_add_u32 v{140+2*si}, {D_SLOT[si]}, v154\nv_add_u32 v{141+2*si}, {D_SLOT[si]}, v155")
        ACC = 16
        BF = [48, 56]
        NA = 20
        PD = int(os.environ.get("DPD", "16"))
        DV = os.environ.get("DV", "c")
        AF = lambda s: ar(4 * (s % NA), 4)

        def R(s):
            c, sl = s // 4, s % 4
            return [f"ds_read_b64_tr_b16 {vr(BF[s%2]+4*t+2*i,2)}, v{140+2*(c%4)+t} offset:{(16*sl+4*i)*128}" for t in range(2) for i in range(2)]

        def M(s):
            return [f"v_mfma_f32_32x32x16_bf16 {vr(ACC+16*t,16)}, {vr(BF[s%2]+4*t,4)}, {AF(s)}, {'0' if s == 0 else vr(ACC+16*t,16)}" for t in range(2)]

        def aload(s):
            out = []
            if s % 4 == 0 and s > 0:
                out.append(f"s_add_u32 s{sTMP+2}, s{sTMP+2}, 4096")
            out.append(f"buffer_load_dwordx4 {AF(s)}, v11, {WS}, s{sTMP+2} offen offset:{(s%4)*1024} " + ("" if "dplain" in EXP else "sc1"))
            return out

        a.e("s_barrier")
        if DV == "c":
            for c_ in (1, 2, 3):
                a.e("\n".join(self.d_dma(c_)))
        a.e("\n".join(R(0)))
        toks = {0: a.lg_tok()}
        self.poll(153, f"s{sTMP}", 15)
        self.stamp(11)
        vt = {}
        dtok = {}
        pend = []
        if DV == "a":
            for s in range(PD):
                a.e("\n".join(aload(s)))
                vt[s] = a.vm_tok()
                if s in (3, 7, 11):
                    a.e("\n".join(self.d_dma(1 + s // 4)))
                    dtok[1 + s // 4] = a.vm_tok()
        elif DV == "c":
            for s in range(PD):
                a.e("\n".join(aload(s)))
                vt[s] = a.vm_tok()
            for c_ in (1, 2, 3):
                dtok[c_] = a.vm_tok() - PD
        else:
            for s in range(PD):
                a.e("\n".join(aload(s)))
                vt[s] = a.vm_tok()
                if s == 3:
                    a.e("\n".join(self.d_dma(1)))
                    dtok[1] = a.vm_tok()
            pend += [(2, g) for g in self.d_dma(2)] + [(3, g) for g in self.d_dma(3)]
        for s in range(28):
            c, sl = s // 4, s % 4
            a.wait_lg(toks[s])
            if sl == 3 and c + 1 < 7:
                if c + 1 >= 1:
                    a.wait_vm(dtok[c + 1])
                a.e("s_barrier")
                if "fined" in EXP:
                    self.stamp(13 + c)
                if c + 4 < 7:
                    pend += [(c + 4, g) for g in self.d_dma(c + 4)]
            r = R(s + 1) if s < 27 else []
            a.wait_vm(vt[s])
            a.e("\n".join(interleave(M(s), r)))
            if r:
                toks[s + 1] = a.lg_tok()
            if s + PD < 28:
                a.e("\n".join(aload(s + PD)))
                vt[s + PD] = a.vm_tok()
            for _ in range(2 if DV != "a" else 1):
                if pend:
                    cc, g = pend.pop(0)
                    a.e(g)
                    dtok[cc] = a.vm_tok()
        self.stamp(25)
        a.e("s_barrier")
        AO = 48
        self.reduce_scatter4(ACC, L_RED2, AO)
        X1P = 132
        for q in range(4):
            a.e(f"v_lshlrev_b32 v{64+2*q}, 16, v{X1P+q}\nv_and_b32 v{65+2*q}, 0xffff0000, v{X1P+q}")
        for r in range(8):
            a.e(f"v_accvgpr_read_b32 v{56+r}, a{88+r}")
        for r in range(8):
            a.e(f"v_fmac_f32 v{64+r}, v{56+r}, v{AO+r}")
        for q in range(4):
            a.e(f"v_cvt_pk_bf16_f32 v{32+q}, v{64+2*q}, v{65+2*q}")
        a.e(f"buffer_store_dwordx4 v[32:35], v151, s[{S_OUT}:{S_OUT+3}], s80 offen")
        self.stamp(12)

    def finish(self):
        a = self.a
        Lx = a.label("Lfin")
        a.e(f"s_cmp_lg_u32 s2, 0\ns_cbranch_scc1 {Lx}\ns_cmp_lg_u32 s{sW}, 7\ns_cbranch_scc1 {Lx}\ns_cmp_eq_u32 s101, 1\ns_cbranch_scc1 {Lx}")
        for q in range(4):
            a.e(f"v_lshlrev_b32 v12, 3, v1\nv_add_u32 v12, {4 + 512*q}, v12\ns_mov_b32 s{sTMP}, {XID}")
            self.poll(12, f"s{sTMP}", 13)
        a.e(f"v_mov_b32 v14, s{sTAG}\nv_mov_b32 v15, 0\ns_mov_b64 exec, 1")
        self.nocount(f"buffer_store_dword v14, v15, {WS}, 0 offen offset:{EPOCH} sc1")
        a.e(f"{Lx}:")
        a.e("L_END:\ns_endpgm\nL_CODE_END:")

    def build(self):
        ph = [self.phase0, self.phase1, self.phase2, self.phase3, self.phase4, self.phase5]
        for i, p in enumerate(ph):
            if i <= self.stop_after:
                p()
        self.finish()
        body = self.a.finalize()
        hdr = open("adaLN_cond__sliding_block__geglu_ffn__prompt.s.ref").read().split("; Override launch")[0]
        src = hdr + f"; @launch grid=(256,1,1) block=(512,1,1) lds={LDS_BYTES}\n" + HEADER.format(name=NAME) + body + \
            FOOTER.format(name=NAME, nvgpr=256, nsgpr=102, accum=160)
        return src


if __name__ == "__main__":
    import argparse
    ap = argparse.ArgumentParser()
    ap.add_argument("-o", default="k.s")
    ap.add_argument("--stamps", action="store_true")
    ap.add_argument("--dump", action="store_true")
    ap.add_argument("--stop", type=int, default=99)
    args = ap.parse_args()
    g = Gen(stop_after=args.stop, stamps=args.stamps, dump=args.dump)
    src = g.build()
    open(args.o, "w").write(src)
    print("wrote", args.o, len(src), "bytes; nops", g.a.nops)
```

```python
import sys, os, struct
sys.path.insert(0, "dev")
from asmlib import *

NAME = "adaLN_cond__sliding_block__geglu_ffn__prompt_kernel"
EXP = os.environ.get("EXP", "").split(",")

EPOCH = 0x0
XID = 0x1000
MODA = 0x2000
MODB = 0xA000
MODG = 0x12000
FL_KV = 0x20000
FL_O = 0x24000
FL_H2 = 0x26000
FL_H1 = 0x22000
FL_ACT = 0x28000
STAMP = 0x2800000
KVX = 0x100000
OBUF = 0x500000
H2BUF = 0x700000
SGRAN = 0x900000
ACT = 0xA00000
H1BUF = 0x1200000
DBG0 = 0x2000000
X1DBG = 0x2400000

S_X, S_WQKV, S_WO, S_WG, S_WU, S_WD, S_C, S_WM, S_OUT, S_WS = 8, 12, 16, 20, 24, 28, 32, 36, 40, 44
sX, sT, sRB, sJ, sW, sTAG, sXCC, sPURE, sP = 48, 49, 50, 51, 52, 53, 54, 55, 56
sW3, sWH, sIMIN = 57, 58, 59
sTMP = 60
S_SEL = 72
sMASK = 60

L_WQKV = 0
L_WO = 96 * 1024
L_K = 0
L_V = 24 * 1024
L_QX = 48 * 1024
L_SCR = 52 * 1024
L_RED = 0
L_TAB = 32 * 1024
L_ST = 33 * 1024
GU_SLOT = [57344, 98304, 127104, 0]
GU_UP = 14464
D_SLOT = [127104, 0, 32768, 65536]
L_RED2 = 0
L_GATE = 32760
L_XA = 0
L_XB = 65536
LDS_BYTES = 160 * 1024

PSLEEP = int(os.environ.get("PSLEEP", "2"))
MSLEEP = int(os.environ.get("MSLEEP", "6"))
NTG = " nt" if "ntg" in EXP else ""
NTD = " nt" if "ntd" in EXP else ""
LOG2E = 1.4426950408889634
QSCALE = 0.25 * LOG2E
NEG_BIG = 0xf149f2ca


def f2u(x):
    return struct.unpack("<I", struct.pack("<f", x))[0]


WS = f"s[{S_WS}:{S_WS+3}]"


class Gen:
    def __init__(self, stop_after=99, stamps=False, dump=False):
        self.a = Asm()
        self.stop_after = stop_after
        self.stamps = stamps
        self.dump = dump

    def nocount(self, text):
        a = self.a
        v, l = a.vm_issued, a.lg_issued
        a.e(text)
        a.vm_issued, a.lg_issued = v, l

    def stamp(self, idx):
        if not self.stamps:
            return
        a = self.a
        idx += 1
        v_, l_ = a.vm_issued, a.lg_issued
        a.e(f"s_memrealtime s[96:97]\ns_memtime s[94:95]\ns_waitcnt lgkmcnt(0)")
        a.e(f"v_mov_b32 v159, 0\ns_lshl_b32 s98, s2, 11\ns_lshl_b32 s99, s{sW}, 8\ns_add_u32 s98, s98, s99\ns_add_u32 s98, s98, {STAMP}")
        if idx == 2:
            a.e(f"v_mov_b32 v158, s100\nbuffer_store_dword v158, v159, {WS}, s98 offen")
        a.e(f"v_mov_b32 v158, s96\nbuffer_store_dword v158, v159, {WS}, s98 offen offset:{idx*4}")
        a.e(f"v_mov_b32 v158, s94\nbuffer_store_dword v158, v159, {WS}, s98 offen offset:{128+idx*4}")
        a.vm_issued, a.lg_issued = v_, l_

    def poll(self, vaddr, soff, vdst, cnt=sTMP + 11):
        a = self.a
        L = a.label("P")
        Lo = a.label("Po")
        a.e(f"s_mov_b32 s{cnt}, 0\n{L}:")
        self.nocount(f"buffer_load_dword v{vdst}, v{vaddr}, {WS}, {soff} offen sc1")
        a.e(f"""
s_add_u32 s{cnt}, s{cnt}, 1
s_cmp_gt_u32 s{cnt}, 400000
s_cbranch_scc1 {Lo}
s_waitcnt vmcnt(0)
v_cmp_ne_u32 vcc, s{sTAG}, v{vdst}
s_cbranch_vccz {Lo}
s_sleep {PSLEEP}
s_branch {L}
{Lo}:
s_waitcnt vmcnt(0)
""")

    def store_sel(self, text):
        a = self.a
        Ls = a.label("Ssl")
        Le = a.label("Sen")
        lines = [l for l in text.strip().split("\n") if l.strip()]
        a.e(f"s_cmp_eq_u32 s{sPURE}, 0\ns_cbranch_scc1 {Ls}")
        a.e("\n".join(lines))
        a.e(f"s_branch {Le}\n{Ls}:")
        self.nocount("\n".join((l + " sc1") if l.strip().startswith("buffer_store") else l for l in lines))
        a.e(f"{Le}:")

    def flag_seq(self, soff, vt=14):
        return f"s_waitcnt vmcnt(0)\ns_mov_b64 exec, 1\nbuffer_store_dword v{vt}, v{vt+1}, {WS}, {soff} offen\ns_mov_b64 exec, -1"

    def purity(self, vt=30):
        a = self.a
        a.e(f"""
v_and_b32 v{vt}, 31, v1
v_lshlrev_b32 v{vt}, 3, v{vt}
s_lshl_b32 s{sTMP+10}, s{sX}, 8
s_add_u32 s{sTMP+10}, s{sTMP+10}, {XID}
buffer_load_dwordx2 v[{vt+2}:{vt+3}], v{vt}, {WS}, s{sTMP+10} offen sc1
s_waitcnt vmcnt(0)
v_xor_b32 v{vt}, s{sTAG}, v{vt+3}
v_xor_b32 v{vt+1}, s{sXCC}, v{vt+2}
v_or_b32 v{vt}, v{vt}, v{vt+1}
v_cmp_ne_u32 vcc, 0, v{vt}
s_cmp_eq_u64 vcc, 0
s_cselect_b32 s{sPURE}, 1, 0
""")

    def touch(self, srd, soff_base, nlines_per_wg, widx, nw, vdst, vaddr):
        a = self.a
        if "notouch" in EXP:
            return
        n = nlines_per_wg // 64
        per = (n + nw - 1) // nw
        a.e(f"s_lshl_b32 s{sTMP+9}, s{widx}, 13\ns_add_u32 s{sTMP+9}, s{sTMP+9}, s{soff_base}")
        for i in range(per):
            a.e(f"buffer_load_dword v{vdst}, v{vaddr}, s[{srd}:{srd+3}], s{sTMP+9} offen")
            if i < per - 1:
                a.e(f"s_add_u32 s{sTMP+9}, s{sTMP+9}, {nw*8192}")

    def silu_bf16(self, src_pk, n_pk, dst, tmp):
        a = self.a
        n = 2 * n_pk
        for d in range(n_pk):
            a.e(f"v_lshlrev_b32 v{dst+2*d}, 16, v{src_pk+d}\nv_and_b32 v{dst+2*d+1}, 0xffff0000, v{src_pk+d}")
        for i in range(n):
            a.e(f"v_mul_f32 v{tmp+i}, {f2u(-LOG2E):#x}, v{dst+i}")
        for i in range(n):
            a.e(f"v_exp_f32 v{tmp+i}, v{tmp+i}")
        for i in range(n):
            a.e(f"v_add_f32 v{tmp+i}, 1.0, v{tmp+i}")
        for i in range(n):
            a.e(f"v_rcp_f32 v{tmp+i}, v{tmp+i}")
        for i in range(n):
            a.e(f"v_mul_f32 v{dst+i}, v{dst+i}, v{tmp+i}")
        for d in range(n_pk):
            a.e(f"v_cvt_pk_bf16_f32 v{tmp+d}, v{dst+2*d}, v{dst+2*d+1}")
        for d in range(n_pk):
            a.e(f"v_lshlrev_b32 v{dst+2*d}, 16, v{tmp+d}\nv_and_b32 v{dst+2*d+1}, 0xffff0000, v{tmp+d}")

    def wave_allsum(self, regs, tmp):
        a = self.a
        for r in (1, 2, 4, 8):
            for x in regs:
                a.e(f"v_add_f32_dpp v{x}, v{x}, v{x} row_ror:{r} row_mask:0xf bank_mask:0xf")
        self.group_allsum(regs, tmp)

    def group_allsum(self, regs, tmp, op="v_add_f32", stages=("16", "32")):
        a = self.a
        for sw in stages:
            for x, t in zip(regs, tmp):
                a.e(f"v_mov_b32 v{t}, v{x}")
            for x, t in zip(regs, tmp):
                a.e(f"v_permlane{sw}_swap_b32 v{x}, v{t}")
            for x, t in zip(regs, tmp):
                a.e(f"{op} v{x}, v{x}, v{t}")

    def granule(self, lo, hi, s_one, dst):
        self.a.e(f"""
v_cvt_pk_bf16_f32 v{dst}, v{lo}, v{hi}
v_lshlrev_b32 v{lo}, 16, v{dst}
v_and_b32 v{hi}, 0xffff0000, v{dst}
v_add_f32 v{lo}, s{s_one}, v{lo}
v_add_f32 v{hi}, s{s_one}, v{hi}
v_cvt_pk_bf16_f32 v{dst}, v{lo}, v{hi}
v_mov_b32 v{dst+1}, s{sTAG}
""")

    def reduce8_pairs(self, AC):
        self.a.e(f"""
v_permlane16_swap_b32 v{AC}, v{AC+2}
v_permlane16_swap_b32 v{AC+1}, v{AC+3}
v_permlane16_swap_b32 v{AC+4}, v{AC+6}
v_permlane16_swap_b32 v{AC+5}, v{AC+7}
v_add_f32 v{AC}, v{AC}, v{AC+2}
v_add_f32 v{AC+1}, v{AC+1}, v{AC+3}
v_add_f32 v{AC+4}, v{AC+4}, v{AC+6}
v_add_f32 v{AC+5}, v{AC+5}, v{AC+7}
v_permlane32_swap_b32 v{AC}, v{AC+4}
v_permlane32_swap_b32 v{AC+1}, v{AC+5}
v_add_f32 v{AC}, v{AC}, v{AC+4}
v_add_f32 v{AC+1}, v{AC+1}, v{AC+5}
""")

    def phase0(self):
        a = self.a
        a.e(f"""
s_cmp_ge_u32 s2, 256
s_cbranch_scc1 L_END
{"s_memrealtime s[100:101]" if self.stamps else ""}
s_load_dwordx2 s[{S_WS}:{S_WS+1}], s[0:1], 88
s_load_dwordx2 s[{S_WM}:{S_WM+1}], s[0:1], 64
s_load_dwordx2 s[{S_C}:{S_C+1}], s[0:1], 56
s_load_dwordx2 s[{S_X}:{S_X+1}], s[0:1], 0
s_load_dwordx2 s[{S_WQKV}:{S_WQKV+1}], s[0:1], 8
s_load_dwordx2 s[{S_WO}:{S_WO+1}], s[0:1], 16
s_load_dwordx2 s[{S_WG}:{S_WG+1}], s[0:1], 32
s_load_dwordx2 s[{S_WU}:{S_WU+1}], s[0:1], 40
s_load_dwordx2 s[{S_WD}:{S_WD+1}], s[0:1], 48
s_load_dwordx2 s[{S_OUT}:{S_OUT+1}], s[0:1], 72
s_getpc_b64 s[{sTMP}:{sTMP+1}]
L_PC:
s_and_b32 s{sX}, s2, 7
s_lshr_b32 s{sT}, s2, 3
s_lshl_b32 s{sTMP+2}, s{sT}, 11
v_lshlrev_b32 v2, 2, v0
v_add_u32 v2, s{sTMP+2}, v2
v_min_u32 v2, L_CODE_END-L_PC-4, v2
global_load_dword v4, v2, s[{sTMP}:{sTMP+1}]
s_getreg_b32 s{sXCC}, hwreg(HW_REG_XCC_ID)
s_and_b32 s{sXCC}, s{sXCC}, 15
s_lshr_b32 s{sTMP}, s{sT}, 4
s_lshl_b32 s{sRB}, s{sX}, 1
s_add_u32 s{sRB}, s{sRB}, s{sTMP}
s_and_b32 s{sJ}, s{sT}, 15
s_lshl_b32 s{sP}, s{sX}, 5
s_add_u32 s{sP}, s{sP}, s{sT}
v_and_b32 v1, 63, v0
v_lshrrev_b32 v2, 6, v0
v_lshrrev_b32 v3, 4, v1
v_readfirstlane_b32 s{sW}, v2
v_lshlrev_b32 v11, 4, v1
v_lshlrev_b32 v10, 7, v1
s_and_b32 s{sW3}, s{sW}, 3
s_lshr_b32 s{sWH}, s{sW}, 2
s_mov_b32 s{sPURE}, 0
""")
        sizes = {S_X: 2097152, S_WQKV: 1572864, S_WO: 524288, S_WG: 1835008, S_WU: 1835008, S_WD: 1835008, S_C: 1024,
                 S_WM: 3145728, S_OUT: 2097152, S_WS: 0x10000000}
        for s, sz in sizes.items():
            a.e(f"s_mov_b32 s{s+2}, {sz}\ns_mov_b32 s{s+3}, 0x20000")
        a.e("s_waitcnt lgkmcnt(0)")
        a.e(f"s_load_dword s{sTAG}, s[{S_WS}:{S_WS+1}], {EPOCH}")
        L_45 = a.label("Lw45")
        L_67 = a.label("Lw67")
        L_j = a.label("Lj0")
        tagfix = f"s_waitcnt lgkmcnt(0)\ns_mul_i32 s{sTAG}, s{sTAG}, 1664525\ns_add_u32 s{sTAG}, s{sTAG}, 1013904223"
        a.e(f"s_cmp_ge_u32 s{sW}, 6\ns_cbranch_scc1 {L_67}\ns_cmp_ge_u32 s{sW}, 4\ns_cbranch_scc1 {L_45}")
        v0_, l0_ = a.vm_issued, a.lg_issued
        XP, XF = 16, 32
        ST = [64, 65, 66, 67]
        STT = [68, 69, 70, 71]
        a.e(f"""
s_lshl_b32 s{sTMP}, s{sRB}, 17
s_lshl_b32 s{sTMP+1}, s{sJ}, 13
s_add_u32 s{sTMP}, s{sTMP}, s{sTMP+1}
s_lshl_b32 s{sTMP+1}, s{sW}, 11
s_add_u32 s{sTMP}, s{sTMP}, s{sTMP+1}
s_sub_u32 s{sTMP+1}, s{sTMP}, {256*1024}
s_cmp_lt_u32 s{sRB}, 2
s_cselect_b32 s{sTMP+1}, s{sTMP}, s{sTMP+1}
""")
        for i in range(4):
            a.e(f"buffer_load_dwordx4 {vr(XP+4*i,4)}, v11, s[{S_X}:{S_X+3}], s{sTMP + (i>>1)} offen offset:{(i&1)*1024}")
        if "noc3" not in EXP:
            Lc0, Lc1, Lce, Lc3 = a.label("Lc30"), a.label("Lc31"), a.label("Lc3e"), a.label("Lc33")
            a.e(f"""
v_lshrrev_b32 v5, 2, v1
v_and_b32 v6, 3, v1
s_cmp_eq_u32 s{sW}, 0
s_cbranch_scc1 {Lc0}
s_cmp_eq_u32 s{sW}, 1
s_cbranch_scc1 {Lc1}
s_cmp_lg_u32 s{sW}, 2
s_cbranch_scc1 {Lc3}
v_and_b32 v5, 15, v1
v_lshlrev_b32 v5, 10, v5
s_lshl_b32 s{sTMP+2}, s{sT}, 14
""")
            self.nocount(f"buffer_load_dword v6, v5, s[{S_WO}:{S_WO+3}], s{sTMP+2} offen offset:384")
            a.e(f"""
s_branch {Lce}
{Lc0}:
v_mul_u32_u24 v5, 6144, v5
v_and_b32 v6, 1, v6
v_lshl_add_u32 v5, v6, 10, v5
s_mul_i32 s{sTMP+2}, s{sT}, {16*6144}
""")
            self.nocount(f"buffer_load_dword v6, v5, s[{S_WM}:{S_WM+3}], s{sTMP+2} offen offset:384")
            a.e(f"""
s_branch {Lce}
{Lc1}:
v_mul_u32_u24 v5, 3072, v5
v_lshl_add_u32 v5, v6, 10, v5
s_mul_i32 s{sTMP+2}, s{sT}, {16*3072}
""")
            self.nocount(f"buffer_load_dword v6, v5, s[{S_WQKV}:{S_WQKV+3}], s{sTMP+2} offen offset:384")
            a.e(f"s_branch {Lce}\n{Lc3}:")
            if "valugemv" in EXP and "nomall" not in EXP:
                a.e(f"s_lshl_b32 s{sTMP+2}, s{sP}, 13\n"
                    f"s_cmp_lt_u32 s{sTMP+2}, {84*8192}\ns_cselect_b32 s{sTMP+3}, s{sTMP+2}, 0x7fff0000\n"
                    f"s_sub_u32 s{sTMP+4}, s{sTMP+2}, {84*8192}\ns_cmp_lt_u32 s{sTMP+4}, {84*8192}\ns_cselect_b32 s{sTMP+4}, s{sTMP+4}, 0x7fff0000\n"
                    f"s_sub_u32 s{sTMP+5}, s{sTMP+2}, {168*8192}\ns_min_u32 s{sTMP+5}, s{sTMP+5}, 0x7fff0000")
                self.nocount(f"buffer_load_dword v6, v10, s[{S_WG}:{S_WG+3}], s{sTMP+3} offen")
                self.nocount(f"buffer_load_dword v6, v10, s[{S_WU}:{S_WU+3}], s{sTMP+4} offen")
                self.nocount(f"buffer_load_dword v6, v10, s[{S_WO}:{S_WO+3}], s{sTMP+5} offen")
            a.e(f"{Lce}:")
        if "wmtouch" in EXP:
            a.e(f"""
v_mul_u32_u24 v5, 6144, v3
v_and_b32 v6, 15, v1
v_lshl_add_u32 v5, v6, 7, v5
s_lshl_b32 s{sTMP}, s{sT}, 2
s_add_u32 s{sTMP}, s{sTMP}, s{sW}
s_mul_i32 s{sTMP}, s{sTMP}, {4*6144}
buffer_load_dword v6, v5, s[{S_WM}:{S_WM+3}], s{sTMP} offen
s_waitcnt vmcnt(1)
""")
        else:
            a.e("s_waitcnt vmcnt(0)")
        a.e(tagfix)
        for i in range(4):
            for d in range(4):
                a.e(f"v_lshlrev_b32 v{XF+8*i+2*d}, 16, v{XP+4*i+d}\nv_and_b32 v{XF+1+8*i+2*d}, 0xffff0000, v{XP+4*i+d}")
        for i in range(4):
            b = XF + 8 * i
            a.e(f"v_add_f32 v{ST[i]}, v{b}, v{b+1}")
            for e in range(2, 8):
                a.e(f"v_add_f32 v{ST[i]}, v{ST[i]}, v{b+e}")
        self.wave_allsum(ST, STT)
        for i in range(4):
            a.e(f"v_mul_f32 v{ST[i]}, {f2u(-1/512):#x}, v{ST[i]}")
        for i in range(4):
            for e in range(8):
                a.e(f"v_add_f32 v{XF+8*i+e}, v{ST[i]}, v{XF+8*i+e}")
        for i in range(4):
            b = XF + 8 * i
            a.e(f"v_mul_f32 v{ST[i]}, v{b}, v{b}")
            for e in range(1, 8):
                a.e(f"v_fmac_f32 v{ST[i]}, v{b+e}, v{b+e}")
        self.wave_allsum(ST, STT)
        for i in range(4):
            a.e(f"v_mul_f32 v{ST[i]}, {f2u(1/512):#x}, v{ST[i]}")
        for i in range(4):
            a.e(f"v_add_f32 v{ST[i]}, {f2u(1e-5):#x}, v{ST[i]}")
        for i in range(4):
            a.e(f"v_rsq_f32 v{ST[i]}, v{ST[i]}")
        for i in range(4):
            for e in range(8):
                a.e(f"v_mul_f32 v{XF+8*i+e}, v{ST[i]}, v{XF+8*i+e}")
        for i in range(4):
            for d in range(4):
                a.e(f"v_cvt_pk_bf16_f32 v{XP+4*i+d}, v{XF+8*i+2*d}, v{XF+1+8*i+2*d}")
        for i in range(4):
            for d in range(4):
                a.e(f"v_lshlrev_b32 v{XF+8*i+2*d}, 16, v{XP+4*i+d}\nv_and_b32 v{XF+1+8*i+2*d}, 0xffff0000, v{XP+4*i+d}")
        a.e(f"""
v_lshrrev_b32 v12, 1, v1
v_lshlrev_b32 v12, 10, v12
v_and_b32 v6, 1, v1
v_lshl_add_u32 v12, v6, 9, v12
s_lshl_b32 s{sTMP+4}, s{sX}, 19
s_and_b32 s{sTMP+3}, s{sRB}, 1
s_lshl_b32 s{sTMP+3}, s{sTMP+3}, 17
s_add_u32 s{sTMP+4}, s{sTMP+4}, s{sTMP+3}
s_lshr_b32 s{sTMP+3}, s{sJ}, 2
s_lshl_b32 s{sTMP+3}, s{sTMP+3}, 15
s_add_u32 s{sTMP+4}, s{sTMP+4}, s{sTMP+3}
s_and_b32 s{sTMP+3}, s{sJ}, 3
s_lshl_b32 s{sTMP+3}, s{sTMP+3}, 7
s_add_u32 s{sTMP+4}, s{sTMP+4}, s{sTMP+3}
s_lshl_b32 s{sTMP+3}, s{sW}, 5
s_add_u32 s{sTMP+4}, s{sTMP+4}, s{sTMP+3}
s_add_u32 s{sTMP+4}, s{sTMP+4}, {H1BUF}
s_add_u32 s{sTMP+8}, s{sTMP+4}, {2*131072}
v_lshlrev_b32 v13, 5, v1
v_lshlrev_b32 v7, 6, v1
v_add_u32 v7, 60, v7
v_and_b32 v8, 31, v1
v_lshlrev_b32 v8, 3, v8
s_lshl_b32 s{sTMP}, s{sX}, 12
s_add_u32 s{sTMP+1}, s{sTMP}, {MODB}
s_add_u32 s{sTMP}, s{sTMP}, {MODA}
s_lshl_b32 s{sTMP+2}, s{sX}, 8
s_add_u32 s{sTMP+2}, s{sTMP+2}, {XID}
s_lshl_b32 s{sTMP+5}, s{sP}, 4
s_lshl_b32 s{sTMP+6}, s{sW}, 2
s_add_u32 s{sTMP+5}, s{sTMP+5}, s{sTMP+6}
s_add_u32 s{sTMP+5}, s{sTMP+5}, {FL_H1}
s_mov_b32 s{sTMP+11}, 0
""")
        self.stamp(0)
        L = a.label("G")
        L2 = a.label("G2")
        Lo = a.label("Go")
        G0 = 96
        a.e(f"{L}:")
        self.nocount(f"buffer_load_dword v{G0}, v7, {WS}, s{sTMP} offen sc1")
        a.e(f"""
s_add_u32 s{sTMP+11}, s{sTMP+11}, 1
s_cmp_gt_u32 s{sTMP+11}, 400000
s_cbranch_scc1 {L2}
s_waitcnt vmcnt(0)
v_cmp_ne_u32 vcc, s{sTAG}, v{G0}
s_cbranch_vccz {L2}
s_add_u32 s{sTMP+10}, s{sTMP+11}, 1
s_and_b32 s{sTMP+10}, s{sTMP+10}, 15
s_cmp_lt_u32 s{sTMP+10}, 2
s_cselect_b32 s{sTMP+10}, s{sTMP+1}, s{sTMP}
s_cselect_b32 s{sTMP+1}, s{sTMP}, s{sTMP+1}
s_mov_b32 s{sTMP}, s{sTMP+10}
s_sleep {MSLEEP}
s_branch {L}
{L2}:
""")
        self.nocount(f"""
buffer_load_dwordx4 v[{G0}:{G0+3}], v13, {WS}, s{sTMP} offen sc1
buffer_load_dwordx4 v[{G0+4}:{G0+7}], v13, {WS}, s{sTMP} offen offset:16 sc1
buffer_load_dwordx4 v[{G0+8}:{G0+11}], v13, {WS}, s{sTMP} offen offset:2048 sc1
buffer_load_dwordx4 v[{G0+12}:{G0+15}], v13, {WS}, s{sTMP} offen offset:2064 sc1
buffer_load_dwordx2 v[{G0+16}:{G0+17}], v8, {WS}, s{sTMP+2} offen sc1
""")
        a.e(f"""
s_cmp_gt_u32 s{sTMP+11}, 400000
s_cbranch_scc1 {Lo}
s_waitcnt vmcnt(0)
v_xor_b32 v116, s{sTAG}, v{G0+1}
""")
        for q in range(3, 16, 2):
            a.e(f"v_xor_b32 v117, s{sTAG}, v{G0+q}\nv_or_b32 v116, v116, v117")
        a.e(f"v_cmp_ne_u32 vcc, 0, v116\ns_cbranch_vccnz {L}\n{Lo}:\ns_waitcnt vmcnt(0)")
        a.e(f"""
v_xor_b32 v116, s{sTAG}, v{G0+17}
v_xor_b32 v117, s{sXCC}, v{G0+16}
v_or_b32 v116, v116, v117
v_cmp_ne_u32 vcc, 0, v116
s_cmp_eq_u64 vcc, 0
s_cselect_b32 s{sPURE}, 1, 0
""")
        SA, GG = 72, 80
        for q in range(4):
            a.e(f"v_lshlrev_b32 v{SA+2*q}, 16, v{G0+2*q}\nv_and_b32 v{SA+1+2*q}, 0xffff0000, v{G0+2*q}")
            a.e(f"v_lshlrev_b32 v{GG+2*q}, 16, v{G0+8+2*q}\nv_and_b32 v{GG+1+2*q}, 0xffff0000, v{G0+8+2*q}")
        for i in range(4):
            for d in range(4):
                b = XF + 8 * i + 2 * d
                a.e(f"v_pk_fma_f32 v[{b}:{b+1}], v[{b}:{b+1}], v[{GG+2*d}:{GG+1+2*d}], v[{SA+2*d}:{SA+1+2*d}]")
            for d in range(4):
                a.e(f"v_cvt_pk_bf16_f32 v{XP+4*i+d}, v{XF+8*i+2*d}, v{XF+1+8*i+2*d}")
        a.e(f"v_mov_b32 v14, s{sTAG}\nv_mov_b32 v15, 0")
        st = "\n".join(f"buffer_store_dwordx4 v[{XP+4*i}:{XP+3+4*i}], v12, {WS}, s{sTMP+8 if i < 2 else sTMP+4} offen offset:{16*(i&1)}" for i in range(4))
        self.store_sel(st + "\n" + self.flag_seq(f"s{sTMP+5}"))
        a.e(f"s_branch {L_j}")
        a.vm_issued, a.lg_issued = v0_, l0_
        if "valugemv" in EXP:
            self.gemv_valu(a, L_45, L_j, tagfix, v0_, l0_)
        else:
            self.gemv_mfma(a, L_45, L_j, tagfix, v0_, l0_)
        a.e(f"{L_67}:")
        a.e(f"""
v_lshrrev_b32 v12, 2, v1
v_mul_u32_u24 v12, 3072, v12
v_and_b32 v13, 3, v1
v_lshl_add_u32 v12, v13, 4, v12
{tagfix}
v_mov_b32 v14, s{sXCC}
v_mov_b32 v15, s{sTAG}
s_lshl_b32 s{sTMP}, s{sP}, 3
s_add_u32 s{sTMP}, s{sTMP}, {XID}
v_mov_b32 v13, 0
s_mov_b64 exec, 1
buffer_store_dwordx2 v[14:15], v13, {WS}, s{sTMP} offen sc1
s_mov_b64 exec, -1
s_and_b32 s{sTMP+4}, s{sW}, 1
s_mul_i32 s{sTMP}, s{sTMP+4}, {16*3072}
s_lshl_b32 s{sTMP+1}, s{sJ}, 6
s_add_u32 s{sTMP}, s{sTMP}, s{sTMP+1}
s_lshl_b32 s{sTMP+2}, s{sTMP+4}, 10
""")
        Lgt = a.label("Lgate")
        Lgo = a.label("Lgateo")
        a.e(f"""
s_cmp_ge_u32 s{sT}, {0 if "nogate" in EXP else (99 if "valugemv" in EXP else 20)}
s_cbranch_scc1 {Lgo}
v_and_b32 v13, 1, v1
v_lshlrev_b32 v13, 2, v13
s_mov_b32 s{sTMP+11}, 0
{Lgt}:
ds_read_b32 v14, v13 offset:{L_GATE}
s_add_u32 s{sTMP+11}, s{sTMP+11}, 1
s_cmp_gt_u32 s{sTMP+11}, 4000000
s_cbranch_scc1 {Lgo}
s_waitcnt lgkmcnt(0)
v_cmp_ne_u32 vcc, s{sTAG}, v14
s_cbranch_vccnz {Lgt}
{Lgo}:
s_waitcnt lgkmcnt(0)
""")
        if "qtouch" in EXP:
            a.e(f"s_mul_i32 s{sTMP+5}, s{sT}, 49152")
            self.touch(S_WQKV, sTMP + 5, 384, sTMP + 4, 2, 14, 10)
        if "dmadelay" in EXP:
            a.e(f"buffer_load_dword v14, v13, {WS}, s{sTMP} offen sc1\ns_waitcnt vmcnt(0)")
        for c in range(16):
            for seg in range(3):
                a.e(f"s_add_u32 m0, s{sTMP+2}, {L_WQKV + seg*32768 + c*2048}")
                a.e(f"s_add_u32 s{sTMP+3}, s{sTMP}, {c*32*3072 + seg*1024}")
                a.e(f"buffer_load_dwordx4 v12, s[{S_WQKV}:{S_WQKV+3}], s{sTMP+3} offen lds")
        a.e("s_waitcnt vmcnt(0)")
        self.stamp(0)
        a.vm_issued, a.lg_issued = v0_, l0_
        a.e(f"{L_j}:")
        if "prio" in EXP:
            Lpr = a.label("Lprio")
            a.e(f"s_cmp_lt_u32 s{sW}, 4\ns_cbranch_scc1 {Lpr}\ns_setprio 1\n{Lpr}:")
        a.e("s_nop 4\ns_barrier")
        self.stamp(1)

    def gemv_valu(self, a, L_45, L_j, tagfix, v0_, l0_):
        a.e(f"{L_45}:")
        W0, SV = 94, 14
        a.e(f"""
v_lshrrev_b32 v6, 1, v1
v_lshlrev_b32 v8, 5, v6
v_mul_u32_u24 v7, {16*6144}, v6
v_and_b32 v6, 1, v1
v_lshl_add_u32 v7, v6, 4, v7
buffer_load_dwordx4 v[70:73], v8, s[{S_C}:{S_C+3}], 0 offen
buffer_load_dwordx4 v[74:77], v8, s[{S_C}:{S_C+3}], 0 offen offset:16
""")
        tok_c = a.vm_tok()
        a.e(f"s_lshl_b32 s{sTMP}, s{sT}, 6\ns_lshl_b32 s{sTMP+1}, s{sW3}, 5\ns_add_u32 s{sTMP}, s{sTMP}, s{sTMP+1}")
        tok_w = []
        for i in range(16):
            a.e(f"buffer_load_dwordx4 v[{W0+4*i}:{W0+3+4*i}], v7, s[{S_WM}:{S_WM+3}], s{sTMP} offen")
            tok_w.append(a.vm_tok())
            if i < 15:
                a.e(f"s_add_u32 s{sTMP}, s{sTMP}, 6144")
        a.e(f"""
v_and_b32 v5, 127, v0
v_mul_u32_u24 v12, 24576, v5
v_lshlrev_b32 v5, 3, v5
s_lshl_b32 s{sTMP}, s{sP}, 4
s_add_u32 s{sTMP}, s{sTMP}, 2048
buffer_load_dwordx2 v[78:79], v5, s[{S_C}:{S_C+3}], 0 offen
""")
        for i in range(4):
            a.e(f"buffer_load_dwordx4 v[{54+4*i}:{57+4*i}], v12, s[{S_WM}:{S_WM+3}], s{sTMP} offen")
            if i < 3:
                a.e(f"s_add_u32 s{sTMP}, s{sTMP}, 6144")
        tok_nu = a.vm_tok()
        a.e(tagfix)
        a.e(f"s_lshl_b32 s{sTMP+4}, s{sW3}, 2\nv_mov_b32 v13, s{sTMP+4}\nv_mov_b32 v5, s{sTAG}\nds_write_b32 v13, v5 offset:{L_GATE}")
        a.e(f"""
v_lshlrev_b32 v9, 5, v6
v_lshl_add_u32 v9, v3, 3, v9
s_cmp_ge_u32 s{sT}, 16
s_cselect_b32 s{sTMP+7}, 1.0, 0
s_lshl_b32 s{sTMP+5}, s{sX}, 12
s_lshl_b32 s{sTMP+6}, s{sT}, 7
s_add_u32 s{sTMP+5}, s{sTMP+5}, s{sTMP+6}
s_lshl_b32 s{sTMP+6}, s{sW3}, 6
s_add_u32 s{sTMP+5}, s{sTMP+5}, s{sTMP+6}
s_add_u32 s{sTMP+6}, s{sTMP+5}, {MODB}
s_add_u32 s{sTMP+5}, s{sTMP+5}, {MODA}
""")
        a.wait_vm(tok_c)
        self.silu_bf16(70, 8, SV, 30)
        AC = 30
        for i in range(16):
            a.wait_vm(tok_w[i])
            w = W0 + 4 * i
            t = 38 + 8 * (i % 2)
            for d in range(4):
                a.e(f"v_lshlrev_b32 v{t+2*d}, 16, v{w+d}\nv_and_b32 v{t+1+2*d}, 0xffff0000, v{w+d}")
            sp = SV + (i & ~1)
            sel = i & 1
            for d in range(4):
                if i == 0:
                    a.e(f"v_pk_mul_f32 v[{AC+2*d}:{AC+1+2*d}], v[{t+2*d}:{t+1+2*d}], v[{sp}:{sp+1}] op_sel_hi:[1,0]")
                else:
                    a.e(f"v_pk_fma_f32 v[{AC+2*d}:{AC+1+2*d}], v[{t+2*d}:{t+1+2*d}], v[{sp}:{sp+1}], v[{AC+2*d}:{AC+1+2*d}] op_sel:[0,{sel},0] op_sel_hi:[1,{sel},1]")
        for r in (2, 4, 8):
            for e in range(8):
                a.e(f"v_add_f32_dpp v{AC+e}, v{AC+e}, v{AC+e} row_ror:{r} row_mask:0xf bank_mask:0xf")
        self.reduce8_pairs(AC)
        self.granule(AC, AC + 1, sTMP + 7, AC + 2)
        a.e(f"s_mov_b32 exec_lo, 0x00030003\ns_mov_b32 exec_hi, 0x00030003")
        a.e(f"buffer_store_dwordx2 v[{AC+2}:{AC+3}], v9, {WS}, s{sTMP+5} offen")
        a.e(f"buffer_store_dwordx2 v[{AC+2}:{AC+3}], v9, {WS}, s{sTMP+6} offen sc1")
        a.e(f"s_mov_b64 exec, -1")
        self.stamp(0)
        a.wait_vm(tok_nu)
        self.silu_bf16(78, 2, 80, 96)
        for i in range(4):
            for d in range(4):
                w = 54 + 4 * i + d
                a.e(f"v_lshlrev_b32 v{96+2*d}, 16, v{w}\nv_and_b32 v{97+2*d}, 0xffff0000, v{w}")
            for e in range(8):
                a.e(f"v_mul_f32 v{72+e}, v80, v{96+e}" if i == 0 else f"v_fmac_f32 v{72+e}, v{80+i}, v{96+e}")
        for r in (1, 2, 4, 8):
            for e in range(8):
                a.e(f"v_add_f32_dpp v{72+e}, v{72+e}, v{72+e} row_ror:{r} row_mask:0xf bank_mask:0xf")
        self.reduce8_pairs(72)
        a.e("v_mov_b32 v132, v72\nv_mov_b32 v133, v73")
        a.e(f"s_branch {L_j}")
        a.vm_issued, a.lg_issued = v0_, l0_

    def gemv_mfma(self, a, L_45, L_j, tagfix, v0_, l0_):
        a.e(f"{L_45}:")
        a.e(f"s_cmp_ge_u32 s{sT}, 20\ns_cbranch_scc1 L_NOGEMV")
        L_SLAB = 96 * 1024
        self.w64_lane(12, stride=6144)
        a.e(f"""
s_lshl_b32 s{sTMP}, s{sT}, 7
s_lshl_b32 s{sTMP+1}, s{sX}, 9
s_add_u32 s{sTMP+1}, s{sTMP+1}, s{sTMP}
s_cmp_ge_u32 s{sT}, 16
s_cselect_b32 s{sTMP}, s{sTMP+1}, s{sTMP}
s_mul_i32 s{sTMP+1}, s{sW3}, {256*6144}
s_add_u32 s{sTMP}, s{sTMP}, s{sTMP+1}
s_lshl_b32 s{sTMP+2}, s{sW3}, 15
s_lshl_b32 s{sTMP+4}, s{sW3}, 9
v_lshlrev_b32 v8, 3, v1
buffer_load_dwordx2 v[70:71], v8, s[{S_C}:{S_C+3}], s{sTMP+4} offen
""")
        tok_c = a.vm_tok()
        for i in range(32):
            a.e(f"s_add_u32 m0, s{sTMP+2}, {L_SLAB + i*1024}\ns_add_u32 s{sTMP+3}, s{sTMP}, {i*8*6144}")
            a.e(f"buffer_load_dwordx4 v12, s[{S_WM}:{S_WM+3}], s{sTMP+3} offen lds")
        a.e(tagfix)
        a.e(f"s_lshl_b32 s{sTMP+4}, s{sW3}, 2\nv_mov_b32 v13, s{sTMP+4}\nv_mov_b32 v14, s{sTAG}\nds_write_b32 v13, v14 offset:{L_GATE}")
        a.wait_vm(tok_c)
        self.silu_bf16(70, 2, 14, 30)
        SF = 94
        a.e(f"v_lshrrev_b32 v9, 5, v1\nv_lshlrev_b32 v9, 3, v9")
        for st in range(16):
            for d in range(4):
                a.e(f"ds_bpermute_b32 v{SF+4*st+d}, v9, v{30 + (d&1)} offset:{(4*st + (d>>1))*4}")
            if st % 3 == 2:
                a.e("s_waitcnt lgkmcnt(3)")
        self.tr64_bases(4)
        a.e(f"""
s_add_u32 s{sTMP+2}, s{sTMP+2}, {L_SLAB}
v_add_u32 v4, s{sTMP+2}, v4
v_add_u32 v5, s{sTMP+2}, v5
s_waitcnt lgkmcnt(0)
""")
        self.stamp(22)
        a.e("s_waitcnt vmcnt(0)")
        self.stamp(23)
        GA_ = 32
        GB = [64, 72, 80]
        toks = {}

        def GR(st):
            return [f"ds_read_b64_tr_b16 {vr(GB[st%3]+4*t+2*i,2)}, v{4+t} offset:{(16*st+4*i)*128}" for t in range(2) for i in range(2)]
        for st in range(2):
            a.e("\n".join(GR(st)))
            toks[st] = a.lg_tok()
        for st in range(16):
            a.wait_lg(toks[st])
            for t in range(2):
                a.e(f"v_mfma_f32_32x32x16_bf16 {vr(GA_+16*t,16)}, {vr(GB[st%3]+4*t,4)}, {vr(SF+4*st,4)}, {'0' if st == 0 else vr(GA_+16*t,16)}")
            if st + 2 < 16:
                a.e("\n".join(GR(st + 2)))
                toks[st + 2] = a.lg_tok()
        self.stamp(24)
        L5 = a.label("Lg5")
        a.e(f"v_add_u32 v12, {L_SLAB + 32768}, v11\nv_mov_b32 v13, {L_SLAB + 32768 + 8192}\nv_mov_b32 v14, s{sTAG}")
        a.e(f"s_cmp_eq_u32 s{sW}, 4\ns_cbranch_scc1 {L5}")
        self.nocount("\n".join(f"ds_write_b128 v12, {vr(GA_+4*q,4)} offset:{q*1024}" for q in range(8)))
        a.e("s_waitcnt lgkmcnt(0)")
        self.nocount("ds_write_b32 v13, v14")
        a.e(f"s_waitcnt lgkmcnt(0)\ns_branch L_NOGEMV\n{L5}:")
        Ls = a.label("Lgs")
        Lso = a.label("Lgso")
        a.e(f"""
s_mov_b32 s{sTMP+11}, 0
{Ls}:
""")
        self.nocount("ds_read_b32 v15, v13")
        a.e(f"""
s_add_u32 s{sTMP+11}, s{sTMP+11}, 1
s_cmp_gt_u32 s{sTMP+11}, 4000000
s_cbranch_scc1 {Lso}
s_waitcnt lgkmcnt(0)
v_cmp_ne_u32 vcc, s{sTAG}, v15
s_cbranch_vccnz {Ls}
{Lso}:
""")
        self.nocount("\n".join(f"ds_read_b128 {vr(64+4*q,4)}, v12 offset:{q*1024}" for q in range(8)))
        a.e(f"""
s_lshl_b32 s{sTMP+5}, s{sX}, 12
s_lshl_b32 s{sTMP+6}, s{sT}, 8
s_add_u32 s{sTMP+5}, s{sTMP+5}, s{sTMP+6}
s_add_u32 s{sTMP+8}, s{sTMP+5}, {MODB}
s_add_u32 s{sTMP+5}, s{sTMP+5}, {MODA}
s_lshl_b32 s{sTMP+9}, s{sX}, 10
s_add_u32 s{sTMP+9}, s{sTMP+9}, s{sTMP+6}
s_add_u32 s{sTMP+9}, s{sTMP+9}, {MODG - 4096}
s_lshr_b32 s{sTMP+6}, s{sT}, 3
s_cmp_eq_u32 s{sTMP+6}, 1
s_cselect_b32 s{sTMP+7}, 1.0, 0
s_lshr_b32 s{sTMP+6}, s{sX}, 1
s_cmp_eq_u32 s{sTMP+6}, 2
s_cselect_b32 s{sTMP+10}, 1.0, 0
s_cmp_ge_u32 s{sT}, 16
s_cselect_b32 s{sTMP+7}, s{sTMP+10}, s{sTMP+7}
s_cselect_b32 s{sTMP+5}, s{sTMP+9}, s{sTMP+5}
s_cselect_b32 s{sTMP+8}, s{sTMP+9}, s{sTMP+8}
v_lshrrev_b32 v9, 5, v1
v_lshlrev_b32 v9, 5, v9
s_waitcnt lgkmcnt(0)
""")
        for r in range(32):
            a.e(f"v_add_f32 v{GA_+r}, v{GA_+r}, v{64+r}")
        for q in range(16):
            a.e(f"v_cvt_pk_bf16_f32 v{64+2*q}, v{GA_+2*q}, v{GA_+2*q+1}")
        for q in range(16):
            a.e(f"v_lshlrev_b32 v{GA_+2*q}, 16, v{64+2*q}\nv_and_b32 v{GA_+2*q+1}, 0xffff0000, v{64+2*q}")
        for r in range(32):
            a.e(f"v_add_f32 v{GA_+r}, s{sTMP+7}, v{GA_+r}")
        for q in range(16):
            a.e(f"v_cvt_pk_bf16_f32 v{64+2*q}, v{GA_+2*q}, v{GA_+2*q+1}\nv_mov_b32 v{65+2*q}, s{sTAG}")
        a.e("s_mov_b32 exec_lo, 1\ns_mov_b32 exec_hi, 1")
        Lnu = a.label("Lnu")
        a.e(f"s_cmp_ge_u32 s{sT}, 16\ns_cbranch_scc1 {Lnu}")
        for u in range(8):
            self.nocount(f"buffer_store_dwordx4 {vr(64+4*u,4)}, v9, {WS}, s{sTMP+5} offen offset:{(u>>1)*64 + (u&1)*16}")
        a.e(f"{Lnu}:")
        for u in range(8):
            self.nocount(f"buffer_store_dwordx4 {vr(64+4*u,4)}, v9, {WS}, s{sTMP+8} offen offset:{(u>>1)*64 + (u&1)*16} sc1")
        a.e("s_mov_b64 exec, -1")
        self.stamp(0)
        a.e("L_NOGEMV:")
        a.e(tagfix.replace("s_mul_i32", "s_cmp_ge_u32 s%d, 20\ns_cbranch_scc0 %s\ns_mul_i32" % (sT, L_j)))
        if "nomall" not in EXP:
            a.e(f"""
s_mul_i32 s{sTMP}, s{sX}, 12
s_add_u32 s{sTMP}, s{sTMP}, s{sT}
s_sub_u32 s{sTMP}, s{sTMP}, 20
s_lshl_b32 s{sTMP}, s{sTMP}, 1
s_add_u32 s{sTMP}, s{sTMP}, s{sW3}
s_lshl_b32 s{sTMP}, s{sTMP}, 13
s_add_u32 s{sTMP+1}, s{sTMP}, {192*8192}
""")
            if "tlb" in EXP:
                jobs = []
                for i in range(2):
                    jobs.append((S_WS, H1BUF + i * 262144, 524288))
                jobs.append((S_WS, OBUF, 262144))
                jobs.append((S_WS, H2BUF, 262144))
                for i in range(4):
                    jobs.append((S_WS, ACT + i * 262144, 917504))
                for i in range(2):
                    jobs.append((S_WS, KVX + i * 262144, 524288))
                jobs.append((S_OUT, 0, 262144))
                jobs.append((S_WS, SGRAN, 0))
                for i in range(2):
                    jobs.append((S_WO, i * 262144, 0))
                for srd in (S_WG, S_WU, S_WD):
                    for i in range(7):
                        jobs.append((srd, i * 262144, 0))
                a.e(f"v_lshlrev_b32 v5, 12, v1\ns_sub_u32 s{sTMP+4}, s{sT}, 20\ns_lshl_b32 s{sTMP+4}, s{sTMP+4}, 1\ns_add_u32 s{sTMP+4}, s{sTMP+4}, s{sW3}")
                for k, (srd, off, xs) in enumerate(jobs):
                    Ln = a.label("Ltl")
                    a.e(f"s_cmp_lg_u32 s{sTMP+4}, {k % 24}\ns_cbranch_scc1 {Ln}\ns_mul_i32 s{sTMP+5}, s{sX}, {xs}\ns_add_u32 s{sTMP+5}, s{sTMP+5}, {off}")
                    self.nocount(f"buffer_load_dword v2, v5, s[{srd}:{srd+3}], s{sTMP+5} offen sc1")
                    a.e(f"{Ln}:")
            a.e(f"s_cmp_lt_u32 s{sTMP}, {84*8192}\ns_cselect_b32 s{sTMP+1}, s{sTMP}, 0x7fff0000\n"
                f"s_sub_u32 s{sTMP+2}, s{sTMP}, {84*8192}\ns_cmp_lt_u32 s{sTMP+2}, {84*8192}\ns_cselect_b32 s{sTMP+2}, s{sTMP+2}, 0x7fff0000\n"
                f"s_sub_u32 s{sTMP+3}, s{sTMP}, {128*8192}\ns_min_u32 s{sTMP+3}, s{sTMP+3}, 0x7fff0000")
            self.nocount(f"buffer_load_dword v2, v10, s[{S_WG}:{S_WG+3}], s{sTMP+1} offen")
            self.nocount(f"buffer_load_dword v2, v10, s[{S_WU}:{S_WU+3}], s{sTMP+2} offen")
            self.nocount(f"buffer_load_dword v2, v10, s[{S_WO}:{S_WO+3}], s{sTMP+3} offen")
        a.e(f"s_branch {L_j}")
        a.vm_issued, a.lg_issued = v0_, l0_

    def phase1(self):
        a = self.a
        a.e(f"""
s_lshl_b32 s{sTMP}, s{sRB}, 8
s_lshl_b32 s{sTMP+1}, s{sW3}, 6
s_add_u32 s{sTMP}, s{sTMP}, s{sTMP+1}
s_add_u32 s{sTMP}, s{sTMP}, {FL_H1}
v_and_b32 v12, 15, v1
v_lshlrev_b32 v12, 2, v12
s_lshl_b32 s{sTMP+2}, s{sX}, 19
s_and_b32 s{sTMP+1}, s{sRB}, 1
s_lshl_b32 s{sTMP+1}, s{sTMP+1}, 17
s_add_u32 s{sTMP+2}, s{sTMP+2}, s{sTMP+1}
s_xor_b32 s{sTMP+1}, s{sWH}, 1
s_lshl_b32 s{sTMP+1}, s{sTMP+1}, 18
s_add_u32 s{sTMP+2}, s{sTMP+2}, s{sTMP+1}
s_lshl_b32 s{sTMP+1}, s{sW3}, 15
s_add_u32 s{sTMP+2}, s{sTMP+2}, s{sTMP+1}
s_add_u32 s{sTMP+2}, s{sTMP+2}, {H1BUF}
v_lshrrev_b32 v8, 5, v1
v_bfe_u32 v9, v1, 2, 2
v_lshl_add_u32 v9, v8, 3, v9
v_lshlrev_b32 v4, 6, v9
v_bfe_u32 v9, v1, 4, 1
v_lshl_add_u32 v4, v9, 5, v4
v_and_b32 v9, 1, v1
v_lshl_add_u32 v4, v9, 4, v4
v_bfe_u32 v9, v1, 1, 1
v_lshl_add_u32 v4, v9, 3, v4
v_add_u32 v4, {L_WQKV}, v4
v_add_u32 v5, 32768, v4
v_add_u32 v6, 65536, v4
v_and_b32 v14, 31, v1
v_lshlrev_b32 v14, 3, v14
s_lshl_b32 s{sTMP+3}, s{sX}, 8
s_add_u32 s{sTMP+3}, s{sTMP+3}, {XID}
""")
        L = a.label("P1")
        Lo = a.label("P1o")
        a.e(f"s_mov_b32 s{sTMP+11}, 0\n{L}:")
        self.nocount(f"buffer_load_dword v13, v12, {WS}, s{sTMP} offen sc1\nbuffer_load_dwordx2 v[16:17], v14, {WS}, s{sTMP+3} offen sc1")
        a.e(f"""
s_add_u32 s{sTMP+11}, s{sTMP+11}, 1
s_cmp_gt_u32 s{sTMP+11}, 400000
s_cbranch_scc1 {Lo}
s_waitcnt vmcnt(0)
v_cmp_ne_u32 vcc, s{sTAG}, v13
s_cbranch_vccz {Lo}
s_sleep {PSLEEP}
s_branch {L}
{Lo}:
s_waitcnt vmcnt(0)
v_xor_b32 v17, s{sTAG}, v17
v_xor_b32 v16, s{sXCC}, v16
v_or_b32 v16, v16, v17
v_cmp_ne_u32 vcc, 0, v16
s_cmp_eq_u64 vcc, 0
s_cselect_b32 s{sPURE}, 1, 0
""")
        self.stamp(2)
        ACC = [16, 32, 48]
        BFv = [64, 76, 88]
        NA = 12
        AF = lambda s: ar(4 * (s % NA), 4)
        NS = 32
        PD = 10

        def body(segs, wo=False):
            if wo:
                self.w64_lane(126)
                a.e(f"""
s_and_b32 s{sTMP+5}, s{sJ}, 7
s_lshl_b32 s{sTMP+5}, s{sTMP+5}, 7
s_lshl_b32 s{sTMP+6}, s{sW3}, 13
s_add_u32 s{sTMP+5}, s{sTMP+5}, s{sTMP+6}
s_lshl_b32 s{sTMP+6}, s{sW3}, 10
""")

            def R(s):
                return [f"ds_read_b64_tr_b16 {vr(BFv[s%3]+4*seg+2*i,2)}, v{4+seg} offset:{(16*s+4*i)*64}" for seg in segs for i in range(2)]

            def M(s):
                out = []
                for seg in segs:
                    c = "0" if s == 0 else vr(ACC[seg], 16)
                    b = vr(BFv[s % 3] + 4 * seg, 4)
                    if seg < 2:
                        out.append(f"v_mfma_f32_32x32x16_bf16 {vr(ACC[seg],16)}, {b}, {AF(s)}, {c}")
                    else:
                        out.append(f"v_mfma_f32_32x32x16_bf16 {vr(ACC[seg],16)}, {AF(s)}, {b}, {c}")
                return out

            def aload(s):
                out = []
                if s % 4 == 0 and s > 0:
                    out.append(f"s_add_u32 s{sTMP+2}, s{sTMP+2}, 4096")
                out.append(f"buffer_load_dwordx4 {AF(s)}, v11, {WS}, s{sTMP+2} offen offset:{(s%4)*1024} sc1")
                return out
            vt = {}
            for s in range(PD):
                a.e("\n".join(aload(s)))
                vt[s] = a.vm_tok()
            a.e("\n".join(R(0)))
            toks = {0: a.lg_tok()}
            a.e("\n".join(R(1)))
            toks[1] = a.lg_tok()
            for i in range(NS):
                r = R(i + 2) if i + 2 < NS else []
                a.wait_lg(toks[i])
                a.wait_vm(vt[i])
                a.e("\n".join(interleave(M(i), r)))
                if r:
                    toks[i + 2] = a.lg_tok()
                if i + PD < NS:
                    a.e("\n".join(aload(i + PD)))
                    vt[i + PD] = a.vm_tok()
                if i == int(os.environ.get("PRE", "4")) and "pre" in EXP:
                    self.pretouch()
                if wo and i < 16:
                    a.e(f"s_add_u32 m0, s{sTMP+6}, {L_WO + i*4096}\ns_add_u32 s{sTMP+7}, s{sTMP+5}, {i*32768}")
                    a.e(f"buffer_load_dwordx4 v126, s[{S_WO}:{S_WO+3}], s{sTMP+7} offen lds")
        L_h = a.label("Lp1h")
        L_j = a.label("Lp1j")
        a.e(f"s_cmp_ge_u32 s{sW}, 4\ns_cbranch_scc1 {L_h}")
        v0_, l0_ = a.vm_issued, a.lg_issued
        body([1, 2, 0])
        a.e(f"s_branch {L_j}\n{L_h}:")
        a.vm_issued, a.lg_issued = v0_, l0_
        body([1, 2], wo=True)
        a.e(f"{L_j}:")
        self.stamp(3)
        a.e("s_nop 15")

    def pretouch(self):
        a = self.a
        T = 84
        a.e(f"""
s_lshl_b32 s{T}, s{sRB}, 2
s_add_u32 s{T+1}, s{T}, s{sW3}
s_lshl_b32 s{T+2}, s{T+1}, 15
s_lshl_b32 s{T+3}, s{sJ}, 11
s_add_u32 s{T+2}, s{T+2}, s{T+3}
s_lshl_b32 s{T+3}, s{sWH}, 10
s_add_u32 s{T+2}, s{T+2}, s{T+3}
s_add_u32 s{T+2}, s{T+2}, {OBUF}
s_mul_i32 s{T+4}, s{T+1}, {112*1024}
s_mul_i32 s{T+3}, s{sJ}, {7*1024}
s_add_u32 s{T+4}, s{T+4}, s{T+3}
s_lshl_b32 s{T+3}, s{sWH}, 12
s_add_u32 s{T+4}, s{T+4}, s{T+3}
s_add_u32 s{T+4}, s{T+4}, {ACT}
s_lshr_b32 s{T+3}, s{sJ}, 3
s_lshl_b32 s{T+3}, s{T+3}, 1
s_add_u32 s{T}, s{T}, s{T+3}
s_and_b32 s{T+3}, s{sW}, 1
s_add_u32 s{T}, s{T}, s{T+3}
s_lshl_b32 s{T}, s{T}, 15
s_and_b32 s{T+3}, s{sJ}, 7
s_lshl_b32 s{T+5}, s{T+3}, 12
s_add_u32 s{T+5}, s{T+5}, s{T}
s_lshr_b32 s{T+6}, s{sW}, 1
s_lshl_b32 s{T+6}, s{T+6}, 10
s_add_u32 s{T+5}, s{T+5}, s{T+6}
s_add_u32 s{T+5}, s{T+5}, {H2BUF}
s_add_u32 s{T+6}, s{T+4}, 3072
s_cmp_lt_u32 s{sW}, 4
s_cselect_b32 s{T+6}, s{T+6}, 0x7fff0000
s_cmp_eq_u32 s{sPURE}, 0
s_cselect_b32 s{T+2}, 0x7fff0000, s{T+2}
s_cselect_b32 s{T+4}, 0x7fff0000, s{T+4}
s_cselect_b32 s{T+5}, 0x7fff0000, s{T+5}
s_cselect_b32 s{T+6}, 0x7fff0000, s{T+6}
buffer_store_dwordx4 v[8:11], v11, {WS}, s{T+2} offen
buffer_store_dwordx4 v[8:11], v11, {WS}, s{T+5} offen
buffer_store_dwordx4 v[8:11], v11, {WS}, s{T+4} offen
buffer_store_dwordx4 v[8:11], v11, {WS}, s{T+4} offen offset:1024
buffer_store_dwordx4 v[8:11], v11, {WS}, s{T+4} offen offset:2048
buffer_store_dwordx4 v[8:11], v11, {WS}, s{T+6} offen
""")
        if "nopre2" not in EXP:
            a.e(f"""
s_lshl_b32 s{T+2}, s{sP}, 14
s_lshl_b32 s{T+3}, s{sW3}, 12
s_add_u32 s{T+2}, s{T+2}, s{T+3}
s_add_u32 s{T+2}, s{T+2}, {KVX}
s_and_b32 s{T+3}, s{sRB}, 1
s_cmp_lg_u32 s{T+3}, s{sWH}
s_cselect_b32 s{T+2}, 0x7fff0000, s{T+2}
s_cmp_eq_u32 s{sPURE}, 0
s_cselect_b32 s{T+2}, 0x7fff0000, s{T+2}
s_lshl_b32 s{T+4}, s{sRB}, 17
s_lshr_b32 s{T+3}, s{sJ}, 3
s_lshl_b32 s{T+3}, s{T+3}, 16
s_add_u32 s{T+4}, s{T+4}, s{T+3}
s_lshl_b32 s{T+3}, s{sW}, 13
s_add_u32 s{T+4}, s{T+4}, s{T+3}
s_and_b32 s{T+3}, s{sJ}, 7
s_lshl_b32 s{T+3}, s{T+3}, 7
s_add_u32 s{T+4}, s{T+4}, s{T+3}
v_lshrrev_b32 v124, 3, v1
v_lshlrev_b32 v124, 10, v124
v_and_b32 v125, 7, v1
v_lshl_add_u32 v124, v125, 4, v124
buffer_store_dwordx4 v[8:11], v11, {WS}, s{T+2} offen
buffer_store_dwordx4 v[8:11], v11, {WS}, s{T+2} offen offset:1024
buffer_store_dwordx4 v[8:11], v11, {WS}, s{T+2} offen offset:2048
buffer_store_dwordx4 v[8:11], v11, {WS}, s{T+2} offen offset:3072
buffer_store_dwordx4 v[8:11], v124, s[{S_OUT}:{S_OUT+3}], s{T+4} offen
""")

    def phase2(self):
        a = self.a
        QF = 140
        for r in range(8):
            a.e(f"v_cvt_pk_bf16_f32 v{64+r}, v{32+2*r}, v{33+2*r}")
        for r in range(8):
            a.e(f"v_cvt_pk_bf16_f32 v{72+r}, v{48+2*r}, v{49+2*r}")
        a.e(f"""
v_and_b32 v8, 31, v1
v_lshrrev_b32 v9, 5, v1
v_bfe_u32 v5, v1, 2, 2
v_xor_b32 v9, v9, v5
v_lshlrev_b32 v7, 6, v8
v_lshl_add_u32 v12, v9, 4, v7
v_xor_b32 v9, 2, v9
v_lshl_add_u32 v13, v9, 4, v7
s_xor_b32 s{sTMP+3}, s{sWH}, 1
s_lshl_b32 s{sTMP+3}, s{sTMP+3}, 14
s_lshl_b32 s{sTMP+4}, s{sW3}, 11
s_add_u32 s{sTMP+3}, s{sTMP+3}, s{sTMP+4}
s_add_u32 s{sTMP+1}, s{sTMP+3}, {L_K}
s_add_u32 s{sTMP+2}, s{sTMP+3}, {L_V}
v_add_u32 v8, s{sTMP+1}, v12
v_add_u32 v9, s{sTMP+1}, v13
v_add_u32 v5, s{sTMP+2}, v12
v_add_u32 v7, s{sTMP+2}, v13
s_lshl_b32 s{sTMP+1}, s{sP}, 14
s_lshl_b32 s{sTMP+2}, s{sW3}, 12
s_add_u32 s{sTMP+1}, s{sTMP+1}, s{sTMP+2}
s_add_u32 s{sTMP+1}, s{sTMP+1}, {KVX}
s_lshl_b32 s{sTMP+5}, s{sP}, 4
s_lshl_b32 s{sTMP+2}, s{sW3}, 2
s_add_u32 s{sTMP+5}, s{sTMP+5}, s{sTMP+2}
s_add_u32 s{sTMP+5}, s{sTMP+5}, {FL_KV}
v_mov_b32 v14, s{sTAG}
v_mov_b32 v15, 0
s_and_b32 s{sTMP+6}, s{sRB}, 1
""")
        L_f = a.label("Lfetch")
        L_j = a.label("Lp2j")
        a.e(f"s_cmp_lg_u32 s{sTMP+6}, s{sWH}\ns_cbranch_scc1 {L_f}")
        v0_, l0_ = a.vm_issued, a.lg_issued
        st = f"""buffer_store_dwordx4 v[64:67], v12, {WS}, s{sTMP+1} offen
buffer_store_dwordx4 v[68:71], v13, {WS}, s{sTMP+1} offen
buffer_store_dwordx4 v[72:75], v12, {WS}, s{sTMP+1} offen offset:2048
buffer_store_dwordx4 v[76:79], v13, {WS}, s{sTMP+1} offen offset:2048
"""
        self.store_sel(st + self.flag_seq(f"s{sTMP+5}"))
        a.e(f"s_barrier\ns_branch {L_j}\n{L_f}:")
        a.vm_issued, a.lg_issued = v0_, l0_
        a.e(f"s_xor_b32 s{sTMP+5}, s{sTMP+5}, 256\ns_xor_b32 s{sTMP+1}, s{sTMP+1}, {16*16384}")
        self.poll(15, f"s{sTMP+5}", 80)
        a.e("s_barrier")
        for half in range(2):
            a.e(f"s_add_u32 m0, s{sTMP+4}, {L_K + 4*2048}")
            self.nocount(f"buffer_load_dwordx4 v11, {WS}, s{sTMP+1} offen offset:{half*1024} sc1 lds")
            a.e(f"s_add_u32 m0, s{sTMP+4}, {L_V + 4*2048 - 2048}")
            self.nocount(f"buffer_load_dwordx4 v11, {WS}, s{sTMP+1} offen offset:{2048 + half*1024} sc1 lds")
        a.e(f"{L_j}:")
        a.e(f"""
ds_write_b128 v8, v[64:67]
ds_write_b128 v9, v[68:71]
ds_write_b128 v5, v[72:75]
ds_write_b128 v7, v[76:79]
""")
        Lq = a.label("Lq0")
        a.e(f"s_cmp_ge_u32 s{sW}, 4\ns_cbranch_scc1 {Lq}")
        a.e(f"s_mov_b32 s{sTMP}, {f2u(QSCALE):#x}")
        for r in range(16):
            a.e(f"v_mul_f32 v{16+r}, s{sTMP}, v{16+r}")
        for r in range(4):
            a.e(f"v_cvt_pk_bf16_f32 v{QF+r}, v{16+2*r}, v{17+2*r}")
        for r in range(4):
            a.e(f"v_cvt_pk_bf16_f32 v{80+r}, v{24+2*r}, v{25+2*r}")
        a.e(f"""
s_lshl_b32 s{sTMP+4}, s{sW}, 10
s_add_u32 s{sTMP+4}, s{sTMP+4}, {L_QX}
v_add_u32 v5, s{sTMP+4}, v11
""")
        self.nocount("ds_write_b128 v5, v[80:83]")
        a.e(f"{Lq}:")
        if "valugemv" in EXP:
            a.e(f"""
s_lshl_b32 s{sTMP}, s{sW}, 5
s_add_u32 s{sTMP}, s{sTMP}, {L_SCR}
v_lshl_add_u32 v12, v3, 3, s{sTMP}
ds_write_b64 v12, v[132:133]
""")
        a.e("s_waitcnt vmcnt(0) lgkmcnt(0)\ns_barrier")
        self.stamp(5)
        Lq = a.label("Lq")
        Lw = a.label("Lwo")
        a.e(f"s_cmp_lt_u32 s{sW}, 4\ns_cbranch_scc1 {Lw}")
        a.e(f"s_lshl_b32 s{sTMP+4}, s{sW3}, 10\ns_add_u32 s{sTMP+4}, s{sTMP+4}, {L_QX}\nv_add_u32 v5, s{sTMP+4}, v11")
        self.nocount(f"ds_read_b128 v[{QF}:{QF+3}], v5")
        if "valugemv" in EXP:
            a.e(f"s_cmp_lg_u32 s{sW}, 4\ns_cbranch_scc1 {Lw}")
            a.e(f"v_and_b32 v13, 3, v1\nv_lshlrev_b32 v13, 3, v13\nv_add_u32 v14, {L_SCR}, v13")
            self.nocount("\n".join(f"ds_read_b64 v[{80+2*w}:{81+2*w}], v14 offset:{(4+w)*32}" for w in range(2)))
            a.e(f"""
s_lshr_b32 s{sTMP+5}, s{sP}, 6
s_cmp_eq_u32 s{sTMP+5}, 2
s_cselect_b32 s{sTMP+4}, 1.0, 0
s_lshl_b32 s{sTMP+5}, s{sP}, 5
s_add_u32 s{sTMP+5}, s{sTMP+5}, {MODG}
s_waitcnt lgkmcnt(0)
v_add_f32 v80, v80, v82
v_add_f32 v81, v81, v83
""")
            self.granule(80, 81, sTMP + 4, 82)
            a.e("s_mov_b64 exec, 0xf")
            self.nocount(f"buffer_store_dwordx2 v[82:83], v13, {WS}, s{sTMP+5} offen sc1")
            a.e("s_mov_b64 exec, -1")
        a.e(f"{Lw}:")
        a.e(f"{Lq}:\ns_waitcnt lgkmcnt(0)")
        self.gu_dma_setup()
        self.gu_dma_hi([0])
        if "nomall2" not in EXP:
            Lm = a.label("Lmall")
            a.e(f"""
s_lshr_b32 s{sTMP}, s{sW}, 1
s_cmp_lg_u32 s{sTMP}, 1
s_cbranch_scc1 {Lm}
s_lshl_b32 s{sTMP}, s{sP}, 1
s_and_b32 s{sTMP+1}, s{sW}, 1
s_add_u32 s{sTMP}, s{sTMP}, s{sTMP+1}
s_lshl_b32 s{sTMP}, s{sTMP}, 13
s_add_u32 s{sTMP+1}, s{sTMP}, {84*8192}
s_sub_u32 s{sTMP+2}, s{sTMP}, {140*8192}
s_cmp_lt_u32 s{sTMP+2}, {140*8192}
s_cselect_b32 s{sTMP+2}, s{sTMP+2}, 0x7fff0000
s_add_u32 s{sTMP+2}, s{sTMP+2}, {84*8192}
s_sub_u32 s{sTMP+3}, s{sTMP}, {280*8192}
s_min_u32 s{sTMP+3}, s{sTMP+3}, 0x7fff0000
""")
            self.nocount(f"buffer_load_dword v2, v10, s[{S_WG}:{S_WG+3}], s{sTMP+1} offen")
            self.nocount(f"buffer_load_dword v2, v10, s[{S_WU}:{S_WU+3}], s{sTMP+2} offen")
            self.nocount(f"buffer_load_dword v2, v10, s[{S_WD}:{S_WD+3}], s{sTMP+3} offen")
            a.e(f"{Lm}:")
        Lep = a.label("Lep")
        a.e(f"s_mov_b32 s101, 0\ns_cmp_lg_u32 s2, 0\ns_cbranch_scc1 {Lep}\ns_cmp_lg_u32 s{sW}, 7\ns_cbranch_scc1 {Lep}\nv_lshlrev_b32 v124, 3, v1\ns_mov_b32 s{sTMP}, {XID}")
        for q in range(4):
            self.nocount(f"buffer_load_dword v{125+q}, v124, {WS}, s{sTMP} offen offset:{4 + 512*q} sc1")
        a.e(f"{Lep}:")
        SB = [16, 32]
        CN, OA, PK, MK, MX = 48, 64, 80, 96, 104
        VF = [108, 116]
        KA = 0
        a.e(f"""
v_and_b32 v8, 31, v1
v_lshrrev_b32 v9, 5, v1
v_bfe_u32 v7, v1, 2, 2
s_lshl_b32 s{sTMP}, s{sWH}, 1
v_or_b32 v12, s{sTMP}, v9
v_xor_b32 v12, v12, v7
v_lshlrev_b32 v4, 6, v8
v_lshl_add_u32 v4, v12, 4, v4
s_lshl_b32 s{sTMP+1}, s{sW3}, 11
s_add_u32 s{sTMP+2}, s{sTMP+1}, {L_K}
v_add_u32 v4, s{sTMP+2}, v4
v_and_b32 v13, 15, v1
v_lshlrev_b32 v5, 6, v13
v_xor_b32 v12, v9, v7
v_lshl_add_u32 v5, v12, 4, v5
v_xor_b32 v12, 2, v12
v_lshlrev_b32 v6, 6, v13
v_lshl_add_u32 v6, v12, 4, v6
s_lshl_b32 s{sTMP+2}, s{sWH}, 10
s_add_u32 s{sTMP+2}, s{sTMP+2}, s{sTMP+1}
s_add_u32 s{sTMP+2}, s{sTMP+2}, {L_V}
v_add_u32 v5, s{sTMP+2}, v5
v_add_u32 v6, s{sTMP+2}, v6
s_lshl_b32 s{sTMP}, s{sRB}, 2
s_add_u32 s{sTMP}, s{sTMP}, s{sW3}
s_sub_u32 s{sIMIN}, 8, s{sTMP}
s_cmp_ge_u32 s{sTMP}, 8
s_cselect_b32 s{sIMIN}, 0, s{sIMIN}
s_mul_i32 s92, s{sT}, 35840
s_min_u32 s93, s{sW}, 4
s_lshl_b32 s93, s93, 13
s_add_u32 s92, s92, s93
s_add_u32 s92, s92, {192*3584}
""")
        order = [8, 0, 7, 6, 5, 4, 3, 2, 1]
        ktok = {}
        for i in order:
            a.e(f"ds_read_b128 {ar(KA+4*i,4)}, v4 offset:{i*2048}")
            ktok[i] = a.lg_tok()
        a.e(f"v_lshlrev_b32 v12, 2, v9\nv_sub_u32 v12, v8, v12")
        for r in range(16):
            kl = 8 * (r >> 2) + (r & 3)
            a.e(f"v_cmp_le_i32 s[{sMASK+2*r}:{sMASK+2*r+1}], {kl}, v12")
        a.e(f"v_mov_b32 v13, 0xffff\nv_mov_b32 v7, 0xffff0000")
        for j in range(8):
            a.e(f"v_cndmask_b32 v{MK+j}, 0, v13, s[{sMASK+4*j}:{sMASK+4*j+1}]")
            a.e(f"v_cndmask_b32 v12, 0, v7, s[{sMASK+4*j+2}:{sMASK+4*j+3}]")
            a.e(f"v_or_b32 v{MK+j}, v{MK+j}, v12")
        a.e(f"v_and_b32 v12, 27, v1\nv_cmp_eq_u32 vcc, 16, v12\nv_mov_b32 v13, 0x3f803f80")
        for r in range(16):
            a.e(f"v_cndmask_b32 v{VF[0]+r}, 0, v13, vcc")
        Q = vr(QF, 4)

        touches = [None, (S_WG, 0), None, (S_WU, 0)]

        def touch_one():
            if "atouch" not in EXP or not touches:
                return
            t_ = touches.pop(0)
            if t_ is None:
                return
            srd, off = t_
            Ln = a.label("Lnt")
            a.e(f"s_cmp_gt_u32 s{sW}, 4\ns_cbranch_scc1 {Ln}\ns_add_u32 s93, s92, {off}")
            self.nocount(f"buffer_load_dword v2, v10, s[{srd}:{srd+3}], s93 offen")
            a.e(f"{Ln}:")

        def smfma(buf, i, c):
            return f"v_mfma_f32_32x32x16_bf16 {vr(SB[buf],16)}, {ar(KA+4*i,4)}, {Q}, {c}"

        def fix_trail():
            Ln = a.label("Lnt")
            a.e(f"s_cmp_eq_u32 s{sIMIN}, 0\ns_cbranch_scc1 {Ln}")
            a.e("s_nop 12")
            for r in range(16):
                a.e(f"v_mov_b32 v{SB[1]+r}, {NEG_BIG:#x}")
            a.e(f"{Ln}:\ns_nop 12")

        def merge():
            for r in range(16):
                a.e(f"v_cndmask_b32 v{SB[0]+r}, v{SB[1]+r}, v{SB[0]+r}, s[{sMASK+2*r}:{sMASK+2*r+1}]")

        touch_one()
        a.wait_lg(ktok[0])
        a.e(smfma(0, 8, "0"))
        a.e(smfma(1, 0, "0"))
        fix_trail()
        merge()
        a.wait_lg(ktok[7])
        a.e(smfma(1, 7, "0"))
        a.e(f"v_max3_f32 v{MX}, v{SB[0]}, v{SB[0]+1}, v{SB[0]+2}")
        for r in range(3, 15, 2):
            a.e(f"v_max3_f32 v{MX}, v{MX}, v{SB[0]+r}, v{SB[0]+r+1}")
        a.e(f"v_max_f32 v{MX}, v{MX}, v{SB[0]+15}")
        Le1 = a.label("Lp1e")
        buf = 1
        for i in range(7, 0, -1):
            a.e(f"s_cmp_gt_u32 s{sIMIN}, {i}\ns_cbranch_scc1 {Le1}")
            if i > 1:
                a.wait_lg(ktok[i - 1])
                a.e(smfma(1 - buf, i - 1, "0"))
            for r in range(0, 16, 2):
                a.e(f"v_max3_f32 v{MX}, v{MX}, v{SB[buf]+r}, v{SB[buf]+r+1}")
            buf = 1 - buf
        a.e(f"{Le1}:\ns_waitcnt lgkmcnt(0)\ns_nop 12")
        self.group_allsum([MX], [MX + 1], op="v_max_f32", stages=("32",))
        for r in range(16):
            a.e(f"v_sub_f32 v{CN+r}, 0, v{MX}")
        C = vr(CN, 16)

        def vread(b, i):
            return [f"s_mov_b32 exec_lo, 0xffff", f"s_mov_b32 exec_hi, 0xffff",
                    f"ds_read_b128 {vr(VF[b],4)}, v5 offset:{i*2048}", f"ds_read_b128 {vr(VF[b]+4,4)}, v6 offset:{i*2048}",
                    "s_mov_b64 exec, -1"]

        def expack(buf, dst):
            for r in range(16):
                a.e(f"v_exp_f32 v{SB[buf]+r}, v{SB[buf]+r}")
            for j in range(8):
                a.e(f"v_cvt_pk_bf16_f32 v{dst+j}, v{SB[buf]+2*j}, v{SB[buf]+2*j+1}")

        def pv(vb, p, first=False):
            a.e(f"v_mfma_f32_32x32x16_bf16 {vr(OA,16)}, {vr(VF[vb],4)}, {vr(p,4)}, {'0' if first else vr(OA,16)}")
            a.e(f"v_mfma_f32_32x32x16_bf16 {vr(OA,16)}, {vr(VF[vb]+4,4)}, {vr(p+4,4)}, {vr(OA,16)}")

        touch_one()
        a.e("\n".join(vread(0, 8) + vread(1, 0)))
        tv = a.lg_tok()
        a.e(smfma(0, 8, C))
        a.e(smfma(1, 0, C))
        fix_trail()
        merge()
        a.e(smfma(1, 7, C))
        expack(0, PK)
        for j in range(8):
            a.e(f"v_and_b32 v{PK+8+j}, v{PK+j}, v{MK+j}")
        for j in range(8):
            a.e(f"v_xor_b32 v{PK+j}, v{PK+j}, v{PK+8+j}")
        a.wait_lg(tv)
        pv(0, PK + 8, first=True)
        Lnt = a.label("Lnpv")
        a.e(f"s_cmp_lg_u32 s{sIMIN}, 0\ns_cbranch_scc1 {Lnt}")
        pv(1, PK)
        a.e(f"{Lnt}:")
        Le2 = a.label("Lp2e")
        buf = 1
        vb = 0
        a.e("\n".join(vread(0, 7)))
        for i in range(7, 0, -1):
            a.e(f"s_cmp_gt_u32 s{sIMIN}, {i}\ns_cbranch_scc1 {Le2}")
            tv = a.lg_tok()
            if i > 1:
                a.e(smfma(1 - buf, i - 1, C))
                a.e("\n".join(vread(1 - vb, i - 1)))
            if i in (6, 4):
                touch_one()
            p = PK + 8 * (i & 1)
            expack(buf, p)
            a.wait_lg(tv)
            pv(vb, p)
            buf = 1 - buf
            vb = 1 - vb
        a.e(f"{Le2}:\ns_waitcnt lgkmcnt(0)\ns_nop 15")
        a.e(f"v_rcp_f32 v{MX}, v{OA+8}")
        for r in range(8):
            a.e(f"v_mul_f32 v{OA+r}, v{MX}, v{OA+r}")
        for j in range(4):
            a.e(f"v_cvt_pk_bf16_f32 v{PK+j}, v{OA+2*j}, v{OA+2*j+1}")
        a.e(f"""
s_lshl_b32 s{sTMP}, s{sRB}, 2
s_add_u32 s{sTMP}, s{sTMP}, s{sW3}
s_lshl_b32 s{sTMP}, s{sTMP}, 15
s_lshl_b32 s{sTMP+1}, s{sJ}, 11
s_add_u32 s{sTMP}, s{sTMP}, s{sTMP+1}
s_lshl_b32 s{sTMP+1}, s{sWH}, 10
s_add_u32 s{sTMP}, s{sTMP}, s{sTMP+1}
s_add_u32 s{sTMP}, s{sTMP}, {OBUF}
s_lshl_b32 s{sTMP+1}, s{sP}, 5
s_lshl_b32 s{sTMP+2}, s{sW}, 2
s_add_u32 s{sTMP+1}, s{sTMP+1}, s{sTMP+2}
s_add_u32 s{sTMP+1}, s{sTMP+1}, {FL_O}
v_mov_b32 v14, s{sTAG}
v_mov_b32 v15, 0
""")
        self.store_sel(f"buffer_store_dwordx4 v[{PK}:{PK+3}], v11, {WS}, s{sTMP} offen\n" + self.flag_seq(f"s{sTMP+1}"))
        Lep = a.label("Lep2")
        a.e(f"""
s_cmp_lg_u32 s2, 0
s_cbranch_scc1 {Lep}
s_cmp_lg_u32 s{sW}, 7
s_cbranch_scc1 {Lep}
v_xor_b32 v125, s{sTAG}, v125
v_xor_b32 v126, s{sTAG}, v126
v_xor_b32 v127, s{sTAG}, v127
v_xor_b32 v128, s{sTAG}, v128
v_or3_b32 v125, v125, v126, v127
v_or_b32 v125, v125, v128
v_cmp_ne_u32 vcc, 0, v125
s_cbranch_vccnz {Lep}
s_mov_b32 s101, 1
s_mov_b64 exec, 1
""")
        self.nocount(f"buffer_store_dword v14, v15, {WS}, 0 offen offset:{EPOCH} sc1")
        a.e(f"s_mov_b64 exec, -1\n{Lep}:")
        self.stamp(6)
        self.gu_dma_setup(lanes=False)
        a.e("s_barrier")

    def w64_lane(self, vd, stride=1024):
        self.a.e(f"""
v_lshrrev_b32 v{vd}, 3, v1
v_mul_u32_u24 v{vd}, {stride}, v{vd}
v_and_b32 v2, 7, v1
v_bfe_u32 v{vd+1}, v1, 4, 1
v_lshlrev_b32 v{vd+1}, 2, v{vd+1}
v_xor_b32 v2, v2, v{vd+1}
v_lshl_add_u32 v{vd}, v2, 4, v{vd}
""")

    def tr64_bases(self, vd):
        self.a.e(f"""
v_lshrrev_b32 v8, 5, v1
v_bfe_u32 v9, v1, 2, 2
v_lshl_add_u32 v8, v8, 3, v9
v_lshlrev_b32 v8, 7, v8
v_bfe_u32 v12, v1, 4, 1
v_lshl_add_u32 v8, v12, 5, v8
v_and_b32 v12, 1, v1
v_lshl_add_u32 v8, v12, 4, v8
v_bfe_u32 v12, v1, 1, 1
v_lshl_add_u32 v8, v12, 3, v8
v_lshrrev_b32 v9, 1, v9
v_lshl_add_u32 v{vd}, v9, 6, v8
v_xor_b32 v9, 1, v9
v_lshl_add_u32 v{vd+1}, v9, 6, v8
""")

    def gu_dma_setup(self, lanes=True):
        a = self.a
        a.e(f"""
s_cmp_ge_u32 s{sW3}, 2
s_cselect_b32 s{S_SEL}, s{S_WU}, s{S_WG}
s_cselect_b32 s{S_SEL+1}, s{S_WU+1}, s{S_WG+1}
s_cselect_b32 s76, {GU_UP}, 0
s_mov_b32 s{S_SEL+2}, 1835008
s_mov_b32 s{S_SEL+3}, 0x20000
s_mov_b32 s84, 4682
s_and_b32 s86, s{sW}, 1
s_mul_i32 s85, s86, {32*3584}
s_mul_i32 s87, s{sJ}, 224
s_add_u32 s85, s85, s87
s_mul_i32 s86, s86, 7168
s_add_u32 s76, s76, s86
""")
        for i in range(7 if lanes else 0):
            a.e(f"""
v_add_u32 v12, {64*i}, v1
v_mul_u32_u24 v13, s84, v12
v_lshrrev_b32 v13, 16, v13
v_mul_u32_u24 v{144+i}, 14, v13
v_sub_u32 v12, v12, v{144+i}
v_mul_u32_u24 v{144+i}, 3584, v13
v_lshl_add_u32 v{144+i}, v12, 4, v{144+i}
""")

    def gu_dma(self, chunk):
        out = []
        for i in range(7):
            out.append(f"s_add_u32 s86, s85, {chunk*64*3584}\ns_add_u32 m0, s76, {GU_SLOT[chunk%4] + i*1024}\n"
                       f"buffer_load_dwordx4 v{144+i}, s[{S_SEL}:{S_SEL+3}], s86 offen{NTG} lds")
        return out

    def gu_dma_hi(self, chunks):
        a = self.a
        Ln = a.label("Lgh")
        a.e(f"s_cmp_lt_u32 s{sW}, 4\ns_cbranch_scc1 {Ln}")
        for c in chunks:
            self.nocount("\n".join(self.gu_dma(c)))
        a.e(f"{Ln}:")

    def reduce_scatter4(self, ACC, base, dst):
        a = self.a
        a.e(f"""
s_and_b32 s{sTMP+1}, s{sW}, 1
s_lshl_b32 s{sTMP+1}, s{sTMP+1}, 15
s_lshr_b32 s{sTMP+5}, s{sW}, 1
s_lshl_b32 s{sTMP+6}, s{sTMP+5}, 11
s_add_u32 s{sTMP+6}, s{sTMP+6}, s{sTMP+1}
s_add_u32 s{sTMP+6}, s{sTMP+6}, {base}
v_add_u32 v12, s{sTMP+6}, v11
s_lshl_b32 s{sTMP+6}, s{sTMP+5}, 13
s_add_u32 s{sTMP+6}, s{sTMP+6}, s{sTMP+1}
s_add_u32 s{sTMP+6}, s{sTMP+6}, {base}
v_add_u32 v13, s{sTMP+6}, v11
""")
        for q in range(4):
            for hf in range(2):
                a.e(f"ds_write_b128 v12, {vr(ACC+8*q+4*hf,4)} offset:{q*8192 + hf*1024}")
        a.e("s_waitcnt lgkmcnt(0)\ns_barrier")
        for src in range(4):
            for hf in range(2):
                a.e(f"ds_read_b128 {vr(ACC+8*src+4*hf,4)}, v13 offset:{src*2048 + hf*1024}")
        a.e("s_waitcnt lgkmcnt(0)")
        for r in range(8):
            a.e(f"v_add_f32 v{ACC+r}, v{ACC+r}, v{ACC+8+r}\nv_add_f32 v{ACC+16+r}, v{ACC+16+r}, v{ACC+24+r}")
        for r in range(8):
            a.e(f"v_add_f32 v{dst+r}, v{ACC+r}, v{ACC+16+r}")

    def phase3(self):
        a = self.a
        a.e(f"""
s_lshr_b32 s{sTMP+3}, s{sJ}, 3
s_lshl_b32 s{sTMP+3}, s{sTMP+3}, 1
s_and_b32 s{sTMP+1}, s{sW}, 1
s_add_u32 s{sTMP+3}, s{sTMP+3}, s{sTMP+1}
s_lshr_b32 s{sTMP+5}, s{sW}, 1
s_and_b32 s{sTMP+7}, s{sTMP+5}, 1
s_lshl_b32 s{sTMP}, s{sRB}, 9
s_lshl_b32 s{sTMP+1}, s{sTMP+3}, 2
s_add_u32 s{sTMP}, s{sTMP}, s{sTMP+1}
s_lshl_b32 s{sTMP+1}, s{sTMP+5}, 7
s_add_u32 s89, s{sTMP}, s{sTMP+1}
s_lshl_b32 s{sTMP+1}, s{sTMP+7}, 8
s_add_u32 s{sTMP}, s{sTMP}, s{sTMP+1}
s_add_u32 s{sTMP}, s{sTMP}, {FL_O}
v_and_b32 v14, 3, v1
v_lshlrev_b32 v14, 5, v14
v_bfe_u32 v15, v1, 2, 1
v_lshl_add_u32 v153, v15, 4, v14
v_and_b32 v14, 7, v1
v_lshlrev_b32 v14, 5, v14
v_bfe_u32 v15, v1, 3, 1
v_lshl_add_u32 v14, v15, 4, v14
s_lshl_b32 s88, s{sRB}, 2
s_add_u32 s88, s88, s{sTMP+3}
s_lshl_b32 s{sTMP+2}, s88, 15
s_lshl_b32 s{sTMP+1}, s{sTMP+7}, 14
s_add_u32 s{sTMP+2}, s{sTMP+2}, s{sTMP+1}
s_add_u32 s{sTMP+2}, s{sTMP+2}, {OBUF}
""")
        self.tr64_bases(154)
        a.e(f"""
s_cmp_ge_u32 s{sW}, 4
s_cselect_b64 vcc, -1, 0
v_cndmask_b32 v4, v154, v155, vcc
s_lshl_b32 s{sTMP+1}, s{sTMP+7}, 15
s_add_u32 s{sTMP+1}, s{sTMP+1}, {L_WO}
v_add_u32 v4, s{sTMP+1}, v4
v_and_b32 v12, 31, v1
v_lshlrev_b32 v12, 10, v12
v_lshrrev_b32 v13, 5, v1
v_lshl_add_u32 v151, v13, 4, v12
s_lshl_b32 s80, s88, 15
s_and_b32 s{sTMP+6}, s{sJ}, 7
s_lshl_b32 s{sTMP+6}, s{sTMP+6}, 7
s_add_u32 s80, s80, s{sTMP+6}
s_lshl_b32 s{sTMP+1}, s{sTMP+5}, 5
s_add_u32 s80, s80, s{sTMP+1}
v_lshlrev_b32 v12, 11, v3
v_and_b32 v13, 15, v1
v_lshl_add_u32 v12, v13, 4, v12
s_lshl_b32 s{sTMP+6}, s{sTMP+6}, 1
s_add_u32 s{sTMP+6}, s{sTMP+6}, {MODG}
""")
        XR = 124
        a.e(f"buffer_load_dwordx4 v[{XR}:{XR+3}], v151, s[{S_X}:{S_X+3}], s80 offen")
        Lt = a.label("Ltab")
        L = a.label("T")
        Lo = a.label("To")
        a.e(f"s_cmp_lg_u32 s{sW}, 2\ns_cbranch_scc1 {Lt}\ns_mov_b32 s{sTMP+11}, 0\n{L}:")
        self.nocount(f"buffer_load_dwordx4 v[96:99], v12, {WS}, s{sTMP+6} offen sc1")
        a.e(f"""
s_add_u32 s{sTMP+11}, s{sTMP+11}, 1
s_cmp_gt_u32 s{sTMP+11}, 400000
s_cbranch_scc1 {Lo}
s_waitcnt vmcnt(0)
v_xor_b32 v100, s{sTAG}, v97
v_xor_b32 v101, s{sTAG}, v99
v_or_b32 v100, v100, v101
v_cmp_ne_u32 vcc, 0, v100
s_cbranch_vccnz {L}
{Lo}:
s_waitcnt vmcnt(0)
v_and_b32 v97, 0xffff0000, v96
v_lshlrev_b32 v96, 16, v96
v_and_b32 v99, 0xffff0000, v98
v_lshlrev_b32 v98, 16, v98
v_add_u32 v12, {L_TAB}, v11
""")
        self.nocount("ds_write_b128 v12, v[96:99]")
        a.e(f"{Lt}:")
        ACC = 16
        BF = [32, 36, 40]
        AF = lambda s: ar(4 * s, 4)

        def R(s):
            return [f"ds_read_b64_tr_b16 {vr(BF[s%3]+2*i,2)}, v4 offset:{(16*s+4*i)*128}" for i in range(2)]

        a.e("s_waitcnt lgkmcnt(0)")
        toks = {}
        for s in range(2):
            a.e("\n".join(R(s)))
            toks[s] = a.lg_tok()
        self.poll(14, f"s{sTMP}", 15)
        self.stamp(7)
        vt = {}
        for s in range(16):
            if s % 4 == 0 and s:
                a.e(f"s_add_u32 s{sTMP+2}, s{sTMP+2}, 4096")
            a.e(f"buffer_load_dwordx4 {AF(s)}, v11, {WS}, s{sTMP+2} offen offset:{(s%4)*1024}")
            vt[s] = a.vm_tok()
        for s in range(16):
            a.wait_lg(toks[s])
            a.wait_vm(vt[s])
            a.e(f"v_mfma_f32_32x32x16_bf16 {vr(ACC,16)}, {vr(BF[s%3],4)}, {AF(s)}, {'0' if s == 0 else vr(ACC,16)}")
            if s + 2 < 16:
                a.e("\n".join(R(s + 2)))
                toks[s + 2] = a.lg_tok()
        self.stamp(18)
        a.e(f"""
s_and_b32 s{sTMP+1}, s{sW}, 1
s_lshl_b32 s{sTMP+1}, s{sTMP+1}, 14
s_lshl_b32 s{sTMP+6}, s{sWH}, 13
s_add_u32 s{sTMP+1}, s{sTMP+1}, s{sTMP+6}
s_add_u32 s{sTMP+1}, s{sTMP+1}, {L_RED}
s_lshl_b32 s{sTMP+6}, s{sTMP+7}, 11
s_add_u32 s{sTMP+6}, s{sTMP+6}, s{sTMP+1}
v_add_u32 v12, s{sTMP+6}, v11
s_lshl_b32 s{sTMP+6}, s{sTMP+7}, 12
s_add_u32 s{sTMP+6}, s{sTMP+6}, s{sTMP+1}
v_add_u32 v13, s{sTMP+6}, v11
""")
        for q in range(2):
            for hf in range(2):
                a.e(f"ds_write_b128 v12, {vr(ACC+8*q+4*hf,4)} offset:{q*4096 + hf*1024}")
        a.e("s_waitcnt lgkmcnt(0)\ns_barrier")
        self.stamp(19)
        if "g12a" in EXP or not ("g12b" in EXP or "g12c" in EXP):
            self.gu_dma_hi([1, 2])
        for src in range(2):
            for hf in range(2):
                a.e(f"ds_read_b128 {vr(ACC+8*src+4*hf,4)}, v13 offset:{src*2048 + hf*1024}")
        GA, SBv, G2 = 56, 64, 72
        a.e(f"""
v_lshrrev_b32 v13, 5, v1
v_lshlrev_b32 v13, 5, v13
s_lshl_b32 s{sTMP+5}, s{sTMP+5}, 6
s_add_u32 s{sTMP+5}, s{sTMP+5}, {L_TAB}
v_add_u32 v13, s{sTMP+5}, v13
ds_read_b128 {vr(GA,4)}, v13
ds_read_b128 {vr(GA+4,4)}, v13 offset:16
ds_read_b128 {vr(SBv,4)}, v13 offset:256
ds_read_b128 {vr(SBv+4,4)}, v13 offset:272
ds_read_b128 {vr(G2,4)}, v13 offset:512
ds_read_b128 {vr(G2+4,4)}, v13 offset:528
ds_read_b128 a[88:91], v13 offset:768
ds_read_b128 a[92:95], v13 offset:784
""")
        X1 = 96
        X1P = 132
        for q in range(4):
            a.e(f"v_lshlrev_b32 v{X1+2*q}, 16, v{XR+q}\nv_and_b32 v{X1+1+2*q}, 0xffff0000, v{XR+q}")
        a.e("s_waitcnt lgkmcnt(6)")
        for r in range(8):
            a.e(f"v_add_f32 v{ACC+r}, v{ACC+r}, v{ACC+8+r}")
        for r in range(8):
            a.e(f"v_fmac_f32 v{X1+r}, v{GA+r}, v{ACC+r}")
        for q in range(4):
            a.e(f"v_cvt_pk_bf16_f32 v{X1P+q}, v{X1+2*q}, v{X1+1+2*q}")
        for q in range(4):
            a.e(f"v_lshlrev_b32 v{X1+2*q}, 16, v{X1P+q}\nv_and_b32 v{X1+1+2*q}, 0xffff0000, v{X1P+q}")
        a.e(f"v_add_f32 v16, v{X1}, v{X1+1}\nv_mul_f32 v17, v{X1}, v{X1}")
        for r in range(2, 8):
            a.e(f"v_add_f32 v16, v16, v{X1+r}")
        for r in range(1, 8):
            a.e(f"v_fmac_f32 v17, v{X1+r}, v{X1+r}")
        self.group_allsum([16, 17], [20, 21], stages=("32",))
        a.e(f"""
v_and_b32 v12, 31, v1
v_lshlrev_b32 v12, 5, v12
s_and_b32 s{sTMP+1}, s{sW}, 1
s_lshl_b32 s{sTMP+1}, s{sTMP+1}, 10
s_add_u32 s{sTMP+1}, s{sTMP+1}, {L_ST}
v_add_u32 v12, s{sTMP+1}, v12
s_lshr_b32 s{sTMP+5}, s{sW}, 1
s_lshl_b32 s{sTMP+5}, s{sTMP+5}, 3
v_add_u32 v13, s{sTMP+5}, v12
ds_write_b64 v13, v[16:17]
s_waitcnt lgkmcnt(0)
s_barrier
""")
        if self.dump:
            a.e(f"s_add_u32 s{sTMP+7}, s80, {X1DBG}")
            self.nocount(f"buffer_store_dwordx4 v[{X1P}:{X1P+3}], v151, {WS}, s{sTMP+7} offen")
        self.stamp(20)
        if "g12b" in EXP:
            self.gu_dma_hi([1, 2])
        L_j = a.label("Lp3j")
        a.e(f"s_cmp_ge_u32 s{sW}, 2\ns_cbranch_scc1 {L_j}")
        v0_, l0_ = a.vm_issued, a.lg_issued
        a.e(f"""
ds_read_b128 v[20:23], v12
ds_read_b128 v[24:27], v12 offset:16
v_mov_b32 v18, s{sTAG}
v_mov_b32 v19, s{sTAG}
v_and_b32 v13, 31, v1
v_lshlrev_b32 v13, 7, v13
s_lshl_b32 s{sTMP+5}, s88, 12
s_add_u32 s{sTMP+5}, s{sTMP+5}, {SGRAN}
s_and_b32 s{sTMP+6}, s{sJ}, 7
s_lshl_b32 s{sTMP+6}, s{sTMP+6}, 4
s_add_u32 s{sTMP+6}, s{sTMP+6}, s{sTMP+5}
v_lshrrev_b32 v2, 5, v1
v_lshl_add_u32 v2, v2, 6, v13
s_waitcnt lgkmcnt(0)
v_add_f32 v16, v20, v22
v_add_f32 v17, v21, v23
v_add_f32 v24, v24, v26
v_add_f32 v25, v25, v27
v_add_f32 v16, v16, v24
v_add_f32 v17, v17, v25
""")
        self.store_sel(f"s_mov_b32 exec_hi, 0\nbuffer_store_dwordx4 v[16:19], v13, {WS}, s{sTMP+6} offen\ns_mov_b64 exec, -1")
        L = a.label("SG")
        Lo = a.label("SGo")
        a.e(f"s_mov_b32 s{sTMP+11}, 0\n{L}:")
        self.nocount("\n".join(f"buffer_load_dwordx4 v[{20+4*q}:{23+4*q}], v2, {WS}, s{sTMP+5} offen offset:{16*q} sc1" for q in range(4)))
        a.e(f"""
s_add_u32 s{sTMP+11}, s{sTMP+11}, 1
s_cmp_gt_u32 s{sTMP+11}, 400000
s_cbranch_scc1 {Lo}
s_waitcnt vmcnt(0)
v_xor_b32 v36, s{sTAG}, v22
v_xor_b32 v37, s{sTAG}, v26
v_or_b32 v36, v36, v37
v_xor_b32 v37, s{sTAG}, v30
v_or_b32 v36, v36, v37
v_xor_b32 v37, s{sTAG}, v34
v_or_b32 v36, v36, v37
v_cmp_ne_u32 vcc, 0, v36
s_cbranch_vccnz {L}
{Lo}:
s_waitcnt vmcnt(0)
v_add_f32 v16, v20, v24
v_add_f32 v17, v21, v25
v_add_f32 v28, v28, v32
v_add_f32 v29, v29, v33
v_add_f32 v16, v16, v28
v_add_f32 v17, v17, v29
""")
        self.group_allsum([16, 17], [20, 21], stages=("32",))
        a.e(f"""
v_mul_f32 v16, {f2u(1/512):#x}, v16
v_mul_f32 v17, {f2u(1/512):#x}, v17
v_fma_f32 v17, -v16, v16, v17
v_max_f32 v17, 0, v17
v_add_f32 v17, {f2u(1e-5):#x}, v17
v_rsq_f32 v18, v17
v_mul_f32 v19, v16, v18
v_sub_f32 v19, 0, v19
ds_write_b64 v12, v[18:19] offset:2048
s_waitcnt lgkmcnt(0)
""")
        self.stamp(21)
        a.vm_issued, a.lg_issued = v0_, l0_
        a.e(f"{L_j}:")
        a.e(f"""
s_lshl_b32 s{sTMP+5}, s88, 15
s_and_b32 s{sTMP+6}, s{sJ}, 7
s_lshl_b32 s{sTMP+6}, s{sTMP+6}, 12
s_add_u32 s{sTMP+5}, s{sTMP+5}, s{sTMP+6}
s_lshr_b32 s{sTMP+6}, s{sW}, 1
s_lshl_b32 s{sTMP+6}, s{sTMP+6}, 10
s_add_u32 s{sTMP+5}, s{sTMP+5}, s{sTMP+6}
s_add_u32 s{sTMP+5}, s{sTMP+5}, {H2BUF}
s_lshl_b32 s{sTMP+6}, s{sP}, 5
s_lshl_b32 s{sTMP+7}, s{sW}, 2
s_add_u32 s{sTMP+6}, s{sTMP+6}, s{sTMP+7}
s_add_u32 s{sTMP+6}, s{sTMP+6}, {FL_H2}
v_mov_b32 v14, s{sTAG}
v_mov_b32 v15, 0
s_barrier
ds_read_b64 v[18:19], v12 offset:2048
s_waitcnt lgkmcnt(0)
""")
        for r in range(8):
            a.e(f"v_fma_f32 v{X1+r}, v{X1+r}, v18, v19")
        for q in range(4):
            a.e(f"v_cvt_pk_bf16_f32 v{32+q}, v{X1+2*q}, v{X1+1+2*q}")
        for q in range(4):
            a.e(f"v_lshlrev_b32 v{X1+2*q}, 16, v{32+q}\nv_and_b32 v{X1+1+2*q}, 0xffff0000, v{32+q}")
        for r in range(8):
            a.e(f"v_fma_f32 v{X1+r}, v{X1+r}, v{G2+r}, v{SBv+r}")
        for q in range(4):
            a.e(f"v_cvt_pk_bf16_f32 v{32+q}, v{X1+2*q}, v{X1+1+2*q}")
        self.store_sel(f"buffer_store_dwordx4 v[32:35], v11, {WS}, s{sTMP+5} offen\n" + self.flag_seq(f"s{sTMP+6}"))
        self.stamp(8)

    def d_dma_setup(self):
        a = self.a
        self.w64_lane(12)
        a.e(f"""
v_mov_b32 v152, v12
s_and_b32 s81, s{sJ}, 7
s_lshl_b32 s81, s81, 7
s_lshl_b32 s83, s{sW}, 13
s_add_u32 s81, s81, s83
s_lshl_b32 s82, s{sW}, 10
""")

    def d_dma(self, c):
        return [f"s_add_u32 m0, s82, {D_SLOT[c%4] + q*8192}\ns_add_u32 s83, s81, {(448*q + 64*c)*1024}\n"
                f"buffer_load_dwordx4 v152, s[{S_WD}:{S_WD+3}], s83 offen{NTD} lds" for q in range(4)]

    def phase4(self):
        a = self.a
        self.d_dma_setup()
        a.e(f"""
s_lshl_b32 s{sTMP}, s{sRB}, 9
s_lshr_b32 s{sTMP+1}, s{sW3}, 1
s_lshl_b32 s{sTMP+1}, s{sTMP+1}, 8
s_add_u32 s{sTMP}, s{sTMP}, s{sTMP+1}
s_and_b32 s{sTMP+1}, s{sW3}, 1
s_lshl_b32 s{sTMP+1}, s{sTMP+1}, 2
s_add_u32 s{sTMP}, s{sTMP}, s{sTMP+1}
s_add_u32 s{sTMP}, s{sTMP}, {FL_H2}
v_and_b32 v14, 7, v1
v_lshlrev_b32 v14, 5, v14
v_bfe_u32 v15, v1, 3, 2
v_lshl_add_u32 v14, v15, 3, v14
s_lshl_b32 s{sTMP+2}, s{sRB}, 2
s_add_u32 s{sTMP+2}, s{sTMP+2}, s{sW3}
s_lshl_b32 s{sTMP+2}, s{sTMP+2}, 15
s_add_u32 s{sTMP+2}, s{sTMP+2}, {H2BUF}
v_lshrrev_b32 v8, 5, v1
v_bfe_u32 v9, v1, 2, 2
v_lshl_add_u32 v9, v8, 3, v9
v_mul_u32_u24 v7, 224, v9
v_bfe_u32 v9, v1, 4, 1
v_mul_u32_u24 v9, {GU_UP}, v9
v_add_u32 v7, v7, v9
v_and_b32 v9, 1, v1
v_lshl_add_u32 v7, v9, 4, v7
v_bfe_u32 v9, v1, 1, 1
v_lshl_add_u32 v7, v9, 3, v7
v_add_u32 v4, {GU_SLOT[0]}, v7
v_add_u32 v5, {GU_SLOT[1]}, v7
v_add_u32 v6, {GU_SLOT[2]}, v7
s_barrier
""")
        ACC = [16 + 16 * T for T in range(7)]
        BF = [0, 28]
        NA = 8
        PD = 6
        slot = lambda i: ar(56 + 4 * (i % NA), 4)

        def body(kp):
            def aload(i):
                s_ = 2 * i + kp
                out = []
                if i % 2 == 0 and i > 0:
                    out.append(f"s_add_u32 s{sTMP+2}, s{sTMP+2}, 4096")
                out.append(f"buffer_load_dwordx4 {slot(i)}, v11, {WS}, s{sTMP+2} offen offset:{(s_%4)*1024} sc1")
                return out

            def R(i):
                s_ = 2 * i + kp
                c, sl = s_ // 4, s_ % 4
                return [f"ds_read_b64_tr_b16 {ar(BF[i%2]+4*T+2*ii,2)}, v{4 + c%4} offset:{(16*sl+4*ii)*224 + T*32}" for T in range(7) for ii in range(2)]

            def M(i):
                return [f"v_mfma_f32_32x32x16_bf16 {vr(ACC[T],16)}, {ar(BF[i%2]+4*T,4)}, {slot(i)}, {'0' if i == 0 else vr(ACC[T],16)}" for T in range(7)]
            toks = {}
            a.e("\n".join(R(0)))
            toks[0] = a.lg_tok()
            self.poll(14, f"s{sTMP}", 15)
            self.stamp(9)
            vt = {}
            for i in range(PD):
                a.e("\n".join(aload(i)))
                vt[i] = a.vm_tok()
            gtok = {}
            mine = lambda c: (c & 1) != kp
            pend = []
            if "g12c" in EXP:
                for g in self.gu_dma(1 if mine(1) else 2):
                    a.e(g)
            gtok[1 if mine(1) else 2] = a.vm_tok()
            if mine(3):
                pend += [(3, g) for g in self.gu_dma(3)]
            for i in range(16):
                c = i // 2
                a.wait_lg(toks[i])
                if i % 2 == 1 and c + 1 < 8:
                    if mine(c + 1):
                        assert (c + 1) in gtok and not any(p[0] == c + 1 for p in pend)
                        a.wait_vm(gtok[c + 1])
                    a.e("s_barrier")
                    if c + 4 < 8 and mine(c + 4):
                        pend += [(c + 4, g) for g in self.gu_dma(c + 4)]
                    if c == 6:
                        pend += [(100, g) for g in self.d_dma(0)]
                    if c == 4 and "nodt" not in EXP:
                        pend += [(101, f"s_mul_i32 s92, s{sT}, 57344\ns_lshl_b32 s93, s{sW}, 13\ns_add_u32 s92, s92, s93\n"
                                       f"buffer_load_dword v2, v10, s[{S_WD}:{S_WD+3}], s92 offen")]
                r = R(i + 1) if i < 15 else []
                a.wait_vm(vt[i])
                extra = []
                if i + PD < 16:
                    extra.append(("a", i + PD))
                for _ in range(3):
                    if pend:
                        extra.append(("d", pend.pop(0)))
                m = M(i)
                seq = interleave(m, r)
                pos = [k for k, x in enumerate(seq) if x.startswith("v_mfma")]
                ins_at = {pos[min(2 * n + 1, len(pos) - 1)]: e for n, e in enumerate(extra)}
                for k, x in enumerate(seq):
                    a.e(x)
                    if k in ins_at:
                        kind, val = ins_at[k]
                        if kind == "a":
                            a.e("\n".join(aload(val)))
                            vt[val] = a.vm_tok()
                        else:
                            a.e(val[1])
                            gtok[val[0]] = a.vm_tok()
                if r:
                    toks[i + 1] = a.lg_tok()
            assert not pend
            self.stamp(17)
            keep = [0, 1, 2, 3] if kp == 0 else [4, 5, 6]
            give = [4, 5, 6] if kp == 0 else [0, 1, 2, 3]
            wbase, wstr = (L_XB, 12288) if kp == 0 else (L_XA, 16384)
            rbase, rstr = (L_XA, 16384) if kp == 0 else (L_XB, 12288)
            a.e(f"""
s_mul_i32 s{sTMP+5}, s{sW3}, {wstr}
s_add_u32 s{sTMP+5}, s{sTMP+5}, {wbase}
v_add_u32 v12, s{sTMP+5}, v11
s_mul_i32 s{sTMP+5}, s{sW3}, {rstr}
s_add_u32 s{sTMP+5}, s{sTMP+5}, {rbase}
v_add_u32 v13, s{sTMP+5}, v11
s_barrier
""")
            for n, T in enumerate(give):
                for q in range(4):
                    a.e(f"ds_write_b128 v12, {vr(ACC[T]+4*q,4)} offset:{n*4096 + q*1024}")
            K0 = -2.0 * 0.7978845608028654 * LOG2E
            K1 = K0 * 0.044715
            a.e(f"s_mov_b32 s{sTMP+4}, {f2u(K1):#x}\nv_mov_b32 v6, {f2u(K0):#x}")
            a.e(f"""
s_lshl_b32 s{sTMP+5}, s{sRB}, 2
s_add_u32 s{sTMP+5}, s{sTMP+5}, s{sW3}
s_mul_i32 s{sTMP+5}, s{sTMP+5}, {112*1024}
s_mul_i32 s{sTMP+6}, s{sJ}, {7*1024}
s_add_u32 s{sTMP+5}, s{sTMP+5}, s{sTMP+6}
s_lshl_b32 s{sTMP+6}, s{sWH}, 12
s_add_u32 s{sTMP+5}, s{sTMP+5}, s{sTMP+6}
s_add_u32 s{sTMP+5}, s{sTMP+5}, {ACT}
s_lshl_b32 s{sTMP+6}, s{sP}, 5
s_lshl_b32 s{sTMP+7}, s{sW}, 2
s_add_u32 s{sTMP+6}, s{sTMP+6}, s{sTMP+7}
s_add_u32 s{sTMP+6}, s{sTMP+6}, {FL_ACT}
v_mov_b32 v14, s{sTAG}
v_mov_b32 v15, 0
s_waitcnt lgkmcnt(0)
s_barrier
""")
            land = give + ([give[0]] if len(keep) > len(give) else [])
            rt = {}
            for n, T in enumerate(keep[:len(give)]):
                for q in range(4):
                    a.e(f"ds_read_b128 {vr(ACC[land[n]]+4*q,4)}, v13 offset:{n*4096 + q*1024}")
                rt[n] = a.lg_tok()
            PKo = 128
            outs = []
            for n, T in enumerate(keep):
                g = ACC[T]
                if n >= len(give):
                    for q in range(4):
                        a.e(f"ds_read_b128 {vr(ACC[land[n]]+4*q,4)}, v13 offset:{n*4096 + q*1024}")
                    rt[n] = a.lg_tok()
                a.wait_lg(rt[n])
                p = ACC[land[n]]
                for r in range(16):
                    a.e(f"v_add_f32 v{g+r}, v{g+r}, v{p+r}")
                t = p
                for r in range(8):
                    a.e(f"v_mul_f32 v{t+r}, v{g+r}, v{g+r}")
                for r in range(8):
                    a.e(f"v_fma_f32 v{t+r}, v{t+r}, s{sTMP+4}, v6")
                for r in range(8):
                    a.e(f"v_mul_f32 v{t+r}, v{t+r}, v{g+r}")
                for r in range(8):
                    a.e(f"v_exp_f32 v{t+r}, v{t+r}")
                for r in range(8):
                    a.e(f"v_mul_f32 v{g+r}, v{g+r}, v{g+8+r}")
                for r in range(8):
                    a.e(f"v_add_f32 v{t+r}, 1.0, v{t+r}")
                for r in range(8):
                    a.e(f"v_rcp_f32 v{t+r}, v{t+r}")
                for r in range(8):
                    a.e(f"v_mul_f32 v{g+r}, v{g+r}, v{t+r}")
                for q in range(4):
                    a.e(f"v_cvt_pk_bf16_f32 v{g+8+q}, v{g+2*q}, v{g+2*q+1}")
                outs.append(g + 8)
            st = "\n".join(f"buffer_store_dwordx4 v[{o}:{o+3}], v11, {WS}, s{sTMP+5} offen offset:{1024*n}" for n, o in enumerate(outs))
            self.store_sel(st + "\n" + self.flag_seq(f"s{sTMP+6}"))

        L3 = a.label("Lgu3")
        Lj = a.label("Lguj")
        a.e(f"s_cmp_ge_u32 s{sW}, 4\ns_cbranch_scc1 {L3}")
        v0_, l0_ = a.vm_issued, a.lg_issued
        body(0)
        a.e(f"s_branch {Lj}\n{L3}:")
        a.vm_issued, a.lg_issued = v0_, l0_
        body(1)
        a.e(f"{Lj}:")
        self.stamp(10)

    def phase5(self):
        a = self.a
        a.e(f"""
s_add_u32 s{sTMP}, s89, {FL_ACT}
s_lshr_b32 s{sTMP+5}, s{sW}, 1
s_mul_i32 s{sTMP+2}, s88, {112*1024}
s_mul_i32 s{sTMP+1}, s{sTMP+5}, {28*1024}
s_add_u32 s{sTMP+2}, s{sTMP+2}, s{sTMP+1}
s_add_u32 s{sTMP+2}, s{sTMP+2}, {ACT}
s_lshl_b32 s{sTMP+1}, s{sTMP+5}, 13
v_add_u32 v154, s{sTMP+1}, v154
v_add_u32 v155, s{sTMP+1}, v155
""")
        for si in range(4):
            a.e(f"v_add_u32 v{140+2*si}, {D_SLOT[si]}, v154\nv_add_u32 v{141+2*si}, {D_SLOT[si]}, v155")
        ACC = 16
        BF = [48, 56]
        NA = 20
        PD = int(os.environ.get("DPD", "16"))
        DV = os.environ.get("DV", "c")
        AF = lambda s: ar(4 * (s % NA), 4)

        def R(s):
            c, sl = s // 4, s % 4
            return [f"ds_read_b64_tr_b16 {vr(BF[s%2]+4*t+2*i,2)}, v{140+2*(c%4)+t} offset:{(16*sl+4*i)*128}" for t in range(2) for i in range(2)]

        def M(s):
            return [f"v_mfma_f32_32x32x16_bf16 {vr(ACC+16*t,16)}, {vr(BF[s%2]+4*t,4)}, {AF(s)}, {'0' if s == 0 else vr(ACC+16*t,16)}" for t in range(2)]

        def aload(s):
            out = []
            if s % 4 == 0 and s > 0:
                out.append(f"s_add_u32 s{sTMP+2}, s{sTMP+2}, 4096")
            out.append(f"buffer_load_dwordx4 {AF(s)}, v11, {WS}, s{sTMP+2} offen offset:{(s%4)*1024} " + ("" if "dplain" in EXP else "sc1"))
            return out

        a.e("s_barrier")
        if DV == "c":
            for c_ in (1, 2, 3):
                a.e("\n".join(self.d_dma(c_)))
        a.e("\n".join(R(0)))
        toks = {0: a.lg_tok()}
        self.poll(153, f"s{sTMP}", 15)
        self.stamp(11)
        vt = {}
        dtok = {}
        pend = []
        if DV == "a":
            for s in range(PD):
                a.e("\n".join(aload(s)))
                vt[s] = a.vm_tok()
                if s in (3, 7, 11):
                    a.e("\n".join(self.d_dma(1 + s // 4)))
                    dtok[1 + s // 4] = a.vm_tok()
        elif DV == "c":
            for s in range(PD):
                a.e("\n".join(aload(s)))
                vt[s] = a.vm_tok()
            for c_ in (1, 2, 3):
                dtok[c_] = a.vm_tok() - PD
        else:
            for s in range(PD):
                a.e("\n".join(aload(s)))
                vt[s] = a.vm_tok()
                if s == 3:
                    a.e("\n".join(self.d_dma(1)))
                    dtok[1] = a.vm_tok()
            pend += [(2, g) for g in self.d_dma(2)] + [(3, g) for g in self.d_dma(3)]
        for s in range(28):
            c, sl = s // 4, s % 4
            a.wait_lg(toks[s])
            if sl == 3 and c + 1 < 7:
                if c + 1 >= 1:
                    a.wait_vm(dtok[c + 1])
                a.e("s_barrier")
                if "fined" in EXP:
                    self.stamp(13 + c)
                if c + 4 < 7:
                    pend += [(c + 4, g) for g in self.d_dma(c + 4)]
            r = R(s + 1) if s < 27 else []
            a.wait_vm(vt[s])
            a.e("\n".join(interleave(M(s), r)))
            if r:
                toks[s + 1] = a.lg_tok()
            if s + PD < 28:
                a.e("\n".join(aload(s + PD)))
                vt[s + PD] = a.vm_tok()
            for _ in range(2 if DV != "a" else 1):
                if pend:
                    cc, g = pend.pop(0)
                    a.e(g)
                    dtok[cc] = a.vm_tok()
        self.stamp(25)
        a.e("s_barrier")
        AO = 48
        self.reduce_scatter4(ACC, L_RED2, AO)
        X1P = 132
        for q in range(4):
            a.e(f"v_lshlrev_b32 v{64+2*q}, 16, v{X1P+q}\nv_and_b32 v{65+2*q}, 0xffff0000, v{X1P+q}")
        for r in range(8):
            a.e(f"v_accvgpr_read_b32 v{56+r}, a{88+r}")
        for r in range(8):
            a.e(f"v_fmac_f32 v{64+r}, v{56+r}, v{AO+r}")
        for q in range(4):
            a.e(f"v_cvt_pk_bf16_f32 v{32+q}, v{64+2*q}, v{65+2*q}")
        a.e(f"buffer_store_dwordx4 v[32:35], v151, s[{S_OUT}:{S_OUT+3}], s80 offen")
        self.stamp(12)

    def finish(self):
        a = self.a
        Lx = a.label("Lfin")
        a.e(f"s_cmp_lg_u32 s2, 0\ns_cbranch_scc1 {Lx}\ns_cmp_lg_u32 s{sW}, 7\ns_cbranch_scc1 {Lx}\ns_cmp_eq_u32 s101, 1\ns_cbranch_scc1 {Lx}")
        for q in range(4):
            a.e(f"v_lshlrev_b32 v12, 3, v1\nv_add_u32 v12, {4 + 512*q}, v12\ns_mov_b32 s{sTMP}, {XID}")
            self.poll(12, f"s{sTMP}", 13)
        a.e(f"v_mov_b32 v14, s{sTAG}\nv_mov_b32 v15, 0\ns_mov_b64 exec, 1")
        self.nocount(f"buffer_store_dword v14, v15, {WS}, 0 offen offset:{EPOCH} sc1")
        a.e(f"{Lx}:")
        a.e("L_END:\ns_endpgm\nL_CODE_END:")

    def build(self):
        ph = [self.phase0, self.phase1, self.phase2, self.phase3, self.phase4, self.phase5]
        for i, p in enumerate(ph):
            if i <= self.stop_after:
                p()
        self.finish()
        body = self.a.finalize()
        hdr = open("adaLN_cond__sliding_block__geglu_ffn__prompt.s.ref").read().split("; Override launch")[0]
        src = hdr + f"; @launch grid=(256,1,1) block=(512,1,1) lds={LDS_BYTES}\n" + HEADER.format(name=NAME) + body + \
            FOOTER.format(name=NAME, nvgpr=256, nsgpr=102, accum=160)
        return src


if __name__ == "__main__":
    import argparse
    ap = argparse.ArgumentParser()
    ap.add_argument("-o", default="k.s")
    ap.add_argument("--stamps", action="store_true")
    ap.add_argument("--dump", action="store_true")
    ap.add_argument("--stop", type=int, default=99)
    args = ap.parse_args()
    g = Gen(stop_after=args.stop, stamps=args.stamps, dump=args.dump)
    src = g.build()
    open(args.o, "w").write(src)
    print("wrote", args.o, len(src), "bytes; nops", g.a.nops)
```

```python
import sys, os, struct
sys.path.insert(0, "dev")
from asmlib import *

NAME = "adaLN_cond__sliding_block__geglu_ffn__prompt_kernel"
EXP = os.environ.get("EXP", "").split(",")

EPOCH = 0x0
XID = 0x1000
MODA = 0x2000
MODB = 0xA000
MODG = 0x12000
FL_KV = 0x20000
FL_O = 0x24000
FL_H2 = 0x26000
FL_H1 = 0x22000
FL_ACT = 0x28000
STAMP = 0x2800000
KVX = 0x100000
OBUF = 0x500000
H2BUF = 0x700000
SGRAN = 0x900000
ACT = 0xA00000
H1BUF = 0x1200000
DBG0 = 0x2000000
X1DBG = 0x2400000

S_X, S_WQKV, S_WO, S_WG, S_WU, S_WD, S_C, S_WM, S_OUT, S_WS = 8, 12, 16, 20, 24, 28, 32, 36, 40, 44
sX, sT, sRB, sJ, sW, sTAG, sXCC, sPURE, sP = 48, 49, 50, 51, 52, 53, 54, 55, 56
sW3, sWH, sIMIN = 57, 58, 59
sTMP = 60
S_SEL = 72
sMASK = 60

L_WQKV = 0
L_WO = 96 * 1024
L_K = 0
L_V = 24 * 1024
L_QX = 48 * 1024
L_SCR = 52 * 1024
L_RED = 0
L_TAB = 32 * 1024
L_ST = 33 * 1024
GU_SLOT = [57344, 98304, 127104, 0]
GU_UP = 14464
D_SLOT = [127104, 0, 32768, 65536]
L_RED2 = 0
L_GATE = 32760
L_XA = 0
L_XB = 65536
LDS_BYTES = 160 * 1024

PSLEEP = int(os.environ.get("PSLEEP", "2"))
MSLEEP = int(os.environ.get("MSLEEP", "6"))
NTG = " nt" if "ntg" in EXP else ""
NTD = " nt" if "ntd" in EXP else ""
LOG2E = 1.4426950408889634
QSCALE = 0.25 * LOG2E
NEG_BIG = 0xf149f2ca


def f2u(x):
    return struct.unpack("<I", struct.pack("<f", x))[0]


WS = f"s[{S_WS}:{S_WS+3}]"


class Gen:
    def __init__(self, stop_after=99, stamps=False, dump=False):
        self.a = Asm()
        self.stop_after = stop_after
        self.stamps = stamps
        self.dump = dump

    def nocount(self, text):
        a = self.a
        v, l = a.vm_issued, a.lg_issued
        a.e(text)
        a.vm_issued, a.lg_issued = v, l

    def stamp(self, idx):
        if not self.stamps:
            return
        a = self.a
        idx += 1
        v_, l_ = a.vm_issued, a.lg_issued
        a.e(f"s_memrealtime s[96:97]\ns_memtime s[94:95]\ns_waitcnt lgkmcnt(0)")
        a.e(f"v_mov_b32 v159, 0\ns_lshl_b32 s98, s2, 11\ns_lshl_b32 s99, s{sW}, 8\ns_add_u32 s98, s98, s99\ns_add_u32 s98, s98, {STAMP}")
        if idx == 2:
            a.e(f"v_mov_b32 v158, s100\nbuffer_store_dword v158, v159, {WS}, s98 offen")
        a.e(f"v_mov_b32 v158, s96\nbuffer_store_dword v158, v159, {WS}, s98 offen offset:{idx*4}")
        a.e(f"v_mov_b32 v158, s94\nbuffer_store_dword v158, v159, {WS}, s98 offen offset:{128+idx*4}")
        a.vm_issued, a.lg_issued = v_, l_

    def poll(self, vaddr, soff, vdst, cnt=sTMP + 11):
        a = self.a
        L = a.label("P")
        Lo = a.label("Po")
        a.e(f"s_mov_b32 s{cnt}, 0\n{L}:")
        self.nocount(f"buffer_load_dword v{vdst}, v{vaddr}, {WS}, {soff} offen sc1")
        a.e(f"""
s_add_u32 s{cnt}, s{cnt}, 1
s_cmp_gt_u32 s{cnt}, 400000
s_cbranch_scc1 {Lo}
s_waitcnt vmcnt(0)
v_cmp_ne_u32 vcc, s{sTAG}, v{vdst}
s_cbranch_vccz {Lo}
s_sleep {PSLEEP}
s_branch {L}
{Lo}:
s_waitcnt vmcnt(0)
""")

    def store_sel(self, text):
        a = self.a
        Ls = a.label("Ssl")
        Le = a.label("Sen")
        lines = [l for l in text.strip().split("\n") if l.strip()]
        a.e(f"s_cmp_eq_u32 s{sPURE}, 0\ns_cbranch_scc1 {Ls}")
        a.e("\n".join(lines))
        a.e(f"s_branch {Le}\n{Ls}:")
        self.nocount("\n".join((l + " sc1") if l.strip().startswith("buffer_store") else l for l in lines))
        a.e(f"{Le}:")

    def flag_seq(self, soff, vt=14):
        return f"s_waitcnt vmcnt(0)\ns_mov_b64 exec, 1\nbuffer_store_dword v{vt}, v{vt+1}, {WS}, {soff} offen\ns_mov_b64 exec, -1"

    def purity(self, vt=30):
        a = self.a
        a.e(f"""
v_and_b32 v{vt}, 31, v1
v_lshlrev_b32 v{vt}, 3, v{vt}
s_lshl_b32 s{sTMP+10}, s{sX}, 8
s_add_u32 s{sTMP+10}, s{sTMP+10}, {XID}
buffer_load_dwordx2 v[{vt+2}:{vt+3}], v{vt}, {WS}, s{sTMP+10} offen sc1
s_waitcnt vmcnt(0)
v_xor_b32 v{vt}, s{sTAG}, v{vt+3}
v_xor_b32 v{vt+1}, s{sXCC}, v{vt+2}
v_or_b32 v{vt}, v{vt}, v{vt+1}
v_cmp_ne_u32 vcc, 0, v{vt}
s_cmp_eq_u64 vcc, 0
s_cselect_b32 s{sPURE}, 1, 0
""")

    def touch(self, srd, soff_base, nlines_per_wg, widx, nw, vdst, vaddr):
        a = self.a
        if "notouch" in EXP:
            return
        n = nlines_per_wg // 64
        per = (n + nw - 1) // nw
        a.e(f"s_lshl_b32 s{sTMP+9}, s{widx}, 13\ns_add_u32 s{sTMP+9}, s{sTMP+9}, s{soff_base}")
        for i in range(per):
            a.e(f"buffer_load_dword v{vdst}, v{vaddr}, s[{srd}:{srd+3}], s{sTMP+9} offen")
            if i < per - 1:
                a.e(f"s_add_u32 s{sTMP+9}, s{sTMP+9}, {nw*8192}")

    def silu_bf16(self, src_pk, n_pk, dst, tmp):
        a = self.a
        n = 2 * n_pk
        for d in range(n_pk):
            a.e(f"v_lshlrev_b32 v{dst+2*d}, 16, v{src_pk+d}\nv_and_b32 v{dst+2*d+1}, 0xffff0000, v{src_pk+d}")
        for i in range(n):
            a.e(f"v_mul_f32 v{tmp+i}, {f2u(-LOG2E):#x}, v{dst+i}")
        for i in range(n):
            a.e(f"v_exp_f32 v{tmp+i}, v{tmp+i}")
        for i in range(n):
            a.e(f"v_add_f32 v{tmp+i}, 1.0, v{tmp+i}")
        for i in range(n):
            a.e(f"v_rcp_f32 v{tmp+i}, v{tmp+i}")
        for i in range(n):
            a.e(f"v_mul_f32 v{dst+i}, v{dst+i}, v{tmp+i}")
        for d in range(n_pk):
            a.e(f"v_cvt_pk_bf16_f32 v{tmp+d}, v{dst+2*d}, v{dst+2*d+1}")
        for d in range(n_pk):
            a.e(f"v_lshlrev_b32 v{dst+2*d}, 16, v{tmp+d}\nv_and_b32 v{dst+2*d+1}, 0xffff0000, v{tmp+d}")

    def wave_allsum(self, regs, tmp):
        a = self.a
        for r in (1, 2, 4, 8):
            for x in regs:
                a.e(f"v_add_f32_dpp v{x}, v{x}, v{x} row_ror:{r} row_mask:0xf bank_mask:0xf")
        self.group_allsum(regs, tmp)

    def group_allsum(self, regs, tmp, op="v_add_f32", stages=("16", "32")):
        a = self.a
        for sw in stages:
            for x, t in zip(regs, tmp):
                a.e(f"v_mov_b32 v{t}, v{x}")
            for x, t in zip(regs, tmp):
                a.e(f"v_permlane{sw}_swap_b32 v{x}, v{t}")
            for x, t in zip(regs, tmp):
                a.e(f"{op} v{x}, v{x}, v{t}")

    def granule(self, lo, hi, s_one, dst):
        self.a.e(f"""
v_cvt_pk_bf16_f32 v{dst}, v{lo}, v{hi}
v_lshlrev_b32 v{lo}, 16, v{dst}
v_and_b32 v{hi}, 0xffff0000, v{dst}
v_add_f32 v{lo}, s{s_one}, v{lo}
v_add_f32 v{hi}, s{s_one}, v{hi}
v_cvt_pk_bf16_f32 v{dst}, v{lo}, v{hi}
v_mov_b32 v{dst+1}, s{sTAG}
""")

    def reduce8_pairs(self, AC):
        self.a.e(f"""
v_permlane16_swap_b32 v{AC}, v{AC+2}
v_permlane16_swap_b32 v{AC+1}, v{AC+3}
v_permlane16_swap_b32 v{AC+4}, v{AC+6}
v_permlane16_swap_b32 v{AC+5}, v{AC+7}
v_add_f32 v{AC}, v{AC}, v{AC+2}
v_add_f32 v{AC+1}, v{AC+1}, v{AC+3}
v_add_f32 v{AC+4}, v{AC+4}, v{AC+6}
v_add_f32 v{AC+5}, v{AC+5}, v{AC+7}
v_permlane32_swap_b32 v{AC}, v{AC+4}
v_permlane32_swap_b32 v{AC+1}, v{AC+5}
v_add_f32 v{AC}, v{AC}, v{AC+4}
v_add_f32 v{AC+1}, v{AC+1}, v{AC+5}
""")

    def phase0(self):
        a = self.a
        a.e(f"""
s_cmp_ge_u32 s2, 256
s_cbranch_scc1 L_END
{"s_memrealtime s[100:101]" if self.stamps else ""}
s_load_dwordx2 s[{S_WS}:{S_WS+1}], s[0:1], 88
s_load_dwordx2 s[{S_WM}:{S_WM+1}], s[0:1], 64
s_load_dwordx2 s[{S_C}:{S_C+1}], s[0:1], 56
s_load_dwordx2 s[{S_X}:{S_X+1}], s[0:1], 0
s_load_dwordx2 s[{S_WQKV}:{S_WQKV+1}], s[0:1], 8
s_load_dwordx2 s[{S_WO}:{S_WO+1}], s[0:1], 16
s_load_dwordx2 s[{S_WG}:{S_WG+1}], s[0:1], 32
s_load_dwordx2 s[{S_WU}:{S_WU+1}], s[0:1], 40
s_load_dwordx2 s[{S_WD}:{S_WD+1}], s[0:1], 48
s_load_dwordx2 s[{S_OUT}:{S_OUT+1}], s[0:1], 72
s_getpc_b64 s[{sTMP}:{sTMP+1}]
L_PC:
s_and_b32 s{sX}, s2, 7
s_lshr_b32 s{sT}, s2, 3
s_lshl_b32 s{sTMP+2}, s{sT}, 11
v_lshlrev_b32 v2, 2, v0
v_add_u32 v2, s{sTMP+2}, v2
v_min_u32 v2, L_CODE_END-L_PC-4, v2
global_load_dword v4, v2, s[{sTMP}:{sTMP+1}]
s_getreg_b32 s{sXCC}, hwreg(HW_REG_XCC_ID)
s_and_b32 s{sXCC}, s{sXCC}, 15
s_lshr_b32 s{sTMP}, s{sT}, 4
s_lshl_b32 s{sRB}, s{sX}, 1
s_add_u32 s{sRB}, s{sRB}, s{sTMP}
s_and_b32 s{sJ}, s{sT}, 15
s_lshl_b32 s{sP}, s{sX}, 5
s_add_u32 s{sP}, s{sP}, s{sT}
v_and_b32 v1, 63, v0
v_lshrrev_b32 v2, 6, v0
v_lshrrev_b32 v3, 4, v1
v_readfirstlane_b32 s{sW}, v2
v_lshlrev_b32 v11, 4, v1
v_lshlrev_b32 v10, 7, v1
s_and_b32 s{sW3}, s{sW}, 3
s_lshr_b32 s{sWH}, s{sW}, 2
s_mov_b32 s{sPURE}, 0
""")
        sizes = {S_X: 2097152, S_WQKV: 1572864, S_WO: 524288, S_WG: 1835008, S_WU: 1835008, S_WD: 1835008, S_C: 1024,
                 S_WM: 3145728, S_OUT: 2097152, S_WS: 0x10000000}
        for s, sz in sizes.items():
            a.e(f"s_mov_b32 s{s+2}, {sz}\ns_mov_b32 s{s+3}, 0x20000")
        a.e("s_waitcnt lgkmcnt(0)")
        a.e(f"s_load_dword s{sTAG}, s[{S_WS}:{S_WS+1}], {EPOCH}")
        L_45 = a.label("Lw45")
        L_67 = a.label("Lw67")
        L_j = a.label("Lj0")
        tagfix = f"s_waitcnt lgkmcnt(0)\ns_mul_i32 s{sTAG}, s{sTAG}, 1664525\ns_add_u32 s{sTAG}, s{sTAG}, 1013904223"
        L_03 = a.label("Lw03")
        a.e(f"s_cmp_lt_u32 s{sW}, 4\ns_cbranch_scc1 {L_03}\ns_cmp_ge_u32 s{sW}, 6\ns_cbranch_scc1 {L_67}")
        v0_, l0_ = a.vm_issued, a.lg_issued
        self.gemv_mfma(a, L_45, L_j, tagfix, v0_, l0_)
        a.e(f"{L_67}:")
        a.e(f"""
v_lshrrev_b32 v12, 2, v1
v_mul_u32_u24 v12, 3072, v12
v_and_b32 v13, 3, v1
v_lshl_add_u32 v12, v13, 4, v12
{tagfix}
v_mov_b32 v14, s{sXCC}
v_mov_b32 v15, s{sTAG}
s_lshl_b32 s{sTMP}, s{sP}, 3
s_add_u32 s{sTMP}, s{sTMP}, {XID}
v_mov_b32 v13, 0
s_mov_b64 exec, 1
buffer_store_dwordx2 v[14:15], v13, {WS}, s{sTMP} offen sc1
s_mov_b64 exec, -1
s_and_b32 s{sTMP+4}, s{sW}, 1
s_mul_i32 s{sTMP}, s{sTMP+4}, {16*3072}
s_lshl_b32 s{sTMP+1}, s{sJ}, 6
s_add_u32 s{sTMP}, s{sTMP}, s{sTMP+1}
s_lshl_b32 s{sTMP+2}, s{sTMP+4}, 10
""")
        Lgt = a.label("Lgate")
        Lgo = a.label("Lgateo")
        a.e(f"""
s_cmp_ge_u32 s{sT}, {0 if "nogate" in EXP else (99 if "valugemv" in EXP else 20)}
s_cbranch_scc1 {Lgo}
v_and_b32 v13, 1, v1
v_lshlrev_b32 v13, 2, v13
s_mov_b32 s{sTMP+11}, 0
{Lgt}:
ds_read_b32 v14, v13 offset:{L_GATE}
s_add_u32 s{sTMP+11}, s{sTMP+11}, 1
s_cmp_gt_u32 s{sTMP+11}, 4000000
s_cbranch_scc1 {Lgo}
s_waitcnt lgkmcnt(0)
v_cmp_ne_u32 vcc, s{sTAG}, v14
s_cbranch_vccnz {Lgt}
{Lgo}:
s_waitcnt lgkmcnt(0)
""")
        if "qtouch" in EXP:
            a.e(f"s_mul_i32 s{sTMP+5}, s{sT}, 49152")
            self.touch(S_WQKV, sTMP + 5, 384, sTMP + 4, 2, 14, 10)
        if "dmadelay" in EXP:
            a.e(f"buffer_load_dword v14, v13, {WS}, s{sTMP} offen sc1\ns_waitcnt vmcnt(0)")
        Lq_ = a.label("Lqd")
        a.e(f"s_mov_b32 s{sTMP+5}, 0\n{Lq_}:")
        for seg in range(3):
            a.e(f"s_add_u32 m0, s{sTMP+2}, {L_WQKV + seg*32768}")
            a.e(f"s_add_u32 s{sTMP+3}, s{sTMP}, {seg*1024}")
            a.e(f"buffer_load_dwordx4 v12, s[{S_WQKV}:{S_WQKV+3}], s{sTMP+3} offen lds")
        a.e(f"s_add_u32 s{sTMP+2}, s{sTMP+2}, 2048\ns_add_u32 s{sTMP}, s{sTMP}, {32*3072}\ns_add_u32 s{sTMP+5}, s{sTMP+5}, 1\ns_cmp_lt_u32 s{sTMP+5}, 16\ns_cbranch_scc1 {Lq_}")
        a.e("s_waitcnt vmcnt(0)")
        self.stamp(0)
        a.e(f"s_branch {L_j}")
        a.vm_issued, a.lg_issued = v0_, l0_
        a.e(f"{L_03}:")
        XP, XF = 16, 32
        ST = [64, 65, 66, 67]
        STT = [68, 69, 70, 71]
        a.e(f"""
s_lshl_b32 s{sTMP}, s{sRB}, 17
s_lshl_b32 s{sTMP+1}, s{sJ}, 13
s_add_u32 s{sTMP}, s{sTMP}, s{sTMP+1}
s_lshl_b32 s{sTMP+1}, s{sW}, 11
s_add_u32 s{sTMP}, s{sTMP}, s{sTMP+1}
s_sub_u32 s{sTMP+1}, s{sTMP}, {256*1024}
s_cmp_lt_u32 s{sRB}, 2
s_cselect_b32 s{sTMP+1}, s{sTMP}, s{sTMP+1}
""")
        for i in range(4):
            a.e(f"buffer_load_dwordx4 {vr(XP+4*i,4)}, v11, s[{S_X}:{S_X+3}], s{sTMP + (i>>1)} offen offset:{(i&1)*1024}")
        if "noc3" not in EXP:
            Lc0, Lc1, Lce, Lc3 = a.label("Lc30"), a.label("Lc31"), a.label("Lc3e"), a.label("Lc33")
            a.e(f"""
v_lshrrev_b32 v5, 2, v1
v_and_b32 v6, 3, v1
s_cmp_eq_u32 s{sW}, 0
s_cbranch_scc1 {Lc0}
s_cmp_eq_u32 s{sW}, 1
s_cbranch_scc1 {Lc1}
s_cmp_lg_u32 s{sW}, 2
s_cbranch_scc1 {Lc3}
v_and_b32 v5, 15, v1
v_lshlrev_b32 v5, 10, v5
s_lshl_b32 s{sTMP+2}, s{sT}, 14
""")
            self.nocount(f"buffer_load_dword v6, v5, s[{S_WO}:{S_WO+3}], s{sTMP+2} offen offset:384")
            a.e(f"""
s_branch {Lce}
{Lc0}:
v_mul_u32_u24 v5, 6144, v5
v_and_b32 v6, 1, v6
v_lshl_add_u32 v5, v6, 10, v5
s_mul_i32 s{sTMP+2}, s{sT}, {16*6144}
""")
            self.nocount(f"buffer_load_dword v6, v5, s[{S_WM}:{S_WM+3}], s{sTMP+2} offen offset:384")
            a.e(f"""
s_branch {Lce}
{Lc1}:
v_mul_u32_u24 v5, 3072, v5
v_lshl_add_u32 v5, v6, 10, v5
s_mul_i32 s{sTMP+2}, s{sT}, {16*3072}
""")
            self.nocount(f"buffer_load_dword v6, v5, s[{S_WQKV}:{S_WQKV+3}], s{sTMP+2} offen offset:384")
            a.e(f"s_branch {Lce}\n{Lc3}:")
            if "valugemv" in EXP and "nomall" not in EXP:
                a.e(f"s_lshl_b32 s{sTMP+2}, s{sP}, 13\n"
                    f"s_cmp_lt_u32 s{sTMP+2}, {84*8192}\ns_cselect_b32 s{sTMP+3}, s{sTMP+2}, 0x7fff0000\n"
                    f"s_sub_u32 s{sTMP+4}, s{sTMP+2}, {84*8192}\ns_cmp_lt_u32 s{sTMP+4}, {84*8192}\ns_cselect_b32 s{sTMP+4}, s{sTMP+4}, 0x7fff0000\n"
                    f"s_sub_u32 s{sTMP+5}, s{sTMP+2}, {168*8192}\ns_min_u32 s{sTMP+5}, s{sTMP+5}, 0x7fff0000")
                self.nocount(f"buffer_load_dword v6, v10, s[{S_WG}:{S_WG+3}], s{sTMP+3} offen")
                self.nocount(f"buffer_load_dword v6, v10, s[{S_WU}:{S_WU+3}], s{sTMP+4} offen")
                self.nocount(f"buffer_load_dword v6, v10, s[{S_WO}:{S_WO+3}], s{sTMP+5} offen")
            a.e(f"{Lce}:")
        if "wmtouch" in EXP:
            a.e(f"""
v_mul_u32_u24 v5, 6144, v3
v_and_b32 v6, 15, v1
v_lshl_add_u32 v5, v6, 7, v5
s_lshl_b32 s{sTMP}, s{sT}, 2
s_add_u32 s{sTMP}, s{sTMP}, s{sW}
s_mul_i32 s{sTMP}, s{sTMP}, {4*6144}
buffer_load_dword v6, v5, s[{S_WM}:{S_WM+3}], s{sTMP} offen
s_waitcnt vmcnt(1)
""")
        else:
            a.e("s_waitcnt vmcnt(0)")
        a.e(tagfix)
        for i in range(4):
            for d in range(4):
                a.e(f"v_lshlrev_b32 v{XF+8*i+2*d}, 16, v{XP+4*i+d}\nv_and_b32 v{XF+1+8*i+2*d}, 0xffff0000, v{XP+4*i+d}")
        for i in range(4):
            b = XF + 8 * i
            a.e(f"v_add_f32 v{ST[i]}, v{b}, v{b+1}")
            for e in range(2, 8):
                a.e(f"v_add_f32 v{ST[i]}, v{ST[i]}, v{b+e}")
        self.wave_allsum(ST, STT)
        for i in range(4):
            a.e(f"v_mul_f32 v{ST[i]}, {f2u(-1/512):#x}, v{ST[i]}")
        for i in range(4):
            for e in range(8):
                a.e(f"v_add_f32 v{XF+8*i+e}, v{ST[i]}, v{XF+8*i+e}")
        for i in range(4):
            b = XF + 8 * i
            a.e(f"v_mul_f32 v{ST[i]}, v{b}, v{b}")
            for e in range(1, 8):
                a.e(f"v_fmac_f32 v{ST[i]}, v{b+e}, v{b+e}")
        self.wave_allsum(ST, STT)
        for i in range(4):
            a.e(f"v_mul_f32 v{ST[i]}, {f2u(1/512):#x}, v{ST[i]}")
        for i in range(4):
            a.e(f"v_add_f32 v{ST[i]}, {f2u(1e-5):#x}, v{ST[i]}")
        for i in range(4):
            a.e(f"v_rsq_f32 v{ST[i]}, v{ST[i]}")
        for i in range(4):
            for e in range(8):
                a.e(f"v_mul_f32 v{XF+8*i+e}, v{ST[i]}, v{XF+8*i+e}")
        for i in range(4):
            for d in range(4):
                a.e(f"v_cvt_pk_bf16_f32 v{XP+4*i+d}, v{XF+8*i+2*d}, v{XF+1+8*i+2*d}")
        for i in range(4):
            for d in range(4):
                a.e(f"v_lshlrev_b32 v{XF+8*i+2*d}, 16, v{XP+4*i+d}\nv_and_b32 v{XF+1+8*i+2*d}, 0xffff0000, v{XP+4*i+d}")
        a.e(f"""
v_lshrrev_b32 v12, 1, v1
v_lshlrev_b32 v12, 10, v12
v_and_b32 v6, 1, v1
v_lshl_add_u32 v12, v6, 9, v12
s_lshl_b32 s{sTMP+4}, s{sX}, 19
s_and_b32 s{sTMP+3}, s{sRB}, 1
s_lshl_b32 s{sTMP+3}, s{sTMP+3}, 17
s_add_u32 s{sTMP+4}, s{sTMP+4}, s{sTMP+3}
s_lshr_b32 s{sTMP+3}, s{sJ}, 2
s_lshl_b32 s{sTMP+3}, s{sTMP+3}, 15
s_add_u32 s{sTMP+4}, s{sTMP+4}, s{sTMP+3}
s_and_b32 s{sTMP+3}, s{sJ}, 3
s_lshl_b32 s{sTMP+3}, s{sTMP+3}, 7
s_add_u32 s{sTMP+4}, s{sTMP+4}, s{sTMP+3}
s_lshl_b32 s{sTMP+3}, s{sW}, 5
s_add_u32 s{sTMP+4}, s{sTMP+4}, s{sTMP+3}
s_add_u32 s{sTMP+4}, s{sTMP+4}, {H1BUF}
s_add_u32 s{sTMP+8}, s{sTMP+4}, {2*131072}
v_lshlrev_b32 v13, 5, v1
v_lshlrev_b32 v7, 6, v1
v_add_u32 v7, 60, v7
v_and_b32 v8, 31, v1
v_lshlrev_b32 v8, 3, v8
s_lshl_b32 s{sTMP}, s{sX}, 12
s_add_u32 s{sTMP+1}, s{sTMP}, {MODB}
s_add_u32 s{sTMP}, s{sTMP}, {MODA}
s_lshl_b32 s{sTMP+2}, s{sX}, 8
s_add_u32 s{sTMP+2}, s{sTMP+2}, {XID}
s_lshl_b32 s{sTMP+5}, s{sP}, 4
s_lshl_b32 s{sTMP+6}, s{sW}, 2
s_add_u32 s{sTMP+5}, s{sTMP+5}, s{sTMP+6}
s_add_u32 s{sTMP+5}, s{sTMP+5}, {FL_H1}
s_mov_b32 s{sTMP+11}, 0
""")
        self.stamp(0)
        L = a.label("G")
        L2 = a.label("G2")
        Lo = a.label("Go")
        G0 = 96
        a.e(f"{L}:")
        self.nocount(f"buffer_load_dword v{G0}, v7, {WS}, s{sTMP} offen sc1")
        a.e(f"""
s_add_u32 s{sTMP+11}, s{sTMP+11}, 1
s_cmp_gt_u32 s{sTMP+11}, 400000
s_cbranch_scc1 {L2}
s_waitcnt vmcnt(0)
v_cmp_ne_u32 vcc, s{sTAG}, v{G0}
s_cbranch_vccz {L2}
s_add_u32 s{sTMP+10}, s{sTMP+11}, 1
s_and_b32 s{sTMP+10}, s{sTMP+10}, 15
s_cmp_lt_u32 s{sTMP+10}, 2
s_cselect_b32 s{sTMP+10}, s{sTMP+1}, s{sTMP}
s_cselect_b32 s{sTMP+1}, s{sTMP}, s{sTMP+1}
s_mov_b32 s{sTMP}, s{sTMP+10}
s_sleep {MSLEEP}
s_branch {L}
{L2}:
""")
        self.nocount(f"""
buffer_load_dwordx4 v[{G0}:{G0+3}], v13, {WS}, s{sTMP} offen sc1
buffer_load_dwordx4 v[{G0+4}:{G0+7}], v13, {WS}, s{sTMP} offen offset:16 sc1
buffer_load_dwordx4 v[{G0+8}:{G0+11}], v13, {WS}, s{sTMP} offen offset:2048 sc1
buffer_load_dwordx4 v[{G0+12}:{G0+15}], v13, {WS}, s{sTMP} offen offset:2064 sc1
buffer_load_dwordx2 v[{G0+16}:{G0+17}], v8, {WS}, s{sTMP+2} offen sc1
""")
        a.e(f"""
s_cmp_gt_u32 s{sTMP+11}, 400000
s_cbranch_scc1 {Lo}
s_waitcnt vmcnt(0)
v_xor_b32 v116, s{sTAG}, v{G0+1}
""")
        for q in range(3, 16, 2):
            a.e(f"v_xor_b32 v117, s{sTAG}, v{G0+q}\nv_or_b32 v116, v116, v117")
        a.e(f"v_cmp_ne_u32 vcc, 0, v116\ns_cbranch_vccnz {L}\n{Lo}:\ns_waitcnt vmcnt(0)")
        a.e(f"""
v_xor_b32 v116, s{sTAG}, v{G0+17}
v_xor_b32 v117, s{sXCC}, v{G0+16}
v_or_b32 v116, v116, v117
v_cmp_ne_u32 vcc, 0, v116
s_cmp_eq_u64 vcc, 0
s_cselect_b32 s{sPURE}, 1, 0
""")
        SA, GG = 72, 80
        for q in range(4):
            a.e(f"v_lshlrev_b32 v{SA+2*q}, 16, v{G0+2*q}\nv_and_b32 v{SA+1+2*q}, 0xffff0000, v{G0+2*q}")
            a.e(f"v_lshlrev_b32 v{GG+2*q}, 16, v{G0+8+2*q}\nv_and_b32 v{GG+1+2*q}, 0xffff0000, v{G0+8+2*q}")
        for i in range(4):
            for d in range(4):
                b = XF + 8 * i + 2 * d
                a.e(f"v_pk_fma_f32 v[{b}:{b+1}], v[{b}:{b+1}], v[{GG+2*d}:{GG+1+2*d}], v[{SA+2*d}:{SA+1+2*d}]")
            for d in range(4):
                a.e(f"v_cvt_pk_bf16_f32 v{XP+4*i+d}, v{XF+8*i+2*d}, v{XF+1+8*i+2*d}")
        a.e(f"v_mov_b32 v14, s{sTAG}\nv_mov_b32 v15, 0")
        st = "\n".join(f"buffer_store_dwordx4 v[{XP+4*i}:{XP+3+4*i}], v12, {WS}, s{sTMP+8 if i < 2 else sTMP+4} offen offset:{16*(i&1)}" for i in range(4))
        self.store_sel(st + "\n" + self.flag_seq(f"s{sTMP+5}"))
        a.e(f"s_branch {L_j}")
        a.vm_issued, a.lg_issued = v0_, l0_
        self.gemv_mfma2(a, L_45, L_j, tagfix, v0_, l0_)
        a.e(f"{L_j}:")
        if "prio" in EXP:
            Lpr = a.label("Lprio")
            a.e(f"s_cmp_lt_u32 s{sW}, 4\ns_cbranch_scc1 {Lpr}\ns_setprio 1\n{Lpr}:")
        a.e("s_nop 4\ns_barrier")
        self.stamp(1)

    def gemv_valu(self, a, L_45, L_j, tagfix, v0_, l0_):
        a.e(f"{L_45}:")
        W0, SV = 94, 14
        a.e(f"""
v_lshrrev_b32 v6, 1, v1
v_lshlrev_b32 v8, 5, v6
v_mul_u32_u24 v7, {16*6144}, v6
v_and_b32 v6, 1, v1
v_lshl_add_u32 v7, v6, 4, v7
buffer_load_dwordx4 v[70:73], v8, s[{S_C}:{S_C+3}], 0 offen
buffer_load_dwordx4 v[74:77], v8, s[{S_C}:{S_C+3}], 0 offen offset:16
""")
        tok_c = a.vm_tok()
        a.e(f"s_lshl_b32 s{sTMP}, s{sT}, 6\ns_lshl_b32 s{sTMP+1}, s{sW3}, 5\ns_add_u32 s{sTMP}, s{sTMP}, s{sTMP+1}")
        tok_w = []
        for i in range(16):
            a.e(f"buffer_load_dwordx4 v[{W0+4*i}:{W0+3+4*i}], v7, s[{S_WM}:{S_WM+3}], s{sTMP} offen")
            tok_w.append(a.vm_tok())
            if i < 15:
                a.e(f"s_add_u32 s{sTMP}, s{sTMP}, 6144")
        a.e(f"""
v_and_b32 v5, 127, v0
v_mul_u32_u24 v12, 24576, v5
v_lshlrev_b32 v5, 3, v5
s_lshl_b32 s{sTMP}, s{sP}, 4
s_add_u32 s{sTMP}, s{sTMP}, 2048
buffer_load_dwordx2 v[78:79], v5, s[{S_C}:{S_C+3}], 0 offen
""")
        for i in range(4):
            a.e(f"buffer_load_dwordx4 v[{54+4*i}:{57+4*i}], v12, s[{S_WM}:{S_WM+3}], s{sTMP} offen")
            if i < 3:
                a.e(f"s_add_u32 s{sTMP}, s{sTMP}, 6144")
        tok_nu = a.vm_tok()
        a.e(tagfix)
        a.e(f"s_lshl_b32 s{sTMP+4}, s{sW3}, 2\nv_mov_b32 v13, s{sTMP+4}\nv_mov_b32 v5, s{sTAG}\nds_write_b32 v13, v5 offset:{L_GATE}")
        a.e(f"""
v_lshlrev_b32 v9, 5, v6
v_lshl_add_u32 v9, v3, 3, v9
s_cmp_ge_u32 s{sT}, 16
s_cselect_b32 s{sTMP+7}, 1.0, 0
s_lshl_b32 s{sTMP+5}, s{sX}, 12
s_lshl_b32 s{sTMP+6}, s{sT}, 7
s_add_u32 s{sTMP+5}, s{sTMP+5}, s{sTMP+6}
s_lshl_b32 s{sTMP+6}, s{sW3}, 6
s_add_u32 s{sTMP+5}, s{sTMP+5}, s{sTMP+6}
s_add_u32 s{sTMP+6}, s{sTMP+5}, {MODB}
s_add_u32 s{sTMP+5}, s{sTMP+5}, {MODA}
""")
        a.wait_vm(tok_c)
        self.silu_bf16(70, 8, SV, 30)
        AC = 30
        for i in range(16):
            a.wait_vm(tok_w[i])
            w = W0 + 4 * i
            t = 38 + 8 * (i % 2)
            for d in range(4):
                a.e(f"v_lshlrev_b32 v{t+2*d}, 16, v{w+d}\nv_and_b32 v{t+1+2*d}, 0xffff0000, v{w+d}")
            sp = SV + (i & ~1)
            sel = i & 1
            for d in range(4):
                if i == 0:
                    a.e(f"v_pk_mul_f32 v[{AC+2*d}:{AC+1+2*d}], v[{t+2*d}:{t+1+2*d}], v[{sp}:{sp+1}] op_sel_hi:[1,0]")
                else:
                    a.e(f"v_pk_fma_f32 v[{AC+2*d}:{AC+1+2*d}], v[{t+2*d}:{t+1+2*d}], v[{sp}:{sp+1}], v[{AC+2*d}:{AC+1+2*d}] op_sel:[0,{sel},0] op_sel_hi:[1,{sel},1]")
        for r in (2, 4, 8):
            for e in range(8):
                a.e(f"v_add_f32_dpp v{AC+e}, v{AC+e}, v{AC+e} row_ror:{r} row_mask:0xf bank_mask:0xf")
        self.reduce8_pairs(AC)
        self.granule(AC, AC + 1, sTMP + 7, AC + 2)
        a.e(f"s_mov_b32 exec_lo, 0x00030003\ns_mov_b32 exec_hi, 0x00030003")
        a.e(f"buffer_store_dwordx2 v[{AC+2}:{AC+3}], v9, {WS}, s{sTMP+5} offen")
        a.e(f"buffer_store_dwordx2 v[{AC+2}:{AC+3}], v9, {WS}, s{sTMP+6} offen sc1")
        a.e(f"s_mov_b64 exec, -1")
        self.stamp(0)
        a.wait_vm(tok_nu)
        self.silu_bf16(78, 2, 80, 96)
        for i in range(4):
            for d in range(4):
                w = 54 + 4 * i + d
                a.e(f"v_lshlrev_b32 v{96+2*d}, 16, v{w}\nv_and_b32 v{97+2*d}, 0xffff0000, v{w}")
            for e in range(8):
                a.e(f"v_mul_f32 v{72+e}, v80, v{96+e}" if i == 0 else f"v_fmac_f32 v{72+e}, v{80+i}, v{96+e}")
        for r in (1, 2, 4, 8):
            for e in range(8):
                a.e(f"v_add_f32_dpp v{72+e}, v{72+e}, v{72+e} row_ror:{r} row_mask:0xf bank_mask:0xf")
        self.reduce8_pairs(72)
        a.e("v_mov_b32 v132, v72\nv_mov_b32 v133, v73")
        a.e(f"s_branch {L_j}")
        a.vm_issued, a.lg_issued = v0_, l0_

    def gemv_mfma(self, a, L_45, L_j, tagfix, v0_, l0_):
        a.e(f"{L_45}:")
        a.e(f"s_cmp_ge_u32 s{sT}, 20\ns_cbranch_scc1 L_NOGEMV")
        L_SLAB = 96 * 1024
        self.w64_lane(12, stride=6144)
        a.e(f"""
s_lshl_b32 s{sTMP}, s{sT}, 7
s_lshl_b32 s{sTMP+1}, s{sX}, 9
s_add_u32 s{sTMP+1}, s{sTMP+1}, s{sTMP}
s_cmp_ge_u32 s{sT}, 16
s_cselect_b32 s{sTMP}, s{sTMP+1}, s{sTMP}
s_mul_i32 s{sTMP+1}, s{sW3}, {256*6144}
s_add_u32 s{sTMP}, s{sTMP}, s{sTMP+1}
s_lshl_b32 s{sTMP+2}, s{sW3}, 15
s_lshl_b32 s{sTMP+4}, s{sW3}, 9
v_lshlrev_b32 v8, 3, v1
buffer_load_dwordx2 v[70:71], v8, s[{S_C}:{S_C+3}], s{sTMP+4} offen
""")
        tok_c = a.vm_tok()
        Ls_ = a.label("Lsd")
        a.e(f"s_mov_b32 s{sTMP+5}, 0\ns_add_u32 s{sTMP+6}, s{sTMP+2}, {L_SLAB}\n{Ls_}:")
        for i in range(4):
            a.e(f"s_add_u32 m0, s{sTMP+6}, {i*1024}\ns_add_u32 s{sTMP+3}, s{sTMP}, {i*8*6144}")
            a.e(f"buffer_load_dwordx4 v12, s[{S_WM}:{S_WM+3}], s{sTMP+3} offen lds")
        a.e(f"s_add_u32 s{sTMP+6}, s{sTMP+6}, 4096\ns_add_u32 s{sTMP}, s{sTMP}, {32*6144}\ns_add_u32 s{sTMP+5}, s{sTMP+5}, 1\ns_cmp_lt_u32 s{sTMP+5}, 8\ns_cbranch_scc1 {Ls_}")
        a.e(tagfix)
        a.e(f"s_lshl_b32 s{sTMP+4}, s{sW3}, 2\nv_mov_b32 v13, s{sTMP+4}\nv_mov_b32 v14, s{sTAG}\nds_write_b32 v13, v14 offset:{L_GATE}")
        a.e("s_branch L_GEMV2")
        a.vm_issued, a.lg_issued = v0_, l0_

    def gemv_mfma2(self, a, L_45, L_j, tagfix, v0_, l0_):
        L_SLAB = 96 * 1024
        a.e("L_GEMV2:")
        a.e("s_waitcnt vmcnt(32)")
        self.silu_bf16(70, 2, 14, 30)
        SF = 94
        a.e(f"v_lshrrev_b32 v9, 5, v1\nv_lshlrev_b32 v9, 3, v9")
        for st in range(16):
            for d in range(4):
                a.e(f"ds_bpermute_b32 v{SF+4*st+d}, v9, v{30 + (d&1)} offset:{(4*st + (d>>1))*4}")
            if st % 3 == 2:
                a.e("s_waitcnt lgkmcnt(3)")
        self.tr64_bases(4)
        a.e(f"""
s_add_u32 s{sTMP+2}, s{sTMP+2}, {L_SLAB}
v_add_u32 v4, s{sTMP+2}, v4
v_add_u32 v5, s{sTMP+2}, v5
s_waitcnt lgkmcnt(0)
""")
        self.stamp(22)
        a.e("s_waitcnt vmcnt(0)")
        self.stamp(23)
        GA_ = 32
        GB = [64, 72, 80]
        toks = {}

        def GR(st):
            return [f"ds_read_b64_tr_b16 {vr(GB[st%3]+4*t+2*i,2)}, v{4+t} offset:{(16*st+4*i)*128}" for t in range(2) for i in range(2)]
        for st in range(2):
            a.e("\n".join(GR(st)))
            toks[st] = a.lg_tok()
        for st in range(16):
            a.wait_lg(toks[st])
            for t in range(2):
                a.e(f"v_mfma_f32_32x32x16_bf16 {vr(GA_+16*t,16)}, {vr(GB[st%3]+4*t,4)}, {vr(SF+4*st,4)}, {'0' if st == 0 else vr(GA_+16*t,16)}")
            if st + 2 < 16:
                a.e("\n".join(GR(st + 2)))
                toks[st + 2] = a.lg_tok()
        self.stamp(24)
        L5 = a.label("Lg5")
        a.e(f"v_add_u32 v12, {L_SLAB + 32768}, v11\nv_mov_b32 v13, {L_SLAB + 32768 + 8192}\nv_mov_b32 v14, s{sTAG}")
        a.e(f"s_cmp_eq_u32 s{sW}, 4\ns_cbranch_scc1 {L5}")
        self.nocount("\n".join(f"ds_write_b128 v12, {vr(GA_+4*q,4)} offset:{q*1024}" for q in range(8)))
        a.e("s_waitcnt lgkmcnt(0)")
        self.nocount("ds_write_b32 v13, v14")
        a.e(f"s_waitcnt lgkmcnt(0)\ns_branch L_NOGEMV\n{L5}:")
        Ls = a.label("Lgs")
        Lso = a.label("Lgso")
        a.e(f"""
s_mov_b32 s{sTMP+11}, 0
{Ls}:
""")
        self.nocount("ds_read_b32 v15, v13")
        a.e(f"""
s_add_u32 s{sTMP+11}, s{sTMP+11}, 1
s_cmp_gt_u32 s{sTMP+11}, 4000000
s_cbranch_scc1 {Lso}
s_waitcnt lgkmcnt(0)
v_cmp_ne_u32 vcc, s{sTAG}, v15
s_cbranch_vccnz {Ls}
{Lso}:
""")
        self.nocount("\n".join(f"ds_read_b128 {vr(64+4*q,4)}, v12 offset:{q*1024}" for q in range(8)))
        a.e(f"""
s_lshl_b32 s{sTMP+5}, s{sX}, 12
s_lshl_b32 s{sTMP+6}, s{sT}, 8
s_add_u32 s{sTMP+5}, s{sTMP+5}, s{sTMP+6}
s_add_u32 s{sTMP+8}, s{sTMP+5}, {MODB}
s_add_u32 s{sTMP+5}, s{sTMP+5}, {MODA}
s_lshl_b32 s{sTMP+9}, s{sX}, 10
s_add_u32 s{sTMP+9}, s{sTMP+9}, s{sTMP+6}
s_add_u32 s{sTMP+9}, s{sTMP+9}, {MODG - 4096}
s_lshr_b32 s{sTMP+6}, s{sT}, 3
s_cmp_eq_u32 s{sTMP+6}, 1
s_cselect_b32 s{sTMP+7}, 1.0, 0
s_lshr_b32 s{sTMP+6}, s{sX}, 1
s_cmp_eq_u32 s{sTMP+6}, 2
s_cselect_b32 s{sTMP+10}, 1.0, 0
s_cmp_ge_u32 s{sT}, 16
s_cselect_b32 s{sTMP+7}, s{sTMP+10}, s{sTMP+7}
s_cselect_b32 s{sTMP+5}, s{sTMP+9}, s{sTMP+5}
s_cselect_b32 s{sTMP+8}, s{sTMP+9}, s{sTMP+8}
v_lshrrev_b32 v9, 5, v1
v_lshlrev_b32 v9, 5, v9
s_waitcnt lgkmcnt(0)
""")
        for r in range(32):
            a.e(f"v_add_f32 v{GA_+r}, v{GA_+r}, v{64+r}")
        for q in range(16):
            a.e(f"v_cvt_pk_bf16_f32 v{64+2*q}, v{GA_+2*q}, v{GA_+2*q+1}")
        for q in range(16):
            a.e(f"v_lshlrev_b32 v{GA_+2*q}, 16, v{64+2*q}\nv_and_b32 v{GA_+2*q+1}, 0xffff0000, v{64+2*q}")
        for r in range(32):
            a.e(f"v_add_f32 v{GA_+r}, s{sTMP+7}, v{GA_+r}")
        for q in range(16):
            a.e(f"v_cvt_pk_bf16_f32 v{64+2*q}, v{GA_+2*q}, v{GA_+2*q+1}\nv_mov_b32 v{65+2*q}, s{sTAG}")
        a.e("s_mov_b32 exec_lo, 1\ns_mov_b32 exec_hi, 1")
        Lnu = a.label("Lnu")
        a.e(f"s_cmp_ge_u32 s{sT}, 16\ns_cbranch_scc1 {Lnu}")
        for u in range(8):
            self.nocount(f"buffer_store_dwordx4 {vr(64+4*u,4)}, v9, {WS}, s{sTMP+5} offen offset:{(u>>1)*64 + (u&1)*16}")
        a.e(f"{Lnu}:")
        for u in range(8):
            self.nocount(f"buffer_store_dwordx4 {vr(64+4*u,4)}, v9, {WS}, s{sTMP+8} offen offset:{(u>>1)*64 + (u&1)*16} sc1")
        a.e("s_mov_b64 exec, -1")
        self.stamp(0)
        a.e("L_NOGEMV:")
        a.e(tagfix.replace("s_mul_i32", "s_cmp_ge_u32 s%d, 20\ns_cbranch_scc0 %s\ns_mul_i32" % (sT, L_j)))
        if "nomall" not in EXP:
            a.e(f"""
s_mul_i32 s{sTMP}, s{sX}, 12
s_add_u32 s{sTMP}, s{sTMP}, s{sT}
s_sub_u32 s{sTMP}, s{sTMP}, 20
s_lshl_b32 s{sTMP}, s{sTMP}, 1
s_add_u32 s{sTMP}, s{sTMP}, s{sW3}
s_lshl_b32 s{sTMP}, s{sTMP}, 13
s_add_u32 s{sTMP+1}, s{sTMP}, {192*8192}
""")
            if "tlb" in EXP:
                jobs = []
                for i in range(2):
                    jobs.append((S_WS, H1BUF + i * 262144, 524288))
                jobs.append((S_WS, OBUF, 262144))
                jobs.append((S_WS, H2BUF, 262144))
                for i in range(4):
                    jobs.append((S_WS, ACT + i * 262144, 917504))
                for i in range(2):
                    jobs.append((S_WS, KVX + i * 262144, 524288))
                jobs.append((S_OUT, 0, 262144))
                jobs.append((S_WS, SGRAN, 0))
                for i in range(2):
                    jobs.append((S_WO, i * 262144, 0))
                for srd in (S_WG, S_WU, S_WD):
                    for i in range(7):
                        jobs.append((srd, i * 262144, 0))
                a.e(f"v_lshlrev_b32 v5, 12, v1\ns_sub_u32 s{sTMP+4}, s{sT}, 20\ns_lshl_b32 s{sTMP+4}, s{sTMP+4}, 1\ns_add_u32 s{sTMP+4}, s{sTMP+4}, s{sW3}")
                for k, (srd, off, xs) in enumerate(jobs):
                    Ln = a.label("Ltl")
                    a.e(f"s_cmp_lg_u32 s{sTMP+4}, {k % 24}\ns_cbranch_scc1 {Ln}\ns_mul_i32 s{sTMP+5}, s{sX}, {xs}\ns_add_u32 s{sTMP+5}, s{sTMP+5}, {off}")
                    self.nocount(f"buffer_load_dword v2, v5, s[{srd}:{srd+3}], s{sTMP+5} offen sc1")
                    a.e(f"{Ln}:")
            a.e(f"s_cmp_lt_u32 s{sTMP}, {84*8192}\ns_cselect_b32 s{sTMP+1}, s{sTMP}, 0x7fff0000\n"
                f"s_sub_u32 s{sTMP+2}, s{sTMP}, {84*8192}\ns_cmp_lt_u32 s{sTMP+2}, {84*8192}\ns_cselect_b32 s{sTMP+2}, s{sTMP+2}, 0x7fff0000\n"
                f"s_sub_u32 s{sTMP+3}, s{sTMP}, {128*8192}\ns_min_u32 s{sTMP+3}, s{sTMP+3}, 0x7fff0000")
            self.nocount(f"buffer_load_dword v2, v10, s[{S_WG}:{S_WG+3}], s{sTMP+1} offen")
            self.nocount(f"buffer_load_dword v2, v10, s[{S_WU}:{S_WU+3}], s{sTMP+2} offen")
            self.nocount(f"buffer_load_dword v2, v10, s[{S_WO}:{S_WO+3}], s{sTMP+3} offen")
            if "mallall" in EXP:
                a.e(f"s_add_u32 s{sTMP+1}, s{sTMP}, {84*8192}\ns_add_u32 s{sTMP+2}, s{sTMP}, {192*8192}")
                self.nocount(f"buffer_load_dword v2, v10, s[{S_WG}:{S_WG+3}], s{sTMP+1} offen")
                self.nocount(f"buffer_load_dword v2, v10, s[{S_WU}:{S_WU+3}], s{sTMP+1} offen")
                self.nocount(f"buffer_load_dword v2, v10, s[{S_WD}:{S_WD+3}], s{sTMP} offen")
                self.nocount(f"buffer_load_dword v2, v10, s[{S_WD}:{S_WD+3}], s{sTMP+2} offen")
            if "mallq" in EXP:
                self.nocount(f"buffer_load_dword v2, v10, s[{S_WQKV}:{S_WQKV+3}], s{sTMP} offen")
        a.e(f"s_branch {L_j}")
        a.vm_issued, a.lg_issued = v0_, l0_

    def phase1(self):
        a = self.a
        a.e(f"""
s_lshl_b32 s{sTMP}, s{sRB}, 8
s_lshl_b32 s{sTMP+1}, s{sW3}, 6
s_add_u32 s{sTMP}, s{sTMP}, s{sTMP+1}
s_add_u32 s{sTMP}, s{sTMP}, {FL_H1}
v_and_b32 v12, 15, v1
v_lshlrev_b32 v12, 2, v12
s_lshl_b32 s{sTMP+2}, s{sX}, 19
s_and_b32 s{sTMP+1}, s{sRB}, 1
s_lshl_b32 s{sTMP+1}, s{sTMP+1}, 17
s_add_u32 s{sTMP+2}, s{sTMP+2}, s{sTMP+1}
s_xor_b32 s{sTMP+1}, s{sWH}, 1
s_lshl_b32 s{sTMP+1}, s{sTMP+1}, 18
s_add_u32 s{sTMP+2}, s{sTMP+2}, s{sTMP+1}
s_lshl_b32 s{sTMP+1}, s{sW3}, 15
s_add_u32 s{sTMP+2}, s{sTMP+2}, s{sTMP+1}
s_add_u32 s{sTMP+2}, s{sTMP+2}, {H1BUF}
v_lshrrev_b32 v8, 5, v1
v_bfe_u32 v9, v1, 2, 2
v_lshl_add_u32 v9, v8, 3, v9
v_lshlrev_b32 v4, 6, v9
v_bfe_u32 v9, v1, 4, 1
v_lshl_add_u32 v4, v9, 5, v4
v_and_b32 v9, 1, v1
v_lshl_add_u32 v4, v9, 4, v4
v_bfe_u32 v9, v1, 1, 1
v_lshl_add_u32 v4, v9, 3, v4
v_add_u32 v4, {L_WQKV}, v4
v_add_u32 v5, 32768, v4
v_add_u32 v6, 65536, v4
v_and_b32 v14, 31, v1
v_lshlrev_b32 v14, 3, v14
s_lshl_b32 s{sTMP+3}, s{sX}, 8
s_add_u32 s{sTMP+3}, s{sTMP+3}, {XID}
""")
        L = a.label("P1")
        Lo = a.label("P1o")
        a.e(f"s_mov_b32 s{sTMP+11}, 0\n{L}:")
        self.nocount(f"buffer_load_dword v13, v12, {WS}, s{sTMP} offen sc1\nbuffer_load_dwordx2 v[16:17], v14, {WS}, s{sTMP+3} offen sc1")
        a.e(f"""
s_add_u32 s{sTMP+11}, s{sTMP+11}, 1
s_cmp_gt_u32 s{sTMP+11}, 400000
s_cbranch_scc1 {Lo}
s_waitcnt vmcnt(0)
v_cmp_ne_u32 vcc, s{sTAG}, v13
s_cbranch_vccz {Lo}
s_sleep {PSLEEP}
s_branch {L}
{Lo}:
s_waitcnt vmcnt(0)
v_xor_b32 v17, s{sTAG}, v17
v_xor_b32 v16, s{sXCC}, v16
v_or_b32 v16, v16, v17
v_cmp_ne_u32 vcc, 0, v16
s_cmp_eq_u64 vcc, 0
s_cselect_b32 s{sPURE}, 1, 0
""")
        self.stamp(2)
        ACC = [16, 32, 48]
        BFv = [64, 76, 88]
        NA = 12
        AF = lambda s: ar(4 * (s % NA), 4)
        NS = 32
        PD = 10

        def body(segs, wo=False):
            if wo:
                self.w64_lane(126)
                a.e(f"""
s_and_b32 s{sTMP+5}, s{sJ}, 7
s_lshl_b32 s{sTMP+5}, s{sTMP+5}, 7
s_lshl_b32 s{sTMP+6}, s{sW3}, 13
s_add_u32 s{sTMP+5}, s{sTMP+5}, s{sTMP+6}
s_lshl_b32 s{sTMP+6}, s{sW3}, 10
""")

            def R(s):
                return [f"ds_read_b64_tr_b16 {vr(BFv[s%3]+4*seg+2*i,2)}, v{4+seg} offset:{(16*s+4*i)*64}" for seg in segs for i in range(2)]

            def M(s):
                out = []
                for seg in segs:
                    c = "0" if s == 0 else vr(ACC[seg], 16)
                    b = vr(BFv[s % 3] + 4 * seg, 4)
                    if seg < 2:
                        out.append(f"v_mfma_f32_32x32x16_bf16 {vr(ACC[seg],16)}, {b}, {AF(s)}, {c}")
                    else:
                        out.append(f"v_mfma_f32_32x32x16_bf16 {vr(ACC[seg],16)}, {AF(s)}, {b}, {c}")
                return out

            def aload(s):
                out = []
                if s % 4 == 0 and s > 0:
                    out.append(f"s_add_u32 s{sTMP+2}, s{sTMP+2}, 4096")
                out.append(f"buffer_load_dwordx4 {AF(s)}, v11, {WS}, s{sTMP+2} offen offset:{(s%4)*1024} sc1")
                return out
            vt = {}
            for s in range(PD):
                a.e("\n".join(aload(s)))
                vt[s] = a.vm_tok()
            a.e("\n".join(R(0)))
            toks = {0: a.lg_tok()}
            a.e("\n".join(R(1)))
            toks[1] = a.lg_tok()
            for i in range(NS):
                r = R(i + 2) if i + 2 < NS else []
                a.wait_lg(toks[i])
                a.wait_vm(vt[i])
                a.e("\n".join(interleave(M(i), r)))
                if r:
                    toks[i + 2] = a.lg_tok()
                if i + PD < NS:
                    a.e("\n".join(aload(i + PD)))
                    vt[i + PD] = a.vm_tok()
                if i == int(os.environ.get("PRE", "4")) and "pre" in EXP:
                    self.pretouch()
                if wo and i < 16:
                    a.e(f"s_add_u32 m0, s{sTMP+6}, {L_WO + i*4096}\ns_add_u32 s{sTMP+7}, s{sTMP+5}, {i*32768}")
                    a.e(f"buffer_load_dwordx4 v126, s[{S_WO}:{S_WO+3}], s{sTMP+7} offen lds")
        L_h = a.label("Lp1h")
        L_j = a.label("Lp1j")
        a.e(f"s_cmp_ge_u32 s{sW}, 4\ns_cbranch_scc1 {L_h}")
        v0_, l0_ = a.vm_issued, a.lg_issued
        body([1, 2, 0])
        a.e(f"s_branch {L_j}\n{L_h}:")
        a.vm_issued, a.lg_issued = v0_, l0_
        body([1, 2], wo=True)
        a.e(f"{L_j}:")
        self.stamp(3)
        a.e("s_nop 15")

    def pretouch(self):
        a = self.a
        T = 84
        a.e(f"""
s_lshl_b32 s{T}, s{sRB}, 2
s_add_u32 s{T+1}, s{T}, s{sW3}
s_lshl_b32 s{T+2}, s{T+1}, 15
s_lshl_b32 s{T+3}, s{sJ}, 11
s_add_u32 s{T+2}, s{T+2}, s{T+3}
s_lshl_b32 s{T+3}, s{sWH}, 10
s_add_u32 s{T+2}, s{T+2}, s{T+3}
s_add_u32 s{T+2}, s{T+2}, {OBUF}
s_mul_i32 s{T+4}, s{T+1}, {112*1024}
s_mul_i32 s{T+3}, s{sJ}, {7*1024}
s_add_u32 s{T+4}, s{T+4}, s{T+3}
s_lshl_b32 s{T+3}, s{sWH}, 12
s_add_u32 s{T+4}, s{T+4}, s{T+3}
s_add_u32 s{T+4}, s{T+4}, {ACT}
s_lshr_b32 s{T+3}, s{sJ}, 3
s_lshl_b32 s{T+3}, s{T+3}, 1
s_add_u32 s{T}, s{T}, s{T+3}
s_and_b32 s{T+3}, s{sW}, 1
s_add_u32 s{T}, s{T}, s{T+3}
s_lshl_b32 s{T}, s{T}, 15
s_and_b32 s{T+3}, s{sJ}, 7
s_lshl_b32 s{T+5}, s{T+3}, 12
s_add_u32 s{T+5}, s{T+5}, s{T}
s_lshr_b32 s{T+6}, s{sW}, 1
s_lshl_b32 s{T+6}, s{T+6}, 10
s_add_u32 s{T+5}, s{T+5}, s{T+6}
s_add_u32 s{T+5}, s{T+5}, {H2BUF}
s_add_u32 s{T+6}, s{T+4}, 3072
s_cmp_lt_u32 s{sW}, 4
s_cselect_b32 s{T+6}, s{T+6}, 0x7fff0000
s_cmp_eq_u32 s{sPURE}, 0
s_cselect_b32 s{T+2}, 0x7fff0000, s{T+2}
s_cselect_b32 s{T+4}, 0x7fff0000, s{T+4}
s_cselect_b32 s{T+5}, 0x7fff0000, s{T+5}
s_cselect_b32 s{T+6}, 0x7fff0000, s{T+6}
buffer_store_dwordx4 v[8:11], v11, {WS}, s{T+2} offen
buffer_store_dwordx4 v[8:11], v11, {WS}, s{T+5} offen
buffer_store_dwordx4 v[8:11], v11, {WS}, s{T+4} offen
buffer_store_dwordx4 v[8:11], v11, {WS}, s{T+4} offen offset:1024
buffer_store_dwordx4 v[8:11], v11, {WS}, s{T+4} offen offset:2048
buffer_store_dwordx4 v[8:11], v11, {WS}, s{T+6} offen
""")
        if "nopre2" not in EXP:
            a.e(f"""
s_lshl_b32 s{T+2}, s{sP}, 14
s_lshl_b32 s{T+3}, s{sW3}, 12
s_add_u32 s{T+2}, s{T+2}, s{T+3}
s_add_u32 s{T+2}, s{T+2}, {KVX}
s_and_b32 s{T+3}, s{sRB}, 1
s_cmp_lg_u32 s{T+3}, s{sWH}
s_cselect_b32 s{T+2}, 0x7fff0000, s{T+2}
s_cmp_eq_u32 s{sPURE}, 0
s_cselect_b32 s{T+2}, 0x7fff0000, s{T+2}
s_lshl_b32 s{T+4}, s{sRB}, 17
s_lshr_b32 s{T+3}, s{sJ}, 3
s_lshl_b32 s{T+3}, s{T+3}, 16
s_add_u32 s{T+4}, s{T+4}, s{T+3}
s_lshl_b32 s{T+3}, s{sW}, 13
s_add_u32 s{T+4}, s{T+4}, s{T+3}
s_and_b32 s{T+3}, s{sJ}, 7
s_lshl_b32 s{T+3}, s{T+3}, 7
s_add_u32 s{T+4}, s{T+4}, s{T+3}
v_lshrrev_b32 v124, 3, v1
v_lshlrev_b32 v124, 10, v124
v_and_b32 v125, 7, v1
v_lshl_add_u32 v124, v125, 4, v124
buffer_store_dwordx4 v[8:11], v11, {WS}, s{T+2} offen
buffer_store_dwordx4 v[8:11], v11, {WS}, s{T+2} offen offset:1024
buffer_store_dwordx4 v[8:11], v11, {WS}, s{T+2} offen offset:2048
buffer_store_dwordx4 v[8:11], v11, {WS}, s{T+2} offen offset:3072
buffer_store_dwordx4 v[8:11], v124, s[{S_OUT}:{S_OUT+3}], s{T+4} offen
""")

    def phase2(self):
        a = self.a
        QF = 140
        for r in range(8):
            a.e(f"v_cvt_pk_bf16_f32 v{64+r}, v{32+2*r}, v{33+2*r}")
        for r in range(8):
            a.e(f"v_cvt_pk_bf16_f32 v{72+r}, v{48+2*r}, v{49+2*r}")
        a.e(f"""
v_and_b32 v8, 31, v1
v_lshrrev_b32 v9, 5, v1
v_bfe_u32 v5, v1, 2, 2
v_xor_b32 v9, v9, v5
v_lshlrev_b32 v7, 6, v8
v_lshl_add_u32 v12, v9, 4, v7
v_xor_b32 v9, 2, v9
v_lshl_add_u32 v13, v9, 4, v7
s_xor_b32 s{sTMP+3}, s{sWH}, 1
s_lshl_b32 s{sTMP+3}, s{sTMP+3}, 14
s_lshl_b32 s{sTMP+4}, s{sW3}, 11
s_add_u32 s{sTMP+3}, s{sTMP+3}, s{sTMP+4}
s_add_u32 s{sTMP+1}, s{sTMP+3}, {L_K}
s_add_u32 s{sTMP+2}, s{sTMP+3}, {L_V}
v_add_u32 v8, s{sTMP+1}, v12
v_add_u32 v9, s{sTMP+1}, v13
v_add_u32 v5, s{sTMP+2}, v12
v_add_u32 v7, s{sTMP+2}, v13
s_lshl_b32 s{sTMP+1}, s{sP}, 14
s_lshl_b32 s{sTMP+2}, s{sW3}, 12
s_add_u32 s{sTMP+1}, s{sTMP+1}, s{sTMP+2}
s_add_u32 s{sTMP+1}, s{sTMP+1}, {KVX}
s_lshl_b32 s{sTMP+5}, s{sP}, 4
s_lshl_b32 s{sTMP+2}, s{sW3}, 2
s_add_u32 s{sTMP+5}, s{sTMP+5}, s{sTMP+2}
s_add_u32 s{sTMP+5}, s{sTMP+5}, {FL_KV}
v_mov_b32 v14, s{sTAG}
v_mov_b32 v15, 0
s_and_b32 s{sTMP+6}, s{sRB}, 1
""")
        L_f = a.label("Lfetch")
        L_j = a.label("Lp2j")
        a.e(f"s_cmp_lg_u32 s{sTMP+6}, s{sWH}\ns_cbranch_scc1 {L_f}")
        v0_, l0_ = a.vm_issued, a.lg_issued
        st = f"""buffer_store_dwordx4 v[64:67], v12, {WS}, s{sTMP+1} offen
buffer_store_dwordx4 v[68:71], v13, {WS}, s{sTMP+1} offen
buffer_store_dwordx4 v[72:75], v12, {WS}, s{sTMP+1} offen offset:2048
buffer_store_dwordx4 v[76:79], v13, {WS}, s{sTMP+1} offen offset:2048
"""
        self.store_sel(st + self.flag_seq(f"s{sTMP+5}"))
        a.e(f"s_barrier\ns_branch {L_j}\n{L_f}:")
        a.vm_issued, a.lg_issued = v0_, l0_
        a.e(f"s_xor_b32 s{sTMP+5}, s{sTMP+5}, 256\ns_xor_b32 s{sTMP+1}, s{sTMP+1}, {16*16384}")
        self.poll(15, f"s{sTMP+5}", 80)
        a.e("s_barrier")
        for half in range(2):
            a.e(f"s_add_u32 m0, s{sTMP+4}, {L_K + 4*2048}")
            self.nocount(f"buffer_load_dwordx4 v11, {WS}, s{sTMP+1} offen offset:{half*1024} sc1 lds")
            a.e(f"s_add_u32 m0, s{sTMP+4}, {L_V + 4*2048 - 2048}")
            self.nocount(f"buffer_load_dwordx4 v11, {WS}, s{sTMP+1} offen offset:{2048 + half*1024} sc1 lds")
        a.e(f"{L_j}:")
        a.e(f"""
ds_write_b128 v8, v[64:67]
ds_write_b128 v9, v[68:71]
ds_write_b128 v5, v[72:75]
ds_write_b128 v7, v[76:79]
""")
        Lq = a.label("Lq0")
        a.e(f"s_cmp_ge_u32 s{sW}, 4\ns_cbranch_scc1 {Lq}")
        a.e(f"s_mov_b32 s{sTMP}, {f2u(QSCALE):#x}")
        for r in range(16):
            a.e(f"v_mul_f32 v{16+r}, s{sTMP}, v{16+r}")
        for r in range(4):
            a.e(f"v_cvt_pk_bf16_f32 v{QF+r}, v{16+2*r}, v{17+2*r}")
        for r in range(4):
            a.e(f"v_cvt_pk_bf16_f32 v{80+r}, v{24+2*r}, v{25+2*r}")
        a.e(f"""
s_lshl_b32 s{sTMP+4}, s{sW}, 10
s_add_u32 s{sTMP+4}, s{sTMP+4}, {L_QX}
v_add_u32 v5, s{sTMP+4}, v11
""")
        self.nocount("ds_write_b128 v5, v[80:83]")
        a.e(f"{Lq}:")
        if "valugemv" in EXP:
            a.e(f"""
s_lshl_b32 s{sTMP}, s{sW}, 5
s_add_u32 s{sTMP}, s{sTMP}, {L_SCR}
v_lshl_add_u32 v12, v3, 3, s{sTMP}
ds_write_b64 v12, v[132:133]
""")
        a.e("s_waitcnt vmcnt(0) lgkmcnt(0)\ns_barrier")
        self.stamp(5)
        Lq = a.label("Lq")
        Lw = a.label("Lwo")
        a.e(f"s_cmp_lt_u32 s{sW}, 4\ns_cbranch_scc1 {Lw}")
        a.e(f"s_lshl_b32 s{sTMP+4}, s{sW3}, 10\ns_add_u32 s{sTMP+4}, s{sTMP+4}, {L_QX}\nv_add_u32 v5, s{sTMP+4}, v11")
        self.nocount(f"ds_read_b128 v[{QF}:{QF+3}], v5")
        if "valugemv" in EXP:
            a.e(f"s_cmp_lg_u32 s{sW}, 4\ns_cbranch_scc1 {Lw}")
            a.e(f"v_and_b32 v13, 3, v1\nv_lshlrev_b32 v13, 3, v13\nv_add_u32 v14, {L_SCR}, v13")
            self.nocount("\n".join(f"ds_read_b64 v[{80+2*w}:{81+2*w}], v14 offset:{(4+w)*32}" for w in range(2)))
            a.e(f"""
s_lshr_b32 s{sTMP+5}, s{sP}, 6
s_cmp_eq_u32 s{sTMP+5}, 2
s_cselect_b32 s{sTMP+4}, 1.0, 0
s_lshl_b32 s{sTMP+5}, s{sP}, 5
s_add_u32 s{sTMP+5}, s{sTMP+5}, {MODG}
s_waitcnt lgkmcnt(0)
v_add_f32 v80, v80, v82
v_add_f32 v81, v81, v83
""")
            self.granule(80, 81, sTMP + 4, 82)
            a.e("s_mov_b64 exec, 0xf")
            self.nocount(f"buffer_store_dwordx2 v[82:83], v13, {WS}, s{sTMP+5} offen sc1")
            a.e("s_mov_b64 exec, -1")
        a.e(f"{Lw}:")
        a.e(f"{Lq}:\ns_waitcnt lgkmcnt(0)")
        self.gu_dma_setup()
        self.gu_dma_hi([0])
        if "nomall2" not in EXP:
            Lm = a.label("Lmall")
            a.e(f"""
s_lshr_b32 s{sTMP}, s{sW}, 1
s_cmp_lg_u32 s{sTMP}, 1
s_cbranch_scc1 {Lm}
s_lshl_b32 s{sTMP}, s{sP}, 1
s_and_b32 s{sTMP+1}, s{sW}, 1
s_add_u32 s{sTMP}, s{sTMP}, s{sTMP+1}
s_lshl_b32 s{sTMP}, s{sTMP}, 13
s_add_u32 s{sTMP+1}, s{sTMP}, {84*8192}
s_sub_u32 s{sTMP+2}, s{sTMP}, {140*8192}
s_cmp_lt_u32 s{sTMP+2}, {140*8192}
s_cselect_b32 s{sTMP+2}, s{sTMP+2}, 0x7fff0000
s_add_u32 s{sTMP+2}, s{sTMP+2}, {84*8192}
s_sub_u32 s{sTMP+3}, s{sTMP}, {280*8192}
s_min_u32 s{sTMP+3}, s{sTMP+3}, 0x7fff0000
""")
            self.nocount(f"buffer_load_dword v2, v10, s[{S_WG}:{S_WG+3}], s{sTMP+1} offen")
            self.nocount(f"buffer_load_dword v2, v10, s[{S_WU}:{S_WU+3}], s{sTMP+2} offen")
            self.nocount(f"buffer_load_dword v2, v10, s[{S_WD}:{S_WD+3}], s{sTMP+3} offen")
            a.e(f"{Lm}:")
        Lep = a.label("Lep")
        a.e(f"s_mov_b32 s101, 0\ns_cmp_lg_u32 s2, 0\ns_cbranch_scc1 {Lep}\ns_cmp_lg_u32 s{sW}, 7\ns_cbranch_scc1 {Lep}\nv_lshlrev_b32 v124, 3, v1\ns_mov_b32 s{sTMP}, {XID}")
        for q in range(4):
            self.nocount(f"buffer_load_dword v{125+q}, v124, {WS}, s{sTMP} offen offset:{4 + 512*q} sc1")
        a.e(f"{Lep}:")
        SB = [16, 32]
        CN, OA, PK, MK, MX = 48, 64, 80, 96, 104
        VF = [108, 116]
        KA = 0
        a.e(f"""
v_and_b32 v8, 31, v1
v_lshrrev_b32 v9, 5, v1
v_bfe_u32 v7, v1, 2, 2
s_lshl_b32 s{sTMP}, s{sWH}, 1
v_or_b32 v12, s{sTMP}, v9
v_xor_b32 v12, v12, v7
v_lshlrev_b32 v4, 6, v8
v_lshl_add_u32 v4, v12, 4, v4
s_lshl_b32 s{sTMP+1}, s{sW3}, 11
s_add_u32 s{sTMP+2}, s{sTMP+1}, {L_K}
v_add_u32 v4, s{sTMP+2}, v4
v_and_b32 v13, 15, v1
v_lshlrev_b32 v5, 6, v13
v_xor_b32 v12, v9, v7
v_lshl_add_u32 v5, v12, 4, v5
v_xor_b32 v12, 2, v12
v_lshlrev_b32 v6, 6, v13
v_lshl_add_u32 v6, v12, 4, v6
s_lshl_b32 s{sTMP+2}, s{sWH}, 10
s_add_u32 s{sTMP+2}, s{sTMP+2}, s{sTMP+1}
s_add_u32 s{sTMP+2}, s{sTMP+2}, {L_V}
v_add_u32 v5, s{sTMP+2}, v5
v_add_u32 v6, s{sTMP+2}, v6
s_lshl_b32 s{sTMP}, s{sRB}, 2
s_add_u32 s{sTMP}, s{sTMP}, s{sW3}
s_sub_u32 s{sIMIN}, 8, s{sTMP}
s_cmp_ge_u32 s{sTMP}, 8
s_cselect_b32 s{sIMIN}, 0, s{sIMIN}
s_mul_i32 s92, s{sT}, 35840
s_min_u32 s93, s{sW}, 4
s_lshl_b32 s93, s93, 13
s_add_u32 s92, s92, s93
s_add_u32 s92, s92, {192*3584}
""")
        order = [8, 0, 7, 6, 5, 4, 3, 2, 1]
        ktok = {}
        for i in order:
            a.e(f"ds_read_b128 {ar(KA+4*i,4)}, v4 offset:{i*2048}")
            ktok[i] = a.lg_tok()
        a.e(f"v_lshlrev_b32 v12, 2, v9\nv_sub_u32 v12, v8, v12")
        for r in range(16):
            kl = 8 * (r >> 2) + (r & 3)
            a.e(f"v_cmp_le_i32 s[{sMASK+2*r}:{sMASK+2*r+1}], {kl}, v12")
        a.e(f"v_mov_b32 v13, 0xffff\nv_mov_b32 v7, 0xffff0000")
        for j in range(8):
            a.e(f"v_cndmask_b32 v{MK+j}, 0, v13, s[{sMASK+4*j}:{sMASK+4*j+1}]")
            a.e(f"v_cndmask_b32 v12, 0, v7, s[{sMASK+4*j+2}:{sMASK+4*j+3}]")
            a.e(f"v_or_b32 v{MK+j}, v{MK+j}, v12")
        a.e(f"v_and_b32 v12, 27, v1\nv_cmp_eq_u32 vcc, 16, v12\nv_mov_b32 v13, 0x3f803f80")
        for r in range(16):
            a.e(f"v_cndmask_b32 v{VF[0]+r}, 0, v13, vcc")
        Q = vr(QF, 4)

        touches = [None, (S_WG, 0), None, (S_WU, 0)]

        def touch_one():
            if "atouch" not in EXP or not touches:
                return
            t_ = touches.pop(0)
            if t_ is None:
                return
            srd, off = t_
            Ln = a.label("Lnt")
            a.e(f"s_cmp_gt_u32 s{sW}, 4\ns_cbranch_scc1 {Ln}\ns_add_u32 s93, s92, {off}")
            self.nocount(f"buffer_load_dword v2, v10, s[{srd}:{srd+3}], s93 offen")
            a.e(f"{Ln}:")

        def smfma(buf, i, c):
            return f"v_mfma_f32_32x32x16_bf16 {vr(SB[buf],16)}, {ar(KA+4*i,4)}, {Q}, {c}"

        def fix_trail():
            Ln = a.label("Lnt")
            a.e(f"s_cmp_eq_u32 s{sIMIN}, 0\ns_cbranch_scc1 {Ln}")
            a.e("s_nop 12")
            for r in range(16):
                a.e(f"v_mov_b32 v{SB[1]+r}, {NEG_BIG:#x}")
            a.e(f"{Ln}:\ns_nop 12")

        def merge():
            for r in range(16):
                a.e(f"v_cndmask_b32 v{SB[0]+r}, v{SB[1]+r}, v{SB[0]+r}, s[{sMASK+2*r}:{sMASK+2*r+1}]")

        touch_one()
        a.wait_lg(ktok[0])
        a.e(smfma(0, 8, "0"))
        a.e(smfma(1, 0, "0"))
        fix_trail()
        merge()
        a.wait_lg(ktok[7])
        a.e(smfma(1, 7, "0"))
        a.e(f"v_max3_f32 v{MX}, v{SB[0]}, v{SB[0]+1}, v{SB[0]+2}")
        for r in range(3, 15, 2):
            a.e(f"v_max3_f32 v{MX}, v{MX}, v{SB[0]+r}, v{SB[0]+r+1}")
        a.e(f"v_max_f32 v{MX}, v{MX}, v{SB[0]+15}")
        Le1 = a.label("Lp1e")
        buf = 1
        for i in range(7, 0, -1):
            a.e(f"s_cmp_gt_u32 s{sIMIN}, {i}\ns_cbranch_scc1 {Le1}")
            if i > 1:
                a.wait_lg(ktok[i - 1])
                a.e(smfma(1 - buf, i - 1, "0"))
            for r in range(0, 16, 2):
                a.e(f"v_max3_f32 v{MX}, v{MX}, v{SB[buf]+r}, v{SB[buf]+r+1}")
            buf = 1 - buf
        a.e(f"{Le1}:\ns_waitcnt lgkmcnt(0)\ns_nop 12")
        self.group_allsum([MX], [MX + 1], op="v_max_f32", stages=("32",))
        for r in range(16):
            a.e(f"v_sub_f32 v{CN+r}, 0, v{MX}")
        C = vr(CN, 16)

        def vread(b, i):
            return [f"s_mov_b32 exec_lo, 0xffff", f"s_mov_b32 exec_hi, 0xffff",
                    f"ds_read_b128 {vr(VF[b],4)}, v5 offset:{i*2048}", f"ds_read_b128 {vr(VF[b]+4,4)}, v6 offset:{i*2048}",
                    "s_mov_b64 exec, -1"]

        def expack(buf, dst):
            for r in range(16):
                a.e(f"v_exp_f32 v{SB[buf]+r}, v{SB[buf]+r}")
            for j in range(8):
                a.e(f"v_cvt_pk_bf16_f32 v{dst+j}, v{SB[buf]+2*j}, v{SB[buf]+2*j+1}")

        def pv(vb, p, first=False):
            a.e(f"v_mfma_f32_32x32x16_bf16 {vr(OA,16)}, {vr(VF[vb],4)}, {vr(p,4)}, {'0' if first else vr(OA,16)}")
            a.e(f"v_mfma_f32_32x32x16_bf16 {vr(OA,16)}, {vr(VF[vb]+4,4)}, {vr(p+4,4)}, {vr(OA,16)}")

        touch_one()
        a.e("\n".join(vread(0, 8) + vread(1, 0)))
        tv = a.lg_tok()
        a.e(smfma(0, 8, C))
        a.e(smfma(1, 0, C))
        fix_trail()
        merge()
        a.e(smfma(1, 7, C))
        expack(0, PK)
        for j in range(8):
            a.e(f"v_and_b32 v{PK+8+j}, v{PK+j}, v{MK+j}")
        for j in range(8):
            a.e(f"v_xor_b32 v{PK+j}, v{PK+j}, v{PK+8+j}")
        a.wait_lg(tv)
        pv(0, PK + 8, first=True)
        Lnt = a.label("Lnpv")
        a.e(f"s_cmp_lg_u32 s{sIMIN}, 0\ns_cbranch_scc1 {Lnt}")
        pv(1, PK)
        a.e(f"{Lnt}:")
        Le2 = a.label("Lp2e")
        buf = 1
        vb = 0
        a.e("\n".join(vread(0, 7)))
        for i in range(7, 0, -1):
            a.e(f"s_cmp_gt_u32 s{sIMIN}, {i}\ns_cbranch_scc1 {Le2}")
            tv = a.lg_tok()
            if i > 1:
                a.e(smfma(1 - buf, i - 1, C))
                a.e("\n".join(vread(1 - vb, i - 1)))
            if i in (6, 4):
                touch_one()
            p = PK + 8 * (i & 1)
            expack(buf, p)
            a.wait_lg(tv)
            pv(vb, p)
            buf = 1 - buf
            vb = 1 - vb
        a.e(f"{Le2}:\ns_waitcnt lgkmcnt(0)\ns_nop 15")
        a.e(f"v_rcp_f32 v{MX}, v{OA+8}")
        for r in range(8):
            a.e(f"v_mul_f32 v{OA+r}, v{MX}, v{OA+r}")
        for j in range(4):
            a.e(f"v_cvt_pk_bf16_f32 v{PK+j}, v{OA+2*j}, v{OA+2*j+1}")
        a.e(f"""
s_lshl_b32 s{sTMP}, s{sRB}, 2
s_add_u32 s{sTMP}, s{sTMP}, s{sW3}
s_lshl_b32 s{sTMP}, s{sTMP}, 15
s_lshl_b32 s{sTMP+1}, s{sJ}, 11
s_add_u32 s{sTMP}, s{sTMP}, s{sTMP+1}
s_lshl_b32 s{sTMP+1}, s{sWH}, 10
s_add_u32 s{sTMP}, s{sTMP}, s{sTMP+1}
s_add_u32 s{sTMP}, s{sTMP}, {OBUF}
s_lshl_b32 s{sTMP+1}, s{sP}, 5
s_lshl_b32 s{sTMP+2}, s{sW}, 2
s_add_u32 s{sTMP+1}, s{sTMP+1}, s{sTMP+2}
s_add_u32 s{sTMP+1}, s{sTMP+1}, {FL_O}
v_mov_b32 v14, s{sTAG}
v_mov_b32 v15, 0
""")
        self.store_sel(f"buffer_store_dwordx4 v[{PK}:{PK+3}], v11, {WS}, s{sTMP} offen\n" + self.flag_seq(f"s{sTMP+1}"))
        Lep = a.label("Lep2")
        a.e(f"""
s_cmp_lg_u32 s2, 0
s_cbranch_scc1 {Lep}
s_cmp_lg_u32 s{sW}, 7
s_cbranch_scc1 {Lep}
v_xor_b32 v125, s{sTAG}, v125
v_xor_b32 v126, s{sTAG}, v126
v_xor_b32 v127, s{sTAG}, v127
v_xor_b32 v128, s{sTAG}, v128
v_or3_b32 v125, v125, v126, v127
v_or_b32 v125, v125, v128
v_cmp_ne_u32 vcc, 0, v125
s_cbranch_vccnz {Lep}
s_mov_b32 s101, 1
s_mov_b64 exec, 1
""")
        self.nocount(f"buffer_store_dword v14, v15, {WS}, 0 offen offset:{EPOCH} sc1")
        a.e(f"s_mov_b64 exec, -1\n{Lep}:")
        self.stamp(6)
        self.gu_dma_setup(lanes=False)
        a.e("s_barrier")

    def w64_lane(self, vd, stride=1024):
        self.a.e(f"""
v_lshrrev_b32 v{vd}, 3, v1
v_mul_u32_u24 v{vd}, {stride}, v{vd}
v_and_b32 v2, 7, v1
v_bfe_u32 v{vd+1}, v1, 4, 1
v_lshlrev_b32 v{vd+1}, 2, v{vd+1}
v_xor_b32 v2, v2, v{vd+1}
v_lshl_add_u32 v{vd}, v2, 4, v{vd}
""")

    def tr64_bases(self, vd):
        self.a.e(f"""
v_lshrrev_b32 v8, 5, v1
v_bfe_u32 v9, v1, 2, 2
v_lshl_add_u32 v8, v8, 3, v9
v_lshlrev_b32 v8, 7, v8
v_bfe_u32 v12, v1, 4, 1
v_lshl_add_u32 v8, v12, 5, v8
v_and_b32 v12, 1, v1
v_lshl_add_u32 v8, v12, 4, v8
v_bfe_u32 v12, v1, 1, 1
v_lshl_add_u32 v8, v12, 3, v8
v_lshrrev_b32 v9, 1, v9
v_lshl_add_u32 v{vd}, v9, 6, v8
v_xor_b32 v9, 1, v9
v_lshl_add_u32 v{vd+1}, v9, 6, v8
""")

    def gu_dma_setup(self, lanes=True):
        a = self.a
        a.e(f"""
s_cmp_ge_u32 s{sW3}, 2
s_cselect_b32 s{S_SEL}, s{S_WU}, s{S_WG}
s_cselect_b32 s{S_SEL+1}, s{S_WU+1}, s{S_WG+1}
s_cselect_b32 s76, {GU_UP}, 0
s_mov_b32 s{S_SEL+2}, 1835008
s_mov_b32 s{S_SEL+3}, 0x20000
s_mov_b32 s84, 4682
s_and_b32 s86, s{sW}, 1
s_mul_i32 s85, s86, {32*3584}
s_mul_i32 s87, s{sJ}, 224
s_add_u32 s85, s85, s87
s_mul_i32 s86, s86, 7168
s_add_u32 s76, s76, s86
""")
        for i in range(7 if lanes else 0):
            a.e(f"""
v_add_u32 v12, {64*i}, v1
v_mul_u32_u24 v13, s84, v12
v_lshrrev_b32 v13, 16, v13
v_mul_u32_u24 v{144+i}, 14, v13
v_sub_u32 v12, v12, v{144+i}
v_mul_u32_u24 v{144+i}, 3584, v13
v_lshl_add_u32 v{144+i}, v12, 4, v{144+i}
""")

    def gu_dma(self, chunk):
        out = []
        for i in range(7):
            out.append(f"s_add_u32 s86, s85, {chunk*64*3584}\ns_add_u32 m0, s76, {GU_SLOT[chunk%4] + i*1024}\n"
                       f"buffer_load_dwordx4 v{144+i}, s[{S_SEL}:{S_SEL+3}], s86 offen{NTG} lds")
        return out

    def gu_dma_hi(self, chunks):
        a = self.a
        Ln = a.label("Lgh")
        a.e(f"s_cmp_lt_u32 s{sW}, 4\ns_cbranch_scc1 {Ln}")
        for c in chunks:
            self.nocount("\n".join(self.gu_dma(c)))
        a.e(f"{Ln}:")

    def reduce_scatter4(self, ACC, base, dst):
        a = self.a
        a.e(f"""
s_and_b32 s{sTMP+1}, s{sW}, 1
s_lshl_b32 s{sTMP+1}, s{sTMP+1}, 15
s_lshr_b32 s{sTMP+5}, s{sW}, 1
s_lshl_b32 s{sTMP+6}, s{sTMP+5}, 11
s_add_u32 s{sTMP+6}, s{sTMP+6}, s{sTMP+1}
s_add_u32 s{sTMP+6}, s{sTMP+6}, {base}
v_add_u32 v12, s{sTMP+6}, v11
s_lshl_b32 s{sTMP+6}, s{sTMP+5}, 13
s_add_u32 s{sTMP+6}, s{sTMP+6}, s{sTMP+1}
s_add_u32 s{sTMP+6}, s{sTMP+6}, {base}
v_add_u32 v13, s{sTMP+6}, v11
""")
        for q in range(4):
            for hf in range(2):
                a.e(f"ds_write_b128 v12, {vr(ACC+8*q+4*hf,4)} offset:{q*8192 + hf*1024}")
        a.e("s_waitcnt lgkmcnt(0)\ns_barrier")
        for src in range(4):
            for hf in range(2):
                a.e(f"ds_read_b128 {vr(ACC+8*src+4*hf,4)}, v13 offset:{src*2048 + hf*1024}")
        a.e("s_waitcnt lgkmcnt(0)")
        for r in range(8):
            a.e(f"v_add_f32 v{ACC+r}, v{ACC+r}, v{ACC+8+r}\nv_add_f32 v{ACC+16+r}, v{ACC+16+r}, v{ACC+24+r}")
        for r in range(8):
            a.e(f"v_add_f32 v{dst+r}, v{ACC+r}, v{ACC+16+r}")

    def phase3(self):
        a = self.a
        a.e(f"""
s_lshr_b32 s{sTMP+3}, s{sJ}, 3
s_lshl_b32 s{sTMP+3}, s{sTMP+3}, 1
s_and_b32 s{sTMP+1}, s{sW}, 1
s_add_u32 s{sTMP+3}, s{sTMP+3}, s{sTMP+1}
s_lshr_b32 s{sTMP+5}, s{sW}, 1
s_and_b32 s{sTMP+7}, s{sTMP+5}, 1
s_lshl_b32 s{sTMP}, s{sRB}, 9
s_lshl_b32 s{sTMP+1}, s{sTMP+3}, 2
s_add_u32 s{sTMP}, s{sTMP}, s{sTMP+1}
s_lshl_b32 s{sTMP+1}, s{sTMP+5}, 7
s_add_u32 s89, s{sTMP}, s{sTMP+1}
s_lshl_b32 s{sTMP+1}, s{sTMP+7}, 8
s_add_u32 s{sTMP}, s{sTMP}, s{sTMP+1}
s_add_u32 s{sTMP}, s{sTMP}, {FL_O}
v_and_b32 v14, 3, v1
v_lshlrev_b32 v14, 5, v14
v_bfe_u32 v15, v1, 2, 1
v_lshl_add_u32 v153, v15, 4, v14
v_and_b32 v14, 7, v1
v_lshlrev_b32 v14, 5, v14
v_bfe_u32 v15, v1, 3, 1
v_lshl_add_u32 v14, v15, 4, v14
s_lshl_b32 s88, s{sRB}, 2
s_add_u32 s88, s88, s{sTMP+3}
s_lshl_b32 s{sTMP+2}, s88, 15
s_lshl_b32 s{sTMP+1}, s{sTMP+7}, 14
s_add_u32 s{sTMP+2}, s{sTMP+2}, s{sTMP+1}
s_add_u32 s{sTMP+2}, s{sTMP+2}, {OBUF}
""")
        self.tr64_bases(154)
        a.e(f"""
s_cmp_ge_u32 s{sW}, 4
s_cselect_b64 vcc, -1, 0
v_cndmask_b32 v4, v154, v155, vcc
s_lshl_b32 s{sTMP+1}, s{sTMP+7}, 15
s_add_u32 s{sTMP+1}, s{sTMP+1}, {L_WO}
v_add_u32 v4, s{sTMP+1}, v4
v_and_b32 v12, 31, v1
v_lshlrev_b32 v12, 10, v12
v_lshrrev_b32 v13, 5, v1
v_lshl_add_u32 v151, v13, 4, v12
s_lshl_b32 s80, s88, 15
s_and_b32 s{sTMP+6}, s{sJ}, 7
s_lshl_b32 s{sTMP+6}, s{sTMP+6}, 7
s_add_u32 s80, s80, s{sTMP+6}
s_lshl_b32 s{sTMP+1}, s{sTMP+5}, 5
s_add_u32 s80, s80, s{sTMP+1}
v_lshlrev_b32 v12, 11, v3
v_and_b32 v13, 15, v1
v_lshl_add_u32 v12, v13, 4, v12
s_lshl_b32 s{sTMP+6}, s{sTMP+6}, 1
s_add_u32 s{sTMP+6}, s{sTMP+6}, {MODG}
""")
        XR = 124
        a.e(f"buffer_load_dwordx4 v[{XR}:{XR+3}], v151, s[{S_X}:{S_X+3}], s80 offen")
        Lt = a.label("Ltab")
        L = a.label("T")
        Lo = a.label("To")
        a.e(f"s_cmp_lg_u32 s{sW}, 2\ns_cbranch_scc1 {Lt}\ns_mov_b32 s{sTMP+11}, 0\n{L}:")
        self.nocount(f"buffer_load_dwordx4 v[96:99], v12, {WS}, s{sTMP+6} offen sc1")
        a.e(f"""
s_add_u32 s{sTMP+11}, s{sTMP+11}, 1
s_cmp_gt_u32 s{sTMP+11}, 400000
s_cbranch_scc1 {Lo}
s_waitcnt vmcnt(0)
v_xor_b32 v100, s{sTAG}, v97
v_xor_b32 v101, s{sTAG}, v99
v_or_b32 v100, v100, v101
v_cmp_ne_u32 vcc, 0, v100
s_cbranch_vccnz {L}
{Lo}:
s_waitcnt vmcnt(0)
v_and_b32 v97, 0xffff0000, v96
v_lshlrev_b32 v96, 16, v96
v_and_b32 v99, 0xffff0000, v98
v_lshlrev_b32 v98, 16, v98
v_add_u32 v12, {L_TAB}, v11
""")
        self.nocount("ds_write_b128 v12, v[96:99]")
        a.e(f"{Lt}:")
        ACC = 16
        BF = [32, 36, 40]
        AF = lambda s: ar(4 * s, 4)

        def R(s):
            return [f"ds_read_b64_tr_b16 {vr(BF[s%3]+2*i,2)}, v4 offset:{(16*s+4*i)*128}" for i in range(2)]

        a.e("s_waitcnt lgkmcnt(0)")
        toks = {}
        for s in range(2):
            a.e("\n".join(R(s)))
            toks[s] = a.lg_tok()
        self.poll(14, f"s{sTMP}", 15)
        self.stamp(7)
        vt = {}
        for s in range(16):
            if s % 4 == 0 and s:
                a.e(f"s_add_u32 s{sTMP+2}, s{sTMP+2}, 4096")
            a.e(f"buffer_load_dwordx4 {AF(s)}, v11, {WS}, s{sTMP+2} offen offset:{(s%4)*1024}")
            vt[s] = a.vm_tok()
        for s in range(16):
            a.wait_lg(toks[s])
            a.wait_vm(vt[s])
            a.e(f"v_mfma_f32_32x32x16_bf16 {vr(ACC,16)}, {vr(BF[s%3],4)}, {AF(s)}, {'0' if s == 0 else vr(ACC,16)}")
            if s + 2 < 16:
                a.e("\n".join(R(s + 2)))
                toks[s + 2] = a.lg_tok()
        self.stamp(18)
        a.e(f"""
s_and_b32 s{sTMP+1}, s{sW}, 1
s_lshl_b32 s{sTMP+1}, s{sTMP+1}, 14
s_lshl_b32 s{sTMP+6}, s{sWH}, 13
s_add_u32 s{sTMP+1}, s{sTMP+1}, s{sTMP+6}
s_add_u32 s{sTMP+1}, s{sTMP+1}, {L_RED}
s_lshl_b32 s{sTMP+6}, s{sTMP+7}, 11
s_add_u32 s{sTMP+6}, s{sTMP+6}, s{sTMP+1}
v_add_u32 v12, s{sTMP+6}, v11
s_lshl_b32 s{sTMP+6}, s{sTMP+7}, 12
s_add_u32 s{sTMP+6}, s{sTMP+6}, s{sTMP+1}
v_add_u32 v13, s{sTMP+6}, v11
""")
        for q in range(2):
            for hf in range(2):
                a.e(f"ds_write_b128 v12, {vr(ACC+8*q+4*hf,4)} offset:{q*4096 + hf*1024}")
        a.e("s_waitcnt lgkmcnt(0)\ns_barrier")
        self.stamp(19)
        if "g12a" in EXP or not ("g12b" in EXP or "g12c" in EXP):
            self.gu_dma_hi([1, 2])
        for src in range(2):
            for hf in range(2):
                a.e(f"ds_read_b128 {vr(ACC+8*src+4*hf,4)}, v13 offset:{src*2048 + hf*1024}")
        GA, SBv, G2 = 56, 64, 72
        a.e(f"""
v_lshrrev_b32 v13, 5, v1
v_lshlrev_b32 v13, 5, v13
s_lshl_b32 s{sTMP+5}, s{sTMP+5}, 6
s_add_u32 s{sTMP+5}, s{sTMP+5}, {L_TAB}
v_add_u32 v13, s{sTMP+5}, v13
ds_read_b128 {vr(GA,4)}, v13
ds_read_b128 {vr(GA+4,4)}, v13 offset:16
ds_read_b128 {vr(SBv,4)}, v13 offset:256
ds_read_b128 {vr(SBv+4,4)}, v13 offset:272
ds_read_b128 {vr(G2,4)}, v13 offset:512
ds_read_b128 {vr(G2+4,4)}, v13 offset:528
ds_read_b128 a[88:91], v13 offset:768
ds_read_b128 a[92:95], v13 offset:784
""")
        X1 = 96
        X1P = 132
        for q in range(4):
            a.e(f"v_lshlrev_b32 v{X1+2*q}, 16, v{XR+q}\nv_and_b32 v{X1+1+2*q}, 0xffff0000, v{XR+q}")
        a.e("s_waitcnt lgkmcnt(6)")
        for r in range(8):
            a.e(f"v_add_f32 v{ACC+r}, v{ACC+r}, v{ACC+8+r}")
        for r in range(8):
            a.e(f"v_fmac_f32 v{X1+r}, v{GA+r}, v{ACC+r}")
        for q in range(4):
            a.e(f"v_cvt_pk_bf16_f32 v{X1P+q}, v{X1+2*q}, v{X1+1+2*q}")
        for q in range(4):
            a.e(f"v_lshlrev_b32 v{X1+2*q}, 16, v{X1P+q}\nv_and_b32 v{X1+1+2*q}, 0xffff0000, v{X1P+q}")
        a.e(f"v_add_f32 v16, v{X1}, v{X1+1}\nv_mul_f32 v17, v{X1}, v{X1}")
        for r in range(2, 8):
            a.e(f"v_add_f32 v16, v16, v{X1+r}")
        for r in range(1, 8):
            a.e(f"v_fmac_f32 v17, v{X1+r}, v{X1+r}")
        self.group_allsum([16, 17], [20, 21], stages=("32",))
        a.e(f"""
v_and_b32 v12, 31, v1
v_lshlrev_b32 v12, 5, v12
s_and_b32 s{sTMP+1}, s{sW}, 1
s_lshl_b32 s{sTMP+1}, s{sTMP+1}, 10
s_add_u32 s{sTMP+1}, s{sTMP+1}, {L_ST}
v_add_u32 v12, s{sTMP+1}, v12
s_lshr_b32 s{sTMP+5}, s{sW}, 1
s_lshl_b32 s{sTMP+5}, s{sTMP+5}, 3
v_add_u32 v13, s{sTMP+5}, v12
ds_write_b64 v13, v[16:17]
s_waitcnt lgkmcnt(0)
s_barrier
""")
        if self.dump:
            a.e(f"s_add_u32 s{sTMP+7}, s80, {X1DBG}")
            self.nocount(f"buffer_store_dwordx4 v[{X1P}:{X1P+3}], v151, {WS}, s{sTMP+7} offen")
        self.stamp(20)
        if "g12b" in EXP:
            self.gu_dma_hi([1, 2])
        L_j = a.label("Lp3j")
        a.e(f"s_cmp_ge_u32 s{sW}, 2\ns_cbranch_scc1 {L_j}")
        v0_, l0_ = a.vm_issued, a.lg_issued
        a.e(f"""
ds_read_b128 v[20:23], v12
ds_read_b128 v[24:27], v12 offset:16
v_mov_b32 v18, s{sTAG}
v_mov_b32 v19, s{sTAG}
v_and_b32 v13, 31, v1
v_lshlrev_b32 v13, 7, v13
s_lshl_b32 s{sTMP+5}, s88, 12
s_add_u32 s{sTMP+5}, s{sTMP+5}, {SGRAN}
s_and_b32 s{sTMP+6}, s{sJ}, 7
s_lshl_b32 s{sTMP+6}, s{sTMP+6}, 4
s_add_u32 s{sTMP+6}, s{sTMP+6}, s{sTMP+5}
v_lshrrev_b32 v2, 5, v1
v_lshl_add_u32 v2, v2, 6, v13
s_waitcnt lgkmcnt(0)
v_add_f32 v16, v20, v22
v_add_f32 v17, v21, v23
v_add_f32 v24, v24, v26
v_add_f32 v25, v25, v27
v_add_f32 v16, v16, v24
v_add_f32 v17, v17, v25
""")
        self.store_sel(f"s_mov_b32 exec_hi, 0\nbuffer_store_dwordx4 v[16:19], v13, {WS}, s{sTMP+6} offen\ns_mov_b64 exec, -1")
        L = a.label("SG")
        Lo = a.label("SGo")
        a.e(f"s_mov_b32 s{sTMP+11}, 0\n{L}:")
        self.nocount("\n".join(f"buffer_load_dwordx4 v[{20+4*q}:{23+4*q}], v2, {WS}, s{sTMP+5} offen offset:{16*q} sc1" for q in range(4)))
        a.e(f"""
s_add_u32 s{sTMP+11}, s{sTMP+11}, 1
s_cmp_gt_u32 s{sTMP+11}, 400000
s_cbranch_scc1 {Lo}
s_waitcnt vmcnt(0)
v_xor_b32 v36, s{sTAG}, v22
v_xor_b32 v37, s{sTAG}, v26
v_or_b32 v36, v36, v37
v_xor_b32 v37, s{sTAG}, v30
v_or_b32 v36, v36, v37
v_xor_b32 v37, s{sTAG}, v34
v_or_b32 v36, v36, v37
v_cmp_ne_u32 vcc, 0, v36
s_cbranch_vccnz {L}
{Lo}:
s_waitcnt vmcnt(0)
v_add_f32 v16, v20, v24
v_add_f32 v17, v21, v25
v_add_f32 v28, v28, v32
v_add_f32 v29, v29, v33
v_add_f32 v16, v16, v28
v_add_f32 v17, v17, v29
""")
        self.group_allsum([16, 17], [20, 21], stages=("32",))
        a.e(f"""
v_mul_f32 v16, {f2u(1/512):#x}, v16
v_mul_f32 v17, {f2u(1/512):#x}, v17
v_fma_f32 v17, -v16, v16, v17
v_max_f32 v17, 0, v17
v_add_f32 v17, {f2u(1e-5):#x}, v17
v_rsq_f32 v18, v17
v_mul_f32 v19, v16, v18
v_sub_f32 v19, 0, v19
ds_write_b64 v12, v[18:19] offset:2048
s_waitcnt lgkmcnt(0)
""")
        self.stamp(21)
        a.vm_issued, a.lg_issued = v0_, l0_
        a.e(f"{L_j}:")
        a.e(f"""
s_lshl_b32 s{sTMP+5}, s88, 15
s_and_b32 s{sTMP+6}, s{sJ}, 7
s_lshl_b32 s{sTMP+6}, s{sTMP+6}, 12
s_add_u32 s{sTMP+5}, s{sTMP+5}, s{sTMP+6}
s_lshr_b32 s{sTMP+6}, s{sW}, 1
s_lshl_b32 s{sTMP+6}, s{sTMP+6}, 10
s_add_u32 s{sTMP+5}, s{sTMP+5}, s{sTMP+6}
s_add_u32 s{sTMP+5}, s{sTMP+5}, {H2BUF}
s_lshl_b32 s{sTMP+6}, s{sP}, 5
s_lshl_b32 s{sTMP+7}, s{sW}, 2
s_add_u32 s{sTMP+6}, s{sTMP+6}, s{sTMP+7}
s_add_u32 s{sTMP+6}, s{sTMP+6}, {FL_H2}
v_mov_b32 v14, s{sTAG}
v_mov_b32 v15, 0
s_barrier
ds_read_b64 v[18:19], v12 offset:2048
s_waitcnt lgkmcnt(0)
""")
        for r in range(8):
            a.e(f"v_fma_f32 v{X1+r}, v{X1+r}, v18, v19")
        for q in range(4):
            a.e(f"v_cvt_pk_bf16_f32 v{32+q}, v{X1+2*q}, v{X1+1+2*q}")
        for q in range(4):
            a.e(f"v_lshlrev_b32 v{X1+2*q}, 16, v{32+q}\nv_and_b32 v{X1+1+2*q}, 0xffff0000, v{32+q}")
        for r in range(8):
            a.e(f"v_fma_f32 v{X1+r}, v{X1+r}, v{G2+r}, v{SBv+r}")
        for q in range(4):
            a.e(f"v_cvt_pk_bf16_f32 v{32+q}, v{X1+2*q}, v{X1+1+2*q}")
        self.store_sel(f"buffer_store_dwordx4 v[32:35], v11, {WS}, s{sTMP+5} offen\n" + self.flag_seq(f"s{sTMP+6}"))
        self.stamp(8)

    def d_dma_setup(self):
        a = self.a
        self.w64_lane(12)
        a.e(f"""
v_mov_b32 v152, v12
s_and_b32 s81, s{sJ}, 7
s_lshl_b32 s81, s81, 7
s_lshl_b32 s83, s{sW}, 13
s_add_u32 s81, s81, s83
s_lshl_b32 s82, s{sW}, 10
""")

    def d_dma(self, c):
        return [f"s_add_u32 m0, s82, {D_SLOT[c%4] + q*8192}\ns_add_u32 s83, s81, {(448*q + 64*c)*1024}\n"
                f"buffer_load_dwordx4 v152, s[{S_WD}:{S_WD+3}], s83 offen{NTD} lds" for q in range(4)]

    def phase4(self):
        a = self.a
        self.d_dma_setup()
        a.e(f"""
s_lshl_b32 s{sTMP}, s{sRB}, 9
s_lshr_b32 s{sTMP+1}, s{sW3}, 1
s_lshl_b32 s{sTMP+1}, s{sTMP+1}, 8
s_add_u32 s{sTMP}, s{sTMP}, s{sTMP+1}
s_and_b32 s{sTMP+1}, s{sW3}, 1
s_lshl_b32 s{sTMP+1}, s{sTMP+1}, 2
s_add_u32 s{sTMP}, s{sTMP}, s{sTMP+1}
s_add_u32 s{sTMP}, s{sTMP}, {FL_H2}
v_and_b32 v14, 7, v1
v_lshlrev_b32 v14, 5, v14
v_bfe_u32 v15, v1, 3, 2
v_lshl_add_u32 v14, v15, 3, v14
s_lshl_b32 s{sTMP+2}, s{sRB}, 2
s_add_u32 s{sTMP+2}, s{sTMP+2}, s{sW3}
s_lshl_b32 s{sTMP+2}, s{sTMP+2}, 15
s_add_u32 s{sTMP+2}, s{sTMP+2}, {H2BUF}
v_lshrrev_b32 v8, 5, v1
v_bfe_u32 v9, v1, 2, 2
v_lshl_add_u32 v9, v8, 3, v9
v_mul_u32_u24 v7, 224, v9
v_bfe_u32 v9, v1, 4, 1
v_mul_u32_u24 v9, {GU_UP}, v9
v_add_u32 v7, v7, v9
v_and_b32 v9, 1, v1
v_lshl_add_u32 v7, v9, 4, v7
v_bfe_u32 v9, v1, 1, 1
v_lshl_add_u32 v7, v9, 3, v7
v_add_u32 v4, {GU_SLOT[0]}, v7
v_add_u32 v5, {GU_SLOT[1]}, v7
v_add_u32 v6, {GU_SLOT[2]}, v7
s_barrier
""")
        ACC = [16 + 16 * T for T in range(7)]
        BF = [0, 28]
        NA = 8
        PD = 6
        slot = lambda i: ar(56 + 4 * (i % NA), 4)

        def body(kp):
            def aload(i):
                s_ = 2 * i + kp
                out = []
                if i % 2 == 0 and i > 0:
                    out.append(f"s_add_u32 s{sTMP+2}, s{sTMP+2}, 4096")
                out.append(f"buffer_load_dwordx4 {slot(i)}, v11, {WS}, s{sTMP+2} offen offset:{(s_%4)*1024} sc1")
                return out

            def R(i):
                s_ = 2 * i + kp
                c, sl = s_ // 4, s_ % 4
                return [f"ds_read_b64_tr_b16 {ar(BF[i%2]+4*T+2*ii,2)}, v{4 + c%4} offset:{(16*sl+4*ii)*224 + T*32}" for T in range(7) for ii in range(2)]

            def M(i):
                return [f"v_mfma_f32_32x32x16_bf16 {vr(ACC[T],16)}, {ar(BF[i%2]+4*T,4)}, {slot(i)}, {'0' if i == 0 else vr(ACC[T],16)}" for T in range(7)]
            toks = {}
            a.e("\n".join(R(0)))
            toks[0] = a.lg_tok()
            self.poll(14, f"s{sTMP}", 15)
            self.stamp(9)
            vt = {}
            for i in range(PD):
                a.e("\n".join(aload(i)))
                vt[i] = a.vm_tok()
            gtok = {}
            mine = lambda c: (c & 1) != kp
            pend = []
            if "g12c" in EXP:
                for g in self.gu_dma(1 if mine(1) else 2):
                    a.e(g)
            gtok[1 if mine(1) else 2] = a.vm_tok()
            if mine(3):
                pend += [(3, g) for g in self.gu_dma(3)]
            for i in range(16):
                c = i // 2
                a.wait_lg(toks[i])
                if i % 2 == 1 and c + 1 < 8:
                    if mine(c + 1):
                        assert (c + 1) in gtok and not any(p[0] == c + 1 for p in pend)
                        a.wait_vm(gtok[c + 1])
                    a.e("s_barrier")
                    if c + 4 < 8 and mine(c + 4):
                        pend += [(c + 4, g) for g in self.gu_dma(c + 4)]
                    if c == 6:
                        pend += [(100, g) for g in self.d_dma(0)]
                    if c == 4 and "nodt" not in EXP:
                        pend += [(101, f"s_mul_i32 s92, s{sT}, 57344\ns_lshl_b32 s93, s{sW}, 13\ns_add_u32 s92, s92, s93\n"
                                       f"buffer_load_dword v2, v10, s[{S_WD}:{S_WD+3}], s92 offen")]
                r = R(i + 1) if i < 15 else []
                a.wait_vm(vt[i])
                extra = []
                if i + PD < 16:
                    extra.append(("a", i + PD))
                for _ in range(3):
                    if pend:
                        extra.append(("d", pend.pop(0)))
                m = M(i)
                seq = interleave(m, r)
                pos = [k for k, x in enumerate(seq) if x.startswith("v_mfma")]
                ins_at = {pos[min(2 * n + 1, len(pos) - 1)]: e for n, e in enumerate(extra)}
                for k, x in enumerate(seq):
                    a.e(x)
                    if k in ins_at:
                        kind, val = ins_at[k]
                        if kind == "a":
                            a.e("\n".join(aload(val)))
                            vt[val] = a.vm_tok()
                        else:
                            a.e(val[1])
                            gtok[val[0]] = a.vm_tok()
                if r:
                    toks[i + 1] = a.lg_tok()
            assert not pend
            self.stamp(17)
            keep = [0, 1, 2, 3] if kp == 0 else [4, 5, 6]
            give = [4, 5, 6] if kp == 0 else [0, 1, 2, 3]
            wbase, wstr = (L_XB, 12288) if kp == 0 else (L_XA, 16384)
            rbase, rstr = (L_XA, 16384) if kp == 0 else (L_XB, 12288)
            a.e(f"""
s_mul_i32 s{sTMP+5}, s{sW3}, {wstr}
s_add_u32 s{sTMP+5}, s{sTMP+5}, {wbase}
v_add_u32 v12, s{sTMP+5}, v11
s_mul_i32 s{sTMP+5}, s{sW3}, {rstr}
s_add_u32 s{sTMP+5}, s{sTMP+5}, {rbase}
v_add_u32 v13, s{sTMP+5}, v11
s_barrier
""")
            for n, T in enumerate(give):
                for q in range(4):
                    a.e(f"ds_write_b128 v12, {vr(ACC[T]+4*q,4)} offset:{n*4096 + q*1024}")
            K0 = -2.0 * 0.7978845608028654 * LOG2E
            K1 = K0 * 0.044715
            a.e(f"v_mov_b32 v9, {f2u(K1):#x}\nv_mov_b32 v8, {f2u(K0):#x}")
            a.e(f"""
s_lshl_b32 s{sTMP+5}, s{sRB}, 2
s_add_u32 s{sTMP+5}, s{sTMP+5}, s{sW3}
s_mul_i32 s{sTMP+5}, s{sTMP+5}, {112*1024}
s_mul_i32 s{sTMP+6}, s{sJ}, {7*1024}
s_add_u32 s{sTMP+5}, s{sTMP+5}, s{sTMP+6}
s_lshl_b32 s{sTMP+6}, s{sWH}, 12
s_add_u32 s{sTMP+5}, s{sTMP+5}, s{sTMP+6}
s_add_u32 s{sTMP+5}, s{sTMP+5}, {ACT}
s_lshl_b32 s{sTMP+6}, s{sP}, 5
s_lshl_b32 s{sTMP+7}, s{sW}, 2
s_add_u32 s{sTMP+6}, s{sTMP+6}, s{sTMP+7}
s_add_u32 s{sTMP+6}, s{sTMP+6}, {FL_ACT}
v_mov_b32 v14, s{sTAG}
v_mov_b32 v15, 0
s_waitcnt lgkmcnt(0)
s_barrier
""")
            land = give + ([give[0]] if len(keep) > len(give) else [])
            rt = {}
            for n, T in enumerate(keep[:len(give)]):
                for q in range(4):
                    a.e(f"ds_read_b128 {vr(ACC[land[n]]+4*q,4)}, v13 offset:{n*4096 + q*1024}")
                rt[n] = a.lg_tok()
            PKo = 128
            outs = []
            for n, T in enumerate(keep):
                g = ACC[T]
                if n >= len(give):
                    for q in range(4):
                        a.e(f"ds_read_b128 {vr(ACC[land[n]]+4*q,4)}, v13 offset:{n*4096 + q*1024}")
                    rt[n] = a.lg_tok()
                a.wait_lg(rt[n])
                p = ACC[land[n]]
                for q in range(8):
                    a.e(f"v_pk_add_f32 v[{g+2*q}:{g+2*q+1}], v[{g+2*q}:{g+2*q+1}], v[{p+2*q}:{p+2*q+1}]")
                t = p
                P2 = lambda b, q: f"v[{b+2*q}:{b+2*q+1}]"
                for q in range(4):
                    a.e(f"v_pk_mul_f32 {P2(t,q)}, {P2(g,q)}, {P2(g,q)}")
                for q in range(4):
                    a.e(f"v_pk_fma_f32 {P2(t,q)}, {P2(t,q)}, v[8:9], v[8:9] op_sel:[0,1,0] op_sel_hi:[1,1,0]")
                for q in range(4):
                    a.e(f"v_pk_mul_f32 {P2(t,q)}, {P2(t,q)}, {P2(g,q)}")
                for r in range(8):
                    a.e(f"v_exp_f32 v{t+r}, v{t+r}")
                for q in range(4):
                    a.e(f"v_pk_mul_f32 {P2(g,q)}, {P2(g,q)}, {P2(g+8,q)}")
                for r in range(8):
                    a.e(f"v_add_f32 v{t+r}, 1.0, v{t+r}")
                for r in range(8):
                    a.e(f"v_rcp_f32 v{t+r}, v{t+r}")
                for q in range(4):
                    a.e(f"v_pk_mul_f32 {P2(g,q)}, {P2(g,q)}, {P2(t,q)}")
                for q in range(4):
                    a.e(f"v_cvt_pk_bf16_f32 v{g+8+q}, v{g+2*q}, v{g+2*q+1}")
                st = f"buffer_store_dwordx4 v[{g+8}:{g+11}], v11, {WS}, s{sTMP+5} offen offset:{1024*n}"
                if n == len(keep) - 1:
                    st += "\n" + self.flag_seq(f"s{sTMP+6}")
                self.store_sel(st)

        L3 = a.label("Lgu3")
        Lj = a.label("Lguj")
        a.e(f"s_cmp_ge_u32 s{sW}, 4\ns_cbranch_scc1 {L3}")
        v0_, l0_ = a.vm_issued, a.lg_issued
        body(0)
        a.e(f"s_branch {Lj}\n{L3}:")
        a.vm_issued, a.lg_issued = v0_, l0_
        body(1)
        a.e(f"{Lj}:")
        self.stamp(10)

    def phase5(self):
        a = self.a
        a.e(f"""
s_add_u32 s{sTMP}, s89, {FL_ACT}
s_lshr_b32 s{sTMP+5}, s{sW}, 1
s_mul_i32 s{sTMP+2}, s88, {112*1024}
s_mul_i32 s{sTMP+1}, s{sTMP+5}, {28*1024}
s_add_u32 s{sTMP+2}, s{sTMP+2}, s{sTMP+1}
s_add_u32 s{sTMP+2}, s{sTMP+2}, {ACT}
s_lshl_b32 s{sTMP+1}, s{sTMP+5}, 13
v_add_u32 v154, s{sTMP+1}, v154
v_add_u32 v155, s{sTMP+1}, v155
""")
        for si in range(4):
            a.e(f"v_add_u32 v{140+2*si}, {D_SLOT[si]}, v154\nv_add_u32 v{141+2*si}, {D_SLOT[si]}, v155")
        ACC = 16
        BF = [48, 56]
        NA = 20
        PD = int(os.environ.get("DPD", "16"))
        DV = os.environ.get("DV", "c")
        AF = lambda s: ar(4 * (s % NA), 4)

        def R(s):
            c, sl = s // 4, s % 4
            return [f"ds_read_b64_tr_b16 {vr(BF[s%2]+4*t+2*i,2)}, v{140+2*(c%4)+t} offset:{(16*sl+4*i)*128}" for t in range(2) for i in range(2)]

        def M(s):
            return [f"v_mfma_f32_32x32x16_bf16 {vr(ACC+16*t,16)}, {vr(BF[s%2]+4*t,4)}, {AF(s)}, {'0' if s == 0 else vr(ACC+16*t,16)}" for t in range(2)]

        def aload(s):
            out = []
            if s % 4 == 0 and s > 0:
                out.append(f"s_add_u32 s{sTMP+2}, s{sTMP+2}, 4096")
            out.append(f"buffer_load_dwordx4 {AF(s)}, v11, {WS}, s{sTMP+2} offen offset:{(s%4)*1024} " + ("" if "dplain" in EXP else "sc1"))
            return out

        a.e("s_barrier")
        if DV == "c":
            for c_ in (1, 2, 3):
                a.e("\n".join(self.d_dma(c_)))
        a.e("\n".join(R(0)))
        toks = {0: a.lg_tok()}
        self.poll(153, f"s{sTMP}", 15)
        self.stamp(11)
        vt = {}
        dtok = {}
        pend = []
        if DV == "a":
            for s in range(PD):
                a.e("\n".join(aload(s)))
                vt[s] = a.vm_tok()
                if s in (3, 7, 11):
                    a.e("\n".join(self.d_dma(1 + s // 4)))
                    dtok[1 + s // 4] = a.vm_tok()
        elif DV == "c":
            for s in range(PD):
                a.e("\n".join(aload(s)))
                vt[s] = a.vm_tok()
            for c_ in (1, 2, 3):
                dtok[c_] = a.vm_tok() - PD
        else:
            for s in range(PD):
                a.e("\n".join(aload(s)))
                vt[s] = a.vm_tok()
                if s == 3:
                    a.e("\n".join(self.d_dma(1)))
                    dtok[1] = a.vm_tok()
            pend += [(2, g) for g in self.d_dma(2)] + [(3, g) for g in self.d_dma(3)]
        for s in range(28):
            c, sl = s // 4, s % 4
            a.wait_lg(toks[s])
            if sl == 3 and c + 1 < 7:
                if c + 1 >= 1:
                    a.wait_vm(dtok[c + 1])
                a.e("s_barrier")
                if "fined" in EXP:
                    self.stamp(13 + c)
                if c + 4 < 7:
                    pend += [(c + 4, g) for g in self.d_dma(c + 4)]
            r = R(s + 1) if s < 27 else []
            a.wait_vm(vt[s])
            a.e("\n".join(interleave(M(s), r)))
            if r:
                toks[s + 1] = a.lg_tok()
            if s + PD < 28:
                a.e("\n".join(aload(s + PD)))
                vt[s + PD] = a.vm_tok()
            for _ in range(2 if DV != "a" else 1):
                if pend:
                    cc, g = pend.pop(0)
                    a.e(g)
                    dtok[cc] = a.vm_tok()
        self.stamp(25)
        a.e("s_barrier")
        AO = 48
        self.reduce_scatter4(ACC, L_RED2, AO)
        X1P = 132
        for q in range(4):
            a.e(f"v_lshlrev_b32 v{64+2*q}, 16, v{X1P+q}\nv_and_b32 v{65+2*q}, 0xffff0000, v{X1P+q}")
        for r in range(8):
            a.e(f"v_accvgpr_read_b32 v{56+r}, a{88+r}")
        for r in range(8):
            a.e(f"v_fmac_f32 v{64+r}, v{56+r}, v{AO+r}")
        for q in range(4):
            a.e(f"v_cvt_pk_bf16_f32 v{32+q}, v{64+2*q}, v{65+2*q}")
        a.e(f"buffer_store_dwordx4 v[32:35], v151, s[{S_OUT}:{S_OUT+3}], s80 offen")
        self.stamp(12)

    def finish(self):
        a = self.a
        Lx = a.label("Lfin")
        a.e(f"s_cmp_lg_u32 s2, 0\ns_cbranch_scc1 {Lx}\ns_cmp_lg_u32 s{sW}, 7\ns_cbranch_scc1 {Lx}\ns_cmp_eq_u32 s101, 1\ns_cbranch_scc1 {Lx}")
        for q in range(4):
            a.e(f"v_lshlrev_b32 v12, 3, v1\nv_add_u32 v12, {4 + 512*q}, v12\ns_mov_b32 s{sTMP}, {XID}")
            self.poll(12, f"s{sTMP}", 13)
        a.e(f"v_mov_b32 v14, s{sTAG}\nv_mov_b32 v15, 0\ns_mov_b64 exec, 1")
        self.nocount(f"buffer_store_dword v14, v15, {WS}, 0 offen offset:{EPOCH} sc1")
        a.e(f"{Lx}:")
        a.e("L_END:\ns_endpgm\nL_CODE_END:")

    def build(self):
        ph = [self.phase0, self.phase1, self.phase2, self.phase3, self.phase4, self.phase5]
        for i, p in enumerate(ph):
            if i <= self.stop_after:
                p()
        self.finish()
        body = self.a.finalize()
        hdr = open("adaLN_cond__sliding_block__geglu_ffn__prompt.s.ref").read().split("; Override launch")[0]
        src = hdr + f"; @launch grid=(256,1,1) block=(512,1,1) lds={LDS_BYTES}\n" + HEADER.format(name=NAME) + body + \
            FOOTER.format(name=NAME, nvgpr=256, nsgpr=102, accum=160)
        return src


if __name__ == "__main__":
    import argparse
    ap = argparse.ArgumentParser()
    ap.add_argument("-o", default="k.s")
    ap.add_argument("--stamps", action="store_true")
    ap.add_argument("--dump", action="store_true")
    ap.add_argument("--stop", type=int, default=99)
    args = ap.parse_args()
    g = Gen(stop_after=args.stop, stamps=args.stamps, dump=args.dump)
    src = g.build()
    open(args.o, "w").write(src)
    print("wrote", args.o, len(src), "bytes; nops", g.a.nops)
```

```python
import sys, os, struct
sys.path.insert(0, "dev")
from asmlib import *

NAME = "adaLN_cond__sliding_block__geglu_ffn__prompt_kernel"
EXP = os.environ.get("EXP", "").split(",")

EPOCH = 0x0
XID = 0x1000
MODA = 0x2000
MODB = 0xA000
MODG = 0x12000
FL_KV = 0x20000
FL_O = 0x24000
FL_H2 = 0x26000
FL_H1 = 0x22000
FL_ACT = 0x28000
STAMP = 0x2800000
KVX = 0x100000
OBUF = 0x500000
H2BUF = 0x700000
SGRAN = 0x900000
ACT = 0xA00000
H1BUF = 0x1200000
DBG0 = 0x2000000
X1DBG = 0x2400000

S_X, S_WQKV, S_WO, S_WG, S_WU, S_WD, S_C, S_WM, S_OUT, S_WS = 8, 12, 16, 20, 24, 28, 32, 36, 40, 44
sX, sT, sRB, sJ, sW, sTAG, sXCC, sPURE, sP = 48, 49, 50, 51, 52, 53, 54, 55, 56
sW3, sWH, sIMIN = 57, 58, 59
sTMP = 60
S_SEL = 72
sMASK = 60

L_WQKV = 0
L_WO = 96 * 1024
L_K = 0
L_V = 24 * 1024
L_QX = 48 * 1024
L_SCR = 52 * 1024
L_RED = 0
L_TAB = 32 * 1024
L_ST = 33 * 1024
GU_SLOT = [57344, 98304, 127104, 0]
GU_UP = 14464
D_SLOT = [127104, 0, 32768, 65536]
L_RED2 = 0
L_GATE = 32760
L_XA = 0
L_XB = 65536
LDS_BYTES = 160 * 1024

PSLEEP = int(os.environ.get("PSLEEP", "2"))
MSLEEP = int(os.environ.get("MSLEEP", "6"))
NTG = " nt" if "ntg" in EXP else ""
NTD = " nt" if "ntd" in EXP else ""
LOG2E = 1.4426950408889634
QSCALE = 0.25 * LOG2E
NEG_BIG = 0xf149f2ca


def f2u(x):
    return struct.unpack("<I", struct.pack("<f", x))[0]


WS = f"s[{S_WS}:{S_WS+3}]"


class Gen:
    def __init__(self, stop_after=99, stamps=False, dump=False):
        self.a = Asm()
        self.stop_after = stop_after
        self.stamps = stamps
        self.dump = dump

    def nocount(self, text):
        a = self.a
        v, l = a.vm_issued, a.lg_issued
        a.e(text)
        a.vm_issued, a.lg_issued = v, l

    def stamp(self, idx):
        if not self.stamps:
            return
        a = self.a
        idx += 1
        v_, l_ = a.vm_issued, a.lg_issued
        if "dbgstamp" in EXP:
            m = {2: 0, 3: 1, 4: 2, 6: 3, 7: 4, 8: 5, 9: 6, 10: 7, 18: 8, 11: 9, 12: 10, 13: 11}
            if idx in m:
                L = a.label("Lds")
                a.e(f"s_cmp_lg_u32 s2, {int(os.environ.get('DBGWG', '9'))}\ns_cbranch_scc1 {L}\ns_cmp_lg_u32 s{sW}, 0\ns_cbranch_scc1 {L}")
                a.e(f"s_memrealtime s[96:97]\ns_load_dwordx2 s[98:99], s[0:1], 80\ns_waitcnt lgkmcnt(0)\ns_sub_u32 s96, s96, s100")
                a.e(f"v_mov_b32 v158, s96\nv_mov_b32 v159, {m[idx]*4}\nglobal_store_dword v159, v158, s[98:99]\n{L}:")
            a.vm_issued, a.lg_issued = v_, l_
            return
        a.e(f"s_memrealtime s[96:97]\ns_memtime s[94:95]\ns_waitcnt lgkmcnt(0)")
        a.e(f"v_mov_b32 v159, 0\ns_lshl_b32 s98, s2, 11\ns_lshl_b32 s99, s{sW}, 8\ns_add_u32 s98, s98, s99\ns_add_u32 s98, s98, {STAMP}")
        if idx == 2:
            a.e(f"v_mov_b32 v158, s100\nbuffer_store_dword v158, v159, {WS}, s98 offen")
        a.e(f"v_mov_b32 v158, s96\nbuffer_store_dword v158, v159, {WS}, s98 offen offset:{idx*4}")
        a.e(f"v_mov_b32 v158, s94\nbuffer_store_dword v158, v159, {WS}, s98 offen offset:{128+idx*4}")
        a.vm_issued, a.lg_issued = v_, l_

    def poll(self, vaddr, soff, vdst, cnt=sTMP + 11):
        a = self.a
        L = a.label("P")
        Lo = a.label("Po")
        a.e(f"s_mov_b32 s{cnt}, 0\n{L}:")
        self.nocount(f"buffer_load_dword v{vdst}, v{vaddr}, {WS}, {soff} offen sc1")
        a.e(f"""
s_add_u32 s{cnt}, s{cnt}, 1
s_cmp_gt_u32 s{cnt}, 400000
s_cbranch_scc1 {Lo}
s_waitcnt vmcnt(0)
v_cmp_ne_u32 vcc, s{sTAG}, v{vdst}
s_cbranch_vccz {Lo}
s_sleep {PSLEEP}
s_branch {L}
{Lo}:
s_waitcnt vmcnt(0)
""")

    def store_sel(self, text):
        a = self.a
        Ls = a.label("Ssl")
        Le = a.label("Sen")
        lines = [l for l in text.strip().split("\n") if l.strip()]
        a.e(f"s_cmp_eq_u32 s{sPURE}, 0\ns_cbranch_scc1 {Ls}")
        a.e("\n".join(lines))
        a.e(f"s_branch {Le}\n{Ls}:")
        self.nocount("\n".join((l + " sc1") if l.strip().startswith("buffer_store") else l for l in lines))
        a.e(f"{Le}:")

    def flag_seq(self, soff, vt=14):
        return f"s_waitcnt vmcnt(0)\ns_mov_b64 exec, 1\nbuffer_store_dword v{vt}, v{vt+1}, {WS}, {soff} offen\ns_mov_b64 exec, -1"

    def purity(self, vt=30):
        a = self.a
        a.e(f"""
v_and_b32 v{vt}, 31, v1
v_lshlrev_b32 v{vt}, 3, v{vt}
s_lshl_b32 s{sTMP+10}, s{sX}, 8
s_add_u32 s{sTMP+10}, s{sTMP+10}, {XID}
buffer_load_dwordx2 v[{vt+2}:{vt+3}], v{vt}, {WS}, s{sTMP+10} offen sc1
s_waitcnt vmcnt(0)
v_xor_b32 v{vt}, s{sTAG}, v{vt+3}
v_xor_b32 v{vt+1}, s{sXCC}, v{vt+2}
v_or_b32 v{vt}, v{vt}, v{vt+1}
v_cmp_ne_u32 vcc, 0, v{vt}
s_cmp_eq_u64 vcc, 0
s_cselect_b32 s{sPURE}, 1, 0
""")

    def touch(self, srd, soff_base, nlines_per_wg, widx, nw, vdst, vaddr):
        a = self.a
        if "notouch" in EXP:
            return
        n = nlines_per_wg // 64
        per = (n + nw - 1) // nw
        a.e(f"s_lshl_b32 s{sTMP+9}, s{widx}, 13\ns_add_u32 s{sTMP+9}, s{sTMP+9}, s{soff_base}")
        for i in range(per):
            a.e(f"buffer_load_dword v{vdst}, v{vaddr}, s[{srd}:{srd+3}], s{sTMP+9} offen")
            if i < per - 1:
                a.e(f"s_add_u32 s{sTMP+9}, s{sTMP+9}, {nw*8192}")

    def silu_bf16(self, src_pk, n_pk, dst, tmp):
        a = self.a
        n = 2 * n_pk
        for d in range(n_pk):
            a.e(f"v_lshlrev_b32 v{dst+2*d}, 16, v{src_pk+d}\nv_and_b32 v{dst+2*d+1}, 0xffff0000, v{src_pk+d}")
        for i in range(n):
            a.e(f"v_mul_f32 v{tmp+i}, {f2u(-LOG2E):#x}, v{dst+i}")
        for i in range(n):
            a.e(f"v_exp_f32 v{tmp+i}, v{tmp+i}")
        for i in range(n):
            a.e(f"v_add_f32 v{tmp+i}, 1.0, v{tmp+i}")
        for i in range(n):
            a.e(f"v_rcp_f32 v{tmp+i}, v{tmp+i}")
        for i in range(n):
            a.e(f"v_mul_f32 v{dst+i}, v{dst+i}, v{tmp+i}")
        for d in range(n_pk):
            a.e(f"v_cvt_pk_bf16_f32 v{tmp+d}, v{dst+2*d}, v{dst+2*d+1}")
        for d in range(n_pk):
            a.e(f"v_lshlrev_b32 v{dst+2*d}, 16, v{tmp+d}\nv_and_b32 v{dst+2*d+1}, 0xffff0000, v{tmp+d}")

    def wave_allsum(self, regs, tmp):
        a = self.a
        for r in (1, 2, 4, 8):
            for x in regs:
                a.e(f"v_add_f32_dpp v{x}, v{x}, v{x} row_ror:{r} row_mask:0xf bank_mask:0xf")
        self.group_allsum(regs, tmp)

    def group_allsum(self, regs, tmp, op="v_add_f32", stages=("16", "32")):
        a = self.a
        for sw in stages:
            for x, t in zip(regs, tmp):
                a.e(f"v_mov_b32 v{t}, v{x}")
            for x, t in zip(regs, tmp):
                a.e(f"v_permlane{sw}_swap_b32 v{x}, v{t}")
            for x, t in zip(regs, tmp):
                a.e(f"{op} v{x}, v{x}, v{t}")

    def granule(self, lo, hi, s_one, dst):
        self.a.e(f"""
v_cvt_pk_bf16_f32 v{dst}, v{lo}, v{hi}
v_lshlrev_b32 v{lo}, 16, v{dst}
v_and_b32 v{hi}, 0xffff0000, v{dst}
v_add_f32 v{lo}, s{s_one}, v{lo}
v_add_f32 v{hi}, s{s_one}, v{hi}
v_cvt_pk_bf16_f32 v{dst}, v{lo}, v{hi}
v_mov_b32 v{dst+1}, s{sTAG}
""")

    def reduce8_pairs(self, AC):
        self.a.e(f"""
v_permlane16_swap_b32 v{AC}, v{AC+2}
v_permlane16_swap_b32 v{AC+1}, v{AC+3}
v_permlane16_swap_b32 v{AC+4}, v{AC+6}
v_permlane16_swap_b32 v{AC+5}, v{AC+7}
v_add_f32 v{AC}, v{AC}, v{AC+2}
v_add_f32 v{AC+1}, v{AC+1}, v{AC+3}
v_add_f32 v{AC+4}, v{AC+4}, v{AC+6}
v_add_f32 v{AC+5}, v{AC+5}, v{AC+7}
v_permlane32_swap_b32 v{AC}, v{AC+4}
v_permlane32_swap_b32 v{AC+1}, v{AC+5}
v_add_f32 v{AC}, v{AC}, v{AC+4}
v_add_f32 v{AC+1}, v{AC+1}, v{AC+5}
""")

    def phase0(self):
        a = self.a
        a.e(f"""
s_cmp_ge_u32 s2, 256
s_cbranch_scc1 L_END
{"s_memrealtime s[100:101]" if self.stamps else ""}
s_load_dwordx2 s[{S_WS}:{S_WS+1}], s[0:1], 88
s_load_dwordx2 s[{S_WM}:{S_WM+1}], s[0:1], 64
s_load_dwordx2 s[{S_C}:{S_C+1}], s[0:1], 56
s_load_dwordx2 s[{S_X}:{S_X+1}], s[0:1], 0
s_load_dwordx2 s[{S_WQKV}:{S_WQKV+1}], s[0:1], 8
s_load_dwordx2 s[{S_WO}:{S_WO+1}], s[0:1], 16
s_load_dwordx2 s[{S_WG}:{S_WG+1}], s[0:1], 32
s_load_dwordx2 s[{S_WU}:{S_WU+1}], s[0:1], 40
s_load_dwordx2 s[{S_WD}:{S_WD+1}], s[0:1], 48
s_load_dwordx2 s[{S_OUT}:{S_OUT+1}], s[0:1], 72
s_getpc_b64 s[{sTMP}:{sTMP+1}]
L_PC:
s_and_b32 s{sX}, s2, 7
s_lshr_b32 s{sT}, s2, 3
s_lshl_b32 s{sTMP+2}, s{sT}, 11
v_lshlrev_b32 v2, 2, v0
v_add_u32 v2, s{sTMP+2}, v2
v_min_u32 v2, L_CODE_END-L_PC-4, v2
global_load_dword v4, v2, s[{sTMP}:{sTMP+1}]
s_getreg_b32 s{sXCC}, hwreg(HW_REG_XCC_ID)
s_and_b32 s{sXCC}, s{sXCC}, 15
s_lshr_b32 s{sTMP}, s{sT}, 4
s_lshl_b32 s{sRB}, s{sX}, 1
s_add_u32 s{sRB}, s{sRB}, s{sTMP}
s_and_b32 s{sJ}, s{sT}, 15
s_lshl_b32 s{sP}, s{sX}, 5
s_add_u32 s{sP}, s{sP}, s{sT}
v_and_b32 v1, 63, v0
v_lshrrev_b32 v2, 6, v0
v_lshrrev_b32 v3, 4, v1
v_readfirstlane_b32 s{sW}, v2
v_lshlrev_b32 v11, 4, v1
v_lshlrev_b32 v10, 7, v1
s_and_b32 s{sW3}, s{sW}, 3
s_lshr_b32 s{sWH}, s{sW}, 2
s_mov_b32 s{sPURE}, 0
""")
        sizes = {S_X: 2097152, S_WQKV: 1572864, S_WO: 524288, S_WG: 1835008, S_WU: 1835008, S_WD: 1835008, S_C: 1024,
                 S_WM: 3145728, S_OUT: 2097152, S_WS: 0x10000000}
        for s, sz in sizes.items():
            a.e(f"s_mov_b32 s{s+2}, {sz}\ns_mov_b32 s{s+3}, 0x20000")
        a.e("s_waitcnt lgkmcnt(0)")
        a.e(f"s_load_dword s{sTAG}, s[{S_WS}:{S_WS+1}], {EPOCH}")
        L_45 = a.label("Lw45")
        L_67 = a.label("Lw67")
        L_j = a.label("Lj0")
        tagfix = f"s_waitcnt lgkmcnt(0)\ns_mul_i32 s{sTAG}, s{sTAG}, 1664525\ns_add_u32 s{sTAG}, s{sTAG}, 1013904223"
        L_03 = a.label("Lw03")
        a.e(f"s_cmp_lt_u32 s{sW}, 4\ns_cbranch_scc1 {L_03}\ns_cmp_ge_u32 s{sW}, 6\ns_cbranch_scc1 {L_67}")
        v0_, l0_ = a.vm_issued, a.lg_issued
        self.gemv_mfma(a, L_45, L_j, tagfix, v0_, l0_)
        a.e(f"{L_67}:")
        a.e(f"""
v_lshrrev_b32 v12, 2, v1
v_mul_u32_u24 v12, 3072, v12
v_and_b32 v13, 3, v1
v_lshl_add_u32 v12, v13, 4, v12
{tagfix}
v_mov_b32 v14, s{sXCC}
v_mov_b32 v15, s{sTAG}
s_lshl_b32 s{sTMP}, s{sP}, 3
s_add_u32 s{sTMP}, s{sTMP}, {XID}
v_mov_b32 v13, 0
s_mov_b64 exec, 1
buffer_store_dwordx2 v[14:15], v13, {WS}, s{sTMP} offen sc1
s_mov_b64 exec, -1
s_and_b32 s{sTMP+4}, s{sW}, 1
s_mul_i32 s{sTMP}, s{sTMP+4}, {16*3072}
s_lshl_b32 s{sTMP+1}, s{sJ}, 6
s_add_u32 s{sTMP}, s{sTMP}, s{sTMP+1}
s_lshl_b32 s{sTMP+2}, s{sTMP+4}, 10
""")
        Lgt = a.label("Lgate")
        Lgo = a.label("Lgateo")
        a.e(f"""
s_cmp_ge_u32 s{sT}, {0 if "nogate" in EXP else (99 if "valugemv" in EXP else 20)}
s_cbranch_scc1 {Lgo}
v_and_b32 v13, 1, v1
v_lshlrev_b32 v13, 2, v13
s_mov_b32 s{sTMP+11}, 0
{Lgt}:
ds_read_b32 v14, v13 offset:{L_GATE}
s_add_u32 s{sTMP+11}, s{sTMP+11}, 1
s_cmp_gt_u32 s{sTMP+11}, 4000000
s_cbranch_scc1 {Lgo}
s_waitcnt lgkmcnt(0)
v_cmp_ne_u32 vcc, s{sTAG}, v14
s_cbranch_vccnz {Lgt}
{Lgo}:
s_waitcnt lgkmcnt(0)
""")
        if "qtouch" in EXP:
            a.e(f"s_mul_i32 s{sTMP+5}, s{sT}, 49152")
            self.touch(S_WQKV, sTMP + 5, 384, sTMP + 4, 2, 14, 10)
        if "dmadelay" in EXP:
            a.e(f"buffer_load_dword v14, v13, {WS}, s{sTMP} offen sc1\ns_waitcnt vmcnt(0)")
        Lq_ = a.label("Lqd")
        a.e(f"s_mov_b32 s{sTMP+5}, 0\n{Lq_}:")
        for seg in range(3):
            a.e(f"s_add_u32 m0, s{sTMP+2}, {L_WQKV + seg*32768}")
            a.e(f"s_add_u32 s{sTMP+3}, s{sTMP}, {seg*1024}")
            a.e(f"buffer_load_dwordx4 v12, s[{S_WQKV}:{S_WQKV+3}], s{sTMP+3} offen lds")
        a.e(f"s_add_u32 s{sTMP+2}, s{sTMP+2}, 2048\ns_add_u32 s{sTMP}, s{sTMP}, {32*3072}\ns_add_u32 s{sTMP+5}, s{sTMP+5}, 1\ns_cmp_lt_u32 s{sTMP+5}, 16\ns_cbranch_scc1 {Lq_}")
        a.e("s_waitcnt vmcnt(0)")
        self.stamp(0)
        a.e(f"s_branch {L_j}")
        a.vm_issued, a.lg_issued = v0_, l0_
        a.e(f"{L_03}:")
        XP, XF = 16, 32
        ST = [64, 65, 66, 67]
        STT = [68, 69, 70, 71]
        a.e(f"""
s_lshl_b32 s{sTMP}, s{sRB}, 17
s_lshl_b32 s{sTMP+1}, s{sJ}, 13
s_add_u32 s{sTMP}, s{sTMP}, s{sTMP+1}
s_lshl_b32 s{sTMP+1}, s{sW}, 11
s_add_u32 s{sTMP}, s{sTMP}, s{sTMP+1}
s_sub_u32 s{sTMP+1}, s{sTMP}, {256*1024}
s_cmp_lt_u32 s{sRB}, 2
s_cselect_b32 s{sTMP+1}, s{sTMP}, s{sTMP+1}
""")
        for i in range(4):
            a.e(f"buffer_load_dwordx4 {vr(XP+4*i,4)}, v11, s[{S_X}:{S_X+3}], s{sTMP + (i>>1)} offen offset:{(i&1)*1024}")
        if "noc3" not in EXP:
            Lc0, Lc1, Lce, Lc3 = a.label("Lc30"), a.label("Lc31"), a.label("Lc3e"), a.label("Lc33")
            a.e(f"""
v_lshrrev_b32 v5, 2, v1
v_and_b32 v6, 3, v1
s_cmp_eq_u32 s{sW}, 0
s_cbranch_scc1 {Lc0}
s_cmp_eq_u32 s{sW}, 1
s_cbranch_scc1 {Lc1}
s_cmp_lg_u32 s{sW}, 2
s_cbranch_scc1 {Lc3}
v_and_b32 v5, 15, v1
v_lshlrev_b32 v5, 10, v5
s_lshl_b32 s{sTMP+2}, s{sT}, 14
""")
            self.nocount(f"buffer_load_dword v6, v5, s[{S_WO}:{S_WO+3}], s{sTMP+2} offen offset:384")
            a.e(f"""
s_branch {Lce}
{Lc0}:
v_mul_u32_u24 v5, 6144, v5
v_and_b32 v6, 1, v6
v_lshl_add_u32 v5, v6, 10, v5
s_mul_i32 s{sTMP+2}, s{sT}, {16*6144}
""")
            self.nocount(f"buffer_load_dword v6, v5, s[{S_WM}:{S_WM+3}], s{sTMP+2} offen offset:384")
            a.e(f"""
s_branch {Lce}
{Lc1}:
v_mul_u32_u24 v5, 3072, v5
v_lshl_add_u32 v5, v6, 10, v5
s_mul_i32 s{sTMP+2}, s{sT}, {16*3072}
""")
            self.nocount(f"buffer_load_dword v6, v5, s[{S_WQKV}:{S_WQKV+3}], s{sTMP+2} offen offset:384")
            a.e(f"s_branch {Lce}\n{Lc3}:")
            if "valugemv" in EXP and "nomall" not in EXP:
                a.e(f"s_lshl_b32 s{sTMP+2}, s{sP}, 13\n"
                    f"s_cmp_lt_u32 s{sTMP+2}, {84*8192}\ns_cselect_b32 s{sTMP+3}, s{sTMP+2}, 0x7fff0000\n"
                    f"s_sub_u32 s{sTMP+4}, s{sTMP+2}, {84*8192}\ns_cmp_lt_u32 s{sTMP+4}, {84*8192}\ns_cselect_b32 s{sTMP+4}, s{sTMP+4}, 0x7fff0000\n"
                    f"s_sub_u32 s{sTMP+5}, s{sTMP+2}, {168*8192}\ns_min_u32 s{sTMP+5}, s{sTMP+5}, 0x7fff0000")
                self.nocount(f"buffer_load_dword v6, v10, s[{S_WG}:{S_WG+3}], s{sTMP+3} offen")
                self.nocount(f"buffer_load_dword v6, v10, s[{S_WU}:{S_WU+3}], s{sTMP+4} offen")
                self.nocount(f"buffer_load_dword v6, v10, s[{S_WO}:{S_WO+3}], s{sTMP+5} offen")
            a.e(f"{Lce}:")
        if "wmtouch" in EXP:
            a.e(f"""
v_mul_u32_u24 v5, 6144, v3
v_and_b32 v6, 15, v1
v_lshl_add_u32 v5, v6, 7, v5
s_lshl_b32 s{sTMP}, s{sT}, 2
s_add_u32 s{sTMP}, s{sTMP}, s{sW}
s_mul_i32 s{sTMP}, s{sTMP}, {4*6144}
buffer_load_dword v6, v5, s[{S_WM}:{S_WM+3}], s{sTMP} offen
s_waitcnt vmcnt(1)
""")
        else:
            a.e("s_waitcnt vmcnt(0)")
        a.e(tagfix)
        for i in range(4):
            for d in range(4):
                a.e(f"v_lshlrev_b32 v{XF+8*i+2*d}, 16, v{XP+4*i+d}\nv_and_b32 v{XF+1+8*i+2*d}, 0xffff0000, v{XP+4*i+d}")
        for i in range(4):
            b = XF + 8 * i
            a.e(f"v_add_f32 v{ST[i]}, v{b}, v{b+1}")
            for e in range(2, 8):
                a.e(f"v_add_f32 v{ST[i]}, v{ST[i]}, v{b+e}")
        self.wave_allsum(ST, STT)
        for i in range(4):
            a.e(f"v_mul_f32 v{ST[i]}, {f2u(-1/512):#x}, v{ST[i]}")
        for i in range(4):
            for e in range(8):
                a.e(f"v_add_f32 v{XF+8*i+e}, v{ST[i]}, v{XF+8*i+e}")
        for i in range(4):
            b = XF + 8 * i
            a.e(f"v_mul_f32 v{ST[i]}, v{b}, v{b}")
            for e in range(1, 8):
                a.e(f"v_fmac_f32 v{ST[i]}, v{b+e}, v{b+e}")
        self.wave_allsum(ST, STT)
        for i in range(4):
            a.e(f"v_mul_f32 v{ST[i]}, {f2u(1/512):#x}, v{ST[i]}")
        for i in range(4):
            a.e(f"v_add_f32 v{ST[i]}, {f2u(1e-5):#x}, v{ST[i]}")
        for i in range(4):
            a.e(f"v_rsq_f32 v{ST[i]}, v{ST[i]}")
        for i in range(4):
            for e in range(8):
                a.e(f"v_mul_f32 v{XF+8*i+e}, v{ST[i]}, v{XF+8*i+e}")
        for i in range(4):
            for d in range(4):
                a.e(f"v_cvt_pk_bf16_f32 v{XP+4*i+d}, v{XF+8*i+2*d}, v{XF+1+8*i+2*d}")
        for i in range(4):
            for d in range(4):
                a.e(f"v_lshlrev_b32 v{XF+8*i+2*d}, 16, v{XP+4*i+d}\nv_and_b32 v{XF+1+8*i+2*d}, 0xffff0000, v{XP+4*i+d}")
        a.e(f"""
v_lshrrev_b32 v12, 1, v1
v_lshlrev_b32 v12, 10, v12
v_and_b32 v6, 1, v1
v_lshl_add_u32 v12, v6, 9, v12
s_lshl_b32 s{sTMP+4}, s{sX}, 19
s_and_b32 s{sTMP+3}, s{sRB}, 1
s_lshl_b32 s{sTMP+3}, s{sTMP+3}, 17
s_add_u32 s{sTMP+4}, s{sTMP+4}, s{sTMP+3}
s_lshr_b32 s{sTMP+3}, s{sJ}, 2
s_lshl_b32 s{sTMP+3}, s{sTMP+3}, 15
s_add_u32 s{sTMP+4}, s{sTMP+4}, s{sTMP+3}
s_and_b32 s{sTMP+3}, s{sJ}, 3
s_lshl_b32 s{sTMP+3}, s{sTMP+3}, 7
s_add_u32 s{sTMP+4}, s{sTMP+4}, s{sTMP+3}
s_lshl_b32 s{sTMP+3}, s{sW}, 5
s_add_u32 s{sTMP+4}, s{sTMP+4}, s{sTMP+3}
s_add_u32 s{sTMP+4}, s{sTMP+4}, {H1BUF}
s_add_u32 s{sTMP+8}, s{sTMP+4}, {2*131072}
v_lshlrev_b32 v13, 5, v1
v_lshlrev_b32 v7, 6, v1
v_add_u32 v7, 60, v7
v_and_b32 v8, 31, v1
v_lshlrev_b32 v8, 3, v8
s_lshl_b32 s{sTMP}, s{sX}, 12
s_add_u32 s{sTMP+1}, s{sTMP}, {MODB}
s_add_u32 s{sTMP}, s{sTMP}, {MODA}
s_lshl_b32 s{sTMP+2}, s{sX}, 8
s_add_u32 s{sTMP+2}, s{sTMP+2}, {XID}
s_lshl_b32 s{sTMP+5}, s{sP}, 4
s_lshl_b32 s{sTMP+6}, s{sW}, 2
s_add_u32 s{sTMP+5}, s{sTMP+5}, s{sTMP+6}
s_add_u32 s{sTMP+5}, s{sTMP+5}, {FL_H1}
s_mov_b32 s{sTMP+11}, 0
""")
        self.stamp(0)
        L = a.label("G")
        L2 = a.label("G2")
        Lo = a.label("Go")
        G0 = 96
        a.e(f"{L}:")
        self.nocount(f"buffer_load_dword v{G0}, v7, {WS}, s{sTMP} offen sc1")
        a.e(f"""
s_add_u32 s{sTMP+11}, s{sTMP+11}, 1
s_cmp_gt_u32 s{sTMP+11}, 400000
s_cbranch_scc1 {L2}
s_waitcnt vmcnt(0)
v_cmp_ne_u32 vcc, s{sTAG}, v{G0}
s_cbranch_vccz {L2}
s_add_u32 s{sTMP+10}, s{sTMP+11}, 1
s_and_b32 s{sTMP+10}, s{sTMP+10}, 15
s_cmp_lt_u32 s{sTMP+10}, 2
s_cselect_b32 s{sTMP+10}, s{sTMP+1}, s{sTMP}
s_cselect_b32 s{sTMP+1}, s{sTMP}, s{sTMP+1}
s_mov_b32 s{sTMP}, s{sTMP+10}
s_sleep {MSLEEP}
s_branch {L}
{L2}:
""")
        self.nocount(f"""
buffer_load_dwordx4 v[{G0}:{G0+3}], v13, {WS}, s{sTMP} offen sc1
buffer_load_dwordx4 v[{G0+4}:{G0+7}], v13, {WS}, s{sTMP} offen offset:16 sc1
buffer_load_dwordx4 v[{G0+8}:{G0+11}], v13, {WS}, s{sTMP} offen offset:2048 sc1
buffer_load_dwordx4 v[{G0+12}:{G0+15}], v13, {WS}, s{sTMP} offen offset:2064 sc1
buffer_load_dwordx2 v[{G0+16}:{G0+17}], v8, {WS}, s{sTMP+2} offen sc1
""")
        a.e(f"""
s_cmp_gt_u32 s{sTMP+11}, 400000
s_cbranch_scc1 {Lo}
s_waitcnt vmcnt(0)
v_xor_b32 v116, s{sTAG}, v{G0+1}
""")
        for q in range(3, 16, 2):
            a.e(f"v_xor_b32 v117, s{sTAG}, v{G0+q}\nv_or_b32 v116, v116, v117")
        a.e(f"v_cmp_ne_u32 vcc, 0, v116\ns_cbranch_vccnz {L}\n{Lo}:\ns_waitcnt vmcnt(0)")
        a.e(f"""
v_xor_b32 v116, s{sTAG}, v{G0+17}
v_xor_b32 v117, s{sXCC}, v{G0+16}
v_or_b32 v116, v116, v117
v_cmp_ne_u32 vcc, 0, v116
s_cmp_eq_u64 vcc, 0
s_cselect_b32 s{sPURE}, 1, 0
""")
        SA, GG = 72, 80
        for q in range(4):
            a.e(f"v_lshlrev_b32 v{SA+2*q}, 16, v{G0+2*q}\nv_and_b32 v{SA+1+2*q}, 0xffff0000, v{G0+2*q}")
            a.e(f"v_lshlrev_b32 v{GG+2*q}, 16, v{G0+8+2*q}\nv_and_b32 v{GG+1+2*q}, 0xffff0000, v{G0+8+2*q}")
        for i in range(4):
            for d in range(4):
                b = XF + 8 * i + 2 * d
                a.e(f"v_pk_fma_f32 v[{b}:{b+1}], v[{b}:{b+1}], v[{GG+2*d}:{GG+1+2*d}], v[{SA+2*d}:{SA+1+2*d}]")
            for d in range(4):
                a.e(f"v_cvt_pk_bf16_f32 v{XP+4*i+d}, v{XF+8*i+2*d}, v{XF+1+8*i+2*d}")
        a.e(f"v_mov_b32 v14, s{sTAG}\nv_mov_b32 v15, 0")
        st = "\n".join(f"buffer_store_dwordx4 v[{XP+4*i}:{XP+3+4*i}], v12, {WS}, s{sTMP+8 if i < 2 else sTMP+4} offen offset:{16*(i&1)}" for i in range(4))
        self.store_sel(st + "\n" + self.flag_seq(f"s{sTMP+5}"))
        a.e(f"s_branch {L_j}")
        a.vm_issued, a.lg_issued = v0_, l0_
        self.gemv_mfma2(a, L_45, L_j, tagfix, v0_, l0_)
        a.e(f"{L_j}:")
        if "prio" in EXP:
            Lpr = a.label("Lprio")
            a.e(f"s_cmp_lt_u32 s{sW}, 4\ns_cbranch_scc1 {Lpr}\ns_setprio 1\n{Lpr}:")
        a.e("s_nop 4\ns_barrier")
        self.stamp(1)

    def gemv_valu(self, a, L_45, L_j, tagfix, v0_, l0_):
        a.e(f"{L_45}:")
        W0, SV = 94, 14
        a.e(f"""
v_lshrrev_b32 v6, 1, v1
v_lshlrev_b32 v8, 5, v6
v_mul_u32_u24 v7, {16*6144}, v6
v_and_b32 v6, 1, v1
v_lshl_add_u32 v7, v6, 4, v7
buffer_load_dwordx4 v[70:73], v8, s[{S_C}:{S_C+3}], 0 offen
buffer_load_dwordx4 v[74:77], v8, s[{S_C}:{S_C+3}], 0 offen offset:16
""")
        tok_c = a.vm_tok()
        a.e(f"s_lshl_b32 s{sTMP}, s{sT}, 6\ns_lshl_b32 s{sTMP+1}, s{sW3}, 5\ns_add_u32 s{sTMP}, s{sTMP}, s{sTMP+1}")
        tok_w = []
        for i in range(16):
            a.e(f"buffer_load_dwordx4 v[{W0+4*i}:{W0+3+4*i}], v7, s[{S_WM}:{S_WM+3}], s{sTMP} offen")
            tok_w.append(a.vm_tok())
            if i < 15:
                a.e(f"s_add_u32 s{sTMP}, s{sTMP}, 6144")
        a.e(f"""
v_and_b32 v5, 127, v0
v_mul_u32_u24 v12, 24576, v5
v_lshlrev_b32 v5, 3, v5
s_lshl_b32 s{sTMP}, s{sP}, 4
s_add_u32 s{sTMP}, s{sTMP}, 2048
buffer_load_dwordx2 v[78:79], v5, s[{S_C}:{S_C+3}], 0 offen
""")
        for i in range(4):
            a.e(f"buffer_load_dwordx4 v[{54+4*i}:{57+4*i}], v12, s[{S_WM}:{S_WM+3}], s{sTMP} offen")
            if i < 3:
                a.e(f"s_add_u32 s{sTMP}, s{sTMP}, 6144")
        tok_nu = a.vm_tok()
        a.e(tagfix)
        a.e(f"s_lshl_b32 s{sTMP+4}, s{sW3}, 2\nv_mov_b32 v13, s{sTMP+4}\nv_mov_b32 v5, s{sTAG}\nds_write_b32 v13, v5 offset:{L_GATE}")
        a.e(f"""
v_lshlrev_b32 v9, 5, v6
v_lshl_add_u32 v9, v3, 3, v9
s_cmp_ge_u32 s{sT}, 16
s_cselect_b32 s{sTMP+7}, 1.0, 0
s_lshl_b32 s{sTMP+5}, s{sX}, 12
s_lshl_b32 s{sTMP+6}, s{sT}, 7
s_add_u32 s{sTMP+5}, s{sTMP+5}, s{sTMP+6}
s_lshl_b32 s{sTMP+6}, s{sW3}, 6
s_add_u32 s{sTMP+5}, s{sTMP+5}, s{sTMP+6}
s_add_u32 s{sTMP+6}, s{sTMP+5}, {MODB}
s_add_u32 s{sTMP+5}, s{sTMP+5}, {MODA}
""")
        a.wait_vm(tok_c)
        self.silu_bf16(70, 8, SV, 30)
        AC = 30
        for i in range(16):
            a.wait_vm(tok_w[i])
            w = W0 + 4 * i
            t = 38 + 8 * (i % 2)
            for d in range(4):
                a.e(f"v_lshlrev_b32 v{t+2*d}, 16, v{w+d}\nv_and_b32 v{t+1+2*d}, 0xffff0000, v{w+d}")
            sp = SV + (i & ~1)
            sel = i & 1
            for d in range(4):
                if i == 0:
                    a.e(f"v_pk_mul_f32 v[{AC+2*d}:{AC+1+2*d}], v[{t+2*d}:{t+1+2*d}], v[{sp}:{sp+1}] op_sel_hi:[1,0]")
                else:
                    a.e(f"v_pk_fma_f32 v[{AC+2*d}:{AC+1+2*d}], v[{t+2*d}:{t+1+2*d}], v[{sp}:{sp+1}], v[{AC+2*d}:{AC+1+2*d}] op_sel:[0,{sel},0] op_sel_hi:[1,{sel},1]")
        for r in (2, 4, 8):
            for e in range(8):
                a.e(f"v_add_f32_dpp v{AC+e}, v{AC+e}, v{AC+e} row_ror:{r} row_mask:0xf bank_mask:0xf")
        self.reduce8_pairs(AC)
        self.granule(AC, AC + 1, sTMP + 7, AC + 2)
        a.e(f"s_mov_b32 exec_lo, 0x00030003\ns_mov_b32 exec_hi, 0x00030003")
        a.e(f"buffer_store_dwordx2 v[{AC+2}:{AC+3}], v9, {WS}, s{sTMP+5} offen")
        a.e(f"buffer_store_dwordx2 v[{AC+2}:{AC+3}], v9, {WS}, s{sTMP+6} offen sc1")
        a.e(f"s_mov_b64 exec, -1")
        self.stamp(0)
        a.wait_vm(tok_nu)
        self.silu_bf16(78, 2, 80, 96)
        for i in range(4):
            for d in range(4):
                w = 54 + 4 * i + d
                a.e(f"v_lshlrev_b32 v{96+2*d}, 16, v{w}\nv_and_b32 v{97+2*d}, 0xffff0000, v{w}")
            for e in range(8):
                a.e(f"v_mul_f32 v{72+e}, v80, v{96+e}" if i == 0 else f"v_fmac_f32 v{72+e}, v{80+i}, v{96+e}")
        for r in (1, 2, 4, 8):
            for e in range(8):
                a.e(f"v_add_f32_dpp v{72+e}, v{72+e}, v{72+e} row_ror:{r} row_mask:0xf bank_mask:0xf")
        self.reduce8_pairs(72)
        a.e("v_mov_b32 v132, v72\nv_mov_b32 v133, v73")
        a.e(f"s_branch {L_j}")
        a.vm_issued, a.lg_issued = v0_, l0_

    def gemv_mfma(self, a, L_45, L_j, tagfix, v0_, l0_):
        a.e(f"{L_45}:")
        a.e(f"s_cmp_ge_u32 s{sT}, 20\ns_cbranch_scc1 L_NOGEMV")
        L_SLAB = 96 * 1024
        self.w64_lane(12, stride=6144)
        a.e(f"""
s_lshl_b32 s{sTMP}, s{sT}, 7
s_lshl_b32 s{sTMP+1}, s{sX}, 9
s_add_u32 s{sTMP+1}, s{sTMP+1}, s{sTMP}
s_cmp_ge_u32 s{sT}, 16
s_cselect_b32 s{sTMP}, s{sTMP+1}, s{sTMP}
s_mul_i32 s{sTMP+1}, s{sW3}, {256*6144}
s_add_u32 s{sTMP}, s{sTMP}, s{sTMP+1}
s_lshl_b32 s{sTMP+2}, s{sW3}, 15
s_lshl_b32 s{sTMP+4}, s{sW3}, 9
v_lshlrev_b32 v8, 3, v1
buffer_load_dwordx2 v[70:71], v8, s[{S_C}:{S_C+3}], s{sTMP+4} offen
""")
        tok_c = a.vm_tok()
        Ls_ = a.label("Lsd")
        a.e(f"s_mov_b32 s{sTMP+5}, 0\ns_add_u32 s{sTMP+6}, s{sTMP+2}, {L_SLAB}\n{Ls_}:")
        for i in range(4):
            a.e(f"s_add_u32 m0, s{sTMP+6}, {i*1024}\ns_add_u32 s{sTMP+3}, s{sTMP}, {i*8*6144}")
            a.e(f"buffer_load_dwordx4 v12, s[{S_WM}:{S_WM+3}], s{sTMP+3} offen lds")
        a.e(f"s_add_u32 s{sTMP+6}, s{sTMP+6}, 4096\ns_add_u32 s{sTMP}, s{sTMP}, {32*6144}\ns_add_u32 s{sTMP+5}, s{sTMP+5}, 1\ns_cmp_lt_u32 s{sTMP+5}, 8\ns_cbranch_scc1 {Ls_}")
        a.e(tagfix)
        a.e(f"s_lshl_b32 s{sTMP+4}, s{sW3}, 2\nv_mov_b32 v13, s{sTMP+4}\nv_mov_b32 v14, s{sTAG}\nds_write_b32 v13, v14 offset:{L_GATE}")
        a.e("s_branch L_GEMV2")
        a.vm_issued, a.lg_issued = v0_, l0_

    def gemv_mfma2(self, a, L_45, L_j, tagfix, v0_, l0_):
        L_SLAB = 96 * 1024
        a.e("L_GEMV2:")
        a.e("s_waitcnt vmcnt(32)")
        self.silu_bf16(70, 2, 14, 30)
        SF = 94
        a.e(f"v_lshrrev_b32 v9, 5, v1\nv_lshlrev_b32 v9, 3, v9")
        for st in range(16):
            for d in range(4):
                a.e(f"ds_bpermute_b32 v{SF+4*st+d}, v9, v{30 + (d&1)} offset:{(4*st + (d>>1))*4}")
            if st % 3 == 2:
                a.e("s_waitcnt lgkmcnt(3)")
        self.tr64_bases(4)
        a.e(f"""
s_add_u32 s{sTMP+2}, s{sTMP+2}, {L_SLAB}
v_add_u32 v4, s{sTMP+2}, v4
v_add_u32 v5, s{sTMP+2}, v5
s_waitcnt lgkmcnt(0)
""")
        self.stamp(22)
        a.e("s_waitcnt vmcnt(0)")
        self.stamp(23)
        GA_ = 32
        GB = [64, 72, 80]
        toks = {}

        def GR(st):
            return [f"ds_read_b64_tr_b16 {vr(GB[st%3]+4*t+2*i,2)}, v{4+t} offset:{(16*st+4*i)*128}" for t in range(2) for i in range(2)]
        for st in range(2):
            a.e("\n".join(GR(st)))
            toks[st] = a.lg_tok()
        for st in range(16):
            a.wait_lg(toks[st])
            for t in range(2):
                a.e(f"v_mfma_f32_32x32x16_bf16 {vr(GA_+16*t,16)}, {vr(GB[st%3]+4*t,4)}, {vr(SF+4*st,4)}, {'0' if st == 0 else vr(GA_+16*t,16)}")
            if st + 2 < 16:
                a.e("\n".join(GR(st + 2)))
                toks[st + 2] = a.lg_tok()
        self.stamp(24)
        L5 = a.label("Lg5")
        a.e(f"v_add_u32 v12, {L_SLAB + 32768}, v11\nv_mov_b32 v13, {L_SLAB + 32768 + 8192}\nv_mov_b32 v14, s{sTAG}")
        a.e(f"s_cmp_eq_u32 s{sW}, 4\ns_cbranch_scc1 {L5}")
        self.nocount("\n".join(f"ds_write_b128 v12, {vr(GA_+4*q,4)} offset:{q*1024}" for q in range(8)))
        a.e("s_waitcnt lgkmcnt(0)")
        self.nocount("ds_write_b32 v13, v14")
        a.e(f"s_waitcnt lgkmcnt(0)\ns_branch L_NOGEMV\n{L5}:")
        Ls = a.label("Lgs")
        Lso = a.label("Lgso")
        a.e(f"""
s_mov_b32 s{sTMP+11}, 0
{Ls}:
""")
        self.nocount("ds_read_b32 v15, v13")
        a.e(f"""
s_add_u32 s{sTMP+11}, s{sTMP+11}, 1
s_cmp_gt_u32 s{sTMP+11}, 4000000
s_cbranch_scc1 {Lso}
s_waitcnt lgkmcnt(0)
v_cmp_ne_u32 vcc, s{sTAG}, v15
s_cbranch_vccnz {Ls}
{Lso}:
""")
        self.nocount("\n".join(f"ds_read_b128 {vr(64+4*q,4)}, v12 offset:{q*1024}" for q in range(8)))
        a.e(f"""
s_lshl_b32 s{sTMP+5}, s{sX}, 12
s_lshl_b32 s{sTMP+6}, s{sT}, 8
s_add_u32 s{sTMP+5}, s{sTMP+5}, s{sTMP+6}
s_add_u32 s{sTMP+8}, s{sTMP+5}, {MODB}
s_add_u32 s{sTMP+5}, s{sTMP+5}, {MODA}
s_lshl_b32 s{sTMP+9}, s{sX}, 10
s_add_u32 s{sTMP+9}, s{sTMP+9}, s{sTMP+6}
s_add_u32 s{sTMP+9}, s{sTMP+9}, {MODG - 4096}
s_lshr_b32 s{sTMP+6}, s{sT}, 3
s_cmp_eq_u32 s{sTMP+6}, 1
s_cselect_b32 s{sTMP+7}, 1.0, 0
s_lshr_b32 s{sTMP+6}, s{sX}, 1
s_cmp_eq_u32 s{sTMP+6}, 2
s_cselect_b32 s{sTMP+10}, 1.0, 0
s_cmp_ge_u32 s{sT}, 16
s_cselect_b32 s{sTMP+7}, s{sTMP+10}, s{sTMP+7}
s_cselect_b32 s{sTMP+5}, s{sTMP+9}, s{sTMP+5}
s_cselect_b32 s{sTMP+8}, s{sTMP+9}, s{sTMP+8}
v_lshrrev_b32 v9, 5, v1
v_lshlrev_b32 v9, 5, v9
s_waitcnt lgkmcnt(0)
""")
        for r in range(32):
            a.e(f"v_add_f32 v{GA_+r}, v{GA_+r}, v{64+r}")
        for q in range(16):
            a.e(f"v_cvt_pk_bf16_f32 v{64+2*q}, v{GA_+2*q}, v{GA_+2*q+1}")
        for q in range(16):
            a.e(f"v_lshlrev_b32 v{GA_+2*q}, 16, v{64+2*q}\nv_and_b32 v{GA_+2*q+1}, 0xffff0000, v{64+2*q}")
        for r in range(32):
            a.e(f"v_add_f32 v{GA_+r}, s{sTMP+7}, v{GA_+r}")
        for q in range(16):
            a.e(f"v_cvt_pk_bf16_f32 v{64+2*q}, v{GA_+2*q}, v{GA_+2*q+1}\nv_mov_b32 v{65+2*q}, s{sTAG}")
        a.e("s_mov_b32 exec_lo, 1\ns_mov_b32 exec_hi, 1")
        Lnu = a.label("Lnu")
        a.e(f"s_cmp_ge_u32 s{sT}, 16\ns_cbranch_scc1 {Lnu}")
        for u in range(8):
            self.nocount(f"buffer_store_dwordx4 {vr(64+4*u,4)}, v9, {WS}, s{sTMP+5} offen offset:{(u>>1)*64 + (u&1)*16}")
        a.e(f"{Lnu}:")
        for u in range(8):
            self.nocount(f"buffer_store_dwordx4 {vr(64+4*u,4)}, v9, {WS}, s{sTMP+8} offen offset:{(u>>1)*64 + (u&1)*16} sc1")
        a.e("s_mov_b64 exec, -1")
        self.stamp(0)
        a.e("L_NOGEMV:")
        a.e(tagfix.replace("s_mul_i32", "s_cmp_ge_u32 s%d, 20\ns_cbranch_scc0 %s\ns_mul_i32" % (sT, L_j)))
        if "nomall" not in EXP:
            a.e(f"""
s_mul_i32 s{sTMP}, s{sX}, 12
s_add_u32 s{sTMP}, s{sTMP}, s{sT}
s_sub_u32 s{sTMP}, s{sTMP}, 20
s_lshl_b32 s{sTMP}, s{sTMP}, 1
s_add_u32 s{sTMP}, s{sTMP}, s{sW3}
s_lshl_b32 s{sTMP}, s{sTMP}, 13
s_add_u32 s{sTMP+1}, s{sTMP}, {192*8192}
""")
            if "tlb" in EXP:
                jobs = []
                for i in range(2):
                    jobs.append((S_WS, H1BUF + i * 262144, 524288))
                jobs.append((S_WS, OBUF, 262144))
                jobs.append((S_WS, H2BUF, 262144))
                for i in range(4):
                    jobs.append((S_WS, ACT + i * 262144, 917504))
                for i in range(2):
                    jobs.append((S_WS, KVX + i * 262144, 524288))
                jobs.append((S_OUT, 0, 262144))
                jobs.append((S_WS, SGRAN, 0))
                for i in range(2):
                    jobs.append((S_WO, i * 262144, 0))
                for srd in (S_WG, S_WU, S_WD):
                    for i in range(7):
                        jobs.append((srd, i * 262144, 0))
                a.e(f"v_lshlrev_b32 v5, 12, v1\ns_sub_u32 s{sTMP+4}, s{sT}, 20\ns_lshl_b32 s{sTMP+4}, s{sTMP+4}, 1\ns_add_u32 s{sTMP+4}, s{sTMP+4}, s{sW3}")
                for k, (srd, off, xs) in enumerate(jobs):
                    Ln = a.label("Ltl")
                    a.e(f"s_cmp_lg_u32 s{sTMP+4}, {k % 24}\ns_cbranch_scc1 {Ln}\ns_mul_i32 s{sTMP+5}, s{sX}, {xs}\ns_add_u32 s{sTMP+5}, s{sTMP+5}, {off}")
                    self.nocount(f"buffer_load_dword v2, v5, s[{srd}:{srd+3}], s{sTMP+5} offen sc1")
                    a.e(f"{Ln}:")
            a.e(f"s_cmp_lt_u32 s{sTMP}, {84*8192}\ns_cselect_b32 s{sTMP+1}, s{sTMP}, 0x7fff0000\n"
                f"s_sub_u32 s{sTMP+2}, s{sTMP}, {84*8192}\ns_cmp_lt_u32 s{sTMP+2}, {84*8192}\ns_cselect_b32 s{sTMP+2}, s{sTMP+2}, 0x7fff0000\n"
                f"s_sub_u32 s{sTMP+3}, s{sTMP}, {128*8192}\ns_min_u32 s{sTMP+3}, s{sTMP+3}, 0x7fff0000")
            self.nocount(f"buffer_load_dword v2, v10, s[{S_WG}:{S_WG+3}], s{sTMP+1} offen")
            self.nocount(f"buffer_load_dword v2, v10, s[{S_WU}:{S_WU+3}], s{sTMP+2} offen")
            self.nocount(f"buffer_load_dword v2, v10, s[{S_WO}:{S_WO+3}], s{sTMP+3} offen")
            if "mallall" in EXP:
                a.e(f"s_add_u32 s{sTMP+1}, s{sTMP}, {84*8192}\ns_add_u32 s{sTMP+2}, s{sTMP}, {192*8192}")
                self.nocount(f"buffer_load_dword v2, v10, s[{S_WG}:{S_WG+3}], s{sTMP+1} offen")
                self.nocount(f"buffer_load_dword v2, v10, s[{S_WU}:{S_WU+3}], s{sTMP+1} offen")
                self.nocount(f"buffer_load_dword v2, v10, s[{S_WD}:{S_WD+3}], s{sTMP} offen")
                self.nocount(f"buffer_load_dword v2, v10, s[{S_WD}:{S_WD+3}], s{sTMP+2} offen")
            if "mallq" in EXP:
                self.nocount(f"buffer_load_dword v2, v10, s[{S_WQKV}:{S_WQKV+3}], s{sTMP} offen")
        a.e(f"s_branch {L_j}")
        a.vm_issued, a.lg_issued = v0_, l0_

    def phase1(self):
        a = self.a
        a.e(f"""
s_lshl_b32 s{sTMP}, s{sRB}, 8
s_lshl_b32 s{sTMP+1}, s{sW3}, 6
s_add_u32 s{sTMP}, s{sTMP}, s{sTMP+1}
s_add_u32 s{sTMP}, s{sTMP}, {FL_H1}
v_and_b32 v12, 15, v1
v_lshlrev_b32 v12, 2, v12
s_lshl_b32 s{sTMP+2}, s{sX}, 19
s_and_b32 s{sTMP+1}, s{sRB}, 1
s_lshl_b32 s{sTMP+1}, s{sTMP+1}, 17
s_add_u32 s{sTMP+2}, s{sTMP+2}, s{sTMP+1}
s_xor_b32 s{sTMP+1}, s{sWH}, 1
s_lshl_b32 s{sTMP+1}, s{sTMP+1}, 18
s_add_u32 s{sTMP+2}, s{sTMP+2}, s{sTMP+1}
s_lshl_b32 s{sTMP+1}, s{sW3}, 15
s_add_u32 s{sTMP+2}, s{sTMP+2}, s{sTMP+1}
s_add_u32 s{sTMP+2}, s{sTMP+2}, {H1BUF}
v_lshrrev_b32 v8, 5, v1
v_bfe_u32 v9, v1, 2, 2
v_lshl_add_u32 v9, v8, 3, v9
v_lshlrev_b32 v4, 6, v9
v_bfe_u32 v9, v1, 4, 1
v_lshl_add_u32 v4, v9, 5, v4
v_and_b32 v9, 1, v1
v_lshl_add_u32 v4, v9, 4, v4
v_bfe_u32 v9, v1, 1, 1
v_lshl_add_u32 v4, v9, 3, v4
v_add_u32 v4, {L_WQKV}, v4
v_add_u32 v5, 32768, v4
v_add_u32 v6, 65536, v4
v_and_b32 v14, 31, v1
v_lshlrev_b32 v14, 3, v14
s_lshl_b32 s{sTMP+3}, s{sX}, 8
s_add_u32 s{sTMP+3}, s{sTMP+3}, {XID}
""")
        L = a.label("P1")
        Lo = a.label("P1o")
        a.e(f"s_mov_b32 s{sTMP+11}, 0\n{L}:")
        self.nocount(f"buffer_load_dword v13, v12, {WS}, s{sTMP} offen sc1\nbuffer_load_dwordx2 v[16:17], v14, {WS}, s{sTMP+3} offen sc1")
        a.e(f"""
s_add_u32 s{sTMP+11}, s{sTMP+11}, 1
s_cmp_gt_u32 s{sTMP+11}, 400000
s_cbranch_scc1 {Lo}
s_waitcnt vmcnt(0)
v_cmp_ne_u32 vcc, s{sTAG}, v13
s_cbranch_vccz {Lo}
s_sleep {PSLEEP}
s_branch {L}
{Lo}:
s_waitcnt vmcnt(0)
v_xor_b32 v17, s{sTAG}, v17
v_xor_b32 v16, s{sXCC}, v16
v_or_b32 v16, v16, v17
v_cmp_ne_u32 vcc, 0, v16
s_cmp_eq_u64 vcc, 0
s_cselect_b32 s{sPURE}, 1, 0
""")
        self.stamp(2)
        ACC = [16, 32, 48]
        BFv = [64, 76, 88]
        NA = 12
        AF = lambda s: ar(4 * (s % NA), 4)
        NS = 32
        PD = 10

        def body(segs, wo=False):
            if wo:
                self.w64_lane(126)
                a.e(f"""
s_and_b32 s{sTMP+5}, s{sJ}, 7
s_lshl_b32 s{sTMP+5}, s{sTMP+5}, 7
s_lshl_b32 s{sTMP+6}, s{sW3}, 13
s_add_u32 s{sTMP+5}, s{sTMP+5}, s{sTMP+6}
s_lshl_b32 s{sTMP+6}, s{sW3}, 10
""")

            def R(s):
                return [f"ds_read_b64_tr_b16 {vr(BFv[s%3]+4*seg+2*i,2)}, v{4+seg} offset:{(16*s+4*i)*64}" for seg in segs for i in range(2)]

            def M(s):
                out = []
                for seg in segs:
                    c = "0" if s == 0 else vr(ACC[seg], 16)
                    b = vr(BFv[s % 3] + 4 * seg, 4)
                    if seg < 2:
                        out.append(f"v_mfma_f32_32x32x16_bf16 {vr(ACC[seg],16)}, {b}, {AF(s)}, {c}")
                    else:
                        out.append(f"v_mfma_f32_32x32x16_bf16 {vr(ACC[seg],16)}, {AF(s)}, {b}, {c}")
                return out

            def aload(s):
                out = []
                if s % 4 == 0 and s > 0:
                    out.append(f"s_add_u32 s{sTMP+2}, s{sTMP+2}, 4096")
                out.append(f"buffer_load_dwordx4 {AF(s)}, v11, {WS}, s{sTMP+2} offen offset:{(s%4)*1024} sc1")
                return out
            vt = {}
            for s in range(PD):
                a.e("\n".join(aload(s)))
                vt[s] = a.vm_tok()
            a.e("\n".join(R(0)))
            toks = {0: a.lg_tok()}
            a.e("\n".join(R(1)))
            toks[1] = a.lg_tok()
            for i in range(NS):
                r = R(i + 2) if i + 2 < NS else []
                a.wait_lg(toks[i])
                a.wait_vm(vt[i])
                a.e("\n".join(interleave(M(i), r)))
                if r:
                    toks[i + 2] = a.lg_tok()
                if i + PD < NS:
                    a.e("\n".join(aload(i + PD)))
                    vt[i + PD] = a.vm_tok()
                if i == int(os.environ.get("PRE", "4")) and "pre" in EXP:
                    self.pretouch()
                if wo and i < 16:
                    a.e(f"s_add_u32 m0, s{sTMP+6}, {L_WO + i*4096}\ns_add_u32 s{sTMP+7}, s{sTMP+5}, {i*32768}")
                    a.e(f"buffer_load_dwordx4 v126, s[{S_WO}:{S_WO+3}], s{sTMP+7} offen lds")
        L_h = a.label("Lp1h")
        L_j = a.label("Lp1j")
        a.e(f"s_cmp_ge_u32 s{sW}, 4\ns_cbranch_scc1 {L_h}")
        v0_, l0_ = a.vm_issued, a.lg_issued
        body([1, 2, 0])
        a.e(f"s_branch {L_j}\n{L_h}:")
        a.vm_issued, a.lg_issued = v0_, l0_
        body([1, 2], wo=True)
        a.e(f"{L_j}:")
        self.stamp(3)
        a.e("s_nop 15")

    def pretouch(self):
        a = self.a
        T = 84
        a.e(f"""
s_lshl_b32 s{T}, s{sRB}, 2
s_add_u32 s{T+1}, s{T}, s{sW3}
s_lshl_b32 s{T+2}, s{T+1}, 15
s_lshl_b32 s{T+3}, s{sJ}, 11
s_add_u32 s{T+2}, s{T+2}, s{T+3}
s_lshl_b32 s{T+3}, s{sWH}, 10
s_add_u32 s{T+2}, s{T+2}, s{T+3}
s_add_u32 s{T+2}, s{T+2}, {OBUF}
s_mul_i32 s{T+4}, s{T+1}, {112*1024}
s_mul_i32 s{T+3}, s{sJ}, {7*1024}
s_add_u32 s{T+4}, s{T+4}, s{T+3}
s_lshl_b32 s{T+3}, s{sWH}, 12
s_add_u32 s{T+4}, s{T+4}, s{T+3}
s_add_u32 s{T+4}, s{T+4}, {ACT}
s_lshr_b32 s{T+3}, s{sJ}, 3
s_lshl_b32 s{T+3}, s{T+3}, 1
s_add_u32 s{T}, s{T}, s{T+3}
s_and_b32 s{T+3}, s{sW}, 1
s_add_u32 s{T}, s{T}, s{T+3}
s_lshl_b32 s{T}, s{T}, 15
s_and_b32 s{T+3}, s{sJ}, 7
s_lshl_b32 s{T+5}, s{T+3}, 12
s_add_u32 s{T+5}, s{T+5}, s{T}
s_lshr_b32 s{T+6}, s{sW}, 1
s_lshl_b32 s{T+6}, s{T+6}, 10
s_add_u32 s{T+5}, s{T+5}, s{T+6}
s_add_u32 s{T+5}, s{T+5}, {H2BUF}
s_add_u32 s{T+6}, s{T+4}, 3072
s_cmp_lt_u32 s{sW}, 4
s_cselect_b32 s{T+6}, s{T+6}, 0x7fff0000
s_cmp_eq_u32 s{sPURE}, 0
s_cselect_b32 s{T+2}, 0x7fff0000, s{T+2}
s_cselect_b32 s{T+4}, 0x7fff0000, s{T+4}
s_cselect_b32 s{T+5}, 0x7fff0000, s{T+5}
s_cselect_b32 s{T+6}, 0x7fff0000, s{T+6}
buffer_store_dwordx4 v[8:11], v11, {WS}, s{T+2} offen
buffer_store_dwordx4 v[8:11], v11, {WS}, s{T+5} offen
buffer_store_dwordx4 v[8:11], v11, {WS}, s{T+4} offen
buffer_store_dwordx4 v[8:11], v11, {WS}, s{T+4} offen offset:1024
buffer_store_dwordx4 v[8:11], v11, {WS}, s{T+4} offen offset:2048
buffer_store_dwordx4 v[8:11], v11, {WS}, s{T+6} offen
""")
        if "nopre2" not in EXP:
            a.e(f"""
s_lshl_b32 s{T+2}, s{sP}, 14
s_lshl_b32 s{T+3}, s{sW3}, 12
s_add_u32 s{T+2}, s{T+2}, s{T+3}
s_add_u32 s{T+2}, s{T+2}, {KVX}
s_and_b32 s{T+3}, s{sRB}, 1
s_cmp_lg_u32 s{T+3}, s{sWH}
s_cselect_b32 s{T+2}, 0x7fff0000, s{T+2}
s_cmp_eq_u32 s{sPURE}, 0
s_cselect_b32 s{T+2}, 0x7fff0000, s{T+2}
s_lshl_b32 s{T+4}, s{sRB}, 17
s_lshr_b32 s{T+3}, s{sJ}, 3
s_lshl_b32 s{T+3}, s{T+3}, 16
s_add_u32 s{T+4}, s{T+4}, s{T+3}
s_lshl_b32 s{T+3}, s{sW}, 13
s_add_u32 s{T+4}, s{T+4}, s{T+3}
s_and_b32 s{T+3}, s{sJ}, 7
s_lshl_b32 s{T+3}, s{T+3}, 7
s_add_u32 s{T+4}, s{T+4}, s{T+3}
v_lshrrev_b32 v124, 3, v1
v_lshlrev_b32 v124, 10, v124
v_and_b32 v125, 7, v1
v_lshl_add_u32 v124, v125, 4, v124
buffer_store_dwordx4 v[8:11], v11, {WS}, s{T+2} offen
buffer_store_dwordx4 v[8:11], v11, {WS}, s{T+2} offen offset:1024
buffer_store_dwordx4 v[8:11], v11, {WS}, s{T+2} offen offset:2048
buffer_store_dwordx4 v[8:11], v11, {WS}, s{T+2} offen offset:3072
buffer_store_dwordx4 v[8:11], v124, s[{S_OUT}:{S_OUT+3}], s{T+4} offen
""")

    def phase2(self):
        a = self.a
        QF = 140
        for r in range(8):
            a.e(f"v_cvt_pk_bf16_f32 v{64+r}, v{32+2*r}, v{33+2*r}")
        for r in range(8):
            a.e(f"v_cvt_pk_bf16_f32 v{72+r}, v{48+2*r}, v{49+2*r}")
        a.e(f"""
v_and_b32 v8, 31, v1
v_lshrrev_b32 v9, 5, v1
v_bfe_u32 v5, v1, 2, 2
v_xor_b32 v9, v9, v5
v_lshlrev_b32 v7, 6, v8
v_lshl_add_u32 v12, v9, 4, v7
v_xor_b32 v9, 2, v9
v_lshl_add_u32 v13, v9, 4, v7
s_xor_b32 s{sTMP+3}, s{sWH}, 1
s_lshl_b32 s{sTMP+3}, s{sTMP+3}, 14
s_lshl_b32 s{sTMP+4}, s{sW3}, 11
s_add_u32 s{sTMP+3}, s{sTMP+3}, s{sTMP+4}
s_add_u32 s{sTMP+1}, s{sTMP+3}, {L_K}
s_add_u32 s{sTMP+2}, s{sTMP+3}, {L_V}
v_add_u32 v8, s{sTMP+1}, v12
v_add_u32 v9, s{sTMP+1}, v13
v_add_u32 v5, s{sTMP+2}, v12
v_add_u32 v7, s{sTMP+2}, v13
s_lshl_b32 s{sTMP+1}, s{sP}, 14
s_lshl_b32 s{sTMP+2}, s{sW3}, 12
s_add_u32 s{sTMP+1}, s{sTMP+1}, s{sTMP+2}
s_add_u32 s{sTMP+1}, s{sTMP+1}, {KVX}
s_lshl_b32 s{sTMP+5}, s{sP}, 4
s_lshl_b32 s{sTMP+2}, s{sW3}, 2
s_add_u32 s{sTMP+5}, s{sTMP+5}, s{sTMP+2}
s_add_u32 s{sTMP+5}, s{sTMP+5}, {FL_KV}
v_mov_b32 v14, s{sTAG}
v_mov_b32 v15, 0
s_and_b32 s{sTMP+6}, s{sRB}, 1
""")
        L_f = a.label("Lfetch")
        L_j = a.label("Lp2j")
        a.e(f"s_cmp_lg_u32 s{sTMP+6}, s{sWH}\ns_cbranch_scc1 {L_f}")
        v0_, l0_ = a.vm_issued, a.lg_issued
        st = f"""buffer_store_dwordx4 v[64:67], v12, {WS}, s{sTMP+1} offen
buffer_store_dwordx4 v[68:71], v13, {WS}, s{sTMP+1} offen
buffer_store_dwordx4 v[72:75], v12, {WS}, s{sTMP+1} offen offset:2048
buffer_store_dwordx4 v[76:79], v13, {WS}, s{sTMP+1} offen offset:2048
"""
        self.store_sel(st + self.flag_seq(f"s{sTMP+5}"))
        a.e(f"s_barrier\ns_branch {L_j}\n{L_f}:")
        a.vm_issued, a.lg_issued = v0_, l0_
        a.e(f"s_xor_b32 s{sTMP+5}, s{sTMP+5}, 256\ns_xor_b32 s{sTMP+1}, s{sTMP+1}, {16*16384}")
        self.poll(15, f"s{sTMP+5}", 80)
        a.e("s_barrier")
        for half in range(2):
            a.e(f"s_add_u32 m0, s{sTMP+4}, {L_K + 4*2048}")
            self.nocount(f"buffer_load_dwordx4 v11, {WS}, s{sTMP+1} offen offset:{half*1024} sc1 lds")
            a.e(f"s_add_u32 m0, s{sTMP+4}, {L_V + 4*2048 - 2048}")
            self.nocount(f"buffer_load_dwordx4 v11, {WS}, s{sTMP+1} offen offset:{2048 + half*1024} sc1 lds")
        a.e(f"{L_j}:")
        a.e(f"""
ds_write_b128 v8, v[64:67]
ds_write_b128 v9, v[68:71]
ds_write_b128 v5, v[72:75]
ds_write_b128 v7, v[76:79]
""")
        Lq = a.label("Lq0")
        a.e(f"s_cmp_ge_u32 s{sW}, 4\ns_cbranch_scc1 {Lq}")
        a.e(f"s_mov_b32 s{sTMP}, {f2u(QSCALE):#x}")
        for r in range(16):
            a.e(f"v_mul_f32 v{16+r}, s{sTMP}, v{16+r}")
        for r in range(4):
            a.e(f"v_cvt_pk_bf16_f32 v{QF+r}, v{16+2*r}, v{17+2*r}")
        for r in range(4):
            a.e(f"v_cvt_pk_bf16_f32 v{80+r}, v{24+2*r}, v{25+2*r}")
        a.e(f"""
s_lshl_b32 s{sTMP+4}, s{sW}, 10
s_add_u32 s{sTMP+4}, s{sTMP+4}, {L_QX}
v_add_u32 v5, s{sTMP+4}, v11
""")
        self.nocount("ds_write_b128 v5, v[80:83]")
        a.e(f"{Lq}:")
        if "valugemv" in EXP:
            a.e(f"""
s_lshl_b32 s{sTMP}, s{sW}, 5
s_add_u32 s{sTMP}, s{sTMP}, {L_SCR}
v_lshl_add_u32 v12, v3, 3, s{sTMP}
ds_write_b64 v12, v[132:133]
""")
        a.e("s_waitcnt vmcnt(0) lgkmcnt(0)\ns_barrier")
        self.stamp(5)
        Lq = a.label("Lq")
        Lw = a.label("Lwo")
        a.e(f"s_cmp_lt_u32 s{sW}, 4\ns_cbranch_scc1 {Lw}")
        a.e(f"s_lshl_b32 s{sTMP+4}, s{sW3}, 10\ns_add_u32 s{sTMP+4}, s{sTMP+4}, {L_QX}\nv_add_u32 v5, s{sTMP+4}, v11")
        self.nocount(f"ds_read_b128 v[{QF}:{QF+3}], v5")
        if "valugemv" in EXP:
            a.e(f"s_cmp_lg_u32 s{sW}, 4\ns_cbranch_scc1 {Lw}")
            a.e(f"v_and_b32 v13, 3, v1\nv_lshlrev_b32 v13, 3, v13\nv_add_u32 v14, {L_SCR}, v13")
            self.nocount("\n".join(f"ds_read_b64 v[{80+2*w}:{81+2*w}], v14 offset:{(4+w)*32}" for w in range(2)))
            a.e(f"""
s_lshr_b32 s{sTMP+5}, s{sP}, 6
s_cmp_eq_u32 s{sTMP+5}, 2
s_cselect_b32 s{sTMP+4}, 1.0, 0
s_lshl_b32 s{sTMP+5}, s{sP}, 5
s_add_u32 s{sTMP+5}, s{sTMP+5}, {MODG}
s_waitcnt lgkmcnt(0)
v_add_f32 v80, v80, v82
v_add_f32 v81, v81, v83
""")
            self.granule(80, 81, sTMP + 4, 82)
            a.e("s_mov_b64 exec, 0xf")
            self.nocount(f"buffer_store_dwordx2 v[82:83], v13, {WS}, s{sTMP+5} offen sc1")
            a.e("s_mov_b64 exec, -1")
        a.e(f"{Lw}:")
        a.e(f"{Lq}:\ns_waitcnt lgkmcnt(0)")
        self.gu_dma_setup()
        self.gu_dma_hi([0])
        if "nomall2" not in EXP:
            Lm = a.label("Lmall")
            a.e(f"""
s_lshr_b32 s{sTMP}, s{sW}, 1
s_cmp_lg_u32 s{sTMP}, 1
s_cbranch_scc1 {Lm}
s_lshl_b32 s{sTMP}, s{sP}, 1
s_and_b32 s{sTMP+1}, s{sW}, 1
s_add_u32 s{sTMP}, s{sTMP}, s{sTMP+1}
s_lshl_b32 s{sTMP}, s{sTMP}, 13
s_add_u32 s{sTMP+1}, s{sTMP}, {84*8192}
s_sub_u32 s{sTMP+2}, s{sTMP}, {140*8192}
s_cmp_lt_u32 s{sTMP+2}, {140*8192}
s_cselect_b32 s{sTMP+2}, s{sTMP+2}, 0x7fff0000
s_add_u32 s{sTMP+2}, s{sTMP+2}, {84*8192}
s_sub_u32 s{sTMP+3}, s{sTMP}, {280*8192}
s_min_u32 s{sTMP+3}, s{sTMP+3}, 0x7fff0000
""")
            self.nocount(f"buffer_load_dword v2, v10, s[{S_WG}:{S_WG+3}], s{sTMP+1} offen")
            self.nocount(f"buffer_load_dword v2, v10, s[{S_WU}:{S_WU+3}], s{sTMP+2} offen")
            self.nocount(f"buffer_load_dword v2, v10, s[{S_WD}:{S_WD+3}], s{sTMP+3} offen")
            a.e(f"{Lm}:")
        Lep = a.label("Lep")
        a.e(f"s_mov_b32 s101, 0\ns_cmp_lg_u32 s2, 0\ns_cbranch_scc1 {Lep}\ns_cmp_lg_u32 s{sW}, 7\ns_cbranch_scc1 {Lep}\nv_lshlrev_b32 v124, 3, v1\ns_mov_b32 s{sTMP}, {XID}")
        for q in range(4):
            self.nocount(f"buffer_load_dword v{125+q}, v124, {WS}, s{sTMP} offen offset:{4 + 512*q} sc1")
        a.e(f"{Lep}:")
        SB = [16, 32]
        CN, OA, PK, MK, MX = 48, 64, 80, 96, 104
        VF = [108, 116]
        KA = 0
        a.e(f"""
v_and_b32 v8, 31, v1
v_lshrrev_b32 v9, 5, v1
v_bfe_u32 v7, v1, 2, 2
s_lshl_b32 s{sTMP}, s{sWH}, 1
v_or_b32 v12, s{sTMP}, v9
v_xor_b32 v12, v12, v7
v_lshlrev_b32 v4, 6, v8
v_lshl_add_u32 v4, v12, 4, v4
s_lshl_b32 s{sTMP+1}, s{sW3}, 11
s_add_u32 s{sTMP+2}, s{sTMP+1}, {L_K}
v_add_u32 v4, s{sTMP+2}, v4
v_and_b32 v13, 15, v1
v_lshlrev_b32 v5, 6, v13
v_xor_b32 v12, v9, v7
v_lshl_add_u32 v5, v12, 4, v5
v_xor_b32 v12, 2, v12
v_lshlrev_b32 v6, 6, v13
v_lshl_add_u32 v6, v12, 4, v6
s_lshl_b32 s{sTMP+2}, s{sWH}, 10
s_add_u32 s{sTMP+2}, s{sTMP+2}, s{sTMP+1}
s_add_u32 s{sTMP+2}, s{sTMP+2}, {L_V}
v_add_u32 v5, s{sTMP+2}, v5
v_add_u32 v6, s{sTMP+2}, v6
s_lshl_b32 s{sTMP}, s{sRB}, 2
s_add_u32 s{sTMP}, s{sTMP}, s{sW3}
s_sub_u32 s{sIMIN}, 8, s{sTMP}
s_cmp_ge_u32 s{sTMP}, 8
s_cselect_b32 s{sIMIN}, 0, s{sIMIN}
s_mul_i32 s92, s{sT}, 35840
s_min_u32 s93, s{sW}, 4
s_lshl_b32 s93, s93, 13
s_add_u32 s92, s92, s93
s_add_u32 s92, s92, {192*3584}
""")
        order = [8, 0, 7, 6, 5, 4, 3, 2, 1]
        ktok = {}
        for i in order:
            a.e(f"ds_read_b128 {ar(KA+4*i,4)}, v4 offset:{i*2048}")
            ktok[i] = a.lg_tok()
        a.e(f"v_lshlrev_b32 v12, 2, v9\nv_sub_u32 v12, v8, v12")
        for r in range(16):
            kl = 8 * (r >> 2) + (r & 3)
            a.e(f"v_cmp_le_i32 s[{sMASK+2*r}:{sMASK+2*r+1}], {kl}, v12")
        a.e(f"v_mov_b32 v13, 0xffff\nv_mov_b32 v7, 0xffff0000")
        for j in range(8):
            a.e(f"v_cndmask_b32 v{MK+j}, 0, v13, s[{sMASK+4*j}:{sMASK+4*j+1}]")
            a.e(f"v_cndmask_b32 v12, 0, v7, s[{sMASK+4*j+2}:{sMASK+4*j+3}]")
            a.e(f"v_or_b32 v{MK+j}, v{MK+j}, v12")
        a.e(f"v_and_b32 v12, 27, v1\nv_cmp_eq_u32 vcc, 16, v12\nv_mov_b32 v13, 0x3f803f80")
        for r in range(16):
            a.e(f"v_cndmask_b32 v{VF[0]+r}, 0, v13, vcc")
        Q = vr(QF, 4)

        touches = [None, (S_WG, 0), None, (S_WU, 0)]

        def touch_one():
            if "atouch" not in EXP or not touches:
                return
            t_ = touches.pop(0)
            if t_ is None:
                return
            srd, off = t_
            Ln = a.label("Lnt")
            a.e(f"s_cmp_gt_u32 s{sW}, 4\ns_cbranch_scc1 {Ln}\ns_add_u32 s93, s92, {off}")
            self.nocount(f"buffer_load_dword v2, v10, s[{srd}:{srd+3}], s93 offen")
            a.e(f"{Ln}:")

        def smfma(buf, i, c):
            return f"v_mfma_f32_32x32x16_bf16 {vr(SB[buf],16)}, {ar(KA+4*i,4)}, {Q}, {c}"

        def fix_trail():
            Ln = a.label("Lnt")
            a.e(f"s_cmp_eq_u32 s{sIMIN}, 0\ns_cbranch_scc1 {Ln}")
            a.e("s_nop 12")
            for r in range(16):
                a.e(f"v_mov_b32 v{SB[1]+r}, {NEG_BIG:#x}")
            a.e(f"{Ln}:\ns_nop 12")

        def merge():
            for r in range(16):
                a.e(f"v_cndmask_b32 v{SB[0]+r}, v{SB[1]+r}, v{SB[0]+r}, s[{sMASK+2*r}:{sMASK+2*r+1}]")

        touch_one()
        a.wait_lg(ktok[0])
        a.e(smfma(0, 8, "0"))
        a.e(smfma(1, 0, "0"))
        fix_trail()
        merge()
        a.wait_lg(ktok[7])
        a.e(smfma(1, 7, "0"))
        a.e(f"v_max3_f32 v{MX}, v{SB[0]}, v{SB[0]+1}, v{SB[0]+2}")
        for r in range(3, 15, 2):
            a.e(f"v_max3_f32 v{MX}, v{MX}, v{SB[0]+r}, v{SB[0]+r+1}")
        a.e(f"v_max_f32 v{MX}, v{MX}, v{SB[0]+15}")
        Le1 = a.label("Lp1e")
        buf = 1
        for i in range(7, 0, -1):
            a.e(f"s_cmp_gt_u32 s{sIMIN}, {i}\ns_cbranch_scc1 {Le1}")
            if i > 1:
                a.wait_lg(ktok[i - 1])
                a.e(smfma(1 - buf, i - 1, "0"))
            for r in range(0, 16, 2):
                a.e(f"v_max3_f32 v{MX}, v{MX}, v{SB[buf]+r}, v{SB[buf]+r+1}")
            buf = 1 - buf
        a.e(f"{Le1}:\ns_waitcnt lgkmcnt(0)\ns_nop 12")
        self.group_allsum([MX], [MX + 1], op="v_max_f32", stages=("32",))
        for r in range(16):
            a.e(f"v_sub_f32 v{CN+r}, 0, v{MX}")
        C = vr(CN, 16)

        def vread(b, i):
            return [f"s_mov_b32 exec_lo, 0xffff", f"s_mov_b32 exec_hi, 0xffff",
                    f"ds_read_b128 {vr(VF[b],4)}, v5 offset:{i*2048}", f"ds_read_b128 {vr(VF[b]+4,4)}, v6 offset:{i*2048}",
                    "s_mov_b64 exec, -1"]

        def expack(buf, dst):
            for r in range(16):
                a.e(f"v_exp_f32 v{SB[buf]+r}, v{SB[buf]+r}")
            for j in range(8):
                a.e(f"v_cvt_pk_bf16_f32 v{dst+j}, v{SB[buf]+2*j}, v{SB[buf]+2*j+1}")

        def pv(vb, p, first=False):
            a.e(f"v_mfma_f32_32x32x16_bf16 {vr(OA,16)}, {vr(VF[vb],4)}, {vr(p,4)}, {'0' if first else vr(OA,16)}")
            a.e(f"v_mfma_f32_32x32x16_bf16 {vr(OA,16)}, {vr(VF[vb]+4,4)}, {vr(p+4,4)}, {vr(OA,16)}")

        touch_one()
        a.e("\n".join(vread(0, 8) + vread(1, 0)))
        tv = a.lg_tok()
        a.e(smfma(0, 8, C))
        a.e(smfma(1, 0, C))
        fix_trail()
        merge()
        a.e(smfma(1, 7, C))
        expack(0, PK)
        for j in range(8):
            a.e(f"v_and_b32 v{PK+8+j}, v{PK+j}, v{MK+j}")
        for j in range(8):
            a.e(f"v_xor_b32 v{PK+j}, v{PK+j}, v{PK+8+j}")
        a.wait_lg(tv)
        pv(0, PK + 8, first=True)
        Lnt = a.label("Lnpv")
        a.e(f"s_cmp_lg_u32 s{sIMIN}, 0\ns_cbranch_scc1 {Lnt}")
        pv(1, PK)
        a.e(f"{Lnt}:")
        Le2 = a.label("Lp2e")
        buf = 1
        vb = 0
        a.e("\n".join(vread(0, 7)))
        for i in range(7, 0, -1):
            a.e(f"s_cmp_gt_u32 s{sIMIN}, {i}\ns_cbranch_scc1 {Le2}")
            tv = a.lg_tok()
            if i > 1:
                a.e(smfma(1 - buf, i - 1, C))
                a.e("\n".join(vread(1 - vb, i - 1)))
            if i in (6, 4):
                touch_one()
            p = PK + 8 * (i & 1)
            expack(buf, p)
            a.wait_lg(tv)
            pv(vb, p)
            buf = 1 - buf
            vb = 1 - vb
        a.e(f"{Le2}:\ns_waitcnt lgkmcnt(0)\ns_nop 15")
        a.e(f"v_rcp_f32 v{MX}, v{OA+8}")
        for r in range(8):
            a.e(f"v_mul_f32 v{OA+r}, v{MX}, v{OA+r}")
        for j in range(4):
            a.e(f"v_cvt_pk_bf16_f32 v{PK+j}, v{OA+2*j}, v{OA+2*j+1}")
        a.e(f"""
s_lshl_b32 s{sTMP}, s{sRB}, 2
s_add_u32 s{sTMP}, s{sTMP}, s{sW3}
s_lshl_b32 s{sTMP}, s{sTMP}, 15
s_lshl_b32 s{sTMP+1}, s{sJ}, 11
s_add_u32 s{sTMP}, s{sTMP}, s{sTMP+1}
s_lshl_b32 s{sTMP+1}, s{sWH}, 10
s_add_u32 s{sTMP}, s{sTMP}, s{sTMP+1}
s_add_u32 s{sTMP}, s{sTMP}, {OBUF}
s_lshl_b32 s{sTMP+1}, s{sP}, 5
s_lshl_b32 s{sTMP+2}, s{sW}, 2
s_add_u32 s{sTMP+1}, s{sTMP+1}, s{sTMP+2}
s_add_u32 s{sTMP+1}, s{sTMP+1}, {FL_O}
v_mov_b32 v14, s{sTAG}
v_mov_b32 v15, 0
""")
        self.store_sel(f"buffer_store_dwordx4 v[{PK}:{PK+3}], v11, {WS}, s{sTMP} offen\n" + self.flag_seq(f"s{sTMP+1}"))
        Lep = a.label("Lep2")
        a.e(f"""
s_cmp_lg_u32 s2, 0
s_cbranch_scc1 {Lep}
s_cmp_lg_u32 s{sW}, 7
s_cbranch_scc1 {Lep}
v_xor_b32 v125, s{sTAG}, v125
v_xor_b32 v126, s{sTAG}, v126
v_xor_b32 v127, s{sTAG}, v127
v_xor_b32 v128, s{sTAG}, v128
v_or3_b32 v125, v125, v126, v127
v_or_b32 v125, v125, v128
v_cmp_ne_u32 vcc, 0, v125
s_cbranch_vccnz {Lep}
s_mov_b32 s101, 1
s_mov_b64 exec, 1
""")
        self.nocount(f"buffer_store_dword v14, v15, {WS}, 0 offen offset:{EPOCH} sc1")
        a.e(f"s_mov_b64 exec, -1\n{Lep}:")
        self.stamp(6)
        self.gu_dma_setup(lanes=False)
        a.e("s_barrier")

    def w64_lane(self, vd, stride=1024):
        self.a.e(f"""
v_lshrrev_b32 v{vd}, 3, v1
v_mul_u32_u24 v{vd}, {stride}, v{vd}
v_and_b32 v2, 7, v1
v_bfe_u32 v{vd+1}, v1, 4, 1
v_lshlrev_b32 v{vd+1}, 2, v{vd+1}
v_xor_b32 v2, v2, v{vd+1}
v_lshl_add_u32 v{vd}, v2, 4, v{vd}
""")

    def tr64_bases(self, vd):
        self.a.e(f"""
v_lshrrev_b32 v8, 5, v1
v_bfe_u32 v9, v1, 2, 2
v_lshl_add_u32 v8, v8, 3, v9
v_lshlrev_b32 v8, 7, v8
v_bfe_u32 v12, v1, 4, 1
v_lshl_add_u32 v8, v12, 5, v8
v_and_b32 v12, 1, v1
v_lshl_add_u32 v8, v12, 4, v8
v_bfe_u32 v12, v1, 1, 1
v_lshl_add_u32 v8, v12, 3, v8
v_lshrrev_b32 v9, 1, v9
v_lshl_add_u32 v{vd}, v9, 6, v8
v_xor_b32 v9, 1, v9
v_lshl_add_u32 v{vd+1}, v9, 6, v8
""")

    def gu_dma_setup(self, lanes=True):
        a = self.a
        a.e(f"""
s_cmp_ge_u32 s{sW3}, 2
s_cselect_b32 s{S_SEL}, s{S_WU}, s{S_WG}
s_cselect_b32 s{S_SEL+1}, s{S_WU+1}, s{S_WG+1}
s_cselect_b32 s76, {GU_UP}, 0
s_mov_b32 s{S_SEL+2}, 1835008
s_mov_b32 s{S_SEL+3}, 0x20000
s_mov_b32 s84, 4682
s_and_b32 s86, s{sW}, 1
s_mul_i32 s85, s86, {32*3584}
s_mul_i32 s87, s{sJ}, 224
s_add_u32 s85, s85, s87
s_mul_i32 s86, s86, 7168
s_add_u32 s76, s76, s86
""")
        for i in range(7 if lanes else 0):
            a.e(f"""
v_add_u32 v12, {64*i}, v1
v_mul_u32_u24 v13, s84, v12
v_lshrrev_b32 v13, 16, v13
v_mul_u32_u24 v{144+i}, 14, v13
v_sub_u32 v12, v12, v{144+i}
v_mul_u32_u24 v{144+i}, 3584, v13
v_lshl_add_u32 v{144+i}, v12, 4, v{144+i}
""")

    def gu_dma(self, chunk):
        out = []
        for i in range(7):
            out.append(f"s_add_u32 s86, s85, {chunk*64*3584}\ns_add_u32 m0, s76, {GU_SLOT[chunk%4] + i*1024}\n"
                       f"buffer_load_dwordx4 v{144+i}, s[{S_SEL}:{S_SEL+3}], s86 offen{NTG} lds")
        return out

    def gu_dma_hi(self, chunks):
        a = self.a
        Ln = a.label("Lgh")
        a.e(f"s_cmp_lt_u32 s{sW}, 4\ns_cbranch_scc1 {Ln}")
        for c in chunks:
            self.nocount("\n".join(self.gu_dma(c)))
        a.e(f"{Ln}:")

    def reduce_scatter4(self, ACC, base, dst):
        a = self.a
        a.e(f"""
s_and_b32 s{sTMP+1}, s{sW}, 1
s_lshl_b32 s{sTMP+1}, s{sTMP+1}, 15
s_lshr_b32 s{sTMP+5}, s{sW}, 1
s_lshl_b32 s{sTMP+6}, s{sTMP+5}, 11
s_add_u32 s{sTMP+6}, s{sTMP+6}, s{sTMP+1}
s_add_u32 s{sTMP+6}, s{sTMP+6}, {base}
v_add_u32 v12, s{sTMP+6}, v11
s_lshl_b32 s{sTMP+6}, s{sTMP+5}, 13
s_add_u32 s{sTMP+6}, s{sTMP+6}, s{sTMP+1}
s_add_u32 s{sTMP+6}, s{sTMP+6}, {base}
v_add_u32 v13, s{sTMP+6}, v11
""")
        for q in range(4):
            for hf in range(2):
                a.e(f"ds_write_b128 v12, {vr(ACC+8*q+4*hf,4)} offset:{q*8192 + hf*1024}")
        a.e("s_waitcnt lgkmcnt(0)\ns_barrier")
        for src in range(4):
            for hf in range(2):
                a.e(f"ds_read_b128 {vr(ACC+8*src+4*hf,4)}, v13 offset:{src*2048 + hf*1024}")
        a.e("s_waitcnt lgkmcnt(0)")
        for r in range(8):
            a.e(f"v_add_f32 v{ACC+r}, v{ACC+r}, v{ACC+8+r}\nv_add_f32 v{ACC+16+r}, v{ACC+16+r}, v{ACC+24+r}")
        for r in range(8):
            a.e(f"v_add_f32 v{dst+r}, v{ACC+r}, v{ACC+16+r}")

    def phase3(self):
        a = self.a
        a.e(f"""
s_lshr_b32 s{sTMP+3}, s{sJ}, 3
s_lshl_b32 s{sTMP+3}, s{sTMP+3}, 1
s_and_b32 s{sTMP+1}, s{sW}, 1
s_add_u32 s{sTMP+3}, s{sTMP+3}, s{sTMP+1}
s_lshr_b32 s{sTMP+5}, s{sW}, 1
s_and_b32 s{sTMP+7}, s{sTMP+5}, 1
s_lshl_b32 s{sTMP}, s{sRB}, 9
s_lshl_b32 s{sTMP+1}, s{sTMP+3}, 2
s_add_u32 s{sTMP}, s{sTMP}, s{sTMP+1}
s_lshl_b32 s{sTMP+1}, s{sTMP+5}, 7
s_add_u32 s89, s{sTMP}, s{sTMP+1}
s_lshl_b32 s{sTMP+1}, s{sTMP+7}, 8
s_add_u32 s{sTMP}, s{sTMP}, s{sTMP+1}
s_add_u32 s{sTMP}, s{sTMP}, {FL_O}
v_and_b32 v14, 3, v1
v_lshlrev_b32 v14, 5, v14
v_bfe_u32 v15, v1, 2, 1
v_lshl_add_u32 v153, v15, 4, v14
v_and_b32 v14, 7, v1
v_lshlrev_b32 v14, 5, v14
v_bfe_u32 v15, v1, 3, 1
v_lshl_add_u32 v14, v15, 4, v14
s_lshl_b32 s88, s{sRB}, 2
s_add_u32 s88, s88, s{sTMP+3}
s_lshl_b32 s{sTMP+2}, s88, 15
s_lshl_b32 s{sTMP+1}, s{sTMP+7}, 14
s_add_u32 s{sTMP+2}, s{sTMP+2}, s{sTMP+1}
s_add_u32 s{sTMP+2}, s{sTMP+2}, {OBUF}
""")
        self.tr64_bases(154)
        a.e(f"""
s_cmp_ge_u32 s{sW}, 4
s_cselect_b64 vcc, -1, 0
v_cndmask_b32 v4, v154, v155, vcc
s_lshl_b32 s{sTMP+1}, s{sTMP+7}, 15
s_add_u32 s{sTMP+1}, s{sTMP+1}, {L_WO}
v_add_u32 v4, s{sTMP+1}, v4
v_and_b32 v12, 31, v1
v_lshlrev_b32 v12, 10, v12
v_lshrrev_b32 v13, 5, v1
v_lshl_add_u32 v151, v13, 4, v12
s_lshl_b32 s80, s88, 15
s_and_b32 s{sTMP+6}, s{sJ}, 7
s_lshl_b32 s{sTMP+6}, s{sTMP+6}, 7
s_add_u32 s80, s80, s{sTMP+6}
s_lshl_b32 s{sTMP+1}, s{sTMP+5}, 5
s_add_u32 s80, s80, s{sTMP+1}
v_lshlrev_b32 v12, 11, v3
v_and_b32 v13, 15, v1
v_lshl_add_u32 v12, v13, 4, v12
s_lshl_b32 s{sTMP+6}, s{sTMP+6}, 1
s_add_u32 s{sTMP+6}, s{sTMP+6}, {MODG}
""")
        XR = 124
        a.e(f"buffer_load_dwordx4 v[{XR}:{XR+3}], v151, s[{S_X}:{S_X+3}], s80 offen")
        Lt = a.label("Ltab")
        L = a.label("T")
        Lo = a.label("To")
        a.e(f"s_cmp_lg_u32 s{sW}, 2\ns_cbranch_scc1 {Lt}\ns_mov_b32 s{sTMP+11}, 0\n{L}:")
        self.nocount(f"buffer_load_dwordx4 v[96:99], v12, {WS}, s{sTMP+6} offen sc1")
        a.e(f"""
s_add_u32 s{sTMP+11}, s{sTMP+11}, 1
s_cmp_gt_u32 s{sTMP+11}, 400000
s_cbranch_scc1 {Lo}
s_waitcnt vmcnt(0)
v_xor_b32 v100, s{sTAG}, v97
v_xor_b32 v101, s{sTAG}, v99
v_or_b32 v100, v100, v101
v_cmp_ne_u32 vcc, 0, v100
s_cbranch_vccnz {L}
{Lo}:
s_waitcnt vmcnt(0)
v_and_b32 v97, 0xffff0000, v96
v_lshlrev_b32 v96, 16, v96
v_and_b32 v99, 0xffff0000, v98
v_lshlrev_b32 v98, 16, v98
v_add_u32 v12, {L_TAB}, v11
""")
        self.nocount("ds_write_b128 v12, v[96:99]")
        a.e(f"{Lt}:")
        ACC = 16
        BF = [32, 36, 40]
        AF = lambda s: ar(4 * s, 4)

        def R(s):
            return [f"ds_read_b64_tr_b16 {vr(BF[s%3]+2*i,2)}, v4 offset:{(16*s+4*i)*128}" for i in range(2)]

        a.e("s_waitcnt lgkmcnt(0)")
        toks = {}
        for s in range(2):
            a.e("\n".join(R(s)))
            toks[s] = a.lg_tok()
        self.poll(14, f"s{sTMP}", 15)
        self.stamp(7)
        vt = {}
        for s in range(16):
            if s % 4 == 0 and s:
                a.e(f"s_add_u32 s{sTMP+2}, s{sTMP+2}, 4096")
            a.e(f"buffer_load_dwordx4 {AF(s)}, v11, {WS}, s{sTMP+2} offen offset:{(s%4)*1024}")
            vt[s] = a.vm_tok()
        for s in range(16):
            a.wait_lg(toks[s])
            a.wait_vm(vt[s])
            a.e(f"v_mfma_f32_32x32x16_bf16 {vr(ACC,16)}, {vr(BF[s%3],4)}, {AF(s)}, {'0' if s == 0 else vr(ACC,16)}")
            if s + 2 < 16:
                a.e("\n".join(R(s + 2)))
                toks[s + 2] = a.lg_tok()
        self.stamp(18)
        a.e(f"""
s_and_b32 s{sTMP+1}, s{sW}, 1
s_lshl_b32 s{sTMP+1}, s{sTMP+1}, 14
s_lshl_b32 s{sTMP+6}, s{sWH}, 13
s_add_u32 s{sTMP+1}, s{sTMP+1}, s{sTMP+6}
s_add_u32 s{sTMP+1}, s{sTMP+1}, {L_RED}
s_lshl_b32 s{sTMP+6}, s{sTMP+7}, 11
s_add_u32 s{sTMP+6}, s{sTMP+6}, s{sTMP+1}
v_add_u32 v12, s{sTMP+6}, v11
s_lshl_b32 s{sTMP+6}, s{sTMP+7}, 12
s_add_u32 s{sTMP+6}, s{sTMP+6}, s{sTMP+1}
v_add_u32 v13, s{sTMP+6}, v11
""")
        for q in range(2):
            for hf in range(2):
                a.e(f"ds_write_b128 v12, {vr(ACC+8*q+4*hf,4)} offset:{q*4096 + hf*1024}")
        a.e("s_waitcnt lgkmcnt(0)\ns_barrier")
        self.stamp(19)
        if "g12a" in EXP or not ("g12b" in EXP or "g12c" in EXP):
            self.gu_dma_hi([1, 2])
        for src in range(2):
            for hf in range(2):
                a.e(f"ds_read_b128 {vr(ACC+8*src+4*hf,4)}, v13 offset:{src*2048 + hf*1024}")
        GA, SBv, G2 = 56, 64, 72
        a.e(f"""
v_lshrrev_b32 v13, 5, v1
v_lshlrev_b32 v13, 5, v13
s_lshl_b32 s{sTMP+5}, s{sTMP+5}, 6
s_add_u32 s{sTMP+5}, s{sTMP+5}, {L_TAB}
v_add_u32 v13, s{sTMP+5}, v13
ds_read_b128 {vr(GA,4)}, v13
ds_read_b128 {vr(GA+4,4)}, v13 offset:16
ds_read_b128 {vr(SBv,4)}, v13 offset:256
ds_read_b128 {vr(SBv+4,4)}, v13 offset:272
ds_read_b128 {vr(G2,4)}, v13 offset:512
ds_read_b128 {vr(G2+4,4)}, v13 offset:528
ds_read_b128 a[88:91], v13 offset:768
ds_read_b128 a[92:95], v13 offset:784
""")
        X1 = 96
        X1P = 132
        for q in range(4):
            a.e(f"v_lshlrev_b32 v{X1+2*q}, 16, v{XR+q}\nv_and_b32 v{X1+1+2*q}, 0xffff0000, v{XR+q}")
        a.e("s_waitcnt lgkmcnt(6)")
        for r in range(8):
            a.e(f"v_add_f32 v{ACC+r}, v{ACC+r}, v{ACC+8+r}")
        for r in range(8):
            a.e(f"v_fmac_f32 v{X1+r}, v{GA+r}, v{ACC+r}")
        for q in range(4):
            a.e(f"v_cvt_pk_bf16_f32 v{X1P+q}, v{X1+2*q}, v{X1+1+2*q}")
        for q in range(4):
            a.e(f"v_lshlrev_b32 v{X1+2*q}, 16, v{X1P+q}\nv_and_b32 v{X1+1+2*q}, 0xffff0000, v{X1P+q}")
        a.e(f"v_add_f32 v16, v{X1}, v{X1+1}\nv_mul_f32 v17, v{X1}, v{X1}")
        for r in range(2, 8):
            a.e(f"v_add_f32 v16, v16, v{X1+r}")
        for r in range(1, 8):
            a.e(f"v_fmac_f32 v17, v{X1+r}, v{X1+r}")
        self.group_allsum([16, 17], [20, 21], stages=("32",))
        a.e(f"""
v_and_b32 v12, 31, v1
v_lshlrev_b32 v12, 5, v12
s_and_b32 s{sTMP+1}, s{sW}, 1
s_lshl_b32 s{sTMP+1}, s{sTMP+1}, 10
s_add_u32 s{sTMP+1}, s{sTMP+1}, {L_ST}
v_add_u32 v12, s{sTMP+1}, v12
s_lshr_b32 s{sTMP+5}, s{sW}, 1
s_lshl_b32 s{sTMP+5}, s{sTMP+5}, 3
v_add_u32 v13, s{sTMP+5}, v12
ds_write_b64 v13, v[16:17]
s_waitcnt lgkmcnt(0)
s_barrier
""")
        if self.dump:
            a.e(f"s_add_u32 s{sTMP+7}, s80, {X1DBG}")
            self.nocount(f"buffer_store_dwordx4 v[{X1P}:{X1P+3}], v151, {WS}, s{sTMP+7} offen")
        self.stamp(20)
        if "g12b" in EXP:
            self.gu_dma_hi([1, 2])
        L_j = a.label("Lp3j")
        a.e(f"s_cmp_ge_u32 s{sW}, 2\ns_cbranch_scc1 {L_j}")
        v0_, l0_ = a.vm_issued, a.lg_issued
        a.e(f"""
ds_read_b128 v[20:23], v12
ds_read_b128 v[24:27], v12 offset:16
v_mov_b32 v18, s{sTAG}
v_mov_b32 v19, s{sTAG}
v_and_b32 v13, 31, v1
v_lshlrev_b32 v13, 7, v13
s_lshl_b32 s{sTMP+5}, s88, 12
s_add_u32 s{sTMP+5}, s{sTMP+5}, {SGRAN}
s_and_b32 s{sTMP+6}, s{sJ}, 7
s_lshl_b32 s{sTMP+6}, s{sTMP+6}, 4
s_add_u32 s{sTMP+6}, s{sTMP+6}, s{sTMP+5}
v_lshrrev_b32 v2, 5, v1
v_lshl_add_u32 v2, v2, 6, v13
s_waitcnt lgkmcnt(0)
v_add_f32 v16, v20, v22
v_add_f32 v17, v21, v23
v_add_f32 v24, v24, v26
v_add_f32 v25, v25, v27
v_add_f32 v16, v16, v24
v_add_f32 v17, v17, v25
""")
        self.store_sel(f"s_mov_b32 exec_hi, 0\nbuffer_store_dwordx4 v[16:19], v13, {WS}, s{sTMP+6} offen\ns_mov_b64 exec, -1")
        L = a.label("SG")
        Lo = a.label("SGo")
        a.e(f"s_mov_b32 s{sTMP+11}, 0\n{L}:")
        self.nocount("\n".join(f"buffer_load_dwordx4 v[{20+4*q}:{23+4*q}], v2, {WS}, s{sTMP+5} offen offset:{16*q} sc1" for q in range(4)))
        a.e(f"""
s_add_u32 s{sTMP+11}, s{sTMP+11}, 1
s_cmp_gt_u32 s{sTMP+11}, 400000
s_cbranch_scc1 {Lo}
s_waitcnt vmcnt(0)
v_xor_b32 v36, s{sTAG}, v22
v_xor_b32 v37, s{sTAG}, v26
v_or_b32 v36, v36, v37
v_xor_b32 v37, s{sTAG}, v30
v_or_b32 v36, v36, v37
v_xor_b32 v37, s{sTAG}, v34
v_or_b32 v36, v36, v37
v_cmp_ne_u32 vcc, 0, v36
s_cbranch_vccnz {L}
{Lo}:
s_waitcnt vmcnt(0)
v_add_f32 v16, v20, v24
v_add_f32 v17, v21, v25
v_add_f32 v28, v28, v32
v_add_f32 v29, v29, v33
v_add_f32 v16, v16, v28
v_add_f32 v17, v17, v29
""")
        self.group_allsum([16, 17], [20, 21], stages=("32",))
        a.e(f"""
v_mul_f32 v16, {f2u(1/512):#x}, v16
v_mul_f32 v17, {f2u(1/512):#x}, v17
v_fma_f32 v17, -v16, v16, v17
v_max_f32 v17, 0, v17
v_add_f32 v17, {f2u(1e-5):#x}, v17
v_rsq_f32 v18, v17
v_mul_f32 v19, v16, v18
v_sub_f32 v19, 0, v19
ds_write_b64 v12, v[18:19] offset:2048
s_waitcnt lgkmcnt(0)
""")
        self.stamp(21)
        a.vm_issued, a.lg_issued = v0_, l0_
        a.e(f"{L_j}:")
        a.e(f"""
s_lshl_b32 s{sTMP+5}, s88, 15
s_and_b32 s{sTMP+6}, s{sJ}, 7
s_lshl_b32 s{sTMP+6}, s{sTMP+6}, 12
s_add_u32 s{sTMP+5}, s{sTMP+5}, s{sTMP+6}
s_lshr_b32 s{sTMP+6}, s{sW}, 1
s_lshl_b32 s{sTMP+6}, s{sTMP+6}, 10
s_add_u32 s{sTMP+5}, s{sTMP+5}, s{sTMP+6}
s_add_u32 s{sTMP+5}, s{sTMP+5}, {H2BUF}
s_lshl_b32 s{sTMP+6}, s{sP}, 5
s_lshl_b32 s{sTMP+7}, s{sW}, 2
s_add_u32 s{sTMP+6}, s{sTMP+6}, s{sTMP+7}
s_add_u32 s{sTMP+6}, s{sTMP+6}, {FL_H2}
v_mov_b32 v14, s{sTAG}
v_mov_b32 v15, 0
s_barrier
ds_read_b64 v[18:19], v12 offset:2048
s_waitcnt lgkmcnt(0)
""")
        for r in range(8):
            a.e(f"v_fma_f32 v{X1+r}, v{X1+r}, v18, v19")
        for q in range(4):
            a.e(f"v_cvt_pk_bf16_f32 v{32+q}, v{X1+2*q}, v{X1+1+2*q}")
        for q in range(4):
            a.e(f"v_lshlrev_b32 v{X1+2*q}, 16, v{32+q}\nv_and_b32 v{X1+1+2*q}, 0xffff0000, v{32+q}")
        for r in range(8):
            a.e(f"v_fma_f32 v{X1+r}, v{X1+r}, v{G2+r}, v{SBv+r}")
        for q in range(4):
            a.e(f"v_cvt_pk_bf16_f32 v{32+q}, v{X1+2*q}, v{X1+1+2*q}")
        self.store_sel(f"buffer_store_dwordx4 v[32:35], v11, {WS}, s{sTMP+5} offen\n" + self.flag_seq(f"s{sTMP+6}"))
        self.stamp(8)

    def d_dma_setup(self):
        a = self.a
        self.w64_lane(12)
        a.e(f"""
v_mov_b32 v152, v12
s_and_b32 s81, s{sJ}, 7
s_lshl_b32 s81, s81, 7
s_lshl_b32 s83, s{sW}, 13
s_add_u32 s81, s81, s83
s_lshl_b32 s82, s{sW}, 10
""")

    def d_dma(self, c):
        return [f"s_add_u32 m0, s82, {D_SLOT[c%4] + q*8192}\ns_add_u32 s83, s81, {(448*q + 64*c)*1024}\n"
                f"buffer_load_dwordx4 v152, s[{S_WD}:{S_WD+3}], s83 offen{NTD} lds" for q in range(4)]

    def phase4(self):
        a = self.a
        self.d_dma_setup()
        a.e(f"""
s_lshl_b32 s{sTMP}, s{sRB}, 9
s_lshr_b32 s{sTMP+1}, s{sW3}, 1
s_lshl_b32 s{sTMP+1}, s{sTMP+1}, 8
s_add_u32 s{sTMP}, s{sTMP}, s{sTMP+1}
s_and_b32 s{sTMP+1}, s{sW3}, 1
s_lshl_b32 s{sTMP+1}, s{sTMP+1}, 2
s_add_u32 s{sTMP}, s{sTMP}, s{sTMP+1}
s_add_u32 s{sTMP}, s{sTMP}, {FL_H2}
v_and_b32 v14, 7, v1
v_lshlrev_b32 v14, 5, v14
v_bfe_u32 v15, v1, 3, 2
v_lshl_add_u32 v14, v15, 3, v14
s_lshl_b32 s{sTMP+2}, s{sRB}, 2
s_add_u32 s{sTMP+2}, s{sTMP+2}, s{sW3}
s_lshl_b32 s{sTMP+2}, s{sTMP+2}, 15
s_add_u32 s{sTMP+2}, s{sTMP+2}, {H2BUF}
v_lshrrev_b32 v8, 5, v1
v_bfe_u32 v9, v1, 2, 2
v_lshl_add_u32 v9, v8, 3, v9
v_mul_u32_u24 v7, 224, v9
v_bfe_u32 v9, v1, 4, 1
v_mul_u32_u24 v9, {GU_UP}, v9
v_add_u32 v7, v7, v9
v_and_b32 v9, 1, v1
v_lshl_add_u32 v7, v9, 4, v7
v_bfe_u32 v9, v1, 1, 1
v_lshl_add_u32 v7, v9, 3, v7
v_add_u32 v4, {GU_SLOT[0]}, v7
v_add_u32 v5, {GU_SLOT[1]}, v7
v_add_u32 v6, {GU_SLOT[2]}, v7
s_barrier
""")
        ACC = [16 + 16 * T for T in range(7)]
        BF = [0, 28]
        NA = 8
        PD = 6
        slot = lambda i: ar(56 + 4 * (i % NA), 4)

        def body(kp):
            def aload(i):
                s_ = 2 * i + kp
                out = []
                if i % 2 == 0 and i > 0:
                    out.append(f"s_add_u32 s{sTMP+2}, s{sTMP+2}, 4096")
                out.append(f"buffer_load_dwordx4 {slot(i)}, v11, {WS}, s{sTMP+2} offen offset:{(s_%4)*1024} sc1")
                return out

            def R(i):
                s_ = 2 * i + kp
                c, sl = s_ // 4, s_ % 4
                return [f"ds_read_b64_tr_b16 {ar(BF[i%2]+4*T+2*ii,2)}, v{4 + c%4} offset:{(16*sl+4*ii)*224 + T*32}" for T in range(7) for ii in range(2)]

            def M(i):
                return [f"v_mfma_f32_32x32x16_bf16 {vr(ACC[T],16)}, {ar(BF[i%2]+4*T,4)}, {slot(i)}, {'0' if i == 0 else vr(ACC[T],16)}" for T in range(7)]
            toks = {}
            a.e("\n".join(R(0)))
            toks[0] = a.lg_tok()
            self.poll(14, f"s{sTMP}", 15)
            self.stamp(9)
            vt = {}
            for i in range(PD):
                a.e("\n".join(aload(i)))
                vt[i] = a.vm_tok()
            gtok = {}
            mine = lambda c: (c & 1) != kp
            pend = []
            if "g12c" in EXP:
                for g in self.gu_dma(1 if mine(1) else 2):
                    a.e(g)
            gtok[1 if mine(1) else 2] = a.vm_tok()
            if mine(3):
                pend += [(3, g) for g in self.gu_dma(3)]
            for i in range(16):
                c = i // 2
                a.wait_lg(toks[i])
                if i % 2 == 1 and c + 1 < 8:
                    if mine(c + 1):
                        assert (c + 1) in gtok and not any(p[0] == c + 1 for p in pend)
                        a.wait_vm(gtok[c + 1])
                    a.e("s_barrier")
                    if c + 4 < 8 and mine(c + 4):
                        pend += [(c + 4, g) for g in self.gu_dma(c + 4)]
                    if c == 6:
                        pend += [(100, g) for g in self.d_dma(0)]
                    if c == 4 and "nodt" not in EXP:
                        pend += [(101, f"s_mul_i32 s92, s{sT}, 57344\ns_lshl_b32 s93, s{sW}, 13\ns_add_u32 s92, s92, s93\n"
                                       f"buffer_load_dword v2, v10, s[{S_WD}:{S_WD+3}], s92 offen")]
                r = R(i + 1) if i < 15 else []
                a.wait_vm(vt[i])
                extra = []
                if i + PD < 16:
                    extra.append(("a", i + PD))
                for _ in range(3):
                    if pend:
                        extra.append(("d", pend.pop(0)))
                m = M(i)
                seq = interleave(m, r)
                pos = [k for k, x in enumerate(seq) if x.startswith("v_mfma")]
                ins_at = {pos[min(2 * n + 1, len(pos) - 1)]: e for n, e in enumerate(extra)}
                for k, x in enumerate(seq):
                    a.e(x)
                    if k in ins_at:
                        kind, val = ins_at[k]
                        if kind == "a":
                            a.e("\n".join(aload(val)))
                            vt[val] = a.vm_tok()
                        else:
                            a.e(val[1])
                            gtok[val[0]] = a.vm_tok()
                if r:
                    toks[i + 1] = a.lg_tok()
            assert not pend
            self.stamp(17)
            keep = [0, 1, 2, 3] if kp == 0 else [4, 5, 6]
            give = [4, 5, 6] if kp == 0 else [0, 1, 2, 3]
            wbase, wstr = (L_XB, 12288) if kp == 0 else (L_XA, 16384)
            rbase, rstr = (L_XA, 16384) if kp == 0 else (L_XB, 12288)
            a.e(f"""
s_mul_i32 s{sTMP+5}, s{sW3}, {wstr}
s_add_u32 s{sTMP+5}, s{sTMP+5}, {wbase}
v_add_u32 v12, s{sTMP+5}, v11
s_mul_i32 s{sTMP+5}, s{sW3}, {rstr}
s_add_u32 s{sTMP+5}, s{sTMP+5}, {rbase}
v_add_u32 v13, s{sTMP+5}, v11
s_barrier
""")
            for n, T in enumerate(give):
                for q in range(4):
                    a.e(f"ds_write_b128 v12, {vr(ACC[T]+4*q,4)} offset:{n*4096 + q*1024}")
            K0 = -2.0 * 0.7978845608028654 * LOG2E
            K1 = K0 * 0.044715
            a.e(f"v_mov_b32 v9, {f2u(K1):#x}\nv_mov_b32 v8, {f2u(K0):#x}")
            a.e(f"""
s_lshl_b32 s{sTMP+5}, s{sRB}, 2
s_add_u32 s{sTMP+5}, s{sTMP+5}, s{sW3}
s_mul_i32 s{sTMP+5}, s{sTMP+5}, {112*1024}
s_mul_i32 s{sTMP+6}, s{sJ}, {7*1024}
s_add_u32 s{sTMP+5}, s{sTMP+5}, s{sTMP+6}
s_lshl_b32 s{sTMP+6}, s{sWH}, 12
s_add_u32 s{sTMP+5}, s{sTMP+5}, s{sTMP+6}
s_add_u32 s{sTMP+5}, s{sTMP+5}, {ACT}
s_lshl_b32 s{sTMP+6}, s{sP}, 5
s_lshl_b32 s{sTMP+7}, s{sW}, 2
s_add_u32 s{sTMP+6}, s{sTMP+6}, s{sTMP+7}
s_add_u32 s{sTMP+6}, s{sTMP+6}, {FL_ACT}
v_mov_b32 v14, s{sTAG}
v_mov_b32 v15, 0
s_waitcnt lgkmcnt(0)
s_barrier
""")
            land = give + ([give[0]] if len(keep) > len(give) else [])
            rt = {}
            for n, T in enumerate(keep[:len(give)]):
                for q in range(4):
                    a.e(f"ds_read_b128 {vr(ACC[land[n]]+4*q,4)}, v13 offset:{n*4096 + q*1024}")
                rt[n] = a.lg_tok()
            PKo = 128
            outs = []
            for n, T in enumerate(keep):
                g = ACC[T]
                if n >= len(give):
                    for q in range(4):
                        a.e(f"ds_read_b128 {vr(ACC[land[n]]+4*q,4)}, v13 offset:{n*4096 + q*1024}")
                    rt[n] = a.lg_tok()
                a.wait_lg(rt[n])
                p = ACC[land[n]]
                for q in range(8):
                    a.e(f"v_pk_add_f32 v[{g+2*q}:{g+2*q+1}], v[{g+2*q}:{g+2*q+1}], v[{p+2*q}:{p+2*q+1}]")
                t = p
                P2 = lambda b, q: f"v[{b+2*q}:{b+2*q+1}]"
                for q in range(4):
                    a.e(f"v_pk_mul_f32 {P2(t,q)}, {P2(g,q)}, {P2(g,q)}")
                for q in range(4):
                    a.e(f"v_pk_fma_f32 {P2(t,q)}, {P2(t,q)}, v[8:9], v[8:9] op_sel:[0,1,0] op_sel_hi:[1,1,0]")
                for q in range(4):
                    a.e(f"v_pk_mul_f32 {P2(t,q)}, {P2(t,q)}, {P2(g,q)}")
                for r in range(8):
                    a.e(f"v_exp_f32 v{t+r}, v{t+r}")
                for q in range(4):
                    a.e(f"v_pk_mul_f32 {P2(g,q)}, {P2(g,q)}, {P2(g+8,q)}")
                for r in range(8):
                    a.e(f"v_add_f32 v{t+r}, 1.0, v{t+r}")
                for r in range(8):
                    a.e(f"v_rcp_f32 v{t+r}, v{t+r}")
                for q in range(4):
                    a.e(f"v_pk_mul_f32 {P2(g,q)}, {P2(g,q)}, {P2(t,q)}")
                for q in range(4):
                    a.e(f"v_cvt_pk_bf16_f32 v{g+8+q}, v{g+2*q}, v{g+2*q+1}")
                st = f"buffer_store_dwordx4 v[{g+8}:{g+11}], v11, {WS}, s{sTMP+5} offen offset:{1024*n}"
                if n == len(keep) - 1:
                    st += "\n" + self.flag_seq(f"s{sTMP+6}")
                self.store_sel(st)

        L3 = a.label("Lgu3")
        Lj = a.label("Lguj")
        a.e(f"s_cmp_ge_u32 s{sW}, 4\ns_cbranch_scc1 {L3}")
        v0_, l0_ = a.vm_issued, a.lg_issued
        body(0)
        a.e(f"s_branch {Lj}\n{L3}:")
        a.vm_issued, a.lg_issued = v0_, l0_
        body(1)
        a.e(f"{Lj}:")
        self.stamp(10)

    def phase5(self):
        a = self.a
        a.e(f"""
s_add_u32 s{sTMP}, s89, {FL_ACT}
s_lshr_b32 s{sTMP+5}, s{sW}, 1
s_mul_i32 s{sTMP+2}, s88, {112*1024}
s_mul_i32 s{sTMP+1}, s{sTMP+5}, {28*1024}
s_add_u32 s{sTMP+2}, s{sTMP+2}, s{sTMP+1}
s_add_u32 s{sTMP+2}, s{sTMP+2}, {ACT}
s_lshl_b32 s{sTMP+1}, s{sTMP+5}, 13
v_add_u32 v154, s{sTMP+1}, v154
v_add_u32 v155, s{sTMP+1}, v155
""")
        for si in range(4):
            a.e(f"v_add_u32 v{140+2*si}, {D_SLOT[si]}, v154\nv_add_u32 v{141+2*si}, {D_SLOT[si]}, v155")
        ACC = 16
        BF = [48, 56]
        NA = 20
        PD = int(os.environ.get("DPD", "16"))
        DV = os.environ.get("DV", "c")
        AF = lambda s: ar(4 * (s % NA), 4)

        def R(s):
            c, sl = s // 4, s % 4
            return [f"ds_read_b64_tr_b16 {vr(BF[s%2]+4*t+2*i,2)}, v{140+2*(c%4)+t} offset:{(16*sl+4*i)*128}" for t in range(2) for i in range(2)]

        def M(s):
            return [f"v_mfma_f32_32x32x16_bf16 {vr(ACC+16*t,16)}, {vr(BF[s%2]+4*t,4)}, {AF(s)}, {'0' if s == 0 else vr(ACC+16*t,16)}" for t in range(2)]

        def aload(s):
            out = []
            if s % 4 == 0 and s > 0:
                out.append(f"s_add_u32 s{sTMP+2}, s{sTMP+2}, 4096")
            out.append(f"buffer_load_dwordx4 {AF(s)}, v11, {WS}, s{sTMP+2} offen offset:{(s%4)*1024} " + ("" if "dplain" in EXP else "sc1"))
            return out

        a.e("s_barrier")
        if DV == "c":
            for c_ in (1, 2, 3):
                a.e("\n".join(self.d_dma(c_)))
        a.e("\n".join(R(0)))
        toks = {0: a.lg_tok()}
        self.poll(153, f"s{sTMP}", 15)
        self.stamp(11)
        vt = {}
        dtok = {}
        pend = []
        if DV == "a":
            for s in range(PD):
                a.e("\n".join(aload(s)))
                vt[s] = a.vm_tok()
                if s in (3, 7, 11):
                    a.e("\n".join(self.d_dma(1 + s // 4)))
                    dtok[1 + s // 4] = a.vm_tok()
        elif DV == "c":
            for s in range(PD):
                a.e("\n".join(aload(s)))
                vt[s] = a.vm_tok()
            for c_ in (1, 2, 3):
                dtok[c_] = a.vm_tok() - PD
        else:
            for s in range(PD):
                a.e("\n".join(aload(s)))
                vt[s] = a.vm_tok()
                if s == 3:
                    a.e("\n".join(self.d_dma(1)))
                    dtok[1] = a.vm_tok()
            pend += [(2, g) for g in self.d_dma(2)] + [(3, g) for g in self.d_dma(3)]
        for s in range(28):
            c, sl = s // 4, s % 4
            a.wait_lg(toks[s])
            if sl == 3 and c + 1 < 7:
                if c + 1 >= 1:
                    a.wait_vm(dtok[c + 1])
                a.e("s_barrier")
                if "fined" in EXP:
                    self.stamp(13 + c)
                if c + 4 < 7:
                    pend += [(c + 4, g) for g in self.d_dma(c + 4)]
            r = R(s + 1) if s < 27 else []
            a.wait_vm(vt[s])
            a.e("\n".join(interleave(M(s), r)))
            if r:
                toks[s + 1] = a.lg_tok()
            if s + PD < 28:
                a.e("\n".join(aload(s + PD)))
                vt[s + PD] = a.vm_tok()
            for _ in range(2 if DV != "a" else 1):
                if pend:
                    cc, g = pend.pop(0)
                    a.e(g)
                    dtok[cc] = a.vm_tok()
        self.stamp(25)
        a.e("s_barrier")
        AO = 48
        self.reduce_scatter4(ACC, L_RED2, AO)
        X1P = 132
        for q in range(4):
            a.e(f"v_lshlrev_b32 v{64+2*q}, 16, v{X1P+q}\nv_and_b32 v{65+2*q}, 0xffff0000, v{X1P+q}")
        for r in range(8):
            a.e(f"v_accvgpr_read_b32 v{56+r}, a{88+r}")
        for r in range(8):
            a.e(f"v_fmac_f32 v{64+r}, v{56+r}, v{AO+r}")
        for q in range(4):
            a.e(f"v_cvt_pk_bf16_f32 v{32+q}, v{64+2*q}, v{65+2*q}")
        a.e(f"buffer_store_dwordx4 v[32:35], v151, s[{S_OUT}:{S_OUT+3}], s80 offen")
        self.stamp(12)

    def finish(self):
        a = self.a
        Lx = a.label("Lfin")
        a.e(f"s_cmp_lg_u32 s2, 0\ns_cbranch_scc1 {Lx}\ns_cmp_lg_u32 s{sW}, 7\ns_cbranch_scc1 {Lx}\ns_cmp_eq_u32 s101, 1\ns_cbranch_scc1 {Lx}")
        for q in range(4):
            a.e(f"v_lshlrev_b32 v12, 3, v1\nv_add_u32 v12, {4 + 512*q}, v12\ns_mov_b32 s{sTMP}, {XID}")
            self.poll(12, f"s{sTMP}", 13)
        a.e(f"v_mov_b32 v14, s{sTAG}\nv_mov_b32 v15, 0\ns_mov_b64 exec, 1")
        self.nocount(f"buffer_store_dword v14, v15, {WS}, 0 offen offset:{EPOCH} sc1")
        a.e(f"{Lx}:")
        a.e("L_END:\ns_endpgm\nL_CODE_END:")

    def build(self):
        ph = [self.phase0, self.phase1, self.phase2, self.phase3, self.phase4, self.phase5]
        for i, p in enumerate(ph):
            if i <= self.stop_after:
                p()
        self.finish()
        body = self.a.finalize()
        hdr = open("adaLN_cond__sliding_block__geglu_ffn__prompt.s.ref").read().split("; Override launch")[0]
        src = hdr + f"; @launch grid=(256,1,1) block=(512,1,1) lds={LDS_BYTES}\n" + HEADER.format(name=NAME) + body + \
            FOOTER.format(name=NAME, nvgpr=256, nsgpr=102, accum=160)
        return src


if __name__ == "__main__":
    import argparse
    ap = argparse.ArgumentParser()
    ap.add_argument("-o", default="k.s")
    ap.add_argument("--stamps", action="store_true")
    ap.add_argument("--dump", action="store_true")
    ap.add_argument("--stop", type=int, default=99)
    args = ap.parse_args()
    g = Gen(stop_after=args.stop, stamps=args.stamps, dump=args.dump)
    src = g.build()
    open(args.o, "w").write(src)
    print("wrote", args.o, len(src), "bytes; nops", g.a.nops)
```

```python
import sys, os, struct
sys.path.insert(0, "dev")
from asmlib import *

NAME = "adaLN_cond__sliding_block__geglu_ffn__prompt_kernel"
EXP = os.environ.get("EXP", "").split(",")

EPOCH = 0x0
XID = 0x1000
MODA = 0x2000
MODB = 0xA000
MODG = 0x12000
FL_KV = 0x20000
FL_O = 0x24000
FL_H2 = 0x26000
FL_H1 = 0x22000
FL_ACT = 0x28000
STAMP = 0x2800000
KVX = 0x100000
OBUF = 0x500000
H2BUF = 0x700000
SGRAN = 0x900000
ACT = 0xA00000
H1BUF = 0x1200000
DBG0 = 0x2000000
X1DBG = 0x2400000

S_X, S_WQKV, S_WO, S_WG, S_WU, S_WD, S_C, S_WM, S_OUT, S_WS = 8, 12, 16, 20, 24, 28, 32, 36, 40, 44
sX, sT, sRB, sJ, sW, sTAG, sXCC, sPURE, sP = 48, 49, 50, 51, 52, 53, 54, 55, 56
sW3, sWH, sIMIN = 57, 58, 59
sTMP = 60
S_SEL = 72
sMASK = 60

L_WQKV = 0
L_WO = 96 * 1024
L_K = 0
L_V = 24 * 1024
L_QX = 48 * 1024
L_SCR = 52 * 1024
L_RED = 0
L_TAB = 32 * 1024
L_ST = 33 * 1024
GU_SLOT = [57344, 98304, 127104, 0]
GU_UP = 14464
D_SLOT = [127104, 0, 32768, 65536]
L_RED2 = 0
L_GATE = 32760
L_XA = 0
L_XB = 65536
LDS_BYTES = 160 * 1024

PSLEEP = int(os.environ.get("PSLEEP", "2"))
MSLEEP = int(os.environ.get("MSLEEP", "6"))
NTG = " nt" if "ntg" in EXP else ""
NTD = " nt" if "ntd" in EXP else ""
LOG2E = 1.4426950408889634
QSCALE = 0.25 * LOG2E
NEG_BIG = 0xf149f2ca


def f2u(x):
    return struct.unpack("<I", struct.pack("<f", x))[0]


WS = f"s[{S_WS}:{S_WS+3}]"


class Gen:
    def __init__(self, stop_after=99, stamps=False, dump=False):
        self.a = Asm()
        self.stop_after = stop_after
        self.stamps = stamps
        self.dump = dump

    def nocount(self, text):
        a = self.a
        v, l = a.vm_issued, a.lg_issued
        a.e(text)
        a.vm_issued, a.lg_issued = v, l

    def stamp(self, idx):
        if not self.stamps:
            return
        a = self.a
        idx += 1
        v_, l_ = a.vm_issued, a.lg_issued
        if "dbgstamp" in EXP:
            m = {2: 0, 3: 1, 4: 2, 6: 3, 7: 4, 8: 5, 9: 6, 10: 7, 18: 8, 11: 9, 12: 10, 13: 11}
            if idx in m:
                L = a.label("Lds")
                a.e(f"s_cmp_lg_u32 s2, {int(os.environ.get('DBGWG', '9'))}\ns_cbranch_scc1 {L}\ns_cmp_lg_u32 s{sW}, 0\ns_cbranch_scc1 {L}")
                a.e(f"s_memrealtime s[96:97]\ns_load_dwordx2 s[98:99], s[0:1], 80\ns_waitcnt lgkmcnt(0)\ns_sub_u32 s96, s96, s100")
                a.e(f"v_mov_b32 v158, s96\nv_mov_b32 v159, {m[idx]*4}\nglobal_store_dword v159, v158, s[98:99]\n{L}:")
            a.vm_issued, a.lg_issued = v_, l_
            return
        a.e(f"s_memrealtime s[96:97]\ns_memtime s[94:95]\ns_waitcnt lgkmcnt(0)")
        a.e(f"v_mov_b32 v159, 0\ns_lshl_b32 s98, s2, 11\ns_lshl_b32 s99, s{sW}, 8\ns_add_u32 s98, s98, s99\ns_add_u32 s98, s98, {STAMP}")
        if idx == 2:
            a.e(f"v_mov_b32 v158, s100\nbuffer_store_dword v158, v159, {WS}, s98 offen")
        a.e(f"v_mov_b32 v158, s96\nbuffer_store_dword v158, v159, {WS}, s98 offen offset:{idx*4}")
        a.e(f"v_mov_b32 v158, s94\nbuffer_store_dword v158, v159, {WS}, s98 offen offset:{128+idx*4}")
        a.vm_issued, a.lg_issued = v_, l_

    def poll(self, vaddr, soff, vdst, cnt=sTMP + 11):
        a = self.a
        L = a.label("P")
        Lo = a.label("Po")
        a.e(f"s_mov_b32 s{cnt}, 0\n{L}:")
        self.nocount(f"buffer_load_dword v{vdst}, v{vaddr}, {WS}, {soff} offen sc1")
        a.e(f"""
s_add_u32 s{cnt}, s{cnt}, 1
s_cmp_gt_u32 s{cnt}, 400000
s_cbranch_scc1 {Lo}
s_waitcnt vmcnt(0)
v_cmp_ne_u32 vcc, s{sTAG}, v{vdst}
s_cbranch_vccz {Lo}
s_sleep {PSLEEP}
s_branch {L}
{Lo}:
s_waitcnt vmcnt(0)
""")

    def store_sel(self, text):
        a = self.a
        Ls = a.label("Ssl")
        Le = a.label("Sen")
        lines = [l for l in text.strip().split("\n") if l.strip()]
        a.e(f"s_cmp_eq_u32 s{sPURE}, {'s%d' % sPURE if 'allwt' in EXP else 0}\ns_cbranch_scc1 {Ls}")
        a.e("\n".join(lines))
        a.e(f"s_branch {Le}\n{Ls}:")
        self.nocount("\n".join((l + " sc1") if l.strip().startswith("buffer_store") else l for l in lines))
        a.e(f"{Le}:")

    def flag_seq(self, soff, vt=14):
        return f"s_waitcnt vmcnt(0)\ns_mov_b64 exec, 1\nbuffer_store_dword v{vt}, v{vt+1}, {WS}, {soff} offen\ns_mov_b64 exec, -1"

    def purity(self, vt=30):
        a = self.a
        a.e(f"""
v_and_b32 v{vt}, 31, v1
v_lshlrev_b32 v{vt}, 3, v{vt}
s_lshl_b32 s{sTMP+10}, s{sX}, 8
s_add_u32 s{sTMP+10}, s{sTMP+10}, {XID}
buffer_load_dwordx2 v[{vt+2}:{vt+3}], v{vt}, {WS}, s{sTMP+10} offen sc1
s_waitcnt vmcnt(0)
v_xor_b32 v{vt}, s{sTAG}, v{vt+3}
v_xor_b32 v{vt+1}, s{sXCC}, v{vt+2}
v_or_b32 v{vt}, v{vt}, v{vt+1}
v_cmp_ne_u32 vcc, 0, v{vt}
s_cmp_eq_u64 vcc, 0
s_cselect_b32 s{sPURE}, 1, 0
""")

    def touch(self, srd, soff_base, nlines_per_wg, widx, nw, vdst, vaddr):
        a = self.a
        if "notouch" in EXP:
            return
        n = nlines_per_wg // 64
        per = (n + nw - 1) // nw
        a.e(f"s_lshl_b32 s{sTMP+9}, s{widx}, 13\ns_add_u32 s{sTMP+9}, s{sTMP+9}, s{soff_base}")
        for i in range(per):
            a.e(f"buffer_load_dword v{vdst}, v{vaddr}, s[{srd}:{srd+3}], s{sTMP+9} offen")
            if i < per - 1:
                a.e(f"s_add_u32 s{sTMP+9}, s{sTMP+9}, {nw*8192}")

    def silu_bf16(self, src_pk, n_pk, dst, tmp):
        a = self.a
        n = 2 * n_pk
        for d in range(n_pk):
            a.e(f"v_lshlrev_b32 v{dst+2*d}, 16, v{src_pk+d}\nv_and_b32 v{dst+2*d+1}, 0xffff0000, v{src_pk+d}")
        for i in range(n):
            a.e(f"v_mul_f32 v{tmp+i}, {f2u(-LOG2E):#x}, v{dst+i}")
        for i in range(n):
            a.e(f"v_exp_f32 v{tmp+i}, v{tmp+i}")
        for i in range(n):
            a.e(f"v_add_f32 v{tmp+i}, 1.0, v{tmp+i}")
        for i in range(n):
            a.e(f"v_rcp_f32 v{tmp+i}, v{tmp+i}")
        for i in range(n):
            a.e(f"v_mul_f32 v{dst+i}, v{dst+i}, v{tmp+i}")
        for d in range(n_pk):
            a.e(f"v_cvt_pk_bf16_f32 v{tmp+d}, v{dst+2*d}, v{dst+2*d+1}")
        for d in range(n_pk):
            a.e(f"v_lshlrev_b32 v{dst+2*d}, 16, v{tmp+d}\nv_and_b32 v{dst+2*d+1}, 0xffff0000, v{tmp+d}")

    def wave_allsum(self, regs, tmp):
        a = self.a
        for r in (1, 2, 4, 8):
            for x in regs:
                a.e(f"v_add_f32_dpp v{x}, v{x}, v{x} row_ror:{r} row_mask:0xf bank_mask:0xf")
        self.group_allsum(regs, tmp)

    def group_allsum(self, regs, tmp, op="v_add_f32", stages=("16", "32")):
        a = self.a
        for sw in stages:
            for x, t in zip(regs, tmp):
                a.e(f"v_mov_b32 v{t}, v{x}")
            for x, t in zip(regs, tmp):
                a.e(f"v_permlane{sw}_swap_b32 v{x}, v{t}")
            for x, t in zip(regs, tmp):
                a.e(f"{op} v{x}, v{x}, v{t}")

    def granule(self, lo, hi, s_one, dst):
        self.a.e(f"""
v_cvt_pk_bf16_f32 v{dst}, v{lo}, v{hi}
v_lshlrev_b32 v{lo}, 16, v{dst}
v_and_b32 v{hi}, 0xffff0000, v{dst}
v_add_f32 v{lo}, s{s_one}, v{lo}
v_add_f32 v{hi}, s{s_one}, v{hi}
v_cvt_pk_bf16_f32 v{dst}, v{lo}, v{hi}
v_mov_b32 v{dst+1}, s{sTAG}
""")

    def reduce8_pairs(self, AC):
        self.a.e(f"""
v_permlane16_swap_b32 v{AC}, v{AC+2}
v_permlane16_swap_b32 v{AC+1}, v{AC+3}
v_permlane16_swap_b32 v{AC+4}, v{AC+6}
v_permlane16_swap_b32 v{AC+5}, v{AC+7}
v_add_f32 v{AC}, v{AC}, v{AC+2}
v_add_f32 v{AC+1}, v{AC+1}, v{AC+3}
v_add_f32 v{AC+4}, v{AC+4}, v{AC+6}
v_add_f32 v{AC+5}, v{AC+5}, v{AC+7}
v_permlane32_swap_b32 v{AC}, v{AC+4}
v_permlane32_swap_b32 v{AC+1}, v{AC+5}
v_add_f32 v{AC}, v{AC}, v{AC+4}
v_add_f32 v{AC+1}, v{AC+1}, v{AC+5}
""")

    def phase0(self):
        a = self.a
        a.e(f"""
s_cmp_ge_u32 s2, 256
s_cbranch_scc1 L_END
{"s_memrealtime s[100:101]" if self.stamps else ""}
s_load_dwordx2 s[{S_WS}:{S_WS+1}], s[0:1], 88
s_load_dwordx2 s[{S_WM}:{S_WM+1}], s[0:1], 64
s_load_dwordx2 s[{S_C}:{S_C+1}], s[0:1], 56
s_load_dwordx2 s[{S_X}:{S_X+1}], s[0:1], 0
s_load_dwordx2 s[{S_WQKV}:{S_WQKV+1}], s[0:1], 8
s_load_dwordx2 s[{S_WO}:{S_WO+1}], s[0:1], 16
s_load_dwordx2 s[{S_WG}:{S_WG+1}], s[0:1], 32
s_load_dwordx2 s[{S_WU}:{S_WU+1}], s[0:1], 40
s_load_dwordx2 s[{S_WD}:{S_WD+1}], s[0:1], 48
s_load_dwordx2 s[{S_OUT}:{S_OUT+1}], s[0:1], 72
s_getpc_b64 s[{sTMP}:{sTMP+1}]
L_PC:
s_and_b32 s{sX}, s2, 7
s_lshr_b32 s{sT}, s2, 3
s_lshl_b32 s{sTMP+2}, s{sT}, 11
v_lshlrev_b32 v2, 2, v0
v_add_u32 v2, s{sTMP+2}, v2
v_min_u32 v2, L_CODE_END-L_PC-4, v2
global_load_dword v4, v2, s[{sTMP}:{sTMP+1}]
s_getreg_b32 s{sXCC}, hwreg(HW_REG_XCC_ID)
s_and_b32 s{sXCC}, s{sXCC}, 15
s_lshr_b32 s{sTMP}, s{sT}, 4
s_lshl_b32 s{sRB}, s{sX}, 1
s_add_u32 s{sRB}, s{sRB}, s{sTMP}
s_and_b32 s{sJ}, s{sT}, 15
s_lshl_b32 s{sP}, s{sX}, 5
s_add_u32 s{sP}, s{sP}, s{sT}
v_and_b32 v1, 63, v0
v_lshrrev_b32 v2, 6, v0
v_lshrrev_b32 v3, 4, v1
v_readfirstlane_b32 s{sW}, v2
v_lshlrev_b32 v11, 4, v1
v_lshlrev_b32 v10, 7, v1
s_and_b32 s{sW3}, s{sW}, 3
s_lshr_b32 s{sWH}, s{sW}, 2
s_mov_b32 s{sPURE}, 0
""")
        sizes = {S_X: 2097152, S_WQKV: 1572864, S_WO: 524288, S_WG: 1835008, S_WU: 1835008, S_WD: 1835008, S_C: 1024,
                 S_WM: 3145728, S_OUT: 2097152, S_WS: 0x10000000}
        for s, sz in sizes.items():
            a.e(f"s_mov_b32 s{s+2}, {sz}\ns_mov_b32 s{s+3}, 0x20000")
        a.e("s_waitcnt lgkmcnt(0)")
        a.e(f"s_load_dword s{sTAG}, s[{S_WS}:{S_WS+1}], {EPOCH}")
        L_45 = a.label("Lw45")
        L_67 = a.label("Lw67")
        L_j = a.label("Lj0")
        tagfix = f"s_waitcnt lgkmcnt(0)\ns_mul_i32 s{sTAG}, s{sTAG}, 1664525\ns_add_u32 s{sTAG}, s{sTAG}, 1013904223"
        L_03 = a.label("Lw03")
        a.e(f"s_cmp_lt_u32 s{sW}, 4\ns_cbranch_scc1 {L_03}\ns_cmp_ge_u32 s{sW}, 6\ns_cbranch_scc1 {L_67}")
        v0_, l0_ = a.vm_issued, a.lg_issued
        self.gemv_mfma(a, L_45, L_j, tagfix, v0_, l0_)
        a.e(f"{L_67}:")
        a.e(f"""
v_lshrrev_b32 v12, 2, v1
v_mul_u32_u24 v12, 3072, v12
v_and_b32 v13, 3, v1
v_lshl_add_u32 v12, v13, 4, v12
{tagfix}
v_mov_b32 v14, s{sXCC}
v_mov_b32 v15, s{sTAG}
s_lshl_b32 s{sTMP}, s{sP}, 3
s_add_u32 s{sTMP}, s{sTMP}, {XID}
v_mov_b32 v13, 0
s_mov_b64 exec, 1
buffer_store_dwordx2 v[14:15], v13, {WS}, s{sTMP} offen sc1
s_mov_b64 exec, -1
s_and_b32 s{sTMP+4}, s{sW}, 1
s_mul_i32 s{sTMP}, s{sTMP+4}, {16*3072}
s_lshl_b32 s{sTMP+1}, s{sJ}, 6
s_add_u32 s{sTMP}, s{sTMP}, s{sTMP+1}
s_lshl_b32 s{sTMP+2}, s{sTMP+4}, 10
""")
        Lgt = a.label("Lgate")
        Lgo = a.label("Lgateo")
        a.e(f"""
s_cmp_ge_u32 s{sT}, {0 if "nogate" in EXP else (99 if "valugemv" in EXP else 20)}
s_cbranch_scc1 {Lgo}
v_and_b32 v13, 1, v1
v_lshlrev_b32 v13, 2, v13
s_mov_b32 s{sTMP+11}, 0
{Lgt}:
ds_read_b32 v14, v13 offset:{L_GATE}
s_add_u32 s{sTMP+11}, s{sTMP+11}, 1
s_cmp_gt_u32 s{sTMP+11}, 4000000
s_cbranch_scc1 {Lgo}
s_waitcnt lgkmcnt(0)
v_cmp_ne_u32 vcc, s{sTAG}, v14
s_cbranch_vccnz {Lgt}
{Lgo}:
s_waitcnt lgkmcnt(0)
""")
        if "qtouch" in EXP:
            a.e(f"s_mul_i32 s{sTMP+5}, s{sT}, 49152")
            self.touch(S_WQKV, sTMP + 5, 384, sTMP + 4, 2, 14, 10)
        if "dmadelay" in EXP:
            a.e(f"buffer_load_dword v14, v13, {WS}, s{sTMP} offen sc1\ns_waitcnt vmcnt(0)")
        Lq_ = a.label("Lqd")
        a.e(f"s_mov_b32 s{sTMP+5}, 0\n{Lq_}:")
        for seg in range(3):
            a.e(f"s_add_u32 m0, s{sTMP+2}, {L_WQKV + seg*32768}")
            a.e(f"s_add_u32 s{sTMP+3}, s{sTMP}, {seg*1024}")
            a.e(f"buffer_load_dwordx4 v12, s[{S_WQKV}:{S_WQKV+3}], s{sTMP+3} offen lds")
        a.e(f"s_add_u32 s{sTMP+2}, s{sTMP+2}, 2048\ns_add_u32 s{sTMP}, s{sTMP}, {32*3072}\ns_add_u32 s{sTMP+5}, s{sTMP+5}, 1\ns_cmp_lt_u32 s{sTMP+5}, 16\ns_cbranch_scc1 {Lq_}")
        a.e("s_waitcnt vmcnt(0)")
        self.stamp(0)
        a.e(f"s_branch {L_j}")
        a.vm_issued, a.lg_issued = v0_, l0_
        a.e(f"{L_03}:")
        XP, XF = 16, 32
        ST = [64, 65, 66, 67]
        STT = [68, 69, 70, 71]
        a.e(f"""
s_lshl_b32 s{sTMP}, s{sRB}, 17
s_lshl_b32 s{sTMP+1}, s{sJ}, 13
s_add_u32 s{sTMP}, s{sTMP}, s{sTMP+1}
s_lshl_b32 s{sTMP+1}, s{sW}, 11
s_add_u32 s{sTMP}, s{sTMP}, s{sTMP+1}
s_sub_u32 s{sTMP+1}, s{sTMP}, {256*1024}
s_cmp_lt_u32 s{sRB}, 2
s_cselect_b32 s{sTMP+1}, s{sTMP}, s{sTMP+1}
""")
        for i in range(4):
            a.e(f"buffer_load_dwordx4 {vr(XP+4*i,4)}, v11, s[{S_X}:{S_X+3}], s{sTMP + (i>>1)} offen offset:{(i&1)*1024}")
        if "noc3" not in EXP:
            Lc0, Lc1, Lce, Lc3 = a.label("Lc30"), a.label("Lc31"), a.label("Lc3e"), a.label("Lc33")
            a.e(f"""
v_lshrrev_b32 v5, 2, v1
v_and_b32 v6, 3, v1
s_cmp_eq_u32 s{sW}, 0
s_cbranch_scc1 {Lc0}
s_cmp_eq_u32 s{sW}, 1
s_cbranch_scc1 {Lc1}
s_cmp_lg_u32 s{sW}, 2
s_cbranch_scc1 {Lc3}
v_and_b32 v5, 15, v1
v_lshlrev_b32 v5, 10, v5
s_lshl_b32 s{sTMP+2}, s{sT}, 14
""")
            self.nocount(f"buffer_load_dword v6, v5, s[{S_WO}:{S_WO+3}], s{sTMP+2} offen offset:384")
            a.e(f"""
s_branch {Lce}
{Lc0}:
v_mul_u32_u24 v5, 6144, v5
v_and_b32 v6, 1, v6
v_lshl_add_u32 v5, v6, 10, v5
s_mul_i32 s{sTMP+2}, s{sT}, {16*6144}
""")
            self.nocount(f"buffer_load_dword v6, v5, s[{S_WM}:{S_WM+3}], s{sTMP+2} offen offset:384")
            a.e(f"""
s_branch {Lce}
{Lc1}:
v_mul_u32_u24 v5, 3072, v5
v_lshl_add_u32 v5, v6, 10, v5
s_mul_i32 s{sTMP+2}, s{sT}, {16*3072}
""")
            self.nocount(f"buffer_load_dword v6, v5, s[{S_WQKV}:{S_WQKV+3}], s{sTMP+2} offen offset:384")
            a.e(f"s_branch {Lce}\n{Lc3}:")
            if "valugemv" in EXP and "nomall" not in EXP:
                a.e(f"s_lshl_b32 s{sTMP+2}, s{sP}, 13\n"
                    f"s_cmp_lt_u32 s{sTMP+2}, {84*8192}\ns_cselect_b32 s{sTMP+3}, s{sTMP+2}, 0x7fff0000\n"
                    f"s_sub_u32 s{sTMP+4}, s{sTMP+2}, {84*8192}\ns_cmp_lt_u32 s{sTMP+4}, {84*8192}\ns_cselect_b32 s{sTMP+4}, s{sTMP+4}, 0x7fff0000\n"
                    f"s_sub_u32 s{sTMP+5}, s{sTMP+2}, {168*8192}\ns_min_u32 s{sTMP+5}, s{sTMP+5}, 0x7fff0000")
                self.nocount(f"buffer_load_dword v6, v10, s[{S_WG}:{S_WG+3}], s{sTMP+3} offen")
                self.nocount(f"buffer_load_dword v6, v10, s[{S_WU}:{S_WU+3}], s{sTMP+4} offen")
                self.nocount(f"buffer_load_dword v6, v10, s[{S_WO}:{S_WO+3}], s{sTMP+5} offen")
            a.e(f"{Lce}:")
        if "wmtouch" in EXP:
            a.e(f"""
v_mul_u32_u24 v5, 6144, v3
v_and_b32 v6, 15, v1
v_lshl_add_u32 v5, v6, 7, v5
s_lshl_b32 s{sTMP}, s{sT}, 2
s_add_u32 s{sTMP}, s{sTMP}, s{sW}
s_mul_i32 s{sTMP}, s{sTMP}, {4*6144}
buffer_load_dword v6, v5, s[{S_WM}:{S_WM+3}], s{sTMP} offen
s_waitcnt vmcnt(1)
""")
        else:
            a.e("s_waitcnt vmcnt(0)")
        a.e(tagfix)
        for i in range(4):
            for d in range(4):
                a.e(f"v_lshlrev_b32 v{XF+8*i+2*d}, 16, v{XP+4*i+d}\nv_and_b32 v{XF+1+8*i+2*d}, 0xffff0000, v{XP+4*i+d}")
        for i in range(4):
            b = XF + 8 * i
            a.e(f"v_add_f32 v{ST[i]}, v{b}, v{b+1}")
            for e in range(2, 8):
                a.e(f"v_add_f32 v{ST[i]}, v{ST[i]}, v{b+e}")
        self.wave_allsum(ST, STT)
        for i in range(4):
            a.e(f"v_mul_f32 v{ST[i]}, {f2u(-1/512):#x}, v{ST[i]}")
        for i in range(4):
            for e in range(8):
                a.e(f"v_add_f32 v{XF+8*i+e}, v{ST[i]}, v{XF+8*i+e}")
        for i in range(4):
            b = XF + 8 * i
            a.e(f"v_mul_f32 v{ST[i]}, v{b}, v{b}")
            for e in range(1, 8):
                a.e(f"v_fmac_f32 v{ST[i]}, v{b+e}, v{b+e}")
        self.wave_allsum(ST, STT)
        for i in range(4):
            a.e(f"v_mul_f32 v{ST[i]}, {f2u(1/512):#x}, v{ST[i]}")
        for i in range(4):
            a.e(f"v_add_f32 v{ST[i]}, {f2u(1e-5):#x}, v{ST[i]}")
        for i in range(4):
            a.e(f"v_rsq_f32 v{ST[i]}, v{ST[i]}")
        for i in range(4):
            for e in range(8):
                a.e(f"v_mul_f32 v{XF+8*i+e}, v{ST[i]}, v{XF+8*i+e}")
        for i in range(4):
            for d in range(4):
                a.e(f"v_cvt_pk_bf16_f32 v{XP+4*i+d}, v{XF+8*i+2*d}, v{XF+1+8*i+2*d}")
        for i in range(4):
            for d in range(4):
                a.e(f"v_lshlrev_b32 v{XF+8*i+2*d}, 16, v{XP+4*i+d}\nv_and_b32 v{XF+1+8*i+2*d}, 0xffff0000, v{XP+4*i+d}")
        a.e(f"""
v_lshrrev_b32 v12, 1, v1
v_lshlrev_b32 v12, 10, v12
v_and_b32 v6, 1, v1
v_lshl_add_u32 v12, v6, 9, v12
s_lshl_b32 s{sTMP+4}, s{sX}, 19
s_and_b32 s{sTMP+3}, s{sRB}, 1
s_lshl_b32 s{sTMP+3}, s{sTMP+3}, 17
s_add_u32 s{sTMP+4}, s{sTMP+4}, s{sTMP+3}
s_lshr_b32 s{sTMP+3}, s{sJ}, 2
s_lshl_b32 s{sTMP+3}, s{sTMP+3}, 15
s_add_u32 s{sTMP+4}, s{sTMP+4}, s{sTMP+3}
s_and_b32 s{sTMP+3}, s{sJ}, 3
s_lshl_b32 s{sTMP+3}, s{sTMP+3}, 7
s_add_u32 s{sTMP+4}, s{sTMP+4}, s{sTMP+3}
s_lshl_b32 s{sTMP+3}, s{sW}, 5
s_add_u32 s{sTMP+4}, s{sTMP+4}, s{sTMP+3}
s_add_u32 s{sTMP+4}, s{sTMP+4}, {H1BUF}
s_add_u32 s{sTMP+8}, s{sTMP+4}, {2*131072}
v_lshlrev_b32 v13, 5, v1
v_lshlrev_b32 v7, 6, v1
v_add_u32 v7, 60, v7
v_and_b32 v8, 31, v1
v_lshlrev_b32 v8, 3, v8
s_lshl_b32 s{sTMP}, s{sX}, 12
s_add_u32 s{sTMP+1}, s{sTMP}, {MODB}
s_add_u32 s{sTMP}, s{sTMP}, {MODA}
s_lshl_b32 s{sTMP+2}, s{sX}, 8
s_add_u32 s{sTMP+2}, s{sTMP+2}, {XID}
s_lshl_b32 s{sTMP+5}, s{sP}, 4
s_lshl_b32 s{sTMP+6}, s{sW}, 2
s_add_u32 s{sTMP+5}, s{sTMP+5}, s{sTMP+6}
s_add_u32 s{sTMP+5}, s{sTMP+5}, {FL_H1}
s_mov_b32 s{sTMP+11}, 0
""")
        self.stamp(0)
        L = a.label("G")
        L2 = a.label("G2")
        Lo = a.label("Go")
        G0 = 96
        a.e(f"{L}:")
        self.nocount(f"buffer_load_dword v{G0}, v7, {WS}, s{sTMP} offen sc1")
        a.e(f"""
s_add_u32 s{sTMP+11}, s{sTMP+11}, 1
s_cmp_gt_u32 s{sTMP+11}, 400000
s_cbranch_scc1 {L2}
s_waitcnt vmcnt(0)
v_cmp_ne_u32 vcc, s{sTAG}, v{G0}
s_cbranch_vccz {L2}
s_add_u32 s{sTMP+10}, s{sTMP+11}, 1
s_and_b32 s{sTMP+10}, s{sTMP+10}, 15
s_cmp_lt_u32 s{sTMP+10}, 2
s_cselect_b32 s{sTMP+10}, s{sTMP+1}, s{sTMP}
s_cselect_b32 s{sTMP+1}, s{sTMP}, s{sTMP+1}
s_mov_b32 s{sTMP}, s{sTMP+10}
s_sleep {MSLEEP}
s_branch {L}
{L2}:
""")
        self.nocount(f"""
buffer_load_dwordx4 v[{G0}:{G0+3}], v13, {WS}, s{sTMP} offen sc1
buffer_load_dwordx4 v[{G0+4}:{G0+7}], v13, {WS}, s{sTMP} offen offset:16 sc1
buffer_load_dwordx4 v[{G0+8}:{G0+11}], v13, {WS}, s{sTMP} offen offset:2048 sc1
buffer_load_dwordx4 v[{G0+12}:{G0+15}], v13, {WS}, s{sTMP} offen offset:2064 sc1
buffer_load_dwordx2 v[{G0+16}:{G0+17}], v8, {WS}, s{sTMP+2} offen sc1
""")
        a.e(f"""
s_cmp_gt_u32 s{sTMP+11}, 400000
s_cbranch_scc1 {Lo}
s_waitcnt vmcnt(0)
v_xor_b32 v116, s{sTAG}, v{G0+1}
""")
        for q in range(3, 16, 2):
            a.e(f"v_xor_b32 v117, s{sTAG}, v{G0+q}\nv_or_b32 v116, v116, v117")
        a.e(f"v_cmp_ne_u32 vcc, 0, v116\ns_cbranch_vccnz {L}\n{Lo}:\ns_waitcnt vmcnt(0)")
        a.e(f"""
v_xor_b32 v116, s{sTAG}, v{G0+17}
v_xor_b32 v117, s{sXCC}, v{G0+16}
v_or_b32 v116, v116, v117
v_cmp_ne_u32 vcc, 0, v116
s_cmp_eq_u64 vcc, 0
s_cselect_b32 s{sPURE}, 1, 0
""")
        SA, GG = 72, 80
        for q in range(4):
            a.e(f"v_lshlrev_b32 v{SA+2*q}, 16, v{G0+2*q}\nv_and_b32 v{SA+1+2*q}, 0xffff0000, v{G0+2*q}")
            a.e(f"v_lshlrev_b32 v{GG+2*q}, 16, v{G0+8+2*q}\nv_and_b32 v{GG+1+2*q}, 0xffff0000, v{G0+8+2*q}")
        for i in range(4):
            for d in range(4):
                b = XF + 8 * i + 2 * d
                a.e(f"v_pk_fma_f32 v[{b}:{b+1}], v[{b}:{b+1}], v[{GG+2*d}:{GG+1+2*d}], v[{SA+2*d}:{SA+1+2*d}]")
            for d in range(4):
                a.e(f"v_cvt_pk_bf16_f32 v{XP+4*i+d}, v{XF+8*i+2*d}, v{XF+1+8*i+2*d}")
        a.e(f"v_mov_b32 v14, s{sTAG}\nv_mov_b32 v15, 0")
        st = "\n".join(f"buffer_store_dwordx4 v[{XP+4*i}:{XP+3+4*i}], v12, {WS}, s{sTMP+8 if i < 2 else sTMP+4} offen offset:{16*(i&1)}" for i in range(4))
        self.store_sel(st + "\n" + self.flag_seq(f"s{sTMP+5}"))
        a.e(f"s_branch {L_j}")
        a.vm_issued, a.lg_issued = v0_, l0_
        self.gemv_mfma2(a, L_45, L_j, tagfix, v0_, l0_)
        a.e(f"{L_j}:")
        if "prio" in EXP:
            Lpr = a.label("Lprio")
            a.e(f"s_cmp_lt_u32 s{sW}, 4\ns_cbranch_scc1 {Lpr}\ns_setprio 1\n{Lpr}:")
        a.e("s_nop 4\ns_barrier")
        self.stamp(1)

    def gemv_valu(self, a, L_45, L_j, tagfix, v0_, l0_):
        a.e(f"{L_45}:")
        W0, SV = 94, 14
        a.e(f"""
v_lshrrev_b32 v6, 1, v1
v_lshlrev_b32 v8, 5, v6
v_mul_u32_u24 v7, {16*6144}, v6
v_and_b32 v6, 1, v1
v_lshl_add_u32 v7, v6, 4, v7
buffer_load_dwordx4 v[70:73], v8, s[{S_C}:{S_C+3}], 0 offen
buffer_load_dwordx4 v[74:77], v8, s[{S_C}:{S_C+3}], 0 offen offset:16
""")
        tok_c = a.vm_tok()
        a.e(f"s_lshl_b32 s{sTMP}, s{sT}, 6\ns_lshl_b32 s{sTMP+1}, s{sW3}, 5\ns_add_u32 s{sTMP}, s{sTMP}, s{sTMP+1}")
        tok_w = []
        for i in range(16):
            a.e(f"buffer_load_dwordx4 v[{W0+4*i}:{W0+3+4*i}], v7, s[{S_WM}:{S_WM+3}], s{sTMP} offen")
            tok_w.append(a.vm_tok())
            if i < 15:
                a.e(f"s_add_u32 s{sTMP}, s{sTMP}, 6144")
        a.e(f"""
v_and_b32 v5, 127, v0
v_mul_u32_u24 v12, 24576, v5
v_lshlrev_b32 v5, 3, v5
s_lshl_b32 s{sTMP}, s{sP}, 4
s_add_u32 s{sTMP}, s{sTMP}, 2048
buffer_load_dwordx2 v[78:79], v5, s[{S_C}:{S_C+3}], 0 offen
""")
        for i in range(4):
            a.e(f"buffer_load_dwordx4 v[{54+4*i}:{57+4*i}], v12, s[{S_WM}:{S_WM+3}], s{sTMP} offen")
            if i < 3:
                a.e(f"s_add_u32 s{sTMP}, s{sTMP}, 6144")
        tok_nu = a.vm_tok()
        a.e(tagfix)
        a.e(f"s_lshl_b32 s{sTMP+4}, s{sW3}, 2\nv_mov_b32 v13, s{sTMP+4}\nv_mov_b32 v5, s{sTAG}\nds_write_b32 v13, v5 offset:{L_GATE}")
        a.e(f"""
v_lshlrev_b32 v9, 5, v6
v_lshl_add_u32 v9, v3, 3, v9
s_cmp_ge_u32 s{sT}, 16
s_cselect_b32 s{sTMP+7}, 1.0, 0
s_lshl_b32 s{sTMP+5}, s{sX}, 12
s_lshl_b32 s{sTMP+6}, s{sT}, 7
s_add_u32 s{sTMP+5}, s{sTMP+5}, s{sTMP+6}
s_lshl_b32 s{sTMP+6}, s{sW3}, 6
s_add_u32 s{sTMP+5}, s{sTMP+5}, s{sTMP+6}
s_add_u32 s{sTMP+6}, s{sTMP+5}, {MODB}
s_add_u32 s{sTMP+5}, s{sTMP+5}, {MODA}
""")
        a.wait_vm(tok_c)
        self.silu_bf16(70, 8, SV, 30)
        AC = 30
        for i in range(16):
            a.wait_vm(tok_w[i])
            w = W0 + 4 * i
            t = 38 + 8 * (i % 2)
            for d in range(4):
                a.e(f"v_lshlrev_b32 v{t+2*d}, 16, v{w+d}\nv_and_b32 v{t+1+2*d}, 0xffff0000, v{w+d}")
            sp = SV + (i & ~1)
            sel = i & 1
            for d in range(4):
                if i == 0:
                    a.e(f"v_pk_mul_f32 v[{AC+2*d}:{AC+1+2*d}], v[{t+2*d}:{t+1+2*d}], v[{sp}:{sp+1}] op_sel_hi:[1,0]")
                else:
                    a.e(f"v_pk_fma_f32 v[{AC+2*d}:{AC+1+2*d}], v[{t+2*d}:{t+1+2*d}], v[{sp}:{sp+1}], v[{AC+2*d}:{AC+1+2*d}] op_sel:[0,{sel},0] op_sel_hi:[1,{sel},1]")
        for r in (2, 4, 8):
            for e in range(8):
                a.e(f"v_add_f32_dpp v{AC+e}, v{AC+e}, v{AC+e} row_ror:{r} row_mask:0xf bank_mask:0xf")
        self.reduce8_pairs(AC)
        self.granule(AC, AC + 1, sTMP + 7, AC + 2)
        a.e(f"s_mov_b32 exec_lo, 0x00030003\ns_mov_b32 exec_hi, 0x00030003")
        a.e(f"buffer_store_dwordx2 v[{AC+2}:{AC+3}], v9, {WS}, s{sTMP+5} offen")
        a.e(f"buffer_store_dwordx2 v[{AC+2}:{AC+3}], v9, {WS}, s{sTMP+6} offen sc1")
        a.e(f"s_mov_b64 exec, -1")
        self.stamp(0)
        a.wait_vm(tok_nu)
        self.silu_bf16(78, 2, 80, 96)
        for i in range(4):
            for d in range(4):
                w = 54 + 4 * i + d
                a.e(f"v_lshlrev_b32 v{96+2*d}, 16, v{w}\nv_and_b32 v{97+2*d}, 0xffff0000, v{w}")
            for e in range(8):
                a.e(f"v_mul_f32 v{72+e}, v80, v{96+e}" if i == 0 else f"v_fmac_f32 v{72+e}, v{80+i}, v{96+e}")
        for r in (1, 2, 4, 8):
            for e in range(8):
                a.e(f"v_add_f32_dpp v{72+e}, v{72+e}, v{72+e} row_ror:{r} row_mask:0xf bank_mask:0xf")
        self.reduce8_pairs(72)
        a.e("v_mov_b32 v132, v72\nv_mov_b32 v133, v73")
        a.e(f"s_branch {L_j}")
        a.vm_issued, a.lg_issued = v0_, l0_

    def gemv_mfma(self, a, L_45, L_j, tagfix, v0_, l0_):
        a.e(f"{L_45}:")
        a.e(f"s_cmp_ge_u32 s{sT}, 20\ns_cbranch_scc1 L_NOGEMV")
        L_SLAB = 96 * 1024
        self.w64_lane(12, stride=6144)
        a.e(f"""
s_lshl_b32 s{sTMP}, s{sT}, 7
s_lshl_b32 s{sTMP+1}, s{sX}, 9
s_add_u32 s{sTMP+1}, s{sTMP+1}, s{sTMP}
s_cmp_ge_u32 s{sT}, 16
s_cselect_b32 s{sTMP}, s{sTMP+1}, s{sTMP}
s_mul_i32 s{sTMP+1}, s{sW3}, {256*6144}
s_add_u32 s{sTMP}, s{sTMP}, s{sTMP+1}
s_lshl_b32 s{sTMP+2}, s{sW3}, 15
s_lshl_b32 s{sTMP+4}, s{sW3}, 9
v_lshlrev_b32 v8, 3, v1
buffer_load_dwordx2 v[70:71], v8, s[{S_C}:{S_C+3}], s{sTMP+4} offen
""")
        tok_c = a.vm_tok()
        Ls_ = a.label("Lsd")
        a.e(f"s_mov_b32 s{sTMP+5}, 0\ns_add_u32 s{sTMP+6}, s{sTMP+2}, {L_SLAB}\n{Ls_}:")
        for i in range(4):
            a.e(f"s_add_u32 m0, s{sTMP+6}, {i*1024}\ns_add_u32 s{sTMP+3}, s{sTMP}, {i*8*6144}")
            a.e(f"buffer_load_dwordx4 v12, s[{S_WM}:{S_WM+3}], s{sTMP+3} offen lds")
        a.e(f"s_add_u32 s{sTMP+6}, s{sTMP+6}, 4096\ns_add_u32 s{sTMP}, s{sTMP}, {32*6144}\ns_add_u32 s{sTMP+5}, s{sTMP+5}, 1\ns_cmp_lt_u32 s{sTMP+5}, 8\ns_cbranch_scc1 {Ls_}")
        a.e(tagfix)
        a.e(f"s_lshl_b32 s{sTMP+4}, s{sW3}, 2\nv_mov_b32 v13, s{sTMP+4}\nv_mov_b32 v14, s{sTAG}\nds_write_b32 v13, v14 offset:{L_GATE}")
        a.e("s_branch L_GEMV2")
        a.vm_issued, a.lg_issued = v0_, l0_

    def gemv_mfma2(self, a, L_45, L_j, tagfix, v0_, l0_):
        L_SLAB = 96 * 1024
        a.e("L_GEMV2:")
        a.e("s_waitcnt vmcnt(32)")
        self.silu_bf16(70, 2, 14, 30)
        SF = 94
        a.e(f"v_lshrrev_b32 v9, 5, v1\nv_lshlrev_b32 v9, 3, v9")
        for st in range(16):
            for d in range(4):
                a.e(f"ds_bpermute_b32 v{SF+4*st+d}, v9, v{30 + (d&1)} offset:{(4*st + (d>>1))*4}")
            if st % 3 == 2:
                a.e("s_waitcnt lgkmcnt(3)")
        self.tr64_bases(4)
        a.e(f"""
s_add_u32 s{sTMP+2}, s{sTMP+2}, {L_SLAB}
v_add_u32 v4, s{sTMP+2}, v4
v_add_u32 v5, s{sTMP+2}, v5
s_waitcnt lgkmcnt(0)
""")
        self.stamp(22)
        a.e("s_waitcnt vmcnt(0)")
        self.stamp(23)
        GA_ = 32
        GB = [64, 72, 80]
        toks = {}

        def GR(st):
            return [f"ds_read_b64_tr_b16 {vr(GB[st%3]+4*t+2*i,2)}, v{4+t} offset:{(16*st+4*i)*128}" for t in range(2) for i in range(2)]
        for st in range(2):
            a.e("\n".join(GR(st)))
            toks[st] = a.lg_tok()
        for st in range(16):
            a.wait_lg(toks[st])
            for t in range(2):
                a.e(f"v_mfma_f32_32x32x16_bf16 {vr(GA_+16*t,16)}, {vr(GB[st%3]+4*t,4)}, {vr(SF+4*st,4)}, {'0' if st == 0 else vr(GA_+16*t,16)}")
            if st + 2 < 16:
                a.e("\n".join(GR(st + 2)))
                toks[st + 2] = a.lg_tok()
        self.stamp(24)
        L5 = a.label("Lg5")
        a.e(f"v_add_u32 v12, {L_SLAB + 32768}, v11\nv_mov_b32 v13, {L_SLAB + 32768 + 8192}\nv_mov_b32 v14, s{sTAG}")
        a.e(f"s_cmp_eq_u32 s{sW}, 4\ns_cbranch_scc1 {L5}")
        self.nocount("\n".join(f"ds_write_b128 v12, {vr(GA_+4*q,4)} offset:{q*1024}" for q in range(8)))
        a.e("s_waitcnt lgkmcnt(0)")
        self.nocount("ds_write_b32 v13, v14")
        a.e(f"s_waitcnt lgkmcnt(0)\ns_branch L_NOGEMV\n{L5}:")
        Ls = a.label("Lgs")
        Lso = a.label("Lgso")
        a.e(f"""
s_mov_b32 s{sTMP+11}, 0
{Ls}:
""")
        self.nocount("ds_read_b32 v15, v13")
        a.e(f"""
s_add_u32 s{sTMP+11}, s{sTMP+11}, 1
s_cmp_gt_u32 s{sTMP+11}, 4000000
s_cbranch_scc1 {Lso}
s_waitcnt lgkmcnt(0)
v_cmp_ne_u32 vcc, s{sTAG}, v15
s_cbranch_vccnz {Ls}
{Lso}:
""")
        self.nocount("\n".join(f"ds_read_b128 {vr(64+4*q,4)}, v12 offset:{q*1024}" for q in range(8)))
        a.e(f"""
s_lshl_b32 s{sTMP+5}, s{sX}, 12
s_lshl_b32 s{sTMP+6}, s{sT}, 8
s_add_u32 s{sTMP+5}, s{sTMP+5}, s{sTMP+6}
s_add_u32 s{sTMP+8}, s{sTMP+5}, {MODB}
s_add_u32 s{sTMP+5}, s{sTMP+5}, {MODA}
s_lshl_b32 s{sTMP+9}, s{sX}, 10
s_add_u32 s{sTMP+9}, s{sTMP+9}, s{sTMP+6}
s_add_u32 s{sTMP+9}, s{sTMP+9}, {MODG - 4096}
s_lshr_b32 s{sTMP+6}, s{sT}, 3
s_cmp_eq_u32 s{sTMP+6}, 1
s_cselect_b32 s{sTMP+7}, 1.0, 0
s_lshr_b32 s{sTMP+6}, s{sX}, 1
s_cmp_eq_u32 s{sTMP+6}, 2
s_cselect_b32 s{sTMP+10}, 1.0, 0
s_cmp_ge_u32 s{sT}, 16
s_cselect_b32 s{sTMP+7}, s{sTMP+10}, s{sTMP+7}
s_cselect_b32 s{sTMP+5}, s{sTMP+9}, s{sTMP+5}
s_cselect_b32 s{sTMP+8}, s{sTMP+9}, s{sTMP+8}
v_lshrrev_b32 v9, 5, v1
v_lshlrev_b32 v9, 5, v9
s_waitcnt lgkmcnt(0)
""")
        for r in range(32):
            a.e(f"v_add_f32 v{GA_+r}, v{GA_+r}, v{64+r}")
        for q in range(16):
            a.e(f"v_cvt_pk_bf16_f32 v{64+2*q}, v{GA_+2*q}, v{GA_+2*q+1}")
        for q in range(16):
            a.e(f"v_lshlrev_b32 v{GA_+2*q}, 16, v{64+2*q}\nv_and_b32 v{GA_+2*q+1}, 0xffff0000, v{64+2*q}")
        for r in range(32):
            a.e(f"v_add_f32 v{GA_+r}, s{sTMP+7}, v{GA_+r}")
        for q in range(16):
            a.e(f"v_cvt_pk_bf16_f32 v{64+2*q}, v{GA_+2*q}, v{GA_+2*q+1}\nv_mov_b32 v{65+2*q}, s{sTAG}")
        a.e("s_mov_b32 exec_lo, 1\ns_mov_b32 exec_hi, 1")
        Lnu = a.label("Lnu")
        a.e(f"s_cmp_ge_u32 s{sT}, 16\ns_cbranch_scc1 {Lnu}")
        for u in range(8):
            self.nocount(f"buffer_store_dwordx4 {vr(64+4*u,4)}, v9, {WS}, s{sTMP+5} offen offset:{(u>>1)*64 + (u&1)*16}")
        a.e(f"{Lnu}:")
        for u in range(8):
            self.nocount(f"buffer_store_dwordx4 {vr(64+4*u,4)}, v9, {WS}, s{sTMP+8} offen offset:{(u>>1)*64 + (u&1)*16} sc1")
        a.e("s_mov_b64 exec, -1")
        self.stamp(0)
        a.e("L_NOGEMV:")
        a.e(tagfix.replace("s_mul_i32", "s_cmp_ge_u32 s%d, 20\ns_cbranch_scc0 %s\ns_mul_i32" % (sT, L_j)))
        if "nomall" not in EXP:
            a.e(f"""
s_mul_i32 s{sTMP}, s{sX}, 12
s_add_u32 s{sTMP}, s{sTMP}, s{sT}
s_sub_u32 s{sTMP}, s{sTMP}, 20
s_lshl_b32 s{sTMP}, s{sTMP}, 1
s_add_u32 s{sTMP}, s{sTMP}, s{sW3}
s_lshl_b32 s{sTMP}, s{sTMP}, 13
s_add_u32 s{sTMP+1}, s{sTMP}, {192*8192}
""")
            if "tlb" in EXP:
                jobs = []
                for i in range(2):
                    jobs.append((S_WS, H1BUF + i * 262144, 524288))
                jobs.append((S_WS, OBUF, 262144))
                jobs.append((S_WS, H2BUF, 262144))
                for i in range(4):
                    jobs.append((S_WS, ACT + i * 262144, 917504))
                for i in range(2):
                    jobs.append((S_WS, KVX + i * 262144, 524288))
                jobs.append((S_OUT, 0, 262144))
                jobs.append((S_WS, SGRAN, 0))
                for i in range(2):
                    jobs.append((S_WO, i * 262144, 0))
                for srd in (S_WG, S_WU, S_WD):
                    for i in range(7):
                        jobs.append((srd, i * 262144, 0))
                a.e(f"v_lshlrev_b32 v5, 12, v1\ns_sub_u32 s{sTMP+4}, s{sT}, 20\ns_lshl_b32 s{sTMP+4}, s{sTMP+4}, 1\ns_add_u32 s{sTMP+4}, s{sTMP+4}, s{sW3}")
                for k, (srd, off, xs) in enumerate(jobs):
                    Ln = a.label("Ltl")
                    a.e(f"s_cmp_lg_u32 s{sTMP+4}, {k % 24}\ns_cbranch_scc1 {Ln}\ns_mul_i32 s{sTMP+5}, s{sX}, {xs}\ns_add_u32 s{sTMP+5}, s{sTMP+5}, {off}")
                    self.nocount(f"buffer_load_dword v2, v5, s[{srd}:{srd+3}], s{sTMP+5} offen sc1")
                    a.e(f"{Ln}:")
            a.e(f"s_cmp_lt_u32 s{sTMP}, {84*8192}\ns_cselect_b32 s{sTMP+1}, s{sTMP}, 0x7fff0000\n"
                f"s_sub_u32 s{sTMP+2}, s{sTMP}, {84*8192}\ns_cmp_lt_u32 s{sTMP+2}, {84*8192}\ns_cselect_b32 s{sTMP+2}, s{sTMP+2}, 0x7fff0000\n"
                f"s_sub_u32 s{sTMP+3}, s{sTMP}, {128*8192}\ns_min_u32 s{sTMP+3}, s{sTMP+3}, 0x7fff0000")
            self.nocount(f"buffer_load_dword v2, v10, s[{S_WG}:{S_WG+3}], s{sTMP+1} offen")
            self.nocount(f"buffer_load_dword v2, v10, s[{S_WU}:{S_WU+3}], s{sTMP+2} offen")
            self.nocount(f"buffer_load_dword v2, v10, s[{S_WO}:{S_WO+3}], s{sTMP+3} offen")
            if "mallall" in EXP:
                a.e(f"s_add_u32 s{sTMP+1}, s{sTMP}, {84*8192}\ns_add_u32 s{sTMP+2}, s{sTMP}, {192*8192}")
                self.nocount(f"buffer_load_dword v2, v10, s[{S_WG}:{S_WG+3}], s{sTMP+1} offen")
                self.nocount(f"buffer_load_dword v2, v10, s[{S_WU}:{S_WU+3}], s{sTMP+1} offen")
                self.nocount(f"buffer_load_dword v2, v10, s[{S_WD}:{S_WD+3}], s{sTMP} offen")
                self.nocount(f"buffer_load_dword v2, v10, s[{S_WD}:{S_WD+3}], s{sTMP+2} offen")
            if "mallq" in EXP:
                self.nocount(f"buffer_load_dword v2, v10, s[{S_WQKV}:{S_WQKV+3}], s{sTMP} offen")
        a.e(f"s_branch {L_j}")
        a.vm_issued, a.lg_issued = v0_, l0_

    def phase1(self):
        a = self.a
        a.e(f"""
s_lshl_b32 s{sTMP}, s{sRB}, 8
s_lshl_b32 s{sTMP+1}, s{sW3}, 6
s_add_u32 s{sTMP}, s{sTMP}, s{sTMP+1}
s_add_u32 s{sTMP}, s{sTMP}, {FL_H1}
v_and_b32 v12, 15, v1
v_lshlrev_b32 v12, 2, v12
s_lshl_b32 s{sTMP+2}, s{sX}, 19
s_and_b32 s{sTMP+1}, s{sRB}, 1
s_lshl_b32 s{sTMP+1}, s{sTMP+1}, 17
s_add_u32 s{sTMP+2}, s{sTMP+2}, s{sTMP+1}
s_xor_b32 s{sTMP+1}, s{sWH}, 1
s_lshl_b32 s{sTMP+1}, s{sTMP+1}, 18
s_add_u32 s{sTMP+2}, s{sTMP+2}, s{sTMP+1}
s_lshl_b32 s{sTMP+1}, s{sW3}, 15
s_add_u32 s{sTMP+2}, s{sTMP+2}, s{sTMP+1}
s_add_u32 s{sTMP+2}, s{sTMP+2}, {H1BUF}
v_lshrrev_b32 v8, 5, v1
v_bfe_u32 v9, v1, 2, 2
v_lshl_add_u32 v9, v8, 3, v9
v_lshlrev_b32 v4, 6, v9
v_bfe_u32 v9, v1, 4, 1
v_lshl_add_u32 v4, v9, 5, v4
v_and_b32 v9, 1, v1
v_lshl_add_u32 v4, v9, 4, v4
v_bfe_u32 v9, v1, 1, 1
v_lshl_add_u32 v4, v9, 3, v4
v_add_u32 v4, {L_WQKV}, v4
v_add_u32 v5, 32768, v4
v_add_u32 v6, 65536, v4
v_and_b32 v14, 31, v1
v_lshlrev_b32 v14, 3, v14
s_lshl_b32 s{sTMP+3}, s{sX}, 8
s_add_u32 s{sTMP+3}, s{sTMP+3}, {XID}
""")
        L = a.label("P1")
        Lo = a.label("P1o")
        a.e(f"s_mov_b32 s{sTMP+11}, 0\n{L}:")
        self.nocount(f"buffer_load_dword v13, v12, {WS}, s{sTMP} offen sc1\nbuffer_load_dwordx2 v[16:17], v14, {WS}, s{sTMP+3} offen sc1")
        a.e(f"""
s_add_u32 s{sTMP+11}, s{sTMP+11}, 1
s_cmp_gt_u32 s{sTMP+11}, 400000
s_cbranch_scc1 {Lo}
s_waitcnt vmcnt(0)
v_cmp_ne_u32 vcc, s{sTAG}, v13
s_cbranch_vccz {Lo}
s_sleep {PSLEEP}
s_branch {L}
{Lo}:
s_waitcnt vmcnt(0)
v_xor_b32 v17, s{sTAG}, v17
v_xor_b32 v16, s{sXCC}, v16
v_or_b32 v16, v16, v17
v_cmp_ne_u32 vcc, 0, v16
s_cmp_eq_u64 vcc, 0
s_cselect_b32 s{sPURE}, 1, 0
""")
        self.stamp(2)
        ACC = [16, 32, 48]
        BFv = [64, 76, 88]
        NA = 12
        AF = lambda s: ar(4 * (s % NA), 4)
        NS = 32
        PD = 10

        def body(segs, wo=False):
            if wo:
                self.w64_lane(126)
                a.e(f"""
s_and_b32 s{sTMP+5}, s{sJ}, 7
s_lshl_b32 s{sTMP+5}, s{sTMP+5}, 7
s_lshl_b32 s{sTMP+6}, s{sW3}, 13
s_add_u32 s{sTMP+5}, s{sTMP+5}, s{sTMP+6}
s_lshl_b32 s{sTMP+6}, s{sW3}, 10
""")

            def R(s):
                return [f"ds_read_b64_tr_b16 {vr(BFv[s%3]+4*seg+2*i,2)}, v{4+seg} offset:{(16*s+4*i)*64}" for seg in segs for i in range(2)]

            def M(s):
                out = []
                for seg in segs:
                    c = "0" if s == 0 else vr(ACC[seg], 16)
                    b = vr(BFv[s % 3] + 4 * seg, 4)
                    if seg < 2:
                        out.append(f"v_mfma_f32_32x32x16_bf16 {vr(ACC[seg],16)}, {b}, {AF(s)}, {c}")
                    else:
                        out.append(f"v_mfma_f32_32x32x16_bf16 {vr(ACC[seg],16)}, {AF(s)}, {b}, {c}")
                return out

            def aload(s):
                out = []
                if s % 4 == 0 and s > 0:
                    out.append(f"s_add_u32 s{sTMP+2}, s{sTMP+2}, 4096")
                out.append(f"buffer_load_dwordx4 {AF(s)}, v11, {WS}, s{sTMP+2} offen offset:{(s%4)*1024} sc1")
                return out
            vt = {}
            for s in range(PD):
                a.e("\n".join(aload(s)))
                vt[s] = a.vm_tok()
            a.e("\n".join(R(0)))
            toks = {0: a.lg_tok()}
            a.e("\n".join(R(1)))
            toks[1] = a.lg_tok()
            for i in range(NS):
                r = R(i + 2) if i + 2 < NS else []
                a.wait_lg(toks[i])
                a.wait_vm(vt[i])
                a.e("\n".join(interleave(M(i), r)))
                if r:
                    toks[i + 2] = a.lg_tok()
                if i + PD < NS:
                    a.e("\n".join(aload(i + PD)))
                    vt[i + PD] = a.vm_tok()
                if i == int(os.environ.get("PRE", "4")) and "pre" in EXP:
                    self.pretouch()
                if wo and i < 16:
                    a.e(f"s_add_u32 m0, s{sTMP+6}, {L_WO + i*4096}\ns_add_u32 s{sTMP+7}, s{sTMP+5}, {i*32768}")
                    a.e(f"buffer_load_dwordx4 v126, s[{S_WO}:{S_WO+3}], s{sTMP+7} offen lds")
        L_h = a.label("Lp1h")
        L_j = a.label("Lp1j")
        a.e(f"s_cmp_ge_u32 s{sW}, 4\ns_cbranch_scc1 {L_h}")
        v0_, l0_ = a.vm_issued, a.lg_issued
        body([1, 2, 0])
        a.e(f"s_branch {L_j}\n{L_h}:")
        a.vm_issued, a.lg_issued = v0_, l0_
        body([1, 2], wo=True)
        a.e(f"{L_j}:")
        self.stamp(3)
        a.e("s_nop 15")

    def pretouch(self):
        a = self.a
        T = 84
        a.e(f"""
s_lshl_b32 s{T}, s{sRB}, 2
s_add_u32 s{T+1}, s{T}, s{sW3}
s_lshl_b32 s{T+2}, s{T+1}, 15
s_lshl_b32 s{T+3}, s{sJ}, 11
s_add_u32 s{T+2}, s{T+2}, s{T+3}
s_lshl_b32 s{T+3}, s{sWH}, 10
s_add_u32 s{T+2}, s{T+2}, s{T+3}
s_add_u32 s{T+2}, s{T+2}, {OBUF}
s_mul_i32 s{T+4}, s{T+1}, {112*1024}
s_mul_i32 s{T+3}, s{sJ}, {7*1024}
s_add_u32 s{T+4}, s{T+4}, s{T+3}
s_lshl_b32 s{T+3}, s{sWH}, 12
s_add_u32 s{T+4}, s{T+4}, s{T+3}
s_add_u32 s{T+4}, s{T+4}, {ACT}
s_lshr_b32 s{T+3}, s{sJ}, 3
s_lshl_b32 s{T+3}, s{T+3}, 1
s_add_u32 s{T}, s{T}, s{T+3}
s_and_b32 s{T+3}, s{sW}, 1
s_add_u32 s{T}, s{T}, s{T+3}
s_lshl_b32 s{T}, s{T}, 15
s_and_b32 s{T+3}, s{sJ}, 7
s_lshl_b32 s{T+5}, s{T+3}, 12
s_add_u32 s{T+5}, s{T+5}, s{T}
s_lshr_b32 s{T+6}, s{sW}, 1
s_lshl_b32 s{T+6}, s{T+6}, 10
s_add_u32 s{T+5}, s{T+5}, s{T+6}
s_add_u32 s{T+5}, s{T+5}, {H2BUF}
s_add_u32 s{T+6}, s{T+4}, 3072
s_cmp_lt_u32 s{sW}, 4
s_cselect_b32 s{T+6}, s{T+6}, 0x7fff0000
s_cmp_eq_u32 s{sPURE}, 0
s_cselect_b32 s{T+2}, 0x7fff0000, s{T+2}
s_cselect_b32 s{T+4}, 0x7fff0000, s{T+4}
s_cselect_b32 s{T+5}, 0x7fff0000, s{T+5}
s_cselect_b32 s{T+6}, 0x7fff0000, s{T+6}
buffer_store_dwordx4 v[8:11], v11, {WS}, s{T+2} offen
buffer_store_dwordx4 v[8:11], v11, {WS}, s{T+5} offen
buffer_store_dwordx4 v[8:11], v11, {WS}, s{T+4} offen
buffer_store_dwordx4 v[8:11], v11, {WS}, s{T+4} offen offset:1024
buffer_store_dwordx4 v[8:11], v11, {WS}, s{T+4} offen offset:2048
buffer_store_dwordx4 v[8:11], v11, {WS}, s{T+6} offen
""")
        if "nopre2" not in EXP:
            a.e(f"""
s_lshl_b32 s{T+2}, s{sP}, 14
s_lshl_b32 s{T+3}, s{sW3}, 12
s_add_u32 s{T+2}, s{T+2}, s{T+3}
s_add_u32 s{T+2}, s{T+2}, {KVX}
s_and_b32 s{T+3}, s{sRB}, 1
s_cmp_lg_u32 s{T+3}, s{sWH}
s_cselect_b32 s{T+2}, 0x7fff0000, s{T+2}
s_cmp_eq_u32 s{sPURE}, 0
s_cselect_b32 s{T+2}, 0x7fff0000, s{T+2}
s_lshl_b32 s{T+4}, s{sRB}, 17
s_lshr_b32 s{T+3}, s{sJ}, 3
s_lshl_b32 s{T+3}, s{T+3}, 16
s_add_u32 s{T+4}, s{T+4}, s{T+3}
s_lshl_b32 s{T+3}, s{sW}, 13
s_add_u32 s{T+4}, s{T+4}, s{T+3}
s_and_b32 s{T+3}, s{sJ}, 7
s_lshl_b32 s{T+3}, s{T+3}, 7
s_add_u32 s{T+4}, s{T+4}, s{T+3}
v_lshrrev_b32 v124, 3, v1
v_lshlrev_b32 v124, 10, v124
v_and_b32 v125, 7, v1
v_lshl_add_u32 v124, v125, 4, v124
buffer_store_dwordx4 v[8:11], v11, {WS}, s{T+2} offen
buffer_store_dwordx4 v[8:11], v11, {WS}, s{T+2} offen offset:1024
buffer_store_dwordx4 v[8:11], v11, {WS}, s{T+2} offen offset:2048
buffer_store_dwordx4 v[8:11], v11, {WS}, s{T+2} offen offset:3072
buffer_store_dwordx4 v[8:11], v124, s[{S_OUT}:{S_OUT+3}], s{T+4} offen
""")

    def phase2(self):
        a = self.a
        QF = 140
        for r in range(8):
            a.e(f"v_cvt_pk_bf16_f32 v{64+r}, v{32+2*r}, v{33+2*r}")
        for r in range(8):
            a.e(f"v_cvt_pk_bf16_f32 v{72+r}, v{48+2*r}, v{49+2*r}")
        a.e(f"""
v_and_b32 v8, 31, v1
v_lshrrev_b32 v9, 5, v1
v_bfe_u32 v5, v1, 2, 2
v_xor_b32 v9, v9, v5
v_lshlrev_b32 v7, 6, v8
v_lshl_add_u32 v12, v9, 4, v7
v_xor_b32 v9, 2, v9
v_lshl_add_u32 v13, v9, 4, v7
s_xor_b32 s{sTMP+3}, s{sWH}, 1
s_lshl_b32 s{sTMP+3}, s{sTMP+3}, 14
s_lshl_b32 s{sTMP+4}, s{sW3}, 11
s_add_u32 s{sTMP+3}, s{sTMP+3}, s{sTMP+4}
s_add_u32 s{sTMP+1}, s{sTMP+3}, {L_K}
s_add_u32 s{sTMP+2}, s{sTMP+3}, {L_V}
v_add_u32 v8, s{sTMP+1}, v12
v_add_u32 v9, s{sTMP+1}, v13
v_add_u32 v5, s{sTMP+2}, v12
v_add_u32 v7, s{sTMP+2}, v13
s_lshl_b32 s{sTMP+1}, s{sP}, 14
s_lshl_b32 s{sTMP+2}, s{sW3}, 12
s_add_u32 s{sTMP+1}, s{sTMP+1}, s{sTMP+2}
s_add_u32 s{sTMP+1}, s{sTMP+1}, {KVX}
s_lshl_b32 s{sTMP+5}, s{sP}, 4
s_lshl_b32 s{sTMP+2}, s{sW3}, 2
s_add_u32 s{sTMP+5}, s{sTMP+5}, s{sTMP+2}
s_add_u32 s{sTMP+5}, s{sTMP+5}, {FL_KV}
v_mov_b32 v14, s{sTAG}
v_mov_b32 v15, 0
s_and_b32 s{sTMP+6}, s{sRB}, 1
""")
        L_f = a.label("Lfetch")
        L_j = a.label("Lp2j")
        a.e(f"s_cmp_lg_u32 s{sTMP+6}, s{sWH}\ns_cbranch_scc1 {L_f}")
        v0_, l0_ = a.vm_issued, a.lg_issued
        st = f"""buffer_store_dwordx4 v[64:67], v12, {WS}, s{sTMP+1} offen
buffer_store_dwordx4 v[68:71], v13, {WS}, s{sTMP+1} offen
buffer_store_dwordx4 v[72:75], v12, {WS}, s{sTMP+1} offen offset:2048
buffer_store_dwordx4 v[76:79], v13, {WS}, s{sTMP+1} offen offset:2048
"""
        self.store_sel(st + self.flag_seq(f"s{sTMP+5}"))
        a.e(f"s_barrier\ns_branch {L_j}\n{L_f}:")
        a.vm_issued, a.lg_issued = v0_, l0_
        a.e(f"s_xor_b32 s{sTMP+5}, s{sTMP+5}, 256\ns_xor_b32 s{sTMP+1}, s{sTMP+1}, {16*16384}")
        self.poll(15, f"s{sTMP+5}", 80)
        a.e("s_barrier")
        for half in range(2):
            a.e(f"s_add_u32 m0, s{sTMP+4}, {L_K + 4*2048}")
            self.nocount(f"buffer_load_dwordx4 v11, {WS}, s{sTMP+1} offen offset:{half*1024} sc1 lds")
            a.e(f"s_add_u32 m0, s{sTMP+4}, {L_V + 4*2048 - 2048}")
            self.nocount(f"buffer_load_dwordx4 v11, {WS}, s{sTMP+1} offen offset:{2048 + half*1024} sc1 lds")
        a.e(f"{L_j}:")
        a.e(f"""
ds_write_b128 v8, v[64:67]
ds_write_b128 v9, v[68:71]
ds_write_b128 v5, v[72:75]
ds_write_b128 v7, v[76:79]
""")
        Lq = a.label("Lq0")
        a.e(f"s_cmp_ge_u32 s{sW}, 4\ns_cbranch_scc1 {Lq}")
        a.e(f"s_mov_b32 s{sTMP}, {f2u(QSCALE):#x}")
        for r in range(16):
            a.e(f"v_mul_f32 v{16+r}, s{sTMP}, v{16+r}")
        for r in range(4):
            a.e(f"v_cvt_pk_bf16_f32 v{QF+r}, v{16+2*r}, v{17+2*r}")
        for r in range(4):
            a.e(f"v_cvt_pk_bf16_f32 v{80+r}, v{24+2*r}, v{25+2*r}")
        a.e(f"""
s_lshl_b32 s{sTMP+4}, s{sW}, 10
s_add_u32 s{sTMP+4}, s{sTMP+4}, {L_QX}
v_add_u32 v5, s{sTMP+4}, v11
""")
        self.nocount("ds_write_b128 v5, v[80:83]")
        a.e(f"{Lq}:")
        if "valugemv" in EXP:
            a.e(f"""
s_lshl_b32 s{sTMP}, s{sW}, 5
s_add_u32 s{sTMP}, s{sTMP}, {L_SCR}
v_lshl_add_u32 v12, v3, 3, s{sTMP}
ds_write_b64 v12, v[132:133]
""")
        a.e("s_waitcnt vmcnt(0) lgkmcnt(0)\ns_barrier")
        self.stamp(5)
        Lq = a.label("Lq")
        Lw = a.label("Lwo")
        a.e(f"s_cmp_lt_u32 s{sW}, 4\ns_cbranch_scc1 {Lw}")
        a.e(f"s_lshl_b32 s{sTMP+4}, s{sW3}, 10\ns_add_u32 s{sTMP+4}, s{sTMP+4}, {L_QX}\nv_add_u32 v5, s{sTMP+4}, v11")
        self.nocount(f"ds_read_b128 v[{QF}:{QF+3}], v5")
        if "valugemv" in EXP:
            a.e(f"s_cmp_lg_u32 s{sW}, 4\ns_cbranch_scc1 {Lw}")
            a.e(f"v_and_b32 v13, 3, v1\nv_lshlrev_b32 v13, 3, v13\nv_add_u32 v14, {L_SCR}, v13")
            self.nocount("\n".join(f"ds_read_b64 v[{80+2*w}:{81+2*w}], v14 offset:{(4+w)*32}" for w in range(2)))
            a.e(f"""
s_lshr_b32 s{sTMP+5}, s{sP}, 6
s_cmp_eq_u32 s{sTMP+5}, 2
s_cselect_b32 s{sTMP+4}, 1.0, 0
s_lshl_b32 s{sTMP+5}, s{sP}, 5
s_add_u32 s{sTMP+5}, s{sTMP+5}, {MODG}
s_waitcnt lgkmcnt(0)
v_add_f32 v80, v80, v82
v_add_f32 v81, v81, v83
""")
            self.granule(80, 81, sTMP + 4, 82)
            a.e("s_mov_b64 exec, 0xf")
            self.nocount(f"buffer_store_dwordx2 v[82:83], v13, {WS}, s{sTMP+5} offen sc1")
            a.e("s_mov_b64 exec, -1")
        a.e(f"{Lw}:")
        a.e(f"{Lq}:\ns_waitcnt lgkmcnt(0)")
        self.gu_dma_setup()
        self.gu_dma_hi([0])
        if "nomall2" not in EXP:
            Lm = a.label("Lmall")
            a.e(f"""
s_lshr_b32 s{sTMP}, s{sW}, 1
s_cmp_lg_u32 s{sTMP}, 1
s_cbranch_scc1 {Lm}
s_lshl_b32 s{sTMP}, s{sP}, 1
s_and_b32 s{sTMP+1}, s{sW}, 1
s_add_u32 s{sTMP}, s{sTMP}, s{sTMP+1}
s_lshl_b32 s{sTMP}, s{sTMP}, 13
s_add_u32 s{sTMP+1}, s{sTMP}, {84*8192}
s_sub_u32 s{sTMP+2}, s{sTMP}, {140*8192}
s_cmp_lt_u32 s{sTMP+2}, {140*8192}
s_cselect_b32 s{sTMP+2}, s{sTMP+2}, 0x7fff0000
s_add_u32 s{sTMP+2}, s{sTMP+2}, {84*8192}
s_sub_u32 s{sTMP+3}, s{sTMP}, {280*8192}
s_min_u32 s{sTMP+3}, s{sTMP+3}, 0x7fff0000
""")
            self.nocount(f"buffer_load_dword v2, v10, s[{S_WG}:{S_WG+3}], s{sTMP+1} offen")
            self.nocount(f"buffer_load_dword v2, v10, s[{S_WU}:{S_WU+3}], s{sTMP+2} offen")
            self.nocount(f"buffer_load_dword v2, v10, s[{S_WD}:{S_WD+3}], s{sTMP+3} offen")
            a.e(f"{Lm}:")
        Lep = a.label("Lep")
        a.e(f"s_mov_b32 s101, 0\ns_cmp_lg_u32 s2, 0\ns_cbranch_scc1 {Lep}\ns_cmp_lg_u32 s{sW}, 7\ns_cbranch_scc1 {Lep}\nv_lshlrev_b32 v124, 3, v1\ns_mov_b32 s{sTMP}, {XID}")
        for q in range(4):
            self.nocount(f"buffer_load_dword v{125+q}, v124, {WS}, s{sTMP} offen offset:{4 + 512*q} sc1")
        a.e(f"{Lep}:")
        SB = [16, 32]
        CN, OA, PK, MK, MX = 48, 64, 80, 96, 104
        VF = [108, 116]
        KA = 0
        a.e(f"""
v_and_b32 v8, 31, v1
v_lshrrev_b32 v9, 5, v1
v_bfe_u32 v7, v1, 2, 2
s_lshl_b32 s{sTMP}, s{sWH}, 1
v_or_b32 v12, s{sTMP}, v9
v_xor_b32 v12, v12, v7
v_lshlrev_b32 v4, 6, v8
v_lshl_add_u32 v4, v12, 4, v4
s_lshl_b32 s{sTMP+1}, s{sW3}, 11
s_add_u32 s{sTMP+2}, s{sTMP+1}, {L_K}
v_add_u32 v4, s{sTMP+2}, v4
v_and_b32 v13, 15, v1
v_lshlrev_b32 v5, 6, v13
v_xor_b32 v12, v9, v7
v_lshl_add_u32 v5, v12, 4, v5
v_xor_b32 v12, 2, v12
v_lshlrev_b32 v6, 6, v13
v_lshl_add_u32 v6, v12, 4, v6
s_lshl_b32 s{sTMP+2}, s{sWH}, 10
s_add_u32 s{sTMP+2}, s{sTMP+2}, s{sTMP+1}
s_add_u32 s{sTMP+2}, s{sTMP+2}, {L_V}
v_add_u32 v5, s{sTMP+2}, v5
v_add_u32 v6, s{sTMP+2}, v6
s_lshl_b32 s{sTMP}, s{sRB}, 2
s_add_u32 s{sTMP}, s{sTMP}, s{sW3}
s_sub_u32 s{sIMIN}, 8, s{sTMP}
s_cmp_ge_u32 s{sTMP}, 8
s_cselect_b32 s{sIMIN}, 0, s{sIMIN}
s_mul_i32 s92, s{sT}, 35840
s_min_u32 s93, s{sW}, 4
s_lshl_b32 s93, s93, 13
s_add_u32 s92, s92, s93
s_add_u32 s92, s92, {192*3584}
""")
        order = [8, 0, 7, 6, 5, 4, 3, 2, 1]
        ktok = {}
        for i in order:
            a.e(f"ds_read_b128 {ar(KA+4*i,4)}, v4 offset:{i*2048}")
            ktok[i] = a.lg_tok()
        a.e(f"v_lshlrev_b32 v12, 2, v9\nv_sub_u32 v12, v8, v12")
        for r in range(16):
            kl = 8 * (r >> 2) + (r & 3)
            a.e(f"v_cmp_le_i32 s[{sMASK+2*r}:{sMASK+2*r+1}], {kl}, v12")
        a.e(f"v_mov_b32 v13, 0xffff\nv_mov_b32 v7, 0xffff0000")
        for j in range(8):
            a.e(f"v_cndmask_b32 v{MK+j}, 0, v13, s[{sMASK+4*j}:{sMASK+4*j+1}]")
            a.e(f"v_cndmask_b32 v12, 0, v7, s[{sMASK+4*j+2}:{sMASK+4*j+3}]")
            a.e(f"v_or_b32 v{MK+j}, v{MK+j}, v12")
        a.e(f"v_and_b32 v12, 27, v1\nv_cmp_eq_u32 vcc, 16, v12\nv_mov_b32 v13, 0x3f803f80")
        for r in range(16):
            a.e(f"v_cndmask_b32 v{VF[0]+r}, 0, v13, vcc")
        Q = vr(QF, 4)

        touches = [None, (S_WG, 0), None, (S_WU, 0)]

        def touch_one():
            if "atouch" not in EXP or not touches:
                return
            t_ = touches.pop(0)
            if t_ is None:
                return
            srd, off = t_
            Ln = a.label("Lnt")
            a.e(f"s_cmp_gt_u32 s{sW}, 4\ns_cbranch_scc1 {Ln}\ns_add_u32 s93, s92, {off}")
            self.nocount(f"buffer_load_dword v2, v10, s[{srd}:{srd+3}], s93 offen")
            a.e(f"{Ln}:")

        def smfma(buf, i, c):
            return f"v_mfma_f32_32x32x16_bf16 {vr(SB[buf],16)}, {ar(KA+4*i,4)}, {Q}, {c}"

        def fix_trail():
            Ln = a.label("Lnt")
            a.e(f"s_cmp_eq_u32 s{sIMIN}, 0\ns_cbranch_scc1 {Ln}")
            a.e("s_nop 12")
            for r in range(16):
                a.e(f"v_mov_b32 v{SB[1]+r}, {NEG_BIG:#x}")
            a.e(f"{Ln}:\ns_nop 12")

        def merge():
            for r in range(16):
                a.e(f"v_cndmask_b32 v{SB[0]+r}, v{SB[1]+r}, v{SB[0]+r}, s[{sMASK+2*r}:{sMASK+2*r+1}]")

        touch_one()
        a.wait_lg(ktok[0])
        a.e(smfma(0, 8, "0"))
        a.e(smfma(1, 0, "0"))
        fix_trail()
        merge()
        a.wait_lg(ktok[7])
        a.e(smfma(1, 7, "0"))
        a.e(f"v_max3_f32 v{MX}, v{SB[0]}, v{SB[0]+1}, v{SB[0]+2}")
        for r in range(3, 15, 2):
            a.e(f"v_max3_f32 v{MX}, v{MX}, v{SB[0]+r}, v{SB[0]+r+1}")
        a.e(f"v_max_f32 v{MX}, v{MX}, v{SB[0]+15}")
        Le1 = a.label("Lp1e")
        buf = 1
        for i in range(7, 0, -1):
            a.e(f"s_cmp_gt_u32 s{sIMIN}, {i}\ns_cbranch_scc1 {Le1}")
            if i > 1:
                a.wait_lg(ktok[i - 1])
                a.e(smfma(1 - buf, i - 1, "0"))
            for r in range(0, 16, 2):
                a.e(f"v_max3_f32 v{MX}, v{MX}, v{SB[buf]+r}, v{SB[buf]+r+1}")
            buf = 1 - buf
        a.e(f"{Le1}:\ns_waitcnt lgkmcnt(0)\ns_nop 12")
        self.group_allsum([MX], [MX + 1], op="v_max_f32", stages=("32",))
        for r in range(16):
            a.e(f"v_sub_f32 v{CN+r}, 0, v{MX}")
        C = vr(CN, 16)

        def vread(b, i):
            return [f"s_mov_b32 exec_lo, 0xffff", f"s_mov_b32 exec_hi, 0xffff",
                    f"ds_read_b128 {vr(VF[b],4)}, v5 offset:{i*2048}", f"ds_read_b128 {vr(VF[b]+4,4)}, v6 offset:{i*2048}",
                    "s_mov_b64 exec, -1"]

        def expack(buf, dst):
            for r in range(16):
                a.e(f"v_exp_f32 v{SB[buf]+r}, v{SB[buf]+r}")
            for j in range(8):
                a.e(f"v_cvt_pk_bf16_f32 v{dst+j}, v{SB[buf]+2*j}, v{SB[buf]+2*j+1}")

        def pv(vb, p, first=False):
            a.e(f"v_mfma_f32_32x32x16_bf16 {vr(OA,16)}, {vr(VF[vb],4)}, {vr(p,4)}, {'0' if first else vr(OA,16)}")
            a.e(f"v_mfma_f32_32x32x16_bf16 {vr(OA,16)}, {vr(VF[vb]+4,4)}, {vr(p+4,4)}, {vr(OA,16)}")

        touch_one()
        a.e("\n".join(vread(0, 8) + vread(1, 0)))
        tv = a.lg_tok()
        a.e(smfma(0, 8, C))
        a.e(smfma(1, 0, C))
        fix_trail()
        merge()
        a.e(smfma(1, 7, C))
        expack(0, PK)
        for j in range(8):
            a.e(f"v_and_b32 v{PK+8+j}, v{PK+j}, v{MK+j}")
        for j in range(8):
            a.e(f"v_xor_b32 v{PK+j}, v{PK+j}, v{PK+8+j}")
        a.wait_lg(tv)
        pv(0, PK + 8, first=True)
        Lnt = a.label("Lnpv")
        a.e(f"s_cmp_lg_u32 s{sIMIN}, 0\ns_cbranch_scc1 {Lnt}")
        pv(1, PK)
        a.e(f"{Lnt}:")
        Le2 = a.label("Lp2e")
        buf = 1
        vb = 0
        a.e("\n".join(vread(0, 7)))
        for i in range(7, 0, -1):
            a.e(f"s_cmp_gt_u32 s{sIMIN}, {i}\ns_cbranch_scc1 {Le2}")
            tv = a.lg_tok()
            if i > 1:
                a.e(smfma(1 - buf, i - 1, C))
                a.e("\n".join(vread(1 - vb, i - 1)))
            if i in (6, 4):
                touch_one()
            p = PK + 8 * (i & 1)
            expack(buf, p)
            a.wait_lg(tv)
            pv(vb, p)
            buf = 1 - buf
            vb = 1 - vb
        a.e(f"{Le2}:\ns_waitcnt lgkmcnt(0)\ns_nop 15")
        a.e(f"v_rcp_f32 v{MX}, v{OA+8}")
        for r in range(8):
            a.e(f"v_mul_f32 v{OA+r}, v{MX}, v{OA+r}")
        for j in range(4):
            a.e(f"v_cvt_pk_bf16_f32 v{PK+j}, v{OA+2*j}, v{OA+2*j+1}")
        a.e(f"""
s_lshl_b32 s{sTMP}, s{sRB}, 2
s_add_u32 s{sTMP}, s{sTMP}, s{sW3}
s_lshl_b32 s{sTMP}, s{sTMP}, 15
s_lshl_b32 s{sTMP+1}, s{sJ}, 11
s_add_u32 s{sTMP}, s{sTMP}, s{sTMP+1}
s_lshl_b32 s{sTMP+1}, s{sWH}, 10
s_add_u32 s{sTMP}, s{sTMP}, s{sTMP+1}
s_add_u32 s{sTMP}, s{sTMP}, {OBUF}
s_lshl_b32 s{sTMP+1}, s{sP}, 5
s_lshl_b32 s{sTMP+2}, s{sW}, 2
s_add_u32 s{sTMP+1}, s{sTMP+1}, s{sTMP+2}
s_add_u32 s{sTMP+1}, s{sTMP+1}, {FL_O}
v_mov_b32 v14, s{sTAG}
v_mov_b32 v15, 0
""")
        self.store_sel(f"buffer_store_dwordx4 v[{PK}:{PK+3}], v11, {WS}, s{sTMP} offen\n" + self.flag_seq(f"s{sTMP+1}"))
        Lep = a.label("Lep2")
        a.e(f"""
s_cmp_lg_u32 s2, 0
s_cbranch_scc1 {Lep}
s_cmp_lg_u32 s{sW}, 7
s_cbranch_scc1 {Lep}
v_xor_b32 v125, s{sTAG}, v125
v_xor_b32 v126, s{sTAG}, v126
v_xor_b32 v127, s{sTAG}, v127
v_xor_b32 v128, s{sTAG}, v128
v_or3_b32 v125, v125, v126, v127
v_or_b32 v125, v125, v128
v_cmp_ne_u32 vcc, 0, v125
s_cbranch_vccnz {Lep}
s_mov_b32 s101, 1
s_mov_b64 exec, 1
""")
        self.nocount(f"buffer_store_dword v14, v15, {WS}, 0 offen offset:{EPOCH} sc1")
        a.e(f"s_mov_b64 exec, -1\n{Lep}:")
        self.stamp(6)
        self.gu_dma_setup(lanes=False)
        a.e("s_barrier")

    def w64_lane(self, vd, stride=1024):
        self.a.e(f"""
v_lshrrev_b32 v{vd}, 3, v1
v_mul_u32_u24 v{vd}, {stride}, v{vd}
v_and_b32 v2, 7, v1
v_bfe_u32 v{vd+1}, v1, 4, 1
v_lshlrev_b32 v{vd+1}, 2, v{vd+1}
v_xor_b32 v2, v2, v{vd+1}
v_lshl_add_u32 v{vd}, v2, 4, v{vd}
""")

    def tr64_bases(self, vd):
        self.a.e(f"""
v_lshrrev_b32 v8, 5, v1
v_bfe_u32 v9, v1, 2, 2
v_lshl_add_u32 v8, v8, 3, v9
v_lshlrev_b32 v8, 7, v8
v_bfe_u32 v12, v1, 4, 1
v_lshl_add_u32 v8, v12, 5, v8
v_and_b32 v12, 1, v1
v_lshl_add_u32 v8, v12, 4, v8
v_bfe_u32 v12, v1, 1, 1
v_lshl_add_u32 v8, v12, 3, v8
v_lshrrev_b32 v9, 1, v9
v_lshl_add_u32 v{vd}, v9, 6, v8
v_xor_b32 v9, 1, v9
v_lshl_add_u32 v{vd+1}, v9, 6, v8
""")

    def gu_dma_setup(self, lanes=True):
        a = self.a
        a.e(f"""
s_cmp_ge_u32 s{sW3}, 2
s_cselect_b32 s{S_SEL}, s{S_WU}, s{S_WG}
s_cselect_b32 s{S_SEL+1}, s{S_WU+1}, s{S_WG+1}
s_cselect_b32 s76, {GU_UP}, 0
s_mov_b32 s{S_SEL+2}, 1835008
s_mov_b32 s{S_SEL+3}, 0x20000
s_mov_b32 s84, 4682
s_and_b32 s86, s{sW}, 1
s_mul_i32 s85, s86, {32*3584}
s_mul_i32 s87, s{sJ}, 224
s_add_u32 s85, s85, s87
s_mul_i32 s86, s86, 7168
s_add_u32 s76, s76, s86
""")
        for i in range(7 if lanes else 0):
            a.e(f"""
v_add_u32 v12, {64*i}, v1
v_mul_u32_u24 v13, s84, v12
v_lshrrev_b32 v13, 16, v13
v_mul_u32_u24 v{144+i}, 14, v13
v_sub_u32 v12, v12, v{144+i}
v_mul_u32_u24 v{144+i}, 3584, v13
v_lshl_add_u32 v{144+i}, v12, 4, v{144+i}
""")

    def gu_dma(self, chunk):
        out = []
        for i in range(7):
            out.append(f"s_add_u32 s86, s85, {chunk*64*3584}\ns_add_u32 m0, s76, {GU_SLOT[chunk%4] + i*1024}\n"
                       f"buffer_load_dwordx4 v{144+i}, s[{S_SEL}:{S_SEL+3}], s86 offen{NTG} lds")
        return out

    def gu_dma_hi(self, chunks):
        a = self.a
        Ln = a.label("Lgh")
        a.e(f"s_cmp_lt_u32 s{sW}, 4\ns_cbranch_scc1 {Ln}")
        for c in chunks:
            self.nocount("\n".join(self.gu_dma(c)))
        a.e(f"{Ln}:")

    def reduce_scatter4(self, ACC, base, dst):
        a = self.a
        a.e(f"""
s_and_b32 s{sTMP+1}, s{sW}, 1
s_lshl_b32 s{sTMP+1}, s{sTMP+1}, 15
s_lshr_b32 s{sTMP+5}, s{sW}, 1
s_lshl_b32 s{sTMP+6}, s{sTMP+5}, 11
s_add_u32 s{sTMP+6}, s{sTMP+6}, s{sTMP+1}
s_add_u32 s{sTMP+6}, s{sTMP+6}, {base}
v_add_u32 v12, s{sTMP+6}, v11
s_lshl_b32 s{sTMP+6}, s{sTMP+5}, 13
s_add_u32 s{sTMP+6}, s{sTMP+6}, s{sTMP+1}
s_add_u32 s{sTMP+6}, s{sTMP+6}, {base}
v_add_u32 v13, s{sTMP+6}, v11
""")
        for q in range(4):
            for hf in range(2):
                a.e(f"ds_write_b128 v12, {vr(ACC+8*q+4*hf,4)} offset:{q*8192 + hf*1024}")
        a.e("s_waitcnt lgkmcnt(0)\ns_barrier")
        for src in range(4):
            for hf in range(2):
                a.e(f"ds_read_b128 {vr(ACC+8*src+4*hf,4)}, v13 offset:{src*2048 + hf*1024}")
        a.e("s_waitcnt lgkmcnt(0)")
        for r in range(8):
            a.e(f"v_add_f32 v{ACC+r}, v{ACC+r}, v{ACC+8+r}\nv_add_f32 v{ACC+16+r}, v{ACC+16+r}, v{ACC+24+r}")
        for r in range(8):
            a.e(f"v_add_f32 v{dst+r}, v{ACC+r}, v{ACC+16+r}")

    def phase3(self):
        a = self.a
        a.e(f"""
s_lshr_b32 s{sTMP+3}, s{sJ}, 3
s_lshl_b32 s{sTMP+3}, s{sTMP+3}, 1
s_and_b32 s{sTMP+1}, s{sW}, 1
s_add_u32 s{sTMP+3}, s{sTMP+3}, s{sTMP+1}
s_lshr_b32 s{sTMP+5}, s{sW}, 1
s_and_b32 s{sTMP+7}, s{sTMP+5}, 1
s_lshl_b32 s{sTMP}, s{sRB}, 9
s_lshl_b32 s{sTMP+1}, s{sTMP+3}, 2
s_add_u32 s{sTMP}, s{sTMP}, s{sTMP+1}
s_lshl_b32 s{sTMP+1}, s{sTMP+5}, 7
s_add_u32 s89, s{sTMP}, s{sTMP+1}
s_lshl_b32 s{sTMP+1}, s{sTMP+7}, 8
s_add_u32 s{sTMP}, s{sTMP}, s{sTMP+1}
s_add_u32 s{sTMP}, s{sTMP}, {FL_O}
v_and_b32 v14, 3, v1
v_lshlrev_b32 v14, 5, v14
v_bfe_u32 v15, v1, 2, 1
v_lshl_add_u32 v153, v15, 4, v14
v_and_b32 v14, 7, v1
v_lshlrev_b32 v14, 5, v14
v_bfe_u32 v15, v1, 3, 1
v_lshl_add_u32 v14, v15, 4, v14
s_lshl_b32 s88, s{sRB}, 2
s_add_u32 s88, s88, s{sTMP+3}
s_lshl_b32 s{sTMP+2}, s88, 15
s_lshl_b32 s{sTMP+1}, s{sTMP+7}, 14
s_add_u32 s{sTMP+2}, s{sTMP+2}, s{sTMP+1}
s_add_u32 s{sTMP+2}, s{sTMP+2}, {OBUF}
""")
        self.tr64_bases(154)
        a.e(f"""
s_cmp_ge_u32 s{sW}, 4
s_cselect_b64 vcc, -1, 0
v_cndmask_b32 v4, v154, v155, vcc
s_lshl_b32 s{sTMP+1}, s{sTMP+7}, 15
s_add_u32 s{sTMP+1}, s{sTMP+1}, {L_WO}
v_add_u32 v4, s{sTMP+1}, v4
v_and_b32 v12, 31, v1
v_lshlrev_b32 v12, 10, v12
v_lshrrev_b32 v13, 5, v1
v_lshl_add_u32 v151, v13, 4, v12
s_lshl_b32 s80, s88, 15
s_and_b32 s{sTMP+6}, s{sJ}, 7
s_lshl_b32 s{sTMP+6}, s{sTMP+6}, 7
s_add_u32 s80, s80, s{sTMP+6}
s_lshl_b32 s{sTMP+1}, s{sTMP+5}, 5
s_add_u32 s80, s80, s{sTMP+1}
v_lshlrev_b32 v12, 11, v3
v_and_b32 v13, 15, v1
v_lshl_add_u32 v12, v13, 4, v12
s_lshl_b32 s{sTMP+6}, s{sTMP+6}, 1
s_add_u32 s{sTMP+6}, s{sTMP+6}, {MODG}
""")
        XR = 124
        a.e(f"buffer_load_dwordx4 v[{XR}:{XR+3}], v151, s[{S_X}:{S_X+3}], s80 offen")
        Lt = a.label("Ltab")
        L = a.label("T")
        Lo = a.label("To")
        a.e(f"s_cmp_lg_u32 s{sW}, 2\ns_cbranch_scc1 {Lt}\ns_mov_b32 s{sTMP+11}, 0\n{L}:")
        self.nocount(f"buffer_load_dwordx4 v[96:99], v12, {WS}, s{sTMP+6} offen sc1")
        a.e(f"""
s_add_u32 s{sTMP+11}, s{sTMP+11}, 1
s_cmp_gt_u32 s{sTMP+11}, 400000
s_cbranch_scc1 {Lo}
s_waitcnt vmcnt(0)
v_xor_b32 v100, s{sTAG}, v97
v_xor_b32 v101, s{sTAG}, v99
v_or_b32 v100, v100, v101
v_cmp_ne_u32 vcc, 0, v100
s_cbranch_vccnz {L}
{Lo}:
s_waitcnt vmcnt(0)
v_and_b32 v97, 0xffff0000, v96
v_lshlrev_b32 v96, 16, v96
v_and_b32 v99, 0xffff0000, v98
v_lshlrev_b32 v98, 16, v98
v_add_u32 v12, {L_TAB}, v11
""")
        self.nocount("ds_write_b128 v12, v[96:99]")
        a.e(f"{Lt}:")
        ACC = 16
        BF = [32, 36, 40]
        AF = lambda s: ar(4 * s, 4)

        def R(s):
            return [f"ds_read_b64_tr_b16 {vr(BF[s%3]+2*i,2)}, v4 offset:{(16*s+4*i)*128}" for i in range(2)]

        a.e("s_waitcnt lgkmcnt(0)")
        toks = {}
        for s in range(2):
            a.e("\n".join(R(s)))
            toks[s] = a.lg_tok()
        self.poll(14, f"s{sTMP}", 15)
        self.stamp(7)
        vt = {}
        for s in range(16):
            if s % 4 == 0 and s:
                a.e(f"s_add_u32 s{sTMP+2}, s{sTMP+2}, 4096")
            a.e(f"buffer_load_dwordx4 {AF(s)}, v11, {WS}, s{sTMP+2} offen offset:{(s%4)*1024}")
            vt[s] = a.vm_tok()
        for s in range(16):
            a.wait_lg(toks[s])
            a.wait_vm(vt[s])
            a.e(f"v_mfma_f32_32x32x16_bf16 {vr(ACC,16)}, {vr(BF[s%3],4)}, {AF(s)}, {'0' if s == 0 else vr(ACC,16)}")
            if s + 2 < 16:
                a.e("\n".join(R(s + 2)))
                toks[s + 2] = a.lg_tok()
        self.stamp(18)
        a.e(f"""
s_and_b32 s{sTMP+1}, s{sW}, 1
s_lshl_b32 s{sTMP+1}, s{sTMP+1}, 14
s_lshl_b32 s{sTMP+6}, s{sWH}, 13
s_add_u32 s{sTMP+1}, s{sTMP+1}, s{sTMP+6}
s_add_u32 s{sTMP+1}, s{sTMP+1}, {L_RED}
s_lshl_b32 s{sTMP+6}, s{sTMP+7}, 11
s_add_u32 s{sTMP+6}, s{sTMP+6}, s{sTMP+1}
v_add_u32 v12, s{sTMP+6}, v11
s_lshl_b32 s{sTMP+6}, s{sTMP+7}, 12
s_add_u32 s{sTMP+6}, s{sTMP+6}, s{sTMP+1}
v_add_u32 v13, s{sTMP+6}, v11
""")
        for q in range(2):
            for hf in range(2):
                a.e(f"ds_write_b128 v12, {vr(ACC+8*q+4*hf,4)} offset:{q*4096 + hf*1024}")
        a.e("s_waitcnt lgkmcnt(0)\ns_barrier")
        self.stamp(19)
        if "g12a" in EXP or not ("g12b" in EXP or "g12c" in EXP):
            self.gu_dma_hi([1, 2])
        for src in range(2):
            for hf in range(2):
                a.e(f"ds_read_b128 {vr(ACC+8*src+4*hf,4)}, v13 offset:{src*2048 + hf*1024}")
        GA, SBv, G2 = 56, 64, 72
        a.e(f"""
v_lshrrev_b32 v13, 5, v1
v_lshlrev_b32 v13, 5, v13
s_lshl_b32 s{sTMP+5}, s{sTMP+5}, 6
s_add_u32 s{sTMP+5}, s{sTMP+5}, {L_TAB}
v_add_u32 v13, s{sTMP+5}, v13
ds_read_b128 {vr(GA,4)}, v13
ds_read_b128 {vr(GA+4,4)}, v13 offset:16
ds_read_b128 {vr(SBv,4)}, v13 offset:256
ds_read_b128 {vr(SBv+4,4)}, v13 offset:272
ds_read_b128 {vr(G2,4)}, v13 offset:512
ds_read_b128 {vr(G2+4,4)}, v13 offset:528
ds_read_b128 a[88:91], v13 offset:768
ds_read_b128 a[92:95], v13 offset:784
""")
        X1 = 96
        X1P = 132
        for q in range(4):
            a.e(f"v_lshlrev_b32 v{X1+2*q}, 16, v{XR+q}\nv_and_b32 v{X1+1+2*q}, 0xffff0000, v{XR+q}")
        a.e("s_waitcnt lgkmcnt(6)")
        for r in range(8):
            a.e(f"v_add_f32 v{ACC+r}, v{ACC+r}, v{ACC+8+r}")
        for r in range(8):
            a.e(f"v_fmac_f32 v{X1+r}, v{GA+r}, v{ACC+r}")
        for q in range(4):
            a.e(f"v_cvt_pk_bf16_f32 v{X1P+q}, v{X1+2*q}, v{X1+1+2*q}")
        for q in range(4):
            a.e(f"v_lshlrev_b32 v{X1+2*q}, 16, v{X1P+q}\nv_and_b32 v{X1+1+2*q}, 0xffff0000, v{X1P+q}")
        a.e(f"v_add_f32 v16, v{X1}, v{X1+1}\nv_mul_f32 v17, v{X1}, v{X1}")
        for r in range(2, 8):
            a.e(f"v_add_f32 v16, v16, v{X1+r}")
        for r in range(1, 8):
            a.e(f"v_fmac_f32 v17, v{X1+r}, v{X1+r}")
        self.group_allsum([16, 17], [20, 21], stages=("32",))
        a.e(f"""
v_and_b32 v12, 31, v1
v_lshlrev_b32 v12, 5, v12
s_and_b32 s{sTMP+1}, s{sW}, 1
s_lshl_b32 s{sTMP+1}, s{sTMP+1}, 10
s_add_u32 s{sTMP+1}, s{sTMP+1}, {L_ST}
v_add_u32 v12, s{sTMP+1}, v12
s_lshr_b32 s{sTMP+5}, s{sW}, 1
s_lshl_b32 s{sTMP+5}, s{sTMP+5}, 3
v_add_u32 v13, s{sTMP+5}, v12
ds_write_b64 v13, v[16:17]
s_waitcnt lgkmcnt(0)
s_barrier
""")
        if self.dump:
            a.e(f"s_add_u32 s{sTMP+7}, s80, {X1DBG}")
            self.nocount(f"buffer_store_dwordx4 v[{X1P}:{X1P+3}], v151, {WS}, s{sTMP+7} offen")
        self.stamp(20)
        if "g12b" in EXP:
            self.gu_dma_hi([1, 2])
        L_j = a.label("Lp3j")
        a.e(f"s_cmp_ge_u32 s{sW}, 2\ns_cbranch_scc1 {L_j}")
        v0_, l0_ = a.vm_issued, a.lg_issued
        a.e(f"""
ds_read_b128 v[20:23], v12
ds_read_b128 v[24:27], v12 offset:16
v_mov_b32 v18, s{sTAG}
v_mov_b32 v19, s{sTAG}
v_and_b32 v13, 31, v1
v_lshlrev_b32 v13, 7, v13
s_lshl_b32 s{sTMP+5}, s88, 12
s_add_u32 s{sTMP+5}, s{sTMP+5}, {SGRAN}
s_and_b32 s{sTMP+6}, s{sJ}, 7
s_lshl_b32 s{sTMP+6}, s{sTMP+6}, 4
s_add_u32 s{sTMP+6}, s{sTMP+6}, s{sTMP+5}
v_lshrrev_b32 v2, 5, v1
v_lshl_add_u32 v2, v2, 6, v13
s_waitcnt lgkmcnt(0)
v_add_f32 v16, v20, v22
v_add_f32 v17, v21, v23
v_add_f32 v24, v24, v26
v_add_f32 v25, v25, v27
v_add_f32 v16, v16, v24
v_add_f32 v17, v17, v25
""")
        self.store_sel(f"s_mov_b32 exec_hi, 0\nbuffer_store_dwordx4 v[16:19], v13, {WS}, s{sTMP+6} offen\ns_mov_b64 exec, -1")
        L = a.label("SG")
        Lo = a.label("SGo")
        a.e(f"s_mov_b32 s{sTMP+11}, 0\n{L}:")
        self.nocount("\n".join(f"buffer_load_dwordx4 v[{20+4*q}:{23+4*q}], v2, {WS}, s{sTMP+5} offen offset:{16*q} sc1" for q in range(4)))
        a.e(f"""
s_add_u32 s{sTMP+11}, s{sTMP+11}, 1
s_cmp_gt_u32 s{sTMP+11}, 400000
s_cbranch_scc1 {Lo}
s_waitcnt vmcnt(0)
v_xor_b32 v36, s{sTAG}, v22
v_xor_b32 v37, s{sTAG}, v26
v_or_b32 v36, v36, v37
v_xor_b32 v37, s{sTAG}, v30
v_or_b32 v36, v36, v37
v_xor_b32 v37, s{sTAG}, v34
v_or_b32 v36, v36, v37
v_cmp_ne_u32 vcc, 0, v36
s_cbranch_vccnz {L}
{Lo}:
s_waitcnt vmcnt(0)
v_add_f32 v16, v20, v24
v_add_f32 v17, v21, v25
v_add_f32 v28, v28, v32
v_add_f32 v29, v29, v33
v_add_f32 v16, v16, v28
v_add_f32 v17, v17, v29
""")
        self.group_allsum([16, 17], [20, 21], stages=("32",))
        a.e(f"""
v_mul_f32 v16, {f2u(1/512):#x}, v16
v_mul_f32 v17, {f2u(1/512):#x}, v17
v_fma_f32 v17, -v16, v16, v17
v_max_f32 v17, 0, v17
v_add_f32 v17, {f2u(1e-5):#x}, v17
v_rsq_f32 v18, v17
v_mul_f32 v19, v16, v18
v_sub_f32 v19, 0, v19
ds_write_b64 v12, v[18:19] offset:2048
s_waitcnt lgkmcnt(0)
""")
        self.stamp(21)
        a.vm_issued, a.lg_issued = v0_, l0_
        a.e(f"{L_j}:")
        a.e(f"""
s_lshl_b32 s{sTMP+5}, s88, 15
s_and_b32 s{sTMP+6}, s{sJ}, 7
s_lshl_b32 s{sTMP+6}, s{sTMP+6}, 12
s_add_u32 s{sTMP+5}, s{sTMP+5}, s{sTMP+6}
s_lshr_b32 s{sTMP+6}, s{sW}, 1
s_lshl_b32 s{sTMP+6}, s{sTMP+6}, 10
s_add_u32 s{sTMP+5}, s{sTMP+5}, s{sTMP+6}
s_add_u32 s{sTMP+5}, s{sTMP+5}, {H2BUF}
s_lshl_b32 s{sTMP+6}, s{sP}, 5
s_lshl_b32 s{sTMP+7}, s{sW}, 2
s_add_u32 s{sTMP+6}, s{sTMP+6}, s{sTMP+7}
s_add_u32 s{sTMP+6}, s{sTMP+6}, {FL_H2}
v_mov_b32 v14, s{sTAG}
v_mov_b32 v15, 0
s_barrier
ds_read_b64 v[18:19], v12 offset:2048
s_waitcnt lgkmcnt(0)
""")
        for r in range(8):
            a.e(f"v_fma_f32 v{X1+r}, v{X1+r}, v18, v19")
        for q in range(4):
            a.e(f"v_cvt_pk_bf16_f32 v{32+q}, v{X1+2*q}, v{X1+1+2*q}")
        for q in range(4):
            a.e(f"v_lshlrev_b32 v{X1+2*q}, 16, v{32+q}\nv_and_b32 v{X1+1+2*q}, 0xffff0000, v{32+q}")
        for r in range(8):
            a.e(f"v_fma_f32 v{X1+r}, v{X1+r}, v{G2+r}, v{SBv+r}")
        for q in range(4):
            a.e(f"v_cvt_pk_bf16_f32 v{32+q}, v{X1+2*q}, v{X1+1+2*q}")
        self.store_sel(f"buffer_store_dwordx4 v[32:35], v11, {WS}, s{sTMP+5} offen\n" + self.flag_seq(f"s{sTMP+6}"))
        self.stamp(8)

    def d_dma_setup(self):
        a = self.a
        self.w64_lane(12)
        a.e(f"""
v_mov_b32 v152, v12
s_and_b32 s81, s{sJ}, 7
s_lshl_b32 s81, s81, 7
s_lshl_b32 s83, s{sW}, 13
s_add_u32 s81, s81, s83
s_lshl_b32 s82, s{sW}, 10
""")

    def d_dma(self, c):
        return [f"s_add_u32 m0, s82, {D_SLOT[c%4] + q*8192}\ns_add_u32 s83, s81, {(448*q + 64*c)*1024}\n"
                f"buffer_load_dwordx4 v152, s[{S_WD}:{S_WD+3}], s83 offen{NTD} lds" for q in range(4)]

    def phase4(self):
        a = self.a
        self.d_dma_setup()
        a.e(f"""
s_lshl_b32 s{sTMP}, s{sRB}, 9
s_lshr_b32 s{sTMP+1}, s{sW3}, 1
s_lshl_b32 s{sTMP+1}, s{sTMP+1}, 8
s_add_u32 s{sTMP}, s{sTMP}, s{sTMP+1}
s_and_b32 s{sTMP+1}, s{sW3}, 1
s_lshl_b32 s{sTMP+1}, s{sTMP+1}, 2
s_add_u32 s{sTMP}, s{sTMP}, s{sTMP+1}
s_add_u32 s{sTMP}, s{sTMP}, {FL_H2}
v_and_b32 v14, 7, v1
v_lshlrev_b32 v14, 5, v14
v_bfe_u32 v15, v1, 3, 2
v_lshl_add_u32 v14, v15, 3, v14
s_lshl_b32 s{sTMP+2}, s{sRB}, 2
s_add_u32 s{sTMP+2}, s{sTMP+2}, s{sW3}
s_lshl_b32 s{sTMP+2}, s{sTMP+2}, 15
s_add_u32 s{sTMP+2}, s{sTMP+2}, {H2BUF}
v_lshrrev_b32 v8, 5, v1
v_bfe_u32 v9, v1, 2, 2
v_lshl_add_u32 v9, v8, 3, v9
v_mul_u32_u24 v7, 224, v9
v_bfe_u32 v9, v1, 4, 1
v_mul_u32_u24 v9, {GU_UP}, v9
v_add_u32 v7, v7, v9
v_and_b32 v9, 1, v1
v_lshl_add_u32 v7, v9, 4, v7
v_bfe_u32 v9, v1, 1, 1
v_lshl_add_u32 v7, v9, 3, v7
v_add_u32 v4, {GU_SLOT[0]}, v7
v_add_u32 v5, {GU_SLOT[1]}, v7
v_add_u32 v6, {GU_SLOT[2]}, v7
s_barrier
""")
        ACC = [16 + 16 * T for T in range(7)]
        BF = [0, 28]
        NA = 8
        PD = 6
        slot = lambda i: ar(56 + 4 * (i % NA), 4)

        def body(kp):
            def aload(i):
                s_ = 2 * i + kp
                out = []
                if i % 2 == 0 and i > 0:
                    out.append(f"s_add_u32 s{sTMP+2}, s{sTMP+2}, 4096")
                out.append(f"buffer_load_dwordx4 {slot(i)}, v11, {WS}, s{sTMP+2} offen offset:{(s_%4)*1024} sc1")
                return out

            def R(i):
                s_ = 2 * i + kp
                c, sl = s_ // 4, s_ % 4
                return [f"ds_read_b64_tr_b16 {ar(BF[i%2]+4*T+2*ii,2)}, v{4 + c%4} offset:{(16*sl+4*ii)*224 + T*32}" for T in range(7) for ii in range(2)]

            def M(i):
                return [f"v_mfma_f32_32x32x16_bf16 {vr(ACC[T],16)}, {ar(BF[i%2]+4*T,4)}, {slot(i)}, {'0' if i == 0 else vr(ACC[T],16)}" for T in range(7)]
            toks = {}
            a.e("\n".join(R(0)))
            toks[0] = a.lg_tok()
            self.poll(14, f"s{sTMP}", 15)
            self.stamp(9)
            vt = {}
            for i in range(PD):
                a.e("\n".join(aload(i)))
                vt[i] = a.vm_tok()
            gtok = {}
            mine = lambda c: (c & 1) != kp
            pend = []
            if "g12c" in EXP:
                for g in self.gu_dma(1 if mine(1) else 2):
                    a.e(g)
            gtok[1 if mine(1) else 2] = a.vm_tok()
            if mine(3):
                pend += [(3, g) for g in self.gu_dma(3)]
            for i in range(16):
                c = i // 2
                a.wait_lg(toks[i])
                if i % 2 == 1 and c + 1 < 8:
                    if mine(c + 1):
                        assert (c + 1) in gtok and not any(p[0] == c + 1 for p in pend)
                        a.wait_vm(gtok[c + 1])
                    a.e("s_barrier")
                    if c + 4 < 8 and mine(c + 4):
                        pend += [(c + 4, g) for g in self.gu_dma(c + 4)]
                    if c == 6:
                        pend += [(100, g) for g in self.d_dma(0)]
                    if c == 4 and "nodt" not in EXP:
                        pend += [(101, f"s_mul_i32 s92, s{sT}, 57344\ns_lshl_b32 s93, s{sW}, 13\ns_add_u32 s92, s92, s93\n"
                                       f"buffer_load_dword v2, v10, s[{S_WD}:{S_WD+3}], s92 offen")]
                r = R(i + 1) if i < 15 else []
                a.wait_vm(vt[i])
                extra = []
                if i + PD < 16:
                    extra.append(("a", i + PD))
                for _ in range(3):
                    if pend:
                        extra.append(("d", pend.pop(0)))
                m = M(i)
                seq = interleave(m, r)
                pos = [k for k, x in enumerate(seq) if x.startswith("v_mfma")]
                ins_at = {pos[min(2 * n + 1, len(pos) - 1)]: e for n, e in enumerate(extra)}
                for k, x in enumerate(seq):
                    a.e(x)
                    if k in ins_at:
                        kind, val = ins_at[k]
                        if kind == "a":
                            a.e("\n".join(aload(val)))
                            vt[val] = a.vm_tok()
                        else:
                            a.e(val[1])
                            gtok[val[0]] = a.vm_tok()
                if r:
                    toks[i + 1] = a.lg_tok()
            assert not pend
            self.stamp(17)
            keep = [0, 1, 2, 3] if kp == 0 else [4, 5, 6]
            give = [4, 5, 6] if kp == 0 else [0, 1, 2, 3]
            wbase, wstr = (L_XB, 12288) if kp == 0 else (L_XA, 16384)
            rbase, rstr = (L_XA, 16384) if kp == 0 else (L_XB, 12288)
            a.e(f"""
s_mul_i32 s{sTMP+5}, s{sW3}, {wstr}
s_add_u32 s{sTMP+5}, s{sTMP+5}, {wbase}
v_add_u32 v12, s{sTMP+5}, v11
s_mul_i32 s{sTMP+5}, s{sW3}, {rstr}
s_add_u32 s{sTMP+5}, s{sTMP+5}, {rbase}
v_add_u32 v13, s{sTMP+5}, v11
s_barrier
""")
            for n, T in enumerate(give):
                for q in range(4):
                    a.e(f"ds_write_b128 v12, {vr(ACC[T]+4*q,4)} offset:{n*4096 + q*1024}")
            K0 = -2.0 * 0.7978845608028654 * LOG2E
            K1 = K0 * 0.044715
            a.e(f"v_mov_b32 v9, {f2u(K1):#x}\nv_mov_b32 v8, {f2u(K0):#x}")
            a.e(f"""
s_lshl_b32 s{sTMP+5}, s{sRB}, 2
s_add_u32 s{sTMP+5}, s{sTMP+5}, s{sW3}
s_mul_i32 s{sTMP+5}, s{sTMP+5}, {112*1024}
s_mul_i32 s{sTMP+6}, s{sJ}, {7*1024}
s_add_u32 s{sTMP+5}, s{sTMP+5}, s{sTMP+6}
s_lshl_b32 s{sTMP+6}, s{sWH}, 12
s_add_u32 s{sTMP+5}, s{sTMP+5}, s{sTMP+6}
s_add_u32 s{sTMP+5}, s{sTMP+5}, {ACT}
s_lshl_b32 s{sTMP+6}, s{sP}, 5
s_lshl_b32 s{sTMP+7}, s{sW}, 2
s_add_u32 s{sTMP+6}, s{sTMP+6}, s{sTMP+7}
s_add_u32 s{sTMP+6}, s{sTMP+6}, {FL_ACT}
v_mov_b32 v14, s{sTAG}
v_mov_b32 v15, 0
s_waitcnt lgkmcnt(0)
s_barrier
""")
            land = give + ([give[0]] if len(keep) > len(give) else [])
            rt = {}
            for n, T in enumerate(keep[:len(give)]):
                for q in range(4):
                    a.e(f"ds_read_b128 {vr(ACC[land[n]]+4*q,4)}, v13 offset:{n*4096 + q*1024}")
                rt[n] = a.lg_tok()
            PKo = 128
            outs = []
            for n, T in enumerate(keep):
                g = ACC[T]
                if n >= len(give):
                    for q in range(4):
                        a.e(f"ds_read_b128 {vr(ACC[land[n]]+4*q,4)}, v13 offset:{n*4096 + q*1024}")
                    rt[n] = a.lg_tok()
                a.wait_lg(rt[n])
                p = ACC[land[n]]
                for q in range(8):
                    a.e(f"v_pk_add_f32 v[{g+2*q}:{g+2*q+1}], v[{g+2*q}:{g+2*q+1}], v[{p+2*q}:{p+2*q+1}]")
                t = p
                P2 = lambda b, q: f"v[{b+2*q}:{b+2*q+1}]"
                for q in range(4):
                    a.e(f"v_pk_mul_f32 {P2(t,q)}, {P2(g,q)}, {P2(g,q)}")
                for q in range(4):
                    a.e(f"v_pk_fma_f32 {P2(t,q)}, {P2(t,q)}, v[8:9], v[8:9] op_sel:[0,1,0] op_sel_hi:[1,1,0]")
                for q in range(4):
                    a.e(f"v_pk_mul_f32 {P2(t,q)}, {P2(t,q)}, {P2(g,q)}")
                for r in range(8):
                    a.e(f"v_exp_f32 v{t+r}, v{t+r}")
                for q in range(4):
                    a.e(f"v_pk_mul_f32 {P2(g,q)}, {P2(g,q)}, {P2(g+8,q)}")
                for r in range(8):
                    a.e(f"v_add_f32 v{t+r}, 1.0, v{t+r}")
                for r in range(8):
                    a.e(f"v_rcp_f32 v{t+r}, v{t+r}")
                for q in range(4):
                    a.e(f"v_pk_mul_f32 {P2(g,q)}, {P2(g,q)}, {P2(t,q)}")
                for q in range(4):
                    a.e(f"v_cvt_pk_bf16_f32 v{g+8+q}, v{g+2*q}, v{g+2*q+1}")
                st = f"buffer_store_dwordx4 v[{g+8}:{g+11}], v11, {WS}, s{sTMP+5} offen offset:{1024*n}"
                if n == len(keep) - 1:
                    st += "\n" + self.flag_seq(f"s{sTMP+6}")
                if "actplain" not in EXP:
                    a.e("\n".join((l + " sc1") if l.startswith("buffer_store") else l for l in st.split("\n")))
                else:
                    self.store_sel(st)

        L3 = a.label("Lgu3")
        Lj = a.label("Lguj")
        a.e(f"s_cmp_ge_u32 s{sW}, 4\ns_cbranch_scc1 {L3}")
        v0_, l0_ = a.vm_issued, a.lg_issued
        body(0)
        a.e(f"s_branch {Lj}\n{L3}:")
        a.vm_issued, a.lg_issued = v0_, l0_
        body(1)
        a.e(f"{Lj}:")
        self.stamp(10)

    def phase5(self):
        a = self.a
        a.e(f"""
s_add_u32 s{sTMP}, s89, {FL_ACT}
s_lshr_b32 s{sTMP+5}, s{sW}, 1
s_mul_i32 s{sTMP+2}, s88, {112*1024}
s_mul_i32 s{sTMP+1}, s{sTMP+5}, {28*1024}
s_add_u32 s{sTMP+2}, s{sTMP+2}, s{sTMP+1}
s_add_u32 s{sTMP+2}, s{sTMP+2}, {ACT}
s_lshl_b32 s{sTMP+1}, s{sTMP+5}, 13
v_add_u32 v154, s{sTMP+1}, v154
v_add_u32 v155, s{sTMP+1}, v155
""")
        for si in range(4):
            a.e(f"v_add_u32 v{140+2*si}, {D_SLOT[si]}, v154\nv_add_u32 v{141+2*si}, {D_SLOT[si]}, v155")
        ACC = 16
        BF = [48, 56]
        NA = 20
        PD = int(os.environ.get("DPD", "16"))
        DV = os.environ.get("DV", "c")
        AF = lambda s: ar(4 * (s % NA), 4)

        def R(s):
            c, sl = s // 4, s % 4
            return [f"ds_read_b64_tr_b16 {vr(BF[s%2]+4*t+2*i,2)}, v{140+2*(c%4)+t} offset:{(16*sl+4*i)*128}" for t in range(2) for i in range(2)]

        def M(s):
            return [f"v_mfma_f32_32x32x16_bf16 {vr(ACC+16*t,16)}, {vr(BF[s%2]+4*t,4)}, {AF(s)}, {'0' if s == 0 else vr(ACC+16*t,16)}" for t in range(2)]

        def aload(s):
            out = []
            if s % 4 == 0 and s > 0:
                out.append(f"s_add_u32 s{sTMP+2}, s{sTMP+2}, 4096")
            out.append(f"buffer_load_dwordx4 {AF(s)}, v11, {WS}, s{sTMP+2} offen offset:{(s%4)*1024} " + ("" if "dplain" in EXP else "sc1"))
            return out

        a.e("s_barrier")
        if DV == "c":
            for c_ in (1, 2, 3):
                a.e("\n".join(self.d_dma(c_)))
        a.e("\n".join(R(0)))
        toks = {0: a.lg_tok()}
        self.poll(153, f"s{sTMP}", 15)
        self.stamp(11)
        vt = {}
        dtok = {}
        pend = []
        if DV == "a":
            for s in range(PD):
                a.e("\n".join(aload(s)))
                vt[s] = a.vm_tok()
                if s in (3, 7, 11):
                    a.e("\n".join(self.d_dma(1 + s // 4)))
                    dtok[1 + s // 4] = a.vm_tok()
        elif DV == "c":
            for s in range(PD):
                a.e("\n".join(aload(s)))
                vt[s] = a.vm_tok()
            for c_ in (1, 2, 3):
                dtok[c_] = a.vm_tok() - PD
        else:
            for s in range(PD):
                a.e("\n".join(aload(s)))
                vt[s] = a.vm_tok()
                if s == 3:
                    a.e("\n".join(self.d_dma(1)))
                    dtok[1] = a.vm_tok()
            pend += [(2, g) for g in self.d_dma(2)] + [(3, g) for g in self.d_dma(3)]
        for s in range(28):
            c, sl = s // 4, s % 4
            a.wait_lg(toks[s])
            if sl == 3 and c + 1 < 7:
                if c + 1 >= 1:
                    a.wait_vm(dtok[c + 1])
                a.e("s_barrier")
                if "fined" in EXP:
                    self.stamp(13 + c)
                if c + 4 < 7:
                    pend += [(c + 4, g) for g in self.d_dma(c + 4)]
            r = R(s + 1) if s < 27 else []
            a.wait_vm(vt[s])
            a.e("\n".join(interleave(M(s), r)))
            if r:
                toks[s + 1] = a.lg_tok()
            if s + PD < 28:
                a.e("\n".join(aload(s + PD)))
                vt[s + PD] = a.vm_tok()
            for _ in range(2 if DV != "a" else 1):
                if pend:
                    cc, g = pend.pop(0)
                    a.e(g)
                    dtok[cc] = a.vm_tok()
        self.stamp(25)
        a.e("s_barrier")
        AO = 48
        self.reduce_scatter4(ACC, L_RED2, AO)
        X1P = 132
        for q in range(4):
            a.e(f"v_lshlrev_b32 v{64+2*q}, 16, v{X1P+q}\nv_and_b32 v{65+2*q}, 0xffff0000, v{X1P+q}")
        for r in range(8):
            a.e(f"v_accvgpr_read_b32 v{56+r}, a{88+r}")
        for r in range(8):
            a.e(f"v_fmac_f32 v{64+r}, v{56+r}, v{AO+r}")
        for q in range(4):
            a.e(f"v_cvt_pk_bf16_f32 v{32+q}, v{64+2*q}, v{65+2*q}")
        a.e(f"buffer_store_dwordx4 v[32:35], v151, s[{S_OUT}:{S_OUT+3}], s80 offen" + (" sc1" if "outwt" in EXP else (" nt" if "outnt" in EXP else "")))
        self.stamp(12)

    def finish(self):
        a = self.a
        Lx = a.label("Lfin")
        a.e(f"s_cmp_lg_u32 s2, 0\ns_cbranch_scc1 {Lx}\ns_cmp_lg_u32 s{sW}, 7\ns_cbranch_scc1 {Lx}\ns_cmp_eq_u32 s101, 1\ns_cbranch_scc1 {Lx}")
        for q in range(4):
            a.e(f"v_lshlrev_b32 v12, 3, v1\nv_add_u32 v12, {4 + 512*q}, v12\ns_mov_b32 s{sTMP}, {XID}")
            self.poll(12, f"s{sTMP}", 13)
        a.e(f"v_mov_b32 v14, s{sTAG}\nv_mov_b32 v15, 0\ns_mov_b64 exec, 1")
        self.nocount(f"buffer_store_dword v14, v15, {WS}, 0 offen offset:{EPOCH} sc1")
        a.e(f"{Lx}:")
        a.e("L_END:\ns_endpgm\nL_CODE_END:")

    def build(self):
        ph = [self.phase0, self.phase1, self.phase2, self.phase3, self.phase4, self.phase5]
        for i, p in enumerate(ph):
            if i <= self.stop_after:
                p()
        self.finish()
        body = self.a.finalize()
        hdr = open("adaLN_cond__sliding_block__geglu_ffn__prompt.s.ref").read().split("; Override launch")[0]
        src = hdr + f"; @launch grid=(256,1,1) block=(512,1,1) lds={LDS_BYTES}\n" + HEADER.format(name=NAME) + body + \
            FOOTER.format(name=NAME, nvgpr=256, nsgpr=102, accum=160)
        return src


if __name__ == "__main__":
    import argparse
    ap = argparse.ArgumentParser()
    ap.add_argument("-o", default="k.s")
    ap.add_argument("--stamps", action="store_true")
    ap.add_argument("--dump", action="store_true")
    ap.add_argument("--stop", type=int, default=99)
    args = ap.parse_args()
    g = Gen(stop_after=args.stop, stamps=args.stamps, dump=args.dump)
    src = g.build()
    open(args.o, "w").write(src)
    print("wrote", args.o, len(src), "bytes; nops", g.a.nops)
```

```python
import sys, os, struct
sys.path.insert(0, "dev")
from asmlib import *

NAME = "adaLN_cond__sliding_block__geglu_ffn__prompt_kernel"
EXP = os.environ.get("EXP", "").split(",") + ["actflag", "owt", "h2wt"]

EPOCH = 0x0
XID = 0x1000
MODA = 0x2000
MODB = 0xA000
MODG = 0x12000
FL_KV = 0x20000
FL_O = 0x24000
FL_H2 = 0x26000
FL_H1 = 0x22000
FL_ACT = 0x28000
STAMP = 0x2800000
KVX = 0x100000
OBUF = 0x500000
H2BUF = 0x700000
SGRAN = 0x900000
ACT = 0xA00000
H1BUF = 0x1200000
DBG0 = 0x2000000
X1DBG = 0x2400000

S_X, S_WQKV, S_WO, S_WG, S_WU, S_WD, S_C, S_WM, S_OUT, S_WS = 8, 12, 16, 20, 24, 28, 32, 36, 40, 44
sX, sT, sRB, sJ, sW, sTAG, sXCC, sPURE, sP = 48, 49, 50, 51, 52, 53, 54, 55, 56
sW3, sWH, sIMIN = 57, 58, 59
sTMP = 60
S_SEL = 72
sMASK = 60

L_WQKV = 0
L_WO = 96 * 1024
L_K = 0
L_V = 24 * 1024
L_QX = 48 * 1024
L_SCR = 52 * 1024
L_RED = 0
L_TAB = 32 * 1024
L_ST = 33 * 1024
GU_SLOT = [57344, 98304, 127104, 0]
GU_UP = 14464
D_SLOT = [127104, 0, 32768, 65536]
L_RED2 = 0
L_GATE = 32760
L_XA = 0
L_XB = 65536
LDS_BYTES = 160 * 1024

PSLEEP = int(os.environ.get("PSLEEP", "2"))
MSLEEP = int(os.environ.get("MSLEEP", "6"))
NTG = " nt" if "ntg" in EXP else ""
NTD = " nt" if "ntd" in EXP else ""
LOG2E = 1.4426950408889634
QSCALE = 0.25 * LOG2E
NEG_BIG = 0xf149f2ca


def f2u(x):
    return struct.unpack("<I", struct.pack("<f", x))[0]


WS = f"s[{S_WS}:{S_WS+3}]"


class Gen:
    def __init__(self, stop_after=99, stamps=False, dump=False):
        self.a = Asm()
        self.stop_after = stop_after
        self.stamps = stamps
        self.dump = dump

    def nocount(self, text):
        a = self.a
        v, l = a.vm_issued, a.lg_issued
        a.e(text)
        a.vm_issued, a.lg_issued = v, l

    def stamp(self, idx):
        if not self.stamps:
            return
        a = self.a
        idx += 1
        v_, l_ = a.vm_issued, a.lg_issued
        if "dbgstamp" in EXP:
            m = {2: 0, 3: 1, 4: 2, 6: 3, 7: 4, 8: 5, 9: 6, 10: 7, 18: 8, 11: 9, 12: 10, 13: 11}
            if idx in m:
                L = a.label("Lds")
                a.e(f"s_cmp_lg_u32 s2, {int(os.environ.get('DBGWG', '9'))}\ns_cbranch_scc1 {L}\ns_cmp_lg_u32 s{sW}, 0\ns_cbranch_scc1 {L}")
                a.e(f"s_memrealtime s[96:97]\ns_load_dwordx2 s[98:99], s[0:1], 80\ns_waitcnt lgkmcnt(0)\ns_sub_u32 s96, s96, s100")
                a.e(f"v_mov_b32 v158, s96\nv_mov_b32 v159, {m[idx]*4}\nglobal_store_dword v159, v158, s[98:99]\n{L}:")
            a.vm_issued, a.lg_issued = v_, l_
            return
        a.e(f"s_memrealtime s[96:97]\ns_memtime s[94:95]\ns_waitcnt lgkmcnt(0)")
        a.e(f"v_mov_b32 v159, 0\ns_lshl_b32 s98, s2, 11\ns_lshl_b32 s99, s{sW}, 8\ns_add_u32 s98, s98, s99\ns_add_u32 s98, s98, {STAMP}")
        if idx == 2:
            a.e(f"v_mov_b32 v158, s100\nbuffer_store_dword v158, v159, {WS}, s98 offen")
        a.e(f"v_mov_b32 v158, s96\nbuffer_store_dword v158, v159, {WS}, s98 offen offset:{idx*4}")
        a.e(f"v_mov_b32 v158, s94\nbuffer_store_dword v158, v159, {WS}, s98 offen offset:{128+idx*4}")
        a.vm_issued, a.lg_issued = v_, l_

    def poll(self, vaddr, soff, vdst, cnt=sTMP + 11):
        a = self.a
        L = a.label("P")
        Lo = a.label("Po")
        a.e(f"s_mov_b32 s{cnt}, 0\n{L}:")
        self.nocount(f"buffer_load_dword v{vdst}, v{vaddr}, {WS}, {soff} offen sc1")
        a.e(f"""
s_add_u32 s{cnt}, s{cnt}, 1
s_cmp_gt_u32 s{cnt}, 400000
s_cbranch_scc1 {Lo}
s_waitcnt vmcnt(0)
v_cmp_ne_u32 vcc, s{sTAG}, v{vdst}
s_cbranch_vccz {Lo}
s_sleep {PSLEEP}
s_branch {L}
{Lo}:
s_waitcnt vmcnt(0)
""")

    def store_sel(self, text):
        a = self.a
        Ls = a.label("Ssl")
        Le = a.label("Sen")
        lines = [l for l in text.strip().split("\n") if l.strip()]
        a.e(f"s_cmp_eq_u32 s{sPURE}, {'s%d' % sPURE if 'allwt' in EXP else 0}\ns_cbranch_scc1 {Ls}")
        a.e("\n".join(lines))
        a.e(f"s_branch {Le}\n{Ls}:")
        self.nocount("\n".join((l + " sc1") if l.strip().startswith("buffer_store") else l for l in lines))
        a.e(f"{Le}:")

    def store_site(self, site, data, flag):
        if site + "wt" in EXP:
            self.a.e("\n".join((l + " sc1") if l.strip().startswith("buffer_store") else l for l in data.strip().split("\n")))
            self.store_sel(flag)
        else:
            self.store_sel(data.strip() + "\n" + flag)

    def flag_seq(self, soff, vt=14):
        return f"s_waitcnt vmcnt(0)\ns_mov_b64 exec, 1\nbuffer_store_dword v{vt}, v{vt+1}, {WS}, {soff} offen\ns_mov_b64 exec, -1"

    def purity(self, vt=30):
        a = self.a
        a.e(f"""
v_and_b32 v{vt}, 31, v1
v_lshlrev_b32 v{vt}, 3, v{vt}
s_lshl_b32 s{sTMP+10}, s{sX}, 8
s_add_u32 s{sTMP+10}, s{sTMP+10}, {XID}
buffer_load_dwordx2 v[{vt+2}:{vt+3}], v{vt}, {WS}, s{sTMP+10} offen sc1
s_waitcnt vmcnt(0)
v_xor_b32 v{vt}, s{sTAG}, v{vt+3}
v_xor_b32 v{vt+1}, s{sXCC}, v{vt+2}
v_or_b32 v{vt}, v{vt}, v{vt+1}
v_cmp_ne_u32 vcc, 0, v{vt}
s_cmp_eq_u64 vcc, 0
s_cselect_b32 s{sPURE}, 1, 0
""")

    def touch(self, srd, soff_base, nlines_per_wg, widx, nw, vdst, vaddr):
        a = self.a
        if "notouch" in EXP:
            return
        n = nlines_per_wg // 64
        per = (n + nw - 1) // nw
        a.e(f"s_lshl_b32 s{sTMP+9}, s{widx}, 13\ns_add_u32 s{sTMP+9}, s{sTMP+9}, s{soff_base}")
        for i in range(per):
            a.e(f"buffer_load_dword v{vdst}, v{vaddr}, s[{srd}:{srd+3}], s{sTMP+9} offen")
            if i < per - 1:
                a.e(f"s_add_u32 s{sTMP+9}, s{sTMP+9}, {nw*8192}")

    def silu_bf16(self, src_pk, n_pk, dst, tmp):
        a = self.a
        n = 2 * n_pk
        for d in range(n_pk):
            a.e(f"v_lshlrev_b32 v{dst+2*d}, 16, v{src_pk+d}\nv_and_b32 v{dst+2*d+1}, 0xffff0000, v{src_pk+d}")
        for i in range(n):
            a.e(f"v_mul_f32 v{tmp+i}, {f2u(-LOG2E):#x}, v{dst+i}")
        for i in range(n):
            a.e(f"v_exp_f32 v{tmp+i}, v{tmp+i}")
        for i in range(n):
            a.e(f"v_add_f32 v{tmp+i}, 1.0, v{tmp+i}")
        for i in range(n):
            a.e(f"v_rcp_f32 v{tmp+i}, v{tmp+i}")
        for i in range(n):
            a.e(f"v_mul_f32 v{dst+i}, v{dst+i}, v{tmp+i}")
        for d in range(n_pk):
            a.e(f"v_cvt_pk_bf16_f32 v{tmp+d}, v{dst+2*d}, v{dst+2*d+1}")
        for d in range(n_pk):
            a.e(f"v_lshlrev_b32 v{dst+2*d}, 16, v{tmp+d}\nv_and_b32 v{dst+2*d+1}, 0xffff0000, v{tmp+d}")

    def wave_allsum(self, regs, tmp):
        a = self.a
        for r in (1, 2, 4, 8):
            for x in regs:
                a.e(f"v_add_f32_dpp v{x}, v{x}, v{x} row_ror:{r} row_mask:0xf bank_mask:0xf")
        self.group_allsum(regs, tmp)

    def group_allsum(self, regs, tmp, op="v_add_f32", stages=("16", "32")):
        a = self.a
        for sw in stages:
            for x, t in zip(regs, tmp):
                a.e(f"v_mov_b32 v{t}, v{x}")
            for x, t in zip(regs, tmp):
                a.e(f"v_permlane{sw}_swap_b32 v{x}, v{t}")
            for x, t in zip(regs, tmp):
                a.e(f"{op} v{x}, v{x}, v{t}")

    def granule(self, lo, hi, s_one, dst):
        self.a.e(f"""
v_cvt_pk_bf16_f32 v{dst}, v{lo}, v{hi}
v_lshlrev_b32 v{lo}, 16, v{dst}
v_and_b32 v{hi}, 0xffff0000, v{dst}
v_add_f32 v{lo}, s{s_one}, v{lo}
v_add_f32 v{hi}, s{s_one}, v{hi}
v_cvt_pk_bf16_f32 v{dst}, v{lo}, v{hi}
v_mov_b32 v{dst+1}, s{sTAG}
""")

    def reduce8_pairs(self, AC):
        self.a.e(f"""
v_permlane16_swap_b32 v{AC}, v{AC+2}
v_permlane16_swap_b32 v{AC+1}, v{AC+3}
v_permlane16_swap_b32 v{AC+4}, v{AC+6}
v_permlane16_swap_b32 v{AC+5}, v{AC+7}
v_add_f32 v{AC}, v{AC}, v{AC+2}
v_add_f32 v{AC+1}, v{AC+1}, v{AC+3}
v_add_f32 v{AC+4}, v{AC+4}, v{AC+6}
v_add_f32 v{AC+5}, v{AC+5}, v{AC+7}
v_permlane32_swap_b32 v{AC}, v{AC+4}
v_permlane32_swap_b32 v{AC+1}, v{AC+5}
v_add_f32 v{AC}, v{AC}, v{AC+4}
v_add_f32 v{AC+1}, v{AC+1}, v{AC+5}
""")

    def phase0(self):
        a = self.a
        a.e(f"""
s_cmp_ge_u32 s2, 256
s_cbranch_scc1 L_END
{"s_memrealtime s[100:101]" if self.stamps else ""}
s_load_dwordx2 s[{S_WS}:{S_WS+1}], s[0:1], 88
s_load_dwordx2 s[{S_WM}:{S_WM+1}], s[0:1], 64
s_load_dwordx2 s[{S_C}:{S_C+1}], s[0:1], 56
s_load_dwordx2 s[{S_X}:{S_X+1}], s[0:1], 0
s_load_dwordx2 s[{S_WQKV}:{S_WQKV+1}], s[0:1], 8
s_load_dwordx2 s[{S_WO}:{S_WO+1}], s[0:1], 16
s_load_dwordx2 s[{S_WG}:{S_WG+1}], s[0:1], 32
s_load_dwordx2 s[{S_WU}:{S_WU+1}], s[0:1], 40
s_load_dwordx2 s[{S_WD}:{S_WD+1}], s[0:1], 48
s_load_dwordx2 s[{S_OUT}:{S_OUT+1}], s[0:1], 72
s_getpc_b64 s[{sTMP}:{sTMP+1}]
L_PC:
s_and_b32 s{sX}, s2, 7
s_lshr_b32 s{sT}, s2, 3
s_lshl_b32 s{sTMP+2}, s{sT}, 11
v_lshlrev_b32 v2, 2, v0
v_add_u32 v2, s{sTMP+2}, v2
v_min_u32 v2, L_CODE_END-L_PC-4, v2
global_load_dword v4, v2, s[{sTMP}:{sTMP+1}]
s_getreg_b32 s{sXCC}, hwreg(HW_REG_XCC_ID)
s_and_b32 s{sXCC}, s{sXCC}, 15
s_lshr_b32 s{sTMP}, s{sT}, 4
s_lshl_b32 s{sRB}, s{sX}, 1
s_add_u32 s{sRB}, s{sRB}, s{sTMP}
s_and_b32 s{sJ}, s{sT}, 15
s_lshl_b32 s{sP}, s{sX}, 5
s_add_u32 s{sP}, s{sP}, s{sT}
v_and_b32 v1, 63, v0
v_lshrrev_b32 v2, 6, v0
v_lshrrev_b32 v3, 4, v1
v_readfirstlane_b32 s{sW}, v2
v_lshlrev_b32 v11, 4, v1
v_lshlrev_b32 v10, 7, v1
s_and_b32 s{sW3}, s{sW}, 3
s_lshr_b32 s{sWH}, s{sW}, 2
s_mov_b32 s{sPURE}, 0
""")
        sizes = {S_X: 2097152, S_WQKV: 1572864, S_WO: 524288, S_WG: 1835008, S_WU: 1835008, S_WD: 1835008, S_C: 1024,
                 S_WM: 3145728, S_OUT: 2097152, S_WS: 0x10000000}
        for s, sz in sizes.items():
            a.e(f"s_mov_b32 s{s+2}, {sz}\ns_mov_b32 s{s+3}, 0x20000")
        a.e("s_waitcnt lgkmcnt(0)")
        a.e(f"s_load_dword s{sTAG}, s[{S_WS}:{S_WS+1}], {EPOCH}")
        L_45 = a.label("Lw45")
        L_67 = a.label("Lw67")
        L_j = a.label("Lj0")
        tagfix = f"s_waitcnt lgkmcnt(0)\ns_mul_i32 s{sTAG}, s{sTAG}, 1664525\ns_add_u32 s{sTAG}, s{sTAG}, 1013904223"
        L_03 = a.label("Lw03")
        a.e(f"s_cmp_lt_u32 s{sW}, 4\ns_cbranch_scc1 {L_03}\ns_cmp_ge_u32 s{sW}, 6\ns_cbranch_scc1 {L_67}")
        v0_, l0_ = a.vm_issued, a.lg_issued
        self.gemv_mfma(a, L_45, L_j, tagfix, v0_, l0_)
        a.e(f"{L_67}:")
        a.e(f"""
v_lshrrev_b32 v12, 2, v1
v_mul_u32_u24 v12, 3072, v12
v_and_b32 v13, 3, v1
v_lshl_add_u32 v12, v13, 4, v12
{tagfix}
v_mov_b32 v14, s{sXCC}
v_mov_b32 v15, s{sTAG}
s_lshl_b32 s{sTMP}, s{sP}, 3
s_add_u32 s{sTMP}, s{sTMP}, {XID}
v_mov_b32 v13, 0
s_mov_b64 exec, 1
buffer_store_dwordx2 v[14:15], v13, {WS}, s{sTMP} offen sc1
s_mov_b64 exec, -1
s_and_b32 s{sTMP+4}, s{sW}, 1
s_mul_i32 s{sTMP}, s{sTMP+4}, {16*3072}
s_lshl_b32 s{sTMP+1}, s{sJ}, 6
s_add_u32 s{sTMP}, s{sTMP}, s{sTMP+1}
s_lshl_b32 s{sTMP+2}, s{sTMP+4}, 10
""")
        Lgt = a.label("Lgate")
        Lgo = a.label("Lgateo")
        a.e(f"""
s_cmp_ge_u32 s{sT}, {0 if "nogate" in EXP else (99 if "valugemv" in EXP else 20)}
s_cbranch_scc1 {Lgo}
v_and_b32 v13, 1, v1
v_lshlrev_b32 v13, 2, v13
s_mov_b32 s{sTMP+11}, 0
{Lgt}:
ds_read_b32 v14, v13 offset:{L_GATE}
s_add_u32 s{sTMP+11}, s{sTMP+11}, 1
s_cmp_gt_u32 s{sTMP+11}, 4000000
s_cbranch_scc1 {Lgo}
s_waitcnt lgkmcnt(0)
v_cmp_ne_u32 vcc, s{sTAG}, v14
s_cbranch_vccnz {Lgt}
{Lgo}:
s_waitcnt lgkmcnt(0)
""")
        if "qtouch" in EXP:
            a.e(f"s_mul_i32 s{sTMP+5}, s{sT}, 49152")
            self.touch(S_WQKV, sTMP + 5, 384, sTMP + 4, 2, 14, 10)
        if "dmadelay" in EXP:
            a.e(f"buffer_load_dword v14, v13, {WS}, s{sTMP} offen sc1\ns_waitcnt vmcnt(0)")
        Lq_ = a.label("Lqd")
        a.e(f"s_mov_b32 s{sTMP+5}, 0\n{Lq_}:")
        for seg in range(3):
            a.e(f"s_add_u32 m0, s{sTMP+2}, {L_WQKV + seg*32768}")
            a.e(f"s_add_u32 s{sTMP+3}, s{sTMP}, {seg*1024}")
            a.e(f"buffer_load_dwordx4 v12, s[{S_WQKV}:{S_WQKV+3}], s{sTMP+3} offen lds")
        a.e(f"s_add_u32 s{sTMP+2}, s{sTMP+2}, 2048\ns_add_u32 s{sTMP}, s{sTMP}, {32*3072}\ns_add_u32 s{sTMP+5}, s{sTMP+5}, 1\ns_cmp_lt_u32 s{sTMP+5}, 16\ns_cbranch_scc1 {Lq_}")
        a.e("s_waitcnt vmcnt(0)")
        self.stamp(0)
        a.e(f"s_branch {L_j}")
        a.vm_issued, a.lg_issued = v0_, l0_
        a.e(f"{L_03}:")
        XP, XF = 16, 32
        ST = [64, 65, 66, 67]
        STT = [68, 69, 70, 71]
        a.e(f"""
s_lshl_b32 s{sTMP}, s{sRB}, 17
s_lshl_b32 s{sTMP+1}, s{sJ}, 13
s_add_u32 s{sTMP}, s{sTMP}, s{sTMP+1}
s_lshl_b32 s{sTMP+1}, s{sW}, 11
s_add_u32 s{sTMP}, s{sTMP}, s{sTMP+1}
s_sub_u32 s{sTMP+1}, s{sTMP}, {256*1024}
s_cmp_lt_u32 s{sRB}, 2
s_cselect_b32 s{sTMP+1}, s{sTMP}, s{sTMP+1}
""")
        for i in range(4):
            a.e(f"buffer_load_dwordx4 {vr(XP+4*i,4)}, v11, s[{S_X}:{S_X+3}], s{sTMP + (i>>1)} offen offset:{(i&1)*1024}")
        if "noc3" not in EXP:
            Lc0, Lc1, Lce, Lc3 = a.label("Lc30"), a.label("Lc31"), a.label("Lc3e"), a.label("Lc33")
            a.e(f"""
v_lshrrev_b32 v5, 2, v1
v_and_b32 v6, 3, v1
s_cmp_eq_u32 s{sW}, 0
s_cbranch_scc1 {Lc0}
s_cmp_eq_u32 s{sW}, 1
s_cbranch_scc1 {Lc1}
s_cmp_lg_u32 s{sW}, 2
s_cbranch_scc1 {Lc3}
v_and_b32 v5, 15, v1
v_lshlrev_b32 v5, 10, v5
s_lshl_b32 s{sTMP+2}, s{sT}, 14
""")
            self.nocount(f"buffer_load_dword v6, v5, s[{S_WO}:{S_WO+3}], s{sTMP+2} offen offset:384")
            a.e(f"""
s_branch {Lce}
{Lc0}:
v_mul_u32_u24 v5, 6144, v5
v_and_b32 v6, 1, v6
v_lshl_add_u32 v5, v6, 10, v5
s_mul_i32 s{sTMP+2}, s{sT}, {16*6144}
""")
            self.nocount(f"buffer_load_dword v6, v5, s[{S_WM}:{S_WM+3}], s{sTMP+2} offen offset:384")
            a.e(f"""
s_branch {Lce}
{Lc1}:
v_mul_u32_u24 v5, 3072, v5
v_lshl_add_u32 v5, v6, 10, v5
s_mul_i32 s{sTMP+2}, s{sT}, {16*3072}
""")
            self.nocount(f"buffer_load_dword v6, v5, s[{S_WQKV}:{S_WQKV+3}], s{sTMP+2} offen offset:384")
            a.e(f"s_branch {Lce}\n{Lc3}:")
            if "valugemv" in EXP and "nomall" not in EXP:
                a.e(f"s_lshl_b32 s{sTMP+2}, s{sP}, 13\n"
                    f"s_cmp_lt_u32 s{sTMP+2}, {84*8192}\ns_cselect_b32 s{sTMP+3}, s{sTMP+2}, 0x7fff0000\n"
                    f"s_sub_u32 s{sTMP+4}, s{sTMP+2}, {84*8192}\ns_cmp_lt_u32 s{sTMP+4}, {84*8192}\ns_cselect_b32 s{sTMP+4}, s{sTMP+4}, 0x7fff0000\n"
                    f"s_sub_u32 s{sTMP+5}, s{sTMP+2}, {168*8192}\ns_min_u32 s{sTMP+5}, s{sTMP+5}, 0x7fff0000")
                self.nocount(f"buffer_load_dword v6, v10, s[{S_WG}:{S_WG+3}], s{sTMP+3} offen")
                self.nocount(f"buffer_load_dword v6, v10, s[{S_WU}:{S_WU+3}], s{sTMP+4} offen")
                self.nocount(f"buffer_load_dword v6, v10, s[{S_WO}:{S_WO+3}], s{sTMP+5} offen")
            a.e(f"{Lce}:")
        if "wmtouch" in EXP:
            a.e(f"""
v_mul_u32_u24 v5, 6144, v3
v_and_b32 v6, 15, v1
v_lshl_add_u32 v5, v6, 7, v5
s_lshl_b32 s{sTMP}, s{sT}, 2
s_add_u32 s{sTMP}, s{sTMP}, s{sW}
s_mul_i32 s{sTMP}, s{sTMP}, {4*6144}
buffer_load_dword v6, v5, s[{S_WM}:{S_WM+3}], s{sTMP} offen
s_waitcnt vmcnt(1)
""")
        else:
            a.e("s_waitcnt vmcnt(0)")
        a.e(tagfix)
        for i in range(4):
            for d in range(4):
                a.e(f"v_lshlrev_b32 v{XF+8*i+2*d}, 16, v{XP+4*i+d}\nv_and_b32 v{XF+1+8*i+2*d}, 0xffff0000, v{XP+4*i+d}")
        for i in range(4):
            b = XF + 8 * i
            a.e(f"v_add_f32 v{ST[i]}, v{b}, v{b+1}")
            for e in range(2, 8):
                a.e(f"v_add_f32 v{ST[i]}, v{ST[i]}, v{b+e}")
        self.wave_allsum(ST, STT)
        for i in range(4):
            a.e(f"v_mul_f32 v{ST[i]}, {f2u(-1/512):#x}, v{ST[i]}")
        for i in range(4):
            for e in range(8):
                a.e(f"v_add_f32 v{XF+8*i+e}, v{ST[i]}, v{XF+8*i+e}")
        for i in range(4):
            b = XF + 8 * i
            a.e(f"v_mul_f32 v{ST[i]}, v{b}, v{b}")
            for e in range(1, 8):
                a.e(f"v_fmac_f32 v{ST[i]}, v{b+e}, v{b+e}")
        self.wave_allsum(ST, STT)
        for i in range(4):
            a.e(f"v_mul_f32 v{ST[i]}, {f2u(1/512):#x}, v{ST[i]}")
        for i in range(4):
            a.e(f"v_add_f32 v{ST[i]}, {f2u(1e-5):#x}, v{ST[i]}")
        for i in range(4):
            a.e(f"v_rsq_f32 v{ST[i]}, v{ST[i]}")
        for i in range(4):
            for e in range(8):
                a.e(f"v_mul_f32 v{XF+8*i+e}, v{ST[i]}, v{XF+8*i+e}")
        for i in range(4):
            for d in range(4):
                a.e(f"v_cvt_pk_bf16_f32 v{XP+4*i+d}, v{XF+8*i+2*d}, v{XF+1+8*i+2*d}")
        for i in range(4):
            for d in range(4):
                a.e(f"v_lshlrev_b32 v{XF+8*i+2*d}, 16, v{XP+4*i+d}\nv_and_b32 v{XF+1+8*i+2*d}, 0xffff0000, v{XP+4*i+d}")
        a.e(f"""
v_lshrrev_b32 v12, 1, v1
v_lshlrev_b32 v12, 10, v12
v_and_b32 v6, 1, v1
v_lshl_add_u32 v12, v6, 9, v12
s_lshl_b32 s{sTMP+4}, s{sX}, 19
s_and_b32 s{sTMP+3}, s{sRB}, 1
s_lshl_b32 s{sTMP+3}, s{sTMP+3}, 17
s_add_u32 s{sTMP+4}, s{sTMP+4}, s{sTMP+3}
s_lshr_b32 s{sTMP+3}, s{sJ}, 2
s_lshl_b32 s{sTMP+3}, s{sTMP+3}, 15
s_add_u32 s{sTMP+4}, s{sTMP+4}, s{sTMP+3}
s_and_b32 s{sTMP+3}, s{sJ}, 3
s_lshl_b32 s{sTMP+3}, s{sTMP+3}, 7
s_add_u32 s{sTMP+4}, s{sTMP+4}, s{sTMP+3}
s_lshl_b32 s{sTMP+3}, s{sW}, 5
s_add_u32 s{sTMP+4}, s{sTMP+4}, s{sTMP+3}
s_add_u32 s{sTMP+4}, s{sTMP+4}, {H1BUF}
s_add_u32 s{sTMP+8}, s{sTMP+4}, {2*131072}
v_lshlrev_b32 v13, 5, v1
v_lshlrev_b32 v7, 6, v1
v_add_u32 v7, 60, v7
v_and_b32 v8, 31, v1
v_lshlrev_b32 v8, 3, v8
s_lshl_b32 s{sTMP}, s{sX}, 12
s_add_u32 s{sTMP+1}, s{sTMP}, {MODB}
s_add_u32 s{sTMP}, s{sTMP}, {MODA}
s_lshl_b32 s{sTMP+2}, s{sX}, 8
s_add_u32 s{sTMP+2}, s{sTMP+2}, {XID}
s_lshl_b32 s{sTMP+5}, s{sP}, 4
s_lshl_b32 s{sTMP+6}, s{sW}, 2
s_add_u32 s{sTMP+5}, s{sTMP+5}, s{sTMP+6}
s_add_u32 s{sTMP+5}, s{sTMP+5}, {FL_H1}
s_mov_b32 s{sTMP+11}, 0
""")
        self.stamp(0)
        L = a.label("G")
        L2 = a.label("G2")
        Lo = a.label("Go")
        G0 = 96
        a.e(f"{L}:")
        self.nocount(f"buffer_load_dword v{G0}, v7, {WS}, s{sTMP} offen sc1")
        a.e(f"""
s_add_u32 s{sTMP+11}, s{sTMP+11}, 1
s_cmp_gt_u32 s{sTMP+11}, 400000
s_cbranch_scc1 {L2}
s_waitcnt vmcnt(0)
v_cmp_ne_u32 vcc, s{sTAG}, v{G0}
s_cbranch_vccz {L2}
s_add_u32 s{sTMP+10}, s{sTMP+11}, 1
s_and_b32 s{sTMP+10}, s{sTMP+10}, 15
s_cmp_lt_u32 s{sTMP+10}, 2
s_cselect_b32 s{sTMP+10}, s{sTMP+1}, s{sTMP}
s_cselect_b32 s{sTMP+1}, s{sTMP}, s{sTMP+1}
s_mov_b32 s{sTMP}, s{sTMP+10}
s_sleep {MSLEEP}
s_branch {L}
{L2}:
""")
        self.nocount(f"""
buffer_load_dwordx4 v[{G0}:{G0+3}], v13, {WS}, s{sTMP} offen sc1
buffer_load_dwordx4 v[{G0+4}:{G0+7}], v13, {WS}, s{sTMP} offen offset:16 sc1
buffer_load_dwordx4 v[{G0+8}:{G0+11}], v13, {WS}, s{sTMP} offen offset:2048 sc1
buffer_load_dwordx4 v[{G0+12}:{G0+15}], v13, {WS}, s{sTMP} offen offset:2064 sc1
buffer_load_dwordx2 v[{G0+16}:{G0+17}], v8, {WS}, s{sTMP+2} offen sc1
""")
        a.e(f"""
s_cmp_gt_u32 s{sTMP+11}, 400000
s_cbranch_scc1 {Lo}
s_waitcnt vmcnt(0)
v_xor_b32 v116, s{sTAG}, v{G0+1}
""")
        for q in range(3, 16, 2):
            a.e(f"v_xor_b32 v117, s{sTAG}, v{G0+q}\nv_or_b32 v116, v116, v117")
        a.e(f"v_cmp_ne_u32 vcc, 0, v116\ns_cbranch_vccnz {L}\n{Lo}:\ns_waitcnt vmcnt(0)")
        a.e(f"""
v_xor_b32 v116, s{sTAG}, v{G0+17}
v_xor_b32 v117, s{sXCC}, v{G0+16}
v_or_b32 v116, v116, v117
v_cmp_ne_u32 vcc, 0, v116
s_cmp_eq_u64 vcc, 0
s_cselect_b32 s{sPURE}, 1, 0
""")
        SA, GG = 72, 80
        for q in range(4):
            a.e(f"v_lshlrev_b32 v{SA+2*q}, 16, v{G0+2*q}\nv_and_b32 v{SA+1+2*q}, 0xffff0000, v{G0+2*q}")
            a.e(f"v_lshlrev_b32 v{GG+2*q}, 16, v{G0+8+2*q}\nv_and_b32 v{GG+1+2*q}, 0xffff0000, v{G0+8+2*q}")
        for i in range(4):
            for d in range(4):
                b = XF + 8 * i + 2 * d
                a.e(f"v_pk_fma_f32 v[{b}:{b+1}], v[{b}:{b+1}], v[{GG+2*d}:{GG+1+2*d}], v[{SA+2*d}:{SA+1+2*d}]")
            for d in range(4):
                a.e(f"v_cvt_pk_bf16_f32 v{XP+4*i+d}, v{XF+8*i+2*d}, v{XF+1+8*i+2*d}")
        a.e(f"v_mov_b32 v14, s{sTAG}\nv_mov_b32 v15, 0")
        st = "\n".join(f"buffer_store_dwordx4 v[{XP+4*i}:{XP+3+4*i}], v12, {WS}, s{sTMP+8 if i < 2 else sTMP+4} offen offset:{16*(i&1)}" for i in range(4))
        self.store_site("h1", st, self.flag_seq(f"s{sTMP+5}"))
        a.e(f"s_branch {L_j}")
        a.vm_issued, a.lg_issued = v0_, l0_
        self.gemv_mfma2(a, L_45, L_j, tagfix, v0_, l0_)
        a.e(f"{L_j}:")
        if "prio" in EXP:
            Lpr = a.label("Lprio")
            a.e(f"s_cmp_lt_u32 s{sW}, 4\ns_cbranch_scc1 {Lpr}\ns_setprio 1\n{Lpr}:")
        a.e("s_nop 4\ns_barrier")
        self.stamp(1)

    def gemv_valu(self, a, L_45, L_j, tagfix, v0_, l0_):
        a.e(f"{L_45}:")
        W0, SV = 94, 14
        a.e(f"""
v_lshrrev_b32 v6, 1, v1
v_lshlrev_b32 v8, 5, v6
v_mul_u32_u24 v7, {16*6144}, v6
v_and_b32 v6, 1, v1
v_lshl_add_u32 v7, v6, 4, v7
buffer_load_dwordx4 v[70:73], v8, s[{S_C}:{S_C+3}], 0 offen
buffer_load_dwordx4 v[74:77], v8, s[{S_C}:{S_C+3}], 0 offen offset:16
""")
        tok_c = a.vm_tok()
        a.e(f"s_lshl_b32 s{sTMP}, s{sT}, 6\ns_lshl_b32 s{sTMP+1}, s{sW3}, 5\ns_add_u32 s{sTMP}, s{sTMP}, s{sTMP+1}")
        tok_w = []
        for i in range(16):
            a.e(f"buffer_load_dwordx4 v[{W0+4*i}:{W0+3+4*i}], v7, s[{S_WM}:{S_WM+3}], s{sTMP} offen")
            tok_w.append(a.vm_tok())
            if i < 15:
                a.e(f"s_add_u32 s{sTMP}, s{sTMP}, 6144")
        a.e(f"""
v_and_b32 v5, 127, v0
v_mul_u32_u24 v12, 24576, v5
v_lshlrev_b32 v5, 3, v5
s_lshl_b32 s{sTMP}, s{sP}, 4
s_add_u32 s{sTMP}, s{sTMP}, 2048
buffer_load_dwordx2 v[78:79], v5, s[{S_C}:{S_C+3}], 0 offen
""")
        for i in range(4):
            a.e(f"buffer_load_dwordx4 v[{54+4*i}:{57+4*i}], v12, s[{S_WM}:{S_WM+3}], s{sTMP} offen")
            if i < 3:
                a.e(f"s_add_u32 s{sTMP}, s{sTMP}, 6144")
        tok_nu = a.vm_tok()
        a.e(tagfix)
        a.e(f"s_lshl_b32 s{sTMP+4}, s{sW3}, 2\nv_mov_b32 v13, s{sTMP+4}\nv_mov_b32 v5, s{sTAG}\nds_write_b32 v13, v5 offset:{L_GATE}")
        a.e(f"""
v_lshlrev_b32 v9, 5, v6
v_lshl_add_u32 v9, v3, 3, v9
s_cmp_ge_u32 s{sT}, 16
s_cselect_b32 s{sTMP+7}, 1.0, 0
s_lshl_b32 s{sTMP+5}, s{sX}, 12
s_lshl_b32 s{sTMP+6}, s{sT}, 7
s_add_u32 s{sTMP+5}, s{sTMP+5}, s{sTMP+6}
s_lshl_b32 s{sTMP+6}, s{sW3}, 6
s_add_u32 s{sTMP+5}, s{sTMP+5}, s{sTMP+6}
s_add_u32 s{sTMP+6}, s{sTMP+5}, {MODB}
s_add_u32 s{sTMP+5}, s{sTMP+5}, {MODA}
""")
        a.wait_vm(tok_c)
        self.silu_bf16(70, 8, SV, 30)
        AC = 30
        for i in range(16):
            a.wait_vm(tok_w[i])
            w = W0 + 4 * i
            t = 38 + 8 * (i % 2)
            for d in range(4):
                a.e(f"v_lshlrev_b32 v{t+2*d}, 16, v{w+d}\nv_and_b32 v{t+1+2*d}, 0xffff0000, v{w+d}")
            sp = SV + (i & ~1)
            sel = i & 1
            for d in range(4):
                if i == 0:
                    a.e(f"v_pk_mul_f32 v[{AC+2*d}:{AC+1+2*d}], v[{t+2*d}:{t+1+2*d}], v[{sp}:{sp+1}] op_sel_hi:[1,0]")
                else:
                    a.e(f"v_pk_fma_f32 v[{AC+2*d}:{AC+1+2*d}], v[{t+2*d}:{t+1+2*d}], v[{sp}:{sp+1}], v[{AC+2*d}:{AC+1+2*d}] op_sel:[0,{sel},0] op_sel_hi:[1,{sel},1]")
        for r in (2, 4, 8):
            for e in range(8):
                a.e(f"v_add_f32_dpp v{AC+e}, v{AC+e}, v{AC+e} row_ror:{r} row_mask:0xf bank_mask:0xf")
        self.reduce8_pairs(AC)
        self.granule(AC, AC + 1, sTMP + 7, AC + 2)
        a.e(f"s_mov_b32 exec_lo, 0x00030003\ns_mov_b32 exec_hi, 0x00030003")
        a.e(f"buffer_store_dwordx2 v[{AC+2}:{AC+3}], v9, {WS}, s{sTMP+5} offen")
        a.e(f"buffer_store_dwordx2 v[{AC+2}:{AC+3}], v9, {WS}, s{sTMP+6} offen sc1")
        a.e(f"s_mov_b64 exec, -1")
        self.stamp(0)
        a.wait_vm(tok_nu)
        self.silu_bf16(78, 2, 80, 96)
        for i in range(4):
            for d in range(4):
                w = 54 + 4 * i + d
                a.e(f"v_lshlrev_b32 v{96+2*d}, 16, v{w}\nv_and_b32 v{97+2*d}, 0xffff0000, v{w}")
            for e in range(8):
                a.e(f"v_mul_f32 v{72+e}, v80, v{96+e}" if i == 0 else f"v_fmac_f32 v{72+e}, v{80+i}, v{96+e}")
        for r in (1, 2, 4, 8):
            for e in range(8):
                a.e(f"v_add_f32_dpp v{72+e}, v{72+e}, v{72+e} row_ror:{r} row_mask:0xf bank_mask:0xf")
        self.reduce8_pairs(72)
        a.e("v_mov_b32 v132, v72\nv_mov_b32 v133, v73")
        a.e(f"s_branch {L_j}")
        a.vm_issued, a.lg_issued = v0_, l0_

    def gemv_mfma(self, a, L_45, L_j, tagfix, v0_, l0_):
        a.e(f"{L_45}:")
        a.e(f"s_cmp_ge_u32 s{sT}, 20\ns_cbranch_scc1 L_NOGEMV")
        L_SLAB = 96 * 1024
        self.w64_lane(12, stride=6144)
        a.e(f"""
s_lshl_b32 s{sTMP}, s{sT}, 7
s_lshl_b32 s{sTMP+1}, s{sX}, 9
s_add_u32 s{sTMP+1}, s{sTMP+1}, s{sTMP}
s_cmp_ge_u32 s{sT}, 16
s_cselect_b32 s{sTMP}, s{sTMP+1}, s{sTMP}
s_mul_i32 s{sTMP+1}, s{sW3}, {256*6144}
s_add_u32 s{sTMP}, s{sTMP}, s{sTMP+1}
s_lshl_b32 s{sTMP+2}, s{sW3}, 15
s_lshl_b32 s{sTMP+4}, s{sW3}, 9
v_lshlrev_b32 v8, 3, v1
buffer_load_dwordx2 v[70:71], v8, s[{S_C}:{S_C+3}], s{sTMP+4} offen
""")
        tok_c = a.vm_tok()
        Ls_ = a.label("Lsd")
        a.e(f"s_mov_b32 s{sTMP+5}, 0\ns_add_u32 s{sTMP+6}, s{sTMP+2}, {L_SLAB}\n{Ls_}:")
        for i in range(4):
            a.e(f"s_add_u32 m0, s{sTMP+6}, {i*1024}\ns_add_u32 s{sTMP+3}, s{sTMP}, {i*8*6144}")
            a.e(f"buffer_load_dwordx4 v12, s[{S_WM}:{S_WM+3}], s{sTMP+3} offen lds")
        a.e(f"s_add_u32 s{sTMP+6}, s{sTMP+6}, 4096\ns_add_u32 s{sTMP}, s{sTMP}, {32*6144}\ns_add_u32 s{sTMP+5}, s{sTMP+5}, 1\ns_cmp_lt_u32 s{sTMP+5}, 8\ns_cbranch_scc1 {Ls_}")
        a.e(tagfix)
        a.e(f"s_lshl_b32 s{sTMP+4}, s{sW3}, 2\nv_mov_b32 v13, s{sTMP+4}\nv_mov_b32 v14, s{sTAG}\nds_write_b32 v13, v14 offset:{L_GATE}")
        a.e("s_branch L_GEMV2")
        a.vm_issued, a.lg_issued = v0_, l0_

    def gemv_mfma2(self, a, L_45, L_j, tagfix, v0_, l0_):
        L_SLAB = 96 * 1024
        a.e("L_GEMV2:")
        a.e("s_waitcnt vmcnt(32)")
        self.silu_bf16(70, 2, 14, 30)
        SF = 94
        a.e(f"v_lshrrev_b32 v9, 5, v1\nv_lshlrev_b32 v9, 3, v9")
        for st in range(16):
            for d in range(4):
                a.e(f"ds_bpermute_b32 v{SF+4*st+d}, v9, v{30 + (d&1)} offset:{(4*st + (d>>1))*4}")
            if st % 3 == 2:
                a.e("s_waitcnt lgkmcnt(3)")
        self.tr64_bases(4)
        a.e(f"""
s_add_u32 s{sTMP+2}, s{sTMP+2}, {L_SLAB}
v_add_u32 v4, s{sTMP+2}, v4
v_add_u32 v5, s{sTMP+2}, v5
s_waitcnt lgkmcnt(0)
""")
        self.stamp(22)
        a.e("s_waitcnt vmcnt(0)")
        self.stamp(23)
        GA_ = 32
        GB = [64, 72, 80]
        toks = {}

        def GR(st):
            return [f"ds_read_b64_tr_b16 {vr(GB[st%3]+4*t+2*i,2)}, v{4+t} offset:{(16*st+4*i)*128}" for t in range(2) for i in range(2)]
        for st in range(2):
            a.e("\n".join(GR(st)))
            toks[st] = a.lg_tok()
        for st in range(16):
            a.wait_lg(toks[st])
            for t in range(2):
                a.e(f"v_mfma_f32_32x32x16_bf16 {vr(GA_+16*t,16)}, {vr(GB[st%3]+4*t,4)}, {vr(SF+4*st,4)}, {'0' if st == 0 else vr(GA_+16*t,16)}")
            if st + 2 < 16:
                a.e("\n".join(GR(st + 2)))
                toks[st + 2] = a.lg_tok()
        self.stamp(24)
        L5 = a.label("Lg5")
        a.e(f"v_add_u32 v12, {L_SLAB + 32768}, v11\nv_mov_b32 v13, {L_SLAB + 32768 + 8192}\nv_mov_b32 v14, s{sTAG}")
        a.e(f"s_cmp_eq_u32 s{sW}, 4\ns_cbranch_scc1 {L5}")
        self.nocount("\n".join(f"ds_write_b128 v12, {vr(GA_+4*q,4)} offset:{q*1024}" for q in range(8)))
        a.e("s_waitcnt lgkmcnt(0)")
        self.nocount("ds_write_b32 v13, v14")
        a.e(f"s_waitcnt lgkmcnt(0)\ns_branch L_NOGEMV\n{L5}:")
        Ls = a.label("Lgs")
        Lso = a.label("Lgso")
        a.e(f"""
s_mov_b32 s{sTMP+11}, 0
{Ls}:
""")
        self.nocount("ds_read_b32 v15, v13")
        a.e(f"""
s_add_u32 s{sTMP+11}, s{sTMP+11}, 1
s_cmp_gt_u32 s{sTMP+11}, 4000000
s_cbranch_scc1 {Lso}
s_waitcnt lgkmcnt(0)
v_cmp_ne_u32 vcc, s{sTAG}, v15
s_cbranch_vccnz {Ls}
{Lso}:
""")
        self.nocount("\n".join(f"ds_read_b128 {vr(64+4*q,4)}, v12 offset:{q*1024}" for q in range(8)))
        a.e(f"""
s_lshl_b32 s{sTMP+5}, s{sX}, 12
s_lshl_b32 s{sTMP+6}, s{sT}, 8
s_add_u32 s{sTMP+5}, s{sTMP+5}, s{sTMP+6}
s_add_u32 s{sTMP+8}, s{sTMP+5}, {MODB}
s_add_u32 s{sTMP+5}, s{sTMP+5}, {MODA}
s_lshl_b32 s{sTMP+9}, s{sX}, 10
s_add_u32 s{sTMP+9}, s{sTMP+9}, s{sTMP+6}
s_add_u32 s{sTMP+9}, s{sTMP+9}, {MODG - 4096}
s_lshr_b32 s{sTMP+6}, s{sT}, 3
s_cmp_eq_u32 s{sTMP+6}, 1
s_cselect_b32 s{sTMP+7}, 1.0, 0
s_lshr_b32 s{sTMP+6}, s{sX}, 1
s_cmp_eq_u32 s{sTMP+6}, 2
s_cselect_b32 s{sTMP+10}, 1.0, 0
s_cmp_ge_u32 s{sT}, 16
s_cselect_b32 s{sTMP+7}, s{sTMP+10}, s{sTMP+7}
s_cselect_b32 s{sTMP+5}, s{sTMP+9}, s{sTMP+5}
s_cselect_b32 s{sTMP+8}, s{sTMP+9}, s{sTMP+8}
v_lshrrev_b32 v9, 5, v1
v_lshlrev_b32 v9, 5, v9
s_waitcnt lgkmcnt(0)
""")
        for r in range(32):
            a.e(f"v_add_f32 v{GA_+r}, v{GA_+r}, v{64+r}")
        for q in range(16):
            a.e(f"v_cvt_pk_bf16_f32 v{64+2*q}, v{GA_+2*q}, v{GA_+2*q+1}")
        for q in range(16):
            a.e(f"v_lshlrev_b32 v{GA_+2*q}, 16, v{64+2*q}\nv_and_b32 v{GA_+2*q+1}, 0xffff0000, v{64+2*q}")
        for r in range(32):
            a.e(f"v_add_f32 v{GA_+r}, s{sTMP+7}, v{GA_+r}")
        for q in range(16):
            a.e(f"v_cvt_pk_bf16_f32 v{64+2*q}, v{GA_+2*q}, v{GA_+2*q+1}\nv_mov_b32 v{65+2*q}, s{sTAG}")
        a.e("s_mov_b32 exec_lo, 1\ns_mov_b32 exec_hi, 1")
        Lnu = a.label("Lnu")
        a.e(f"s_cmp_ge_u32 s{sT}, 16\ns_cbranch_scc1 {Lnu}")
        for u in range(8):
            self.nocount(f"buffer_store_dwordx4 {vr(64+4*u,4)}, v9, {WS}, s{sTMP+5} offen offset:{(u>>1)*64 + (u&1)*16}")
        a.e(f"{Lnu}:")
        for u in range(8):
            self.nocount(f"buffer_store_dwordx4 {vr(64+4*u,4)}, v9, {WS}, s{sTMP+8} offen offset:{(u>>1)*64 + (u&1)*16} sc1")
        a.e("s_mov_b64 exec, -1")
        self.stamp(0)
        a.e("L_NOGEMV:")
        a.e(tagfix.replace("s_mul_i32", "s_cmp_ge_u32 s%d, 20\ns_cbranch_scc0 %s\ns_mul_i32" % (sT, L_j)))
        if "nomall" not in EXP:
            a.e(f"""
s_mul_i32 s{sTMP}, s{sX}, 12
s_add_u32 s{sTMP}, s{sTMP}, s{sT}
s_sub_u32 s{sTMP}, s{sTMP}, 20
s_lshl_b32 s{sTMP}, s{sTMP}, 1
s_add_u32 s{sTMP}, s{sTMP}, s{sW3}
s_lshl_b32 s{sTMP}, s{sTMP}, 13
s_add_u32 s{sTMP+1}, s{sTMP}, {192*8192}
""")
            if "tlb" in EXP:
                jobs = []
                for i in range(2):
                    jobs.append((S_WS, H1BUF + i * 262144, 524288))
                jobs.append((S_WS, OBUF, 262144))
                jobs.append((S_WS, H2BUF, 262144))
                for i in range(4):
                    jobs.append((S_WS, ACT + i * 262144, 917504))
                for i in range(2):
                    jobs.append((S_WS, KVX + i * 262144, 524288))
                jobs.append((S_OUT, 0, 262144))
                jobs.append((S_WS, SGRAN, 0))
                for i in range(2):
                    jobs.append((S_WO, i * 262144, 0))
                for srd in (S_WG, S_WU, S_WD):
                    for i in range(7):
                        jobs.append((srd, i * 262144, 0))
                a.e(f"v_lshlrev_b32 v5, 12, v1\ns_sub_u32 s{sTMP+4}, s{sT}, 20\ns_lshl_b32 s{sTMP+4}, s{sTMP+4}, 1\ns_add_u32 s{sTMP+4}, s{sTMP+4}, s{sW3}")
                for k, (srd, off, xs) in enumerate(jobs):
                    Ln = a.label("Ltl")
                    a.e(f"s_cmp_lg_u32 s{sTMP+4}, {k % 24}\ns_cbranch_scc1 {Ln}\ns_mul_i32 s{sTMP+5}, s{sX}, {xs}\ns_add_u32 s{sTMP+5}, s{sTMP+5}, {off}")
                    self.nocount(f"buffer_load_dword v2, v5, s[{srd}:{srd+3}], s{sTMP+5} offen sc1")
                    a.e(f"{Ln}:")
            a.e(f"s_cmp_lt_u32 s{sTMP}, {84*8192}\ns_cselect_b32 s{sTMP+1}, s{sTMP}, 0x7fff0000\n"
                f"s_sub_u32 s{sTMP+2}, s{sTMP}, {84*8192}\ns_cmp_lt_u32 s{sTMP+2}, {84*8192}\ns_cselect_b32 s{sTMP+2}, s{sTMP+2}, 0x7fff0000\n"
                f"s_sub_u32 s{sTMP+3}, s{sTMP}, {128*8192}\ns_min_u32 s{sTMP+3}, s{sTMP+3}, 0x7fff0000")
            self.nocount(f"buffer_load_dword v2, v10, s[{S_WG}:{S_WG+3}], s{sTMP+1} offen")
            self.nocount(f"buffer_load_dword v2, v10, s[{S_WU}:{S_WU+3}], s{sTMP+2} offen")
            self.nocount(f"buffer_load_dword v2, v10, s[{S_WO}:{S_WO+3}], s{sTMP+3} offen")
            if "mallall" in EXP:
                a.e(f"s_add_u32 s{sTMP+1}, s{sTMP}, {84*8192}\ns_add_u32 s{sTMP+2}, s{sTMP}, {192*8192}")
                self.nocount(f"buffer_load_dword v2, v10, s[{S_WG}:{S_WG+3}], s{sTMP+1} offen")
                self.nocount(f"buffer_load_dword v2, v10, s[{S_WU}:{S_WU+3}], s{sTMP+1} offen")
                self.nocount(f"buffer_load_dword v2, v10, s[{S_WD}:{S_WD+3}], s{sTMP} offen")
                self.nocount(f"buffer_load_dword v2, v10, s[{S_WD}:{S_WD+3}], s{sTMP+2} offen")
            if "mallq" in EXP:
                self.nocount(f"buffer_load_dword v2, v10, s[{S_WQKV}:{S_WQKV+3}], s{sTMP} offen")
        a.e(f"s_branch {L_j}")
        a.vm_issued, a.lg_issued = v0_, l0_

    def phase1(self):
        a = self.a
        a.e(f"""
s_lshl_b32 s{sTMP}, s{sRB}, 8
s_lshl_b32 s{sTMP+1}, s{sW3}, 6
s_add_u32 s{sTMP}, s{sTMP}, s{sTMP+1}
s_add_u32 s{sTMP}, s{sTMP}, {FL_H1}
v_and_b32 v12, 15, v1
v_lshlrev_b32 v12, 2, v12
s_lshl_b32 s{sTMP+2}, s{sX}, 19
s_and_b32 s{sTMP+1}, s{sRB}, 1
s_lshl_b32 s{sTMP+1}, s{sTMP+1}, 17
s_add_u32 s{sTMP+2}, s{sTMP+2}, s{sTMP+1}
s_xor_b32 s{sTMP+1}, s{sWH}, 1
s_lshl_b32 s{sTMP+1}, s{sTMP+1}, 18
s_add_u32 s{sTMP+2}, s{sTMP+2}, s{sTMP+1}
s_lshl_b32 s{sTMP+1}, s{sW3}, 15
s_add_u32 s{sTMP+2}, s{sTMP+2}, s{sTMP+1}
s_add_u32 s{sTMP+2}, s{sTMP+2}, {H1BUF}
v_lshrrev_b32 v8, 5, v1
v_bfe_u32 v9, v1, 2, 2
v_lshl_add_u32 v9, v8, 3, v9
v_lshlrev_b32 v4, 6, v9
v_bfe_u32 v9, v1, 4, 1
v_lshl_add_u32 v4, v9, 5, v4
v_and_b32 v9, 1, v1
v_lshl_add_u32 v4, v9, 4, v4
v_bfe_u32 v9, v1, 1, 1
v_lshl_add_u32 v4, v9, 3, v4
v_add_u32 v4, {L_WQKV}, v4
v_add_u32 v5, 32768, v4
v_add_u32 v6, 65536, v4
v_and_b32 v14, 31, v1
v_lshlrev_b32 v14, 3, v14
s_lshl_b32 s{sTMP+3}, s{sX}, 8
s_add_u32 s{sTMP+3}, s{sTMP+3}, {XID}
""")
        L = a.label("P1")
        Lo = a.label("P1o")
        a.e(f"s_mov_b32 s{sTMP+11}, 0\n{L}:")
        self.nocount(f"buffer_load_dword v13, v12, {WS}, s{sTMP} offen sc1\nbuffer_load_dwordx2 v[16:17], v14, {WS}, s{sTMP+3} offen sc1")
        a.e(f"""
s_add_u32 s{sTMP+11}, s{sTMP+11}, 1
s_cmp_gt_u32 s{sTMP+11}, 400000
s_cbranch_scc1 {Lo}
s_waitcnt vmcnt(0)
v_cmp_ne_u32 vcc, s{sTAG}, v13
s_cbranch_vccz {Lo}
s_sleep {PSLEEP}
s_branch {L}
{Lo}:
s_waitcnt vmcnt(0)
v_xor_b32 v17, s{sTAG}, v17
v_xor_b32 v16, s{sXCC}, v16
v_or_b32 v16, v16, v17
v_cmp_ne_u32 vcc, 0, v16
s_cmp_eq_u64 vcc, 0
s_cselect_b32 s{sPURE}, 1, 0
""")
        self.stamp(2)
        ACC = [16, 32, 48]
        BFv = [64, 76, 88]
        NA = 12
        AF = lambda s: ar(4 * (s % NA), 4)
        NS = 32
        PD = 10

        def body(segs, wo=False):
            if wo:
                self.w64_lane(126)
                a.e(f"""
s_and_b32 s{sTMP+5}, s{sJ}, 7
s_lshl_b32 s{sTMP+5}, s{sTMP+5}, 7
s_lshl_b32 s{sTMP+6}, s{sW3}, 13
s_add_u32 s{sTMP+5}, s{sTMP+5}, s{sTMP+6}
s_lshl_b32 s{sTMP+6}, s{sW3}, 10
""")

            def R(s):
                return [f"ds_read_b64_tr_b16 {vr(BFv[s%3]+4*seg+2*i,2)}, v{4+seg} offset:{(16*s+4*i)*64}" for seg in segs for i in range(2)]

            def M(s):
                out = []
                for seg in segs:
                    c = "0" if s == 0 else vr(ACC[seg], 16)
                    b = vr(BFv[s % 3] + 4 * seg, 4)
                    if seg < 2:
                        out.append(f"v_mfma_f32_32x32x16_bf16 {vr(ACC[seg],16)}, {b}, {AF(s)}, {c}")
                    else:
                        out.append(f"v_mfma_f32_32x32x16_bf16 {vr(ACC[seg],16)}, {AF(s)}, {b}, {c}")
                return out

            def aload(s):
                out = []
                if s % 4 == 0 and s > 0:
                    out.append(f"s_add_u32 s{sTMP+2}, s{sTMP+2}, 4096")
                out.append(f"buffer_load_dwordx4 {AF(s)}, v11, {WS}, s{sTMP+2} offen offset:{(s%4)*1024} sc1")
                return out
            vt = {}
            for s in range(PD):
                a.e("\n".join(aload(s)))
                vt[s] = a.vm_tok()
            a.e("\n".join(R(0)))
            toks = {0: a.lg_tok()}
            a.e("\n".join(R(1)))
            toks[1] = a.lg_tok()
            for i in range(NS):
                r = R(i + 2) if i + 2 < NS else []
                a.wait_lg(toks[i])
                a.wait_vm(vt[i])
                a.e("\n".join(interleave(M(i), r)))
                if r:
                    toks[i + 2] = a.lg_tok()
                if i + PD < NS:
                    a.e("\n".join(aload(i + PD)))
                    vt[i + PD] = a.vm_tok()
                if i == int(os.environ.get("PRE", "4")) and "pre" in EXP:
                    self.pretouch()
                if wo and i < 16:
                    a.e(f"s_add_u32 m0, s{sTMP+6}, {L_WO + i*4096}\ns_add_u32 s{sTMP+7}, s{sTMP+5}, {i*32768}")
                    a.e(f"buffer_load_dwordx4 v126, s[{S_WO}:{S_WO+3}], s{sTMP+7} offen lds")
        L_h = a.label("Lp1h")
        L_j = a.label("Lp1j")
        a.e(f"s_cmp_ge_u32 s{sW}, 4\ns_cbranch_scc1 {L_h}")
        v0_, l0_ = a.vm_issued, a.lg_issued
        body([1, 2, 0])
        a.e(f"s_branch {L_j}\n{L_h}:")
        a.vm_issued, a.lg_issued = v0_, l0_
        body([1, 2], wo=True)
        a.e(f"{L_j}:")
        self.stamp(3)
        a.e("s_nop 15")

    def pretouch(self):
        a = self.a
        T = 84
        a.e(f"""
s_lshl_b32 s{T}, s{sRB}, 2
s_add_u32 s{T+1}, s{T}, s{sW3}
s_lshl_b32 s{T+2}, s{T+1}, 15
s_lshl_b32 s{T+3}, s{sJ}, 11
s_add_u32 s{T+2}, s{T+2}, s{T+3}
s_lshl_b32 s{T+3}, s{sWH}, 10
s_add_u32 s{T+2}, s{T+2}, s{T+3}
s_add_u32 s{T+2}, s{T+2}, {OBUF}
s_mul_i32 s{T+4}, s{T+1}, {112*1024}
s_mul_i32 s{T+3}, s{sJ}, {7*1024}
s_add_u32 s{T+4}, s{T+4}, s{T+3}
s_lshl_b32 s{T+3}, s{sWH}, 12
s_add_u32 s{T+4}, s{T+4}, s{T+3}
s_add_u32 s{T+4}, s{T+4}, {ACT}
s_lshr_b32 s{T+3}, s{sJ}, 3
s_lshl_b32 s{T+3}, s{T+3}, 1
s_add_u32 s{T}, s{T}, s{T+3}
s_and_b32 s{T+3}, s{sW}, 1
s_add_u32 s{T}, s{T}, s{T+3}
s_lshl_b32 s{T}, s{T}, 15
s_and_b32 s{T+3}, s{sJ}, 7
s_lshl_b32 s{T+5}, s{T+3}, 12
s_add_u32 s{T+5}, s{T+5}, s{T}
s_lshr_b32 s{T+6}, s{sW}, 1
s_lshl_b32 s{T+6}, s{T+6}, 10
s_add_u32 s{T+5}, s{T+5}, s{T+6}
s_add_u32 s{T+5}, s{T+5}, {H2BUF}
s_add_u32 s{T+6}, s{T+4}, 3072
s_cmp_lt_u32 s{sW}, 4
s_cselect_b32 s{T+6}, s{T+6}, 0x7fff0000
s_cmp_eq_u32 s{sPURE}, 0
s_cselect_b32 s{T+2}, 0x7fff0000, s{T+2}
s_cselect_b32 s{T+4}, 0x7fff0000, s{T+4}
s_cselect_b32 s{T+5}, 0x7fff0000, s{T+5}
s_cselect_b32 s{T+6}, 0x7fff0000, s{T+6}
buffer_store_dwordx4 v[8:11], v11, {WS}, s{T+2} offen
buffer_store_dwordx4 v[8:11], v11, {WS}, s{T+5} offen
buffer_store_dwordx4 v[8:11], v11, {WS}, s{T+4} offen
buffer_store_dwordx4 v[8:11], v11, {WS}, s{T+4} offen offset:1024
buffer_store_dwordx4 v[8:11], v11, {WS}, s{T+4} offen offset:2048
buffer_store_dwordx4 v[8:11], v11, {WS}, s{T+6} offen
""")
        if "nopre2" not in EXP:
            a.e(f"""
s_lshl_b32 s{T+2}, s{sP}, 14
s_lshl_b32 s{T+3}, s{sW3}, 12
s_add_u32 s{T+2}, s{T+2}, s{T+3}
s_add_u32 s{T+2}, s{T+2}, {KVX}
s_and_b32 s{T+3}, s{sRB}, 1
s_cmp_lg_u32 s{T+3}, s{sWH}
s_cselect_b32 s{T+2}, 0x7fff0000, s{T+2}
s_cmp_eq_u32 s{sPURE}, 0
s_cselect_b32 s{T+2}, 0x7fff0000, s{T+2}
s_lshl_b32 s{T+4}, s{sRB}, 17
s_lshr_b32 s{T+3}, s{sJ}, 3
s_lshl_b32 s{T+3}, s{T+3}, 16
s_add_u32 s{T+4}, s{T+4}, s{T+3}
s_lshl_b32 s{T+3}, s{sW}, 13
s_add_u32 s{T+4}, s{T+4}, s{T+3}
s_and_b32 s{T+3}, s{sJ}, 7
s_lshl_b32 s{T+3}, s{T+3}, 7
s_add_u32 s{T+4}, s{T+4}, s{T+3}
v_lshrrev_b32 v124, 3, v1
v_lshlrev_b32 v124, 10, v124
v_and_b32 v125, 7, v1
v_lshl_add_u32 v124, v125, 4, v124
buffer_store_dwordx4 v[8:11], v11, {WS}, s{T+2} offen
buffer_store_dwordx4 v[8:11], v11, {WS}, s{T+2} offen offset:1024
buffer_store_dwordx4 v[8:11], v11, {WS}, s{T+2} offen offset:2048
buffer_store_dwordx4 v[8:11], v11, {WS}, s{T+2} offen offset:3072
buffer_store_dwordx4 v[8:11], v124, s[{S_OUT}:{S_OUT+3}], s{T+4} offen
""")

    def phase2(self):
        a = self.a
        QF = 140
        for r in range(8):
            a.e(f"v_cvt_pk_bf16_f32 v{64+r}, v{32+2*r}, v{33+2*r}")
        for r in range(8):
            a.e(f"v_cvt_pk_bf16_f32 v{72+r}, v{48+2*r}, v{49+2*r}")
        a.e(f"""
v_and_b32 v8, 31, v1
v_lshrrev_b32 v9, 5, v1
v_bfe_u32 v5, v1, 2, 2
v_xor_b32 v9, v9, v5
v_lshlrev_b32 v7, 6, v8
v_lshl_add_u32 v12, v9, 4, v7
v_xor_b32 v9, 2, v9
v_lshl_add_u32 v13, v9, 4, v7
s_xor_b32 s{sTMP+3}, s{sWH}, 1
s_lshl_b32 s{sTMP+3}, s{sTMP+3}, 14
s_lshl_b32 s{sTMP+4}, s{sW3}, 11
s_add_u32 s{sTMP+3}, s{sTMP+3}, s{sTMP+4}
s_add_u32 s{sTMP+1}, s{sTMP+3}, {L_K}
s_add_u32 s{sTMP+2}, s{sTMP+3}, {L_V}
v_add_u32 v8, s{sTMP+1}, v12
v_add_u32 v9, s{sTMP+1}, v13
v_add_u32 v5, s{sTMP+2}, v12
v_add_u32 v7, s{sTMP+2}, v13
s_lshl_b32 s{sTMP+1}, s{sP}, 14
s_lshl_b32 s{sTMP+2}, s{sW3}, 12
s_add_u32 s{sTMP+1}, s{sTMP+1}, s{sTMP+2}
s_add_u32 s{sTMP+1}, s{sTMP+1}, {KVX}
s_lshl_b32 s{sTMP+5}, s{sP}, 4
s_lshl_b32 s{sTMP+2}, s{sW3}, 2
s_add_u32 s{sTMP+5}, s{sTMP+5}, s{sTMP+2}
s_add_u32 s{sTMP+5}, s{sTMP+5}, {FL_KV}
v_mov_b32 v14, s{sTAG}
v_mov_b32 v15, 0
s_and_b32 s{sTMP+6}, s{sRB}, 1
""")
        L_f = a.label("Lfetch")
        L_j = a.label("Lp2j")
        a.e(f"s_cmp_lg_u32 s{sTMP+6}, s{sWH}\ns_cbranch_scc1 {L_f}")
        v0_, l0_ = a.vm_issued, a.lg_issued
        st = f"""buffer_store_dwordx4 v[64:67], v12, {WS}, s{sTMP+1} offen
buffer_store_dwordx4 v[68:71], v13, {WS}, s{sTMP+1} offen
buffer_store_dwordx4 v[72:75], v12, {WS}, s{sTMP+1} offen offset:2048
buffer_store_dwordx4 v[76:79], v13, {WS}, s{sTMP+1} offen offset:2048
"""
        self.store_site("kv", st, self.flag_seq(f"s{sTMP+5}"))
        a.e(f"s_barrier\ns_branch {L_j}\n{L_f}:")
        a.vm_issued, a.lg_issued = v0_, l0_
        a.e(f"s_xor_b32 s{sTMP+5}, s{sTMP+5}, 256\ns_xor_b32 s{sTMP+1}, s{sTMP+1}, {16*16384}")
        self.poll(15, f"s{sTMP+5}", 80)
        a.e("s_barrier")
        for half in range(2):
            a.e(f"s_add_u32 m0, s{sTMP+4}, {L_K + 4*2048}")
            self.nocount(f"buffer_load_dwordx4 v11, {WS}, s{sTMP+1} offen offset:{half*1024} sc1 lds")
            a.e(f"s_add_u32 m0, s{sTMP+4}, {L_V + 4*2048 - 2048}")
            self.nocount(f"buffer_load_dwordx4 v11, {WS}, s{sTMP+1} offen offset:{2048 + half*1024} sc1 lds")
        a.e(f"{L_j}:")
        a.e(f"""
ds_write_b128 v8, v[64:67]
ds_write_b128 v9, v[68:71]
ds_write_b128 v5, v[72:75]
ds_write_b128 v7, v[76:79]
""")
        Lq = a.label("Lq0")
        a.e(f"s_cmp_ge_u32 s{sW}, 4\ns_cbranch_scc1 {Lq}")
        a.e(f"s_mov_b32 s{sTMP}, {f2u(QSCALE):#x}")
        for r in range(16):
            a.e(f"v_mul_f32 v{16+r}, s{sTMP}, v{16+r}")
        for r in range(4):
            a.e(f"v_cvt_pk_bf16_f32 v{QF+r}, v{16+2*r}, v{17+2*r}")
        for r in range(4):
            a.e(f"v_cvt_pk_bf16_f32 v{80+r}, v{24+2*r}, v{25+2*r}")
        a.e(f"""
s_lshl_b32 s{sTMP+4}, s{sW}, 10
s_add_u32 s{sTMP+4}, s{sTMP+4}, {L_QX}
v_add_u32 v5, s{sTMP+4}, v11
""")
        self.nocount("ds_write_b128 v5, v[80:83]")
        a.e(f"{Lq}:")
        if "valugemv" in EXP:
            a.e(f"""
s_lshl_b32 s{sTMP}, s{sW}, 5
s_add_u32 s{sTMP}, s{sTMP}, {L_SCR}
v_lshl_add_u32 v12, v3, 3, s{sTMP}
ds_write_b64 v12, v[132:133]
""")
        a.e("s_waitcnt vmcnt(0) lgkmcnt(0)\ns_barrier")
        self.stamp(5)
        Lq = a.label("Lq")
        Lw = a.label("Lwo")
        a.e(f"s_cmp_lt_u32 s{sW}, 4\ns_cbranch_scc1 {Lw}")
        a.e(f"s_lshl_b32 s{sTMP+4}, s{sW3}, 10\ns_add_u32 s{sTMP+4}, s{sTMP+4}, {L_QX}\nv_add_u32 v5, s{sTMP+4}, v11")
        self.nocount(f"ds_read_b128 v[{QF}:{QF+3}], v5")
        if "valugemv" in EXP:
            a.e(f"s_cmp_lg_u32 s{sW}, 4\ns_cbranch_scc1 {Lw}")
            a.e(f"v_and_b32 v13, 3, v1\nv_lshlrev_b32 v13, 3, v13\nv_add_u32 v14, {L_SCR}, v13")
            self.nocount("\n".join(f"ds_read_b64 v[{80+2*w}:{81+2*w}], v14 offset:{(4+w)*32}" for w in range(2)))
            a.e(f"""
s_lshr_b32 s{sTMP+5}, s{sP}, 6
s_cmp_eq_u32 s{sTMP+5}, 2
s_cselect_b32 s{sTMP+4}, 1.0, 0
s_lshl_b32 s{sTMP+5}, s{sP}, 5
s_add_u32 s{sTMP+5}, s{sTMP+5}, {MODG}
s_waitcnt lgkmcnt(0)
v_add_f32 v80, v80, v82
v_add_f32 v81, v81, v83
""")
            self.granule(80, 81, sTMP + 4, 82)
            a.e("s_mov_b64 exec, 0xf")
            self.nocount(f"buffer_store_dwordx2 v[82:83], v13, {WS}, s{sTMP+5} offen sc1")
            a.e("s_mov_b64 exec, -1")
        a.e(f"{Lw}:")
        a.e(f"{Lq}:\ns_waitcnt lgkmcnt(0)")
        self.gu_dma_setup()
        self.gu_dma_hi([0])
        if "nomall2" not in EXP:
            Lm = a.label("Lmall")
            a.e(f"""
s_lshr_b32 s{sTMP}, s{sW}, 1
s_cmp_lg_u32 s{sTMP}, 1
s_cbranch_scc1 {Lm}
s_lshl_b32 s{sTMP}, s{sP}, 1
s_and_b32 s{sTMP+1}, s{sW}, 1
s_add_u32 s{sTMP}, s{sTMP}, s{sTMP+1}
s_lshl_b32 s{sTMP}, s{sTMP}, 13
s_add_u32 s{sTMP+1}, s{sTMP}, {84*8192}
s_sub_u32 s{sTMP+2}, s{sTMP}, {140*8192}
s_cmp_lt_u32 s{sTMP+2}, {140*8192}
s_cselect_b32 s{sTMP+2}, s{sTMP+2}, 0x7fff0000
s_add_u32 s{sTMP+2}, s{sTMP+2}, {84*8192}
s_sub_u32 s{sTMP+3}, s{sTMP}, {280*8192}
s_min_u32 s{sTMP+3}, s{sTMP+3}, 0x7fff0000
""")
            self.nocount(f"buffer_load_dword v2, v10, s[{S_WG}:{S_WG+3}], s{sTMP+1} offen")
            self.nocount(f"buffer_load_dword v2, v10, s[{S_WU}:{S_WU+3}], s{sTMP+2} offen")
            self.nocount(f"buffer_load_dword v2, v10, s[{S_WD}:{S_WD+3}], s{sTMP+3} offen")
            a.e(f"{Lm}:")
        Lep = a.label("Lep")
        a.e(f"s_mov_b32 s101, 0\ns_cmp_lg_u32 s2, 0\ns_cbranch_scc1 {Lep}\ns_cmp_lg_u32 s{sW}, 7\ns_cbranch_scc1 {Lep}\nv_lshlrev_b32 v124, 3, v1\ns_mov_b32 s{sTMP}, {XID}")
        for q in range(4):
            self.nocount(f"buffer_load_dword v{125+q}, v124, {WS}, s{sTMP} offen offset:{4 + 512*q} sc1")
        a.e(f"{Lep}:")
        SB = [16, 32]
        CN, OA, PK, MK, MX = 48, 64, 80, 96, 104
        VF = [108, 116]
        KA = 0
        a.e(f"""
v_and_b32 v8, 31, v1
v_lshrrev_b32 v9, 5, v1
v_bfe_u32 v7, v1, 2, 2
s_lshl_b32 s{sTMP}, s{sWH}, 1
v_or_b32 v12, s{sTMP}, v9
v_xor_b32 v12, v12, v7
v_lshlrev_b32 v4, 6, v8
v_lshl_add_u32 v4, v12, 4, v4
s_lshl_b32 s{sTMP+1}, s{sW3}, 11
s_add_u32 s{sTMP+2}, s{sTMP+1}, {L_K}
v_add_u32 v4, s{sTMP+2}, v4
v_and_b32 v13, 15, v1
v_lshlrev_b32 v5, 6, v13
v_xor_b32 v12, v9, v7
v_lshl_add_u32 v5, v12, 4, v5
v_xor_b32 v12, 2, v12
v_lshlrev_b32 v6, 6, v13
v_lshl_add_u32 v6, v12, 4, v6
s_lshl_b32 s{sTMP+2}, s{sWH}, 10
s_add_u32 s{sTMP+2}, s{sTMP+2}, s{sTMP+1}
s_add_u32 s{sTMP+2}, s{sTMP+2}, {L_V}
v_add_u32 v5, s{sTMP+2}, v5
v_add_u32 v6, s{sTMP+2}, v6
s_lshl_b32 s{sTMP}, s{sRB}, 2
s_add_u32 s{sTMP}, s{sTMP}, s{sW3}
s_sub_u32 s{sIMIN}, 8, s{sTMP}
s_cmp_ge_u32 s{sTMP}, 8
s_cselect_b32 s{sIMIN}, 0, s{sIMIN}
s_mul_i32 s92, s{sT}, 35840
s_min_u32 s93, s{sW}, 4
s_lshl_b32 s93, s93, 13
s_add_u32 s92, s92, s93
s_add_u32 s92, s92, {192*3584}
""")
        order = [8, 0, 7, 6, 5, 4, 3, 2, 1]
        ktok = {}
        for i in order:
            a.e(f"ds_read_b128 {ar(KA+4*i,4)}, v4 offset:{i*2048}")
            ktok[i] = a.lg_tok()
        a.e(f"v_lshlrev_b32 v12, 2, v9\nv_sub_u32 v12, v8, v12")
        for r in range(16):
            kl = 8 * (r >> 2) + (r & 3)
            a.e(f"v_cmp_le_i32 s[{sMASK+2*r}:{sMASK+2*r+1}], {kl}, v12")
        a.e(f"v_mov_b32 v13, 0xffff\nv_mov_b32 v7, 0xffff0000")
        for j in range(8):
            a.e(f"v_cndmask_b32 v{MK+j}, 0, v13, s[{sMASK+4*j}:{sMASK+4*j+1}]")
            a.e(f"v_cndmask_b32 v12, 0, v7, s[{sMASK+4*j+2}:{sMASK+4*j+3}]")
            a.e(f"v_or_b32 v{MK+j}, v{MK+j}, v12")
        a.e(f"v_and_b32 v12, 27, v1\nv_cmp_eq_u32 vcc, 16, v12\nv_mov_b32 v13, 0x3f803f80")
        for r in range(16):
            a.e(f"v_cndmask_b32 v{VF[0]+r}, 0, v13, vcc")
        Q = vr(QF, 4)

        touches = [None, (S_WG, 0), None, (S_WU, 0)]

        def touch_one():
            if "atouch" not in EXP or not touches:
                return
            t_ = touches.pop(0)
            if t_ is None:
                return
            srd, off = t_
            Ln = a.label("Lnt")
            a.e(f"s_cmp_gt_u32 s{sW}, 4\ns_cbranch_scc1 {Ln}\ns_add_u32 s93, s92, {off}")
            self.nocount(f"buffer_load_dword v2, v10, s[{srd}:{srd+3}], s93 offen")
            a.e(f"{Ln}:")

        def smfma(buf, i, c):
            return f"v_mfma_f32_32x32x16_bf16 {vr(SB[buf],16)}, {ar(KA+4*i,4)}, {Q}, {c}"

        def fix_trail():
            Ln = a.label("Lnt")
            a.e(f"s_cmp_eq_u32 s{sIMIN}, 0\ns_cbranch_scc1 {Ln}")
            a.e("s_nop 12")
            for r in range(16):
                a.e(f"v_mov_b32 v{SB[1]+r}, {NEG_BIG:#x}")
            a.e(f"{Ln}:\ns_nop 12")

        def merge():
            for r in range(16):
                a.e(f"v_cndmask_b32 v{SB[0]+r}, v{SB[1]+r}, v{SB[0]+r}, s[{sMASK+2*r}:{sMASK+2*r+1}]")

        touch_one()
        a.wait_lg(ktok[0])
        a.e(smfma(0, 8, "0"))
        a.e(smfma(1, 0, "0"))
        fix_trail()
        merge()
        a.wait_lg(ktok[7])
        a.e(smfma(1, 7, "0"))
        a.e(f"v_max3_f32 v{MX}, v{SB[0]}, v{SB[0]+1}, v{SB[0]+2}")
        for r in range(3, 15, 2):
            a.e(f"v_max3_f32 v{MX}, v{MX}, v{SB[0]+r}, v{SB[0]+r+1}")
        a.e(f"v_max_f32 v{MX}, v{MX}, v{SB[0]+15}")
        Le1 = a.label("Lp1e")
        buf = 1
        for i in range(7, 0, -1):
            a.e(f"s_cmp_gt_u32 s{sIMIN}, {i}\ns_cbranch_scc1 {Le1}")
            if i > 1:
                a.wait_lg(ktok[i - 1])
                a.e(smfma(1 - buf, i - 1, "0"))
            for r in range(0, 16, 2):
                a.e(f"v_max3_f32 v{MX}, v{MX}, v{SB[buf]+r}, v{SB[buf]+r+1}")
            buf = 1 - buf
        a.e(f"{Le1}:\ns_waitcnt lgkmcnt(0)\ns_nop 12")
        self.group_allsum([MX], [MX + 1], op="v_max_f32", stages=("32",))
        for r in range(16):
            a.e(f"v_sub_f32 v{CN+r}, 0, v{MX}")
        C = vr(CN, 16)

        def vread(b, i):
            return [f"s_mov_b32 exec_lo, 0xffff", f"s_mov_b32 exec_hi, 0xffff",
                    f"ds_read_b128 {vr(VF[b],4)}, v5 offset:{i*2048}", f"ds_read_b128 {vr(VF[b]+4,4)}, v6 offset:{i*2048}",
                    "s_mov_b64 exec, -1"]

        def expack(buf, dst):
            for r in range(16):
                a.e(f"v_exp_f32 v{SB[buf]+r}, v{SB[buf]+r}")
            for j in range(8):
                a.e(f"v_cvt_pk_bf16_f32 v{dst+j}, v{SB[buf]+2*j}, v{SB[buf]+2*j+1}")

        def pv(vb, p, first=False):
            a.e(f"v_mfma_f32_32x32x16_bf16 {vr(OA,16)}, {vr(VF[vb],4)}, {vr(p,4)}, {'0' if first else vr(OA,16)}")
            a.e(f"v_mfma_f32_32x32x16_bf16 {vr(OA,16)}, {vr(VF[vb]+4,4)}, {vr(p+4,4)}, {vr(OA,16)}")

        touch_one()
        a.e("\n".join(vread(0, 8) + vread(1, 0)))
        tv = a.lg_tok()
        a.e(smfma(0, 8, C))
        a.e(smfma(1, 0, C))
        fix_trail()
        merge()
        a.e(smfma(1, 7, C))
        expack(0, PK)
        for j in range(8):
            a.e(f"v_and_b32 v{PK+8+j}, v{PK+j}, v{MK+j}")
        for j in range(8):
            a.e(f"v_xor_b32 v{PK+j}, v{PK+j}, v{PK+8+j}")
        a.wait_lg(tv)
        pv(0, PK + 8, first=True)
        Lnt = a.label("Lnpv")
        a.e(f"s_cmp_lg_u32 s{sIMIN}, 0\ns_cbranch_scc1 {Lnt}")
        pv(1, PK)
        a.e(f"{Lnt}:")
        Le2 = a.label("Lp2e")
        buf = 1
        vb = 0
        a.e("\n".join(vread(0, 7)))
        for i in range(7, 0, -1):
            a.e(f"s_cmp_gt_u32 s{sIMIN}, {i}\ns_cbranch_scc1 {Le2}")
            tv = a.lg_tok()
            if i > 1:
                a.e(smfma(1 - buf, i - 1, C))
                a.e("\n".join(vread(1 - vb, i - 1)))
            if i in (6, 4):
                touch_one()
            p = PK + 8 * (i & 1)
            expack(buf, p)
            a.wait_lg(tv)
            pv(vb, p)
            buf = 1 - buf
            vb = 1 - vb
        a.e(f"{Le2}:\ns_waitcnt lgkmcnt(0)\ns_nop 15")
        a.e(f"v_rcp_f32 v{MX}, v{OA+8}")
        for r in range(8):
            a.e(f"v_mul_f32 v{OA+r}, v{MX}, v{OA+r}")
        for j in range(4):
            a.e(f"v_cvt_pk_bf16_f32 v{PK+j}, v{OA+2*j}, v{OA+2*j+1}")
        a.e(f"""
s_lshl_b32 s{sTMP}, s{sRB}, 2
s_add_u32 s{sTMP}, s{sTMP}, s{sW3}
s_lshl_b32 s{sTMP}, s{sTMP}, 15
s_lshl_b32 s{sTMP+1}, s{sJ}, 11
s_add_u32 s{sTMP}, s{sTMP}, s{sTMP+1}
s_lshl_b32 s{sTMP+1}, s{sWH}, 10
s_add_u32 s{sTMP}, s{sTMP}, s{sTMP+1}
s_add_u32 s{sTMP}, s{sTMP}, {OBUF}
s_lshl_b32 s{sTMP+1}, s{sP}, 5
s_lshl_b32 s{sTMP+2}, s{sW}, 2
s_add_u32 s{sTMP+1}, s{sTMP+1}, s{sTMP+2}
s_add_u32 s{sTMP+1}, s{sTMP+1}, {FL_O}
v_mov_b32 v14, s{sTAG}
v_mov_b32 v15, 0
""")
        self.store_site("o", f"buffer_store_dwordx4 v[{PK}:{PK+3}], v11, {WS}, s{sTMP} offen", self.flag_seq(f"s{sTMP+1}"))
        Lep = a.label("Lep2")
        a.e(f"""
s_cmp_lg_u32 s2, 0
s_cbranch_scc1 {Lep}
s_cmp_lg_u32 s{sW}, 7
s_cbranch_scc1 {Lep}
v_xor_b32 v125, s{sTAG}, v125
v_xor_b32 v126, s{sTAG}, v126
v_xor_b32 v127, s{sTAG}, v127
v_xor_b32 v128, s{sTAG}, v128
v_or3_b32 v125, v125, v126, v127
v_or_b32 v125, v125, v128
v_cmp_ne_u32 vcc, 0, v125
s_cbranch_vccnz {Lep}
s_mov_b32 s101, 1
s_mov_b64 exec, 1
""")
        self.nocount(f"buffer_store_dword v14, v15, {WS}, 0 offen offset:{EPOCH} sc1")
        a.e(f"s_mov_b64 exec, -1\n{Lep}:")
        self.stamp(6)
        self.gu_dma_setup(lanes=False)
        a.e("s_barrier")

    def w64_lane(self, vd, stride=1024):
        self.a.e(f"""
v_lshrrev_b32 v{vd}, 3, v1
v_mul_u32_u24 v{vd}, {stride}, v{vd}
v_and_b32 v2, 7, v1
v_bfe_u32 v{vd+1}, v1, 4, 1
v_lshlrev_b32 v{vd+1}, 2, v{vd+1}
v_xor_b32 v2, v2, v{vd+1}
v_lshl_add_u32 v{vd}, v2, 4, v{vd}
""")

    def tr64_bases(self, vd):
        self.a.e(f"""
v_lshrrev_b32 v8, 5, v1
v_bfe_u32 v9, v1, 2, 2
v_lshl_add_u32 v8, v8, 3, v9
v_lshlrev_b32 v8, 7, v8
v_bfe_u32 v12, v1, 4, 1
v_lshl_add_u32 v8, v12, 5, v8
v_and_b32 v12, 1, v1
v_lshl_add_u32 v8, v12, 4, v8
v_bfe_u32 v12, v1, 1, 1
v_lshl_add_u32 v8, v12, 3, v8
v_lshrrev_b32 v9, 1, v9
v_lshl_add_u32 v{vd}, v9, 6, v8
v_xor_b32 v9, 1, v9
v_lshl_add_u32 v{vd+1}, v9, 6, v8
""")

    def gu_dma_setup(self, lanes=True):
        a = self.a
        a.e(f"""
s_cmp_ge_u32 s{sW3}, 2
s_cselect_b32 s{S_SEL}, s{S_WU}, s{S_WG}
s_cselect_b32 s{S_SEL+1}, s{S_WU+1}, s{S_WG+1}
s_cselect_b32 s76, {GU_UP}, 0
s_mov_b32 s{S_SEL+2}, 1835008
s_mov_b32 s{S_SEL+3}, 0x20000
s_mov_b32 s84, 4682
s_and_b32 s86, s{sW}, 1
s_mul_i32 s85, s86, {32*3584}
s_mul_i32 s87, s{sJ}, 224
s_add_u32 s85, s85, s87
s_mul_i32 s86, s86, 7168
s_add_u32 s76, s76, s86
""")
        for i in range(7 if lanes else 0):
            a.e(f"""
v_add_u32 v12, {64*i}, v1
v_mul_u32_u24 v13, s84, v12
v_lshrrev_b32 v13, 16, v13
v_mul_u32_u24 v{144+i}, 14, v13
v_sub_u32 v12, v12, v{144+i}
v_mul_u32_u24 v{144+i}, 3584, v13
v_lshl_add_u32 v{144+i}, v12, 4, v{144+i}
""")

    def gu_dma(self, chunk):
        out = []
        for i in range(7):
            out.append(f"s_add_u32 s86, s85, {chunk*64*3584}\ns_add_u32 m0, s76, {GU_SLOT[chunk%4] + i*1024}\n"
                       f"buffer_load_dwordx4 v{144+i}, s[{S_SEL}:{S_SEL+3}], s86 offen{NTG} lds")
        return out

    def gu_dma_hi(self, chunks):
        a = self.a
        Ln = a.label("Lgh")
        a.e(f"s_cmp_lt_u32 s{sW}, 4\ns_cbranch_scc1 {Ln}")
        for c in chunks:
            self.nocount("\n".join(self.gu_dma(c)))
        a.e(f"{Ln}:")

    def reduce_scatter4(self, ACC, base, dst):
        a = self.a
        a.e(f"""
s_and_b32 s{sTMP+1}, s{sW}, 1
s_lshl_b32 s{sTMP+1}, s{sTMP+1}, 15
s_lshr_b32 s{sTMP+5}, s{sW}, 1
s_lshl_b32 s{sTMP+6}, s{sTMP+5}, 11
s_add_u32 s{sTMP+6}, s{sTMP+6}, s{sTMP+1}
s_add_u32 s{sTMP+6}, s{sTMP+6}, {base}
v_add_u32 v12, s{sTMP+6}, v11
s_lshl_b32 s{sTMP+6}, s{sTMP+5}, 13
s_add_u32 s{sTMP+6}, s{sTMP+6}, s{sTMP+1}
s_add_u32 s{sTMP+6}, s{sTMP+6}, {base}
v_add_u32 v13, s{sTMP+6}, v11
""")
        for q in range(4):
            for hf in range(2):
                a.e(f"ds_write_b128 v12, {vr(ACC+8*q+4*hf,4)} offset:{q*8192 + hf*1024}")
        a.e("s_waitcnt lgkmcnt(0)\ns_barrier")
        for src in range(4):
            for hf in range(2):
                a.e(f"ds_read_b128 {vr(ACC+8*src+4*hf,4)}, v13 offset:{src*2048 + hf*1024}")
        a.e("s_waitcnt lgkmcnt(0)")
        for r in range(8):
            a.e(f"v_add_f32 v{ACC+r}, v{ACC+r}, v{ACC+8+r}\nv_add_f32 v{ACC+16+r}, v{ACC+16+r}, v{ACC+24+r}")
        for r in range(8):
            a.e(f"v_add_f32 v{dst+r}, v{ACC+r}, v{ACC+16+r}")

    def phase3(self):
        a = self.a
        a.e(f"""
s_lshr_b32 s{sTMP+3}, s{sJ}, 3
s_lshl_b32 s{sTMP+3}, s{sTMP+3}, 1
s_and_b32 s{sTMP+1}, s{sW}, 1
s_add_u32 s{sTMP+3}, s{sTMP+3}, s{sTMP+1}
s_lshr_b32 s{sTMP+5}, s{sW}, 1
s_and_b32 s{sTMP+7}, s{sTMP+5}, 1
s_lshl_b32 s{sTMP}, s{sRB}, 9
s_lshl_b32 s{sTMP+1}, s{sTMP+3}, 2
s_add_u32 s{sTMP}, s{sTMP}, s{sTMP+1}
s_lshl_b32 s{sTMP+1}, s{sTMP+5}, 7
s_add_u32 s89, s{sTMP}, s{sTMP+1}
s_lshl_b32 s{sTMP+1}, s{sTMP+7}, 8
s_add_u32 s{sTMP}, s{sTMP}, s{sTMP+1}
s_add_u32 s{sTMP}, s{sTMP}, {FL_O}
v_and_b32 v14, 3, v1
v_lshlrev_b32 v14, 5, v14
v_bfe_u32 v15, v1, 2, 1
v_lshl_add_u32 v153, v15, 4, v14
v_and_b32 v14, 7, v1
v_lshlrev_b32 v14, 5, v14
v_bfe_u32 v15, v1, 3, 1
v_lshl_add_u32 v14, v15, 4, v14
s_lshl_b32 s88, s{sRB}, 2
s_add_u32 s88, s88, s{sTMP+3}
s_lshl_b32 s{sTMP+2}, s88, 15
s_lshl_b32 s{sTMP+1}, s{sTMP+7}, 14
s_add_u32 s{sTMP+2}, s{sTMP+2}, s{sTMP+1}
s_add_u32 s{sTMP+2}, s{sTMP+2}, {OBUF}
""")
        self.tr64_bases(154)
        a.e(f"""
s_cmp_ge_u32 s{sW}, 4
s_cselect_b64 vcc, -1, 0
v_cndmask_b32 v4, v154, v155, vcc
s_lshl_b32 s{sTMP+1}, s{sTMP+7}, 15
s_add_u32 s{sTMP+1}, s{sTMP+1}, {L_WO}
v_add_u32 v4, s{sTMP+1}, v4
v_and_b32 v12, 31, v1
v_lshlrev_b32 v12, 10, v12
v_lshrrev_b32 v13, 5, v1
v_lshl_add_u32 v151, v13, 4, v12
s_lshl_b32 s80, s88, 15
s_and_b32 s{sTMP+6}, s{sJ}, 7
s_lshl_b32 s{sTMP+6}, s{sTMP+6}, 7
s_add_u32 s80, s80, s{sTMP+6}
s_lshl_b32 s{sTMP+1}, s{sTMP+5}, 5
s_add_u32 s80, s80, s{sTMP+1}
v_lshlrev_b32 v12, 11, v3
v_and_b32 v13, 15, v1
v_lshl_add_u32 v12, v13, 4, v12
s_lshl_b32 s{sTMP+6}, s{sTMP+6}, 1
s_add_u32 s{sTMP+6}, s{sTMP+6}, {MODG}
""")
        XR = 124
        a.e(f"buffer_load_dwordx4 v[{XR}:{XR+3}], v151, s[{S_X}:{S_X+3}], s80 offen")
        Lt = a.label("Ltab")
        L = a.label("T")
        Lo = a.label("To")
        a.e(f"s_cmp_lg_u32 s{sW}, 2\ns_cbranch_scc1 {Lt}\ns_mov_b32 s{sTMP+11}, 0\n{L}:")
        self.nocount(f"buffer_load_dwordx4 v[96:99], v12, {WS}, s{sTMP+6} offen sc1")
        a.e(f"""
s_add_u32 s{sTMP+11}, s{sTMP+11}, 1
s_cmp_gt_u32 s{sTMP+11}, 400000
s_cbranch_scc1 {Lo}
s_waitcnt vmcnt(0)
v_xor_b32 v100, s{sTAG}, v97
v_xor_b32 v101, s{sTAG}, v99
v_or_b32 v100, v100, v101
v_cmp_ne_u32 vcc, 0, v100
s_cbranch_vccnz {L}
{Lo}:
s_waitcnt vmcnt(0)
v_and_b32 v97, 0xffff0000, v96
v_lshlrev_b32 v96, 16, v96
v_and_b32 v99, 0xffff0000, v98
v_lshlrev_b32 v98, 16, v98
v_add_u32 v12, {L_TAB}, v11
""")
        self.nocount("ds_write_b128 v12, v[96:99]")
        a.e(f"{Lt}:")
        ACC = 16
        BF = [32, 36, 40]
        AF = lambda s: ar(4 * s, 4)

        def R(s):
            return [f"ds_read_b64_tr_b16 {vr(BF[s%3]+2*i,2)}, v4 offset:{(16*s+4*i)*128}" for i in range(2)]

        a.e("s_waitcnt lgkmcnt(0)")
        toks = {}
        for s in range(2):
            a.e("\n".join(R(s)))
            toks[s] = a.lg_tok()
        self.poll(14, f"s{sTMP}", 15)
        self.stamp(7)
        vt = {}
        for s in range(16):
            if s % 4 == 0 and s:
                a.e(f"s_add_u32 s{sTMP+2}, s{sTMP+2}, 4096")
            a.e(f"buffer_load_dwordx4 {AF(s)}, v11, {WS}, s{sTMP+2} offen offset:{(s%4)*1024}")
            vt[s] = a.vm_tok()
        for s in range(16):
            a.wait_lg(toks[s])
            a.wait_vm(vt[s])
            a.e(f"v_mfma_f32_32x32x16_bf16 {vr(ACC,16)}, {vr(BF[s%3],4)}, {AF(s)}, {'0' if s == 0 else vr(ACC,16)}")
            if s + 2 < 16:
                a.e("\n".join(R(s + 2)))
                toks[s + 2] = a.lg_tok()
        self.stamp(18)
        a.e(f"""
s_and_b32 s{sTMP+1}, s{sW}, 1
s_lshl_b32 s{sTMP+1}, s{sTMP+1}, 14
s_lshl_b32 s{sTMP+6}, s{sWH}, 13
s_add_u32 s{sTMP+1}, s{sTMP+1}, s{sTMP+6}
s_add_u32 s{sTMP+1}, s{sTMP+1}, {L_RED}
s_lshl_b32 s{sTMP+6}, s{sTMP+7}, 11
s_add_u32 s{sTMP+6}, s{sTMP+6}, s{sTMP+1}
v_add_u32 v12, s{sTMP+6}, v11
s_lshl_b32 s{sTMP+6}, s{sTMP+7}, 12
s_add_u32 s{sTMP+6}, s{sTMP+6}, s{sTMP+1}
v_add_u32 v13, s{sTMP+6}, v11
""")
        for q in range(2):
            for hf in range(2):
                a.e(f"ds_write_b128 v12, {vr(ACC+8*q+4*hf,4)} offset:{q*4096 + hf*1024}")
        a.e("s_waitcnt lgkmcnt(0)\ns_barrier")
        self.stamp(19)
        if "g12a" in EXP or not ("g12b" in EXP or "g12c" in EXP):
            self.gu_dma_hi([1, 2])
        for src in range(2):
            for hf in range(2):
                a.e(f"ds_read_b128 {vr(ACC+8*src+4*hf,4)}, v13 offset:{src*2048 + hf*1024}")
        GA, SBv, G2 = 56, 64, 72
        a.e(f"""
v_lshrrev_b32 v13, 5, v1
v_lshlrev_b32 v13, 5, v13
s_lshl_b32 s{sTMP+5}, s{sTMP+5}, 6
s_add_u32 s{sTMP+5}, s{sTMP+5}, {L_TAB}
v_add_u32 v13, s{sTMP+5}, v13
ds_read_b128 {vr(GA,4)}, v13
ds_read_b128 {vr(GA+4,4)}, v13 offset:16
ds_read_b128 {vr(SBv,4)}, v13 offset:256
ds_read_b128 {vr(SBv+4,4)}, v13 offset:272
ds_read_b128 {vr(G2,4)}, v13 offset:512
ds_read_b128 {vr(G2+4,4)}, v13 offset:528
ds_read_b128 a[88:91], v13 offset:768
ds_read_b128 a[92:95], v13 offset:784
""")
        X1 = 96
        X1P = 132
        for q in range(4):
            a.e(f"v_lshlrev_b32 v{X1+2*q}, 16, v{XR+q}\nv_and_b32 v{X1+1+2*q}, 0xffff0000, v{XR+q}")
        a.e("s_waitcnt lgkmcnt(6)")
        for r in range(8):
            a.e(f"v_add_f32 v{ACC+r}, v{ACC+r}, v{ACC+8+r}")
        for r in range(8):
            a.e(f"v_fmac_f32 v{X1+r}, v{GA+r}, v{ACC+r}")
        for q in range(4):
            a.e(f"v_cvt_pk_bf16_f32 v{X1P+q}, v{X1+2*q}, v{X1+1+2*q}")
        for q in range(4):
            a.e(f"v_lshlrev_b32 v{X1+2*q}, 16, v{X1P+q}\nv_and_b32 v{X1+1+2*q}, 0xffff0000, v{X1P+q}")
        a.e(f"v_add_f32 v16, v{X1}, v{X1+1}\nv_mul_f32 v17, v{X1}, v{X1}")
        for r in range(2, 8):
            a.e(f"v_add_f32 v16, v16, v{X1+r}")
        for r in range(1, 8):
            a.e(f"v_fmac_f32 v17, v{X1+r}, v{X1+r}")
        self.group_allsum([16, 17], [20, 21], stages=("32",))
        a.e(f"""
v_and_b32 v12, 31, v1
v_lshlrev_b32 v12, 5, v12
s_and_b32 s{sTMP+1}, s{sW}, 1
s_lshl_b32 s{sTMP+1}, s{sTMP+1}, 10
s_add_u32 s{sTMP+1}, s{sTMP+1}, {L_ST}
v_add_u32 v12, s{sTMP+1}, v12
s_lshr_b32 s{sTMP+5}, s{sW}, 1
s_lshl_b32 s{sTMP+5}, s{sTMP+5}, 3
v_add_u32 v13, s{sTMP+5}, v12
ds_write_b64 v13, v[16:17]
s_waitcnt lgkmcnt(0)
s_barrier
""")
        if self.dump:
            a.e(f"s_add_u32 s{sTMP+7}, s80, {X1DBG}")
            self.nocount(f"buffer_store_dwordx4 v[{X1P}:{X1P+3}], v151, {WS}, s{sTMP+7} offen")
        self.stamp(20)
        if "g12b" in EXP:
            self.gu_dma_hi([1, 2])
        L_j = a.label("Lp3j")
        a.e(f"s_cmp_ge_u32 s{sW}, 2\ns_cbranch_scc1 {L_j}")
        v0_, l0_ = a.vm_issued, a.lg_issued
        a.e(f"""
ds_read_b128 v[20:23], v12
ds_read_b128 v[24:27], v12 offset:16
v_mov_b32 v18, s{sTAG}
v_mov_b32 v19, s{sTAG}
v_and_b32 v13, 31, v1
v_lshlrev_b32 v13, 7, v13
s_lshl_b32 s{sTMP+5}, s88, 12
s_add_u32 s{sTMP+5}, s{sTMP+5}, {SGRAN}
s_and_b32 s{sTMP+6}, s{sJ}, 7
s_lshl_b32 s{sTMP+6}, s{sTMP+6}, 4
s_add_u32 s{sTMP+6}, s{sTMP+6}, s{sTMP+5}
v_lshrrev_b32 v2, 5, v1
v_lshl_add_u32 v2, v2, 6, v13
s_waitcnt lgkmcnt(0)
v_add_f32 v16, v20, v22
v_add_f32 v17, v21, v23
v_add_f32 v24, v24, v26
v_add_f32 v25, v25, v27
v_add_f32 v16, v16, v24
v_add_f32 v17, v17, v25
""")
        self.store_sel(f"s_mov_b32 exec_hi, 0\nbuffer_store_dwordx4 v[16:19], v13, {WS}, s{sTMP+6} offen\ns_mov_b64 exec, -1")
        L = a.label("SG")
        Lo = a.label("SGo")
        a.e(f"s_mov_b32 s{sTMP+11}, 0\n{L}:")
        self.nocount("\n".join(f"buffer_load_dwordx4 v[{20+4*q}:{23+4*q}], v2, {WS}, s{sTMP+5} offen offset:{16*q} sc1" for q in range(4)))
        a.e(f"""
s_add_u32 s{sTMP+11}, s{sTMP+11}, 1
s_cmp_gt_u32 s{sTMP+11}, 400000
s_cbranch_scc1 {Lo}
s_waitcnt vmcnt(0)
v_xor_b32 v36, s{sTAG}, v22
v_xor_b32 v37, s{sTAG}, v26
v_or_b32 v36, v36, v37
v_xor_b32 v37, s{sTAG}, v30
v_or_b32 v36, v36, v37
v_xor_b32 v37, s{sTAG}, v34
v_or_b32 v36, v36, v37
v_cmp_ne_u32 vcc, 0, v36
s_cbranch_vccnz {L}
{Lo}:
s_waitcnt vmcnt(0)
v_add_f32 v16, v20, v24
v_add_f32 v17, v21, v25
v_add_f32 v28, v28, v32
v_add_f32 v29, v29, v33
v_add_f32 v16, v16, v28
v_add_f32 v17, v17, v29
""")
        self.group_allsum([16, 17], [20, 21], stages=("32",))
        a.e(f"""
v_mul_f32 v16, {f2u(1/512):#x}, v16
v_mul_f32 v17, {f2u(1/512):#x}, v17
v_fma_f32 v17, -v16, v16, v17
v_max_f32 v17, 0, v17
v_add_f32 v17, {f2u(1e-5):#x}, v17
v_rsq_f32 v18, v17
v_mul_f32 v19, v16, v18
v_sub_f32 v19, 0, v19
ds_write_b64 v12, v[18:19] offset:2048
s_waitcnt lgkmcnt(0)
""")
        self.stamp(21)
        a.vm_issued, a.lg_issued = v0_, l0_
        a.e(f"{L_j}:")
        a.e(f"""
s_lshl_b32 s{sTMP+5}, s88, 15
s_and_b32 s{sTMP+6}, s{sJ}, 7
s_lshl_b32 s{sTMP+6}, s{sTMP+6}, 12
s_add_u32 s{sTMP+5}, s{sTMP+5}, s{sTMP+6}
s_lshr_b32 s{sTMP+6}, s{sW}, 1
s_lshl_b32 s{sTMP+6}, s{sTMP+6}, 10
s_add_u32 s{sTMP+5}, s{sTMP+5}, s{sTMP+6}
s_add_u32 s{sTMP+5}, s{sTMP+5}, {H2BUF}
s_lshl_b32 s{sTMP+6}, s{sP}, 5
s_lshl_b32 s{sTMP+7}, s{sW}, 2
s_add_u32 s{sTMP+6}, s{sTMP+6}, s{sTMP+7}
s_add_u32 s{sTMP+6}, s{sTMP+6}, {FL_H2}
v_mov_b32 v14, s{sTAG}
v_mov_b32 v15, 0
s_barrier
ds_read_b64 v[18:19], v12 offset:2048
s_waitcnt lgkmcnt(0)
""")
        for r in range(8):
            a.e(f"v_fma_f32 v{X1+r}, v{X1+r}, v18, v19")
        for q in range(4):
            a.e(f"v_cvt_pk_bf16_f32 v{32+q}, v{X1+2*q}, v{X1+1+2*q}")
        for q in range(4):
            a.e(f"v_lshlrev_b32 v{X1+2*q}, 16, v{32+q}\nv_and_b32 v{X1+1+2*q}, 0xffff0000, v{32+q}")
        for r in range(8):
            a.e(f"v_fma_f32 v{X1+r}, v{X1+r}, v{G2+r}, v{SBv+r}")
        for q in range(4):
            a.e(f"v_cvt_pk_bf16_f32 v{32+q}, v{X1+2*q}, v{X1+1+2*q}")
        self.store_site("h2", f"buffer_store_dwordx4 v[32:35], v11, {WS}, s{sTMP+5} offen", self.flag_seq(f"s{sTMP+6}"))
        self.stamp(8)

    def d_dma_setup(self):
        a = self.a
        self.w64_lane(12)
        a.e(f"""
v_mov_b32 v152, v12
s_and_b32 s81, s{sJ}, 7
s_lshl_b32 s81, s81, 7
s_lshl_b32 s83, s{sW}, 13
s_add_u32 s81, s81, s83
s_lshl_b32 s82, s{sW}, 10
""")

    def d_dma(self, c):
        return [f"s_add_u32 m0, s82, {D_SLOT[c%4] + q*8192}\ns_add_u32 s83, s81, {(448*q + 64*c)*1024}\n"
                f"buffer_load_dwordx4 v152, s[{S_WD}:{S_WD+3}], s83 offen{NTD} lds" for q in range(4)]

    def phase4(self):
        a = self.a
        self.d_dma_setup()
        a.e(f"""
s_lshl_b32 s{sTMP}, s{sRB}, 9
s_lshr_b32 s{sTMP+1}, s{sW3}, 1
s_lshl_b32 s{sTMP+1}, s{sTMP+1}, 8
s_add_u32 s{sTMP}, s{sTMP}, s{sTMP+1}
s_and_b32 s{sTMP+1}, s{sW3}, 1
s_lshl_b32 s{sTMP+1}, s{sTMP+1}, 2
s_add_u32 s{sTMP}, s{sTMP}, s{sTMP+1}
s_add_u32 s{sTMP}, s{sTMP}, {FL_H2}
v_and_b32 v14, 7, v1
v_lshlrev_b32 v14, 5, v14
v_bfe_u32 v15, v1, 3, 2
v_lshl_add_u32 v14, v15, 3, v14
s_lshl_b32 s{sTMP+2}, s{sRB}, 2
s_add_u32 s{sTMP+2}, s{sTMP+2}, s{sW3}
s_lshl_b32 s{sTMP+2}, s{sTMP+2}, 15
s_add_u32 s{sTMP+2}, s{sTMP+2}, {H2BUF}
v_lshrrev_b32 v8, 5, v1
v_bfe_u32 v9, v1, 2, 2
v_lshl_add_u32 v9, v8, 3, v9
v_mul_u32_u24 v7, 224, v9
v_bfe_u32 v9, v1, 4, 1
v_mul_u32_u24 v9, {GU_UP}, v9
v_add_u32 v7, v7, v9
v_and_b32 v9, 1, v1
v_lshl_add_u32 v7, v9, 4, v7
v_bfe_u32 v9, v1, 1, 1
v_lshl_add_u32 v7, v9, 3, v7
v_add_u32 v4, {GU_SLOT[0]}, v7
v_add_u32 v5, {GU_SLOT[1]}, v7
v_add_u32 v6, {GU_SLOT[2]}, v7
s_barrier
""")
        ACC = [16 + 16 * T for T in range(7)]
        BF = [0, 28]
        NA = 8
        PD = 6
        slot = lambda i: ar(56 + 4 * (i % NA), 4)

        def body(kp):
            def aload(i):
                s_ = 2 * i + kp
                out = []
                if i % 2 == 0 and i > 0:
                    out.append(f"s_add_u32 s{sTMP+2}, s{sTMP+2}, 4096")
                out.append(f"buffer_load_dwordx4 {slot(i)}, v11, {WS}, s{sTMP+2} offen offset:{(s_%4)*1024} sc1")
                return out

            def R(i):
                s_ = 2 * i + kp
                c, sl = s_ // 4, s_ % 4
                return [f"ds_read_b64_tr_b16 {ar(BF[i%2]+4*T+2*ii,2)}, v{4 + c%4} offset:{(16*sl+4*ii)*224 + T*32}" for T in range(7) for ii in range(2)]

            def M(i):
                return [f"v_mfma_f32_32x32x16_bf16 {vr(ACC[T],16)}, {ar(BF[i%2]+4*T,4)}, {slot(i)}, {'0' if i == 0 else vr(ACC[T],16)}" for T in range(7)]
            toks = {}
            a.e("\n".join(R(0)))
            toks[0] = a.lg_tok()
            self.poll(14, f"s{sTMP}", 15)
            self.stamp(9)
            vt = {}
            for i in range(PD):
                a.e("\n".join(aload(i)))
                vt[i] = a.vm_tok()
            gtok = {}
            mine = lambda c: (c & 1) != kp
            pend = []
            if "g12c" in EXP:
                for g in self.gu_dma(1 if mine(1) else 2):
                    a.e(g)
            gtok[1 if mine(1) else 2] = a.vm_tok()
            if mine(3):
                pend += [(3, g) for g in self.gu_dma(3)]
            for i in range(16):
                c = i // 2
                a.wait_lg(toks[i])
                if i % 2 == 1 and c + 1 < 8:
                    if mine(c + 1):
                        assert (c + 1) in gtok and not any(p[0] == c + 1 for p in pend)
                        a.wait_vm(gtok[c + 1])
                    a.e("s_barrier")
                    if c + 4 < 8 and mine(c + 4):
                        pend += [(c + 4, g) for g in self.gu_dma(c + 4)]
                    if c == 6:
                        pend += [(100, g) for g in self.d_dma(0)]
                    if c == 4 and "nodt" not in EXP:
                        pend += [(101, f"s_mul_i32 s92, s{sT}, 57344\ns_lshl_b32 s93, s{sW}, 13\ns_add_u32 s92, s92, s93\n"
                                       f"buffer_load_dword v2, v10, s[{S_WD}:{S_WD+3}], s92 offen")]
                r = R(i + 1) if i < 15 else []
                a.wait_vm(vt[i])
                extra = []
                if i + PD < 16:
                    extra.append(("a", i + PD))
                for _ in range(3):
                    if pend:
                        extra.append(("d", pend.pop(0)))
                m = M(i)
                seq = interleave(m, r)
                pos = [k for k, x in enumerate(seq) if x.startswith("v_mfma")]
                ins_at = {pos[min(2 * n + 1, len(pos) - 1)]: e for n, e in enumerate(extra)}
                for k, x in enumerate(seq):
                    a.e(x)
                    if k in ins_at:
                        kind, val = ins_at[k]
                        if kind == "a":
                            a.e("\n".join(aload(val)))
                            vt[val] = a.vm_tok()
                        else:
                            a.e(val[1])
                            gtok[val[0]] = a.vm_tok()
                if r:
                    toks[i + 1] = a.lg_tok()
            assert not pend
            self.stamp(17)
            keep = [0, 1, 2, 3] if kp == 0 else [4, 5, 6]
            give = [4, 5, 6] if kp == 0 else [0, 1, 2, 3]
            wbase, wstr = (L_XB, 12288) if kp == 0 else (L_XA, 16384)
            rbase, rstr = (L_XA, 16384) if kp == 0 else (L_XB, 12288)
            a.e(f"""
s_mul_i32 s{sTMP+5}, s{sW3}, {wstr}
s_add_u32 s{sTMP+5}, s{sTMP+5}, {wbase}
v_add_u32 v12, s{sTMP+5}, v11
s_mul_i32 s{sTMP+5}, s{sW3}, {rstr}
s_add_u32 s{sTMP+5}, s{sTMP+5}, {rbase}
v_add_u32 v13, s{sTMP+5}, v11
s_barrier
""")
            for n, T in enumerate(give):
                for q in range(4):
                    a.e(f"ds_write_b128 v12, {vr(ACC[T]+4*q,4)} offset:{n*4096 + q*1024}")
            K0 = -2.0 * 0.7978845608028654 * LOG2E
            K1 = K0 * 0.044715
            a.e(f"v_mov_b32 v9, {f2u(K1):#x}\nv_mov_b32 v8, {f2u(K0):#x}")
            a.e(f"""
s_lshl_b32 s{sTMP+5}, s{sRB}, 2
s_add_u32 s{sTMP+5}, s{sTMP+5}, s{sW3}
s_mul_i32 s{sTMP+5}, s{sTMP+5}, {112*1024}
s_mul_i32 s{sTMP+6}, s{sJ}, {7*1024}
s_add_u32 s{sTMP+5}, s{sTMP+5}, s{sTMP+6}
s_lshl_b32 s{sTMP+6}, s{sWH}, 12
s_add_u32 s{sTMP+5}, s{sTMP+5}, s{sTMP+6}
s_add_u32 s{sTMP+5}, s{sTMP+5}, {ACT}
s_lshl_b32 s{sTMP+6}, s{sP}, 5
s_lshl_b32 s{sTMP+7}, s{sW}, 2
s_add_u32 s{sTMP+6}, s{sTMP+6}, s{sTMP+7}
s_add_u32 s{sTMP+6}, s{sTMP+6}, {FL_ACT}
v_mov_b32 v14, s{sTAG}
v_mov_b32 v15, 0
s_waitcnt lgkmcnt(0)
s_barrier
""")
            land = give + ([give[0]] if len(keep) > len(give) else [])
            rt = {}
            for n, T in enumerate(keep[:len(give)]):
                for q in range(4):
                    a.e(f"ds_read_b128 {vr(ACC[land[n]]+4*q,4)}, v13 offset:{n*4096 + q*1024}")
                rt[n] = a.lg_tok()
            PKo = 128
            outs = []
            for n, T in enumerate(keep):
                g = ACC[T]
                if n >= len(give):
                    for q in range(4):
                        a.e(f"ds_read_b128 {vr(ACC[land[n]]+4*q,4)}, v13 offset:{n*4096 + q*1024}")
                    rt[n] = a.lg_tok()
                a.wait_lg(rt[n])
                p = ACC[land[n]]
                for q in range(8):
                    a.e(f"v_pk_add_f32 v[{g+2*q}:{g+2*q+1}], v[{g+2*q}:{g+2*q+1}], v[{p+2*q}:{p+2*q+1}]")
                t = p
                P2 = lambda b, q: f"v[{b+2*q}:{b+2*q+1}]"
                for q in range(4):
                    a.e(f"v_pk_mul_f32 {P2(t,q)}, {P2(g,q)}, {P2(g,q)}")
                for q in range(4):
                    a.e(f"v_pk_fma_f32 {P2(t,q)}, {P2(t,q)}, v[8:9], v[8:9] op_sel:[0,1,0] op_sel_hi:[1,1,0]")
                for q in range(4):
                    a.e(f"v_pk_mul_f32 {P2(t,q)}, {P2(t,q)}, {P2(g,q)}")
                for r in range(8):
                    a.e(f"v_exp_f32 v{t+r}, v{t+r}")
                for q in range(4):
                    a.e(f"v_pk_mul_f32 {P2(g,q)}, {P2(g,q)}, {P2(g+8,q)}")
                for r in range(8):
                    a.e(f"v_add_f32 v{t+r}, 1.0, v{t+r}")
                for r in range(8):
                    a.e(f"v_rcp_f32 v{t+r}, v{t+r}")
                for q in range(4):
                    a.e(f"v_pk_mul_f32 {P2(g,q)}, {P2(g,q)}, {P2(t,q)}")
                for q in range(4):
                    a.e(f"v_cvt_pk_bf16_f32 v{g+8+q}, v{g+2*q}, v{g+2*q+1}")
                st = f"buffer_store_dwordx4 v[{g+8}:{g+11}], v11, {WS}, s{sTMP+5} offen offset:{1024*n}"
                if "actflag" in EXP:
                    a.e(st + " sc1")
                    if n == len(keep) - 1:
                        self.store_sel(self.flag_seq(f"s{sTMP+6}"))
                else:
                    if n == len(keep) - 1:
                        st += "\n" + self.flag_seq(f"s{sTMP+6}")
                    a.e("\n".join((l + " sc1") if l.startswith("buffer_store") else l for l in st.split("\n")))

        L3 = a.label("Lgu3")
        Lj = a.label("Lguj")
        a.e(f"s_cmp_ge_u32 s{sW}, 4\ns_cbranch_scc1 {L3}")
        v0_, l0_ = a.vm_issued, a.lg_issued
        body(0)
        a.e(f"s_branch {Lj}\n{L3}:")
        a.vm_issued, a.lg_issued = v0_, l0_
        body(1)
        a.e(f"{Lj}:")
        self.stamp(10)

    def phase5(self):
        a = self.a
        a.e(f"""
s_add_u32 s{sTMP}, s89, {FL_ACT}
s_lshr_b32 s{sTMP+5}, s{sW}, 1
s_mul_i32 s{sTMP+2}, s88, {112*1024}
s_mul_i32 s{sTMP+1}, s{sTMP+5}, {28*1024}
s_add_u32 s{sTMP+2}, s{sTMP+2}, s{sTMP+1}
s_add_u32 s{sTMP+2}, s{sTMP+2}, {ACT}
s_lshl_b32 s{sTMP+1}, s{sTMP+5}, 13
v_add_u32 v154, s{sTMP+1}, v154
v_add_u32 v155, s{sTMP+1}, v155
""")
        for si in range(4):
            a.e(f"v_add_u32 v{140+2*si}, {D_SLOT[si]}, v154\nv_add_u32 v{141+2*si}, {D_SLOT[si]}, v155")
        ACC = 16
        BF = [48, 56]
        NA = 20
        PD = int(os.environ.get("DPD", "16"))
        DV = os.environ.get("DV", "c")
        AF = lambda s: ar(4 * (s % NA), 4)

        def R(s):
            c, sl = s // 4, s % 4
            return [f"ds_read_b64_tr_b16 {vr(BF[s%2]+4*t+2*i,2)}, v{140+2*(c%4)+t} offset:{(16*sl+4*i)*128}" for t in range(2) for i in range(2)]

        def M(s):
            return [f"v_mfma_f32_32x32x16_bf16 {vr(ACC+16*t,16)}, {vr(BF[s%2]+4*t,4)}, {AF(s)}, {'0' if s == 0 else vr(ACC+16*t,16)}" for t in range(2)]

        def aload(s):
            out = []
            if s % 4 == 0 and s > 0:
                out.append(f"s_add_u32 s{sTMP+2}, s{sTMP+2}, 4096")
            out.append(f"buffer_load_dwordx4 {AF(s)}, v11, {WS}, s{sTMP+2} offen offset:{(s%4)*1024} " + ("" if "dplain" in EXP else "sc1"))
            return out

        a.e("s_barrier")
        if DV == "c":
            for c_ in (1, 2, 3):
                a.e("\n".join(self.d_dma(c_)))
        a.e("\n".join(R(0)))
        toks = {0: a.lg_tok()}
        self.poll(153, f"s{sTMP}", 15)
        self.stamp(11)
        vt = {}
        dtok = {}
        pend = []
        if DV == "a":
            for s in range(PD):
                a.e("\n".join(aload(s)))
                vt[s] = a.vm_tok()
                if s in (3, 7, 11):
                    a.e("\n".join(self.d_dma(1 + s // 4)))
                    dtok[1 + s // 4] = a.vm_tok()
        elif DV == "c":
            for s in range(PD):
                a.e("\n".join(aload(s)))
                vt[s] = a.vm_tok()
            for c_ in (1, 2, 3):
                dtok[c_] = a.vm_tok() - PD
        else:
            for s in range(PD):
                a.e("\n".join(aload(s)))
                vt[s] = a.vm_tok()
                if s == 3:
                    a.e("\n".join(self.d_dma(1)))
                    dtok[1] = a.vm_tok()
            pend += [(2, g) for g in self.d_dma(2)] + [(3, g) for g in self.d_dma(3)]
        for s in range(28):
            c, sl = s // 4, s % 4
            a.wait_lg(toks[s])
            if sl == 3 and c + 1 < 7:
                if c + 1 >= 1:
                    a.wait_vm(dtok[c + 1])
                a.e("s_barrier")
                if "fined" in EXP:
                    self.stamp(13 + c)
                if c + 4 < 7:
                    pend += [(c + 4, g) for g in self.d_dma(c + 4)]
            r = R(s + 1) if s < 27 else []
            a.wait_vm(vt[s])
            a.e("\n".join(interleave(M(s), r)))
            if r:
                toks[s + 1] = a.lg_tok()
            if s + PD < 28:
                a.e("\n".join(aload(s + PD)))
                vt[s + PD] = a.vm_tok()
            for _ in range(2 if DV != "a" else 1):
                if pend:
                    cc, g = pend.pop(0)
                    a.e(g)
                    dtok[cc] = a.vm_tok()
        self.stamp(25)
        a.e("s_barrier")
        AO = 48
        self.reduce_scatter4(ACC, L_RED2, AO)
        X1P = 132
        for q in range(4):
            a.e(f"v_lshlrev_b32 v{64+2*q}, 16, v{X1P+q}\nv_and_b32 v{65+2*q}, 0xffff0000, v{X1P+q}")
        for r in range(8):
            a.e(f"v_accvgpr_read_b32 v{56+r}, a{88+r}")
        for r in range(8):
            a.e(f"v_fmac_f32 v{64+r}, v{56+r}, v{AO+r}")
        for q in range(4):
            a.e(f"v_cvt_pk_bf16_f32 v{32+q}, v{64+2*q}, v{65+2*q}")
        a.e(f"buffer_store_dwordx4 v[32:35], v151, s[{S_OUT}:{S_OUT+3}], s80 offen" + (" sc1" if "outwt" in EXP else (" nt" if "outnt" in EXP else "")))
        self.stamp(12)

    def finish(self):
        a = self.a
        Lx = a.label("Lfin")
        a.e(f"s_cmp_lg_u32 s2, 0\ns_cbranch_scc1 {Lx}\ns_cmp_lg_u32 s{sW}, 7\ns_cbranch_scc1 {Lx}\ns_cmp_eq_u32 s101, 1\ns_cbranch_scc1 {Lx}")
        for q in range(4):
            a.e(f"v_lshlrev_b32 v12, 3, v1\nv_add_u32 v12, {4 + 512*q}, v12\ns_mov_b32 s{sTMP}, {XID}")
            self.poll(12, f"s{sTMP}", 13)
        a.e(f"v_mov_b32 v14, s{sTAG}\nv_mov_b32 v15, 0\ns_mov_b64 exec, 1")
        self.nocount(f"buffer_store_dword v14, v15, {WS}, 0 offen offset:{EPOCH} sc1")
        a.e(f"{Lx}:")
        a.e("L_END:\ns_endpgm\nL_CODE_END:")

    def build(self):
        ph = [self.phase0, self.phase1, self.phase2, self.phase3, self.phase4, self.phase5]
        for i, p in enumerate(ph):
            if i <= self.stop_after:
                p()
        self.finish()
        body = self.a.finalize()
        hdr = open("adaLN_cond__sliding_block__geglu_ffn__prompt.s.ref").read().split("; Override launch")[0]
        src = hdr + f"; @launch grid=(256,1,1) block=(512,1,1) lds={LDS_BYTES}\n" + HEADER.format(name=NAME) + body + \
            FOOTER.format(name=NAME, nvgpr=256, nsgpr=102, accum=160)
        return src


if __name__ == "__main__":
    import argparse
    ap = argparse.ArgumentParser()
    ap.add_argument("-o", default="k.s")
    ap.add_argument("--stamps", action="store_true")
    ap.add_argument("--dump", action="store_true")
    ap.add_argument("--stop", type=int, default=99)
    args = ap.parse_args()
    g = Gen(stop_after=args.stop, stamps=args.stamps, dump=args.dump)
    src = g.build()
    open(args.o, "w").write(src)
    print("wrote", args.o, len(src), "bytes; nops", g.a.nops)
```

```python
import sys, os, struct
sys.path.insert(0, "dev")
from asmlib import *

NAME = "adaLN_cond__sliding_block__geglu_ffn__prompt_kernel"
EXP = os.environ.get("EXP", "").split(",") + ["actflag", "owt", "h2wt"]

EPOCH = 0x0
XID = 0x1000
MODA = 0x2000
MODB = 0xA000
MODG = 0x12000
FL_KV = 0x20000
FL_O = 0x24000
FL_H2 = 0x26000
FL_H1 = 0x22000
FL_ACT = 0x28000
STAMP = 0x2800000
KVX = 0x100000
OBUF = 0x500000
H2BUF = 0x700000
SGRAN = 0x900000
ACT = 0xA00000
H1BUF = 0x1200000
DBG0 = 0x2000000
X1DBG = 0x2400000

S_X, S_WQKV, S_WO, S_WG, S_WU, S_WD, S_C, S_WM, S_OUT, S_WS = 8, 12, 16, 20, 24, 28, 32, 36, 40, 44
sX, sT, sRB, sJ, sW, sTAG, sXCC, sPURE, sP = 48, 49, 50, 51, 52, 53, 54, 55, 56
sW3, sWH, sIMIN = 57, 58, 59
sTMP = 60
S_SEL = 72
sMASK = 60

L_WQKV = 0
L_WO = 96 * 1024
L_K = 0
L_V = 24 * 1024
L_QX = 48 * 1024
L_SCR = 52 * 1024
L_RED = 0
L_TAB = 32 * 1024
L_ST = 33 * 1024
GU_SLOT = [57344, 98304, 127104, 0]
GU_UP = 14464
D_SLOT = [127104, 0, 32768, 65536]
L_RED2 = 0
L_GATE = 32760
L_XA = 0
L_XB = 65536
LDS_BYTES = 160 * 1024

PSLEEP = int(os.environ.get("PSLEEP", "2"))
MSLEEP = int(os.environ.get("MSLEEP", "6"))
NTG = " nt" if "ntg" in EXP else ""
NTD = " nt" if "ntd" in EXP else ""
LOG2E = 1.4426950408889634
QSCALE = 0.25 * LOG2E
NEG_BIG = 0xf149f2ca


def f2u(x):
    return struct.unpack("<I", struct.pack("<f", x))[0]


WS = f"s[{S_WS}:{S_WS+3}]"


class Gen:
    def __init__(self, stop_after=99, stamps=False, dump=False):
        self.a = Asm()
        self.stop_after = stop_after
        self.stamps = stamps
        self.dump = dump

    def nocount(self, text):
        a = self.a
        v, l = a.vm_issued, a.lg_issued
        a.e(text)
        a.vm_issued, a.lg_issued = v, l

    def stamp(self, idx):
        if not self.stamps:
            return
        a = self.a
        idx += 1
        v_, l_ = a.vm_issued, a.lg_issued
        if "dbgstamp" in EXP:
            m = {2: 0, 3: 1, 4: 2, 6: 3, 7: 4, 8: 5, 9: 6, 10: 7, 18: 8, 11: 9, 12: 10, 13: 11}
            if idx in m:
                L = a.label("Lds")
                a.e(f"s_cmp_lg_u32 s2, {int(os.environ.get('DBGWG', '9'))}\ns_cbranch_scc1 {L}\ns_cmp_lg_u32 s{sW}, 0\ns_cbranch_scc1 {L}")
                a.e(f"s_memrealtime s[96:97]\ns_load_dwordx2 s[98:99], s[0:1], 80\ns_waitcnt lgkmcnt(0)\ns_sub_u32 s96, s96, s100")
                a.e(f"v_mov_b32 v158, s96\nv_mov_b32 v159, {m[idx]*4}\nglobal_store_dword v159, v158, s[98:99]\n{L}:")
            a.vm_issued, a.lg_issued = v_, l_
            return
        a.e(f"s_memrealtime s[96:97]\ns_memtime s[94:95]\ns_waitcnt lgkmcnt(0)")
        a.e(f"v_mov_b32 v159, 0\ns_lshl_b32 s98, s2, 11\ns_lshl_b32 s99, s{sW}, 8\ns_add_u32 s98, s98, s99\ns_add_u32 s98, s98, {STAMP}")
        if idx == 2:
            a.e(f"v_mov_b32 v158, s100\nbuffer_store_dword v158, v159, {WS}, s98 offen")
        a.e(f"v_mov_b32 v158, s96\nbuffer_store_dword v158, v159, {WS}, s98 offen offset:{idx*4}")
        a.e(f"v_mov_b32 v158, s94\nbuffer_store_dword v158, v159, {WS}, s98 offen offset:{128+idx*4}")
        a.vm_issued, a.lg_issued = v_, l_

    def poll(self, vaddr, soff, vdst, cnt=sTMP + 11):
        a = self.a
        L = a.label("P")
        Lo = a.label("Po")
        a.e(f"s_mov_b32 s{cnt}, 0\n{L}:")
        self.nocount(f"buffer_load_dword v{vdst}, v{vaddr}, {WS}, {soff} offen sc1")
        a.e(f"""
s_add_u32 s{cnt}, s{cnt}, 1
s_cmp_gt_u32 s{cnt}, 400000
s_cbranch_scc1 {Lo}
s_waitcnt vmcnt(0)
v_cmp_ne_u32 vcc, s{sTAG}, v{vdst}
s_cbranch_vccz {Lo}
s_sleep {PSLEEP}
s_branch {L}
{Lo}:
s_waitcnt vmcnt(0)
""")

    def store_sel(self, text):
        a = self.a
        Ls = a.label("Ssl")
        Le = a.label("Sen")
        lines = [l for l in text.strip().split("\n") if l.strip()]
        a.e(f"s_cmp_eq_u32 s{sPURE}, {'s%d' % sPURE if 'allwt' in EXP else 0}\ns_cbranch_scc1 {Ls}")
        a.e("\n".join(lines))
        a.e(f"s_branch {Le}\n{Ls}:")
        self.nocount("\n".join((l + " sc1") if l.strip().startswith("buffer_store") else l for l in lines))
        a.e(f"{Le}:")

    def store_site(self, site, data, flag):
        if site + "wt" in EXP:
            self.a.e("\n".join((l + " sc1") if l.strip().startswith("buffer_store") else l for l in data.strip().split("\n")))
            self.store_sel(flag)
        else:
            self.store_sel(data.strip() + "\n" + flag)

    def flag_seq(self, soff, vt=14):
        return f"s_waitcnt vmcnt(0)\ns_mov_b64 exec, 1\nbuffer_store_dword v{vt}, v{vt+1}, {WS}, {soff} offen\ns_mov_b64 exec, -1"

    def purity(self, vt=30):
        a = self.a
        a.e(f"""
v_and_b32 v{vt}, 31, v1
v_lshlrev_b32 v{vt}, 3, v{vt}
s_lshl_b32 s{sTMP+10}, s{sX}, 8
s_add_u32 s{sTMP+10}, s{sTMP+10}, {XID}
buffer_load_dwordx2 v[{vt+2}:{vt+3}], v{vt}, {WS}, s{sTMP+10} offen sc1
s_waitcnt vmcnt(0)
v_xor_b32 v{vt}, s{sTAG}, v{vt+3}
v_xor_b32 v{vt+1}, s{sXCC}, v{vt+2}
v_or_b32 v{vt}, v{vt}, v{vt+1}
v_cmp_ne_u32 vcc, 0, v{vt}
s_cmp_eq_u64 vcc, 0
s_cselect_b32 s{sPURE}, 1, 0
""")

    def touch(self, srd, soff_base, nlines_per_wg, widx, nw, vdst, vaddr):
        a = self.a
        if "notouch" in EXP:
            return
        n = nlines_per_wg // 64
        per = (n + nw - 1) // nw
        a.e(f"s_lshl_b32 s{sTMP+9}, s{widx}, 13\ns_add_u32 s{sTMP+9}, s{sTMP+9}, s{soff_base}")
        for i in range(per):
            a.e(f"buffer_load_dword v{vdst}, v{vaddr}, s[{srd}:{srd+3}], s{sTMP+9} offen")
            if i < per - 1:
                a.e(f"s_add_u32 s{sTMP+9}, s{sTMP+9}, {nw*8192}")

    def silu_bf16(self, src_pk, n_pk, dst, tmp):
        a = self.a
        n = 2 * n_pk
        for d in range(n_pk):
            a.e(f"v_lshlrev_b32 v{dst+2*d}, 16, v{src_pk+d}\nv_and_b32 v{dst+2*d+1}, 0xffff0000, v{src_pk+d}")
        for i in range(n):
            a.e(f"v_mul_f32 v{tmp+i}, {f2u(-LOG2E):#x}, v{dst+i}")
        for i in range(n):
            a.e(f"v_exp_f32 v{tmp+i}, v{tmp+i}")
        for i in range(n):
            a.e(f"v_add_f32 v{tmp+i}, 1.0, v{tmp+i}")
        for i in range(n):
            a.e(f"v_rcp_f32 v{tmp+i}, v{tmp+i}")
        for i in range(n):
            a.e(f"v_mul_f32 v{dst+i}, v{dst+i}, v{tmp+i}")
        for d in range(n_pk):
            a.e(f"v_cvt_pk_bf16_f32 v{tmp+d}, v{dst+2*d}, v{dst+2*d+1}")
        for d in range(n_pk):
            a.e(f"v_lshlrev_b32 v{dst+2*d}, 16, v{tmp+d}\nv_and_b32 v{dst+2*d+1}, 0xffff0000, v{tmp+d}")

    def wave_allsum(self, regs, tmp):
        a = self.a
        for r in (1, 2, 4, 8):
            for x in regs:
                a.e(f"v_add_f32_dpp v{x}, v{x}, v{x} row_ror:{r} row_mask:0xf bank_mask:0xf")
        self.group_allsum(regs, tmp)

    def group_allsum(self, regs, tmp, op="v_add_f32", stages=("16", "32")):
        a = self.a
        for sw in stages:
            for x, t in zip(regs, tmp):
                a.e(f"v_mov_b32 v{t}, v{x}")
            for x, t in zip(regs, tmp):
                a.e(f"v_permlane{sw}_swap_b32 v{x}, v{t}")
            for x, t in zip(regs, tmp):
                a.e(f"{op} v{x}, v{x}, v{t}")

    def granule(self, lo, hi, s_one, dst):
        self.a.e(f"""
v_cvt_pk_bf16_f32 v{dst}, v{lo}, v{hi}
v_lshlrev_b32 v{lo}, 16, v{dst}
v_and_b32 v{hi}, 0xffff0000, v{dst}
v_add_f32 v{lo}, s{s_one}, v{lo}
v_add_f32 v{hi}, s{s_one}, v{hi}
v_cvt_pk_bf16_f32 v{dst}, v{lo}, v{hi}
v_mov_b32 v{dst+1}, s{sTAG}
""")

    def reduce8_pairs(self, AC):
        self.a.e(f"""
v_permlane16_swap_b32 v{AC}, v{AC+2}
v_permlane16_swap_b32 v{AC+1}, v{AC+3}
v_permlane16_swap_b32 v{AC+4}, v{AC+6}
v_permlane16_swap_b32 v{AC+5}, v{AC+7}
v_add_f32 v{AC}, v{AC}, v{AC+2}
v_add_f32 v{AC+1}, v{AC+1}, v{AC+3}
v_add_f32 v{AC+4}, v{AC+4}, v{AC+6}
v_add_f32 v{AC+5}, v{AC+5}, v{AC+7}
v_permlane32_swap_b32 v{AC}, v{AC+4}
v_permlane32_swap_b32 v{AC+1}, v{AC+5}
v_add_f32 v{AC}, v{AC}, v{AC+4}
v_add_f32 v{AC+1}, v{AC+1}, v{AC+5}
""")

    def phase0(self):
        a = self.a
        a.e(f"""
s_cmp_ge_u32 s2, 256
s_cbranch_scc1 L_END
{"s_memrealtime s[100:101]" if self.stamps else ""}
s_load_dwordx2 s[{S_WS}:{S_WS+1}], s[0:1], 88
s_load_dwordx2 s[{S_WM}:{S_WM+1}], s[0:1], 64
s_load_dwordx2 s[{S_C}:{S_C+1}], s[0:1], 56
s_load_dwordx2 s[{S_X}:{S_X+1}], s[0:1], 0
s_load_dwordx2 s[{S_WQKV}:{S_WQKV+1}], s[0:1], 8
s_load_dwordx2 s[{S_WO}:{S_WO+1}], s[0:1], 16
s_load_dwordx2 s[{S_WG}:{S_WG+1}], s[0:1], 32
s_load_dwordx2 s[{S_WU}:{S_WU+1}], s[0:1], 40
s_load_dwordx2 s[{S_WD}:{S_WD+1}], s[0:1], 48
s_load_dwordx2 s[{S_OUT}:{S_OUT+1}], s[0:1], 72
s_getpc_b64 s[{sTMP}:{sTMP+1}]
L_PC:
s_and_b32 s{sX}, s2, 7
s_lshr_b32 s{sT}, s2, 3
s_lshl_b32 s{sTMP+2}, s{sT}, 11
v_lshlrev_b32 v2, 2, v0
v_add_u32 v2, s{sTMP+2}, v2
v_min_u32 v2, L_CODE_END-L_PC-4, v2
global_load_dword v4, v2, s[{sTMP}:{sTMP+1}]
s_getreg_b32 s{sXCC}, hwreg(HW_REG_XCC_ID)
s_and_b32 s{sXCC}, s{sXCC}, 15
s_lshr_b32 s{sTMP}, s{sT}, 4
s_lshl_b32 s{sRB}, s{sX}, 1
s_add_u32 s{sRB}, s{sRB}, s{sTMP}
s_and_b32 s{sJ}, s{sT}, 15
s_lshl_b32 s{sP}, s{sX}, 5
s_add_u32 s{sP}, s{sP}, s{sT}
v_and_b32 v1, 63, v0
v_lshrrev_b32 v2, 6, v0
v_lshrrev_b32 v3, 4, v1
v_readfirstlane_b32 s{sW}, v2
v_lshlrev_b32 v11, 4, v1
v_lshlrev_b32 v10, 7, v1
s_and_b32 s{sW3}, s{sW}, 3
s_lshr_b32 s{sWH}, s{sW}, 2
s_mov_b32 s{sPURE}, 0
""")
        sizes = {S_X: 2097152, S_WQKV: 1572864, S_WO: 524288, S_WG: 1835008, S_WU: 1835008, S_WD: 1835008, S_C: 1024,
                 S_WM: 3145728, S_OUT: 2097152, S_WS: 0x10000000}
        for s, sz in sizes.items():
            a.e(f"s_mov_b32 s{s+2}, {sz}\ns_mov_b32 s{s+3}, 0x20000")
        a.e("s_waitcnt lgkmcnt(0)")
        a.e(f"s_load_dword s{sTAG}, s[{S_WS}:{S_WS+1}], {EPOCH}")
        L_45 = a.label("Lw45")
        L_67 = a.label("Lw67")
        L_j = a.label("Lj0")
        tagfix = f"s_waitcnt lgkmcnt(0)\ns_mul_i32 s{sTAG}, s{sTAG}, 1664525\ns_add_u32 s{sTAG}, s{sTAG}, 1013904223"
        L_03 = a.label("Lw03")
        a.e(f"s_cmp_lt_u32 s{sW}, 4\ns_cbranch_scc1 {L_03}\ns_cmp_ge_u32 s{sW}, 6\ns_cbranch_scc1 {L_67}")
        v0_, l0_ = a.vm_issued, a.lg_issued
        self.gemv_mfma(a, L_45, L_j, tagfix, v0_, l0_)
        a.e(f"{L_67}:")
        a.e(f"""
v_lshrrev_b32 v12, 2, v1
v_mul_u32_u24 v12, 3072, v12
v_and_b32 v13, 3, v1
v_lshl_add_u32 v12, v13, 4, v12
{tagfix}
v_mov_b32 v14, s{sXCC}
v_mov_b32 v15, s{sTAG}
s_lshl_b32 s{sTMP}, s{sP}, 3
s_add_u32 s{sTMP}, s{sTMP}, {XID}
v_mov_b32 v13, 0
s_mov_b64 exec, 1
buffer_store_dwordx2 v[14:15], v13, {WS}, s{sTMP} offen sc1
s_mov_b64 exec, -1
s_and_b32 s{sTMP+4}, s{sW}, 1
s_mul_i32 s{sTMP}, s{sTMP+4}, {16*3072}
s_lshl_b32 s{sTMP+1}, s{sJ}, 6
s_add_u32 s{sTMP}, s{sTMP}, s{sTMP+1}
s_lshl_b32 s{sTMP+2}, s{sTMP+4}, 10
""")
        Lgt = a.label("Lgate")
        Lgo = a.label("Lgateo")
        a.e(f"""
s_cmp_ge_u32 s{sT}, {0 if "nogate" in EXP else (99 if "valugemv" in EXP else 20)}
s_cbranch_scc1 {Lgo}
v_and_b32 v13, 1, v1
v_lshlrev_b32 v13, 2, v13
s_mov_b32 s{sTMP+11}, 0
{Lgt}:
ds_read_b32 v14, v13 offset:{L_GATE}
s_add_u32 s{sTMP+11}, s{sTMP+11}, 1
s_cmp_gt_u32 s{sTMP+11}, 4000000
s_cbranch_scc1 {Lgo}
s_waitcnt lgkmcnt(0)
v_cmp_ne_u32 vcc, s{sTAG}, v14
s_cbranch_vccnz {Lgt}
{Lgo}:
s_waitcnt lgkmcnt(0)
""")
        if "qtouch" in EXP:
            a.e(f"s_mul_i32 s{sTMP+5}, s{sT}, 49152")
            self.touch(S_WQKV, sTMP + 5, 384, sTMP + 4, 2, 14, 10)
        if "dmadelay" in EXP:
            a.e(f"buffer_load_dword v14, v13, {WS}, s{sTMP} offen sc1\ns_waitcnt vmcnt(0)")
        Lq_ = a.label("Lqd")
        a.e(f"s_mov_b32 s{sTMP+5}, 0\n{Lq_}:")
        for seg in range(3):
            a.e(f"s_add_u32 m0, s{sTMP+2}, {L_WQKV + seg*32768}")
            a.e(f"s_add_u32 s{sTMP+3}, s{sTMP}, {seg*1024}")
            a.e(f"buffer_load_dwordx4 v12, s[{S_WQKV}:{S_WQKV+3}], s{sTMP+3} offen lds")
        a.e(f"s_add_u32 s{sTMP+2}, s{sTMP+2}, 2048\ns_add_u32 s{sTMP}, s{sTMP}, {32*3072}\ns_add_u32 s{sTMP+5}, s{sTMP+5}, 1\ns_cmp_lt_u32 s{sTMP+5}, 16\ns_cbranch_scc1 {Lq_}")
        a.e("s_waitcnt vmcnt(0)")
        self.stamp(0)
        a.e(f"s_branch {L_j}")
        a.vm_issued, a.lg_issued = v0_, l0_
        a.e(f"{L_03}:")
        XP, XF = 16, 32
        ST = [64, 65, 66, 67]
        STT = [68, 69, 70, 71]
        a.e(f"""
s_lshl_b32 s{sTMP}, s{sRB}, 17
s_lshl_b32 s{sTMP+1}, s{sJ}, 13
s_add_u32 s{sTMP}, s{sTMP}, s{sTMP+1}
s_and_b32 s{sTMP+1}, s{sW}, 1
s_lshl_b32 s{sTMP+1}, s{sTMP+1}, 12
s_add_u32 s{sTMP}, s{sTMP}, s{sTMP+1}
s_sub_u32 s{sTMP+1}, s{sTMP}, {256*1024}
s_cmp_lt_u32 s{sRB}, 2
s_cselect_b32 s{sTMP+1}, s{sTMP}, s{sTMP+1}
s_cmp_ge_u32 s{sW}, 2
s_cselect_b32 s{sTMP}, s{sTMP+1}, s{sTMP}
""")
        for i in range(4):
            a.e(f"buffer_load_dwordx4 {vr(XP+4*i,4)}, v11, s[{S_X}:{S_X+3}], s{sTMP} offen offset:{i*1024}")
        if "noc3" not in EXP:
            Lc0, Lc1, Lce, Lc3 = a.label("Lc30"), a.label("Lc31"), a.label("Lc3e"), a.label("Lc33")
            a.e(f"""
v_lshrrev_b32 v5, 2, v1
v_and_b32 v6, 3, v1
s_cmp_eq_u32 s{sW}, 0
s_cbranch_scc1 {Lc0}
s_cmp_eq_u32 s{sW}, 1
s_cbranch_scc1 {Lc1}
s_cmp_lg_u32 s{sW}, 2
s_cbranch_scc1 {Lc3}
v_and_b32 v5, 15, v1
v_lshlrev_b32 v5, 10, v5
s_lshl_b32 s{sTMP+2}, s{sT}, 14
""")
            self.nocount(f"buffer_load_dword v6, v5, s[{S_WO}:{S_WO+3}], s{sTMP+2} offen offset:384")
            a.e(f"""
s_branch {Lce}
{Lc0}:
v_mul_u32_u24 v5, 6144, v5
v_and_b32 v6, 1, v6
v_lshl_add_u32 v5, v6, 10, v5
s_mul_i32 s{sTMP+2}, s{sT}, {16*6144}
""")
            self.nocount(f"buffer_load_dword v6, v5, s[{S_WM}:{S_WM+3}], s{sTMP+2} offen offset:384")
            a.e(f"""
s_branch {Lce}
{Lc1}:
v_mul_u32_u24 v5, 3072, v5
v_lshl_add_u32 v5, v6, 10, v5
s_mul_i32 s{sTMP+2}, s{sT}, {16*3072}
""")
            self.nocount(f"buffer_load_dword v6, v5, s[{S_WQKV}:{S_WQKV+3}], s{sTMP+2} offen offset:384")
            a.e(f"s_branch {Lce}\n{Lc3}:")
            if "valugemv" in EXP and "nomall" not in EXP:
                a.e(f"s_lshl_b32 s{sTMP+2}, s{sP}, 13\n"
                    f"s_cmp_lt_u32 s{sTMP+2}, {84*8192}\ns_cselect_b32 s{sTMP+3}, s{sTMP+2}, 0x7fff0000\n"
                    f"s_sub_u32 s{sTMP+4}, s{sTMP+2}, {84*8192}\ns_cmp_lt_u32 s{sTMP+4}, {84*8192}\ns_cselect_b32 s{sTMP+4}, s{sTMP+4}, 0x7fff0000\n"
                    f"s_sub_u32 s{sTMP+5}, s{sTMP+2}, {168*8192}\ns_min_u32 s{sTMP+5}, s{sTMP+5}, 0x7fff0000")
                self.nocount(f"buffer_load_dword v6, v10, s[{S_WG}:{S_WG+3}], s{sTMP+3} offen")
                self.nocount(f"buffer_load_dword v6, v10, s[{S_WU}:{S_WU+3}], s{sTMP+4} offen")
                self.nocount(f"buffer_load_dword v6, v10, s[{S_WO}:{S_WO+3}], s{sTMP+5} offen")
            a.e(f"{Lce}:")
        if "wmtouch" in EXP:
            a.e(f"""
v_mul_u32_u24 v5, 6144, v3
v_and_b32 v6, 15, v1
v_lshl_add_u32 v5, v6, 7, v5
s_lshl_b32 s{sTMP}, s{sT}, 2
s_add_u32 s{sTMP}, s{sTMP}, s{sW}
s_mul_i32 s{sTMP}, s{sTMP}, {4*6144}
buffer_load_dword v6, v5, s[{S_WM}:{S_WM+3}], s{sTMP} offen
s_waitcnt vmcnt(1)
""")
        else:
            a.e("s_waitcnt vmcnt(0)")
        a.e(tagfix)
        for i in range(4):
            for d in range(4):
                a.e(f"v_lshlrev_b32 v{XF+8*i+2*d}, 16, v{XP+4*i+d}\nv_and_b32 v{XF+1+8*i+2*d}, 0xffff0000, v{XP+4*i+d}")
        for i in range(4):
            b = XF + 8 * i
            a.e(f"v_add_f32 v{ST[i]}, v{b}, v{b+1}")
            for e in range(2, 8):
                a.e(f"v_add_f32 v{ST[i]}, v{ST[i]}, v{b+e}")
        self.wave_allsum(ST, STT)
        for i in range(4):
            a.e(f"v_mul_f32 v{ST[i]}, {f2u(-1/512):#x}, v{ST[i]}")
        for i in range(4):
            for e in range(8):
                a.e(f"v_add_f32 v{XF+8*i+e}, v{ST[i]}, v{XF+8*i+e}")
        for i in range(4):
            b = XF + 8 * i
            a.e(f"v_mul_f32 v{ST[i]}, v{b}, v{b}")
            for e in range(1, 8):
                a.e(f"v_fmac_f32 v{ST[i]}, v{b+e}, v{b+e}")
        self.wave_allsum(ST, STT)
        for i in range(4):
            a.e(f"v_mul_f32 v{ST[i]}, {f2u(1/512):#x}, v{ST[i]}")
        for i in range(4):
            a.e(f"v_add_f32 v{ST[i]}, {f2u(1e-5):#x}, v{ST[i]}")
        for i in range(4):
            a.e(f"v_rsq_f32 v{ST[i]}, v{ST[i]}")
        for i in range(4):
            for e in range(8):
                a.e(f"v_mul_f32 v{XF+8*i+e}, v{ST[i]}, v{XF+8*i+e}")
        for i in range(4):
            for d in range(4):
                a.e(f"v_cvt_pk_bf16_f32 v{XP+4*i+d}, v{XF+8*i+2*d}, v{XF+1+8*i+2*d}")
        for i in range(4):
            for d in range(4):
                a.e(f"v_lshlrev_b32 v{XF+8*i+2*d}, 16, v{XP+4*i+d}\nv_and_b32 v{XF+1+8*i+2*d}, 0xffff0000, v{XP+4*i+d}")
        a.e(f"""
v_lshrrev_b32 v12, 1, v1
v_lshlrev_b32 v12, 10, v12
v_and_b32 v6, 1, v1
v_lshl_add_u32 v12, v6, 9, v12
s_lshl_b32 s{sTMP+4}, s{sX}, 19
s_and_b32 s{sTMP+3}, s{sRB}, 1
s_lshl_b32 s{sTMP+3}, s{sTMP+3}, 17
s_add_u32 s{sTMP+4}, s{sTMP+4}, s{sTMP+3}
s_lshr_b32 s{sTMP+3}, s{sJ}, 2
s_lshl_b32 s{sTMP+3}, s{sTMP+3}, 15
s_add_u32 s{sTMP+4}, s{sTMP+4}, s{sTMP+3}
s_and_b32 s{sTMP+3}, s{sJ}, 3
s_lshl_b32 s{sTMP+3}, s{sTMP+3}, 7
s_add_u32 s{sTMP+4}, s{sTMP+4}, s{sTMP+3}
s_and_b32 s{sTMP+3}, s{sW}, 1
s_lshl_b32 s{sTMP+3}, s{sTMP+3}, 6
s_add_u32 s{sTMP+4}, s{sTMP+4}, s{sTMP+3}
s_add_u32 s{sTMP+4}, s{sTMP+4}, {H1BUF}
s_add_u32 s{sTMP+8}, s{sTMP+4}, {2*131072}
s_cmp_ge_u32 s{sW}, 2
s_cselect_b32 s{sTMP+4}, s{sTMP+4}, s{sTMP+8}
v_lshlrev_b32 v13, 5, v1
v_lshlrev_b32 v7, 6, v1
v_add_u32 v7, 60, v7
v_and_b32 v8, 31, v1
v_lshlrev_b32 v8, 3, v8
s_lshl_b32 s{sTMP}, s{sX}, 12
s_add_u32 s{sTMP+1}, s{sTMP}, {MODB}
s_add_u32 s{sTMP}, s{sTMP}, {MODA}
s_lshl_b32 s{sTMP+2}, s{sX}, 8
s_add_u32 s{sTMP+2}, s{sTMP+2}, {XID}
s_lshl_b32 s{sTMP+5}, s{sP}, 4
s_lshl_b32 s{sTMP+6}, s{sW}, 2
s_add_u32 s{sTMP+5}, s{sTMP+5}, s{sTMP+6}
s_add_u32 s{sTMP+5}, s{sTMP+5}, {FL_H1}
s_mov_b32 s{sTMP+11}, 0
""")
        self.stamp(0)
        L = a.label("G")
        L2 = a.label("G2")
        Lo = a.label("Go")
        G0 = 96
        a.e(f"{L}:")
        self.nocount(f"buffer_load_dword v{G0}, v7, {WS}, s{sTMP} offen sc1")
        a.e(f"""
s_add_u32 s{sTMP+11}, s{sTMP+11}, 1
s_cmp_gt_u32 s{sTMP+11}, 400000
s_cbranch_scc1 {L2}
s_waitcnt vmcnt(0)
v_cmp_ne_u32 vcc, s{sTAG}, v{G0}
s_cbranch_vccz {L2}
s_add_u32 s{sTMP+10}, s{sTMP+11}, 1
s_and_b32 s{sTMP+10}, s{sTMP+10}, 15
s_cmp_lt_u32 s{sTMP+10}, 2
s_cselect_b32 s{sTMP+10}, s{sTMP+1}, s{sTMP}
s_cselect_b32 s{sTMP+1}, s{sTMP}, s{sTMP+1}
s_mov_b32 s{sTMP}, s{sTMP+10}
s_sleep {MSLEEP}
s_branch {L}
{L2}:
""")
        self.nocount(f"""
buffer_load_dwordx4 v[{G0}:{G0+3}], v13, {WS}, s{sTMP} offen sc1
buffer_load_dwordx4 v[{G0+4}:{G0+7}], v13, {WS}, s{sTMP} offen offset:16 sc1
buffer_load_dwordx4 v[{G0+8}:{G0+11}], v13, {WS}, s{sTMP} offen offset:2048 sc1
buffer_load_dwordx4 v[{G0+12}:{G0+15}], v13, {WS}, s{sTMP} offen offset:2064 sc1
buffer_load_dwordx2 v[{G0+16}:{G0+17}], v8, {WS}, s{sTMP+2} offen sc1
""")
        a.e(f"""
s_cmp_gt_u32 s{sTMP+11}, 400000
s_cbranch_scc1 {Lo}
s_waitcnt vmcnt(0)
v_xor_b32 v116, s{sTAG}, v{G0+1}
""")
        for q in range(3, 16, 2):
            a.e(f"v_xor_b32 v117, s{sTAG}, v{G0+q}\nv_or_b32 v116, v116, v117")
        a.e(f"v_cmp_ne_u32 vcc, 0, v116\ns_cbranch_vccnz {L}\n{Lo}:\ns_waitcnt vmcnt(0)")
        a.e(f"""
v_xor_b32 v116, s{sTAG}, v{G0+17}
v_xor_b32 v117, s{sXCC}, v{G0+16}
v_or_b32 v116, v116, v117
v_cmp_ne_u32 vcc, 0, v116
s_cmp_eq_u64 vcc, 0
s_cselect_b32 s{sPURE}, 1, 0
""")
        SA, GG = 72, 80
        for q in range(4):
            a.e(f"v_lshlrev_b32 v{SA+2*q}, 16, v{G0+2*q}\nv_and_b32 v{SA+1+2*q}, 0xffff0000, v{G0+2*q}")
            a.e(f"v_lshlrev_b32 v{GG+2*q}, 16, v{G0+8+2*q}\nv_and_b32 v{GG+1+2*q}, 0xffff0000, v{G0+8+2*q}")
        for i in range(4):
            for d in range(4):
                b = XF + 8 * i + 2 * d
                a.e(f"v_pk_fma_f32 v[{b}:{b+1}], v[{b}:{b+1}], v[{GG+2*d}:{GG+1+2*d}], v[{SA+2*d}:{SA+1+2*d}]")
            for d in range(4):
                a.e(f"v_cvt_pk_bf16_f32 v{XP+4*i+d}, v{XF+8*i+2*d}, v{XF+1+8*i+2*d}")
        a.e(f"v_mov_b32 v14, s{sTAG}\nv_mov_b32 v15, 0")
        st = "\n".join(f"buffer_store_dwordx4 v[{XP+4*i}:{XP+3+4*i}], v12, {WS}, s{sTMP+4} offen offset:{16*i}" for i in range(4))
        self.store_site("h1", st, self.flag_seq(f"s{sTMP+5}"))
        a.e(f"s_branch {L_j}")
        a.vm_issued, a.lg_issued = v0_, l0_
        self.gemv_mfma2(a, L_45, L_j, tagfix, v0_, l0_)
        a.e(f"{L_j}:")
        if "prio" in EXP:
            Lpr = a.label("Lprio")
            a.e(f"s_cmp_lt_u32 s{sW}, 4\ns_cbranch_scc1 {Lpr}\ns_setprio 1\n{Lpr}:")
        a.e("s_nop 4\ns_barrier")
        self.stamp(1)

    def gemv_valu(self, a, L_45, L_j, tagfix, v0_, l0_):
        a.e(f"{L_45}:")
        W0, SV = 94, 14
        a.e(f"""
v_lshrrev_b32 v6, 1, v1
v_lshlrev_b32 v8, 5, v6
v_mul_u32_u24 v7, {16*6144}, v6
v_and_b32 v6, 1, v1
v_lshl_add_u32 v7, v6, 4, v7
buffer_load_dwordx4 v[70:73], v8, s[{S_C}:{S_C+3}], 0 offen
buffer_load_dwordx4 v[74:77], v8, s[{S_C}:{S_C+3}], 0 offen offset:16
""")
        tok_c = a.vm_tok()
        a.e(f"s_lshl_b32 s{sTMP}, s{sT}, 6\ns_lshl_b32 s{sTMP+1}, s{sW3}, 5\ns_add_u32 s{sTMP}, s{sTMP}, s{sTMP+1}")
        tok_w = []
        for i in range(16):
            a.e(f"buffer_load_dwordx4 v[{W0+4*i}:{W0+3+4*i}], v7, s[{S_WM}:{S_WM+3}], s{sTMP} offen")
            tok_w.append(a.vm_tok())
            if i < 15:
                a.e(f"s_add_u32 s{sTMP}, s{sTMP}, 6144")
        a.e(f"""
v_and_b32 v5, 127, v0
v_mul_u32_u24 v12, 24576, v5
v_lshlrev_b32 v5, 3, v5
s_lshl_b32 s{sTMP}, s{sP}, 4
s_add_u32 s{sTMP}, s{sTMP}, 2048
buffer_load_dwordx2 v[78:79], v5, s[{S_C}:{S_C+3}], 0 offen
""")
        for i in range(4):
            a.e(f"buffer_load_dwordx4 v[{54+4*i}:{57+4*i}], v12, s[{S_WM}:{S_WM+3}], s{sTMP} offen")
            if i < 3:
                a.e(f"s_add_u32 s{sTMP}, s{sTMP}, 6144")
        tok_nu = a.vm_tok()
        a.e(tagfix)
        a.e(f"s_lshl_b32 s{sTMP+4}, s{sW3}, 2\nv_mov_b32 v13, s{sTMP+4}\nv_mov_b32 v5, s{sTAG}\nds_write_b32 v13, v5 offset:{L_GATE}")
        a.e(f"""
v_lshlrev_b32 v9, 5, v6
v_lshl_add_u32 v9, v3, 3, v9
s_cmp_ge_u32 s{sT}, 16
s_cselect_b32 s{sTMP+7}, 1.0, 0
s_lshl_b32 s{sTMP+5}, s{sX}, 12
s_lshl_b32 s{sTMP+6}, s{sT}, 7
s_add_u32 s{sTMP+5}, s{sTMP+5}, s{sTMP+6}
s_lshl_b32 s{sTMP+6}, s{sW3}, 6
s_add_u32 s{sTMP+5}, s{sTMP+5}, s{sTMP+6}
s_add_u32 s{sTMP+6}, s{sTMP+5}, {MODB}
s_add_u32 s{sTMP+5}, s{sTMP+5}, {MODA}
""")
        a.wait_vm(tok_c)
        self.silu_bf16(70, 8, SV, 30)
        AC = 30
        for i in range(16):
            a.wait_vm(tok_w[i])
            w = W0 + 4 * i
            t = 38 + 8 * (i % 2)
            for d in range(4):
                a.e(f"v_lshlrev_b32 v{t+2*d}, 16, v{w+d}\nv_and_b32 v{t+1+2*d}, 0xffff0000, v{w+d}")
            sp = SV + (i & ~1)
            sel = i & 1
            for d in range(4):
                if i == 0:
                    a.e(f"v_pk_mul_f32 v[{AC+2*d}:{AC+1+2*d}], v[{t+2*d}:{t+1+2*d}], v[{sp}:{sp+1}] op_sel_hi:[1,0]")
                else:
                    a.e(f"v_pk_fma_f32 v[{AC+2*d}:{AC+1+2*d}], v[{t+2*d}:{t+1+2*d}], v[{sp}:{sp+1}], v[{AC+2*d}:{AC+1+2*d}] op_sel:[0,{sel},0] op_sel_hi:[1,{sel},1]")
        for r in (2, 4, 8):
            for e in range(8):
                a.e(f"v_add_f32_dpp v{AC+e}, v{AC+e}, v{AC+e} row_ror:{r} row_mask:0xf bank_mask:0xf")
        self.reduce8_pairs(AC)
        self.granule(AC, AC + 1, sTMP + 7, AC + 2)
        a.e(f"s_mov_b32 exec_lo, 0x00030003\ns_mov_b32 exec_hi, 0x00030003")
        a.e(f"buffer_store_dwordx2 v[{AC+2}:{AC+3}], v9, {WS}, s{sTMP+5} offen")
        a.e(f"buffer_store_dwordx2 v[{AC+2}:{AC+3}], v9, {WS}, s{sTMP+6} offen sc1")
        a.e(f"s_mov_b64 exec, -1")
        self.stamp(0)
        a.wait_vm(tok_nu)
        self.silu_bf16(78, 2, 80, 96)
        for i in range(4):
            for d in range(4):
                w = 54 + 4 * i + d
                a.e(f"v_lshlrev_b32 v{96+2*d}, 16, v{w}\nv_and_b32 v{97+2*d}, 0xffff0000, v{w}")
            for e in range(8):
                a.e(f"v_mul_f32 v{72+e}, v80, v{96+e}" if i == 0 else f"v_fmac_f32 v{72+e}, v{80+i}, v{96+e}")
        for r in (1, 2, 4, 8):
            for e in range(8):
                a.e(f"v_add_f32_dpp v{72+e}, v{72+e}, v{72+e} row_ror:{r} row_mask:0xf bank_mask:0xf")
        self.reduce8_pairs(72)
        a.e("v_mov_b32 v132, v72\nv_mov_b32 v133, v73")
        a.e(f"s_branch {L_j}")
        a.vm_issued, a.lg_issued = v0_, l0_

    def gemv_mfma(self, a, L_45, L_j, tagfix, v0_, l0_):
        a.e(f"{L_45}:")
        a.e(f"s_cmp_ge_u32 s{sT}, 20\ns_cbranch_scc1 L_NOGEMV")
        L_SLAB = 96 * 1024
        self.w64_lane(12, stride=6144)
        a.e(f"""
s_lshl_b32 s{sTMP}, s{sT}, 7
s_lshl_b32 s{sTMP+1}, s{sX}, 9
s_add_u32 s{sTMP+1}, s{sTMP+1}, s{sTMP}
s_cmp_ge_u32 s{sT}, 16
s_cselect_b32 s{sTMP}, s{sTMP+1}, s{sTMP}
s_mul_i32 s{sTMP+1}, s{sW3}, {256*6144}
s_add_u32 s{sTMP}, s{sTMP}, s{sTMP+1}
s_lshl_b32 s{sTMP+2}, s{sW3}, 15
s_lshl_b32 s{sTMP+4}, s{sW3}, 9
v_lshlrev_b32 v8, 3, v1
buffer_load_dwordx2 v[70:71], v8, s[{S_C}:{S_C+3}], s{sTMP+4} offen
""")
        tok_c = a.vm_tok()
        Ls_ = a.label("Lsd")
        a.e(f"s_mov_b32 s{sTMP+5}, 0\ns_add_u32 s{sTMP+6}, s{sTMP+2}, {L_SLAB}\n{Ls_}:")
        for i in range(4):
            a.e(f"s_add_u32 m0, s{sTMP+6}, {i*1024}\ns_add_u32 s{sTMP+3}, s{sTMP}, {i*8*6144}")
            a.e(f"buffer_load_dwordx4 v12, s[{S_WM}:{S_WM+3}], s{sTMP+3} offen lds")
        a.e(f"s_add_u32 s{sTMP+6}, s{sTMP+6}, 4096\ns_add_u32 s{sTMP}, s{sTMP}, {32*6144}\ns_add_u32 s{sTMP+5}, s{sTMP+5}, 1\ns_cmp_lt_u32 s{sTMP+5}, 8\ns_cbranch_scc1 {Ls_}")
        a.e(tagfix)
        a.e(f"s_lshl_b32 s{sTMP+4}, s{sW3}, 2\nv_mov_b32 v13, s{sTMP+4}\nv_mov_b32 v14, s{sTAG}\nds_write_b32 v13, v14 offset:{L_GATE}")
        a.e("s_branch L_GEMV2")
        a.vm_issued, a.lg_issued = v0_, l0_

    def gemv_mfma2(self, a, L_45, L_j, tagfix, v0_, l0_):
        L_SLAB = 96 * 1024
        a.e("L_GEMV2:")
        a.e("s_waitcnt vmcnt(32)")
        self.silu_bf16(70, 2, 14, 30)
        SF = 94
        a.e(f"v_lshrrev_b32 v9, 5, v1\nv_lshlrev_b32 v9, 3, v9")
        for st in range(16):
            for d in range(4):
                a.e(f"ds_bpermute_b32 v{SF+4*st+d}, v9, v{30 + (d&1)} offset:{(4*st + (d>>1))*4}")
            if st % 3 == 2:
                a.e("s_waitcnt lgkmcnt(3)")
        self.tr64_bases(4)
        a.e(f"""
s_add_u32 s{sTMP+2}, s{sTMP+2}, {L_SLAB}
v_add_u32 v4, s{sTMP+2}, v4
v_add_u32 v5, s{sTMP+2}, v5
s_waitcnt lgkmcnt(0)
""")
        self.stamp(22)
        a.e("s_waitcnt vmcnt(0)")
        self.stamp(23)
        GA_ = 32
        GB = [64, 72, 80]
        toks = {}

        def GR(st):
            return [f"ds_read_b64_tr_b16 {vr(GB[st%3]+4*t+2*i,2)}, v{4+t} offset:{(16*st+4*i)*128}" for t in range(2) for i in range(2)]
        for st in range(2):
            a.e("\n".join(GR(st)))
            toks[st] = a.lg_tok()
        for st in range(16):
            a.wait_lg(toks[st])
            for t in range(2):
                a.e(f"v_mfma_f32_32x32x16_bf16 {vr(GA_+16*t,16)}, {vr(GB[st%3]+4*t,4)}, {vr(SF+4*st,4)}, {'0' if st == 0 else vr(GA_+16*t,16)}")
            if st + 2 < 16:
                a.e("\n".join(GR(st + 2)))
                toks[st + 2] = a.lg_tok()
        self.stamp(24)
        L5 = a.label("Lg5")
        a.e(f"v_add_u32 v12, {L_SLAB + 32768}, v11\nv_mov_b32 v13, {L_SLAB + 32768 + 8192}\nv_mov_b32 v14, s{sTAG}")
        a.e(f"s_cmp_eq_u32 s{sW}, 4\ns_cbranch_scc1 {L5}")
        self.nocount("\n".join(f"ds_write_b128 v12, {vr(GA_+4*q,4)} offset:{q*1024}" for q in range(8)))
        a.e("s_waitcnt lgkmcnt(0)")
        self.nocount("ds_write_b32 v13, v14")
        a.e(f"s_waitcnt lgkmcnt(0)\ns_branch L_NOGEMV\n{L5}:")
        Ls = a.label("Lgs")
        Lso = a.label("Lgso")
        a.e(f"""
s_mov_b32 s{sTMP+11}, 0
{Ls}:
""")
        self.nocount("ds_read_b32 v15, v13")
        a.e(f"""
s_add_u32 s{sTMP+11}, s{sTMP+11}, 1
s_cmp_gt_u32 s{sTMP+11}, 4000000
s_cbranch_scc1 {Lso}
s_waitcnt lgkmcnt(0)
v_cmp_ne_u32 vcc, s{sTAG}, v15
s_cbranch_vccnz {Ls}
{Lso}:
""")
        self.nocount("\n".join(f"ds_read_b128 {vr(64+4*q,4)}, v12 offset:{q*1024}" for q in range(8)))
        a.e(f"""
s_lshl_b32 s{sTMP+5}, s{sX}, 12
s_lshl_b32 s{sTMP+6}, s{sT}, 8
s_add_u32 s{sTMP+5}, s{sTMP+5}, s{sTMP+6}
s_add_u32 s{sTMP+8}, s{sTMP+5}, {MODB}
s_add_u32 s{sTMP+5}, s{sTMP+5}, {MODA}
s_lshl_b32 s{sTMP+9}, s{sX}, 10
s_add_u32 s{sTMP+9}, s{sTMP+9}, s{sTMP+6}
s_add_u32 s{sTMP+9}, s{sTMP+9}, {MODG - 4096}
s_lshr_b32 s{sTMP+6}, s{sT}, 3
s_cmp_eq_u32 s{sTMP+6}, 1
s_cselect_b32 s{sTMP+7}, 1.0, 0
s_lshr_b32 s{sTMP+6}, s{sX}, 1
s_cmp_eq_u32 s{sTMP+6}, 2
s_cselect_b32 s{sTMP+10}, 1.0, 0
s_cmp_ge_u32 s{sT}, 16
s_cselect_b32 s{sTMP+7}, s{sTMP+10}, s{sTMP+7}
s_cselect_b32 s{sTMP+5}, s{sTMP+9}, s{sTMP+5}
s_cselect_b32 s{sTMP+8}, s{sTMP+9}, s{sTMP+8}
v_lshrrev_b32 v9, 5, v1
v_lshlrev_b32 v9, 5, v9
s_waitcnt lgkmcnt(0)
""")
        for r in range(32):
            a.e(f"v_add_f32 v{GA_+r}, v{GA_+r}, v{64+r}")
        for q in range(16):
            a.e(f"v_cvt_pk_bf16_f32 v{64+2*q}, v{GA_+2*q}, v{GA_+2*q+1}")
        for q in range(16):
            a.e(f"v_lshlrev_b32 v{GA_+2*q}, 16, v{64+2*q}\nv_and_b32 v{GA_+2*q+1}, 0xffff0000, v{64+2*q}")
        for r in range(32):
            a.e(f"v_add_f32 v{GA_+r}, s{sTMP+7}, v{GA_+r}")
        for q in range(16):
            a.e(f"v_cvt_pk_bf16_f32 v{64+2*q}, v{GA_+2*q}, v{GA_+2*q+1}\nv_mov_b32 v{65+2*q}, s{sTAG}")
        a.e("s_mov_b32 exec_lo, 1\ns_mov_b32 exec_hi, 1")
        Lnu = a.label("Lnu")
        a.e(f"s_cmp_ge_u32 s{sT}, 16\ns_cbranch_scc1 {Lnu}")
        for u in range(8):
            self.nocount(f"buffer_store_dwordx4 {vr(64+4*u,4)}, v9, {WS}, s{sTMP+5} offen offset:{(u>>1)*64 + (u&1)*16}")
        a.e(f"{Lnu}:")
        for u in range(8):
            self.nocount(f"buffer_store_dwordx4 {vr(64+4*u,4)}, v9, {WS}, s{sTMP+8} offen offset:{(u>>1)*64 + (u&1)*16} sc1")
        a.e("s_mov_b64 exec, -1")
        self.stamp(0)
        a.e("L_NOGEMV:")
        a.e(tagfix.replace("s_mul_i32", "s_cmp_ge_u32 s%d, 20\ns_cbranch_scc0 %s\ns_mul_i32" % (sT, L_j)))
        if "nomall" not in EXP:
            a.e(f"""
s_mul_i32 s{sTMP}, s{sX}, 12
s_add_u32 s{sTMP}, s{sTMP}, s{sT}
s_sub_u32 s{sTMP}, s{sTMP}, 20
s_lshl_b32 s{sTMP}, s{sTMP}, 1
s_add_u32 s{sTMP}, s{sTMP}, s{sW3}
s_lshl_b32 s{sTMP}, s{sTMP}, 13
s_add_u32 s{sTMP+1}, s{sTMP}, {192*8192}
""")
            if "tlb" in EXP:
                jobs = []
                for i in range(2):
                    jobs.append((S_WS, H1BUF + i * 262144, 524288))
                jobs.append((S_WS, OBUF, 262144))
                jobs.append((S_WS, H2BUF, 262144))
                for i in range(4):
                    jobs.append((S_WS, ACT + i * 262144, 917504))
                for i in range(2):
                    jobs.append((S_WS, KVX + i * 262144, 524288))
                jobs.append((S_OUT, 0, 262144))
                jobs.append((S_WS, SGRAN, 0))
                for i in range(2):
                    jobs.append((S_WO, i * 262144, 0))
                for srd in (S_WG, S_WU, S_WD):
                    for i in range(7):
                        jobs.append((srd, i * 262144, 0))
                a.e(f"v_lshlrev_b32 v5, 12, v1\ns_sub_u32 s{sTMP+4}, s{sT}, 20\ns_lshl_b32 s{sTMP+4}, s{sTMP+4}, 1\ns_add_u32 s{sTMP+4}, s{sTMP+4}, s{sW3}")
                for k, (srd, off, xs) in enumerate(jobs):
                    Ln = a.label("Ltl")
                    a.e(f"s_cmp_lg_u32 s{sTMP+4}, {k % 24}\ns_cbranch_scc1 {Ln}\ns_mul_i32 s{sTMP+5}, s{sX}, {xs}\ns_add_u32 s{sTMP+5}, s{sTMP+5}, {off}")
                    self.nocount(f"buffer_load_dword v2, v5, s[{srd}:{srd+3}], s{sTMP+5} offen sc1")
                    a.e(f"{Ln}:")
            a.e(f"s_cmp_lt_u32 s{sTMP}, {84*8192}\ns_cselect_b32 s{sTMP+1}, s{sTMP}, 0x7fff0000\n"
                f"s_sub_u32 s{sTMP+2}, s{sTMP}, {84*8192}\ns_cmp_lt_u32 s{sTMP+2}, {84*8192}\ns_cselect_b32 s{sTMP+2}, s{sTMP+2}, 0x7fff0000\n"
                f"s_sub_u32 s{sTMP+3}, s{sTMP}, {128*8192}\ns_min_u32 s{sTMP+3}, s{sTMP+3}, 0x7fff0000")
            self.nocount(f"buffer_load_dword v2, v10, s[{S_WG}:{S_WG+3}], s{sTMP+1} offen")
            self.nocount(f"buffer_load_dword v2, v10, s[{S_WU}:{S_WU+3}], s{sTMP+2} offen")
            self.nocount(f"buffer_load_dword v2, v10, s[{S_WO}:{S_WO+3}], s{sTMP+3} offen")
            if "mallall" in EXP:
                a.e(f"s_add_u32 s{sTMP+1}, s{sTMP}, {84*8192}\ns_add_u32 s{sTMP+2}, s{sTMP}, {192*8192}")
                self.nocount(f"buffer_load_dword v2, v10, s[{S_WG}:{S_WG+3}], s{sTMP+1} offen")
                self.nocount(f"buffer_load_dword v2, v10, s[{S_WU}:{S_WU+3}], s{sTMP+1} offen")
                self.nocount(f"buffer_load_dword v2, v10, s[{S_WD}:{S_WD+3}], s{sTMP} offen")
                self.nocount(f"buffer_load_dword v2, v10, s[{S_WD}:{S_WD+3}], s{sTMP+2} offen")
            if "mallq" in EXP:
                self.nocount(f"buffer_load_dword v2, v10, s[{S_WQKV}:{S_WQKV+3}], s{sTMP} offen")
        a.e(f"s_branch {L_j}")
        a.vm_issued, a.lg_issued = v0_, l0_

    def phase1(self):
        a = self.a
        a.e(f"""
s_lshl_b32 s{sTMP}, s{sRB}, 8
s_lshl_b32 s{sTMP+1}, s{sW3}, 6
s_add_u32 s{sTMP}, s{sTMP}, s{sTMP+1}
s_add_u32 s{sTMP}, s{sTMP}, {FL_H1}
v_and_b32 v12, 15, v1
v_lshlrev_b32 v12, 2, v12
s_lshl_b32 s{sTMP+2}, s{sX}, 19
s_and_b32 s{sTMP+1}, s{sRB}, 1
s_lshl_b32 s{sTMP+1}, s{sTMP+1}, 17
s_add_u32 s{sTMP+2}, s{sTMP+2}, s{sTMP+1}
s_xor_b32 s{sTMP+1}, s{sWH}, 1
s_lshl_b32 s{sTMP+1}, s{sTMP+1}, 18
s_add_u32 s{sTMP+2}, s{sTMP+2}, s{sTMP+1}
s_lshl_b32 s{sTMP+1}, s{sW3}, 15
s_add_u32 s{sTMP+2}, s{sTMP+2}, s{sTMP+1}
s_add_u32 s{sTMP+2}, s{sTMP+2}, {H1BUF}
v_lshrrev_b32 v8, 5, v1
v_bfe_u32 v9, v1, 2, 2
v_lshl_add_u32 v9, v8, 3, v9
v_lshlrev_b32 v4, 6, v9
v_bfe_u32 v9, v1, 4, 1
v_lshl_add_u32 v4, v9, 5, v4
v_and_b32 v9, 1, v1
v_lshl_add_u32 v4, v9, 4, v4
v_bfe_u32 v9, v1, 1, 1
v_lshl_add_u32 v4, v9, 3, v4
v_add_u32 v4, {L_WQKV}, v4
v_add_u32 v5, 32768, v4
v_add_u32 v6, 65536, v4
v_and_b32 v14, 31, v1
v_lshlrev_b32 v14, 3, v14
s_lshl_b32 s{sTMP+3}, s{sX}, 8
s_add_u32 s{sTMP+3}, s{sTMP+3}, {XID}
""")
        L = a.label("P1")
        Lo = a.label("P1o")
        a.e(f"s_mov_b32 s{sTMP+11}, 0\n{L}:")
        self.nocount(f"buffer_load_dword v13, v12, {WS}, s{sTMP} offen sc1\nbuffer_load_dwordx2 v[16:17], v14, {WS}, s{sTMP+3} offen sc1")
        a.e(f"""
s_add_u32 s{sTMP+11}, s{sTMP+11}, 1
s_cmp_gt_u32 s{sTMP+11}, 400000
s_cbranch_scc1 {Lo}
s_waitcnt vmcnt(0)
v_cmp_ne_u32 vcc, s{sTAG}, v13
s_cbranch_vccz {Lo}
s_sleep {PSLEEP}
s_branch {L}
{Lo}:
s_waitcnt vmcnt(0)
v_xor_b32 v17, s{sTAG}, v17
v_xor_b32 v16, s{sXCC}, v16
v_or_b32 v16, v16, v17
v_cmp_ne_u32 vcc, 0, v16
s_cmp_eq_u64 vcc, 0
s_cselect_b32 s{sPURE}, 1, 0
""")
        self.stamp(2)
        ACC = [16, 32, 48]
        BFv = [64, 76, 88]
        NA = 12
        AF = lambda s: ar(4 * (s % NA), 4)
        NS = 32
        PD = 10

        def body(segs, wo=False):
            if wo:
                self.w64_lane(126)
                a.e(f"""
s_and_b32 s{sTMP+5}, s{sJ}, 7
s_lshl_b32 s{sTMP+5}, s{sTMP+5}, 7
s_lshl_b32 s{sTMP+6}, s{sW3}, 13
s_add_u32 s{sTMP+5}, s{sTMP+5}, s{sTMP+6}
s_lshl_b32 s{sTMP+6}, s{sW3}, 10
""")

            def R(s):
                return [f"ds_read_b64_tr_b16 {vr(BFv[s%3]+4*seg+2*i,2)}, v{4+seg} offset:{(16*s+4*i)*64}" for seg in segs for i in range(2)]

            def M(s):
                out = []
                for seg in segs:
                    c = "0" if s == 0 else vr(ACC[seg], 16)
                    b = vr(BFv[s % 3] + 4 * seg, 4)
                    if seg < 2:
                        out.append(f"v_mfma_f32_32x32x16_bf16 {vr(ACC[seg],16)}, {b}, {AF(s)}, {c}")
                    else:
                        out.append(f"v_mfma_f32_32x32x16_bf16 {vr(ACC[seg],16)}, {AF(s)}, {b}, {c}")
                return out

            def aload(s):
                out = []
                if s % 4 == 0 and s > 0:
                    out.append(f"s_add_u32 s{sTMP+2}, s{sTMP+2}, 4096")
                out.append(f"buffer_load_dwordx4 {AF(s)}, v11, {WS}, s{sTMP+2} offen offset:{(s%4)*1024} sc1")
                return out
            vt = {}
            for s in range(PD):
                a.e("\n".join(aload(s)))
                vt[s] = a.vm_tok()
            a.e("\n".join(R(0)))
            toks = {0: a.lg_tok()}
            a.e("\n".join(R(1)))
            toks[1] = a.lg_tok()
            for i in range(NS):
                r = R(i + 2) if i + 2 < NS else []
                a.wait_lg(toks[i])
                a.wait_vm(vt[i])
                a.e("\n".join(interleave(M(i), r)))
                if r:
                    toks[i + 2] = a.lg_tok()
                if i + PD < NS:
                    a.e("\n".join(aload(i + PD)))
                    vt[i + PD] = a.vm_tok()
                if i == int(os.environ.get("PRE", "4")) and "pre" in EXP:
                    self.pretouch()
                if wo and i < 16:
                    a.e(f"s_add_u32 m0, s{sTMP+6}, {L_WO + i*4096}\ns_add_u32 s{sTMP+7}, s{sTMP+5}, {i*32768}")
                    a.e(f"buffer_load_dwordx4 v126, s[{S_WO}:{S_WO+3}], s{sTMP+7} offen lds")
        L_h = a.label("Lp1h")
        L_j = a.label("Lp1j")
        a.e(f"s_cmp_ge_u32 s{sW}, 4\ns_cbranch_scc1 {L_h}")
        v0_, l0_ = a.vm_issued, a.lg_issued
        body([1, 2, 0])
        a.e(f"s_branch {L_j}\n{L_h}:")
        a.vm_issued, a.lg_issued = v0_, l0_
        body([1, 2], wo=True)
        a.e(f"{L_j}:")
        self.stamp(3)
        a.e("s_nop 15")

    def pretouch(self):
        a = self.a
        T = 84
        a.e(f"""
s_lshl_b32 s{T}, s{sRB}, 2
s_add_u32 s{T+1}, s{T}, s{sW3}
s_lshl_b32 s{T+2}, s{T+1}, 15
s_lshl_b32 s{T+3}, s{sJ}, 11
s_add_u32 s{T+2}, s{T+2}, s{T+3}
s_lshl_b32 s{T+3}, s{sWH}, 10
s_add_u32 s{T+2}, s{T+2}, s{T+3}
s_add_u32 s{T+2}, s{T+2}, {OBUF}
s_mul_i32 s{T+4}, s{T+1}, {112*1024}
s_mul_i32 s{T+3}, s{sJ}, {7*1024}
s_add_u32 s{T+4}, s{T+4}, s{T+3}
s_lshl_b32 s{T+3}, s{sWH}, 12
s_add_u32 s{T+4}, s{T+4}, s{T+3}
s_add_u32 s{T+4}, s{T+4}, {ACT}
s_lshr_b32 s{T+3}, s{sJ}, 3
s_lshl_b32 s{T+3}, s{T+3}, 1
s_add_u32 s{T}, s{T}, s{T+3}
s_and_b32 s{T+3}, s{sW}, 1
s_add_u32 s{T}, s{T}, s{T+3}
s_lshl_b32 s{T}, s{T}, 15
s_and_b32 s{T+3}, s{sJ}, 7
s_lshl_b32 s{T+5}, s{T+3}, 12
s_add_u32 s{T+5}, s{T+5}, s{T}
s_lshr_b32 s{T+6}, s{sW}, 1
s_lshl_b32 s{T+6}, s{T+6}, 10
s_add_u32 s{T+5}, s{T+5}, s{T+6}
s_add_u32 s{T+5}, s{T+5}, {H2BUF}
s_add_u32 s{T+6}, s{T+4}, 3072
s_cmp_lt_u32 s{sW}, 4
s_cselect_b32 s{T+6}, s{T+6}, 0x7fff0000
s_cmp_eq_u32 s{sPURE}, 0
s_cselect_b32 s{T+2}, 0x7fff0000, s{T+2}
s_cselect_b32 s{T+4}, 0x7fff0000, s{T+4}
s_cselect_b32 s{T+5}, 0x7fff0000, s{T+5}
s_cselect_b32 s{T+6}, 0x7fff0000, s{T+6}
buffer_store_dwordx4 v[8:11], v11, {WS}, s{T+2} offen
buffer_store_dwordx4 v[8:11], v11, {WS}, s{T+5} offen
buffer_store_dwordx4 v[8:11], v11, {WS}, s{T+4} offen
buffer_store_dwordx4 v[8:11], v11, {WS}, s{T+4} offen offset:1024
buffer_store_dwordx4 v[8:11], v11, {WS}, s{T+4} offen offset:2048
buffer_store_dwordx4 v[8:11], v11, {WS}, s{T+6} offen
""")
        if "nopre2" not in EXP:
            a.e(f"""
s_lshl_b32 s{T+2}, s{sP}, 14
s_lshl_b32 s{T+3}, s{sW3}, 12
s_add_u32 s{T+2}, s{T+2}, s{T+3}
s_add_u32 s{T+2}, s{T+2}, {KVX}
s_and_b32 s{T+3}, s{sRB}, 1
s_cmp_lg_u32 s{T+3}, s{sWH}
s_cselect_b32 s{T+2}, 0x7fff0000, s{T+2}
s_cmp_eq_u32 s{sPURE}, 0
s_cselect_b32 s{T+2}, 0x7fff0000, s{T+2}
s_lshl_b32 s{T+4}, s{sRB}, 17
s_lshr_b32 s{T+3}, s{sJ}, 3
s_lshl_b32 s{T+3}, s{T+3}, 16
s_add_u32 s{T+4}, s{T+4}, s{T+3}
s_lshl_b32 s{T+3}, s{sW}, 13
s_add_u32 s{T+4}, s{T+4}, s{T+3}
s_and_b32 s{T+3}, s{sJ}, 7
s_lshl_b32 s{T+3}, s{T+3}, 7
s_add_u32 s{T+4}, s{T+4}, s{T+3}
v_lshrrev_b32 v124, 3, v1
v_lshlrev_b32 v124, 10, v124
v_and_b32 v125, 7, v1
v_lshl_add_u32 v124, v125, 4, v124
buffer_store_dwordx4 v[8:11], v11, {WS}, s{T+2} offen
buffer_store_dwordx4 v[8:11], v11, {WS}, s{T+2} offen offset:1024
buffer_store_dwordx4 v[8:11], v11, {WS}, s{T+2} offen offset:2048
buffer_store_dwordx4 v[8:11], v11, {WS}, s{T+2} offen offset:3072
buffer_store_dwordx4 v[8:11], v124, s[{S_OUT}:{S_OUT+3}], s{T+4} offen
""")

    def phase2(self):
        a = self.a
        QF = 140
        for r in range(8):
            a.e(f"v_cvt_pk_bf16_f32 v{64+r}, v{32+2*r}, v{33+2*r}")
        for r in range(8):
            a.e(f"v_cvt_pk_bf16_f32 v{72+r}, v{48+2*r}, v{49+2*r}")
        a.e(f"""
v_and_b32 v8, 31, v1
v_lshrrev_b32 v9, 5, v1
v_bfe_u32 v5, v1, 2, 2
v_xor_b32 v9, v9, v5
v_lshlrev_b32 v7, 6, v8
v_lshl_add_u32 v12, v9, 4, v7
v_xor_b32 v9, 2, v9
v_lshl_add_u32 v13, v9, 4, v7
s_xor_b32 s{sTMP+3}, s{sWH}, 1
s_lshl_b32 s{sTMP+3}, s{sTMP+3}, 14
s_lshl_b32 s{sTMP+4}, s{sW3}, 11
s_add_u32 s{sTMP+3}, s{sTMP+3}, s{sTMP+4}
s_add_u32 s{sTMP+1}, s{sTMP+3}, {L_K}
s_add_u32 s{sTMP+2}, s{sTMP+3}, {L_V}
v_add_u32 v8, s{sTMP+1}, v12
v_add_u32 v9, s{sTMP+1}, v13
v_add_u32 v5, s{sTMP+2}, v12
v_add_u32 v7, s{sTMP+2}, v13
s_lshl_b32 s{sTMP+1}, s{sP}, 14
s_lshl_b32 s{sTMP+2}, s{sW3}, 12
s_add_u32 s{sTMP+1}, s{sTMP+1}, s{sTMP+2}
s_add_u32 s{sTMP+1}, s{sTMP+1}, {KVX}
s_lshl_b32 s{sTMP+5}, s{sP}, 4
s_lshl_b32 s{sTMP+2}, s{sW3}, 2
s_add_u32 s{sTMP+5}, s{sTMP+5}, s{sTMP+2}
s_add_u32 s{sTMP+5}, s{sTMP+5}, {FL_KV}
v_mov_b32 v14, s{sTAG}
v_mov_b32 v15, 0
s_and_b32 s{sTMP+6}, s{sRB}, 1
""")
        L_f = a.label("Lfetch")
        L_j = a.label("Lp2j")
        a.e(f"s_cmp_lg_u32 s{sTMP+6}, s{sWH}\ns_cbranch_scc1 {L_f}")
        v0_, l0_ = a.vm_issued, a.lg_issued
        st = f"""buffer_store_dwordx4 v[64:67], v12, {WS}, s{sTMP+1} offen
buffer_store_dwordx4 v[68:71], v13, {WS}, s{sTMP+1} offen
buffer_store_dwordx4 v[72:75], v12, {WS}, s{sTMP+1} offen offset:2048
buffer_store_dwordx4 v[76:79], v13, {WS}, s{sTMP+1} offen offset:2048
"""
        self.store_site("kv", st, self.flag_seq(f"s{sTMP+5}"))
        a.e(f"s_barrier\ns_branch {L_j}\n{L_f}:")
        a.vm_issued, a.lg_issued = v0_, l0_
        a.e(f"s_xor_b32 s{sTMP+5}, s{sTMP+5}, 256\ns_xor_b32 s{sTMP+1}, s{sTMP+1}, {16*16384}")
        self.poll(15, f"s{sTMP+5}", 80)
        a.e("s_barrier")
        for half in range(2):
            a.e(f"s_add_u32 m0, s{sTMP+4}, {L_K + 4*2048}")
            self.nocount(f"buffer_load_dwordx4 v11, {WS}, s{sTMP+1} offen offset:{half*1024} sc1 lds")
            a.e(f"s_add_u32 m0, s{sTMP+4}, {L_V + 4*2048 - 2048}")
            self.nocount(f"buffer_load_dwordx4 v11, {WS}, s{sTMP+1} offen offset:{2048 + half*1024} sc1 lds")
        a.e(f"{L_j}:")
        a.e(f"""
ds_write_b128 v8, v[64:67]
ds_write_b128 v9, v[68:71]
ds_write_b128 v5, v[72:75]
ds_write_b128 v7, v[76:79]
""")
        Lq = a.label("Lq0")
        a.e(f"s_cmp_ge_u32 s{sW}, 4\ns_cbranch_scc1 {Lq}")
        a.e(f"s_mov_b32 s{sTMP}, {f2u(QSCALE):#x}")
        for r in range(16):
            a.e(f"v_mul_f32 v{16+r}, s{sTMP}, v{16+r}")
        for r in range(4):
            a.e(f"v_cvt_pk_bf16_f32 v{QF+r}, v{16+2*r}, v{17+2*r}")
        for r in range(4):
            a.e(f"v_cvt_pk_bf16_f32 v{80+r}, v{24+2*r}, v{25+2*r}")
        a.e(f"""
s_lshl_b32 s{sTMP+4}, s{sW}, 10
s_add_u32 s{sTMP+4}, s{sTMP+4}, {L_QX}
v_add_u32 v5, s{sTMP+4}, v11
""")
        self.nocount("ds_write_b128 v5, v[80:83]")
        a.e(f"{Lq}:")
        if "valugemv" in EXP:
            a.e(f"""
s_lshl_b32 s{sTMP}, s{sW}, 5
s_add_u32 s{sTMP}, s{sTMP}, {L_SCR}
v_lshl_add_u32 v12, v3, 3, s{sTMP}
ds_write_b64 v12, v[132:133]
""")
        a.e("s_waitcnt vmcnt(0) lgkmcnt(0)\ns_barrier")
        self.stamp(5)
        Lq = a.label("Lq")
        Lw = a.label("Lwo")
        a.e(f"s_cmp_lt_u32 s{sW}, 4\ns_cbranch_scc1 {Lw}")
        a.e(f"s_lshl_b32 s{sTMP+4}, s{sW3}, 10\ns_add_u32 s{sTMP+4}, s{sTMP+4}, {L_QX}\nv_add_u32 v5, s{sTMP+4}, v11")
        self.nocount(f"ds_read_b128 v[{QF}:{QF+3}], v5")
        if "valugemv" in EXP:
            a.e(f"s_cmp_lg_u32 s{sW}, 4\ns_cbranch_scc1 {Lw}")
            a.e(f"v_and_b32 v13, 3, v1\nv_lshlrev_b32 v13, 3, v13\nv_add_u32 v14, {L_SCR}, v13")
            self.nocount("\n".join(f"ds_read_b64 v[{80+2*w}:{81+2*w}], v14 offset:{(4+w)*32}" for w in range(2)))
            a.e(f"""
s_lshr_b32 s{sTMP+5}, s{sP}, 6
s_cmp_eq_u32 s{sTMP+5}, 2
s_cselect_b32 s{sTMP+4}, 1.0, 0
s_lshl_b32 s{sTMP+5}, s{sP}, 5
s_add_u32 s{sTMP+5}, s{sTMP+5}, {MODG}
s_waitcnt lgkmcnt(0)
v_add_f32 v80, v80, v82
v_add_f32 v81, v81, v83
""")
            self.granule(80, 81, sTMP + 4, 82)
            a.e("s_mov_b64 exec, 0xf")
            self.nocount(f"buffer_store_dwordx2 v[82:83], v13, {WS}, s{sTMP+5} offen sc1")
            a.e("s_mov_b64 exec, -1")
        a.e(f"{Lw}:")
        a.e(f"{Lq}:\ns_waitcnt lgkmcnt(0)")
        self.gu_dma_setup()
        self.gu_dma_hi([0])
        if "nomall2" not in EXP:
            Lm = a.label("Lmall")
            a.e(f"""
s_lshr_b32 s{sTMP}, s{sW}, 1
s_cmp_lg_u32 s{sTMP}, 1
s_cbranch_scc1 {Lm}
s_lshl_b32 s{sTMP}, s{sP}, 1
s_and_b32 s{sTMP+1}, s{sW}, 1
s_add_u32 s{sTMP}, s{sTMP}, s{sTMP+1}
s_lshl_b32 s{sTMP}, s{sTMP}, 13
s_add_u32 s{sTMP+1}, s{sTMP}, {84*8192}
s_sub_u32 s{sTMP+2}, s{sTMP}, {140*8192}
s_cmp_lt_u32 s{sTMP+2}, {140*8192}
s_cselect_b32 s{sTMP+2}, s{sTMP+2}, 0x7fff0000
s_add_u32 s{sTMP+2}, s{sTMP+2}, {84*8192}
s_sub_u32 s{sTMP+3}, s{sTMP}, {280*8192}
s_min_u32 s{sTMP+3}, s{sTMP+3}, 0x7fff0000
""")
            self.nocount(f"buffer_load_dword v2, v10, s[{S_WG}:{S_WG+3}], s{sTMP+1} offen")
            self.nocount(f"buffer_load_dword v2, v10, s[{S_WU}:{S_WU+3}], s{sTMP+2} offen")
            self.nocount(f"buffer_load_dword v2, v10, s[{S_WD}:{S_WD+3}], s{sTMP+3} offen")
            a.e(f"{Lm}:")
        Lep = a.label("Lep")
        a.e(f"s_mov_b32 s101, 0\ns_cmp_lg_u32 s2, 0\ns_cbranch_scc1 {Lep}\ns_cmp_lg_u32 s{sW}, 7\ns_cbranch_scc1 {Lep}\nv_lshlrev_b32 v124, 3, v1\ns_mov_b32 s{sTMP}, {XID}")
        for q in range(4):
            self.nocount(f"buffer_load_dword v{125+q}, v124, {WS}, s{sTMP} offen offset:{4 + 512*q} sc1")
        a.e(f"{Lep}:")
        SB = [16, 32]
        CN, OA, PK, MK, MX = 48, 64, 80, 96, 104
        VF = [108, 116]
        KA = 0
        a.e(f"""
v_and_b32 v8, 31, v1
v_lshrrev_b32 v9, 5, v1
v_bfe_u32 v7, v1, 2, 2
s_lshl_b32 s{sTMP}, s{sWH}, 1
v_or_b32 v12, s{sTMP}, v9
v_xor_b32 v12, v12, v7
v_lshlrev_b32 v4, 6, v8
v_lshl_add_u32 v4, v12, 4, v4
s_lshl_b32 s{sTMP+1}, s{sW3}, 11
s_add_u32 s{sTMP+2}, s{sTMP+1}, {L_K}
v_add_u32 v4, s{sTMP+2}, v4
v_and_b32 v13, 15, v1
v_lshlrev_b32 v5, 6, v13
v_xor_b32 v12, v9, v7
v_lshl_add_u32 v5, v12, 4, v5
v_xor_b32 v12, 2, v12
v_lshlrev_b32 v6, 6, v13
v_lshl_add_u32 v6, v12, 4, v6
s_lshl_b32 s{sTMP+2}, s{sWH}, 10
s_add_u32 s{sTMP+2}, s{sTMP+2}, s{sTMP+1}
s_add_u32 s{sTMP+2}, s{sTMP+2}, {L_V}
v_add_u32 v5, s{sTMP+2}, v5
v_add_u32 v6, s{sTMP+2}, v6
s_lshl_b32 s{sTMP}, s{sRB}, 2
s_add_u32 s{sTMP}, s{sTMP}, s{sW3}
s_sub_u32 s{sIMIN}, 8, s{sTMP}
s_cmp_ge_u32 s{sTMP}, 8
s_cselect_b32 s{sIMIN}, 0, s{sIMIN}
s_mul_i32 s92, s{sT}, 35840
s_min_u32 s93, s{sW}, 4
s_lshl_b32 s93, s93, 13
s_add_u32 s92, s92, s93
s_add_u32 s92, s92, {192*3584}
""")
        order = [8, 0, 7, 6, 5, 4, 3, 2, 1]
        ktok = {}
        for i in order:
            a.e(f"ds_read_b128 {ar(KA+4*i,4)}, v4 offset:{i*2048}")
            ktok[i] = a.lg_tok()
        a.e(f"v_lshlrev_b32 v12, 2, v9\nv_sub_u32 v12, v8, v12")
        for r in range(16):
            kl = 8 * (r >> 2) + (r & 3)
            a.e(f"v_cmp_le_i32 s[{sMASK+2*r}:{sMASK+2*r+1}], {kl}, v12")
        a.e(f"v_mov_b32 v13, 0xffff\nv_mov_b32 v7, 0xffff0000")
        for j in range(8):
            a.e(f"v_cndmask_b32 v{MK+j}, 0, v13, s[{sMASK+4*j}:{sMASK+4*j+1}]")
            a.e(f"v_cndmask_b32 v12, 0, v7, s[{sMASK+4*j+2}:{sMASK+4*j+3}]")
            a.e(f"v_or_b32 v{MK+j}, v{MK+j}, v12")
        a.e(f"v_and_b32 v12, 27, v1\nv_cmp_eq_u32 vcc, 16, v12\nv_mov_b32 v13, 0x3f803f80")
        for r in range(16):
            a.e(f"v_cndmask_b32 v{VF[0]+r}, 0, v13, vcc")
        Q = vr(QF, 4)

        touches = [None, (S_WG, 0), None, (S_WU, 0)]

        def touch_one():
            if "atouch" not in EXP or not touches:
                return
            t_ = touches.pop(0)
            if t_ is None:
                return
            srd, off = t_
            Ln = a.label("Lnt")
            a.e(f"s_cmp_gt_u32 s{sW}, 4\ns_cbranch_scc1 {Ln}\ns_add_u32 s93, s92, {off}")
            self.nocount(f"buffer_load_dword v2, v10, s[{srd}:{srd+3}], s93 offen")
            a.e(f"{Ln}:")

        def smfma(buf, i, c):
            return f"v_mfma_f32_32x32x16_bf16 {vr(SB[buf],16)}, {ar(KA+4*i,4)}, {Q}, {c}"

        def fix_trail():
            Ln = a.label("Lnt")
            a.e(f"s_cmp_eq_u32 s{sIMIN}, 0\ns_cbranch_scc1 {Ln}")
            a.e("s_nop 12")
            for r in range(16):
                a.e(f"v_mov_b32 v{SB[1]+r}, {NEG_BIG:#x}")
            a.e(f"{Ln}:\ns_nop 12")

        def merge():
            for r in range(16):
                a.e(f"v_cndmask_b32 v{SB[0]+r}, v{SB[1]+r}, v{SB[0]+r}, s[{sMASK+2*r}:{sMASK+2*r+1}]")

        touch_one()
        a.wait_lg(ktok[0])
        a.e(smfma(0, 8, "0"))
        a.e(smfma(1, 0, "0"))
        fix_trail()
        merge()
        a.wait_lg(ktok[7])
        a.e(smfma(1, 7, "0"))
        a.e(f"v_max3_f32 v{MX}, v{SB[0]}, v{SB[0]+1}, v{SB[0]+2}")
        for r in range(3, 15, 2):
            a.e(f"v_max3_f32 v{MX}, v{MX}, v{SB[0]+r}, v{SB[0]+r+1}")
        a.e(f"v_max_f32 v{MX}, v{MX}, v{SB[0]+15}")
        Le1 = a.label("Lp1e")
        buf = 1
        for i in range(7, 0, -1):
            a.e(f"s_cmp_gt_u32 s{sIMIN}, {i}\ns_cbranch_scc1 {Le1}")
            if i > 1:
                a.wait_lg(ktok[i - 1])
                a.e(smfma(1 - buf, i - 1, "0"))
            for r in range(0, 16, 2):
                a.e(f"v_max3_f32 v{MX}, v{MX}, v{SB[buf]+r}, v{SB[buf]+r+1}")
            buf = 1 - buf
        a.e(f"{Le1}:\ns_waitcnt lgkmcnt(0)\ns_nop 12")
        self.group_allsum([MX], [MX + 1], op="v_max_f32", stages=("32",))
        for r in range(16):
            a.e(f"v_sub_f32 v{CN+r}, 0, v{MX}")
        C = vr(CN, 16)

        def vread(b, i):
            return [f"s_mov_b32 exec_lo, 0xffff", f"s_mov_b32 exec_hi, 0xffff",
                    f"ds_read_b128 {vr(VF[b],4)}, v5 offset:{i*2048}", f"ds_read_b128 {vr(VF[b]+4,4)}, v6 offset:{i*2048}",
                    "s_mov_b64 exec, -1"]

        def expack(buf, dst):
            for r in range(16):
                a.e(f"v_exp_f32 v{SB[buf]+r}, v{SB[buf]+r}")
            for j in range(8):
                a.e(f"v_cvt_pk_bf16_f32 v{dst+j}, v{SB[buf]+2*j}, v{SB[buf]+2*j+1}")

        def pv(vb, p, first=False):
            a.e(f"v_mfma_f32_32x32x16_bf16 {vr(OA,16)}, {vr(VF[vb],4)}, {vr(p,4)}, {'0' if first else vr(OA,16)}")
            a.e(f"v_mfma_f32_32x32x16_bf16 {vr(OA,16)}, {vr(VF[vb]+4,4)}, {vr(p+4,4)}, {vr(OA,16)}")

        touch_one()
        a.e("\n".join(vread(0, 8) + vread(1, 0)))
        tv = a.lg_tok()
        a.e(smfma(0, 8, C))
        a.e(smfma(1, 0, C))
        fix_trail()
        merge()
        a.e(smfma(1, 7, C))
        expack(0, PK)
        for j in range(8):
            a.e(f"v_and_b32 v{PK+8+j}, v{PK+j}, v{MK+j}")
        for j in range(8):
            a.e(f"v_xor_b32 v{PK+j}, v{PK+j}, v{PK+8+j}")
        a.wait_lg(tv)
        pv(0, PK + 8, first=True)
        Lnt = a.label("Lnpv")
        a.e(f"s_cmp_lg_u32 s{sIMIN}, 0\ns_cbranch_scc1 {Lnt}")
        pv(1, PK)
        a.e(f"{Lnt}:")
        Le2 = a.label("Lp2e")
        buf = 1
        vb = 0
        a.e("\n".join(vread(0, 7)))
        for i in range(7, 0, -1):
            a.e(f"s_cmp_gt_u32 s{sIMIN}, {i}\ns_cbranch_scc1 {Le2}")
            tv = a.lg_tok()
            if i > 1:
                a.e(smfma(1 - buf, i - 1, C))
                a.e("\n".join(vread(1 - vb, i - 1)))
            if i in (6, 4):
                touch_one()
            p = PK + 8 * (i & 1)
            expack(buf, p)
            a.wait_lg(tv)
            pv(vb, p)
            buf = 1 - buf
            vb = 1 - vb
        a.e(f"{Le2}:\ns_waitcnt lgkmcnt(0)\ns_nop 15")
        a.e(f"v_rcp_f32 v{MX}, v{OA+8}")
        for r in range(8):
            a.e(f"v_mul_f32 v{OA+r}, v{MX}, v{OA+r}")
        for j in range(4):
            a.e(f"v_cvt_pk_bf16_f32 v{PK+j}, v{OA+2*j}, v{OA+2*j+1}")
        a.e(f"""
s_lshl_b32 s{sTMP}, s{sRB}, 2
s_add_u32 s{sTMP}, s{sTMP}, s{sW3}
s_lshl_b32 s{sTMP}, s{sTMP}, 15
s_lshl_b32 s{sTMP+1}, s{sJ}, 11
s_add_u32 s{sTMP}, s{sTMP}, s{sTMP+1}
s_lshl_b32 s{sTMP+1}, s{sWH}, 10
s_add_u32 s{sTMP}, s{sTMP}, s{sTMP+1}
s_add_u32 s{sTMP}, s{sTMP}, {OBUF}
s_lshl_b32 s{sTMP+1}, s{sP}, 5
s_lshl_b32 s{sTMP+2}, s{sW}, 2
s_add_u32 s{sTMP+1}, s{sTMP+1}, s{sTMP+2}
s_add_u32 s{sTMP+1}, s{sTMP+1}, {FL_O}
v_mov_b32 v14, s{sTAG}
v_mov_b32 v15, 0
""")
        self.store_site("o", f"buffer_store_dwordx4 v[{PK}:{PK+3}], v11, {WS}, s{sTMP} offen", self.flag_seq(f"s{sTMP+1}"))
        Lep = a.label("Lep2")
        a.e(f"""
s_cmp_lg_u32 s2, 0
s_cbranch_scc1 {Lep}
s_cmp_lg_u32 s{sW}, 7
s_cbranch_scc1 {Lep}
v_xor_b32 v125, s{sTAG}, v125
v_xor_b32 v126, s{sTAG}, v126
v_xor_b32 v127, s{sTAG}, v127
v_xor_b32 v128, s{sTAG}, v128
v_or3_b32 v125, v125, v126, v127
v_or_b32 v125, v125, v128
v_cmp_ne_u32 vcc, 0, v125
s_cbranch_vccnz {Lep}
s_mov_b32 s101, 1
s_mov_b64 exec, 1
""")
        self.nocount(f"buffer_store_dword v14, v15, {WS}, 0 offen offset:{EPOCH} sc1")
        a.e(f"s_mov_b64 exec, -1\n{Lep}:")
        self.stamp(6)
        self.gu_dma_setup(lanes=False)
        a.e("s_barrier")

    def w64_lane(self, vd, stride=1024):
        self.a.e(f"""
v_lshrrev_b32 v{vd}, 3, v1
v_mul_u32_u24 v{vd}, {stride}, v{vd}
v_and_b32 v2, 7, v1
v_bfe_u32 v{vd+1}, v1, 4, 1
v_lshlrev_b32 v{vd+1}, 2, v{vd+1}
v_xor_b32 v2, v2, v{vd+1}
v_lshl_add_u32 v{vd}, v2, 4, v{vd}
""")

    def tr64_bases(self, vd):
        self.a.e(f"""
v_lshrrev_b32 v8, 5, v1
v_bfe_u32 v9, v1, 2, 2
v_lshl_add_u32 v8, v8, 3, v9
v_lshlrev_b32 v8, 7, v8
v_bfe_u32 v12, v1, 4, 1
v_lshl_add_u32 v8, v12, 5, v8
v_and_b32 v12, 1, v1
v_lshl_add_u32 v8, v12, 4, v8
v_bfe_u32 v12, v1, 1, 1
v_lshl_add_u32 v8, v12, 3, v8
v_lshrrev_b32 v9, 1, v9
v_lshl_add_u32 v{vd}, v9, 6, v8
v_xor_b32 v9, 1, v9
v_lshl_add_u32 v{vd+1}, v9, 6, v8
""")

    def gu_dma_setup(self, lanes=True):
        a = self.a
        a.e(f"""
s_cmp_ge_u32 s{sW3}, 2
s_cselect_b32 s{S_SEL}, s{S_WU}, s{S_WG}
s_cselect_b32 s{S_SEL+1}, s{S_WU+1}, s{S_WG+1}
s_cselect_b32 s76, {GU_UP}, 0
s_mov_b32 s{S_SEL+2}, 1835008
s_mov_b32 s{S_SEL+3}, 0x20000
s_mov_b32 s84, 4682
s_and_b32 s86, s{sW}, 1
s_mul_i32 s85, s86, {32*3584}
s_mul_i32 s87, s{sJ}, 224
s_add_u32 s85, s85, s87
s_mul_i32 s86, s86, 7168
s_add_u32 s76, s76, s86
""")
        for i in range(7 if lanes else 0):
            a.e(f"""
v_add_u32 v12, {64*i}, v1
v_mul_u32_u24 v13, s84, v12
v_lshrrev_b32 v13, 16, v13
v_mul_u32_u24 v{144+i}, 14, v13
v_sub_u32 v12, v12, v{144+i}
v_mul_u32_u24 v{144+i}, 3584, v13
v_lshl_add_u32 v{144+i}, v12, 4, v{144+i}
""")

    def gu_dma(self, chunk):
        out = []
        for i in range(7):
            out.append(f"s_add_u32 s86, s85, {chunk*64*3584}\ns_add_u32 m0, s76, {GU_SLOT[chunk%4] + i*1024}\n"
                       f"buffer_load_dwordx4 v{144+i}, s[{S_SEL}:{S_SEL+3}], s86 offen{NTG} lds")
        return out

    def gu_dma_hi(self, chunks):
        a = self.a
        Ln = a.label("Lgh")
        a.e(f"s_cmp_lt_u32 s{sW}, 4\ns_cbranch_scc1 {Ln}")
        for c in chunks:
            self.nocount("\n".join(self.gu_dma(c)))
        a.e(f"{Ln}:")

    def reduce_scatter4(self, ACC, base, dst):
        a = self.a
        a.e(f"""
s_and_b32 s{sTMP+1}, s{sW}, 1
s_lshl_b32 s{sTMP+1}, s{sTMP+1}, 15
s_lshr_b32 s{sTMP+5}, s{sW}, 1
s_lshl_b32 s{sTMP+6}, s{sTMP+5}, 11
s_add_u32 s{sTMP+6}, s{sTMP+6}, s{sTMP+1}
s_add_u32 s{sTMP+6}, s{sTMP+6}, {base}
v_add_u32 v12, s{sTMP+6}, v11
s_lshl_b32 s{sTMP+6}, s{sTMP+5}, 13
s_add_u32 s{sTMP+6}, s{sTMP+6}, s{sTMP+1}
s_add_u32 s{sTMP+6}, s{sTMP+6}, {base}
v_add_u32 v13, s{sTMP+6}, v11
""")
        for q in range(4):
            for hf in range(2):
                a.e(f"ds_write_b128 v12, {vr(ACC+8*q+4*hf,4)} offset:{q*8192 + hf*1024}")
        a.e("s_waitcnt lgkmcnt(0)\ns_barrier")
        for src in range(4):
            for hf in range(2):
                a.e(f"ds_read_b128 {vr(ACC+8*src+4*hf,4)}, v13 offset:{src*2048 + hf*1024}")
        a.e("s_waitcnt lgkmcnt(0)")
        for r in range(8):
            a.e(f"v_add_f32 v{ACC+r}, v{ACC+r}, v{ACC+8+r}\nv_add_f32 v{ACC+16+r}, v{ACC+16+r}, v{ACC+24+r}")
        for r in range(8):
            a.e(f"v_add_f32 v{dst+r}, v{ACC+r}, v{ACC+16+r}")

    def phase3(self):
        a = self.a
        a.e(f"""
s_lshr_b32 s{sTMP+3}, s{sJ}, 3
s_lshl_b32 s{sTMP+3}, s{sTMP+3}, 1
s_and_b32 s{sTMP+1}, s{sW}, 1
s_add_u32 s{sTMP+3}, s{sTMP+3}, s{sTMP+1}
s_lshr_b32 s{sTMP+5}, s{sW}, 1
s_and_b32 s{sTMP+7}, s{sTMP+5}, 1
s_lshl_b32 s{sTMP}, s{sRB}, 9
s_lshl_b32 s{sTMP+1}, s{sTMP+3}, 2
s_add_u32 s{sTMP}, s{sTMP}, s{sTMP+1}
s_lshl_b32 s{sTMP+1}, s{sTMP+5}, 7
s_add_u32 s89, s{sTMP}, s{sTMP+1}
s_lshl_b32 s{sTMP+1}, s{sTMP+7}, 8
s_add_u32 s{sTMP}, s{sTMP}, s{sTMP+1}
s_add_u32 s{sTMP}, s{sTMP}, {FL_O}
v_and_b32 v14, 3, v1
v_lshlrev_b32 v14, 5, v14
v_bfe_u32 v15, v1, 2, 1
v_lshl_add_u32 v153, v15, 4, v14
v_and_b32 v14, 7, v1
v_lshlrev_b32 v14, 5, v14
v_bfe_u32 v15, v1, 3, 1
v_lshl_add_u32 v14, v15, 4, v14
s_lshl_b32 s88, s{sRB}, 2
s_add_u32 s88, s88, s{sTMP+3}
s_lshl_b32 s{sTMP+2}, s88, 15
s_lshl_b32 s{sTMP+1}, s{sTMP+7}, 14
s_add_u32 s{sTMP+2}, s{sTMP+2}, s{sTMP+1}
s_add_u32 s{sTMP+2}, s{sTMP+2}, {OBUF}
""")
        self.tr64_bases(154)
        a.e(f"""
s_cmp_ge_u32 s{sW}, 4
s_cselect_b64 vcc, -1, 0
v_cndmask_b32 v4, v154, v155, vcc
s_lshl_b32 s{sTMP+1}, s{sTMP+7}, 15
s_add_u32 s{sTMP+1}, s{sTMP+1}, {L_WO}
v_add_u32 v4, s{sTMP+1}, v4
v_and_b32 v12, 31, v1
v_lshlrev_b32 v12, 10, v12
v_lshrrev_b32 v13, 5, v1
v_lshl_add_u32 v151, v13, 4, v12
s_lshl_b32 s80, s88, 15
s_and_b32 s{sTMP+6}, s{sJ}, 7
s_lshl_b32 s{sTMP+6}, s{sTMP+6}, 7
s_add_u32 s80, s80, s{sTMP+6}
s_lshl_b32 s{sTMP+1}, s{sTMP+5}, 5
s_add_u32 s80, s80, s{sTMP+1}
v_lshlrev_b32 v12, 11, v3
v_and_b32 v13, 15, v1
v_lshl_add_u32 v12, v13, 4, v12
s_lshl_b32 s{sTMP+6}, s{sTMP+6}, 1
s_add_u32 s{sTMP+6}, s{sTMP+6}, {MODG}
""")
        XR = 124
        a.e(f"buffer_load_dwordx4 v[{XR}:{XR+3}], v151, s[{S_X}:{S_X+3}], s80 offen")
        Lt = a.label("Ltab")
        L = a.label("T")
        Lo = a.label("To")
        a.e(f"s_cmp_lg_u32 s{sW}, 2\ns_cbranch_scc1 {Lt}\ns_mov_b32 s{sTMP+11}, 0\n{L}:")
        self.nocount(f"buffer_load_dwordx4 v[96:99], v12, {WS}, s{sTMP+6} offen sc1")
        a.e(f"""
s_add_u32 s{sTMP+11}, s{sTMP+11}, 1
s_cmp_gt_u32 s{sTMP+11}, 400000
s_cbranch_scc1 {Lo}
s_waitcnt vmcnt(0)
v_xor_b32 v100, s{sTAG}, v97
v_xor_b32 v101, s{sTAG}, v99
v_or_b32 v100, v100, v101
v_cmp_ne_u32 vcc, 0, v100
s_cbranch_vccnz {L}
{Lo}:
s_waitcnt vmcnt(0)
v_and_b32 v97, 0xffff0000, v96
v_lshlrev_b32 v96, 16, v96
v_and_b32 v99, 0xffff0000, v98
v_lshlrev_b32 v98, 16, v98
v_add_u32 v12, {L_TAB}, v11
""")
        self.nocount("ds_write_b128 v12, v[96:99]")
        a.e(f"{Lt}:")
        ACC = 16
        BF = [32, 36, 40]
        AF = lambda s: ar(4 * s, 4)

        def R(s):
            return [f"ds_read_b64_tr_b16 {vr(BF[s%3]+2*i,2)}, v4 offset:{(16*s+4*i)*128}" for i in range(2)]

        a.e("s_waitcnt lgkmcnt(0)")
        toks = {}
        for s in range(2):
            a.e("\n".join(R(s)))
            toks[s] = a.lg_tok()
        self.poll(14, f"s{sTMP}", 15)
        self.stamp(7)
        vt = {}
        for s in range(16):
            if s % 4 == 0 and s:
                a.e(f"s_add_u32 s{sTMP+2}, s{sTMP+2}, 4096")
            a.e(f"buffer_load_dwordx4 {AF(s)}, v11, {WS}, s{sTMP+2} offen offset:{(s%4)*1024}")
            vt[s] = a.vm_tok()
        for s in range(16):
            a.wait_lg(toks[s])
            a.wait_vm(vt[s])
            a.e(f"v_mfma_f32_32x32x16_bf16 {vr(ACC,16)}, {vr(BF[s%3],4)}, {AF(s)}, {'0' if s == 0 else vr(ACC,16)}")
            if s + 2 < 16:
                a.e("\n".join(R(s + 2)))
                toks[s + 2] = a.lg_tok()
        self.stamp(18)
        a.e(f"""
s_and_b32 s{sTMP+1}, s{sW}, 1
s_lshl_b32 s{sTMP+1}, s{sTMP+1}, 14
s_lshl_b32 s{sTMP+6}, s{sWH}, 13
s_add_u32 s{sTMP+1}, s{sTMP+1}, s{sTMP+6}
s_add_u32 s{sTMP+1}, s{sTMP+1}, {L_RED}
s_lshl_b32 s{sTMP+6}, s{sTMP+7}, 11
s_add_u32 s{sTMP+6}, s{sTMP+6}, s{sTMP+1}
v_add_u32 v12, s{sTMP+6}, v11
s_lshl_b32 s{sTMP+6}, s{sTMP+7}, 12
s_add_u32 s{sTMP+6}, s{sTMP+6}, s{sTMP+1}
v_add_u32 v13, s{sTMP+6}, v11
""")
        for q in range(2):
            for hf in range(2):
                a.e(f"ds_write_b128 v12, {vr(ACC+8*q+4*hf,4)} offset:{q*4096 + hf*1024}")
        a.e("s_waitcnt lgkmcnt(0)\ns_barrier")
        self.stamp(19)
        if "g12a" in EXP or not ("g12b" in EXP or "g12c" in EXP):
            self.gu_dma_hi([1, 2])
        for src in range(2):
            for hf in range(2):
                a.e(f"ds_read_b128 {vr(ACC+8*src+4*hf,4)}, v13 offset:{src*2048 + hf*1024}")
        GA, SBv, G2 = 56, 64, 72
        a.e(f"""
v_lshrrev_b32 v13, 5, v1
v_lshlrev_b32 v13, 5, v13
s_lshl_b32 s{sTMP+5}, s{sTMP+5}, 6
s_add_u32 s{sTMP+5}, s{sTMP+5}, {L_TAB}
v_add_u32 v13, s{sTMP+5}, v13
ds_read_b128 {vr(GA,4)}, v13
ds_read_b128 {vr(GA+4,4)}, v13 offset:16
ds_read_b128 {vr(SBv,4)}, v13 offset:256
ds_read_b128 {vr(SBv+4,4)}, v13 offset:272
ds_read_b128 {vr(G2,4)}, v13 offset:512
ds_read_b128 {vr(G2+4,4)}, v13 offset:528
ds_read_b128 a[88:91], v13 offset:768
ds_read_b128 a[92:95], v13 offset:784
""")
        X1 = 96
        X1P = 132
        for q in range(4):
            a.e(f"v_lshlrev_b32 v{X1+2*q}, 16, v{XR+q}\nv_and_b32 v{X1+1+2*q}, 0xffff0000, v{XR+q}")
        a.e("s_waitcnt lgkmcnt(6)")
        for r in range(8):
            a.e(f"v_add_f32 v{ACC+r}, v{ACC+r}, v{ACC+8+r}")
        for r in range(8):
            a.e(f"v_fmac_f32 v{X1+r}, v{GA+r}, v{ACC+r}")
        for q in range(4):
            a.e(f"v_cvt_pk_bf16_f32 v{X1P+q}, v{X1+2*q}, v{X1+1+2*q}")
        for q in range(4):
            a.e(f"v_lshlrev_b32 v{X1+2*q}, 16, v{X1P+q}\nv_and_b32 v{X1+1+2*q}, 0xffff0000, v{X1P+q}")
        a.e(f"v_add_f32 v16, v{X1}, v{X1+1}\nv_mul_f32 v17, v{X1}, v{X1}")
        for r in range(2, 8):
            a.e(f"v_add_f32 v16, v16, v{X1+r}")
        for r in range(1, 8):
            a.e(f"v_fmac_f32 v17, v{X1+r}, v{X1+r}")
        self.group_allsum([16, 17], [20, 21], stages=("32",))
        a.e(f"""
v_and_b32 v12, 31, v1
v_lshlrev_b32 v12, 5, v12
s_and_b32 s{sTMP+1}, s{sW}, 1
s_lshl_b32 s{sTMP+1}, s{sTMP+1}, 10
s_add_u32 s{sTMP+1}, s{sTMP+1}, {L_ST}
v_add_u32 v12, s{sTMP+1}, v12
s_lshr_b32 s{sTMP+5}, s{sW}, 1
s_lshl_b32 s{sTMP+5}, s{sTMP+5}, 3
v_add_u32 v13, s{sTMP+5}, v12
ds_write_b64 v13, v[16:17]
s_waitcnt lgkmcnt(0)
s_barrier
""")
        if self.dump:
            a.e(f"s_add_u32 s{sTMP+7}, s80, {X1DBG}")
            self.nocount(f"buffer_store_dwordx4 v[{X1P}:{X1P+3}], v151, {WS}, s{sTMP+7} offen")
        self.stamp(20)
        if "g12b" in EXP:
            self.gu_dma_hi([1, 2])
        L_j = a.label("Lp3j")
        a.e(f"s_cmp_ge_u32 s{sW}, 2\ns_cbranch_scc1 {L_j}")
        v0_, l0_ = a.vm_issued, a.lg_issued
        a.e(f"""
ds_read_b128 v[20:23], v12
ds_read_b128 v[24:27], v12 offset:16
v_mov_b32 v18, s{sTAG}
v_mov_b32 v19, s{sTAG}
v_and_b32 v13, 31, v1
v_lshlrev_b32 v13, 7, v13
s_lshl_b32 s{sTMP+5}, s88, 12
s_add_u32 s{sTMP+5}, s{sTMP+5}, {SGRAN}
s_and_b32 s{sTMP+6}, s{sJ}, 7
s_lshl_b32 s{sTMP+6}, s{sTMP+6}, 4
s_add_u32 s{sTMP+6}, s{sTMP+6}, s{sTMP+5}
v_lshrrev_b32 v2, 5, v1
v_lshl_add_u32 v2, v2, 6, v13
s_waitcnt lgkmcnt(0)
v_add_f32 v16, v20, v22
v_add_f32 v17, v21, v23
v_add_f32 v24, v24, v26
v_add_f32 v25, v25, v27
v_add_f32 v16, v16, v24
v_add_f32 v17, v17, v25
""")
        self.store_sel(f"s_mov_b32 exec_hi, 0\nbuffer_store_dwordx4 v[16:19], v13, {WS}, s{sTMP+6} offen\ns_mov_b64 exec, -1")
        L = a.label("SG")
        Lo = a.label("SGo")
        a.e(f"s_mov_b32 s{sTMP+11}, 0\n{L}:")
        self.nocount("\n".join(f"buffer_load_dwordx4 v[{20+4*q}:{23+4*q}], v2, {WS}, s{sTMP+5} offen offset:{16*q} sc1" for q in range(4)))
        a.e(f"""
s_add_u32 s{sTMP+11}, s{sTMP+11}, 1
s_cmp_gt_u32 s{sTMP+11}, 400000
s_cbranch_scc1 {Lo}
s_waitcnt vmcnt(0)
v_xor_b32 v36, s{sTAG}, v22
v_xor_b32 v37, s{sTAG}, v26
v_or_b32 v36, v36, v37
v_xor_b32 v37, s{sTAG}, v30
v_or_b32 v36, v36, v37
v_xor_b32 v37, s{sTAG}, v34
v_or_b32 v36, v36, v37
v_cmp_ne_u32 vcc, 0, v36
s_cbranch_vccnz {L}
{Lo}:
s_waitcnt vmcnt(0)
v_add_f32 v16, v20, v24
v_add_f32 v17, v21, v25
v_add_f32 v28, v28, v32
v_add_f32 v29, v29, v33
v_add_f32 v16, v16, v28
v_add_f32 v17, v17, v29
""")
        self.group_allsum([16, 17], [20, 21], stages=("32",))
        a.e(f"""
v_mul_f32 v16, {f2u(1/512):#x}, v16
v_mul_f32 v17, {f2u(1/512):#x}, v17
v_fma_f32 v17, -v16, v16, v17
v_max_f32 v17, 0, v17
v_add_f32 v17, {f2u(1e-5):#x}, v17
v_rsq_f32 v18, v17
v_mul_f32 v19, v16, v18
v_sub_f32 v19, 0, v19
ds_write_b64 v12, v[18:19] offset:2048
s_waitcnt lgkmcnt(0)
""")
        self.stamp(21)
        a.vm_issued, a.lg_issued = v0_, l0_
        a.e(f"{L_j}:")
        a.e(f"""
s_lshl_b32 s{sTMP+5}, s88, 15
s_and_b32 s{sTMP+6}, s{sJ}, 7
s_lshl_b32 s{sTMP+6}, s{sTMP+6}, 12
s_add_u32 s{sTMP+5}, s{sTMP+5}, s{sTMP+6}
s_lshr_b32 s{sTMP+6}, s{sW}, 1
s_lshl_b32 s{sTMP+6}, s{sTMP+6}, 10
s_add_u32 s{sTMP+5}, s{sTMP+5}, s{sTMP+6}
s_add_u32 s{sTMP+5}, s{sTMP+5}, {H2BUF}
s_lshl_b32 s{sTMP+6}, s{sP}, 5
s_lshl_b32 s{sTMP+7}, s{sW}, 2
s_add_u32 s{sTMP+6}, s{sTMP+6}, s{sTMP+7}
s_add_u32 s{sTMP+6}, s{sTMP+6}, {FL_H2}
v_mov_b32 v14, s{sTAG}
v_mov_b32 v15, 0
s_barrier
ds_read_b64 v[18:19], v12 offset:2048
s_waitcnt lgkmcnt(0)
""")
        for r in range(8):
            a.e(f"v_fma_f32 v{X1+r}, v{X1+r}, v18, v19")
        for q in range(4):
            a.e(f"v_cvt_pk_bf16_f32 v{32+q}, v{X1+2*q}, v{X1+1+2*q}")
        for q in range(4):
            a.e(f"v_lshlrev_b32 v{X1+2*q}, 16, v{32+q}\nv_and_b32 v{X1+1+2*q}, 0xffff0000, v{32+q}")
        for r in range(8):
            a.e(f"v_fma_f32 v{X1+r}, v{X1+r}, v{G2+r}, v{SBv+r}")
        for q in range(4):
            a.e(f"v_cvt_pk_bf16_f32 v{32+q}, v{X1+2*q}, v{X1+1+2*q}")
        self.store_site("h2", f"buffer_store_dwordx4 v[32:35], v11, {WS}, s{sTMP+5} offen", self.flag_seq(f"s{sTMP+6}"))
        self.stamp(8)

    def d_dma_setup(self):
        a = self.a
        self.w64_lane(12)
        a.e(f"""
v_mov_b32 v152, v12
s_and_b32 s81, s{sJ}, 7
s_lshl_b32 s81, s81, 7
s_lshl_b32 s83, s{sW}, 13
s_add_u32 s81, s81, s83
s_lshl_b32 s82, s{sW}, 10
""")

    def d_dma(self, c):
        return [f"s_add_u32 m0, s82, {D_SLOT[c%4] + q*8192}\ns_add_u32 s83, s81, {(448*q + 64*c)*1024}\n"
                f"buffer_load_dwordx4 v152, s[{S_WD}:{S_WD+3}], s83 offen{NTD} lds" for q in range(4)]

    def phase4(self):
        a = self.a
        self.d_dma_setup()
        a.e(f"""
s_lshl_b32 s{sTMP}, s{sRB}, 9
s_lshr_b32 s{sTMP+1}, s{sW3}, 1
s_lshl_b32 s{sTMP+1}, s{sTMP+1}, 8
s_add_u32 s{sTMP}, s{sTMP}, s{sTMP+1}
s_and_b32 s{sTMP+1}, s{sW3}, 1
s_lshl_b32 s{sTMP+1}, s{sTMP+1}, 2
s_add_u32 s{sTMP}, s{sTMP}, s{sTMP+1}
s_add_u32 s{sTMP}, s{sTMP}, {FL_H2}
v_and_b32 v14, 7, v1
v_lshlrev_b32 v14, 5, v14
v_bfe_u32 v15, v1, 3, 2
v_lshl_add_u32 v14, v15, 3, v14
s_lshl_b32 s{sTMP+2}, s{sRB}, 2
s_add_u32 s{sTMP+2}, s{sTMP+2}, s{sW3}
s_lshl_b32 s{sTMP+2}, s{sTMP+2}, 15
s_add_u32 s{sTMP+2}, s{sTMP+2}, {H2BUF}
v_lshrrev_b32 v8, 5, v1
v_bfe_u32 v9, v1, 2, 2
v_lshl_add_u32 v9, v8, 3, v9
v_mul_u32_u24 v7, 224, v9
v_bfe_u32 v9, v1, 4, 1
v_mul_u32_u24 v9, {GU_UP}, v9
v_add_u32 v7, v7, v9
v_and_b32 v9, 1, v1
v_lshl_add_u32 v7, v9, 4, v7
v_bfe_u32 v9, v1, 1, 1
v_lshl_add_u32 v7, v9, 3, v7
v_add_u32 v4, {GU_SLOT[0]}, v7
v_add_u32 v5, {GU_SLOT[1]}, v7
v_add_u32 v6, {GU_SLOT[2]}, v7
s_barrier
""")
        ACC = [16 + 16 * T for T in range(7)]
        BF = [0, 28]
        NA = 8
        PD = 6
        slot = lambda i: ar(56 + 4 * (i % NA), 4)

        def body(kp):
            def aload(i):
                s_ = 2 * i + kp
                out = []
                if i % 2 == 0 and i > 0:
                    out.append(f"s_add_u32 s{sTMP+2}, s{sTMP+2}, 4096")
                out.append(f"buffer_load_dwordx4 {slot(i)}, v11, {WS}, s{sTMP+2} offen offset:{(s_%4)*1024} sc1")
                return out

            def R(i):
                s_ = 2 * i + kp
                c, sl = s_ // 4, s_ % 4
                return [f"ds_read_b64_tr_b16 {ar(BF[i%2]+4*T+2*ii,2)}, v{4 + c%4} offset:{(16*sl+4*ii)*224 + T*32}" for T in range(7) for ii in range(2)]

            def M(i):
                return [f"v_mfma_f32_32x32x16_bf16 {vr(ACC[T],16)}, {ar(BF[i%2]+4*T,4)}, {slot(i)}, {'0' if i == 0 else vr(ACC[T],16)}" for T in range(7)]
            toks = {}
            a.e("\n".join(R(0)))
            toks[0] = a.lg_tok()
            self.poll(14, f"s{sTMP}", 15)
            self.stamp(9)
            vt = {}
            for i in range(PD):
                a.e("\n".join(aload(i)))
                vt[i] = a.vm_tok()
            gtok = {}
            mine = lambda c: (c & 1) != kp
            pend = []
            if "g12c" in EXP:
                for g in self.gu_dma(1 if mine(1) else 2):
                    a.e(g)
            gtok[1 if mine(1) else 2] = a.vm_tok()
            if mine(3):
                pend += [(3, g) for g in self.gu_dma(3)]
            for i in range(16):
                c = i // 2
                a.wait_lg(toks[i])
                if i % 2 == 1 and c + 1 < 8:
                    if mine(c + 1):
                        assert (c + 1) in gtok and not any(p[0] == c + 1 for p in pend)
                        a.wait_vm(gtok[c + 1])
                    a.e("s_barrier")
                    if c + 4 < 8 and mine(c + 4):
                        pend += [(c + 4, g) for g in self.gu_dma(c + 4)]
                    if c == 6:
                        pend += [(100, g) for g in self.d_dma(0)]
                    if c == 4 and "nodt" not in EXP:
                        pend += [(101, f"s_mul_i32 s92, s{sT}, 57344\ns_lshl_b32 s93, s{sW}, 13\ns_add_u32 s92, s92, s93\n"
                                       f"buffer_load_dword v2, v10, s[{S_WD}:{S_WD+3}], s92 offen")]
                r = R(i + 1) if i < 15 else []
                a.wait_vm(vt[i])
                extra = []
                if i + PD < 16:
                    extra.append(("a", i + PD))
                for _ in range(3):
                    if pend:
                        extra.append(("d", pend.pop(0)))
                m = M(i)
                seq = interleave(m, r)
                pos = [k for k, x in enumerate(seq) if x.startswith("v_mfma")]
                ins_at = {pos[min(2 * n + 1, len(pos) - 1)]: e for n, e in enumerate(extra)}
                for k, x in enumerate(seq):
                    a.e(x)
                    if k in ins_at:
                        kind, val = ins_at[k]
                        if kind == "a":
                            a.e("\n".join(aload(val)))
                            vt[val] = a.vm_tok()
                        else:
                            a.e(val[1])
                            gtok[val[0]] = a.vm_tok()
                if r:
                    toks[i + 1] = a.lg_tok()
            assert not pend
            self.stamp(17)
            keep = [0, 1, 2, 3] if kp == 0 else [4, 5, 6]
            give = [4, 5, 6] if kp == 0 else [0, 1, 2, 3]
            wbase, wstr = (L_XB, 12288) if kp == 0 else (L_XA, 16384)
            rbase, rstr = (L_XA, 16384) if kp == 0 else (L_XB, 12288)
            a.e(f"""
s_mul_i32 s{sTMP+5}, s{sW3}, {wstr}
s_add_u32 s{sTMP+5}, s{sTMP+5}, {wbase}
v_add_u32 v12, s{sTMP+5}, v11
s_mul_i32 s{sTMP+5}, s{sW3}, {rstr}
s_add_u32 s{sTMP+5}, s{sTMP+5}, {rbase}
v_add_u32 v13, s{sTMP+5}, v11
s_barrier
""")
            for n, T in enumerate(give):
                for q in range(4):
                    a.e(f"ds_write_b128 v12, {vr(ACC[T]+4*q,4)} offset:{n*4096 + q*1024}")
            K0 = -2.0 * 0.7978845608028654 * LOG2E
            K1 = K0 * 0.044715
            a.e(f"v_mov_b32 v9, {f2u(K1):#x}\nv_mov_b32 v8, {f2u(K0):#x}")
            a.e(f"""
s_lshl_b32 s{sTMP+5}, s{sRB}, 2
s_add_u32 s{sTMP+5}, s{sTMP+5}, s{sW3}
s_mul_i32 s{sTMP+5}, s{sTMP+5}, {112*1024}
s_mul_i32 s{sTMP+6}, s{sJ}, {7*1024}
s_add_u32 s{sTMP+5}, s{sTMP+5}, s{sTMP+6}
s_lshl_b32 s{sTMP+6}, s{sWH}, 12
s_add_u32 s{sTMP+5}, s{sTMP+5}, s{sTMP+6}
s_add_u32 s{sTMP+5}, s{sTMP+5}, {ACT}
s_lshl_b32 s{sTMP+6}, s{sP}, 5
s_lshl_b32 s{sTMP+7}, s{sW}, 2
s_add_u32 s{sTMP+6}, s{sTMP+6}, s{sTMP+7}
s_add_u32 s{sTMP+6}, s{sTMP+6}, {FL_ACT}
v_mov_b32 v14, s{sTAG}
v_mov_b32 v15, 0
s_waitcnt lgkmcnt(0)
s_barrier
""")
            land = give + ([give[0]] if len(keep) > len(give) else [])
            rt = {}
            for n, T in enumerate(keep[:len(give)]):
                for q in range(4):
                    a.e(f"ds_read_b128 {vr(ACC[land[n]]+4*q,4)}, v13 offset:{n*4096 + q*1024}")
                rt[n] = a.lg_tok()
            PKo = 128
            outs = []
            for n, T in enumerate(keep):
                g = ACC[T]
                if n >= len(give):
                    for q in range(4):
                        a.e(f"ds_read_b128 {vr(ACC[land[n]]+4*q,4)}, v13 offset:{n*4096 + q*1024}")
                    rt[n] = a.lg_tok()
                a.wait_lg(rt[n])
                p = ACC[land[n]]
                for q in range(8):
                    a.e(f"v_pk_add_f32 v[{g+2*q}:{g+2*q+1}], v[{g+2*q}:{g+2*q+1}], v[{p+2*q}:{p+2*q+1}]")
                t = p
                P2 = lambda b, q: f"v[{b+2*q}:{b+2*q+1}]"
                for q in range(4):
                    a.e(f"v_pk_mul_f32 {P2(t,q)}, {P2(g,q)}, {P2(g,q)}")
                for q in range(4):
                    a.e(f"v_pk_fma_f32 {P2(t,q)}, {P2(t,q)}, v[8:9], v[8:9] op_sel:[0,1,0] op_sel_hi:[1,1,0]")
                for q in range(4):
                    a.e(f"v_pk_mul_f32 {P2(t,q)}, {P2(t,q)}, {P2(g,q)}")
                for r in range(8):
                    a.e(f"v_exp_f32 v{t+r}, v{t+r}")
                for q in range(4):
                    a.e(f"v_pk_mul_f32 {P2(g,q)}, {P2(g,q)}, {P2(g+8,q)}")
                for r in range(8):
                    a.e(f"v_add_f32 v{t+r}, 1.0, v{t+r}")
                for r in range(8):
                    a.e(f"v_rcp_f32 v{t+r}, v{t+r}")
                for q in range(4):
                    a.e(f"v_pk_mul_f32 {P2(g,q)}, {P2(g,q)}, {P2(t,q)}")
                for q in range(4):
                    a.e(f"v_cvt_pk_bf16_f32 v{g+8+q}, v{g+2*q}, v{g+2*q+1}")
                st = f"buffer_store_dwordx4 v[{g+8}:{g+11}], v11, {WS}, s{sTMP+5} offen offset:{1024*n}"
                if "actflag" in EXP:
                    a.e(st + " sc1")
                    if n == len(keep) - 1:
                        self.store_sel(self.flag_seq(f"s{sTMP+6}"))
                else:
                    if n == len(keep) - 1:
                        st += "\n" + self.flag_seq(f"s{sTMP+6}")
                    a.e("\n".join((l + " sc1") if l.startswith("buffer_store") else l for l in st.split("\n")))

        L3 = a.label("Lgu3")
        Lj = a.label("Lguj")
        a.e(f"s_cmp_ge_u32 s{sW}, 4\ns_cbranch_scc1 {L3}")
        v0_, l0_ = a.vm_issued, a.lg_issued
        body(0)
        a.e(f"s_branch {Lj}\n{L3}:")
        a.vm_issued, a.lg_issued = v0_, l0_
        body(1)
        a.e(f"{Lj}:")
        self.stamp(10)

    def phase5(self):
        a = self.a
        a.e(f"""
s_add_u32 s{sTMP}, s89, {FL_ACT}
s_lshr_b32 s{sTMP+5}, s{sW}, 1
s_mul_i32 s{sTMP+2}, s88, {112*1024}
s_mul_i32 s{sTMP+1}, s{sTMP+5}, {28*1024}
s_add_u32 s{sTMP+2}, s{sTMP+2}, s{sTMP+1}
s_add_u32 s{sTMP+2}, s{sTMP+2}, {ACT}
s_lshl_b32 s{sTMP+1}, s{sTMP+5}, 13
v_add_u32 v154, s{sTMP+1}, v154
v_add_u32 v155, s{sTMP+1}, v155
""")
        for si in range(4):
            a.e(f"v_add_u32 v{140+2*si}, {D_SLOT[si]}, v154\nv_add_u32 v{141+2*si}, {D_SLOT[si]}, v155")
        ACC = 16
        BF = [48, 56]
        NA = 20
        PD = int(os.environ.get("DPD", "16"))
        DV = os.environ.get("DV", "c")
        AF = lambda s: ar(4 * (s % NA), 4)

        def R(s):
            c, sl = s // 4, s % 4
            return [f"ds_read_b64_tr_b16 {vr(BF[s%2]+4*t+2*i,2)}, v{140+2*(c%4)+t} offset:{(16*sl+4*i)*128}" for t in range(2) for i in range(2)]

        def M(s):
            return [f"v_mfma_f32_32x32x16_bf16 {vr(ACC+16*t,16)}, {vr(BF[s%2]+4*t,4)}, {AF(s)}, {'0' if s == 0 else vr(ACC+16*t,16)}" for t in range(2)]

        def aload(s):
            out = []
            if s % 4 == 0 and s > 0:
                out.append(f"s_add_u32 s{sTMP+2}, s{sTMP+2}, 4096")
            out.append(f"buffer_load_dwordx4 {AF(s)}, v11, {WS}, s{sTMP+2} offen offset:{(s%4)*1024} " + ("" if "dplain" in EXP else "sc1"))
            return out

        a.e("s_barrier")
        if DV == "c":
            for c_ in (1, 2, 3):
                a.e("\n".join(self.d_dma(c_)))
        a.e("\n".join(R(0)))
        toks = {0: a.lg_tok()}
        self.poll(153, f"s{sTMP}", 15)
        self.stamp(11)
        vt = {}
        dtok = {}
        pend = []
        if DV == "a":
            for s in range(PD):
                a.e("\n".join(aload(s)))
                vt[s] = a.vm_tok()
                if s in (3, 7, 11):
                    a.e("\n".join(self.d_dma(1 + s // 4)))
                    dtok[1 + s // 4] = a.vm_tok()
        elif DV == "c":
            for s in range(PD):
                a.e("\n".join(aload(s)))
                vt[s] = a.vm_tok()
            for c_ in (1, 2, 3):
                dtok[c_] = a.vm_tok() - PD
        else:
            for s in range(PD):
                a.e("\n".join(aload(s)))
                vt[s] = a.vm_tok()
                if s == 3:
                    a.e("\n".join(self.d_dma(1)))
                    dtok[1] = a.vm_tok()
            pend += [(2, g) for g in self.d_dma(2)] + [(3, g) for g in self.d_dma(3)]
        for s in range(28):
            c, sl = s // 4, s % 4
            a.wait_lg(toks[s])
            if sl == 3 and c + 1 < 7:
                if c + 1 >= 1:
                    a.wait_vm(dtok[c + 1])
                a.e("s_barrier")
                if "fined" in EXP:
                    self.stamp(13 + c)
                if c + 4 < 7:
                    pend += [(c + 4, g) for g in self.d_dma(c + 4)]
            r = R(s + 1) if s < 27 else []
            a.wait_vm(vt[s])
            a.e("\n".join(interleave(M(s), r)))
            if r:
                toks[s + 1] = a.lg_tok()
            if s + PD < 28:
                a.e("\n".join(aload(s + PD)))
                vt[s + PD] = a.vm_tok()
            for _ in range(2 if DV != "a" else 1):
                if pend:
                    cc, g = pend.pop(0)
                    a.e(g)
                    dtok[cc] = a.vm_tok()
        self.stamp(25)
        a.e("s_barrier")
        AO = 48
        self.reduce_scatter4(ACC, L_RED2, AO)
        X1P = 132
        for q in range(4):
            a.e(f"v_lshlrev_b32 v{64+2*q}, 16, v{X1P+q}\nv_and_b32 v{65+2*q}, 0xffff0000, v{X1P+q}")
        for r in range(8):
            a.e(f"v_accvgpr_read_b32 v{56+r}, a{88+r}")
        for r in range(8):
            a.e(f"v_fmac_f32 v{64+r}, v{56+r}, v{AO+r}")
        for q in range(4):
            a.e(f"v_cvt_pk_bf16_f32 v{32+q}, v{64+2*q}, v{65+2*q}")
        a.e(f"buffer_store_dwordx4 v[32:35], v151, s[{S_OUT}:{S_OUT+3}], s80 offen" + (" sc1" if "outwt" in EXP else (" nt" if "outnt" in EXP else "")))
        self.stamp(12)

    def finish(self):
        a = self.a
        Lx = a.label("Lfin")
        a.e(f"s_cmp_lg_u32 s2, 0\ns_cbranch_scc1 {Lx}\ns_cmp_lg_u32 s{sW}, 7\ns_cbranch_scc1 {Lx}\ns_cmp_eq_u32 s101, 1\ns_cbranch_scc1 {Lx}")
        for q in range(4):
            a.e(f"v_lshlrev_b32 v12, 3, v1\nv_add_u32 v12, {4 + 512*q}, v12\ns_mov_b32 s{sTMP}, {XID}")
            self.poll(12, f"s{sTMP}", 13)
        a.e(f"v_mov_b32 v14, s{sTAG}\nv_mov_b32 v15, 0\ns_mov_b64 exec, 1")
        self.nocount(f"buffer_store_dword v14, v15, {WS}, 0 offen offset:{EPOCH} sc1")
        a.e(f"{Lx}:")
        a.e("L_END:\ns_endpgm\nL_CODE_END:")

    def build(self):
        ph = [self.phase0, self.phase1, self.phase2, self.phase3, self.phase4, self.phase5]
        for i, p in enumerate(ph):
            if i <= self.stop_after:
                p()
        self.finish()
        body = self.a.finalize()
        hdr = open("adaLN_cond__sliding_block__geglu_ffn__prompt.s.ref").read().split("; Override launch")[0]
        src = hdr + f"; @launch grid=(256,1,1) block=(512,1,1) lds={LDS_BYTES}\n" + HEADER.format(name=NAME) + body + \
            FOOTER.format(name=NAME, nvgpr=256, nsgpr=102, accum=160)
        return src


if __name__ == "__main__":
    import argparse
    ap = argparse.ArgumentParser()
    ap.add_argument("-o", default="k.s")
    ap.add_argument("--stamps", action="store_true")
    ap.add_argument("--dump", action="store_true")
    ap.add_argument("--stop", type=int, default=99)
    args = ap.parse_args()
    g = Gen(stop_after=args.stop, stamps=args.stamps, dump=args.dump)
    src = g.build()
    open(args.o, "w").write(src)
    print("wrote", args.o, len(src), "bytes; nops", g.a.nops)
```

```python
import sys, os, struct
sys.path.insert(0, "dev")
from asmlib import *

NAME = "adaLN_cond__sliding_block__geglu_ffn__prompt_kernel"
EXP = os.environ.get("EXP", "").split(",") + ["actflag", "owt", "h2wt"]

EPOCH = 0x0
XID = 0x1000
MODA = 0x2000
MODB = 0xA000
MODG = 0x12000
FL_KV = 0x20000
FL_O = 0x24000
FL_H2 = 0x26000
FL_H1 = 0x22000
FL_ACT = 0x28000
STAMP = 0x2800000
KVX = 0x100000
OBUF = 0x500000
H2BUF = 0x700000
SGRAN = 0x900000
ACT = 0xA00000
H1BUF = 0x1200000
DBG0 = 0x2000000
X1DBG = 0x2400000

S_X, S_WQKV, S_WO, S_WG, S_WU, S_WD, S_C, S_WM, S_OUT, S_WS = 8, 12, 16, 20, 24, 28, 32, 36, 40, 44
sX, sT, sRB, sJ, sW, sTAG, sXCC, sPURE, sP = 48, 49, 50, 51, 52, 53, 54, 55, 56
sW3, sWH, sIMIN = 57, 58, 59
sTMP = 60
S_SEL = 72
sMASK = 60

L_WQKV = 0
L_WO = 96 * 1024
L_K = 0
L_V = 24 * 1024
L_QX = 48 * 1024
L_SCR = 52 * 1024
L_RED = 0
L_TAB = 32 * 1024
L_ST = 33 * 1024
GU_SLOT = [57344, 98304, 127104, 0]
GU_UP = 14464
D_SLOT = [127104, 0, 32768, 65536]
L_RED2 = 0
L_GATE = 32760
L_XA = 0
L_XB = 65536
LDS_BYTES = 160 * 1024

PSLEEP = int(os.environ.get("PSLEEP", "2"))
MSLEEP = int(os.environ.get("MSLEEP", "6"))
NTG = " nt" if "ntg" in EXP else ""
NTD = " nt" if "ntd" in EXP else ""
LOG2E = 1.4426950408889634
QSCALE = 0.25 * LOG2E
NEG_BIG = 0xf149f2ca


def f2u(x):
    return struct.unpack("<I", struct.pack("<f", x))[0]


WS = f"s[{S_WS}:{S_WS+3}]"


class Gen:
    def __init__(self, stop_after=99, stamps=False, dump=False):
        self.a = Asm()
        self.stop_after = stop_after
        self.stamps = stamps
        self.dump = dump

    def nocount(self, text):
        a = self.a
        v, l = a.vm_issued, a.lg_issued
        a.e(text)
        a.vm_issued, a.lg_issued = v, l

    def stamp(self, idx):
        if not self.stamps:
            return
        a = self.a
        idx += 1
        v_, l_ = a.vm_issued, a.lg_issued
        if "dbgstamp" in EXP:
            m = {2: 0, 3: 1, 4: 2, 6: 3, 7: 4, 8: 5, 9: 6, 10: 7, 18: 8, 11: 9, 12: 10, 13: 11}
            if idx in m:
                L = a.label("Lds")
                a.e(f"s_cmp_lg_u32 s2, {int(os.environ.get('DBGWG', '9'))}\ns_cbranch_scc1 {L}\ns_cmp_lg_u32 s{sW}, 0\ns_cbranch_scc1 {L}")
                a.e(f"s_memrealtime s[96:97]\ns_load_dwordx2 s[98:99], s[0:1], 80\ns_waitcnt lgkmcnt(0)\ns_sub_u32 s96, s96, s100")
                a.e(f"v_mov_b32 v158, s96\nv_mov_b32 v159, {m[idx]*4}\nglobal_store_dword v159, v158, s[98:99]\n{L}:")
            a.vm_issued, a.lg_issued = v_, l_
            return
        a.e(f"s_memrealtime s[96:97]\ns_memtime s[94:95]\ns_waitcnt lgkmcnt(0)")
        a.e(f"v_mov_b32 v159, 0\ns_lshl_b32 s98, s2, 11\ns_lshl_b32 s99, s{sW}, 8\ns_add_u32 s98, s98, s99\ns_add_u32 s98, s98, {STAMP}")
        if idx == 2:
            a.e(f"v_mov_b32 v158, s100\nbuffer_store_dword v158, v159, {WS}, s98 offen")
        a.e(f"v_mov_b32 v158, s96\nbuffer_store_dword v158, v159, {WS}, s98 offen offset:{idx*4}")
        a.e(f"v_mov_b32 v158, s94\nbuffer_store_dword v158, v159, {WS}, s98 offen offset:{128+idx*4}")
        a.vm_issued, a.lg_issued = v_, l_

    def poll(self, vaddr, soff, vdst, cnt=sTMP + 11):
        a = self.a
        L = a.label("P")
        Lo = a.label("Po")
        a.e(f"s_mov_b32 s{cnt}, 0\n{L}:")
        self.nocount(f"buffer_load_dword v{vdst}, v{vaddr}, {WS}, {soff} offen sc1")
        a.e(f"""
s_add_u32 s{cnt}, s{cnt}, 1
s_cmp_gt_u32 s{cnt}, 400000
s_cbranch_scc1 {Lo}
s_waitcnt vmcnt(0)
v_cmp_ne_u32 vcc, s{sTAG}, v{vdst}
s_cbranch_vccz {Lo}
s_sleep {PSLEEP}
s_branch {L}
{Lo}:
s_waitcnt vmcnt(0)
""")

    def store_sel(self, text):
        a = self.a
        Ls = a.label("Ssl")
        Le = a.label("Sen")
        lines = [l for l in text.strip().split("\n") if l.strip()]
        a.e(f"s_cmp_eq_u32 s{sPURE}, {'s%d' % sPURE if 'allwt' in EXP else 0}\ns_cbranch_scc1 {Ls}")
        a.e("\n".join(lines))
        a.e(f"s_branch {Le}\n{Ls}:")
        self.nocount("\n".join((l + " sc1") if l.strip().startswith("buffer_store") else l for l in lines))
        a.e(f"{Le}:")

    def store_site(self, site, data, flag):
        if site + "wt" in EXP:
            self.a.e("\n".join((l + " sc1") if l.strip().startswith("buffer_store") else l for l in data.strip().split("\n")))
            self.store_sel(flag)
        else:
            self.store_sel(data.strip() + "\n" + flag)

    def flag_seq(self, soff, vt=14):
        return f"s_waitcnt vmcnt(0)\ns_mov_b64 exec, 1\nbuffer_store_dword v{vt}, v{vt+1}, {WS}, {soff} offen\ns_mov_b64 exec, -1"

    def purity(self, vt=30):
        a = self.a
        a.e(f"""
v_and_b32 v{vt}, 31, v1
v_lshlrev_b32 v{vt}, 3, v{vt}
s_lshl_b32 s{sTMP+10}, s{sX}, 8
s_add_u32 s{sTMP+10}, s{sTMP+10}, {XID}
buffer_load_dwordx2 v[{vt+2}:{vt+3}], v{vt}, {WS}, s{sTMP+10} offen sc1
s_waitcnt vmcnt(0)
v_xor_b32 v{vt}, s{sTAG}, v{vt+3}
v_xor_b32 v{vt+1}, s{sXCC}, v{vt+2}
v_or_b32 v{vt}, v{vt}, v{vt+1}
v_cmp_ne_u32 vcc, 0, v{vt}
s_cmp_eq_u64 vcc, 0
s_cselect_b32 s{sPURE}, 1, 0
""")

    def touch(self, srd, soff_base, nlines_per_wg, widx, nw, vdst, vaddr):
        a = self.a
        if "notouch" in EXP:
            return
        n = nlines_per_wg // 64
        per = (n + nw - 1) // nw
        a.e(f"s_lshl_b32 s{sTMP+9}, s{widx}, 13\ns_add_u32 s{sTMP+9}, s{sTMP+9}, s{soff_base}")
        for i in range(per):
            a.e(f"buffer_load_dword v{vdst}, v{vaddr}, s[{srd}:{srd+3}], s{sTMP+9} offen")
            if i < per - 1:
                a.e(f"s_add_u32 s{sTMP+9}, s{sTMP+9}, {nw*8192}")

    def silu_bf16(self, src_pk, n_pk, dst, tmp):
        a = self.a
        n = 2 * n_pk
        for d in range(n_pk):
            a.e(f"v_lshlrev_b32 v{dst+2*d}, 16, v{src_pk+d}\nv_and_b32 v{dst+2*d+1}, 0xffff0000, v{src_pk+d}")
        for i in range(n):
            a.e(f"v_mul_f32 v{tmp+i}, {f2u(-LOG2E):#x}, v{dst+i}")
        for i in range(n):
            a.e(f"v_exp_f32 v{tmp+i}, v{tmp+i}")
        for i in range(n):
            a.e(f"v_add_f32 v{tmp+i}, 1.0, v{tmp+i}")
        for i in range(n):
            a.e(f"v_rcp_f32 v{tmp+i}, v{tmp+i}")
        for i in range(n):
            a.e(f"v_mul_f32 v{dst+i}, v{dst+i}, v{tmp+i}")
        for d in range(n_pk):
            a.e(f"v_cvt_pk_bf16_f32 v{tmp+d}, v{dst+2*d}, v{dst+2*d+1}")
        for d in range(n_pk):
            a.e(f"v_lshlrev_b32 v{dst+2*d}, 16, v{tmp+d}\nv_and_b32 v{dst+2*d+1}, 0xffff0000, v{tmp+d}")

    def wave_allsum(self, regs, tmp):
        a = self.a
        for r in (1, 2, 4, 8):
            for x in regs:
                a.e(f"v_add_f32_dpp v{x}, v{x}, v{x} row_ror:{r} row_mask:0xf bank_mask:0xf")
        self.group_allsum(regs, tmp)

    def group_allsum(self, regs, tmp, op="v_add_f32", stages=("16", "32")):
        a = self.a
        for sw in stages:
            for x, t in zip(regs, tmp):
                a.e(f"v_mov_b32 v{t}, v{x}")
            for x, t in zip(regs, tmp):
                a.e(f"v_permlane{sw}_swap_b32 v{x}, v{t}")
            for x, t in zip(regs, tmp):
                a.e(f"{op} v{x}, v{x}, v{t}")

    def granule(self, lo, hi, s_one, dst):
        self.a.e(f"""
v_cvt_pk_bf16_f32 v{dst}, v{lo}, v{hi}
v_lshlrev_b32 v{lo}, 16, v{dst}
v_and_b32 v{hi}, 0xffff0000, v{dst}
v_add_f32 v{lo}, s{s_one}, v{lo}
v_add_f32 v{hi}, s{s_one}, v{hi}
v_cvt_pk_bf16_f32 v{dst}, v{lo}, v{hi}
v_mov_b32 v{dst+1}, s{sTAG}
""")

    def reduce8_pairs(self, AC):
        self.a.e(f"""
v_permlane16_swap_b32 v{AC}, v{AC+2}
v_permlane16_swap_b32 v{AC+1}, v{AC+3}
v_permlane16_swap_b32 v{AC+4}, v{AC+6}
v_permlane16_swap_b32 v{AC+5}, v{AC+7}
v_add_f32 v{AC}, v{AC}, v{AC+2}
v_add_f32 v{AC+1}, v{AC+1}, v{AC+3}
v_add_f32 v{AC+4}, v{AC+4}, v{AC+6}
v_add_f32 v{AC+5}, v{AC+5}, v{AC+7}
v_permlane32_swap_b32 v{AC}, v{AC+4}
v_permlane32_swap_b32 v{AC+1}, v{AC+5}
v_add_f32 v{AC}, v{AC}, v{AC+4}
v_add_f32 v{AC+1}, v{AC+1}, v{AC+5}
""")

    def phase0(self):
        a = self.a
        a.e(f"""
s_cmp_ge_u32 s2, 256
s_cbranch_scc1 L_END
{"s_memrealtime s[100:101]" if self.stamps else ""}
s_load_dwordx2 s[{S_WS}:{S_WS+1}], s[0:1], 88
s_load_dwordx2 s[{S_WM}:{S_WM+1}], s[0:1], 64
s_load_dwordx2 s[{S_C}:{S_C+1}], s[0:1], 56
s_load_dwordx2 s[{S_X}:{S_X+1}], s[0:1], 0
s_load_dwordx2 s[{S_WQKV}:{S_WQKV+1}], s[0:1], 8
s_load_dwordx2 s[{S_WO}:{S_WO+1}], s[0:1], 16
s_load_dwordx2 s[{S_WG}:{S_WG+1}], s[0:1], 32
s_load_dwordx2 s[{S_WU}:{S_WU+1}], s[0:1], 40
s_load_dwordx2 s[{S_WD}:{S_WD+1}], s[0:1], 48
s_load_dwordx2 s[{S_OUT}:{S_OUT+1}], s[0:1], 72
s_getpc_b64 s[{sTMP}:{sTMP+1}]
L_PC:
s_and_b32 s{sX}, s2, 7
s_lshr_b32 s{sT}, s2, 3
s_lshl_b32 s{sTMP+2}, s{sT}, 11
v_lshlrev_b32 v2, 2, v0
v_add_u32 v2, s{sTMP+2}, v2
v_min_u32 v2, L_CODE_END-L_PC-4, v2
global_load_dword v4, v2, s[{sTMP}:{sTMP+1}]
s_getreg_b32 s{sXCC}, hwreg(HW_REG_XCC_ID)
s_and_b32 s{sXCC}, s{sXCC}, 15
s_lshr_b32 s{sTMP}, s{sT}, 4
s_lshl_b32 s{sRB}, s{sX}, 1
s_add_u32 s{sRB}, s{sRB}, s{sTMP}
s_and_b32 s{sJ}, s{sT}, 15
s_lshl_b32 s{sP}, s{sX}, 5
s_add_u32 s{sP}, s{sP}, s{sT}
v_and_b32 v1, 63, v0
v_lshrrev_b32 v2, 6, v0
v_lshrrev_b32 v3, 4, v1
v_readfirstlane_b32 s{sW}, v2
v_lshlrev_b32 v11, 4, v1
v_lshlrev_b32 v10, 7, v1
s_and_b32 s{sW3}, s{sW}, 3
s_lshr_b32 s{sWH}, s{sW}, 2
s_mov_b32 s{sPURE}, 0
""")
        sizes = {S_X: 2097152, S_WQKV: 1572864, S_WO: 524288, S_WG: 1835008, S_WU: 1835008, S_WD: 1835008, S_C: 1024,
                 S_WM: 3145728, S_OUT: 2097152, S_WS: 0x10000000}
        for s, sz in sizes.items():
            a.e(f"s_mov_b32 s{s+2}, {sz}\ns_mov_b32 s{s+3}, 0x20000")
        a.e("s_waitcnt lgkmcnt(0)")
        a.e(f"s_load_dword s{sTAG}, s[{S_WS}:{S_WS+1}], {EPOCH}")
        L_45 = a.label("Lw45")
        L_67 = a.label("Lw67")
        L_j = a.label("Lj0")
        tagfix = f"s_waitcnt lgkmcnt(0)\ns_mul_i32 s{sTAG}, s{sTAG}, 1664525\ns_add_u32 s{sTAG}, s{sTAG}, 1013904223"
        L_03 = a.label("Lw03")
        a.e(f"s_cmp_lt_u32 s{sW}, 4\ns_cbranch_scc1 {L_03}\ns_cmp_ge_u32 s{sW}, 6\ns_cbranch_scc1 {L_67}")
        v0_, l0_ = a.vm_issued, a.lg_issued
        self.gemv_mfma(a, L_45, L_j, tagfix, v0_, l0_)
        a.e(f"{L_67}:")
        a.e(f"""
v_lshrrev_b32 v12, 2, v1
v_mul_u32_u24 v12, 3072, v12
v_and_b32 v13, 3, v1
v_lshl_add_u32 v12, v13, 4, v12
{tagfix}
v_mov_b32 v14, s{sXCC}
v_mov_b32 v15, s{sTAG}
s_lshl_b32 s{sTMP}, s{sP}, 3
s_add_u32 s{sTMP}, s{sTMP}, {XID}
v_mov_b32 v13, 0
s_mov_b64 exec, 1
buffer_store_dwordx2 v[14:15], v13, {WS}, s{sTMP} offen sc1
s_mov_b64 exec, -1
s_and_b32 s{sTMP+4}, s{sW}, 1
s_mul_i32 s{sTMP}, s{sTMP+4}, {16*3072}
s_lshl_b32 s{sTMP+1}, s{sJ}, 6
s_add_u32 s{sTMP}, s{sTMP}, s{sTMP+1}
s_lshl_b32 s{sTMP+2}, s{sTMP+4}, 10
""")
        Lgt = a.label("Lgate")
        Lgo = a.label("Lgateo")
        a.e(f"""
s_cmp_ge_u32 s{sT}, {0 if "nogate" in EXP else (99 if "valugemv" in EXP else 20)}
s_cbranch_scc1 {Lgo}
v_and_b32 v13, 1, v1
v_lshlrev_b32 v13, 2, v13
s_mov_b32 s{sTMP+11}, 0
{Lgt}:
ds_read_b32 v14, v13 offset:{L_GATE}
s_add_u32 s{sTMP+11}, s{sTMP+11}, 1
s_cmp_gt_u32 s{sTMP+11}, 4000000
s_cbranch_scc1 {Lgo}
s_waitcnt lgkmcnt(0)
v_cmp_ne_u32 vcc, s{sTAG}, v14
s_cbranch_vccnz {Lgt}
{Lgo}:
s_waitcnt lgkmcnt(0)
""")
        if "qtouch" in EXP:
            a.e(f"s_mul_i32 s{sTMP+5}, s{sT}, 49152")
            self.touch(S_WQKV, sTMP + 5, 384, sTMP + 4, 2, 14, 10)
        if "dmadelay" in EXP:
            a.e(f"buffer_load_dword v14, v13, {WS}, s{sTMP} offen sc1\ns_waitcnt vmcnt(0)")
        Lq_ = a.label("Lqd")
        a.e(f"s_mov_b32 s{sTMP+5}, 0\n{Lq_}:")
        for seg in range(3):
            a.e(f"s_add_u32 m0, s{sTMP+2}, {L_WQKV + seg*32768}")
            a.e(f"s_add_u32 s{sTMP+3}, s{sTMP}, {seg*1024}")
            a.e(f"buffer_load_dwordx4 v12, s[{S_WQKV}:{S_WQKV+3}], s{sTMP+3} offen lds")
        a.e(f"s_add_u32 s{sTMP+2}, s{sTMP+2}, 2048\ns_add_u32 s{sTMP}, s{sTMP}, {32*3072}\ns_add_u32 s{sTMP+5}, s{sTMP+5}, 1\ns_cmp_lt_u32 s{sTMP+5}, 16\ns_cbranch_scc1 {Lq_}")
        a.e("s_waitcnt vmcnt(0)")
        self.stamp(0)
        a.e(f"s_branch {L_j}")
        a.vm_issued, a.lg_issued = v0_, l0_
        a.e(f"{L_03}:")
        XP, XF = 16, 32
        ST = [64, 65, 66, 67]
        STT = [68, 69, 70, 71]
        a.e(f"""
s_lshl_b32 s{sTMP}, s{sRB}, 17
s_lshl_b32 s{sTMP+1}, s{sJ}, 13
s_add_u32 s{sTMP}, s{sTMP}, s{sTMP+1}
s_and_b32 s{sTMP+1}, s{sW}, 1
s_lshl_b32 s{sTMP+1}, s{sTMP+1}, 12
s_add_u32 s{sTMP}, s{sTMP}, s{sTMP+1}
s_sub_u32 s{sTMP+1}, s{sTMP}, {256*1024}
s_cmp_lt_u32 s{sRB}, 2
s_cselect_b32 s{sTMP+1}, s{sTMP}, s{sTMP+1}
s_cmp_ge_u32 s{sW}, 2
s_cselect_b32 s{sTMP}, s{sTMP+1}, s{sTMP}
""")
        for i in range(4):
            a.e(f"buffer_load_dwordx4 {vr(XP+4*i,4)}, v11, s[{S_X}:{S_X+3}], s{sTMP} offen offset:{i*1024}")
        if "noc3" not in EXP:
            Lc0, Lc1, Lce, Lc3 = a.label("Lc30"), a.label("Lc31"), a.label("Lc3e"), a.label("Lc33")
            a.e(f"""
v_lshrrev_b32 v5, 2, v1
v_and_b32 v6, 3, v1
s_cmp_eq_u32 s{sW}, 0
s_cbranch_scc1 {Lc0}
s_cmp_eq_u32 s{sW}, 1
s_cbranch_scc1 {Lc1}
s_cmp_lg_u32 s{sW}, 2
s_cbranch_scc1 {Lc3}
v_and_b32 v5, 15, v1
v_lshlrev_b32 v5, 10, v5
s_lshl_b32 s{sTMP+2}, s{sT}, 14
""")
            self.nocount(f"buffer_load_dword v6, v5, s[{S_WO}:{S_WO+3}], s{sTMP+2} offen offset:384")
            a.e(f"""
s_branch {Lce}
{Lc0}:
v_mul_u32_u24 v5, 6144, v5
v_and_b32 v6, 1, v6
v_lshl_add_u32 v5, v6, 10, v5
s_mul_i32 s{sTMP+2}, s{sT}, {16*6144}
""")
            self.nocount(f"buffer_load_dword v6, v5, s[{S_WM}:{S_WM+3}], s{sTMP+2} offen offset:384")
            a.e(f"""
s_branch {Lce}
{Lc1}:
v_mul_u32_u24 v5, 3072, v5
v_lshl_add_u32 v5, v6, 10, v5
s_mul_i32 s{sTMP+2}, s{sT}, {16*3072}
""")
            self.nocount(f"buffer_load_dword v6, v5, s[{S_WQKV}:{S_WQKV+3}], s{sTMP+2} offen offset:384")
            a.e(f"s_branch {Lce}\n{Lc3}:")
            if "valugemv" in EXP and "nomall" not in EXP:
                a.e(f"s_lshl_b32 s{sTMP+2}, s{sP}, 13\n"
                    f"s_cmp_lt_u32 s{sTMP+2}, {84*8192}\ns_cselect_b32 s{sTMP+3}, s{sTMP+2}, 0x7fff0000\n"
                    f"s_sub_u32 s{sTMP+4}, s{sTMP+2}, {84*8192}\ns_cmp_lt_u32 s{sTMP+4}, {84*8192}\ns_cselect_b32 s{sTMP+4}, s{sTMP+4}, 0x7fff0000\n"
                    f"s_sub_u32 s{sTMP+5}, s{sTMP+2}, {168*8192}\ns_min_u32 s{sTMP+5}, s{sTMP+5}, 0x7fff0000")
                self.nocount(f"buffer_load_dword v6, v10, s[{S_WG}:{S_WG+3}], s{sTMP+3} offen")
                self.nocount(f"buffer_load_dword v6, v10, s[{S_WU}:{S_WU+3}], s{sTMP+4} offen")
                self.nocount(f"buffer_load_dword v6, v10, s[{S_WO}:{S_WO+3}], s{sTMP+5} offen")
            a.e(f"{Lce}:")
        if "wmtouch" in EXP:
            a.e(f"""
v_mul_u32_u24 v5, 6144, v3
v_and_b32 v6, 15, v1
v_lshl_add_u32 v5, v6, 7, v5
s_lshl_b32 s{sTMP}, s{sT}, 2
s_add_u32 s{sTMP}, s{sTMP}, s{sW}
s_mul_i32 s{sTMP}, s{sTMP}, {4*6144}
buffer_load_dword v6, v5, s[{S_WM}:{S_WM+3}], s{sTMP} offen
s_waitcnt vmcnt(1)
""")
        else:
            a.e("s_waitcnt vmcnt(0)")
        a.e(tagfix)
        for i in range(4):
            for d in range(4):
                a.e(f"v_lshlrev_b32 v{XF+8*i+2*d}, 16, v{XP+4*i+d}\nv_and_b32 v{XF+1+8*i+2*d}, 0xffff0000, v{XP+4*i+d}")
        for i in range(4):
            b = XF + 8 * i
            a.e(f"v_add_f32 v{ST[i]}, v{b}, v{b+1}")
            for e in range(2, 8):
                a.e(f"v_add_f32 v{ST[i]}, v{ST[i]}, v{b+e}")
        self.wave_allsum(ST, STT)
        for i in range(4):
            a.e(f"v_mul_f32 v{ST[i]}, {f2u(-1/512):#x}, v{ST[i]}")
        for i in range(4):
            for e in range(8):
                a.e(f"v_add_f32 v{XF+8*i+e}, v{ST[i]}, v{XF+8*i+e}")
        for i in range(4):
            b = XF + 8 * i
            a.e(f"v_mul_f32 v{ST[i]}, v{b}, v{b}")
            for e in range(1, 8):
                a.e(f"v_fmac_f32 v{ST[i]}, v{b+e}, v{b+e}")
        self.wave_allsum(ST, STT)
        for i in range(4):
            a.e(f"v_mul_f32 v{ST[i]}, {f2u(1/512):#x}, v{ST[i]}")
        for i in range(4):
            a.e(f"v_add_f32 v{ST[i]}, {f2u(1e-5):#x}, v{ST[i]}")
        for i in range(4):
            a.e(f"v_rsq_f32 v{ST[i]}, v{ST[i]}")
        for i in range(4):
            for e in range(8):
                a.e(f"v_mul_f32 v{XF+8*i+e}, v{ST[i]}, v{XF+8*i+e}")
        for i in range(4):
            for d in range(4):
                a.e(f"v_cvt_pk_bf16_f32 v{XP+4*i+d}, v{XF+8*i+2*d}, v{XF+1+8*i+2*d}")
        for i in range(4):
            for d in range(4):
                a.e(f"v_lshlrev_b32 v{XF+8*i+2*d}, 16, v{XP+4*i+d}\nv_and_b32 v{XF+1+8*i+2*d}, 0xffff0000, v{XP+4*i+d}")
        a.e(f"""
v_lshrrev_b32 v12, 1, v1
v_lshlrev_b32 v12, 10, v12
v_and_b32 v6, 1, v1
v_lshl_add_u32 v12, v6, 9, v12
s_lshl_b32 s{sTMP+4}, s{sX}, 19
s_and_b32 s{sTMP+3}, s{sRB}, 1
s_lshl_b32 s{sTMP+3}, s{sTMP+3}, 17
s_add_u32 s{sTMP+4}, s{sTMP+4}, s{sTMP+3}
s_lshr_b32 s{sTMP+3}, s{sJ}, 2
s_lshl_b32 s{sTMP+3}, s{sTMP+3}, 15
s_add_u32 s{sTMP+4}, s{sTMP+4}, s{sTMP+3}
s_and_b32 s{sTMP+3}, s{sJ}, 3
s_lshl_b32 s{sTMP+3}, s{sTMP+3}, 7
s_add_u32 s{sTMP+4}, s{sTMP+4}, s{sTMP+3}
s_and_b32 s{sTMP+3}, s{sW}, 1
s_lshl_b32 s{sTMP+3}, s{sTMP+3}, 6
s_add_u32 s{sTMP+4}, s{sTMP+4}, s{sTMP+3}
s_add_u32 s{sTMP+4}, s{sTMP+4}, {H1BUF}
s_add_u32 s{sTMP+8}, s{sTMP+4}, {2*131072}
s_cmp_ge_u32 s{sW}, 2
s_cselect_b32 s{sTMP+4}, s{sTMP+4}, s{sTMP+8}
v_lshlrev_b32 v13, 5, v1
v_lshlrev_b32 v7, 6, v1
v_add_u32 v7, 60, v7
v_and_b32 v8, 31, v1
v_lshlrev_b32 v8, 3, v8
s_lshl_b32 s{sTMP}, s{sX}, 12
s_add_u32 s{sTMP+1}, s{sTMP}, {MODB}
s_add_u32 s{sTMP}, s{sTMP}, {MODA}
s_lshl_b32 s{sTMP+2}, s{sX}, 8
s_add_u32 s{sTMP+2}, s{sTMP+2}, {XID}
s_lshl_b32 s{sTMP+5}, s{sP}, 4
s_lshl_b32 s{sTMP+6}, s{sW}, 2
s_add_u32 s{sTMP+5}, s{sTMP+5}, s{sTMP+6}
s_add_u32 s{sTMP+5}, s{sTMP+5}, {FL_H1}
s_mov_b32 s{sTMP+11}, 0
""")
        self.stamp(0)
        L = a.label("G")
        L2 = a.label("G2")
        Lo = a.label("Go")
        G0 = 96
        a.e(f"{L}:")
        self.nocount(f"buffer_load_dword v{G0}, v7, {WS}, s{sTMP} offen sc1")
        a.e(f"""
s_add_u32 s{sTMP+11}, s{sTMP+11}, 1
s_cmp_gt_u32 s{sTMP+11}, 400000
s_cbranch_scc1 {L2}
s_waitcnt vmcnt(0)
v_cmp_ne_u32 vcc, s{sTAG}, v{G0}
s_cbranch_vccz {L2}
s_add_u32 s{sTMP+10}, s{sTMP+11}, 1
s_and_b32 s{sTMP+10}, s{sTMP+10}, 15
s_cmp_lt_u32 s{sTMP+10}, 2
s_cselect_b32 s{sTMP+10}, s{sTMP+1}, s{sTMP}
s_cselect_b32 s{sTMP+1}, s{sTMP}, s{sTMP+1}
s_mov_b32 s{sTMP}, s{sTMP+10}
s_sleep {MSLEEP}
s_branch {L}
{L2}:
""")
        self.nocount(f"""
buffer_load_dwordx4 v[{G0}:{G0+3}], v13, {WS}, s{sTMP} offen sc1
buffer_load_dwordx4 v[{G0+4}:{G0+7}], v13, {WS}, s{sTMP} offen offset:16 sc1
buffer_load_dwordx4 v[{G0+8}:{G0+11}], v13, {WS}, s{sTMP} offen offset:2048 sc1
buffer_load_dwordx4 v[{G0+12}:{G0+15}], v13, {WS}, s{sTMP} offen offset:2064 sc1
buffer_load_dwordx2 v[{G0+16}:{G0+17}], v8, {WS}, s{sTMP+2} offen sc1
""")
        a.e(f"""
s_cmp_gt_u32 s{sTMP+11}, 400000
s_cbranch_scc1 {Lo}
s_waitcnt vmcnt(0)
v_xor_b32 v116, s{sTAG}, v{G0+1}
""")
        for q in range(3, 16, 2):
            a.e(f"v_xor_b32 v117, s{sTAG}, v{G0+q}\nv_or_b32 v116, v116, v117")
        a.e(f"v_cmp_ne_u32 vcc, 0, v116\ns_cbranch_vccnz {L}\n{Lo}:\ns_waitcnt vmcnt(0)")
        a.e(f"""
v_xor_b32 v116, s{sTAG}, v{G0+17}
v_xor_b32 v117, s{sXCC}, v{G0+16}
v_or_b32 v116, v116, v117
v_cmp_ne_u32 vcc, 0, v116
s_cmp_eq_u64 vcc, 0
s_cselect_b32 s{sPURE}, 1, 0
""")
        SA, GG = 72, 80
        for q in range(4):
            a.e(f"v_lshlrev_b32 v{SA+2*q}, 16, v{G0+2*q}\nv_and_b32 v{SA+1+2*q}, 0xffff0000, v{G0+2*q}")
            a.e(f"v_lshlrev_b32 v{GG+2*q}, 16, v{G0+8+2*q}\nv_and_b32 v{GG+1+2*q}, 0xffff0000, v{G0+8+2*q}")
        for i in range(4):
            for d in range(4):
                b = XF + 8 * i + 2 * d
                a.e(f"v_pk_fma_f32 v[{b}:{b+1}], v[{b}:{b+1}], v[{GG+2*d}:{GG+1+2*d}], v[{SA+2*d}:{SA+1+2*d}]")
            for d in range(4):
                a.e(f"v_cvt_pk_bf16_f32 v{XP+4*i+d}, v{XF+8*i+2*d}, v{XF+1+8*i+2*d}")
        a.e(f"v_mov_b32 v14, s{sTAG}\nv_mov_b32 v15, 0")
        st = "\n".join(f"buffer_store_dwordx4 v[{XP+4*i}:{XP+3+4*i}], v12, {WS}, s{sTMP+4} offen offset:{16*i}" for i in range(4))
        self.store_site("h1", st, self.flag_seq(f"s{sTMP+5}"))
        a.e(f"s_branch {L_j}")
        a.vm_issued, a.lg_issued = v0_, l0_
        self.gemv_mfma2(a, L_45, L_j, tagfix, v0_, l0_)
        a.e(f"{L_j}:")
        if "prio" in EXP:
            Lpr = a.label("Lprio")
            a.e(f"s_cmp_lt_u32 s{sW}, 4\ns_cbranch_scc1 {Lpr}\ns_setprio 1\n{Lpr}:")
        a.e("s_nop 4\ns_barrier")
        self.stamp(1)

    def gemv_valu(self, a, L_45, L_j, tagfix, v0_, l0_):
        a.e(f"{L_45}:")
        W0, SV = 94, 14
        a.e(f"""
v_lshrrev_b32 v6, 1, v1
v_lshlrev_b32 v8, 5, v6
v_mul_u32_u24 v7, {16*6144}, v6
v_and_b32 v6, 1, v1
v_lshl_add_u32 v7, v6, 4, v7
buffer_load_dwordx4 v[70:73], v8, s[{S_C}:{S_C+3}], 0 offen
buffer_load_dwordx4 v[74:77], v8, s[{S_C}:{S_C+3}], 0 offen offset:16
""")
        tok_c = a.vm_tok()
        a.e(f"s_lshl_b32 s{sTMP}, s{sT}, 6\ns_lshl_b32 s{sTMP+1}, s{sW3}, 5\ns_add_u32 s{sTMP}, s{sTMP}, s{sTMP+1}")
        tok_w = []
        for i in range(16):
            a.e(f"buffer_load_dwordx4 v[{W0+4*i}:{W0+3+4*i}], v7, s[{S_WM}:{S_WM+3}], s{sTMP} offen")
            tok_w.append(a.vm_tok())
            if i < 15:
                a.e(f"s_add_u32 s{sTMP}, s{sTMP}, 6144")
        a.e(f"""
v_and_b32 v5, 127, v0
v_mul_u32_u24 v12, 24576, v5
v_lshlrev_b32 v5, 3, v5
s_lshl_b32 s{sTMP}, s{sP}, 4
s_add_u32 s{sTMP}, s{sTMP}, 2048
buffer_load_dwordx2 v[78:79], v5, s[{S_C}:{S_C+3}], 0 offen
""")
        for i in range(4):
            a.e(f"buffer_load_dwordx4 v[{54+4*i}:{57+4*i}], v12, s[{S_WM}:{S_WM+3}], s{sTMP} offen")
            if i < 3:
                a.e(f"s_add_u32 s{sTMP}, s{sTMP}, 6144")
        tok_nu = a.vm_tok()
        a.e(tagfix)
        a.e(f"s_lshl_b32 s{sTMP+4}, s{sW3}, 2\nv_mov_b32 v13, s{sTMP+4}\nv_mov_b32 v5, s{sTAG}\nds_write_b32 v13, v5 offset:{L_GATE}")
        a.e(f"""
v_lshlrev_b32 v9, 5, v6
v_lshl_add_u32 v9, v3, 3, v9
s_cmp_ge_u32 s{sT}, 16
s_cselect_b32 s{sTMP+7}, 1.0, 0
s_lshl_b32 s{sTMP+5}, s{sX}, 12
s_lshl_b32 s{sTMP+6}, s{sT}, 7
s_add_u32 s{sTMP+5}, s{sTMP+5}, s{sTMP+6}
s_lshl_b32 s{sTMP+6}, s{sW3}, 6
s_add_u32 s{sTMP+5}, s{sTMP+5}, s{sTMP+6}
s_add_u32 s{sTMP+6}, s{sTMP+5}, {MODB}
s_add_u32 s{sTMP+5}, s{sTMP+5}, {MODA}
""")
        a.wait_vm(tok_c)
        self.silu_bf16(70, 8, SV, 30)
        AC = 30
        for i in range(16):
            a.wait_vm(tok_w[i])
            w = W0 + 4 * i
            t = 38 + 8 * (i % 2)
            for d in range(4):
                a.e(f"v_lshlrev_b32 v{t+2*d}, 16, v{w+d}\nv_and_b32 v{t+1+2*d}, 0xffff0000, v{w+d}")
            sp = SV + (i & ~1)
            sel = i & 1
            for d in range(4):
                if i == 0:
                    a.e(f"v_pk_mul_f32 v[{AC+2*d}:{AC+1+2*d}], v[{t+2*d}:{t+1+2*d}], v[{sp}:{sp+1}] op_sel_hi:[1,0]")
                else:
                    a.e(f"v_pk_fma_f32 v[{AC+2*d}:{AC+1+2*d}], v[{t+2*d}:{t+1+2*d}], v[{sp}:{sp+1}], v[{AC+2*d}:{AC+1+2*d}] op_sel:[0,{sel},0] op_sel_hi:[1,{sel},1]")
        for r in (2, 4, 8):
            for e in range(8):
                a.e(f"v_add_f32_dpp v{AC+e}, v{AC+e}, v{AC+e} row_ror:{r} row_mask:0xf bank_mask:0xf")
        self.reduce8_pairs(AC)
        self.granule(AC, AC + 1, sTMP + 7, AC + 2)
        a.e(f"s_mov_b32 exec_lo, 0x00030003\ns_mov_b32 exec_hi, 0x00030003")
        a.e(f"buffer_store_dwordx2 v[{AC+2}:{AC+3}], v9, {WS}, s{sTMP+5} offen")
        a.e(f"buffer_store_dwordx2 v[{AC+2}:{AC+3}], v9, {WS}, s{sTMP+6} offen sc1")
        a.e(f"s_mov_b64 exec, -1")
        self.stamp(0)
        a.wait_vm(tok_nu)
        self.silu_bf16(78, 2, 80, 96)
        for i in range(4):
            for d in range(4):
                w = 54 + 4 * i + d
                a.e(f"v_lshlrev_b32 v{96+2*d}, 16, v{w}\nv_and_b32 v{97+2*d}, 0xffff0000, v{w}")
            for e in range(8):
                a.e(f"v_mul_f32 v{72+e}, v80, v{96+e}" if i == 0 else f"v_fmac_f32 v{72+e}, v{80+i}, v{96+e}")
        for r in (1, 2, 4, 8):
            for e in range(8):
                a.e(f"v_add_f32_dpp v{72+e}, v{72+e}, v{72+e} row_ror:{r} row_mask:0xf bank_mask:0xf")
        self.reduce8_pairs(72)
        a.e("v_mov_b32 v132, v72\nv_mov_b32 v133, v73")
        a.e(f"s_branch {L_j}")
        a.vm_issued, a.lg_issued = v0_, l0_

    def gemv_mfma(self, a, L_45, L_j, tagfix, v0_, l0_):
        a.e(f"{L_45}:")
        a.e(f"s_cmp_ge_u32 s{sT}, 20\ns_cbranch_scc1 L_NOGEMV")
        L_SLAB = 96 * 1024
        self.w64_lane(12, stride=6144)
        a.e(f"""
s_lshl_b32 s{sTMP}, s{sT}, 7
s_lshl_b32 s{sTMP+1}, s{sX}, 9
s_add_u32 s{sTMP+1}, s{sTMP+1}, s{sTMP}
s_cmp_ge_u32 s{sT}, 16
s_cselect_b32 s{sTMP}, s{sTMP+1}, s{sTMP}
s_mul_i32 s{sTMP+1}, s{sW3}, {256*6144}
s_add_u32 s{sTMP}, s{sTMP}, s{sTMP+1}
s_lshl_b32 s{sTMP+2}, s{sW3}, 15
s_lshl_b32 s{sTMP+4}, s{sW3}, 9
v_lshlrev_b32 v8, 3, v1
buffer_load_dwordx2 v[70:71], v8, s[{S_C}:{S_C+3}], s{sTMP+4} offen
""")
        tok_c = a.vm_tok()
        Ls_ = a.label("Lsd")
        a.e(f"s_mov_b32 s{sTMP+5}, 0\ns_add_u32 s{sTMP+6}, s{sTMP+2}, {L_SLAB}\n{Ls_}:")
        for i in range(4):
            a.e(f"s_add_u32 m0, s{sTMP+6}, {i*1024}\ns_add_u32 s{sTMP+3}, s{sTMP}, {i*8*6144}")
            a.e(f"buffer_load_dwordx4 v12, s[{S_WM}:{S_WM+3}], s{sTMP+3} offen lds")
        a.e(f"s_add_u32 s{sTMP+6}, s{sTMP+6}, 4096\ns_add_u32 s{sTMP}, s{sTMP}, {32*6144}\ns_add_u32 s{sTMP+5}, s{sTMP+5}, 1\ns_cmp_lt_u32 s{sTMP+5}, 8\ns_cbranch_scc1 {Ls_}")
        a.e(tagfix)
        a.e(f"s_lshl_b32 s{sTMP+4}, s{sW3}, 2\nv_mov_b32 v13, s{sTMP+4}\nv_mov_b32 v14, s{sTAG}\nds_write_b32 v13, v14 offset:{L_GATE}")
        a.e("s_branch L_GEMV2")
        a.vm_issued, a.lg_issued = v0_, l0_

    def gemv_mfma2(self, a, L_45, L_j, tagfix, v0_, l0_):
        L_SLAB = 96 * 1024
        a.e("L_GEMV2:")
        a.e("s_waitcnt vmcnt(32)")
        self.silu_bf16(70, 2, 14, 30)
        SF = 94
        a.e(f"v_lshrrev_b32 v9, 5, v1\nv_lshlrev_b32 v9, 3, v9")
        for st in range(16):
            for d in range(4):
                a.e(f"ds_bpermute_b32 v{SF+4*st+d}, v9, v{30 + (d&1)} offset:{(4*st + (d>>1))*4}")
            if st % 3 == 2:
                a.e("s_waitcnt lgkmcnt(3)")
        self.tr64_bases(4)
        a.e(f"""
s_add_u32 s{sTMP+2}, s{sTMP+2}, {L_SLAB}
v_add_u32 v4, s{sTMP+2}, v4
v_add_u32 v5, s{sTMP+2}, v5
s_waitcnt lgkmcnt(0)
""")
        self.stamp(22)
        a.e("s_waitcnt vmcnt(0)")
        self.stamp(23)
        GA_ = 32
        GB = [64, 72, 80]
        toks = {}

        def GR(st):
            return [f"ds_read_b64_tr_b16 {vr(GB[st%3]+4*t+2*i,2)}, v{4+t} offset:{(16*st+4*i)*128}" for t in range(2) for i in range(2)]
        for st in range(2):
            a.e("\n".join(GR(st)))
            toks[st] = a.lg_tok()
        for st in range(16):
            a.wait_lg(toks[st])
            for t in range(2):
                a.e(f"v_mfma_f32_32x32x16_bf16 {vr(GA_+16*t,16)}, {vr(GB[st%3]+4*t,4)}, {vr(SF+4*st,4)}, {'0' if st == 0 else vr(GA_+16*t,16)}")
            if st + 2 < 16:
                a.e("\n".join(GR(st + 2)))
                toks[st + 2] = a.lg_tok()
        self.stamp(24)
        L5 = a.label("Lg5")
        a.e(f"v_add_u32 v12, {L_SLAB + 32768}, v11\nv_mov_b32 v13, {L_SLAB + 32768 + 8192}\nv_mov_b32 v14, s{sTAG}")
        a.e(f"s_cmp_eq_u32 s{sW}, 4\ns_cbranch_scc1 {L5}")
        self.nocount("\n".join(f"ds_write_b128 v12, {vr(GA_+4*q,4)} offset:{q*1024}" for q in range(8)))
        a.e("s_waitcnt lgkmcnt(0)")
        self.nocount("ds_write_b32 v13, v14")
        a.e(f"s_waitcnt lgkmcnt(0)\ns_branch L_NOGEMV\n{L5}:")
        Ls = a.label("Lgs")
        Lso = a.label("Lgso")
        a.e(f"""
s_mov_b32 s{sTMP+11}, 0
{Ls}:
""")
        self.nocount("ds_read_b32 v15, v13")
        a.e(f"""
s_add_u32 s{sTMP+11}, s{sTMP+11}, 1
s_cmp_gt_u32 s{sTMP+11}, 4000000
s_cbranch_scc1 {Lso}
s_waitcnt lgkmcnt(0)
v_cmp_ne_u32 vcc, s{sTAG}, v15
s_cbranch_vccnz {Ls}
{Lso}:
""")
        self.nocount("\n".join(f"ds_read_b128 {vr(64+4*q,4)}, v12 offset:{q*1024}" for q in range(8)))
        a.e(f"""
s_lshl_b32 s{sTMP+5}, s{sX}, 12
s_lshl_b32 s{sTMP+6}, s{sT}, 8
s_add_u32 s{sTMP+5}, s{sTMP+5}, s{sTMP+6}
s_add_u32 s{sTMP+8}, s{sTMP+5}, {MODB}
s_add_u32 s{sTMP+5}, s{sTMP+5}, {MODA}
s_lshl_b32 s{sTMP+9}, s{sX}, 10
s_add_u32 s{sTMP+9}, s{sTMP+9}, s{sTMP+6}
s_add_u32 s{sTMP+9}, s{sTMP+9}, {MODG - 4096}
s_lshr_b32 s{sTMP+6}, s{sT}, 3
s_cmp_eq_u32 s{sTMP+6}, 1
s_cselect_b32 s{sTMP+7}, 1.0, 0
s_lshr_b32 s{sTMP+6}, s{sX}, 1
s_cmp_eq_u32 s{sTMP+6}, 2
s_cselect_b32 s{sTMP+10}, 1.0, 0
s_cmp_ge_u32 s{sT}, 16
s_cselect_b32 s{sTMP+7}, s{sTMP+10}, s{sTMP+7}
s_cselect_b32 s{sTMP+5}, s{sTMP+9}, s{sTMP+5}
s_cselect_b32 s{sTMP+8}, s{sTMP+9}, s{sTMP+8}
v_lshrrev_b32 v9, 5, v1
v_lshlrev_b32 v9, 5, v9
s_waitcnt lgkmcnt(0)
""")
        for r in range(32):
            a.e(f"v_add_f32 v{GA_+r}, v{GA_+r}, v{64+r}")
        for q in range(16):
            a.e(f"v_cvt_pk_bf16_f32 v{64+2*q}, v{GA_+2*q}, v{GA_+2*q+1}")
        for q in range(16):
            a.e(f"v_lshlrev_b32 v{GA_+2*q}, 16, v{64+2*q}\nv_and_b32 v{GA_+2*q+1}, 0xffff0000, v{64+2*q}")
        for r in range(32):
            a.e(f"v_add_f32 v{GA_+r}, s{sTMP+7}, v{GA_+r}")
        for q in range(16):
            a.e(f"v_cvt_pk_bf16_f32 v{64+2*q}, v{GA_+2*q}, v{GA_+2*q+1}\nv_mov_b32 v{65+2*q}, s{sTAG}")
        a.e("s_mov_b32 exec_lo, 1\ns_mov_b32 exec_hi, 1")
        Lnu = a.label("Lnu")
        a.e(f"s_cmp_ge_u32 s{sT}, 16\ns_cbranch_scc1 {Lnu}")
        for u in range(8):
            self.nocount(f"buffer_store_dwordx4 {vr(64+4*u,4)}, v9, {WS}, s{sTMP+5} offen offset:{(u>>1)*64 + (u&1)*16}")
        a.e(f"{Lnu}:")
        for u in range(8):
            self.nocount(f"buffer_store_dwordx4 {vr(64+4*u,4)}, v9, {WS}, s{sTMP+8} offen offset:{(u>>1)*64 + (u&1)*16} sc1")
        a.e("s_mov_b64 exec, -1")
        self.stamp(0)
        a.e("L_NOGEMV:")
        a.e(tagfix.replace("s_mul_i32", "s_cmp_ge_u32 s%d, 20\ns_cbranch_scc0 %s\ns_mul_i32" % (sT, L_j)))
        if "nomall" not in EXP:
            a.e(f"""
s_mul_i32 s{sTMP}, s{sX}, 12
s_add_u32 s{sTMP}, s{sTMP}, s{sT}
s_sub_u32 s{sTMP}, s{sTMP}, 20
s_lshl_b32 s{sTMP}, s{sTMP}, 1
s_add_u32 s{sTMP}, s{sTMP}, s{sW3}
s_lshl_b32 s{sTMP}, s{sTMP}, 13
s_add_u32 s{sTMP+1}, s{sTMP}, {192*8192}
""")
            if "tlb" in EXP:
                jobs = []
                for i in range(2):
                    jobs.append((S_WS, H1BUF + i * 262144, 524288))
                jobs.append((S_WS, OBUF, 262144))
                jobs.append((S_WS, H2BUF, 262144))
                for i in range(4):
                    jobs.append((S_WS, ACT + i * 262144, 917504))
                for i in range(2):
                    jobs.append((S_WS, KVX + i * 262144, 524288))
                jobs.append((S_OUT, 0, 262144))
                jobs.append((S_WS, SGRAN, 0))
                for i in range(2):
                    jobs.append((S_WO, i * 262144, 0))
                for srd in (S_WG, S_WU, S_WD):
                    for i in range(7):
                        jobs.append((srd, i * 262144, 0))
                a.e(f"v_lshlrev_b32 v5, 12, v1\ns_sub_u32 s{sTMP+4}, s{sT}, 20\ns_lshl_b32 s{sTMP+4}, s{sTMP+4}, 1\ns_add_u32 s{sTMP+4}, s{sTMP+4}, s{sW3}")
                for k, (srd, off, xs) in enumerate(jobs):
                    Ln = a.label("Ltl")
                    a.e(f"s_cmp_lg_u32 s{sTMP+4}, {k % 24}\ns_cbranch_scc1 {Ln}\ns_mul_i32 s{sTMP+5}, s{sX}, {xs}\ns_add_u32 s{sTMP+5}, s{sTMP+5}, {off}")
                    self.nocount(f"buffer_load_dword v2, v5, s[{srd}:{srd+3}], s{sTMP+5} offen sc1")
                    a.e(f"{Ln}:")
            a.e(f"s_cmp_lt_u32 s{sTMP}, {84*8192}\ns_cselect_b32 s{sTMP+1}, s{sTMP}, 0x7fff0000\n"
                f"s_sub_u32 s{sTMP+2}, s{sTMP}, {84*8192}\ns_cmp_lt_u32 s{sTMP+2}, {84*8192}\ns_cselect_b32 s{sTMP+2}, s{sTMP+2}, 0x7fff0000\n"
                f"s_sub_u32 s{sTMP+3}, s{sTMP}, {128*8192}\ns_min_u32 s{sTMP+3}, s{sTMP+3}, 0x7fff0000")
            self.nocount(f"buffer_load_dword v2, v10, s[{S_WG}:{S_WG+3}], s{sTMP+1} offen")
            self.nocount(f"buffer_load_dword v2, v10, s[{S_WU}:{S_WU+3}], s{sTMP+2} offen")
            self.nocount(f"buffer_load_dword v2, v10, s[{S_WO}:{S_WO+3}], s{sTMP+3} offen")
            if "mallall" in EXP:
                a.e(f"s_add_u32 s{sTMP+1}, s{sTMP}, {84*8192}\ns_add_u32 s{sTMP+2}, s{sTMP}, {192*8192}")
                self.nocount(f"buffer_load_dword v2, v10, s[{S_WG}:{S_WG+3}], s{sTMP+1} offen")
                self.nocount(f"buffer_load_dword v2, v10, s[{S_WU}:{S_WU+3}], s{sTMP+1} offen")
                self.nocount(f"buffer_load_dword v2, v10, s[{S_WD}:{S_WD+3}], s{sTMP} offen")
                self.nocount(f"buffer_load_dword v2, v10, s[{S_WD}:{S_WD+3}], s{sTMP+2} offen")
            if "mallq" in EXP:
                self.nocount(f"buffer_load_dword v2, v10, s[{S_WQKV}:{S_WQKV+3}], s{sTMP} offen")
        a.e(f"s_branch {L_j}")
        a.vm_issued, a.lg_issued = v0_, l0_

    def phase1(self):
        a = self.a
        a.e(f"""
s_lshl_b32 s{sTMP}, s{sRB}, 8
s_lshl_b32 s{sTMP+1}, s{sW3}, 6
s_add_u32 s{sTMP}, s{sTMP}, s{sTMP+1}
s_add_u32 s{sTMP}, s{sTMP}, {FL_H1}
v_and_b32 v12, 15, v1
v_lshlrev_b32 v12, 2, v12
s_lshl_b32 s{sTMP+2}, s{sX}, 19
s_and_b32 s{sTMP+1}, s{sRB}, 1
s_lshl_b32 s{sTMP+1}, s{sTMP+1}, 17
s_add_u32 s{sTMP+2}, s{sTMP+2}, s{sTMP+1}
s_xor_b32 s{sTMP+1}, s{sWH}, 1
s_lshl_b32 s{sTMP+1}, s{sTMP+1}, 18
s_add_u32 s{sTMP+2}, s{sTMP+2}, s{sTMP+1}
s_lshl_b32 s{sTMP+1}, s{sW3}, 15
s_add_u32 s{sTMP+2}, s{sTMP+2}, s{sTMP+1}
s_add_u32 s{sTMP+2}, s{sTMP+2}, {H1BUF}
v_lshrrev_b32 v8, 5, v1
v_bfe_u32 v9, v1, 2, 2
v_lshl_add_u32 v9, v8, 3, v9
v_lshlrev_b32 v4, 6, v9
v_bfe_u32 v9, v1, 4, 1
v_lshl_add_u32 v4, v9, 5, v4
v_and_b32 v9, 1, v1
v_lshl_add_u32 v4, v9, 4, v4
v_bfe_u32 v9, v1, 1, 1
v_lshl_add_u32 v4, v9, 3, v4
v_add_u32 v4, {L_WQKV}, v4
v_add_u32 v5, 32768, v4
v_add_u32 v6, 65536, v4
v_and_b32 v14, 31, v1
v_lshlrev_b32 v14, 3, v14
s_lshl_b32 s{sTMP+3}, s{sX}, 8
s_add_u32 s{sTMP+3}, s{sTMP+3}, {XID}
""")
        L = a.label("P1")
        Lo = a.label("P1o")
        a.e(f"s_mov_b32 s{sTMP+11}, 0\n{L}:")
        self.nocount(f"buffer_load_dword v13, v12, {WS}, s{sTMP} offen sc1\nbuffer_load_dwordx2 v[16:17], v14, {WS}, s{sTMP+3} offen sc1")
        a.e(f"""
s_add_u32 s{sTMP+11}, s{sTMP+11}, 1
s_cmp_gt_u32 s{sTMP+11}, 400000
s_cbranch_scc1 {Lo}
s_waitcnt vmcnt(0)
v_cmp_ne_u32 vcc, s{sTAG}, v13
s_cbranch_vccz {Lo}
s_sleep {PSLEEP}
s_branch {L}
{Lo}:
s_waitcnt vmcnt(0)
v_xor_b32 v17, s{sTAG}, v17
v_xor_b32 v16, s{sXCC}, v16
v_or_b32 v16, v16, v17
v_cmp_ne_u32 vcc, 0, v16
s_cmp_eq_u64 vcc, 0
s_cselect_b32 s{sPURE}, 1, 0
""")
        self.stamp(2)
        ACC = [16, 32, 48]
        BFv = [64, 76, 88]
        NA = 12
        AF = lambda s: ar(4 * (s % NA), 4)
        NS = 32
        PD = 10

        def body(segs, wo=False):
            if wo:
                self.w64_lane(126)
                a.e(f"""
s_and_b32 s{sTMP+5}, s{sJ}, 7
s_lshl_b32 s{sTMP+5}, s{sTMP+5}, 7
s_lshl_b32 s{sTMP+6}, s{sW3}, 13
s_add_u32 s{sTMP+5}, s{sTMP+5}, s{sTMP+6}
s_lshl_b32 s{sTMP+6}, s{sW3}, 10
""")

            def R(s):
                return [f"ds_read_b64_tr_b16 {vr(BFv[s%3]+4*seg+2*i,2)}, v{4+seg} offset:{(16*s+4*i)*64}" for seg in segs for i in range(2)]

            def M(s):
                out = []
                for seg in segs:
                    c = "0" if s == 0 else vr(ACC[seg], 16)
                    b = vr(BFv[s % 3] + 4 * seg, 4)
                    if seg < 2:
                        out.append(f"v_mfma_f32_32x32x16_bf16 {vr(ACC[seg],16)}, {b}, {AF(s)}, {c}")
                    else:
                        out.append(f"v_mfma_f32_32x32x16_bf16 {vr(ACC[seg],16)}, {AF(s)}, {b}, {c}")
                return out

            def aload(s):
                out = []
                if s % 4 == 0 and s > 0:
                    out.append(f"s_add_u32 s{sTMP+2}, s{sTMP+2}, 4096")
                out.append(f"buffer_load_dwordx4 {AF(s)}, v11, {WS}, s{sTMP+2} offen offset:{(s%4)*1024} sc1")
                return out
            vt = {}
            for s in range(PD):
                a.e("\n".join(aload(s)))
                vt[s] = a.vm_tok()
            a.e("\n".join(R(0)))
            toks = {0: a.lg_tok()}
            a.e("\n".join(R(1)))
            toks[1] = a.lg_tok()
            for i in range(NS):
                r = R(i + 2) if i + 2 < NS else []
                a.wait_lg(toks[i])
                a.wait_vm(vt[i])
                a.e("\n".join(interleave(M(i), r)))
                if r:
                    toks[i + 2] = a.lg_tok()
                if i + PD < NS:
                    a.e("\n".join(aload(i + PD)))
                    vt[i + PD] = a.vm_tok()
                if i == int(os.environ.get("PRE", "4")) and "pre" in EXP:
                    self.pretouch()
                if wo and i < 16:
                    a.e(f"s_add_u32 m0, s{sTMP+6}, {L_WO + i*4096}\ns_add_u32 s{sTMP+7}, s{sTMP+5}, {i*32768}")
                    a.e(f"buffer_load_dwordx4 v126, s[{S_WO}:{S_WO+3}], s{sTMP+7} offen lds")
        L_h = a.label("Lp1h")
        L_j = a.label("Lp1j")
        a.e(f"s_cmp_ge_u32 s{sW}, 4\ns_cbranch_scc1 {L_h}")
        v0_, l0_ = a.vm_issued, a.lg_issued
        body([1, 2, 0])
        a.e(f"s_branch {L_j}\n{L_h}:")
        a.vm_issued, a.lg_issued = v0_, l0_
        body([1, 2], wo=True)
        a.e(f"{L_j}:")
        self.stamp(3)
        a.e("s_nop 15")

    def pretouch(self):
        a = self.a
        T = 84
        a.e(f"""
s_lshl_b32 s{T}, s{sRB}, 2
s_add_u32 s{T+1}, s{T}, s{sW3}
s_lshl_b32 s{T+2}, s{T+1}, 15
s_lshl_b32 s{T+3}, s{sJ}, 11
s_add_u32 s{T+2}, s{T+2}, s{T+3}
s_lshl_b32 s{T+3}, s{sWH}, 10
s_add_u32 s{T+2}, s{T+2}, s{T+3}
s_add_u32 s{T+2}, s{T+2}, {OBUF}
s_mul_i32 s{T+4}, s{T+1}, {112*1024}
s_mul_i32 s{T+3}, s{sJ}, {7*1024}
s_add_u32 s{T+4}, s{T+4}, s{T+3}
s_lshl_b32 s{T+3}, s{sWH}, 12
s_add_u32 s{T+4}, s{T+4}, s{T+3}
s_add_u32 s{T+4}, s{T+4}, {ACT}
s_lshr_b32 s{T+3}, s{sJ}, 3
s_lshl_b32 s{T+3}, s{T+3}, 1
s_add_u32 s{T}, s{T}, s{T+3}
s_and_b32 s{T+3}, s{sW}, 1
s_add_u32 s{T}, s{T}, s{T+3}
s_lshl_b32 s{T}, s{T}, 15
s_and_b32 s{T+3}, s{sJ}, 7
s_lshl_b32 s{T+5}, s{T+3}, 12
s_add_u32 s{T+5}, s{T+5}, s{T}
s_lshr_b32 s{T+6}, s{sW}, 1
s_lshl_b32 s{T+6}, s{T+6}, 10
s_add_u32 s{T+5}, s{T+5}, s{T+6}
s_add_u32 s{T+5}, s{T+5}, {H2BUF}
s_add_u32 s{T+6}, s{T+4}, 3072
s_cmp_lt_u32 s{sW}, 4
s_cselect_b32 s{T+6}, s{T+6}, 0x7fff0000
s_cmp_eq_u32 s{sPURE}, 0
s_cselect_b32 s{T+2}, 0x7fff0000, s{T+2}
s_cselect_b32 s{T+4}, 0x7fff0000, s{T+4}
s_cselect_b32 s{T+5}, 0x7fff0000, s{T+5}
s_cselect_b32 s{T+6}, 0x7fff0000, s{T+6}
buffer_store_dwordx4 v[8:11], v11, {WS}, s{T+2} offen
buffer_store_dwordx4 v[8:11], v11, {WS}, s{T+5} offen
buffer_store_dwordx4 v[8:11], v11, {WS}, s{T+4} offen
buffer_store_dwordx4 v[8:11], v11, {WS}, s{T+4} offen offset:1024
buffer_store_dwordx4 v[8:11], v11, {WS}, s{T+4} offen offset:2048
buffer_store_dwordx4 v[8:11], v11, {WS}, s{T+6} offen
""")
        if "nopre2" not in EXP:
            a.e(f"""
s_lshl_b32 s{T+2}, s{sP}, 14
s_lshl_b32 s{T+3}, s{sW3}, 12
s_add_u32 s{T+2}, s{T+2}, s{T+3}
s_add_u32 s{T+2}, s{T+2}, {KVX}
s_and_b32 s{T+3}, s{sRB}, 1
s_cmp_lg_u32 s{T+3}, s{sWH}
s_cselect_b32 s{T+2}, 0x7fff0000, s{T+2}
s_cmp_eq_u32 s{sPURE}, 0
s_cselect_b32 s{T+2}, 0x7fff0000, s{T+2}
s_lshl_b32 s{T+4}, s{sRB}, 17
s_lshr_b32 s{T+3}, s{sJ}, 3
s_lshl_b32 s{T+3}, s{T+3}, 16
s_add_u32 s{T+4}, s{T+4}, s{T+3}
s_lshl_b32 s{T+3}, s{sW}, 13
s_add_u32 s{T+4}, s{T+4}, s{T+3}
s_and_b32 s{T+3}, s{sJ}, 7
s_lshl_b32 s{T+3}, s{T+3}, 7
s_add_u32 s{T+4}, s{T+4}, s{T+3}
v_lshrrev_b32 v124, 3, v1
v_lshlrev_b32 v124, 10, v124
v_and_b32 v125, 7, v1
v_lshl_add_u32 v124, v125, 4, v124
buffer_store_dwordx4 v[8:11], v11, {WS}, s{T+2} offen
buffer_store_dwordx4 v[8:11], v11, {WS}, s{T+2} offen offset:1024
buffer_store_dwordx4 v[8:11], v11, {WS}, s{T+2} offen offset:2048
buffer_store_dwordx4 v[8:11], v11, {WS}, s{T+2} offen offset:3072
buffer_store_dwordx4 v[8:11], v124, s[{S_OUT}:{S_OUT+3}], s{T+4} offen
""")

    def phase2(self):
        a = self.a
        QF = 140
        for r in range(8):
            a.e(f"v_cvt_pk_bf16_f32 v{64+r}, v{32+2*r}, v{33+2*r}")
        for r in range(8):
            a.e(f"v_cvt_pk_bf16_f32 v{72+r}, v{48+2*r}, v{49+2*r}")
        a.e(f"""
v_and_b32 v8, 31, v1
v_lshrrev_b32 v9, 5, v1
v_bfe_u32 v5, v1, 2, 2
v_xor_b32 v9, v9, v5
v_lshlrev_b32 v7, 6, v8
v_lshl_add_u32 v12, v9, 4, v7
v_xor_b32 v9, 2, v9
v_lshl_add_u32 v13, v9, 4, v7
s_xor_b32 s{sTMP+3}, s{sWH}, 1
s_lshl_b32 s{sTMP+3}, s{sTMP+3}, 14
s_lshl_b32 s{sTMP+4}, s{sW3}, 11
s_add_u32 s{sTMP+3}, s{sTMP+3}, s{sTMP+4}
s_add_u32 s{sTMP+1}, s{sTMP+3}, {L_K}
s_add_u32 s{sTMP+2}, s{sTMP+3}, {L_V}
v_add_u32 v8, s{sTMP+1}, v12
v_add_u32 v9, s{sTMP+1}, v13
v_add_u32 v5, s{sTMP+2}, v12
v_add_u32 v7, s{sTMP+2}, v13
s_lshl_b32 s{sTMP+1}, s{sP}, 14
s_lshl_b32 s{sTMP+2}, s{sW3}, 12
s_add_u32 s{sTMP+1}, s{sTMP+1}, s{sTMP+2}
s_add_u32 s{sTMP+1}, s{sTMP+1}, {KVX}
s_lshl_b32 s{sTMP+5}, s{sP}, 4
s_lshl_b32 s{sTMP+2}, s{sW3}, 2
s_add_u32 s{sTMP+5}, s{sTMP+5}, s{sTMP+2}
s_add_u32 s{sTMP+5}, s{sTMP+5}, {FL_KV}
v_mov_b32 v14, s{sTAG}
v_mov_b32 v15, 0
s_and_b32 s{sTMP+6}, s{sRB}, 1
""")
        L_f = a.label("Lfetch")
        L_j = a.label("Lp2j")
        a.e(f"s_cmp_lg_u32 s{sTMP+6}, s{sWH}\ns_cbranch_scc1 {L_f}")
        v0_, l0_ = a.vm_issued, a.lg_issued
        st = f"""buffer_store_dwordx4 v[64:67], v12, {WS}, s{sTMP+1} offen
buffer_store_dwordx4 v[68:71], v13, {WS}, s{sTMP+1} offen
buffer_store_dwordx4 v[72:75], v12, {WS}, s{sTMP+1} offen offset:2048
buffer_store_dwordx4 v[76:79], v13, {WS}, s{sTMP+1} offen offset:2048
"""
        self.store_site("kv", st, self.flag_seq(f"s{sTMP+5}"))
        a.e(f"s_barrier\ns_branch {L_j}\n{L_f}:")
        a.vm_issued, a.lg_issued = v0_, l0_
        a.e(f"s_xor_b32 s{sTMP+5}, s{sTMP+5}, 256\ns_xor_b32 s{sTMP+1}, s{sTMP+1}, {16*16384}")
        self.poll(15, f"s{sTMP+5}", 80)
        a.e("s_barrier")
        for half in range(2):
            a.e(f"s_add_u32 m0, s{sTMP+4}, {L_K + 4*2048}")
            self.nocount(f"buffer_load_dwordx4 v11, {WS}, s{sTMP+1} offen offset:{half*1024} sc1 lds")
            a.e(f"s_add_u32 m0, s{sTMP+4}, {L_V + 4*2048 - 2048}")
            self.nocount(f"buffer_load_dwordx4 v11, {WS}, s{sTMP+1} offen offset:{2048 + half*1024} sc1 lds")
        a.e(f"{L_j}:")
        a.e(f"""
ds_write_b128 v8, v[64:67]
ds_write_b128 v9, v[68:71]
ds_write_b128 v5, v[72:75]
ds_write_b128 v7, v[76:79]
""")
        Lq = a.label("Lq0")
        a.e(f"s_cmp_ge_u32 s{sW}, 4\ns_cbranch_scc1 {Lq}")
        a.e(f"s_mov_b32 s{sTMP}, {f2u(QSCALE):#x}")
        for r in range(16):
            a.e(f"v_mul_f32 v{16+r}, s{sTMP}, v{16+r}")
        for r in range(4):
            a.e(f"v_cvt_pk_bf16_f32 v{QF+r}, v{16+2*r}, v{17+2*r}")
        for r in range(4):
            a.e(f"v_cvt_pk_bf16_f32 v{80+r}, v{24+2*r}, v{25+2*r}")
        a.e(f"""
s_lshl_b32 s{sTMP+4}, s{sW}, 10
s_add_u32 s{sTMP+4}, s{sTMP+4}, {L_QX}
v_add_u32 v5, s{sTMP+4}, v11
""")
        self.nocount("ds_write_b128 v5, v[80:83]")
        a.e(f"{Lq}:")
        if "valugemv" in EXP:
            a.e(f"""
s_lshl_b32 s{sTMP}, s{sW}, 5
s_add_u32 s{sTMP}, s{sTMP}, {L_SCR}
v_lshl_add_u32 v12, v3, 3, s{sTMP}
ds_write_b64 v12, v[132:133]
""")
        a.e("s_waitcnt vmcnt(0) lgkmcnt(0)\ns_barrier")
        self.stamp(5)
        Lq = a.label("Lq")
        Lw = a.label("Lwo")
        a.e(f"s_cmp_lt_u32 s{sW}, 4\ns_cbranch_scc1 {Lw}")
        a.e(f"s_lshl_b32 s{sTMP+4}, s{sW3}, 10\ns_add_u32 s{sTMP+4}, s{sTMP+4}, {L_QX}\nv_add_u32 v5, s{sTMP+4}, v11")
        self.nocount(f"ds_read_b128 v[{QF}:{QF+3}], v5")
        if "valugemv" in EXP:
            a.e(f"s_cmp_lg_u32 s{sW}, 4\ns_cbranch_scc1 {Lw}")
            a.e(f"v_and_b32 v13, 3, v1\nv_lshlrev_b32 v13, 3, v13\nv_add_u32 v14, {L_SCR}, v13")
            self.nocount("\n".join(f"ds_read_b64 v[{80+2*w}:{81+2*w}], v14 offset:{(4+w)*32}" for w in range(2)))
            a.e(f"""
s_lshr_b32 s{sTMP+5}, s{sP}, 6
s_cmp_eq_u32 s{sTMP+5}, 2
s_cselect_b32 s{sTMP+4}, 1.0, 0
s_lshl_b32 s{sTMP+5}, s{sP}, 5
s_add_u32 s{sTMP+5}, s{sTMP+5}, {MODG}
s_waitcnt lgkmcnt(0)
v_add_f32 v80, v80, v82
v_add_f32 v81, v81, v83
""")
            self.granule(80, 81, sTMP + 4, 82)
            a.e("s_mov_b64 exec, 0xf")
            self.nocount(f"buffer_store_dwordx2 v[82:83], v13, {WS}, s{sTMP+5} offen sc1")
            a.e("s_mov_b64 exec, -1")
        a.e(f"{Lw}:")
        a.e(f"{Lq}:\ns_waitcnt lgkmcnt(0)")
        self.gu_dma_setup()
        self.gu_dma_hi([0])
        if "nomall2" not in EXP:
            Lm = a.label("Lmall")
            a.e(f"""
s_lshr_b32 s{sTMP}, s{sW}, 1
s_cmp_lg_u32 s{sTMP}, 1
s_cbranch_scc1 {Lm}
s_lshl_b32 s{sTMP}, s{sP}, 1
s_and_b32 s{sTMP+1}, s{sW}, 1
s_add_u32 s{sTMP}, s{sTMP}, s{sTMP+1}
s_lshl_b32 s{sTMP}, s{sTMP}, 13
s_add_u32 s{sTMP+1}, s{sTMP}, {84*8192}
s_sub_u32 s{sTMP+2}, s{sTMP}, {140*8192}
s_cmp_lt_u32 s{sTMP+2}, {140*8192}
s_cselect_b32 s{sTMP+2}, s{sTMP+2}, 0x7fff0000
s_add_u32 s{sTMP+2}, s{sTMP+2}, {84*8192}
s_sub_u32 s{sTMP+3}, s{sTMP}, {280*8192}
s_min_u32 s{sTMP+3}, s{sTMP+3}, 0x7fff0000
""")
            self.nocount(f"buffer_load_dword v2, v10, s[{S_WG}:{S_WG+3}], s{sTMP+1} offen")
            self.nocount(f"buffer_load_dword v2, v10, s[{S_WU}:{S_WU+3}], s{sTMP+2} offen")
            self.nocount(f"buffer_load_dword v2, v10, s[{S_WD}:{S_WD+3}], s{sTMP+3} offen")
            a.e(f"{Lm}:")
        Lep = a.label("Lep")
        a.e(f"s_mov_b32 s101, 0\ns_cmp_lg_u32 s2, 0\ns_cbranch_scc1 {Lep}\ns_cmp_lg_u32 s{sW}, 7\ns_cbranch_scc1 {Lep}\nv_lshlrev_b32 v124, 3, v1\ns_mov_b32 s{sTMP}, {XID}")
        for q in range(4):
            self.nocount(f"buffer_load_dword v{125+q}, v124, {WS}, s{sTMP} offen offset:{4 + 512*q} sc1")
        a.e(f"{Lep}:")
        SB = [16, 32]
        CN, OA, PK, MK, MX = 48, 64, 80, 96, 104
        VF = [108, 116]
        KA = 0
        a.e(f"""
v_and_b32 v8, 31, v1
v_lshrrev_b32 v9, 5, v1
v_bfe_u32 v7, v1, 2, 2
s_lshl_b32 s{sTMP}, s{sWH}, 1
v_or_b32 v12, s{sTMP}, v9
v_xor_b32 v12, v12, v7
v_lshlrev_b32 v4, 6, v8
v_lshl_add_u32 v4, v12, 4, v4
s_lshl_b32 s{sTMP+1}, s{sW3}, 11
s_add_u32 s{sTMP+2}, s{sTMP+1}, {L_K}
v_add_u32 v4, s{sTMP+2}, v4
v_and_b32 v13, 15, v1
v_lshlrev_b32 v5, 6, v13
v_xor_b32 v12, v9, v7
v_lshl_add_u32 v5, v12, 4, v5
v_xor_b32 v12, 2, v12
v_lshlrev_b32 v6, 6, v13
v_lshl_add_u32 v6, v12, 4, v6
s_lshl_b32 s{sTMP+2}, s{sWH}, 10
s_add_u32 s{sTMP+2}, s{sTMP+2}, s{sTMP+1}
s_add_u32 s{sTMP+2}, s{sTMP+2}, {L_V}
v_add_u32 v5, s{sTMP+2}, v5
v_add_u32 v6, s{sTMP+2}, v6
s_lshl_b32 s{sTMP}, s{sRB}, 2
s_add_u32 s{sTMP}, s{sTMP}, s{sW3}
s_sub_u32 s{sIMIN}, 8, s{sTMP}
s_cmp_ge_u32 s{sTMP}, 8
s_cselect_b32 s{sIMIN}, 0, s{sIMIN}
s_mul_i32 s92, s{sT}, 35840
s_min_u32 s93, s{sW}, 4
s_lshl_b32 s93, s93, 13
s_add_u32 s92, s92, s93
s_add_u32 s92, s92, {192*3584}
""")
        order = [8, 0, 7, 6, 5, 4, 3, 2, 1]
        ktok = {}
        for i in order:
            a.e(f"ds_read_b128 {ar(KA+4*i,4)}, v4 offset:{i*2048}")
            ktok[i] = a.lg_tok()
        a.e(f"v_lshlrev_b32 v12, 2, v9\nv_sub_u32 v12, v8, v12")
        for r in range(16):
            kl = 8 * (r >> 2) + (r & 3)
            a.e(f"v_cmp_le_i32 s[{sMASK+2*r}:{sMASK+2*r+1}], {kl}, v12")
        a.e(f"v_mov_b32 v13, 0xffff\nv_mov_b32 v7, 0xffff0000")
        for j in range(8):
            a.e(f"v_cndmask_b32 v{MK+j}, 0, v13, s[{sMASK+4*j}:{sMASK+4*j+1}]")
            a.e(f"v_cndmask_b32 v12, 0, v7, s[{sMASK+4*j+2}:{sMASK+4*j+3}]")
            a.e(f"v_or_b32 v{MK+j}, v{MK+j}, v12")
        a.e(f"v_and_b32 v12, 27, v1\nv_cmp_eq_u32 vcc, 16, v12\nv_mov_b32 v13, 0x3f803f80")
        for r in range(16):
            a.e(f"v_cndmask_b32 v{VF[0]+r}, 0, v13, vcc")
        Q = vr(QF, 4)

        touches = [None, (S_WG, 0), None, (S_WU, 0)]

        def touch_one():
            if "atouch" not in EXP or not touches:
                return
            t_ = touches.pop(0)
            if t_ is None:
                return
            srd, off = t_
            Ln = a.label("Lnt")
            a.e(f"s_cmp_gt_u32 s{sW}, 4\ns_cbranch_scc1 {Ln}\ns_add_u32 s93, s92, {off}")
            self.nocount(f"buffer_load_dword v2, v10, s[{srd}:{srd+3}], s93 offen")
            a.e(f"{Ln}:")

        def smfma(buf, i, c):
            return f"v_mfma_f32_32x32x16_bf16 {vr(SB[buf],16)}, {ar(KA+4*i,4)}, {Q}, {c}"

        def fix_trail():
            Ln = a.label("Lnt")
            a.e(f"s_cmp_eq_u32 s{sIMIN}, 0\ns_cbranch_scc1 {Ln}")
            a.e("s_nop 12")
            for r in range(16):
                a.e(f"v_mov_b32 v{SB[1]+r}, {NEG_BIG:#x}")
            a.e(f"{Ln}:\ns_nop 12")

        def merge():
            for r in range(16):
                a.e(f"v_cndmask_b32 v{SB[0]+r}, v{SB[1]+r}, v{SB[0]+r}, s[{sMASK+2*r}:{sMASK+2*r+1}]")

        touch_one()
        a.wait_lg(ktok[0])
        a.e(smfma(0, 8, "0"))
        a.e(smfma(1, 0, "0"))
        fix_trail()
        merge()
        a.wait_lg(ktok[7])
        a.e(smfma(1, 7, "0"))
        a.e(f"v_max3_f32 v{MX}, v{SB[0]}, v{SB[0]+1}, v{SB[0]+2}")
        for r in range(3, 15, 2):
            a.e(f"v_max3_f32 v{MX}, v{MX}, v{SB[0]+r}, v{SB[0]+r+1}")
        a.e(f"v_max_f32 v{MX}, v{MX}, v{SB[0]+15}")
        Le1 = a.label("Lp1e")
        buf = 1
        for i in range(7, 0, -1):
            a.e(f"s_cmp_gt_u32 s{sIMIN}, {i}\ns_cbranch_scc1 {Le1}")
            if i > 1:
                a.wait_lg(ktok[i - 1])
                a.e(smfma(1 - buf, i - 1, "0"))
            for r in range(0, 16, 2):
                a.e(f"v_max3_f32 v{MX}, v{MX}, v{SB[buf]+r}, v{SB[buf]+r+1}")
            buf = 1 - buf
        a.e(f"{Le1}:\ns_waitcnt lgkmcnt(0)\ns_nop 12")
        self.group_allsum([MX], [MX + 1], op="v_max_f32", stages=("32",))
        for r in range(16):
            a.e(f"v_sub_f32 v{CN+r}, 0, v{MX}")
        C = vr(CN, 16)

        def vread(b, i):
            return [f"s_mov_b32 exec_lo, 0xffff", f"s_mov_b32 exec_hi, 0xffff",
                    f"ds_read_b128 {vr(VF[b],4)}, v5 offset:{i*2048}", f"ds_read_b128 {vr(VF[b]+4,4)}, v6 offset:{i*2048}",
                    "s_mov_b64 exec, -1"]

        def expack(buf, dst):
            for r in range(16):
                a.e(f"v_exp_f32 v{SB[buf]+r}, v{SB[buf]+r}")
            for j in range(8):
                a.e(f"v_cvt_pk_bf16_f32 v{dst+j}, v{SB[buf]+2*j}, v{SB[buf]+2*j+1}")

        def pv(vb, p, first=False):
            a.e(f"v_mfma_f32_32x32x16_bf16 {vr(OA,16)}, {vr(VF[vb],4)}, {vr(p,4)}, {'0' if first else vr(OA,16)}")
            a.e(f"v_mfma_f32_32x32x16_bf16 {vr(OA,16)}, {vr(VF[vb]+4,4)}, {vr(p+4,4)}, {vr(OA,16)}")

        touch_one()
        a.e("\n".join(vread(0, 8) + vread(1, 0)))
        tv = a.lg_tok()
        a.e(smfma(0, 8, C))
        a.e(smfma(1, 0, C))
        fix_trail()
        merge()
        a.e(smfma(1, 7, C))
        expack(0, PK)
        for j in range(8):
            a.e(f"v_and_b32 v{PK+8+j}, v{PK+j}, v{MK+j}")
        for j in range(8):
            a.e(f"v_xor_b32 v{PK+j}, v{PK+j}, v{PK+8+j}")
        a.wait_lg(tv)
        pv(0, PK + 8, first=True)
        Lnt = a.label("Lnpv")
        a.e(f"s_cmp_lg_u32 s{sIMIN}, 0\ns_cbranch_scc1 {Lnt}")
        pv(1, PK)
        a.e(f"{Lnt}:")
        Le2 = a.label("Lp2e")
        buf = 1
        vb = 0
        a.e("\n".join(vread(0, 7)))
        for i in range(7, 0, -1):
            a.e(f"s_cmp_gt_u32 s{sIMIN}, {i}\ns_cbranch_scc1 {Le2}")
            tv = a.lg_tok()
            if i > 1:
                a.e(smfma(1 - buf, i - 1, C))
                a.e("\n".join(vread(1 - vb, i - 1)))
            if i in (6, 4):
                touch_one()
            p = PK + 8 * (i & 1)
            expack(buf, p)
            a.wait_lg(tv)
            pv(vb, p)
            buf = 1 - buf
            vb = 1 - vb
        a.e(f"{Le2}:\ns_waitcnt lgkmcnt(0)\ns_nop 15")
        a.e(f"v_rcp_f32 v{MX}, v{OA+8}")
        for r in range(8):
            a.e(f"v_mul_f32 v{OA+r}, v{MX}, v{OA+r}")
        for j in range(4):
            a.e(f"v_cvt_pk_bf16_f32 v{PK+j}, v{OA+2*j}, v{OA+2*j+1}")
        a.e(f"""
s_lshl_b32 s{sTMP}, s{sRB}, 2
s_add_u32 s{sTMP}, s{sTMP}, s{sW3}
s_lshl_b32 s{sTMP}, s{sTMP}, 15
s_lshl_b32 s{sTMP+1}, s{sJ}, 11
s_add_u32 s{sTMP}, s{sTMP}, s{sTMP+1}
s_lshl_b32 s{sTMP+1}, s{sWH}, 10
s_add_u32 s{sTMP}, s{sTMP}, s{sTMP+1}
s_add_u32 s{sTMP}, s{sTMP}, {OBUF}
s_lshl_b32 s{sTMP+1}, s{sP}, 5
s_lshl_b32 s{sTMP+2}, s{sW}, 2
s_add_u32 s{sTMP+1}, s{sTMP+1}, s{sTMP+2}
s_add_u32 s{sTMP+1}, s{sTMP+1}, {FL_O}
v_mov_b32 v14, s{sTAG}
v_mov_b32 v15, 0
""")
        self.store_site("o", f"buffer_store_dwordx4 v[{PK}:{PK+3}], v11, {WS}, s{sTMP} offen", self.flag_seq(f"s{sTMP+1}"))
        Lep = a.label("Lep2")
        a.e(f"""
s_cmp_lg_u32 s2, 0
s_cbranch_scc1 {Lep}
s_cmp_lg_u32 s{sW}, 7
s_cbranch_scc1 {Lep}
v_xor_b32 v125, s{sTAG}, v125
v_xor_b32 v126, s{sTAG}, v126
v_xor_b32 v127, s{sTAG}, v127
v_xor_b32 v128, s{sTAG}, v128
v_or3_b32 v125, v125, v126, v127
v_or_b32 v125, v125, v128
v_cmp_ne_u32 vcc, 0, v125
s_cbranch_vccnz {Lep}
s_mov_b32 s101, 1
s_mov_b64 exec, 1
""")
        self.nocount(f"buffer_store_dword v14, v15, {WS}, 0 offen offset:{EPOCH} sc1")
        a.e(f"s_mov_b64 exec, -1\n{Lep}:")
        self.stamp(6)
        self.gu_dma_setup(lanes=False)
        a.e("s_barrier")

    def w64_lane(self, vd, stride=1024):
        self.a.e(f"""
v_lshrrev_b32 v{vd}, 3, v1
v_mul_u32_u24 v{vd}, {stride}, v{vd}
v_and_b32 v2, 7, v1
v_bfe_u32 v{vd+1}, v1, 4, 1
v_lshlrev_b32 v{vd+1}, 2, v{vd+1}
v_xor_b32 v2, v2, v{vd+1}
v_lshl_add_u32 v{vd}, v2, 4, v{vd}
""")

    def tr64_bases(self, vd):
        self.a.e(f"""
v_lshrrev_b32 v8, 5, v1
v_bfe_u32 v9, v1, 2, 2
v_lshl_add_u32 v8, v8, 3, v9
v_lshlrev_b32 v8, 7, v8
v_bfe_u32 v12, v1, 4, 1
v_lshl_add_u32 v8, v12, 5, v8
v_and_b32 v12, 1, v1
v_lshl_add_u32 v8, v12, 4, v8
v_bfe_u32 v12, v1, 1, 1
v_lshl_add_u32 v8, v12, 3, v8
v_lshrrev_b32 v9, 1, v9
v_lshl_add_u32 v{vd}, v9, 6, v8
v_xor_b32 v9, 1, v9
v_lshl_add_u32 v{vd+1}, v9, 6, v8
""")

    def gu_dma_setup(self, lanes=True):
        a = self.a
        a.e(f"""
s_cmp_ge_u32 s{sW3}, 2
s_cselect_b32 s{S_SEL}, s{S_WU}, s{S_WG}
s_cselect_b32 s{S_SEL+1}, s{S_WU+1}, s{S_WG+1}
s_cselect_b32 s76, {GU_UP}, 0
s_mov_b32 s{S_SEL+2}, 1835008
s_mov_b32 s{S_SEL+3}, 0x20000
s_mov_b32 s84, 4682
s_and_b32 s86, s{sW}, 1
s_mul_i32 s85, s86, {32*3584}
s_mul_i32 s87, s{sJ}, 224
s_add_u32 s85, s85, s87
s_mul_i32 s86, s86, 7168
s_add_u32 s76, s76, s86
""")
        for i in range(7 if lanes else 0):
            a.e(f"""
v_add_u32 v12, {64*i}, v1
v_mul_u32_u24 v13, s84, v12
v_lshrrev_b32 v13, 16, v13
v_mul_u32_u24 v{144+i}, 14, v13
v_sub_u32 v12, v12, v{144+i}
v_mul_u32_u24 v{144+i}, 3584, v13
v_lshl_add_u32 v{144+i}, v12, 4, v{144+i}
""")

    def gu_dma(self, chunk):
        out = []
        for i in range(7):
            out.append(f"s_add_u32 s86, s85, {chunk*64*3584}\ns_add_u32 m0, s76, {GU_SLOT[chunk%4] + i*1024}\n"
                       f"buffer_load_dwordx4 v{144+i}, s[{S_SEL}:{S_SEL+3}], s86 offen{NTG} lds")
        return out

    def gu_dma_hi(self, chunks):
        a = self.a
        Ln = a.label("Lgh")
        a.e(f"s_cmp_lt_u32 s{sW}, 4\ns_cbranch_scc1 {Ln}")
        for c in chunks:
            self.nocount("\n".join(self.gu_dma(c)))
        a.e(f"{Ln}:")

    def reduce_scatter4(self, ACC, base, dst):
        a = self.a
        a.e(f"""
s_and_b32 s{sTMP+1}, s{sW}, 1
s_lshl_b32 s{sTMP+1}, s{sTMP+1}, 15
s_lshr_b32 s{sTMP+5}, s{sW}, 1
s_lshl_b32 s{sTMP+6}, s{sTMP+5}, 11
s_add_u32 s{sTMP+6}, s{sTMP+6}, s{sTMP+1}
s_add_u32 s{sTMP+6}, s{sTMP+6}, {base}
v_add_u32 v12, s{sTMP+6}, v11
s_lshl_b32 s{sTMP+6}, s{sTMP+5}, 13
s_add_u32 s{sTMP+6}, s{sTMP+6}, s{sTMP+1}
s_add_u32 s{sTMP+6}, s{sTMP+6}, {base}
v_add_u32 v13, s{sTMP+6}, v11
""")
        for q in range(4):
            for hf in range(2):
                a.e(f"ds_write_b128 v12, {vr(ACC+8*q+4*hf,4)} offset:{q*8192 + hf*1024}")
        a.e("s_waitcnt lgkmcnt(0)\ns_barrier")
        for src in range(4):
            for hf in range(2):
                a.e(f"ds_read_b128 {vr(ACC+8*src+4*hf,4)}, v13 offset:{src*2048 + hf*1024}")
        a.e("s_waitcnt lgkmcnt(0)")
        for r in range(8):
            a.e(f"v_add_f32 v{ACC+r}, v{ACC+r}, v{ACC+8+r}\nv_add_f32 v{ACC+16+r}, v{ACC+16+r}, v{ACC+24+r}")
        for r in range(8):
            a.e(f"v_add_f32 v{dst+r}, v{ACC+r}, v{ACC+16+r}")

    def phase3(self):
        a = self.a
        a.e(f"""
s_lshr_b32 s{sTMP+3}, s{sJ}, 3
s_lshl_b32 s{sTMP+3}, s{sTMP+3}, 1
s_and_b32 s{sTMP+1}, s{sW}, 1
s_add_u32 s{sTMP+3}, s{sTMP+3}, s{sTMP+1}
s_lshr_b32 s{sTMP+5}, s{sW}, 1
s_and_b32 s{sTMP+7}, s{sTMP+5}, 1
s_lshl_b32 s{sTMP}, s{sRB}, 9
s_lshl_b32 s{sTMP+1}, s{sTMP+3}, 2
s_add_u32 s{sTMP}, s{sTMP}, s{sTMP+1}
s_lshl_b32 s{sTMP+1}, s{sTMP+5}, 7
s_add_u32 s89, s{sTMP}, s{sTMP+1}
s_lshl_b32 s{sTMP+1}, s{sTMP+7}, 8
s_add_u32 s{sTMP}, s{sTMP}, s{sTMP+1}
s_add_u32 s{sTMP}, s{sTMP}, {FL_O}
v_and_b32 v14, 3, v1
v_lshlrev_b32 v14, 5, v14
v_bfe_u32 v15, v1, 2, 1
v_lshl_add_u32 v153, v15, 4, v14
v_and_b32 v14, 7, v1
v_lshlrev_b32 v14, 5, v14
v_bfe_u32 v15, v1, 3, 1
v_lshl_add_u32 v14, v15, 4, v14
s_lshl_b32 s88, s{sRB}, 2
s_add_u32 s88, s88, s{sTMP+3}
s_lshl_b32 s{sTMP+2}, s88, 15
s_lshl_b32 s{sTMP+1}, s{sTMP+7}, 14
s_add_u32 s{sTMP+2}, s{sTMP+2}, s{sTMP+1}
s_add_u32 s{sTMP+2}, s{sTMP+2}, {OBUF}
""")
        self.tr64_bases(154)
        a.e(f"""
s_cmp_ge_u32 s{sW}, 4
s_cselect_b64 vcc, -1, 0
v_cndmask_b32 v4, v154, v155, vcc
s_lshl_b32 s{sTMP+1}, s{sTMP+7}, 15
s_add_u32 s{sTMP+1}, s{sTMP+1}, {L_WO}
v_add_u32 v4, s{sTMP+1}, v4
v_and_b32 v12, 31, v1
v_lshlrev_b32 v12, 10, v12
v_lshrrev_b32 v13, 5, v1
v_lshl_add_u32 v151, v13, 4, v12
s_lshl_b32 s80, s88, 15
s_and_b32 s{sTMP+6}, s{sJ}, 7
s_lshl_b32 s{sTMP+6}, s{sTMP+6}, 7
s_add_u32 s80, s80, s{sTMP+6}
s_lshl_b32 s{sTMP+1}, s{sTMP+5}, 5
s_add_u32 s80, s80, s{sTMP+1}
v_lshlrev_b32 v12, 11, v3
v_and_b32 v13, 15, v1
v_lshl_add_u32 v12, v13, 4, v12
s_lshl_b32 s{sTMP+6}, s{sTMP+6}, 1
s_add_u32 s{sTMP+6}, s{sTMP+6}, {MODG}
""")
        XR = 124
        a.e(f"buffer_load_dwordx4 v[{XR}:{XR+3}], v151, s[{S_X}:{S_X+3}], s80 offen")
        Lt = a.label("Ltab")
        L = a.label("T")
        Lo = a.label("To")
        a.e(f"s_cmp_lg_u32 s{sW}, 2\ns_cbranch_scc1 {Lt}\ns_mov_b32 s{sTMP+11}, 0\n{L}:")
        self.nocount(f"buffer_load_dwordx4 v[96:99], v12, {WS}, s{sTMP+6} offen sc1")
        a.e(f"""
s_add_u32 s{sTMP+11}, s{sTMP+11}, 1
s_cmp_gt_u32 s{sTMP+11}, 400000
s_cbranch_scc1 {Lo}
s_waitcnt vmcnt(0)
v_xor_b32 v100, s{sTAG}, v97
v_xor_b32 v101, s{sTAG}, v99
v_or_b32 v100, v100, v101
v_cmp_ne_u32 vcc, 0, v100
s_cbranch_vccnz {L}
{Lo}:
s_waitcnt vmcnt(0)
v_and_b32 v97, 0xffff0000, v96
v_lshlrev_b32 v96, 16, v96
v_and_b32 v99, 0xffff0000, v98
v_lshlrev_b32 v98, 16, v98
v_add_u32 v12, {L_TAB}, v11
""")
        self.nocount("ds_write_b128 v12, v[96:99]")
        a.e(f"{Lt}:")
        ACC = 16
        BF = [32, 36, 40]
        AF = lambda s: ar(4 * s, 4)

        def R(s):
            return [f"ds_read_b64_tr_b16 {vr(BF[s%3]+2*i,2)}, v4 offset:{(16*s+4*i)*128}" for i in range(2)]

        a.e("s_waitcnt lgkmcnt(0)")
        toks = {}
        for s in range(2):
            a.e("\n".join(R(s)))
            toks[s] = a.lg_tok()
        self.poll(14, f"s{sTMP}", 15)
        self.stamp(7)
        vt = {}
        for s in range(16):
            if s % 4 == 0 and s:
                a.e(f"s_add_u32 s{sTMP+2}, s{sTMP+2}, 4096")
            a.e(f"buffer_load_dwordx4 {AF(s)}, v11, {WS}, s{sTMP+2} offen offset:{(s%4)*1024}")
            vt[s] = a.vm_tok()
        for s in range(16):
            a.wait_lg(toks[s])
            a.wait_vm(vt[s])
            a.e(f"v_mfma_f32_32x32x16_bf16 {vr(ACC,16)}, {vr(BF[s%3],4)}, {AF(s)}, {'0' if s == 0 else vr(ACC,16)}")
            if s + 2 < 16:
                a.e("\n".join(R(s + 2)))
                toks[s + 2] = a.lg_tok()
        self.stamp(18)
        a.e(f"""
s_and_b32 s{sTMP+1}, s{sW}, 1
s_lshl_b32 s{sTMP+1}, s{sTMP+1}, 14
s_lshl_b32 s{sTMP+6}, s{sWH}, 13
s_add_u32 s{sTMP+1}, s{sTMP+1}, s{sTMP+6}
s_add_u32 s{sTMP+1}, s{sTMP+1}, {L_RED}
s_lshl_b32 s{sTMP+6}, s{sTMP+7}, 11
s_add_u32 s{sTMP+6}, s{sTMP+6}, s{sTMP+1}
v_add_u32 v12, s{sTMP+6}, v11
s_lshl_b32 s{sTMP+6}, s{sTMP+7}, 12
s_add_u32 s{sTMP+6}, s{sTMP+6}, s{sTMP+1}
v_add_u32 v13, s{sTMP+6}, v11
""")
        for q in range(2):
            for hf in range(2):
                a.e(f"ds_write_b128 v12, {vr(ACC+8*q+4*hf,4)} offset:{q*4096 + hf*1024}")
        a.e("s_waitcnt lgkmcnt(0)\ns_barrier")
        self.stamp(19)
        if "g12a" in EXP or not ("g12b" in EXP or "g12c" in EXP):
            self.gu_dma_hi([1, 2])
        for src in range(2):
            for hf in range(2):
                a.e(f"ds_read_b128 {vr(ACC+8*src+4*hf,4)}, v13 offset:{src*2048 + hf*1024}")
        GA, SBv, G2 = 56, 64, 72
        a.e(f"""
v_lshrrev_b32 v13, 5, v1
v_lshlrev_b32 v13, 5, v13
s_lshl_b32 s{sTMP+5}, s{sTMP+5}, 6
s_add_u32 s{sTMP+5}, s{sTMP+5}, {L_TAB}
v_add_u32 v13, s{sTMP+5}, v13
ds_read_b128 {vr(GA,4)}, v13
ds_read_b128 {vr(GA+4,4)}, v13 offset:16
ds_read_b128 {vr(SBv,4)}, v13 offset:256
ds_read_b128 {vr(SBv+4,4)}, v13 offset:272
ds_read_b128 {vr(G2,4)}, v13 offset:512
ds_read_b128 {vr(G2+4,4)}, v13 offset:528
ds_read_b128 a[88:91], v13 offset:768
ds_read_b128 a[92:95], v13 offset:784
""")
        X1 = 96
        X1P = 132
        for q in range(4):
            a.e(f"v_lshlrev_b32 v{X1+2*q}, 16, v{XR+q}\nv_and_b32 v{X1+1+2*q}, 0xffff0000, v{XR+q}")
        a.e("s_waitcnt lgkmcnt(6)")
        for r in range(8):
            a.e(f"v_add_f32 v{ACC+r}, v{ACC+r}, v{ACC+8+r}")
        for r in range(8):
            a.e(f"v_fmac_f32 v{X1+r}, v{GA+r}, v{ACC+r}")
        for q in range(4):
            a.e(f"v_cvt_pk_bf16_f32 v{X1P+q}, v{X1+2*q}, v{X1+1+2*q}")
        for q in range(4):
            a.e(f"v_lshlrev_b32 v{X1+2*q}, 16, v{X1P+q}\nv_and_b32 v{X1+1+2*q}, 0xffff0000, v{X1P+q}")
        a.e(f"v_add_f32 v16, v{X1}, v{X1+1}\nv_mul_f32 v17, v{X1}, v{X1}")
        for r in range(2, 8):
            a.e(f"v_add_f32 v16, v16, v{X1+r}")
        for r in range(1, 8):
            a.e(f"v_fmac_f32 v17, v{X1+r}, v{X1+r}")
        self.group_allsum([16, 17], [20, 21], stages=("32",))
        a.e(f"""
v_and_b32 v12, 31, v1
v_lshlrev_b32 v12, 5, v12
s_and_b32 s{sTMP+1}, s{sW}, 1
s_lshl_b32 s{sTMP+1}, s{sTMP+1}, 10
s_add_u32 s{sTMP+1}, s{sTMP+1}, {L_ST}
v_add_u32 v12, s{sTMP+1}, v12
s_lshr_b32 s{sTMP+5}, s{sW}, 1
s_lshl_b32 s{sTMP+5}, s{sTMP+5}, 3
v_add_u32 v13, s{sTMP+5}, v12
ds_write_b64 v13, v[16:17]
s_waitcnt lgkmcnt(0)
s_barrier
""")
        if self.dump:
            a.e(f"s_add_u32 s{sTMP+7}, s80, {X1DBG}")
            self.nocount(f"buffer_store_dwordx4 v[{X1P}:{X1P+3}], v151, {WS}, s{sTMP+7} offen")
        self.stamp(20)
        if "g12b" in EXP:
            self.gu_dma_hi([1, 2])
        L_j = a.label("Lp3j")
        a.e(f"s_cmp_ge_u32 s{sW}, 2\ns_cbranch_scc1 {L_j}")
        v0_, l0_ = a.vm_issued, a.lg_issued
        a.e(f"""
ds_read_b128 v[20:23], v12
ds_read_b128 v[24:27], v12 offset:16
v_mov_b32 v18, s{sTAG}
v_mov_b32 v19, s{sTAG}
v_and_b32 v13, 31, v1
v_lshlrev_b32 v13, 7, v13
s_lshl_b32 s{sTMP+5}, s88, 12
s_add_u32 s{sTMP+5}, s{sTMP+5}, {SGRAN}
s_and_b32 s{sTMP+6}, s{sJ}, 7
s_lshl_b32 s{sTMP+6}, s{sTMP+6}, 4
s_add_u32 s{sTMP+6}, s{sTMP+6}, s{sTMP+5}
v_lshrrev_b32 v2, 5, v1
v_lshl_add_u32 v2, v2, 6, v13
s_waitcnt lgkmcnt(0)
v_add_f32 v16, v20, v22
v_add_f32 v17, v21, v23
v_add_f32 v24, v24, v26
v_add_f32 v25, v25, v27
v_add_f32 v16, v16, v24
v_add_f32 v17, v17, v25
""")
        self.store_sel(f"s_mov_b32 exec_hi, 0\nbuffer_store_dwordx4 v[16:19], v13, {WS}, s{sTMP+6} offen\ns_mov_b64 exec, -1")
        L = a.label("SG")
        Lo = a.label("SGo")
        a.e(f"s_mov_b32 s{sTMP+11}, 0\n{L}:")
        self.nocount("\n".join(f"buffer_load_dwordx4 v[{20+4*q}:{23+4*q}], v2, {WS}, s{sTMP+5} offen offset:{16*q} sc1" for q in range(4)))
        a.e(f"""
s_add_u32 s{sTMP+11}, s{sTMP+11}, 1
s_cmp_gt_u32 s{sTMP+11}, 400000
s_cbranch_scc1 {Lo}
s_waitcnt vmcnt(0)
v_xor_b32 v36, s{sTAG}, v22
v_xor_b32 v37, s{sTAG}, v26
v_or_b32 v36, v36, v37
v_xor_b32 v37, s{sTAG}, v30
v_or_b32 v36, v36, v37
v_xor_b32 v37, s{sTAG}, v34
v_or_b32 v36, v36, v37
v_cmp_ne_u32 vcc, 0, v36
s_cbranch_vccnz {L}
{Lo}:
s_waitcnt vmcnt(0)
v_add_f32 v16, v20, v24
v_add_f32 v17, v21, v25
v_add_f32 v28, v28, v32
v_add_f32 v29, v29, v33
v_add_f32 v16, v16, v28
v_add_f32 v17, v17, v29
""")
        self.group_allsum([16, 17], [20, 21], stages=("32",))
        a.e(f"""
v_mul_f32 v16, {f2u(1/512):#x}, v16
v_mul_f32 v17, {f2u(1/512):#x}, v17
v_fma_f32 v17, -v16, v16, v17
v_max_f32 v17, 0, v17
v_add_f32 v17, {f2u(1e-5):#x}, v17
v_rsq_f32 v18, v17
v_mul_f32 v19, v16, v18
v_sub_f32 v19, 0, v19
ds_write_b64 v12, v[18:19] offset:2048
s_waitcnt lgkmcnt(0)
""")
        self.stamp(21)
        a.vm_issued, a.lg_issued = v0_, l0_
        a.e(f"{L_j}:")
        a.e(f"""
s_lshl_b32 s{sTMP+5}, s88, 15
s_and_b32 s{sTMP+6}, s{sJ}, 7
s_lshl_b32 s{sTMP+6}, s{sTMP+6}, 12
s_add_u32 s{sTMP+5}, s{sTMP+5}, s{sTMP+6}
s_lshr_b32 s{sTMP+6}, s{sW}, 1
s_lshl_b32 s{sTMP+6}, s{sTMP+6}, 10
s_add_u32 s{sTMP+5}, s{sTMP+5}, s{sTMP+6}
s_add_u32 s{sTMP+5}, s{sTMP+5}, {H2BUF}
s_lshl_b32 s{sTMP+6}, s{sP}, 5
s_lshl_b32 s{sTMP+7}, s{sW}, 2
s_add_u32 s{sTMP+6}, s{sTMP+6}, s{sTMP+7}
s_add_u32 s{sTMP+6}, s{sTMP+6}, {FL_H2}
v_mov_b32 v14, s{sTAG}
v_mov_b32 v15, 0
s_barrier
ds_read_b64 v[18:19], v12 offset:2048
s_waitcnt lgkmcnt(0)
""")
        for r in range(8):
            a.e(f"v_fma_f32 v{X1+r}, v{X1+r}, v18, v19")
        for q in range(4):
            a.e(f"v_cvt_pk_bf16_f32 v{32+q}, v{X1+2*q}, v{X1+1+2*q}")
        for q in range(4):
            a.e(f"v_lshlrev_b32 v{X1+2*q}, 16, v{32+q}\nv_and_b32 v{X1+1+2*q}, 0xffff0000, v{32+q}")
        for r in range(8):
            a.e(f"v_fma_f32 v{X1+r}, v{X1+r}, v{G2+r}, v{SBv+r}")
        for q in range(4):
            a.e(f"v_cvt_pk_bf16_f32 v{32+q}, v{X1+2*q}, v{X1+1+2*q}")
        self.store_site("h2", f"buffer_store_dwordx4 v[32:35], v11, {WS}, s{sTMP+5} offen", self.flag_seq(f"s{sTMP+6}"))
        self.stamp(8)

    def d_dma_setup(self):
        a = self.a
        self.w64_lane(12)
        a.e(f"""
v_mov_b32 v152, v12
s_and_b32 s81, s{sJ}, 7
s_lshl_b32 s81, s81, 7
s_lshl_b32 s83, s{sW}, 13
s_add_u32 s81, s81, s83
s_lshl_b32 s82, s{sW}, 10
""")

    def d_dma(self, c):
        return [f"s_add_u32 m0, s82, {D_SLOT[c%4] + q*8192}\ns_add_u32 s83, s81, {(448*q + 64*c)*1024}\n"
                f"buffer_load_dwordx4 v152, s[{S_WD}:{S_WD+3}], s83 offen{NTD} lds" for q in range(4)]

    def phase4(self):
        a = self.a
        self.d_dma_setup()
        a.e(f"""
s_lshl_b32 s{sTMP}, s{sRB}, 9
s_lshr_b32 s{sTMP+1}, s{sW3}, 1
s_lshl_b32 s{sTMP+1}, s{sTMP+1}, 8
s_add_u32 s{sTMP}, s{sTMP}, s{sTMP+1}
s_and_b32 s{sTMP+1}, s{sW3}, 1
s_lshl_b32 s{sTMP+1}, s{sTMP+1}, 2
s_add_u32 s{sTMP}, s{sTMP}, s{sTMP+1}
s_add_u32 s{sTMP}, s{sTMP}, {FL_H2}
v_and_b32 v14, 7, v1
v_lshlrev_b32 v14, 5, v14
v_bfe_u32 v15, v1, 3, 2
v_lshl_add_u32 v14, v15, 3, v14
s_lshl_b32 s{sTMP+2}, s{sRB}, 2
s_add_u32 s{sTMP+2}, s{sTMP+2}, s{sW3}
s_lshl_b32 s{sTMP+2}, s{sTMP+2}, 15
s_add_u32 s{sTMP+2}, s{sTMP+2}, {H2BUF}
v_lshrrev_b32 v8, 5, v1
v_bfe_u32 v9, v1, 2, 2
v_lshl_add_u32 v9, v8, 3, v9
v_mul_u32_u24 v7, 224, v9
v_bfe_u32 v9, v1, 4, 1
v_mul_u32_u24 v9, {GU_UP}, v9
v_add_u32 v7, v7, v9
v_and_b32 v9, 1, v1
v_lshl_add_u32 v7, v9, 4, v7
v_bfe_u32 v9, v1, 1, 1
v_lshl_add_u32 v7, v9, 3, v7
v_add_u32 v4, {GU_SLOT[0]}, v7
v_add_u32 v5, {GU_SLOT[1]}, v7
v_add_u32 v6, {GU_SLOT[2]}, v7
s_barrier
""")
        ACC = [16 + 16 * T for T in range(7)]
        BF = [0, 28]
        NA = 8
        PD = 6
        slot = lambda i: ar(56 + 4 * (i % NA), 4)

        def body(kp):
            def aload(i):
                s_ = 2 * i + kp
                out = []
                if i % 2 == 0 and i > 0:
                    out.append(f"s_add_u32 s{sTMP+2}, s{sTMP+2}, 4096")
                out.append(f"buffer_load_dwordx4 {slot(i)}, v11, {WS}, s{sTMP+2} offen offset:{(s_%4)*1024} sc1")
                return out

            def R(i):
                s_ = 2 * i + kp
                c, sl = s_ // 4, s_ % 4
                return [f"ds_read_b64_tr_b16 {ar(BF[i%2]+4*T+2*ii,2)}, v{4 + c%4} offset:{(16*sl+4*ii)*224 + T*32}" for T in range(7) for ii in range(2)]

            def M(i):
                return [f"v_mfma_f32_32x32x16_bf16 {vr(ACC[T],16)}, {ar(BF[i%2]+4*T,4)}, {slot(i)}, {'0' if i == 0 else vr(ACC[T],16)}" for T in range(7)]
            toks = {}
            a.e("\n".join(R(0)))
            toks[0] = a.lg_tok()
            self.poll(14, f"s{sTMP}", 15)
            self.stamp(9)
            vt = {}
            for i in range(PD):
                a.e("\n".join(aload(i)))
                vt[i] = a.vm_tok()
            gtok = {}
            mine = lambda c: (c & 1) != kp
            pend = []
            if "g12c" in EXP:
                for g in self.gu_dma(1 if mine(1) else 2):
                    a.e(g)
            gtok[1 if mine(1) else 2] = a.vm_tok()
            if mine(3):
                pend += [(3, g) for g in self.gu_dma(3)]
            for i in range(16):
                c = i // 2
                a.wait_lg(toks[i])
                if i % 2 == 1 and c + 1 < 8:
                    if mine(c + 1):
                        assert (c + 1) in gtok and not any(p[0] == c + 1 for p in pend)
                        a.wait_vm(gtok[c + 1])
                    a.e("s_barrier")
                    if c + 4 < 8 and mine(c + 4):
                        pend += [(c + 4, g) for g in self.gu_dma(c + 4)]
                    if c == 6:
                        pend += [(100, g) for g in self.d_dma(0)]
                    if c == 4 and "nodt" not in EXP:
                        pend += [(101, f"s_mul_i32 s92, s{sT}, 57344\ns_lshl_b32 s93, s{sW}, 13\ns_add_u32 s92, s92, s93\n"
                                       f"buffer_load_dword v2, v10, s[{S_WD}:{S_WD+3}], s92 offen")]
                r = R(i + 1) if i < 15 else []
                a.wait_vm(vt[i])
                extra = []
                if i + PD < 16:
                    extra.append(("a", i + PD))
                for _ in range(3):
                    if pend:
                        extra.append(("d", pend.pop(0)))
                m = M(i)
                seq = interleave(m, r)
                pos = [k for k, x in enumerate(seq) if x.startswith("v_mfma")]
                ins_at = {pos[min(2 * n + 1, len(pos) - 1)]: e for n, e in enumerate(extra)}
                for k, x in enumerate(seq):
                    a.e(x)
                    if k in ins_at:
                        kind, val = ins_at[k]
                        if kind == "a":
                            a.e("\n".join(aload(val)))
                            vt[val] = a.vm_tok()
                        else:
                            a.e(val[1])
                            gtok[val[0]] = a.vm_tok()
                if r:
                    toks[i + 1] = a.lg_tok()
            assert not pend
            self.stamp(17)
            keep = [0, 1, 2, 3] if kp == 0 else [4, 5, 6]
            give = [4, 5, 6] if kp == 0 else [0, 1, 2, 3]
            wbase, wstr = (L_XB, 12288) if kp == 0 else (L_XA, 16384)
            rbase, rstr = (L_XA, 16384) if kp == 0 else (L_XB, 12288)
            a.e(f"""
s_mul_i32 s{sTMP+5}, s{sW3}, {wstr}
s_add_u32 s{sTMP+5}, s{sTMP+5}, {wbase}
v_add_u32 v12, s{sTMP+5}, v11
s_mul_i32 s{sTMP+5}, s{sW3}, {rstr}
s_add_u32 s{sTMP+5}, s{sTMP+5}, {rbase}
v_add_u32 v13, s{sTMP+5}, v11
s_barrier
""")
            for n, T in enumerate(give):
                for q in range(4):
                    a.e(f"ds_write_b128 v12, {vr(ACC[T]+4*q,4)} offset:{n*4096 + q*1024}")
            K0 = -2.0 * 0.7978845608028654 * LOG2E
            K1 = K0 * 0.044715
            a.e(f"v_mov_b32 v9, {f2u(K1):#x}\nv_mov_b32 v8, {f2u(K0):#x}")
            a.e(f"""
s_lshl_b32 s{sTMP+5}, s{sRB}, 2
s_add_u32 s{sTMP+5}, s{sTMP+5}, s{sW3}
s_mul_i32 s{sTMP+5}, s{sTMP+5}, {112*1024}
s_mul_i32 s{sTMP+6}, s{sJ}, {7*1024}
s_add_u32 s{sTMP+5}, s{sTMP+5}, s{sTMP+6}
s_lshl_b32 s{sTMP+6}, s{sWH}, 12
s_add_u32 s{sTMP+5}, s{sTMP+5}, s{sTMP+6}
s_add_u32 s{sTMP+5}, s{sTMP+5}, {ACT}
s_lshl_b32 s{sTMP+6}, s{sP}, 5
s_lshl_b32 s{sTMP+7}, s{sW}, 2
s_add_u32 s{sTMP+6}, s{sTMP+6}, s{sTMP+7}
s_add_u32 s{sTMP+6}, s{sTMP+6}, {FL_ACT}
v_mov_b32 v14, s{sTAG}
v_mov_b32 v15, 0
s_waitcnt lgkmcnt(0)
s_barrier
""")
            land = give + ([give[0]] if len(keep) > len(give) else [])
            rt = {}
            for n, T in enumerate(keep[:len(give)]):
                for q in range(4):
                    a.e(f"ds_read_b128 {vr(ACC[land[n]]+4*q,4)}, v13 offset:{n*4096 + q*1024}")
                rt[n] = a.lg_tok()
            PKo = 128
            outs = []
            for n, T in enumerate(keep):
                g = ACC[T]
                if n >= len(give):
                    for q in range(4):
                        a.e(f"ds_read_b128 {vr(ACC[land[n]]+4*q,4)}, v13 offset:{n*4096 + q*1024}")
                    rt[n] = a.lg_tok()
                a.wait_lg(rt[n])
                p = ACC[land[n]]
                for q in range(8):
                    a.e(f"v_pk_add_f32 v[{g+2*q}:{g+2*q+1}], v[{g+2*q}:{g+2*q+1}], v[{p+2*q}:{p+2*q+1}]")
                t = p
                P2 = lambda b, q: f"v[{b+2*q}:{b+2*q+1}]"
                for q in range(4):
                    a.e(f"v_pk_mul_f32 {P2(t,q)}, {P2(g,q)}, {P2(g,q)}")
                for q in range(4):
                    a.e(f"v_pk_fma_f32 {P2(t,q)}, {P2(t,q)}, v[8:9], v[8:9] op_sel:[0,1,0] op_sel_hi:[1,1,0]")
                for q in range(4):
                    a.e(f"v_pk_mul_f32 {P2(t,q)}, {P2(t,q)}, {P2(g,q)}")
                for r in range(8):
                    a.e(f"v_exp_f32 v{t+r}, v{t+r}")
                for q in range(4):
                    a.e(f"v_pk_mul_f32 {P2(g,q)}, {P2(g,q)}, {P2(g+8,q)}")
                for r in range(8):
                    a.e(f"v_add_f32 v{t+r}, 1.0, v{t+r}")
                for r in range(8):
                    a.e(f"v_rcp_f32 v{t+r}, v{t+r}")
                for q in range(4):
                    a.e(f"v_pk_mul_f32 {P2(g,q)}, {P2(g,q)}, {P2(t,q)}")
                for q in range(4):
                    a.e(f"v_cvt_pk_bf16_f32 v{g+8+q}, v{g+2*q}, v{g+2*q+1}")
                st = f"buffer_store_dwordx4 v[{g+8}:{g+11}], v11, {WS}, s{sTMP+5} offen offset:{1024*n}"
                if "actflag" in EXP:
                    a.e(st + " sc1")
                    if n == len(keep) - 1:
                        self.store_sel(self.flag_seq(f"s{sTMP+6}"))
                else:
                    if n == len(keep) - 1:
                        st += "\n" + self.flag_seq(f"s{sTMP+6}")
                    a.e("\n".join((l + " sc1") if l.startswith("buffer_store") else l for l in st.split("\n")))

        L3 = a.label("Lgu3")
        Lj = a.label("Lguj")
        a.e(f"s_cmp_ge_u32 s{sW}, 4\ns_cbranch_scc1 {L3}")
        v0_, l0_ = a.vm_issued, a.lg_issued
        body(0)
        a.e(f"s_branch {Lj}\n{L3}:")
        a.vm_issued, a.lg_issued = v0_, l0_
        body(1)
        a.e(f"{Lj}:")
        self.stamp(10)

    def phase5(self):
        a = self.a
        a.e(f"""
s_add_u32 s{sTMP}, s89, {FL_ACT}
s_lshr_b32 s{sTMP+5}, s{sW}, 1
s_mul_i32 s{sTMP+2}, s88, {112*1024}
s_mul_i32 s{sTMP+1}, s{sTMP+5}, {28*1024}
s_add_u32 s{sTMP+2}, s{sTMP+2}, s{sTMP+1}
s_add_u32 s{sTMP+2}, s{sTMP+2}, {ACT}
s_lshl_b32 s{sTMP+1}, s{sTMP+5}, 13
v_add_u32 v154, s{sTMP+1}, v154
v_add_u32 v155, s{sTMP+1}, v155
""")
        for si in range(4):
            a.e(f"v_add_u32 v{140+2*si}, {D_SLOT[si]}, v154\nv_add_u32 v{141+2*si}, {D_SLOT[si]}, v155")
        ACC = 16
        BF = [48, 56]
        NA = 20
        PD = int(os.environ.get("DPD", "16"))
        DV = os.environ.get("DV", "c")
        AF = lambda s: ar(4 * (s % NA), 4)

        def R(s):
            c, sl = s // 4, s % 4
            return [f"ds_read_b64_tr_b16 {vr(BF[s%2]+4*t+2*i,2)}, v{140+2*(c%4)+t} offset:{(16*sl+4*i)*128}" for t in range(2) for i in range(2)]

        def M(s):
            return [f"v_mfma_f32_32x32x16_bf16 {vr(ACC+16*t,16)}, {vr(BF[s%2]+4*t,4)}, {AF(s)}, {'0' if s == 0 else vr(ACC+16*t,16)}" for t in range(2)]

        def aload(s):
            out = []
            if s % 4 == 0 and s > 0:
                out.append(f"s_add_u32 s{sTMP+2}, s{sTMP+2}, 4096")
            out.append(f"buffer_load_dwordx4 {AF(s)}, v11, {WS}, s{sTMP+2} offen offset:{(s%4)*1024} " + ("" if "dplain" in EXP else "sc1"))
            return out

        a.e("s_barrier")
        if DV == "c":
            for c_ in (1, 2, 3):
                a.e("\n".join(self.d_dma(c_)))
        a.e("\n".join(R(0)))
        toks = {0: a.lg_tok()}
        self.poll(153, f"s{sTMP}", 15)
        self.stamp(11)
        vt = {}
        dtok = {}
        pend = []
        if DV == "a":
            for s in range(PD):
                a.e("\n".join(aload(s)))
                vt[s] = a.vm_tok()
                if s in (3, 7, 11):
                    a.e("\n".join(self.d_dma(1 + s // 4)))
                    dtok[1 + s // 4] = a.vm_tok()
        elif DV == "c":
            for s in range(PD):
                a.e("\n".join(aload(s)))
                vt[s] = a.vm_tok()
            for c_ in (1, 2, 3):
                dtok[c_] = a.vm_tok() - PD
        else:
            for s in range(PD):
                a.e("\n".join(aload(s)))
                vt[s] = a.vm_tok()
                if s == 3:
                    a.e("\n".join(self.d_dma(1)))
                    dtok[1] = a.vm_tok()
            pend += [(2, g) for g in self.d_dma(2)] + [(3, g) for g in self.d_dma(3)]
        for s in range(28):
            c, sl = s // 4, s % 4
            a.wait_lg(toks[s])
            if sl == 3 and c + 1 < 7:
                if c + 1 >= 1:
                    a.wait_vm(dtok[c + 1])
                a.e("s_barrier")
                if "fined" in EXP:
                    self.stamp(13 + c)
                if c + 4 < 7:
                    pend += [(c + 4, g) for g in self.d_dma(c + 4)]
            r = R(s + 1) if s < 27 else []
            a.wait_vm(vt[s])
            a.e("\n".join(interleave(M(s), r)))
            if r:
                toks[s + 1] = a.lg_tok()
            if s + PD < 28:
                a.e("\n".join(aload(s + PD)))
                vt[s + PD] = a.vm_tok()
            for _ in range(2 if DV != "a" else 1):
                if pend:
                    cc, g = pend.pop(0)
                    a.e(g)
                    dtok[cc] = a.vm_tok()
        self.stamp(25)
        a.e("s_barrier")
        AO = 48
        self.reduce_scatter4(ACC, L_RED2, AO)
        X1P = 132
        for q in range(4):
            a.e(f"v_lshlrev_b32 v{64+2*q}, 16, v{X1P+q}\nv_and_b32 v{65+2*q}, 0xffff0000, v{X1P+q}")
        for r in range(8):
            a.e(f"v_accvgpr_read_b32 v{56+r}, a{88+r}")
        for r in range(8):
            a.e(f"v_fmac_f32 v{64+r}, v{56+r}, v{AO+r}")
        for q in range(4):
            a.e(f"v_cvt_pk_bf16_f32 v{32+q}, v{64+2*q}, v{65+2*q}")
        if "outfull" in EXP:
            L_OT = 96 * 1024
            a.e(f"""
v_and_b32 v12, 31, v1
v_lshlrev_b32 v12, 7, v12
v_lshrrev_b32 v13, 5, v1
v_lshl_add_u32 v12, v13, 4, v12
s_and_b32 s{sTMP+1}, s{sW}, 1
s_lshl_b32 s{sTMP+1}, s{sTMP+1}, 12
s_lshr_b32 s{sTMP+5}, s{sW}, 1
s_lshl_b32 s{sTMP+5}, s{sTMP+5}, 5
s_add_u32 s{sTMP+1}, s{sTMP+1}, s{sTMP+5}
s_add_u32 s{sTMP+1}, s{sTMP+1}, {L_OT}
v_add_u32 v12, s{sTMP+1}, v12
ds_write_b128 v12, v[32:35]
s_lshl_b32 s{sTMP+1}, s{sW}, 10
s_add_u32 s{sTMP+1}, s{sTMP+1}, {L_OT}
v_add_u32 v13, s{sTMP+1}, v11
v_lshrrev_b32 v12, 3, v1
v_lshlrev_b32 v12, 10, v12
v_and_b32 v14, 7, v1
v_lshl_add_u32 v12, v14, 4, v12
s_lshl_b32 s{sTMP+4}, s{sRB}, 17
s_lshr_b32 s{sTMP+3}, s{sJ}, 3
s_lshl_b32 s{sTMP+3}, s{sTMP+3}, 16
s_add_u32 s{sTMP+4}, s{sTMP+4}, s{sTMP+3}
s_lshl_b32 s{sTMP+3}, s{sW}, 13
s_add_u32 s{sTMP+4}, s{sTMP+4}, s{sTMP+3}
s_and_b32 s{sTMP+3}, s{sJ}, 7
s_lshl_b32 s{sTMP+3}, s{sTMP+3}, 7
s_add_u32 s{sTMP+4}, s{sTMP+4}, s{sTMP+3}
s_waitcnt lgkmcnt(0)
s_barrier
ds_read_b128 v[36:39], v13
s_waitcnt lgkmcnt(0)
buffer_store_dwordx4 v[36:39], v12, s[{S_OUT}:{S_OUT+3}], s{sTMP+4} offen{" sc1" if "outwt" in EXP else (" nt" if "outnt" in EXP else "")}
""")
        else:
            a.e(f"buffer_store_dwordx4 v[32:35], v151, s[{S_OUT}:{S_OUT+3}], s80 offen" + (" sc1" if "outwt" in EXP else (" nt" if "outnt" in EXP else "")))
        self.stamp(12)

    def finish(self):
        a = self.a
        Lx = a.label("Lfin")
        a.e(f"s_cmp_lg_u32 s2, 0\ns_cbranch_scc1 {Lx}\ns_cmp_lg_u32 s{sW}, 7\ns_cbranch_scc1 {Lx}\ns_cmp_eq_u32 s101, 1\ns_cbranch_scc1 {Lx}")
        for q in range(4):
            a.e(f"v_lshlrev_b32 v12, 3, v1\nv_add_u32 v12, {4 + 512*q}, v12\ns_mov_b32 s{sTMP}, {XID}")
            self.poll(12, f"s{sTMP}", 13)
        a.e(f"v_mov_b32 v14, s{sTAG}\nv_mov_b32 v15, 0\ns_mov_b64 exec, 1")
        self.nocount(f"buffer_store_dword v14, v15, {WS}, 0 offen offset:{EPOCH} sc1")
        a.e(f"{Lx}:")
        a.e("L_END:\ns_endpgm\nL_CODE_END:")

    def build(self):
        ph = [self.phase0, self.phase1, self.phase2, self.phase3, self.phase4, self.phase5]
        for i, p in enumerate(ph):
            if i <= self.stop_after:
                p()
        self.finish()
        body = self.a.finalize()
        hdr = open("adaLN_cond__sliding_block__geglu_ffn__prompt.s.ref").read().split("; Override launch")[0]
        src = hdr + f"; @launch grid=(256,1,1) block=(512,1,1) lds={LDS_BYTES}\n" + HEADER.format(name=NAME) + body + \
            FOOTER.format(name=NAME, nvgpr=256, nsgpr=102, accum=160)
        return src


if __name__ == "__main__":
    import argparse
    ap = argparse.ArgumentParser()
    ap.add_argument("-o", default="k.s")
    ap.add_argument("--stamps", action="store_true")
    ap.add_argument("--dump", action="store_true")
    ap.add_argument("--stop", type=int, default=99)
    args = ap.parse_args()
    g = Gen(stop_after=args.stop, stamps=args.stamps, dump=args.dump)
    src = g.build()
    open(args.o, "w").write(src)
    print("wrote", args.o, len(src), "bytes; nops", g.a.nops)
```
